```python
import torch

def _softmax(x, axis=-1):
    return torch.softmax(x, dim=axis)

def _gelu(x):
    return torch.nn.functional.gelu(x, approximate='tanh')

def _silu(x):
    return torch.nn.functional.silu(x)

def _sigmoid(x):
    return torch.sigmoid(x)

def _layernorm(x, axis=-1, eps=1e-05):
    m = x.mean(dim=axis, keepdim=True)
    v = x.var(dim=axis, keepdim=True, unbiased=False)
    return (x - m) / torch.sqrt(v + eps)

def _scatter_add(tgt, idx, src, axis=0):
    return tgt.clone().index_add_(axis, idx, src)

def _segment_sum(src, seg, n):
    out = torch.zeros((n,) + src.shape[1:], dtype=src.dtype)
    return out.index_add_(0, seg, src)

def _pad(x, pw):
    flat = tuple((v for pair in reversed(pw) for v in pair))
    return torch.nn.functional.pad(x, flat)
kernel_name = 'standalone__video_timesformer__vision'

def setup_inputs():

    _w = lambda a: (lambda t: t.to(torch.bfloat16) if t.is_floating_point() else t)(torch.as_tensor(a))
    T = 8
    p = 16
    HW = 256 // p * p
    N = (HW // p) ** 2
    C = 384
    return {'x': _w((lambda *s: torch.randn(*s, dtype=torch.bfloat16) * 0.05)(1, T, N, C)), 'wqkv_t': _w((lambda *s: torch.randn(*s, dtype=torch.bfloat16) * 0.05)(C, 3 * C)), 'wo_t': _w((lambda *s: torch.randn(*s, dtype=torch.bfloat16) * 0.05)(C, C)), 'wqkv_s': _w((lambda *s: torch.randn(*s, dtype=torch.bfloat16) * 0.05)(C, 3 * C)), 'wo_s': _w((lambda *s: torch.randn(*s, dtype=torch.bfloat16) * 0.05)(C, C))}

def reference(x, wqkv_t, wo_t, wqkv_s, wo_s):
    B, T, N, C = x.shape
    scale = C ** (-0.5)
    xt = (lambda x, *d: x.permute(*d))(x, 0, 2, 1, 3).reshape(B * N, T, C)
    h = _layernorm(xt, axis=-1)
    qkv = h @ wqkv_t
    q, k, v = (qkv[..., :C].clone(), qkv[..., C:2 * C].clone(), qkv[..., 2 * C:].clone())
    a = _softmax(torch.einsum('btc,bsc->bts', q, k) * scale, axis=-1)
    xt = xt + torch.einsum('bts,bsc->btc', a, v) @ wo_t
    x1 = (lambda x, *d: x.permute(*d))(xt.reshape(B, N, T, C), 0, 2, 1, 3)
    xs = x1.reshape(B * T, N, C)
    h = _layernorm(xs, axis=-1)
    qkv = h @ wqkv_s
    q, k, v = (qkv[..., :C].clone(), qkv[..., C:2 * C].clone(), qkv[..., 2 * C:].clone())
    a = _softmax(torch.einsum('bnc,bmc->bnm', q, k) * scale, axis=-1)
    xs = xs + torch.einsum('bnm,bmc->bnc', a, v) @ wo_s
    return xs.reshape(B, T, N, C)
```

```python
import re
TRANS = ('v_exp_f32', 'v_log_f32', 'v_rcp_f32', 'v_rsq_f32', 'v_sqrt_f32', 'v_sin_f32', 'v_cos_f32')
REG = re.compile(r'(?<![\w.])(?:([vas])\[(\d+):(\d+)\]|([vas])(\d+)|(vcc|exec|m0)(?:_lo|_hi)?)(?![\w\[])')
def regs_of(s):
    out = set()
    for m in REG.finditer(s):
        if m.group(1): out |= {(m.group(1), i) for i in range(int(m.group(2)), int(m.group(3)) + 1)}
        elif m.group(4): out.add((m.group(4), int(m.group(5))))
        else: out.add((m.group(6), 0))
    return out
def split_ops(s):
    ops, depth, cur = [], 0, ''
    for ch in s:
        if ch == '[': depth += 1
        if ch == ']': depth -= 1
        if ch == ',' and depth == 0: ops.append(cur.strip()); cur = ''
        else: cur += ch
    if cur.strip(): ops.append(cur.strip())
    return ops
class I:
    def __init__(s, text, cond=False):
        s.text = text; s.cond = cond
        t = text.split(';')[0].strip()
        s.label = t.endswith(':') or t.startswith('.')
        s.op = t.split()[0] if t else ''
        rest = t[len(s.op):].strip()
        ops = split_ops(rest)
        s.dst = set(); s.src = set(); s.A = s.B = s.C = set(); s.data = set()
        op = s.op
        s.mfma = op.startswith('v_mfma'); s.valu = op.startswith('v_') and not s.mfma
        s.vmem = op.startswith(('buffer_', 'global_')); s.ds = op.startswith('ds_'); s.salu = op.startswith('s_')
        s.dpp = ('_dpp' in op) or ('quad_perm' in t) or ('row_' in t)
        s.perm = 'permlane' in op; s.trans = op.replace('_e32', '').replace('_e64', '') in TRANS
        s.dot = op.startswith('v_dot2'); s.rdl = op.startswith(('v_readfirstlane', 'v_readlane'))
        s.ldsdma = s.vmem and (' lds' in t or 'load_lds' in op)
        s.n = 1
        if s.label or not op: s.n = 0; return
        if op == 's_nop': s.n = int(ops[0], 0) + 1; return
        R = [regs_of(o) for o in ops]
        allr = set().union(*R) if R else set()
        if s.mfma:
            s.dst = R[0]; s.A, s.B, s.C = R[1], R[2], R[3]; s.src = R[1] | R[2] | R[3]
            s.passes = 8 if '32x32' in op else 4
        elif s.perm: s.dst = R[0] | R[1]; s.src = R[0] | R[1]
        elif s.valu:
            s.dst = R[0]; s.src = set().union(*R[1:]) if len(R) > 1 else set()
            if op.startswith(('v_dot2c', 'v_fmac')) or s.dpp: s.src |= R[0]
            if op.startswith(('v_add_co', 'v_addc_co')): s.dst |= R[1]
        elif s.vmem:
            if 'store' in op or 'atomic' in op:
                s.src = allr
                s.data = R[0] if op.startswith('buffer_') else R[1]
                s.wide = op.endswith(('x3', 'x4'))
            elif s.ldsdma: s.src = allr | {('m0', 0)}
            elif op in ('buffer_wbl2', 'buffer_inv'): pass
            else: s.dst = R[0]; s.src = set().union(*R[1:])
        elif s.ds:
            if 'read' in op or 'permute' in op or 'swizzle' in op: s.dst = R[0]; s.src = set().union(*R[1:])
            else: s.src = allr
        elif s.salu:
            if op.startswith(('s_cmp', 's_waitcnt', 's_barrier', 's_cbranch', 's_branch', 's_endpgm', 's_setprio', 's_sleep')): s.src = allr
            else: s.dst = R[0] if R else set(); s.src = set().union(*R[1:]) if len(R) > 1 else set()
            if 'saveexec' in op: s.dst |= {('exec', 0)}
def isv(r): return r[0] in 'va' and len(r[0]) == 1
def need(p, c):
    n = 0
    pv = {r for r in p.dst if isv(r)}
    if p.valu and not p.dot:
        if c.mfma and pv & c.src: n = max(n, 2)
        if (c.dpp or c.perm) and pv & c.src: n = max(n, 2)
        if c.rdl and pv & c.src: n = max(n, 1)
        if p.trans and c.valu and not c.trans and pv & c.src: n = max(n, 1)
    if p.valu:
        ps = {r for r in p.dst if not isv(r)}
        if ps & c.src:
            if c.valu or c.mfma: n = max(n, 2)
            if c.vmem: n = max(n, 5)
            if c.salu: n = max(n, 1)
    if p.dot:
        if c.op == p.op and c.dot:
            if pv & (c.src - c.dst): n = max(n, 3)
        elif (c.valu or c.mfma or c.vmem or c.ds) and pv & (c.src | c.dst): n = max(n, 3)
    if p.mfma:
        big = {4: 8, 8: 12}[p.passes]
        if c.mfma:
            if p.dst & (c.A | c.B): n = max(n, big)
            if p.dst & c.C and not (p.dst == c.C and p.passes == c.passes): n = max(n, big - 2)
            if p.dst & c.dst and not (p.dst & c.C): n = max(n, big)
        elif (c.valu or c.vmem or c.ds) and p.dst & (c.src | c.dst): n = max(n, big)
        if c.valu and p.C & c.dst: n = max(n, {4: 3, 8: 7}[p.passes])
    if p.salu and ('m0', 0) in p.dst and c.ldsdma: n = max(n, 1)
    if p.vmem and p.data and getattr(p, 'wide', False) and p.data & c.dst: n = max(n, 2 if c.valu else 1)
    return n
UID = [0]
class Asm:
    def __init__(s):
        s.ins = []; s.cond = False; s.vm = []; s.lg = []; s.seen = set()
    def __call__(s, text, tag=None):
        for line in text.split('\n'):
            line = line.strip()
            if not line or line.startswith(';'): continue
            i = I(line, s.cond); s.ins.append(i)
            if i.vmem or i.ds: s.seen.add(tag)
            if i.vmem and i.op not in ('buffer_wbl2', 'buffer_inv'): s.vm.append(tag)
            if i.ds: s.lg.append(tag)
    def label(s, name): s.ins.append(I(name + ':'))
    def newlabel(s, p='L'): UID[0] += 1; return f'{p}_{UID[0]}'
    def _cnt(s, lst, tags):
        for t in tags: assert t in s.seen, t
        idx = [k for k, t in enumerate(lst) if t in tags]
        if not idx: return None
        return len(lst) - 1 - max(idx)
    def wait(s, vm=None, lg=None):
        parts = []
        if vm is not None:
            tags = vm if isinstance(vm, (list, tuple, set)) else [vm]
            n = s._cnt(s.vm, tags)
            if n is not None:
                assert n <= 63, n
                parts.append(f'vmcnt({n})'); s.vm = s.vm[len(s.vm) - n:] if n else []
        if lg is not None:
            tags = lg if isinstance(lg, (list, tuple, set)) else [lg]
            n = s._cnt(s.lg, tags)
            if n is not None:
                n = min(n, 15)
                parts.append(f'lgkmcnt({n})'); s.lg = s.lg[len(s.lg) - n:] if n else []
        if parts: s.ins.append(I('s_waitcnt ' + ' '.join(parts), s.cond))
    def wait_all(s, vm=True, lg=True):
        parts = []
        if vm: parts.append('vmcnt(0)'); s.vm = []
        if lg: parts.append('lgkmcnt(0)'); s.lg = []
        s.ins.append(I('s_waitcnt ' + ' '.join(parts), s.cond))
    def text(s):
        out = []; pads = 0
        for c in s.ins:
            if c.n and not c.label:
                dist = 0; req = 0
                for p in reversed(out):
                    if dist >= 20: break
                    if not p.label and p.n:
                        r = need(p, c) - dist
                        req = max(req, r)
                        if not p.cond or c.cond: dist += p.n
                if req > 0:
                    out.append(I(f's_nop {req-1}', c.cond)); pads += req
            out.append(c)
        s.pads = pads
        return '\n'.join(('' if i.label else '  ') + i.text for i in out) + '\n'
```

```python
from gen import *
def k2():
    a = Asm()
    sT, sW, sI = 's40', 's41', 's42'
    sRH, sS, sQT, sCH = 's43', 's44', 's45', 's46'
    sT0, sT1 = 's47', 's48'
    sTag, sXcc, sF1, sF2, sE, sDelta = 's53', 's54', 's55', 's56', 's57', 's58'
    sKo, sKr, sWs, sM, sSt1, sSt2, sQ, sVP, sOut = 's59', 's60', 's61', 's62', 's63', 's64', 's65', 's49', 's50'
    LW, LQ, LP, LT, LML, LO = 0, 40960, 55296, 63488, 67584, 68096
    prologue(a, 'K2_end', ('spatial_kernel', 16) if '--pf' in sys.argv else None)
    vL16, vSt, vW12, vTm, vTb = 10, 11, 12, 13, 14
    a('v_mov_b32 v17, 0\nv_mov_b32 v18, 0')
    a(f'''s_lshr_b32 {sRH}, {sI}, 4
    s_and_b32 {sS}, {sI}, 15
    s_lshr_b32 {sQT}, {sI}, 1
    s_and_b32 {sCH}, {sI}, 1
    v_lshlrev_b32 v{vL16}, 4, v1
    s_mul_i32 {sWs}, {sS}, 39936
    s_lshl_b32 {sM}, {sW}, 10
    s_add_u32 {sWs}, {sWs}, {sM}
    s_add_u32 {sWs}, {sWs}, {WS_W}
    s_mul_i32 s34, {sT}, 196608
    s_mul_i32 s35, {sW}, 24576
    s_add_u32 s34, s34, s35
    s_add_u32 s34, s34, {WS_X1}
    s_mul_i32 s35, {sRH}, 98304
    s_add_u32 {sKo}, s34, s35
    s_sub_u32 {sKr}, s34, s35
    s_add_u32 {sKr}, {sKr}, 98304
    v_lshrrev_b32 v2, 5, v1
    v_xor_b32 v2, {sRH}, v2
    v_and_b32 v3, 31, v1
    v_lshlrev_b32 v3, 4, v3
    v_lshl_add_u32 v{vSt}, v2, 11, v3
    s_mul_i32 s34, {sT}, 12288
    s_lshl_b32 s35, {sW}, 9
    s_add_u32 s34, s34, s35
    s_add_u32 {sSt1}, s34, {WS_ST}''')
    a('s_waitcnt lgkmcnt(0)')
    stamp(a, 'karg')
    srd(a, 16, 32, WS_SIZE); srd(a, 84, 30, 1572864)
    for i in range(10):
        a(f'''s_add_u32 {sT0}, {sWs}, {i*4096}
        s_add_u32 m0, {sM}, {LW + i*4096}
        buffer_load_dwordx4 v{vL16}, {SWS}, {sT0} offen lds''', tag='w')
    SR = 100
    for i in range(3):
        if i: a(f's_add_u32 {sSt1}, {sSt1}, 4096')
        a(f'buffer_load_dwordx4 {vr(SR+4*i,4)}, v{vSt}, {SWS}, {sSt1} offen', tag='st')
    def kld(tile, ks):
        base = sKo if tile < 2 else sKr
        off = (tile & 1)*12288 + ks*1024
        a(f's_add_u32 {sT0}, {base}, {off & ~4095}')
        a(f'buffer_load_dwordx4 {ar((tile*12+ks)*4,4)}, v{vL16}, {SWS}, {sT0} offen offset:{off & 4095}', tag=f'k{tile}_{ks}')
    AHEAD = 4
    for ks in range(AHEAD): kld(0, ks); kld(1, ks)
    stamp(a, 'issued')
    a(f'''s_lshl_b32 s34, {sT}, 7
    s_add_u32 {sE}, s34, {WS_E + 0x2000}
    s_add_u32 {sF1}, s34, {WS_F1 + 0x2000}
    s_lshl_b32 s34, {sT}, 9
    s_add_u32 {sF2}, s34, {WS_F2 + 0x2000}
    s_load_dword {sTag}, s[32:33], {sE}
    s_getreg_b32 {sXcc}, hwreg(HW_REG_XCC_ID)
    s_and_b32 {sXcc}, {sXcc}, 15''')
    a(f'''v_lshrrev_b32 v2, 4, v1
    v_and_b32 v3, 15, v1
    v_cmp_eq_u32 vcc, 3, v2
    v_lshlrev_b32 v4, 4, v3
    v_cndmask_b32 v{vW12}, v{vL16}, v4, vcc
    s_add_u32 s34, {sM}, {LT}
    v_lshl_add_u32 v5, v2, 2, v4
    v_add_u32 v{vTm}, s34, v5
    v_add_u32 v{vTb}, s34, v4
    v_lshl_add_u32 v{vTb+1}, v1, 2, s34
    v_lshl_add_u32 v{vTb+2}, v2, 4, s34
    s_mov_b32 s36, {fbits(1/384)}
    s_mov_b32 s37, {fbits(1e-5)}''')
    a.wait(vm='st')
    a(f'''v_pk_add_f32 {vr(SR,2)}, {vr(SR,2)}, {vr(SR+2,2)}
    v_pk_add_f32 {vr(SR+4,2)}, {vr(SR+4,2)}, {vr(SR+6,2)}
    v_pk_add_f32 {vr(SR+8,2)}, {vr(SR+8,2)}, {vr(SR+10,2)}
    v_pk_add_f32 {vr(SR,2)}, {vr(SR,2)}, {vr(SR+4,2)}
    v_pk_add_f32 {vr(SR,2)}, {vr(SR,2)}, {vr(SR+8,2)}
    v_mul_f32 v{SR}, s36, v{SR}
    v_mul_f32 v{SR+2}, v{SR}, v{SR}
    v_fma_f32 v{SR+1}, v{SR+1}, s36, -v{SR+2}
    v_max_f32 v{SR+1}, 0, v{SR+1}
    v_add_f32 v{SR+1}, s37, v{SR+1}
    v_rsq_f32 v{SR+1}, v{SR+1}
    v_cvt_pk_bf16_f32 v{SR}, -v{SR}, -v{SR}
    s_waitcnt lgkmcnt(0)
    ds_write_b32 v{vTm}, v{SR}
    ds_write_b32 v{vTm}, v{SR+1} offset:256
    ds_write_b32 v{vTb+1}, v{SR+1} offset:512''')
    MT, RT, RD = 104, 108, 112
    a(f'ds_read_b128 {vr(MT,4)}, v{vTb}\nds_read_b128 {vr(RT,4)}, v{vTb} offset:256', tag='t')
    for t in range(4): a(f'ds_read_b128 {vr(RD+4*t,4)}, v{vTb+2} offset:{512+64*t}', tag='t')
    a(f's_mul_i32 {sTag}, {sTag}, 0x9e3779b1\ns_add_u32 {sTag}, {sTag}, 0x7f4a7c15')
    a.wait(lg='t')
    MF = 192
    for t in range(4): a(f'v_cndmask_b32 v{MT+t}, v{MT+t}, 0, vcc')
    for t in range(4):
        for d in range(4): a(f'v_accvgpr_write_b32 a{MF+4*t+d}, v{MT+t}')
    a.wait(vm='w'); a('s_barrier')
    stamp(a, 'mm0')
    WF, ACC, PK = 32, 56, 84
    vA, vB = 17, 18
    def wrd(ks, u):
        d = WF + (ks & 1)*12 + 4*u
        va = vL16 if ks < 12 else vW12
        a(f'ds_read_b128 {vr(d,4)}, v{va} offset:{LW + (ks*3+u)*1024}', tag=f'f{ks}_{u}')
    rest = [(t, ks) for ks in range(12) for t in (2, 3)]
    NPRE = 6
    vmsave, lgsave = None, None
    a(f's_cmp_ge_u32 {sS}, 8\ns_cbranch_scc1 K2_v')
    for var in range(2):
        if var == 0: vmsave, lgsave = list(a.vm), list(a.lg)
        else: a.label('K2_v'); a.vm, a.lg = list(vmsave), list(lgsave)
        rq = list(rest)
        for u in range(3): wrd(0, u)
        for ks in range(13):
            if ks + AHEAD < 12: kld(0, ks + AHEAD); kld(1, ks + AHEAD)
            elif ks >= 10 and len(rq) > len(rest) - NPRE: kld(*rq.pop(0)); kld(*rq.pop(0))
            if ks < 12: a.wait(vm=f'k1_{ks}')
            for u in range(3):
                a.wait(lg=f'f{ks}_{u}')
                wf = vr(WF + (ks & 1)*12 + 4*u, 4)
                for t in range(2):
                    xf = ar((t*12+ks)*4, 4) if ks < 12 else ar(MF+4*t, 4)
                    d = vr(ACC + (t*3+u)*4, 4)
                    cin = '0' if ks == 0 else d
                    A, B = (wf, xf) if var == 0 else (xf, wf)
                    a(f'v_mfma_f32_16x16x32_bf16 {d}, {A}, {B}, {cin}')
                if ks < 12: wrd(ks + 1, u)
            if ks == 1:
                if var == 0:
                    a(f'''v_lshrrev_b32 v4, 5, v1
                    v_bfe_u32 v5, v1, 4, 1
                    v_lshlrev_b32 v{vA}, 4, v3
                    v_mul_u32_u24 v6, 13312, v5
                    v_add_u32 v{vB}, v6, v{vA}
                    v_lshl_add_u32 v{vA}, v4, 8, v{vA}
                    v_lshl_add_u32 v{vA}, v5, 3, v{vA}
                    s_lshr_b32 s34, {sS}, 2
                    s_lshl_b32 s34, s34, 8
                    v_mov_b32 v6, s34
                    v_cmp_eq_u32 vcc, 1, v4
                    v_mov_b32 v7, 512
                    v_cndmask_b32 v6, v6, v7, vcc
                    v_add_u32 v{vB}, v{vB}, v6
                    s_mov_b32 s36, {fbits(SCALE2)}
                    v_mul_f32 v{RT}, s36, v{RT}
                    v_mul_f32 v{RT+1}, s36, v{RT+1}''')
                    a(f'''s_lshl_b32 s34, {sT}, 4
                    s_lshl_b32 s35, {sRH}, 3
                    s_add_u32 s34, s34, s35
                    s_lshl_b32 s35, {sW}, 1
                    s_add_u32 s34, s34, s35
                    s_mul_i32 s34, s34, 13312
                    s_add_u32 s34, s34, {WS_Q}
                    s_mul_i32 s35, {sS}, 1536
                    s_add_u32 {sSt1}, s34, s35
                    s_and_b32 s35, {sS}, 3
                    s_lshl_b32 s35, s35, 2
                    s_add_u32 s34, s34, s35
                    s_add_u32 {sSt2}, s34, 12288''')
                else:
                    a(f'''s_lshl_b32 s34, {sT}, 3
                    s_lshl_b32 s35, {sW}, 1
                    s_add_u32 s34, s34, s35
                    s_add_u32 s34, s34, {sRH}
                    s_mul_i32 s34, s34, 24576
                    s_sub_u32 s35, {sS}, 8
                    s_mul_i32 s35, s35, 3072
                    s_add_u32 s34, s34, s35
                    s_add_u32 {sSt1}, s34, {WS_VP}''')
        stamp(a, 'mmend')
        if var == 0:
            a(f'v_mov_b32 v96, 0\nv_mov_b32 v97, 0\ns_mov_b32 s36, 0x3f803f80')
            for t in range(2):
                for u in range(3):
                    b = ACC + (t*3+u)*4
                    for d in range(2): a(f'v_pk_mul_f32 {vr(b+2*d,2)}, {vr(b+2*d,2)}, {vr(RT,2)} op_sel:[0,{t}] op_sel_hi:[1,{t}]')
                    for d in range(2): a(f'v_cvt_pk_bf16_f32 v{PK+(t*3+u)*2+d}, v{b+2*d}, v{b+2*d+1}')
            def pub0(s1, s2, fl, first=False):
                for t in range(2):
                    if t: a(f's_add_u32 {sT1}, {s1}, 13312')
                    for u in range(3):
                        a(f'buffer_store_dwordx2 {vr(PK+(t*3+u)*2,2)}, v{vA}, {SWS}, {sT1 if t else s1} offen offset:{u*512} {fl}', tag='out')
                if first:
                    for i in range(6):
                        for t in range(2): a(f'v_dot2c_f32_bf16 v{96+t}, s36, v{PK+t*6+i}')
                    for sw in ('v_permlane16_swap_b32', 'v_permlane32_swap_b32'):
                        a(f'v_mov_b32 v98, v96\nv_mov_b32 v99, v97\n{sw} v96, v98\n{sw} v97, v99\nv_add_f32 v96, v96, v98\nv_add_f32 v97, v97, v99')
                    a(f'''v_cmp_eq_u32 vcc, 1, v5
                    v_cndmask_b32 v96, v96, v97, vcc
                    v_cvt_pk_bf16_f32 v97, v96, v96
                    v_lshlrev_b32 v97, 16, v97
                    v_sub_f32 v97, v96, v97
                    v_cvt_pk_bf16_f32 v96, v96, v97
                    v_cmp_eq_u32 vcc, 1, v4
                    v_cndmask_b32 v96, v96, 0, vcc''')
                a(f'buffer_store_dword v96, v{vB}, {SWS}, {s2} offen {fl}', tag='out')
            pub0(sSt1, sSt2, '', True)
        else:
            for u in range(3):
                for t in range(2):
                    b = ACC + (t*3+u)*4
                    for d in range(2): a(f'v_pk_mul_f32 {vr(b+2*d,2)}, {vr(b+2*d,2)}, {vr(RD+4*t+2*d,2)}')
                    for d in range(2): a(f'v_cvt_pk_bf16_f32 v{PK+u*4+t*2+d}, v{b+2*d}, v{b+2*d+1}')
            def pub1(s1, fl):
                for u in range(3): a(f'buffer_store_dwordx4 {vr(PK+4*u,4)}, v{vL16}, {SWS}, {s1} offen offset:{u*1024} {fl}', tag='out')
            pub1(sSt1, '')
        for x in rq: kld(*x)
        a.wait(vm='out')
        if var == 0: a('s_branch K2_j')
    a.label('K2_j')
    a('s_barrier')
    publish_flag(a, sW, sF1, sI, sTag, sXcc, 20)
    stamp(a, 'flag')
    RS = 122 - 22
    RS = 98 + 0
    vR, vP0, vP1, vML, vMLr, vOW, vOR, vOG = 19, 20, 21, 22, 23, 24, 25, 27
    RSD = 6
    RS = 104
    a(f'''v_lshrrev_b32 v4, 5, v1
    v_bfe_u32 v5, v1, 4, 1
    v_lshlrev_b32 v{vR}, 4, v3
    v_lshl_add_u32 v{vR}, v4, 8, v{vR}
    v_lshl_add_u32 v{vR}, v5, 3, v{vR}
    s_mul_i32 s34, {sT}, 196608
    s_mul_i32 s35, {sQT}, 12288
    s_add_u32 s34, s34, s35
    s_mul_i32 s35, {sCH}, 6144
    s_add_u32 s34, s34, s35
    s_mul_i32 s35, {sW}, 1536
    s_add_u32 s34, s34, s35
    s_add_u32 s34, s34, {WS_X1}''')
    for u in range(3): a(f'buffer_load_dwordx2 {vr(RS+2*u,2)}, v{vR}, {SWS}, s34 offen offset:{u*512}', tag='rs')
    a(f'''s_lshl_b32 s34, {sW}, 1
    s_add_u32 s34, s34, {sRH}
    s_lshl_b32 s34, s34, 10
    s_add_u32 s34, s34, {LP}
    v_add_u32 v{vP0}, s34, v{vL16}
    v_xor_b32 v{vP1}, 1024, v{vP0}
    s_lshl_b32 s34, {sW}, 3
    s_add_u32 s34, s34, {LML}
    v_lshl_add_u32 v{vML}, v3, 5, s34
    v_lshlrev_b32 v{vMLr}, 5, v3
    v_add_u32 v{vMLr}, {LML}, v{vMLr}
    s_lshl_b32 s35, {sW}, 11
    s_add_u32 s35, s35, {LO}
    v_mul_u32_u24 v{vOW}, 112, v3
    v_lshl_add_u32 v{vOW}, v2, 3, v{vOW}
    v_add_u32 v{vOW}, s35, v{vOW}''')
    for h in range(2):
        a(f'''v_add_u32 v6, {64*h}, v1
        v_mul_u32_u24 v7, 43, v6
        v_lshrrev_b32 v7, 8, v7
        v_mul_u32_u24 v8, 6, v7
        v_sub_u32 v8, v6, v8
        v_lshlrev_b32 v8, 4, v8
        v_mul_u32_u24 v6, 112, v7
        v_add3_u32 v{vOR+h}, v6, v8, s35
        v_mul_u32_u24 v6, 768, v7
        v_add_u32 v{vOG+h}, v6, v8''')
    a(f'''s_lshl_b32 s34, {sT}, 4
    s_add_u32 s34, s34, {sQT}
    s_mul_i32 {sQ}, s34, 13312
    s_add_u32 {sQ}, {sQ}, {WS_Q}
    s_mul_i32 {sOut}, s34, 12288
    s_mul_i32 s35, {sCH}, 384
    s_add_u32 {sOut}, {sOut}, s35
    s_mul_i32 s35, {sW}, 96
    s_add_u32 {sOut}, {sOut}, s35
    s_mul_i32 {sVP}, {sT}, 196608
    s_mul_i32 s35, {sCH}, 12288
    s_add_u32 {sVP}, {sVP}, s35
    s_mul_i32 s35, {sW}, 3072
    s_add_u32 {sVP}, {sVP}, s35
    s_add_u32 {sVP}, {sVP}, {WS_VP}''')
    def repub():
        L1, L2 = a.newlabel('rp'), a.newlabel('rp')
        a(f's_add_u32 s36, {sSt1}, {SLOW}\ns_add_u32 s37, {sSt2}, {SLOW}\ns_cmp_ge_u32 {sS}, 8\ns_cbranch_scc1 {L1}')
        pub0('s36', 's37', 'sc0 sc1'); a(f's_branch {L2}')
        a.label(L1); pub1('s36', 'sc0 sc1'); a.label(L2)
    sync(a, 32, sF1, sF2, sE, sI, sTag, sXcc, sW, sDelta, repub, 32, None, 'k2s')
    stamp(a, 'synced')
    a(f's_add_u32 {sQ}, {sQ}, {sDelta}\ns_add_u32 {sVP}, {sVP}, {sDelta}\ns_add_u32 {sT1}, {sQ}, {sM}')
    for i in range(3):
        a(f'''s_add_u32 {sT0}, {sT1}, {i*4096}
        s_add_u32 m0, {sM}, {LQ + i*4096}
        buffer_load_dwordx4 v{vL16}, {SWS}, {sT0} offen sc1 lds''', tag='q')
    a(f'''s_add_u32 {sT0}, {sQ}, 12288
    s_mov_b32 m0, {LQ + 12288}
    buffer_load_dwordx4 v{vL16}, {SWS}, {sT0} offen sc1 lds''', tag='q')
    VF = 128
    def vld(k8):
        if k8: a(f's_add_u32 {sVP}, {sVP}, 24576')
        for u in range(3): a(f'buffer_load_dwordx4 {vr(VF+(k8*3+u)*4,4)}, v{vL16}, {SWS}, {sVP} offen offset:{u*1024} sc1', tag=f'vp{k8}')
    vld(0); vld(1)
    bump_epoch(a, sW, sI, sE, sTag, 6)
    a.wait(vm='q'); a('s_barrier')
    stamp(a, 'q_in')
    QF, SA = 32, 84
    for ks in range(13):
        a(f'ds_read_b128 {vr(QF+4*ks,4)}, v{vL16 if ks < 12 else vW12} offset:{LQ + ks*1024}', tag=f'q{ks}')
    for ks in range(13):
        a.wait(lg=f'q{ks}')
        for t in range(4):
            kf = ar((t*12+ks)*4, 4) if ks < 12 else ar(MF+4*t, 4)
            d = vr(SA+4*t, 4)
            a(f'v_mfma_f32_16x16x32_bf16 {d}, {kf}, {vr(QF+4*ks,4)}, {"0" if ks == 0 else d}')
        if ks in (0, 2, 4, 6, 8, 10): vld(2 + ks//2)
        if ks == 12:
            a('s_mov_b32 s36, 0xffff0000')
    stamp(a, 's_done')
    RF = 68
    for i in range(8): a(f'v_pk_mul_f32 {vr(SA+2*i,2)}, {vr(SA+2*i,2)}, {vr(RD+2*i,2)}')
    M_, T_ = 100, 101
    a(f'v_max3_f32 v{M_}, v{SA}, v{SA+1}, v{SA+2}\nv_max3_f32 v{T_}, v{SA+3}, v{SA+4}, v{SA+5}')
    a(f'v_max3_f32 v{M_}, v{M_}, v{SA+6}, v{SA+7}\nv_max3_f32 v{T_}, v{T_}, v{SA+8}, v{SA+9}')
    a(f'v_max3_f32 v{M_}, v{M_}, v{SA+10}, v{SA+11}\nv_max3_f32 v{T_}, v{T_}, v{SA+12}, v{SA+13}')
    a(f'v_max3_f32 v{M_}, v{M_}, v{SA+14}, v{SA+15}\nv_max_f32 v{M_}, v{M_}, v{T_}')
    for sw in ('v_permlane16_swap_b32', 'v_permlane32_swap_b32'):
        a(f'v_mov_b32 v{T_}, v{M_}\n{sw} v{M_}, v{T_}\nv_max_f32 v{M_}, v{M_}, v{T_}')
    for i in range(16): a(f'v_sub_f32 v{SA+i}, v{SA+i}, v{M_}')
    for i in range(16): a(f'v_exp_f32 v{SA+i}, v{SA+i}')
    PW = 60
    for i in range(8): a(f'v_cvt_pk_bf16_f32 v{PW+i}, v{SA+2*i}, v{SA+2*i+1}')
    a(f'ds_write_b128 v{vP0}, {vr(PW,4)}\nds_write_b128 v{vP1}, {vr(PW+4,4)}')
    for w_ in (4, 2, 1):
        for i in range(w_): a(f'v_pk_add_f32 {vr(SA+2*i,2)}, {vr(SA+2*i,2)}, {vr(SA+2*i+2*w_,2)}')
    a(f'v_add_f32 v{T_}, v{SA}, v{SA+1}')
    for sw in ('v_permlane16_swap_b32', 'v_permlane32_swap_b32'):
        a(f'v_mov_b32 v102, v{T_}\n{sw} v{T_}, v102\nv_add_f32 v{T_}, v{T_}, v102')
    a(f's_mov_b64 exec, 0xffff\nds_write_b64 v{vML}, {vr(M_,2)}\ns_mov_b64 exec, -1')
    a('s_waitcnt lgkmcnt(0)'); a.lg = []
    a('s_barrier')
    stamp(a, 'p_done')
    PF, PA, ML = 224, 32, 84
    RF = 112
    a(f'ds_read_b128 {vr(PF,4)}, v{vL16} offset:{LP}', tag='p0')
    a(f'ds_read_b128 {vr(ML,4)}, v{vMLr}\nds_read_b128 {vr(ML+4,4)}, v{vMLr} offset:16', tag='ml')
    for k8 in range(1, 8): a(f'ds_read_b128 {vr(PF+4*k8,4)}, v{vL16} offset:{LP + k8*1024}', tag=f'p{k8}')
    fx = []
    for u in range(3):
        for d in range(2): fx += [f'v_lshlrev_b32 v{RF+4*u+2*d}, 16, v{RS+2*u+d}', f'v_and_b32 v{RF+4*u+2*d+1}, s36, v{RS+2*u+d}']
    fx += [f'v_max3_f32 v92, v{ML}, v{ML+2}, v{ML+4}', f'v_max_f32 v92, v92, v{ML+6}']
    for w_ in range(4): fx.append(f'v_sub_f32 v{ML+2*w_}, v{ML+2*w_}, v92')
    for w_ in range(4): fx.append(f'v_exp_f32 v{ML+2*w_}, v{ML+2*w_}')
    fx += [f'v_mul_f32 v92, v{ML}, v{ML+1}'] + [f'v_fmac_f32 v92, v{ML+2*w_}, v{ML+2*w_+1}' for w_ in range(1, 4)]
    fx += ['v_rcp_f32 v92, v92'] + [f'v_mul_f32 v{ML+2*w_}, v{ML+2*w_}, v92' for w_ in range(4)]
    for k8 in range(8):
        a.wait(vm=f'vp{k8}', lg=f'p{k8}')
        for u in range(3):
            d = vr(PA + (u*4 + (k8 >> 1))*4, 4)
            a(f'v_mfma_f32_16x16x32_bf16 {d}, {vr(VF+(k8*3+u)*4,4)}, {vr(PF+4*k8,4)}, {"0" if k8 % 2 == 0 else d}')
            if k8 >= 1:
                for _ in range(2):
                    if fx: a(fx.pop(0))
    for x in fx: a(x)
    stamp(a, 'pv_done')
    for w_ in range(4):
        for u in range(3):
            for d in range(2):
                b = PA + (u*4 + w_)*4 + 2*d
                a(f'v_pk_fma_f32 {vr(RF+4*u+2*d,2)}, {vr(b,2)}, {vr(ML+2*w_,2)}, {vr(RF+4*u+2*d,2)} op_sel_hi:[1,0,1]')
    OP = 96
    for u in range(3):
        for d in range(2): a(f'v_cvt_pk_bf16_f32 v{OP+2*u+d}, v{RF+4*u+2*d}, v{RF+4*u+2*d+1}')
        a(f'ds_write_b64 v{vOW}, {vr(OP+2*u,2)} offset:{u*32}')
    a('s_waitcnt lgkmcnt(0)'); a.lg = []
    a(f'ds_read_b128 {vr(104,4)}, v{vOR}', tag='o0')
    a(f's_mov_b32 exec_hi, 0\nds_read_b128 {vr(108,4)}, v{vOR+1}\ns_mov_b32 exec_hi, -1', tag='o1')
    a.wait(lg='o0')
    a(f'buffer_store_dwordx4 {vr(104,4)}, v{vOG}, {SOUT}, {sOut} offen')
    a.wait(lg='o1')
    a(f's_mov_b32 exec_hi, 0\nbuffer_store_dwordx4 {vr(108,4)}, v{vOG+1}, {SOUT}, {sOut} offen\ns_mov_b32 exec_hi, -1')
    if PROFILE: a.wait_all()
    stamp(a, 'end')
    stamp_flush(a, 1)
    a.label('K2_end')
    a('s_endpgm')
    return a
```

```python
import sys, math
sys.path.insert(0, 'gen')
from asm import Asm
PROFILE = '--prof' in sys.argv
WS_V  = 0x000000
WS_S  = 0x180000
WS_X1 = 0x240000
WS_ST = 0x3C0000
WS_W  = 0x3E0000
WS_Q  = 0x480000
WS_VP = 0x620000
WS_F1 = 0x7A0000
WS_F2 = 0x7A4000
WS_E  = 0x7A8000
WS_PROF = 0x7C0000
SLOW = 0x800000
WS_SIZE = 0x1000000
LIM_FAST = 12
LIM_SLOW = 1 << 20
SCALE2 = 384 ** -0.5 * math.log2(math.e)
import struct
def fbits(x): return '0x%08x' % struct.unpack('<I', struct.pack('<f', x))[0]
def vr(b, n): return f'v[{b}:{b+n-1}]' if n > 1 else f'v{b}'
def ar(b, n): return f'a[{b}:{b+n-1}]' if n > 1 else f'a{b}'
SX, SWQ, SWO, SWS, SOUT = 's[4:7]', 's[8:11]', 's[12:15]', 's[16:19]', 's[84:87]'
def srd(a, base, ptr, size):
    a(f's_mov_b32 s{base}, s{ptr}\ns_mov_b32 s{base+1}, s{ptr+1}\ns_mov_b32 s{base+2}, {size}\ns_mov_b32 s{base+3}, 0x20000')
STAMP_REGS = [66, 68, 70, 72, 74, 76, 78, 80, 82, 88, 90, 92, 94, 96, 98, 100]
def stamp(a, name):
    if not PROFILE: return
    if not hasattr(a, 'stamps'): a.stamps = []
    if name not in a.stamps: a.stamps.append(name)
    k = a.stamps.index(name)
    a(f's_memrealtime s[{STAMP_REGS[k]}:{STAMP_REGS[k]+1}]')
def stamp_flush(a, kern, n=0):
    if not PROFILE: return
    a('s_waitcnt lgkmcnt(0)')
    for k in range(16): a(f'v_mov_b32 v{100+k}, s{STAMP_REGS[k]}')
    a(f'''v_lshrrev_b32 v8, 6, v0
    s_lshl_b32 s34, s2, 2
    v_add_u32 v8, s34, v8
    v_lshlrev_b32 v8, 6, v8
    v_add_u32 v8, {WS_PROF + kern*0x10000}, v8''')
    for k in range(4): a(f'buffer_store_dwordx4 v[{100+4*k}:{103+4*k}], v8, {SWS}, 0 offen offset:{16*k}')

def sync(a, n, sF1, sF2, sE, sMem, sTag, sXcc, sW, sDelta, republish, v0t, isleader, name):
    va, vb, vc = v0t, v0t+1, v0t+2
    vd = v0t + 4
    Lf, Ls, Ld, Lsl = [a.newlabel(name) for _ in range(4)]
    a(f'''s_mov_b32 exec_lo, {hex((1 << n) - 1)}
    s_mov_b32 exec_hi, 0
    v_lshlrev_b32 v{va}, 2, v1
    s_add_u32 s34, {sTag}, {sXcc}
    s_add_u32 s34, s34, 1
    v_mov_b32 v{vb}, s34
    s_mov_b32 {sDelta}, 0
    s_mov_b32 s35, {LIM_FAST}''')
    a.label(Lf)
    a(f'buffer_load_dword v{vc}, v{va}, {SWS}, {sF1} offen sc1')
    a.wait_all(lg=False)
    a(f'''v_cmp_ne_u32 vcc, v{vc}, v{vb}
    s_cbranch_vccz {Ld}
    s_sub_u32 s35, s35, 1
    s_cmp_lg_u32 s35, 0
    s_cbranch_scc1 {Lf}''')
    a.cond = True
    a('s_mov_b64 exec, -1')
    republish()
    a.wait_all(lg=False)
    a(f'''s_mov_b64 exec, 1
    s_lshl_b32 s34, {sMem}, 4
    s_lshl_b32 s35, {sW}, 2
    s_add_u32 s34, s34, s35
    v_mov_b32 v{vc}, s34
    v_mov_b32 v{vd}, {sTag}
    buffer_store_dword v{vd}, v{vc}, {SWS}, {sF2} offen sc0 sc1
    s_mov_b32 exec_lo, {hex((1 << n) - 1)}
    v_lshlrev_b32 v{vc+1}, 4, v1
    s_mov_b32 s35, {LIM_SLOW}''')
    a.label(Ls)
    a(f'''buffer_load_dword v{vc}, v{va}, {SWS}, {sF1} offen sc1
    buffer_load_dwordx4 v[{vd}:{vd+3}], v{vc+1}, {SWS}, {sF2} offen sc0 sc1''')
    a.wait_all(lg=False)
    a(f'''v_cmp_ne_u32 vcc, v{vc}, v{vb}
    s_cbranch_vccz {Ld}
    v_xor_b32 v{vd}, {sTag}, v{vd}
    v_xor_b32 v{vd+1}, {sTag}, v{vd+1}
    v_xor_b32 v{vd+2}, {sTag}, v{vd+2}
    v_xor_b32 v{vd+3}, {sTag}, v{vd+3}
    v_or_b32 v{vd}, v{vd}, v{vd+1}
    v_or3_b32 v{vd}, v{vd}, v{vd+2}, v{vd+3}
    v_cmp_ne_u32 vcc, 0, v{vd}
    s_cbranch_vccz {Lsl}
    s_sub_u32 s35, s35, 1
    s_cmp_lg_u32 s35, 0
    s_cbranch_scc1 {Ls}''')
    a.label(Lsl)
    a(f's_mov_b32 {sDelta}, {SLOW}')
    a.cond = False
    a.label(Ld)
    a('s_mov_b64 exec, -1')

def publish_flag(a, sW, sF1, sMem, sTag, sXcc, v0t):
    L = a.newlabel('pf')
    a(f's_cmp_lg_u32 {sW}, 0\ns_cbranch_scc1 {L}')
    a.cond = True
    n0 = len(a.vm)
    a(f'''s_mov_b64 exec, 1
    s_add_u32 s34, {sTag}, {sXcc}
    s_add_u32 s34, s34, 1
    s_lshl_b32 s35, {sMem}, 2
    v_mov_b32 v{v0t}, s35
    v_mov_b32 v{v0t+1}, s34
    buffer_store_dword v{v0t+1}, v{v0t}, {SWS}, {sF1} offen
    s_mov_b64 exec, -1''')
    a.vm.pop()
    a.cond = False
    a.label(L)
def bump_epoch(a, sW, sMem, sE, sTag, v0t):
    L = a.newlabel('be')
    a(f's_or_b32 s34, {sW}, {sMem}\ns_cmp_lg_u32 s34, 0\ns_cbranch_scc1 {L}')
    a.cond = True
    a(f'''s_mov_b64 exec, 1
    v_mov_b32 v{v0t}, 0
    v_mov_b32 v{v0t+1}, {sTag}
    buffer_store_dword v{v0t+1}, v{v0t}, {SWS}, {sE} offen sc0 sc1
    s_mov_b64 exec, -1''')
    a.vm.pop()
    a.cond = False
    a.label(L)

def prologue(a, endlabel):
    a(f'''s_cmp_ge_u32 s2, 256
    s_cbranch_scc1 {endlabel}
    s_load_dwordx4 s[20:23], s[0:1], 0
    s_load_dwordx4 s[24:27], s[0:1], 16
    s_load_dwordx4 s[28:31], s[0:1], 32
    s_load_dwordx2 s[32:33], s[0:1], 56
    v_and_b32 v1, 63, v0
    v_lshrrev_b32 v2, 6, v0
    s_and_b32 s40, s2, 7
    v_readfirstlane_b32 s41, v2
    s_lshr_b32 s42, s2, 3''')
    stamp(a, 'start')

def k1():
    a = Asm()
    sXCD, sW, sI = 's40', 's41', 's42'
    sG, sJ, sP, sHF = 's43', 's44', 's45', 's46'
    sX, sWb, sM, sO, sT0, sT1 = 's47', 's48', 's49', 's50', 's51', 's52'
    sTag, sXcc, sF1, sF2, sE, sDelta = 's53', 's54', 's55', 's56', 's57', 's58'
    sVst, sSst, sVld, sSld, sX1, sST = 's59', 's60', 's61', 's62', 's63', 's64'
    prologue(a, 'K1_end')
    a(f'''s_cmp_ge_u32 {sI}, 24
    s_cbranch_scc1 K1_pre
    s_mul_i32 s34, {sI}, 43
    s_lshr_b32 s34, s34, 8
    s_mul_i32 s35, s34, 6
    s_sub_u32 {sJ}, {sI}, s35
    s_lshl_b32 {sG}, {sXCD}, 2
    s_add_u32 {sG}, {sG}, s34
    s_lshr_b32 {sP}, {sW}, 1
    s_and_b32 {sHF}, {sW}, 1''')
    T8, G8 = 2, 3
    vX, vW, vO, vNW, vXF, vAW = 10, 11, 12, 13, 14, 18
    a(f'''v_lshrrev_b32 v{T8}, 3, v1
    v_and_b32 v{G8}, 7, v1
    s_mov_b32 s34, 196608
    v_mul_lo_u32 v{vX}, v{T8}, s34
    v_lshl_add_u32 v{vX}, v{G8}, 4, v{vX}
    s_lshl_b32 s34, {sG}, 3
    s_lshl_b32 s35, {sW}, 1
    s_add_u32 s34, s34, s35
    s_mul_i32 {sX}, s34, 768
    v_lshlrev_b32 v4, 1, v{T8}
    v_and_b32 v4, 4, v4
    v_xor_b32 v4, v4, v{G8}
    v_mul_u32_u24 v{vW}, 2304, v{T8}
    v_lshl_add_u32 v{vW}, v4, 4, v{vW}
    s_mul_i32 {sWb}, {sW}, {16*2304}
    s_lshl_b32 s34, {sJ}, 7
    s_add_u32 {sWb}, {sWb}, s34
    s_lshl_b32 {sM}, {sW}, 11''')
    a('s_waitcnt lgkmcnt(0)')
    stamp(a, 'karg')
    srd(a, 4, 20, 1572864); srd(a, 8, 22, 884736); srd(a, 16, 32, WS_SIZE); srd(a, 12, 24, 294912)
    RX = 32
    for th in range(2):
        for jj in range(6):
            a(f'buffer_load_dwordx4 {vr(RX+(th*6+jj)*4, 4)}, v{vX}, {SX}, {sX} offen offset:{th*768+jj*128}', tag='x')
    SLOT = [0, 24576, 49152, 73728, 98304, 122880]
    XREG = 98304; XR = 147456
    def wdma(c):
        for P in range(3):
            for h8 in range(2):
                a(f'''s_add_u32 {sT0}, {sWb}, {c*147456 + P*768 + h8*18432}
                s_add_u32 m0, {sM}, {SLOT[c] + P*8192 + h8*1024}
                buffer_load_dwordx4 v{vW}, {SWQ}, {sT0} offen lds''', tag=f'w{c}')
    for c in range(4): wdma(c)
    stamp(a, 'issued')
    a(f'''s_lshl_b32 s34, {sG}, 7
    s_add_u32 {sE}, s34, {WS_E}
    s_add_u32 {sF1}, s34, {WS_F1}
    s_add_u32 {sF2}, s34, {WS_F2}
    s_load_dword {sTag}, s[32:33], {sE}
    s_getreg_b32 {sXcc}, hwreg(HW_REG_XCC_ID)
    s_and_b32 {sXcc}, {sXcc}, 15''')
    a(f'''s_lshl_b32 s34, {sHF}, 4
    v_add_u32 v4, s34, v{T8}
    v_xor_b32 v4, v4, v{G8}
    v_lshlrev_b32 v4, 4, v4
    v_lshl_add_u32 v4, v{G8}, 9, v4
    s_mul_i32 s35, {sP}, 24576
    s_add_u32 s35, s35, {XREG}
    v_add_u32 v{vNW}, s35, v4''')
    a(f'''v_and_b32 v4, 31, v1
    v_lshrrev_b32 v5, 5, v1
    v_xor_b32 v4, v4, v5
    v_lshlrev_b32 v4, 4, v4
    v_lshl_add_u32 v4, v5, 9, v4
    v_add_u32 v{vXF}, s35, v4''')
    for k in range(1, 4): a(f'v_xor_b32 v{vXF+k}, {32*k}, v{vXF}')
    a(f'''v_bfe_u32 v6, v1, 2, 2
    v_lshl_add_u32 v4, v5, 3, v6
    v_lshlrev_b32 v4, 7, v4
    v_lshrrev_b32 v7, 1, v6
    v_xor_b32 v7, {sHF}, v7
    v_lshl_add_u32 v4, v7, 6, v4
    v_bfe_u32 v7, v1, 4, 1
    v_lshl_add_u32 v4, v7, 5, v4
    v_and_b32 v7, 1, v1
    v_lshl_add_u32 v4, v7, 4, v4
    v_bfe_u32 v7, v1, 1, 1
    v_lshl_add_u32 v{vAW}, v7, 3, v4
    v_add_u32 v{vAW+1}, 0x10000, v{vAW}
    v_add_u32 v{vAW+2}, 0x20000, v{vAW}''')
    a(f'''v_and_b32 v4, 2, v{T8}
    s_lshl_b32 s34, {sHF}, 2
    v_or_b32 v4, s34, v4
    v_xor_b32 v4, v4, v{G8}
    v_mul_u32_u24 v{vO}, 768, v{T8}
    v_lshl_add_u32 v{vO}, v4, 4, v{vO}
    s_mul_i32 {sO}, {sW}, 6144
    s_lshl_b32 s34, {sJ}, 7
    s_add_u32 {sO}, {sO}, s34''')
    ST = 80
    a(f'v_mov_b32 v{ST}, 0\nv_mov_b32 v{ST+1}, 0\nv_mov_b32 v{ST+2}, 0\nv_mov_b32 v{ST+3}, 0\ns_mov_b32 s36, 0x3f803f80')
    a.wait(vm='x')
    stamp(a, 'x_in')
    for d in range(24):
        for th in range(2): a(f'v_dot2c_f32_bf16 v{ST+th}, s36, v{RX+th*24+d}')
        for th in range(2): a(f'v_dot2c_f32_bf16 v{ST+2+th}, v{RX+th*24+d}, v{RX+th*24+d}')
    for m in ('quad_perm:[1,0,3,2]', 'quad_perm:[2,3,0,1]', 'row_half_mirror'):
        for k in range(4): a(f'v_add_f32_dpp v{ST+k}, v{ST+k}, v{ST+k} {m} row_mask:0xf bank_mask:0xf')
    a(f's_mov_b32 s36, {fbits(1/384)}\ns_mov_b32 s37, {fbits(1e-5)}')
    for th in range(2): a(f'v_mul_f32 v{ST+th}, s36, v{ST+th}')
    for th in range(2): a(f'v_mul_f32 v{ST+4+th}, v{ST+th}, v{ST+th}')
    for th in range(2): a(f'v_fma_f32 v{ST+2+th}, v{ST+2+th}, s36, -v{ST+4+th}')
    for th in range(2): a(f'v_max_f32 v{ST+2+th}, 0, v{ST+2+th}')
    for th in range(2): a(f'v_add_f32 v{ST+2+th}, s37, v{ST+2+th}')
    for th in range(2): a(f'v_rsq_f32 v{ST+4+2*th}, v{ST+2+th}')
    for th in range(2): a(f'v_mul_f32 v{ST+8+2*th}, -v{ST+th}, v{ST+4+2*th}' .replace('v_mul_f32', 'v_mul_f32_e64'))
    a('s_mov_b32 s36, 0xffff0000')
    TMP = 92
    for th in range(2):
        for jj in range(6):
            b = RX + (th*6+jj)*4
            for d in range(4): a(f'v_lshlrev_b32 v{TMP+2*d}, 16, v{b+d}\nv_and_b32 v{TMP+2*d+1}, s36, v{b+d}')
            for d in range(4): a(f'v_pk_fma_f32 {vr(TMP+2*d,2)}, {vr(TMP+2*d,2)}, {vr(ST+4+2*th,2)}, {vr(ST+8+2*th,2)} op_sel_hi:[1,0,0]')
            for d in range(4): a(f'v_cvt_pk_bf16_f32 v{b+d}, v{TMP+2*d}, v{TMP+2*d+1}')
            a(f'ds_write_b128 v{vNW}, {vr(b,4)} offset:{th*128+jj*4096}', tag='nw')
    a('s_waitcnt lgkmcnt(0)'); a.lg = []
    stamp(a, 'normed')
    a('s_barrier')
    for ks in range(24):
        a(f'ds_read_b128 {ar(4*ks,4)}, v{vXF+(ks&3)} offset:{(ks>>2)*4096+(ks&3)*1024}', tag='xf')
    a(f's_mul_i32 {sTag}, {sTag}, 0x9e3779b1\ns_add_u32 {sTag}, {sTag}, 0x7f4a7c15')
    a.wait(vm='w0', lg='xf')
    a('s_barrier')
    stamp(a, 'mm0')
    wdma(4); wdma(5)
    WF = 100; ACC = 128
    def trd(ks, P):
        c, k4 = ks >> 2, ks & 3
        off = SLOT[c] + P*8192 + k4*2048
        base = vAW + (off >> 16); off &= 0xffff
        d = WF + (ks & 1)*12 + P*4
        a(f'ds_read_b64_tr_b16 {vr(d,2)}, v{base} offset:{off}\nds_read_b64_tr_b16 {vr(d+2,2)}, v{base} offset:{off+512}', tag=f'f{ks}_{P}')
    for P in range(3): trd(0, P)
    for ks in range(24):
        nxt = ks + 1
        if nxt < 24 and (nxt & 3) == 0:
            c = nxt >> 2
            a.wait(vm=f'w{c}'); a('s_barrier')
            if c in (2, 4, 5): stamp(a, f'c{c}')
            if c == 3:
                for i in range(12):
                    a(f'''s_add_u32 {sT0}, {sO}, {i*24576}
                    s_lshr_b32 {sT1}, {sM}, 1
                    s_add_u32 m0, {sT1}, {i*4096}
                    buffer_load_dwordx4 v{vO}, {SWO}, {sT0} offen lds''', tag='wo')
                for th in range(2):
                    a(f'''s_lshl_b32 {sT1}, {sJ}, 7
                    s_add_u32 {sT0}, {sX}, {sT1}
                    s_add_u32 {sT0}, {sT0}, {th*768}
                    s_add_u32 m0, {sM}, {XR + th*1024}
                    buffer_load_dwordx4 v{vX}, {SX}, {sT0} offen lds''', tag='xr')
        for P in range(3):
            a.wait(lg=f'f{ks}_{P}')
            d = WF + (ks & 1)*12 + P*4
            cin = '0' if ks == 0 else vr(ACC+16*P, 16)
            a(f'v_mfma_f32_32x32x16_bf16 {vr(ACC+16*P,16)}, {vr(d,4)}, {ar(4*ks,4)}, {cin}')
            if nxt < 24: trd(nxt, P)
        if ks == 1:
            vVst, vSst, vL16, vSld, vX1, vST, vXRd, vAO = 21, 22, 23, 24, 25, 26, 27, 28
            a(f'''v_bfe_u32 v4, v1, 4, 1
            v_lshrrev_b32 v5, 5, v1
            v_and_b32 v6, 15, v1
            v_mul_u32_u24 v{vVst}, 12288, v4
            v_lshl_add_u32 v{vVst}, v5, 8, v{vVst}
            v_lshl_add_u32 v{vVst}, v6, 4, v{vVst}
            v_lshlrev_b32 v{vSst}, 9, v4
            v_lshl_add_u32 v{vSst}, v5, 8, v{vSst}
            v_lshl_add_u32 v{vSst}, v{G8}, 5, v{vSst}
            v_bfe_u32 v7, v1, 3, 1
            v_lshl_add_u32 v{vSst}, v7, 4, v{vSst}
            v_lshlrev_b32 v{vL16}, 4, v1''')
        if ks == 2:
            a(f'''v_lshlrev_b32 v{vSld}, 11, v5
            v_lshl_add_u32 v{vSld}, v4, 8, v{vSld}
            v_lshl_add_u32 v{vSld}, v6, 4, v{vSld}
            v_bfe_u32 v7, v1, 1, 3
            v_and_b32 v8, 1, v1
            s_mov_b32 s34, 196608
            v_mul_lo_u32 v{vX1}, v7, s34
            v_lshl_add_u32 v{vX1}, v4, 9, v{vX1}
            v_lshl_add_u32 v{vX1}, v5, 8, v{vX1}
            v_lshl_add_u32 v{vX1}, v8, 4, v{vX1}
            v_mul_u32_u24 v{vST}, 12288, v7
            v_lshl_add_u32 v{vST}, v8, 4, v{vST}''')
        if ks == 4:
            a(f'''v_lshlrev_b32 v{vXRd}, 10, v8
            v_lshl_add_u32 v{vXRd}, v7, 7, v{vXRd}
            v_lshrrev_b32 v9, 4, v1
            v_lshl_add_u32 v{vXRd}, v9, 3, v{vXRd}
            s_add_u32 s34, {sM}, {XR}
            v_add_u32 v{vXRd}, s34, v{vXRd}
            v_bfe_u32 v7, v1, 2, 2
            v_lshl_add_u32 v{vAO}, v9, 3, v7
            v_lshlrev_b32 v{vAO}, 7, v{vAO}
            v_lshrrev_b32 v7, 1, v7
            v_lshl_add_u32 v7, v4, 1, v7
            v_lshl_add_u32 v{vAO}, v7, 5, v{vAO}''')
        if ks == 5:
            a(f'''v_and_b32 v7, 3, v1
            v_lshl_add_u32 v{vAO}, v7, 3, v{vAO}
            v_xor_b32 v{vAO+1}, 32, v{vAO}
            v_xor_b32 v{vAO+2}, 64, v{vAO}
            v_xor_b32 v{vAO+3}, 96, v{vAO}
            v_cmp_eq_u32 vcc, v5, v8
            v_cndmask_b32 v9, 0, 1.0, vcc''')
            a(f'''s_mul_i32 s34, {sG}, 49152
            s_add_u32 s34, s34, {WS_V}
            s_mul_i32 s35, {sW}, 12288
            s_add_u32 {sVld}, s34, s35
            s_mul_i32 s35, {sP}, 24576
            s_add_u32 s34, s34, s35
            s_lshl_b32 s35, {sJ}, 1
            s_add_u32 s35, s35, {sHF}
            s_lshl_b32 s36, s35, 10
            s_add_u32 {sVst}, s34, s36
            s_mul_i32 s34, {sG}, 24576
            s_add_u32 s34, s34, {WS_S}
            s_lshl_b32 s36, {sW}, 9
            s_add_u32 {sSld}, s34, s36
            s_lshl_b32 s36, s35, 11
            s_add_u32 s34, s34, s36
            s_lshl_b32 s36, {sP}, 10
            s_add_u32 {sSst}, s34, s36''')
        if ks == 6:
            a(f'''s_lshr_b32 s34, {sG}, 1
            s_mul_i32 s34, s34, 12288
            s_lshl_b32 s35, {sJ}, 11
            s_add_u32 s34, s34, s35
            s_and_b32 s35, {sG}, 1
            s_lshl_b32 s35, s35, 7
            s_add_u32 s34, s34, s35
            s_lshl_b32 s35, {sW}, 5
            s_add_u32 s34, s34, s35
            s_add_u32 {sX1}, s34, {WS_X1}
            s_lshr_b32 s34, {sJ}, 1
            s_lshl_b32 s34, s34, 12
            s_lshl_b32 s36, {sG}, 7
            s_add_u32 s34, s34, s36
            s_add_u32 s34, s34, s35
            s_and_b32 s36, {sJ}, 1
            s_lshl_b32 s36, s36, 3
            s_add_u32 s34, s34, s36
            s_add_u32 {sST}, s34, {WS_ST}''')
    stamp(a, 'mmend')
    PQ, PK, PV, SC = 32, 40, 48, 176
    for P, d in ((0, PQ), (1, PK)):
        for i in range(8): a(f'v_cvt_pk_bf16_f32 v{d+i}, v{ACC+16*P+2*i}, v{ACC+16*P+2*i+1}')
    a(f'v_mfma_f32_32x32x16_bf16 {vr(SC,16)}, {vr(PK,4)}, {vr(PQ,4)}, 0')
    a(f'v_mfma_f32_32x32x16_bf16 {vr(SC,16)}, {vr(PK+4,4)}, {vr(PQ+4,4)}, {vr(SC,16)}')
    for i in range(8): a(f'v_cvt_pk_bf16_f32 v{PV+i}, v{ACC+32+2*i}, v{ACC+32+2*i+1}')
    def pub_a(sv, ss, fl):
        a(f'buffer_store_dwordx4 {vr(PV,4)}, v{vVst}, {SWS}, {sv} offen {fl}', tag='st')
        a(f'buffer_store_dwordx4 {vr(PV+4,4)}, v{vVst}, {SWS}, {sv} offen offset:512 {fl}', tag='st')
        for b in range(4):
            m = 0xff << (8*b)
            a(f's_mov_b32 exec_lo, {hex(m)}\ns_mov_b32 exec_hi, {hex(m)}')
            a(f'buffer_store_dwordx4 {vr(SC+4*b,4)}, v{vSst}, {SWS}, {ss} offen {fl}', tag='st')
        a('s_mov_b64 exec, -1')
    pub_a(sVst, sSst, '')
    stamp(a, 'stored')
    a.wait_all()
    a('s_barrier')
    publish_flag(a, sW, sF1, sJ, sTag, sXcc, 2)
    stamp(a, 'flag')
    RES = 136
    for u in range(4): a(f'ds_read_b64 {vr(96+2*u,2)}, v{vXRd} offset:{u*32}', tag='xrd')
    for s in range(12):
        for u in range(4):
            d = (s*4+u)*4
            a(f'ds_read_b64_tr_b16 {ar(d,2)}, v{vAO+u} offset:{s*4096}\nds_read_b64_tr_b16 {ar(d+2,2)}, v{vAO+u} offset:{s*4096+512}', tag=f'o{s}')
        if s == 1:
            a.wait(lg='xrd')
            a('s_mov_b32 s36, 0xffff0000')
            for u in range(4):
                for d in range(2): a(f'v_lshlrev_b32 v{RES+4*u+2*d}, 16, v{96+2*u+d}\nv_and_b32 v{RES+4*u+2*d+1}, s36, v{96+2*u+d}')
    def repub():
        a(f's_add_u32 s36, {sVst}, {SLOW}\ns_add_u32 s37, {sSst}, {SLOW}')
        pub_a('s36', 's37', 'sc0 sc1')
    sync(a, 6, sF1, sF2, sE, sJ, sTag, sXcc, sW, sDelta, repub, 56, None, 'k1s')
    stamp(a, 'synced')
    VF, SP, Y = 192, 96, 120
    a(f's_add_u32 {sVld}, {sVld}, {sDelta}\ns_add_u32 {sSld}, {sSld}, {sDelta}')
    def vld(s):
        if s & 3 == 0 and s: a(f's_add_u32 {sVld}, {sVld}, 4096')
        a(f'buffer_load_dwordx4 {vr(VF+4*s,4)}, v{vL16}, {SWS}, {sVld} offen offset:{(s&3)*1024} sc1', tag=f'v{s}')
    for s in range(2): vld(s)
    for i in range(6):
        if i: a(f's_add_u32 {sSld}, {sSld}, 4096')
        a(f'buffer_load_dwordx4 {vr(SP+4*i,4)}, v{vSld}, {SWS}, {sSld} offen sc1', tag=f's{i}')
    for s in range(2, 12): vld(s)
    bump_epoch(a, sW, sJ, sE, sTag, 2)
    a('s_waitcnt lgkmcnt(0)'); a.lg = []
    sm = []
    sm.append(('w', 's1'))
    for i in range(1, 6):
        if i > 1: sm.append(('w', f's{i}'))
        for d in range(2): sm.append(f'v_pk_add_f32 {vr(SP+2*d,2)}, {vr(SP+2*d,2)}, {vr(SP+4*i+2*d,2)}')
    for d in range(4): sm.append(f'v_mov_b32 v{SP+4+d}, v{SP+d}')
    for d in range(4): sm.append(f'v_permlane32_swap_b32 v{SP+d}, v{SP+4+d}')
    for d in range(4): sm.append(f'v_add_f32 v{SP+d}, v{SP+d}, v{SP+4+d}')
    sm += [f'v_max_f32 v{SP+4}, v{SP}, v{SP+1}', f'v_max3_f32 v{SP+4}, v{SP+4}, v{SP+2}, v{SP+3}', f'v_mov_b32 v{SP+5}, v{SP+4}',
           f'v_permlane16_swap_b32 v{SP+4}, v{SP+5}', f'v_max_f32 v{SP+4}, v{SP+4}, v{SP+5}', f's_mov_b32 s36, {fbits(SCALE2)}',
           f'v_mul_f32 v{SP+4}, s36, v{SP+4}']
    for d in range(4): sm.append(f'v_fma_f32 v{SP+d}, v{SP+d}, s36, -v{SP+4}')
    for d in range(4): sm.append(f'v_exp_f32 v{SP+d}, v{SP+d}')
    sm += [f'v_add_f32 v{SP+4}, v{SP}, v{SP+1}', f'v_add_f32 v{SP+5}, v{SP+2}, v{SP+3}', f'v_add_f32 v{SP+4}, v{SP+4}, v{SP+5}',
           f'v_mov_b32 v{SP+5}, v{SP+4}', f'v_permlane16_swap_b32 v{SP+4}, v{SP+5}', f'v_add_f32 v{SP+4}, v{SP+4}, v{SP+5}',
           f'v_rcp_f32 v{SP+4}, v{SP+4}', f'v_mul_f32 v{SP+4}, v{SP+4}, v9']
    for d in range(4): sm.append(f'v_mul_f32 v{SP+d}, v{SP+d}, v{SP+4}')
    PP = 152
    sm += [f'v_cvt_pk_bf16_f32 v{PP}, v{SP}, v{SP+1}', f'v_cvt_pk_bf16_f32 v{PP+1}, v{SP+2}, v{SP+3}']
    def drain(n):
        while n > 0 and sm:
            x = sm.pop(0)
            if isinstance(x, tuple): a.wait(vm=x[1])
            else: a(x); n -= 1
    for s in range(12):
        a.wait(vm=f'v{s}')
        for u in range(4):
            cin = '0' if s == 0 else vr(Y+4*u, 4)
            a(f'v_mfma_f32_16x16x32_bf16 {vr(Y+4*u,4)}, {vr(VF+4*s,4)}, {ar((s*4+u)*4,4)}, {cin}')
            if s >= 2: drain(2)
    drain(1000)
    stamp(a, 'ygemm')
    YP = 156
    for u in range(4):
        for d in range(2): a(f'v_cvt_pk_bf16_f32 v{YP+2*u+d}, v{Y+4*u+2*d}, v{Y+4*u+2*d+1}')
    for u in range(4):
        a(f'v_mfma_f32_16x16x16_bf16 {vr(RES+4*u,4)}, {vr(YP+2*u,2)}, {vr(PP,2)}, {vr(RES+4*u,4)}')
    XO = 164
    a(f'v_mov_b32 v{ST}, 0\nv_mov_b32 v{ST+1}, 0\ns_mov_b32 s36, 0x3f803f80')
    for u in range(4):
        for d in range(2): a(f'v_cvt_pk_bf16_f32 v{XO+2*u+d}, v{RES+4*u+2*d}, v{RES+4*u+2*d+1}')
    for i in range(8): a(f'v_dot2c_f32_bf16 v{ST}, s36, v{XO+i}\nv_dot2c_f32_bf16 v{ST+1}, v{XO+i}, v{XO+i}')
    for u in (0, 2):
        for d in range(2): a(f'v_permlane16_swap_b32 v{XO+2*u+d}, v{XO+2*u+2+d}')
    a(f'buffer_store_dwordx4 {vr(XO,4)}, v{vX1}, {SWS}, {sX1} offen')
    a(f'buffer_store_dwordx4 {vr(XO+4,4)}, v{vX1}, {SWS}, {sX1} offen offset:1024')
    for sw in ('v_permlane16_swap_b32', 'v_permlane32_swap_b32'):
        a(f'v_mov_b32 v{ST+2}, v{ST}\nv_mov_b32 v{ST+3}, v{ST+1}')
        a(f'{sw} v{ST}, v{ST+2}\n{sw} v{ST+1}, v{ST+3}')
        a(f'v_add_f32 v{ST}, v{ST}, v{ST+2}\nv_add_f32 v{ST+1}, v{ST+1}, v{ST+3}')
    a(f's_mov_b64 exec, 0xffff\nbuffer_store_dwordx2 {vr(ST,2)}, v{vST}, {SWS}, {sST} offen\ns_mov_b64 exec, -1')
    if PROFILE: a.wait_all()
    stamp(a, 'end')
    stamp_flush(a, 0, 6)
    a('s_endpgm')
    a.label('K1_pre'); a.vm = []; a.lg = []
    sSp, sMm, sIt, sJt, sA, sB = 's43', 's44', 's45', 's46', 's47', 's48'
    a(f'''s_sub_u32 {sSp}, {sI}, 24
    s_lshl_b32 {sSp}, {sSp}, 3
    s_add_u32 {sSp}, {sSp}, {sXCD}
    s_cmp_ge_u32 {sSp}, 36
    s_cbranch_scc1 K1_end
    s_cmp_ge_u32 {sSp}, 18
    s_cselect_b32 {sMm}, 1, 0
    s_mul_i32 s34, {sMm}, 18
    s_sub_u32 s34, {sSp}, s34
    s_mul_i32 {sIt}, s34, 43
    s_lshr_b32 {sIt}, {sIt}, 8
    s_mul_i32 s35, {sIt}, 6
    s_sub_u32 {sJt}, s34, s35''')
    vA0, vA1, vBo, vAr, vBr = 10, 11, 12, 14, 18
    a(f'''v_lshrrev_b32 v2, 3, v1
    v_and_b32 v3, 7, v1
    v_lshrrev_b32 v4, 1, v2
    v_xor_b32 v4, v4, v3
    v_mul_u32_u24 v5, 2304, v2
    v_lshl_add_u32 v{vA0}, v4, 4, v5
    v_xor_b32 v{vA1}, 64, v{vA0}
    v_lshlrev_b32 v4, 1, v2
    v_and_b32 v4, 4, v4
    v_xor_b32 v4, v4, v3
    v_mul_u32_u24 v5, 768, v2
    v_lshl_add_u32 v{vBo}, v4, 4, v5
    s_lshl_b32 s34, {sIt}, 2
    s_add_u32 s34, s34, {sW}
    s_mul_i32 {sA}, s34, {32*2304}
    s_mul_i32 s35, {sMm}, 1536
    s_add_u32 {sA}, {sA}, s35
    s_mul_i32 {sM}, {sW}, 24576''')
    a('s_waitcnt lgkmcnt(0)')
    srd(a, 8, 26, 884736); srd(a, 12, 28, 294912); srd(a, 16, 32, WS_SIZE)
    BB = 98304
    a(f'''v_and_b32 v2, 31, v1
    v_lshrrev_b32 v3, 5, v1
    v_and_b32 v4, 19, v2
    v_bfe_u32 v5, v2, 2, 1
    v_lshl_add_u32 v4, v5, 3, v4
    v_bfe_u32 v5, v2, 3, 1
    v_lshl_add_u32 v4, v5, 2, v4
    v_lshrrev_b32 v5, 3, v4
    v_mul_u32_u24 v5, 6144, v5
    v_and_b32 v6, 7, v4
    v_lshl_add_u32 v5, v6, 7, v5
    v_bfe_u32 v6, v4, 1, 3
    v_xor_b32 v6, v6, v3
    v_lshl_add_u32 v5, v6, 4, v5
    v_add_u32 v{vAr}, {sM}, v5''')
    for k in range(1, 4): a(f'v_xor_b32 v{vAr+k}, {32*k}, v{vAr}')
    FA, FB, AC = 32, 48, 128
    for m in range(2):
        if m == 0: a(f's_cmp_eq_u32 {sMm}, 1\ns_cbranch_scc1 K1_pre1')
        else: a.label('K1_pre1'); a.vm = []; a.lg = []
        if m == 0:
            a(f'''s_lshl_b32 s34, {sJt}, 2
            s_add_u32 s34, s34, {sW}
            s_mul_i32 {sB}, s34, {16*2304}
            s_add_u32 {sB}, {sB}, 768
            s_mul_i32 {sT1}, {sW}, 12288
            v_lshrrev_b32 v5, 3, v2
            v_mul_u32_u24 v5, 6144, v5
            v_and_b32 v6, 7, v2
            v_lshl_add_u32 v5, v6, 7, v5
            v_bfe_u32 v6, v2, 1, 3
            v_xor_b32 v6, v6, v3
            v_lshl_add_u32 v5, v6, 4, v5
            v_add_u32 v{vBr}, {BB}, v5''')
            for k in range(1, 4): a(f'v_xor_b32 v{vBr+k}, {32*k}, v{vBr}')
        else:
            a(f'''s_mul_i32 {sB}, {sW}, {16*768}
            s_lshl_b32 s34, {sJt}, 7
            s_add_u32 {sB}, {sB}, s34
            s_lshl_b32 {sT1}, {sW}, 11
            v_bfe_u32 v6, v1, 2, 2
            v_lshl_add_u32 v4, v3, 3, v6
            v_lshlrev_b32 v4, 7, v4
            v_lshrrev_b32 v7, 1, v6
            v_lshl_add_u32 v4, v7, 6, v4
            v_bfe_u32 v7, v1, 4, 1
            v_lshl_add_u32 v4, v7, 5, v4
            v_and_b32 v7, 3, v1
            v_lshl_add_u32 v4, v7, 3, v4
            v_add_u32 v{vBr}, {BB}, v4
            v_xor_b32 v{vBr+1}, 64, v{vBr}''')
        for jj in range(6):
            for r in range(4):
                a(f'''s_add_u32 {sT0}, {sA}, {r*8*2304 + jj*128}
                s_add_u32 m0, {sM}, {(r*6+jj)*1024}
                buffer_load_dwordx4 v{vA0+(r&1)}, {SWQ}, {sT0} offen lds''', tag=f'p{jj}')
            for r in range(2):
                if m == 0:
                    a(f'''s_add_u32 {sT0}, {sB}, {r*8*2304 + jj*128}
                    s_add_u32 m0, {sT1}, {BB + (r*6+jj)*1024}
                    buffer_load_dwordx4 v{vA0+r}, {SWQ}, {sT0} offen lds''', tag=f'p{jj}')
                else:
                    a(f'''s_add_u32 {sT0}, {sB}, {(jj*64 + r*8)*768}
                    s_add_u32 m0, {sT1}, {BB + jj*8192 + r*1024}
                    buffer_load_dwordx4 v{vBo}, {SWO}, {sT0} offen lds''', tag=f'p{jj}')
        for jj in range(6):
            a.wait(vm=f'p{jj}'); a('s_barrier')
            for k4 in range(4):
                a(f'ds_read_b128 {vr(FA+4*k4,4)}, v{vAr+k4} offset:{jj*1024}', tag=f'r{k4}')
                for v in range(2):
                    d = FB + (k4*2+v)*4
                    if m == 0: a(f'ds_read_b128 {vr(d,4)}, v{vBr+k4} offset:{v*24576+jj*1024}', tag=f'r{k4}')
                    else:
                        o = jj*8192 + k4*2048
                        a(f'ds_read_b64_tr_b16 {vr(d,2)}, v{vBr+v} offset:{o}\nds_read_b64_tr_b16 {vr(d+2,2)}, v{vBr+v} offset:{o+512}', tag=f'r{k4}')
            for k4 in range(4):
                a.wait(lg=f'r{k4}')
                for v in range(2):
                    cin = '0' if (jj == 0 and k4 == 0) else vr(AC+16*v, 16)
                    a(f'v_mfma_f32_32x32x16_bf16 {vr(AC+16*v,16)}, {vr(FA+4*k4,4)}, {vr(FB+(k4*2+v)*4,4)}, {cin}')
        if m == 0: a('s_branch K1_pre2')
    a.label('K1_pre2')
    a(f'''s_mul_i32 s34, {sMm}, 24
    s_lshl_b32 s35, {sJt}, 2
    s_add_u32 s34, s34, s35
    v_bfe_u32 v4, v1, 4, 1
    v_add_u32 v4, s34, v4
    v_and_b32 v7, 15, v1
    v_lshlrev_b32 v7, 4, v7
    s_lshl_b32 s35, {sIt}, 2
    s_add_u32 s35, s35, {sW}
    s_mul_i32 s35, s35, 3072
    s_add_u32 s35, s35, {WS_W}
    s_lshl_b32 s36, {sIt}, 8
    s_lshl_b32 s37, {sW}, 2
    s_add_u32 s36, s36, s37
    s_add_u32 s36, s36, {WS_W + 12*3072}
    s_mov_b32 s37, 0x3f803f80''')
    for v in range(2):
        a(f'''v_add_u32 v5, {2*v}, v4
        v_mul_u32_u24 v6, 43, v5
        v_lshrrev_b32 v6, 7, v6
        v_mul_u32_u24 v8, 3, v6
        v_sub_u32 v5, v5, v8
        v_mul_u32_u24 v6, 39936, v6
        v_lshl_add_u32 v6, v5, 10, v6
        v_add_u32 v{20+v}, v6, v7
        v_lshl_add_u32 v{22+v}, v3, 8, v{20+v}
        v_mov_b32 v{24+v}, 0''')
        for i in range(8): a(f'v_cvt_pk_bf16_f32 v{32+8*v+i}, v{AC+16*v+2*i}, v{AC+16*v+2*i+1}')
        a(f'buffer_store_dwordx4 {vr(32+8*v,4)}, v{22+v}, {SWS}, s35 offen')
        a(f'buffer_store_dwordx4 {vr(36+8*v,4)}, v{22+v}, {SWS}, s35 offen offset:512')
        for i in range(8): a(f'v_dot2c_f32_bf16 v{24+v}, s37, v{32+8*v+i}')
    for v in range(2):
        a(f'''v_mov_b32 v26, v{24+v}
        v_permlane32_swap_b32 v{24+v}, v26
        v_add_f32 v26, v26, v{24+v}
        v_cvt_pk_bf16_f32 v27, v26, v26
        v_lshlrev_b32 v27, 16, v27
        v_sub_f32 v27, v26, v27
        v_cvt_pk_bf16_f32 v{28+v}, v26, v27''')
    a('s_mov_b32 exec_hi, 0')
    for v in range(2): a(f'buffer_store_dword v{28+v}, v{20+v}, {SWS}, s36 offen')
    a('s_mov_b64 exec, -1')
    if PROFILE:
        a.wait_all(); stamp(a, 'end'); stamp_flush(a, 0, 6)
    a.label('K1_end')
    a('s_endpgm')
    return a

def kernel_text(name, a):
    return f'.globl {name}\n.p2align 8\n.type {name},@function\n{name}:\n' + a.text()
def desc(name):
    return f'''.p2align 6
.amdhsa_kernel {name}
  .amdhsa_next_free_vgpr 512
  .amdhsa_next_free_sgpr 102
  .amdhsa_accum_offset 256
  .amdhsa_group_segment_fixed_size 0
  .amdhsa_kernarg_size 64
  .amdhsa_user_sgpr_count 2
  .amdhsa_user_sgpr_kernarg_segment_ptr 1
  .amdhsa_system_sgpr_workgroup_id_x 1
.end_amdhsa_kernel
'''
HEAD = open('standalone__video_timesformer__vision.s.ref').read().split('; Override launch')[0]
if __name__ == '__main__':
    out = sys.argv[1]
    ks = [('temporal_kernel', k1(), 155648)]
    try:
        from gen2 import k2
        if '--k1only' not in sys.argv: ks.append(('spatial_kernel', k2(), 81920))
    except ImportError: pass
    s = HEAD + ''.join(f'; @launch kernel={n} grid=(256,1,1) block=(256,1,1) lds={l}\n' for n, _, l in ks)
    s += '.amdgcn_target "amdgcn-amd-amdhsa--gfx950"\n.text\n' + ''.join(kernel_text(n, a) for n, a, _ in ks)
    s += '.section .rodata,"a"\n' + ''.join(desc(n) for n, _, _ in ks)
    open(out, 'w').write(s)
    if PROFILE: open(out + '.stamps', 'w').write(repr([a.stamps for _, a, _ in ks]))
    for n, a, _ in ks: print(n, 'instructions', sum(1 for i in a.ins if not i.label), 'pad states', a.pads)
```

```python
import sys, math
sys.path.insert(0, 'gen')
from asm import Asm
PROFILE = '--prof' in sys.argv
WS_V  = 0x000000
WS_S  = 0x180000
WS_X1 = 0x240000
WS_ST = 0x3C0000
WS_W  = 0x3E0000
WS_Q  = 0x480000
WS_VP = 0x620000
WS_F1 = 0x7A0000
WS_F2 = 0x7A4000
WS_E  = 0x7A8000
WS_PROF = 0x7C0000
SLOW = 0x800000
WS_SIZE = 0x1000000
LIM_FAST = int([x for x in sys.argv if x.startswith('--lim=')][0][6:]) if any(x.startswith('--lim=') for x in sys.argv) else 12
LIM_SLOW = 1 << 20
SCALE2 = 384 ** -0.5 * math.log2(math.e)
import struct
def fbits(x): return '0x%08x' % struct.unpack('<I', struct.pack('<f', x))[0]
def vr(b, n): return f'v[{b}:{b+n-1}]' if n > 1 else f'v{b}'
def ar(b, n): return f'a[{b}:{b+n-1}]' if n > 1 else f'a{b}'
SX, SWQ, SWO, SWS, SOUT = 's[4:7]', 's[8:11]', 's[12:15]', 's[16:19]', 's[84:87]'
def srd(a, base, ptr, size):
    a(f's_mov_b32 s{base}, s{ptr}\ns_mov_b32 s{base+1}, s{ptr+1}\ns_mov_b32 s{base+2}, {size}\ns_mov_b32 s{base+3}, 0x20000')
STAMP_REGS = [66, 68, 70, 72, 74, 76, 78, 80, 82, 88, 90, 92, 94, 96, 98, 100]
def stamp(a, name):
    if not PROFILE: return
    if not hasattr(a, 'stamps'): a.stamps = []
    if name not in a.stamps: a.stamps.append(name)
    k = a.stamps.index(name)
    a(f's_memrealtime s[{STAMP_REGS[k]}:{STAMP_REGS[k]+1}]')
def stamp_flush(a, kern, n=0):
    if not PROFILE: return
    a('s_waitcnt lgkmcnt(0)')
    for k in range(16): a(f'v_mov_b32 v{100+k}, s{STAMP_REGS[k]}')
    a(f'''v_lshrrev_b32 v8, 6, v0
    s_lshl_b32 s34, s2, 2
    v_add_u32 v8, s34, v8
    v_lshlrev_b32 v8, 6, v8
    v_add_u32 v8, {WS_PROF + kern*0x10000}, v8''')
    for k in range(4): a(f'buffer_store_dwordx4 v[{100+4*k}:{103+4*k}], v8, {SWS}, 0 offen offset:{16*k}')

def sync(a, n, sF1, sF2, sE, sMem, sTag, sXcc, sW, sDelta, republish, v0t, isleader, name):
    va, vb, vc = v0t, v0t+1, v0t+2
    vd = v0t + 4
    Lf, Ls, Ld, Lsl = [a.newlabel(name) for _ in range(4)]
    a(f'''s_mov_b32 exec_lo, {hex((1 << n) - 1)}
    s_mov_b32 exec_hi, 0
    v_lshlrev_b32 v{va}, 2, v1
    s_add_u32 s34, {sTag}, {sXcc}
    s_add_u32 s34, s34, 1
    v_mov_b32 v{vb}, s34
    s_mov_b32 {sDelta}, 0
    s_mov_b32 s35, {LIM_FAST}''')
    a.label(Lf)
    a(f'buffer_load_dword v{vc}, v{va}, {SWS}, {sF1} offen sc1')
    a.wait_all(lg=False)
    a(f'''v_cmp_ne_u32 vcc, v{vc}, v{vb}
    s_cbranch_vccz {Ld}
    s_sub_u32 s35, s35, 1
    s_cmp_lg_u32 s35, 0
    s_cbranch_scc1 {Lf}''')
    a.cond = True
    a('s_mov_b64 exec, -1')
    republish()
    a.wait_all(lg=False)
    a(f'''s_mov_b64 exec, 1
    s_lshl_b32 s34, {sMem}, 4
    s_lshl_b32 s35, {sW}, 2
    s_add_u32 s34, s34, s35
    v_mov_b32 v{vc}, s34
    v_mov_b32 v{vd}, {sTag}
    buffer_store_dword v{vd}, v{vc}, {SWS}, {sF2} offen sc0 sc1
    s_mov_b32 exec_lo, {hex((1 << n) - 1)}
    v_lshlrev_b32 v{vc+1}, 4, v1
    s_mov_b32 s35, {LIM_SLOW}''')
    a.label(Ls)
    a(f'''buffer_load_dword v{vc}, v{va}, {SWS}, {sF1} offen sc1
    buffer_load_dwordx4 v[{vd}:{vd+3}], v{vc+1}, {SWS}, {sF2} offen sc0 sc1''')
    a.wait_all(lg=False)
    a(f'''v_cmp_ne_u32 vcc, v{vc}, v{vb}
    s_cbranch_vccz {Ld}
    v_xor_b32 v{vd}, {sTag}, v{vd}
    v_xor_b32 v{vd+1}, {sTag}, v{vd+1}
    v_xor_b32 v{vd+2}, {sTag}, v{vd+2}
    v_xor_b32 v{vd+3}, {sTag}, v{vd+3}
    v_or_b32 v{vd}, v{vd}, v{vd+1}
    v_or3_b32 v{vd}, v{vd}, v{vd+2}, v{vd+3}
    v_cmp_ne_u32 vcc, 0, v{vd}
    s_cbranch_vccz {Lsl}
    s_sub_u32 s35, s35, 1
    s_cmp_lg_u32 s35, 0
    s_cbranch_scc1 {Ls}''')
    a.label(Lsl)
    a(f's_mov_b32 {sDelta}, {SLOW}')
    a.cond = False
    a.label(Ld)
    a('s_mov_b64 exec, -1')

def publish_flag(a, sW, sF1, sMem, sTag, sXcc, v0t):
    L = a.newlabel('pf')
    a(f's_cmp_lg_u32 {sW}, 0\ns_cbranch_scc1 {L}')
    a.cond = True
    n0 = len(a.vm)
    a(f'''s_mov_b64 exec, 1
    s_add_u32 s34, {sTag}, {sXcc}
    s_add_u32 s34, s34, 1
    s_lshl_b32 s35, {sMem}, 2
    v_mov_b32 v{v0t}, s35
    v_mov_b32 v{v0t+1}, s34
    buffer_store_dword v{v0t+1}, v{v0t}, {SWS}, {sF1} offen
    s_mov_b64 exec, -1''')
    a.vm.pop()
    a.cond = False
    a.label(L)
def bump_epoch(a, sW, sMem, sE, sTag, v0t):
    L = a.newlabel('be')
    a(f's_or_b32 s34, {sW}, {sMem}\ns_cmp_lg_u32 s34, 0\ns_cbranch_scc1 {L}')
    a.cond = True
    a(f'''s_mov_b64 exec, 1
    v_mov_b32 v{v0t}, 0
    v_mov_b32 v{v0t+1}, {sTag}
    buffer_store_dword v{v0t+1}, v{v0t}, {SWS}, {sE} offen sc0 sc1
    s_mov_b64 exec, -1''')
    a.vm.pop()
    a.cond = False
    a.label(L)

def prologue(a, endlabel, pref=None):
    a(f'''s_cmp_ge_u32 s2, 256
    s_cbranch_scc1 {endlabel}
    s_load_dwordx4 s[20:23], s[0:1], 0
    s_load_dwordx4 s[24:27], s[0:1], 16
    s_load_dwordx4 s[28:31], s[0:1], 32
    s_load_dwordx2 s[32:33], s[0:1], 56
    v_and_b32 v1, 63, v0
    v_lshrrev_b32 v2, 6, v0
    s_and_b32 s40, s2, 7
    v_readfirstlane_b32 s41, v2
    s_lshr_b32 s42, s2, 3''')
    if pref:
        base, nkb = pref
        L = a.newlabel('pc')
        a(f'''s_getpc_b64 s[38:39]''')
        a.label(L)
        a(f'''s_sub_u32 s38, s38, {L}-{base}
        s_subb_u32 s39, s39, 0
        s_lshl_b32 s34, s42, 2
        s_add_u32 s34, s34, s41
        s_and_b32 s34, s34, {nkb-1}
        s_lshl_b32 s34, s34, 10
        v_lshl_add_u32 v9, v1, 4, s34
        global_load_dwordx4 v[252:255], v9, s[38:39]''', tag='pf')
    stamp(a, 'start')

def k1():
    a = Asm()
    sXCD, sW, sI = 's40', 's41', 's42'
    sG, sJ, sP, sHF = 's43', 's44', 's45', 's46'
    sX, sWb, sM, sO, sT0, sT1 = 's47', 's48', 's49', 's50', 's51', 's52'
    sTag, sXcc, sF1, sF2, sE, sDelta = 's53', 's54', 's55', 's56', 's57', 's58'
    sVst, sSst, sVld, sSld, sX1, sST = 's59', 's60', 's61', 's62', 's63', 's64'
    prologue(a, 'K1_end', ('temporal_kernel', 32) if '--pf' in sys.argv else None)
    a(f'''s_cmp_ge_u32 {sI}, 24
    s_cbranch_scc1 K1_pre
    s_mul_i32 s34, {sI}, 43
    s_lshr_b32 s34, s34, 8
    s_mul_i32 s35, s34, 6
    s_sub_u32 {sJ}, {sI}, s35
    s_lshl_b32 {sG}, {sXCD}, 2
    s_add_u32 {sG}, {sG}, s34
    s_lshr_b32 {sP}, {sW}, 1
    s_and_b32 {sHF}, {sW}, 1''')
    T8, G8 = 2, 3
    vX, vW, vO, vNW, vXF, vAW = 10, 11, 12, 13, 14, 18
    a(f'''v_lshrrev_b32 v{T8}, 3, v1
    v_and_b32 v{G8}, 7, v1
    s_mov_b32 s34, 196608
    v_mul_lo_u32 v{vX}, v{T8}, s34
    v_lshl_add_u32 v{vX}, v{G8}, 4, v{vX}
    s_lshl_b32 s34, {sG}, 3
    s_lshl_b32 s35, {sW}, 1
    s_add_u32 s34, s34, s35
    s_mul_i32 {sX}, s34, 768
    v_lshlrev_b32 v4, 1, v{T8}
    v_and_b32 v4, 4, v4
    v_xor_b32 v4, v4, v{G8}
    v_mul_u32_u24 v{vW}, 2304, v{T8}
    v_lshl_add_u32 v{vW}, v4, 4, v{vW}
    s_mul_i32 {sWb}, {sW}, {16*2304}
    s_lshl_b32 s34, {sJ}, 7
    s_add_u32 {sWb}, {sWb}, s34
    s_lshl_b32 {sM}, {sW}, 11''')
    a('s_waitcnt lgkmcnt(0)')
    stamp(a, 'karg')
    srd(a, 4, 20, 1572864); srd(a, 8, 22, 884736); srd(a, 16, 32, WS_SIZE); srd(a, 12, 24, 294912)
    RX = 32
    for th in range(2):
        for jj in range(6):
            a(f'buffer_load_dwordx4 {vr(RX+(th*6+jj)*4, 4)}, v{vX}, {SX}, {sX} offen offset:{th*768+jj*128}', tag='x')
    SLOT = [0, 24576, 49152, 73728, 98304, 122880]
    XREG = 98304; XR = 147456
    def wdma(c):
        for P in range(3):
            for h8 in range(2):
                a(f'''s_add_u32 {sT0}, {sWb}, {c*147456 + P*768 + h8*18432}
                s_add_u32 m0, {sM}, {SLOT[c] + P*8192 + h8*1024}
                buffer_load_dwordx4 v{vW}, {SWQ}, {sT0} offen lds''', tag=f'w{c}')
    for c in range(4): wdma(c)
    stamp(a, 'issued')
    a(f'''s_lshl_b32 s34, {sG}, 7
    s_add_u32 {sE}, s34, {WS_E}
    s_add_u32 {sF1}, s34, {WS_F1}
    s_add_u32 {sF2}, s34, {WS_F2}
    s_load_dword {sTag}, s[32:33], {sE}
    s_getreg_b32 {sXcc}, hwreg(HW_REG_XCC_ID)
    s_and_b32 {sXcc}, {sXcc}, 15''')
    a(f'''s_lshl_b32 s34, {sHF}, 4
    v_add_u32 v4, s34, v{T8}
    v_xor_b32 v4, v4, v{G8}
    v_lshlrev_b32 v4, 4, v4
    v_lshl_add_u32 v4, v{G8}, 9, v4
    s_mul_i32 s35, {sP}, 24576
    s_add_u32 s35, s35, {XREG}
    v_add_u32 v{vNW}, s35, v4''')
    a(f'''v_and_b32 v4, 31, v1
    v_lshrrev_b32 v5, 5, v1
    v_xor_b32 v4, v4, v5
    v_lshlrev_b32 v4, 4, v4
    v_lshl_add_u32 v4, v5, 9, v4
    v_add_u32 v{vXF}, s35, v4''')
    for k in range(1, 4): a(f'v_xor_b32 v{vXF+k}, {32*k}, v{vXF}')
    a(f'''v_bfe_u32 v6, v1, 2, 2
    v_lshl_add_u32 v4, v5, 3, v6
    v_lshlrev_b32 v4, 7, v4
    v_lshrrev_b32 v7, 1, v6
    v_xor_b32 v7, {sHF}, v7
    v_lshl_add_u32 v4, v7, 6, v4
    v_bfe_u32 v7, v1, 4, 1
    v_lshl_add_u32 v4, v7, 5, v4
    v_and_b32 v7, 1, v1
    v_lshl_add_u32 v4, v7, 4, v4
    v_bfe_u32 v7, v1, 1, 1
    v_lshl_add_u32 v{vAW}, v7, 3, v4
    v_add_u32 v{vAW+1}, 0x10000, v{vAW}
    v_add_u32 v{vAW+2}, 0x20000, v{vAW}''')
    a(f'''v_and_b32 v4, 2, v{T8}
    s_lshl_b32 s34, {sHF}, 2
    v_or_b32 v4, s34, v4
    v_xor_b32 v4, v4, v{G8}
    v_mul_u32_u24 v{vO}, 768, v{T8}
    v_lshl_add_u32 v{vO}, v4, 4, v{vO}
    s_mul_i32 {sO}, {sW}, 6144
    s_lshl_b32 s34, {sJ}, 7
    s_add_u32 {sO}, {sO}, s34''')
    ST = 80
    a(f'v_mov_b32 v{ST}, 0\nv_mov_b32 v{ST+1}, 0\nv_mov_b32 v{ST+2}, 0\nv_mov_b32 v{ST+3}, 0\ns_mov_b32 s36, 0x3f803f80')
    a.wait(vm='x')
    stamp(a, 'x_in')
    for d in range(24):
        for th in range(2): a(f'v_dot2c_f32_bf16 v{ST+th}, s36, v{RX+th*24+d}')
        for th in range(2): a(f'v_dot2c_f32_bf16 v{ST+2+th}, v{RX+th*24+d}, v{RX+th*24+d}')
    for m in ('quad_perm:[1,0,3,2]', 'quad_perm:[2,3,0,1]', 'row_half_mirror'):
        for k in range(4): a(f'v_add_f32_dpp v{ST+k}, v{ST+k}, v{ST+k} {m} row_mask:0xf bank_mask:0xf')
    a(f's_mov_b32 s36, {fbits(1/384)}\ns_mov_b32 s37, {fbits(1e-5)}')
    for th in range(2): a(f'v_mul_f32 v{ST+th}, s36, v{ST+th}')
    for th in range(2): a(f'v_mul_f32 v{ST+4+th}, v{ST+th}, v{ST+th}')
    for th in range(2): a(f'v_fma_f32 v{ST+2+th}, v{ST+2+th}, s36, -v{ST+4+th}')
    for th in range(2): a(f'v_max_f32 v{ST+2+th}, 0, v{ST+2+th}')
    for th in range(2): a(f'v_add_f32 v{ST+2+th}, s37, v{ST+2+th}')
    for th in range(2): a(f'v_rsq_f32 v{ST+4+2*th}, v{ST+2+th}')
    for th in range(2): a(f'v_mul_f32 v{ST+8+2*th}, -v{ST+th}, v{ST+4+2*th}' .replace('v_mul_f32', 'v_mul_f32_e64'))
    a('s_mov_b32 s36, 0xffff0000')
    TMP = 92
    for th in range(2):
        for jj in range(6):
            b = RX + (th*6+jj)*4
            for d in range(4): a(f'v_lshlrev_b32 v{TMP+2*d}, 16, v{b+d}\nv_and_b32 v{TMP+2*d+1}, s36, v{b+d}')
            for d in range(4): a(f'v_pk_fma_f32 {vr(TMP+2*d,2)}, {vr(TMP+2*d,2)}, {vr(ST+4+2*th,2)}, {vr(ST+8+2*th,2)} op_sel_hi:[1,0,0]')
            for d in range(4): a(f'v_cvt_pk_bf16_f32 v{b+d}, v{TMP+2*d}, v{TMP+2*d+1}')
            a(f'ds_write_b128 v{vNW}, {vr(b,4)} offset:{th*128+jj*4096}', tag='nw')
    a('s_waitcnt lgkmcnt(0)'); a.lg = []
    stamp(a, 'normed')
    a('s_barrier')
    for ks in range(24):
        a(f'ds_read_b128 {ar(4*ks,4)}, v{vXF+(ks&3)} offset:{(ks>>2)*4096+(ks&3)*1024}', tag='xf')
    a(f's_mul_i32 {sTag}, {sTag}, 0x9e3779b1\ns_add_u32 {sTag}, {sTag}, 0x7f4a7c15')
    a.wait(vm='w0', lg='xf')
    a('s_barrier')
    stamp(a, 'mm0')
    wdma(4); wdma(5)
    WF = 100; ACC = 128
    def trd(ks, P):
        c, k4 = ks >> 2, ks & 3
        off = SLOT[c] + P*8192 + k4*2048
        base = vAW + (off >> 16); off &= 0xffff
        d = WF + (ks & 1)*12 + P*4
        a(f'ds_read_b64_tr_b16 {vr(d,2)}, v{base} offset:{off}\nds_read_b64_tr_b16 {vr(d+2,2)}, v{base} offset:{off+512}', tag=f'f{ks}_{P}')
    for P in range(3): trd(0, P)
    for ks in range(24):
        nxt = ks + 1
        if nxt < 24 and (nxt & 3) == 0:
            c = nxt >> 2
            a.wait(vm=f'w{c}'); a('s_barrier')
            if c in (2, 4, 5): stamp(a, f'c{c}')
            if c == 3:
                for i in range(12):
                    a(f'''s_add_u32 {sT0}, {sO}, {i*24576}
                    s_lshr_b32 {sT1}, {sM}, 1
                    s_add_u32 m0, {sT1}, {i*4096}
                    buffer_load_dwordx4 v{vO}, {SWO}, {sT0} offen lds''', tag='wo')
                for th in range(2):
                    a(f'''s_lshl_b32 {sT1}, {sJ}, 7
                    s_add_u32 {sT0}, {sX}, {sT1}
                    s_add_u32 {sT0}, {sT0}, {th*768}
                    s_add_u32 m0, {sM}, {XR + th*1024}
                    buffer_load_dwordx4 v{vX}, {SX}, {sT0} offen lds''', tag='xr')
        for P in range(3):
            a.wait(lg=f'f{ks}_{P}')
            d = WF + (ks & 1)*12 + P*4
            cin = '0' if ks == 0 else vr(ACC+16*P, 16)
            a(f'v_mfma_f32_32x32x16_bf16 {vr(ACC+16*P,16)}, {vr(d,4)}, {ar(4*ks,4)}, {cin}')
            if nxt < 24: trd(nxt, P)
        if ks == 1:
            vVst, vSst, vL16, vSld, vX1, vST, vXRd, vAO = 21, 22, 23, 24, 25, 26, 27, 28
            a(f'''v_bfe_u32 v4, v1, 4, 1
            v_lshrrev_b32 v5, 5, v1
            v_and_b32 v6, 15, v1
            v_mul_u32_u24 v{vVst}, 12288, v4
            v_lshl_add_u32 v{vVst}, v5, 8, v{vVst}
            v_lshl_add_u32 v{vVst}, v6, 4, v{vVst}
            v_lshlrev_b32 v{vSst}, 9, v4
            v_lshl_add_u32 v{vSst}, v5, 8, v{vSst}
            v_lshl_add_u32 v{vSst}, v{G8}, 5, v{vSst}
            v_bfe_u32 v7, v1, 3, 1
            v_lshl_add_u32 v{vSst}, v7, 4, v{vSst}
            v_lshlrev_b32 v{vL16}, 4, v1''')
        if ks == 2:
            a(f'''v_lshlrev_b32 v{vSld}, 11, v5
            v_lshl_add_u32 v{vSld}, v4, 8, v{vSld}
            v_lshl_add_u32 v{vSld}, v6, 4, v{vSld}
            v_bfe_u32 v7, v1, 1, 3
            v_and_b32 v8, 1, v1
            s_mov_b32 s34, 196608
            v_mul_lo_u32 v{vX1}, v7, s34
            v_lshl_add_u32 v{vX1}, v4, 9, v{vX1}
            v_lshl_add_u32 v{vX1}, v5, 8, v{vX1}
            v_lshl_add_u32 v{vX1}, v8, 4, v{vX1}
            v_mul_u32_u24 v{vST}, 12288, v7
            v_lshl_add_u32 v{vST}, v8, 4, v{vST}''')
        if ks == 4:
            a(f'''v_lshlrev_b32 v{vXRd}, 10, v8
            v_lshl_add_u32 v{vXRd}, v7, 7, v{vXRd}
            v_lshrrev_b32 v9, 4, v1
            v_lshl_add_u32 v{vXRd}, v9, 3, v{vXRd}
            s_add_u32 s34, {sM}, {XR}
            v_add_u32 v{vXRd}, s34, v{vXRd}
            v_bfe_u32 v7, v1, 2, 2
            v_lshl_add_u32 v{vAO}, v9, 3, v7
            v_lshlrev_b32 v{vAO}, 7, v{vAO}
            v_lshrrev_b32 v7, 1, v7
            v_lshl_add_u32 v7, v4, 1, v7
            v_lshl_add_u32 v{vAO}, v7, 5, v{vAO}''')
        if ks == 5:
            a(f'''v_and_b32 v7, 3, v1
            v_lshl_add_u32 v{vAO}, v7, 3, v{vAO}
            v_xor_b32 v{vAO+1}, 32, v{vAO}
            v_xor_b32 v{vAO+2}, 64, v{vAO}
            v_xor_b32 v{vAO+3}, 96, v{vAO}
            v_cmp_eq_u32 vcc, v5, v8
            v_cndmask_b32 v9, 0, 1.0, vcc''')
            a(f'''s_mul_i32 s34, {sG}, 49152
            s_add_u32 s34, s34, {WS_V}
            s_mul_i32 s35, {sW}, 12288
            s_add_u32 {sVld}, s34, s35
            s_mul_i32 s35, {sP}, 24576
            s_add_u32 s34, s34, s35
            s_lshl_b32 s35, {sJ}, 1
            s_add_u32 s35, s35, {sHF}
            s_lshl_b32 s36, s35, 10
            s_add_u32 {sVst}, s34, s36
            s_mul_i32 s34, {sG}, 24576
            s_add_u32 s34, s34, {WS_S}
            s_lshl_b32 s36, {sW}, 9
            s_add_u32 {sSld}, s34, s36
            s_lshl_b32 s36, s35, 11
            s_add_u32 s34, s34, s36
            s_lshl_b32 s36, {sP}, 10
            s_add_u32 {sSst}, s34, s36''')
        if ks == 6:
            a(f'''s_lshr_b32 s34, {sG}, 1
            s_mul_i32 s34, s34, 12288
            s_lshl_b32 s35, {sJ}, 11
            s_add_u32 s34, s34, s35
            s_and_b32 s35, {sG}, 1
            s_lshl_b32 s35, s35, 7
            s_add_u32 s34, s34, s35
            s_lshl_b32 s35, {sW}, 5
            s_add_u32 s34, s34, s35
            s_add_u32 {sX1}, s34, {WS_X1}
            s_lshr_b32 s34, {sJ}, 1
            s_lshl_b32 s34, s34, 12
            s_lshl_b32 s36, {sG}, 7
            s_add_u32 s34, s34, s36
            s_add_u32 s34, s34, s35
            s_and_b32 s36, {sJ}, 1
            s_lshl_b32 s36, s36, 3
            s_add_u32 s34, s34, s36
            s_add_u32 {sST}, s34, {WS_ST}''')
    stamp(a, 'mmend')
    PQ, PK, PV, SC = 32, 40, 48, 176
    for P, d in ((0, PQ), (1, PK)):
        for i in range(8): a(f'v_cvt_pk_bf16_f32 v{d+i}, v{ACC+16*P+2*i}, v{ACC+16*P+2*i+1}')
    a(f'v_mfma_f32_32x32x16_bf16 {vr(SC,16)}, {vr(PK,4)}, {vr(PQ,4)}, 0')
    a(f'v_mfma_f32_32x32x16_bf16 {vr(SC,16)}, {vr(PK+4,4)}, {vr(PQ+4,4)}, {vr(SC,16)}')
    for i in range(8): a(f'v_cvt_pk_bf16_f32 v{PV+i}, v{ACC+32+2*i}, v{ACC+32+2*i+1}')
    def pub_a(sv, ss, fl):
        a(f'buffer_store_dwordx4 {vr(PV,4)}, v{vVst}, {SWS}, {sv} offen {fl}', tag='st')
        a(f'buffer_store_dwordx4 {vr(PV+4,4)}, v{vVst}, {SWS}, {sv} offen offset:512 {fl}', tag='st')
        for b in range(4):
            m = 0xff << (8*b)
            a(f's_mov_b32 exec_lo, {hex(m)}\ns_mov_b32 exec_hi, {hex(m)}')
            a(f'buffer_store_dwordx4 {vr(SC+4*b,4)}, v{vSst}, {SWS}, {ss} offen {fl}', tag='st')
        a('s_mov_b64 exec, -1')
    pub_a(sVst, sSst, '')
    stamp(a, 'stored')
    a.wait_all()
    a('s_barrier')
    publish_flag(a, sW, sF1, sJ, sTag, sXcc, 2)
    stamp(a, 'flag')
    RES = 136
    for u in range(4): a(f'ds_read_b64 {vr(96+2*u,2)}, v{vXRd} offset:{u*32}', tag='xrd')
    for s in range(12):
        for u in range(4):
            d = (s*4+u)*4
            a(f'ds_read_b64_tr_b16 {ar(d,2)}, v{vAO+u} offset:{s*4096}\nds_read_b64_tr_b16 {ar(d+2,2)}, v{vAO+u} offset:{s*4096+512}', tag=f'o{s}')
        if s == 1:
            a.wait(lg='xrd')
            a('s_mov_b32 s36, 0xffff0000')
            for u in range(4):
                for d in range(2): a(f'v_lshlrev_b32 v{RES+4*u+2*d}, 16, v{96+2*u+d}\nv_and_b32 v{RES+4*u+2*d+1}, s36, v{96+2*u+d}')
    def repub():
        a(f's_add_u32 s36, {sVst}, {SLOW}\ns_add_u32 s37, {sSst}, {SLOW}')
        pub_a('s36', 's37', 'sc0 sc1')
    sync(a, 6, sF1, sF2, sE, sJ, sTag, sXcc, sW, sDelta, repub, 56, None, 'k1s')
    stamp(a, 'synced')
    VF, SP, Y = 192, 96, 120
    a(f's_add_u32 {sVld}, {sVld}, {sDelta}\ns_add_u32 {sSld}, {sSld}, {sDelta}')
    def vld(s):
        if s & 3 == 0 and s: a(f's_add_u32 {sVld}, {sVld}, 4096')
        a(f'buffer_load_dwordx4 {vr(VF+4*s,4)}, v{vL16}, {SWS}, {sVld} offen offset:{(s&3)*1024} sc1', tag=f'v{s}')
    for s in range(2): vld(s)
    for i in range(6):
        if i: a(f's_add_u32 {sSld}, {sSld}, 4096')
        a(f'buffer_load_dwordx4 {vr(SP+4*i,4)}, v{vSld}, {SWS}, {sSld} offen sc1', tag=f's{i}')
    for s in range(2, 12): vld(s)
    bump_epoch(a, sW, sJ, sE, sTag, 2)
    a('s_waitcnt lgkmcnt(0)'); a.lg = []
    sm = []
    sm.append(('w', 's1'))
    for i in range(1, 6):
        if i > 1: sm.append(('w', f's{i}'))
        for d in range(2): sm.append(f'v_pk_add_f32 {vr(SP+2*d,2)}, {vr(SP+2*d,2)}, {vr(SP+4*i+2*d,2)}')
    for d in range(4): sm.append(f'v_mov_b32 v{SP+4+d}, v{SP+d}')
    for d in range(4): sm.append(f'v_permlane32_swap_b32 v{SP+d}, v{SP+4+d}')
    for d in range(4): sm.append(f'v_add_f32 v{SP+d}, v{SP+d}, v{SP+4+d}')
    sm += [f'v_max_f32 v{SP+4}, v{SP}, v{SP+1}', f'v_max3_f32 v{SP+4}, v{SP+4}, v{SP+2}, v{SP+3}', f'v_mov_b32 v{SP+5}, v{SP+4}',
           f'v_permlane16_swap_b32 v{SP+4}, v{SP+5}', f'v_max_f32 v{SP+4}, v{SP+4}, v{SP+5}', f's_mov_b32 s36, {fbits(SCALE2)}',
           f'v_mul_f32 v{SP+4}, s36, v{SP+4}']
    for d in range(4): sm.append(f'v_fma_f32 v{SP+d}, v{SP+d}, s36, -v{SP+4}')
    for d in range(4): sm.append(f'v_exp_f32 v{SP+d}, v{SP+d}')
    sm += [f'v_add_f32 v{SP+4}, v{SP}, v{SP+1}', f'v_add_f32 v{SP+5}, v{SP+2}, v{SP+3}', f'v_add_f32 v{SP+4}, v{SP+4}, v{SP+5}',
           f'v_mov_b32 v{SP+5}, v{SP+4}', f'v_permlane16_swap_b32 v{SP+4}, v{SP+5}', f'v_add_f32 v{SP+4}, v{SP+4}, v{SP+5}',
           f'v_rcp_f32 v{SP+4}, v{SP+4}', f'v_mul_f32 v{SP+4}, v{SP+4}, v9']
    for d in range(4): sm.append(f'v_mul_f32 v{SP+d}, v{SP+d}, v{SP+4}')
    PP = 152
    sm += [f'v_cvt_pk_bf16_f32 v{PP}, v{SP}, v{SP+1}', f'v_cvt_pk_bf16_f32 v{PP+1}, v{SP+2}, v{SP+3}']
    def drain(n):
        while n > 0 and sm:
            x = sm.pop(0)
            if isinstance(x, tuple): a.wait(vm=x[1])
            else: a(x); n -= 1
    for s in range(12):
        a.wait(vm=f'v{s}')
        for u in range(4):
            cin = '0' if s == 0 else vr(Y+4*u, 4)
            a(f'v_mfma_f32_16x16x32_bf16 {vr(Y+4*u,4)}, {vr(VF+4*s,4)}, {ar((s*4+u)*4,4)}, {cin}')
            if s >= 2: drain(2)
    drain(1000)
    stamp(a, 'ygemm')
    YP = 156
    for u in range(4):
        for d in range(2): a(f'v_cvt_pk_bf16_f32 v{YP+2*u+d}, v{Y+4*u+2*d}, v{Y+4*u+2*d+1}')
    for u in range(4):
        a(f'v_mfma_f32_16x16x16_bf16 {vr(RES+4*u,4)}, {vr(YP+2*u,2)}, {vr(PP,2)}, {vr(RES+4*u,4)}')
    XO = 164
    a(f'v_mov_b32 v{ST}, 0\nv_mov_b32 v{ST+1}, 0\ns_mov_b32 s36, 0x3f803f80')
    for u in range(4):
        for d in range(2): a(f'v_cvt_pk_bf16_f32 v{XO+2*u+d}, v{RES+4*u+2*d}, v{RES+4*u+2*d+1}')
    for i in range(8): a(f'v_dot2c_f32_bf16 v{ST}, s36, v{XO+i}\nv_dot2c_f32_bf16 v{ST+1}, v{XO+i}, v{XO+i}')
    for u in (0, 2):
        for d in range(2): a(f'v_permlane16_swap_b32 v{XO+2*u+d}, v{XO+2*u+2+d}')
    a(f'buffer_store_dwordx4 {vr(XO,4)}, v{vX1}, {SWS}, {sX1} offen')
    a(f'buffer_store_dwordx4 {vr(XO+4,4)}, v{vX1}, {SWS}, {sX1} offen offset:1024')
    for sw in ('v_permlane16_swap_b32', 'v_permlane32_swap_b32'):
        a(f'v_mov_b32 v{ST+2}, v{ST}\nv_mov_b32 v{ST+3}, v{ST+1}')
        a(f'{sw} v{ST}, v{ST+2}\n{sw} v{ST+1}, v{ST+3}')
        a(f'v_add_f32 v{ST}, v{ST}, v{ST+2}\nv_add_f32 v{ST+1}, v{ST+1}, v{ST+3}')
    a(f's_mov_b64 exec, 0xffff\nbuffer_store_dwordx2 {vr(ST,2)}, v{vST}, {SWS}, {sST} offen\ns_mov_b64 exec, -1')
    if PROFILE: a.wait_all()
    stamp(a, 'end')
    stamp_flush(a, 0, 6)
    a('s_endpgm')
    a.label('K1_pre'); a.vm = []; a.lg = []
    sSp, sMm, sIt, sJt, sA, sB = 's43', 's44', 's45', 's46', 's47', 's48'
    a(f'''s_sub_u32 {sSp}, {sI}, 24
    s_lshl_b32 {sSp}, {sSp}, 3
    s_add_u32 {sSp}, {sSp}, {sXCD}
    s_cmp_ge_u32 {sSp}, 36
    s_cbranch_scc1 K1_end
    s_cmp_ge_u32 {sSp}, 18
    s_cselect_b32 {sMm}, 1, 0
    s_mul_i32 s34, {sMm}, 18
    s_sub_u32 s34, {sSp}, s34
    s_mul_i32 {sIt}, s34, 43
    s_lshr_b32 {sIt}, {sIt}, 8
    s_mul_i32 s35, {sIt}, 6
    s_sub_u32 {sJt}, s34, s35''')
    vA0, vA1, vBo, vAr, vBr = 10, 11, 12, 14, 18
    a(f'''v_lshrrev_b32 v2, 3, v1
    v_and_b32 v3, 7, v1
    v_lshrrev_b32 v4, 1, v2
    v_xor_b32 v4, v4, v3
    v_mul_u32_u24 v5, 2304, v2
    v_lshl_add_u32 v{vA0}, v4, 4, v5
    v_xor_b32 v{vA1}, 64, v{vA0}
    v_lshlrev_b32 v4, 1, v2
    v_and_b32 v4, 4, v4
    v_xor_b32 v4, v4, v3
    v_mul_u32_u24 v5, 768, v2
    v_lshl_add_u32 v{vBo}, v4, 4, v5
    s_lshl_b32 s34, {sIt}, 2
    s_add_u32 s34, s34, {sW}
    s_mul_i32 {sA}, s34, {32*2304}
    s_mul_i32 s35, {sMm}, 1536
    s_add_u32 {sA}, {sA}, s35
    s_mul_i32 {sM}, {sW}, 24576''')
    a('s_waitcnt lgkmcnt(0)')
    srd(a, 8, 26, 884736); srd(a, 12, 28, 294912); srd(a, 16, 32, WS_SIZE)
    BB = 98304
    a(f'''v_and_b32 v2, 31, v1
    v_lshrrev_b32 v3, 5, v1
    v_and_b32 v4, 19, v2
    v_bfe_u32 v5, v2, 2, 1
    v_lshl_add_u32 v4, v5, 3, v4
    v_bfe_u32 v5, v2, 3, 1
    v_lshl_add_u32 v4, v5, 2, v4
    v_lshrrev_b32 v5, 3, v4
    v_mul_u32_u24 v5, 6144, v5
    v_and_b32 v6, 7, v4
    v_lshl_add_u32 v5, v6, 7, v5
    v_bfe_u32 v6, v4, 1, 3
    v_xor_b32 v6, v6, v3
    v_lshl_add_u32 v5, v6, 4, v5
    v_add_u32 v{vAr}, {sM}, v5''')
    for k in range(1, 4): a(f'v_xor_b32 v{vAr+k}, {32*k}, v{vAr}')
    FA, FB, AC = 32, 48, 128
    for m in range(2):
        if m == 0: a(f's_cmp_eq_u32 {sMm}, 1\ns_cbranch_scc1 K1_pre1')
        else: a.label('K1_pre1'); a.vm = []; a.lg = []
        if m == 0:
            a(f'''s_lshl_b32 s34, {sJt}, 2
            s_add_u32 s34, s34, {sW}
            s_mul_i32 {sB}, s34, {16*2304}
            s_add_u32 {sB}, {sB}, 768
            s_mul_i32 {sT1}, {sW}, 12288
            v_lshrrev_b32 v5, 3, v2
            v_mul_u32_u24 v5, 6144, v5
            v_and_b32 v6, 7, v2
            v_lshl_add_u32 v5, v6, 7, v5
            v_bfe_u32 v6, v2, 1, 3
            v_xor_b32 v6, v6, v3
            v_lshl_add_u32 v5, v6, 4, v5
            v_add_u32 v{vBr}, {BB}, v5''')
            for k in range(1, 4): a(f'v_xor_b32 v{vBr+k}, {32*k}, v{vBr}')
        else:
            a(f'''s_mul_i32 {sB}, {sW}, {16*768}
            s_lshl_b32 s34, {sJt}, 7
            s_add_u32 {sB}, {sB}, s34
            s_lshl_b32 {sT1}, {sW}, 11
            v_bfe_u32 v6, v1, 2, 2
            v_lshl_add_u32 v4, v3, 3, v6
            v_lshlrev_b32 v4, 7, v4
            v_lshrrev_b32 v7, 1, v6
            v_lshl_add_u32 v4, v7, 6, v4
            v_bfe_u32 v7, v1, 4, 1
            v_lshl_add_u32 v4, v7, 5, v4
            v_and_b32 v7, 3, v1
            v_lshl_add_u32 v4, v7, 3, v4
            v_add_u32 v{vBr}, {BB}, v4
            v_xor_b32 v{vBr+1}, 64, v{vBr}''')
        for jj in range(6):
            for r in range(4):
                a(f'''s_add_u32 {sT0}, {sA}, {r*8*2304 + jj*128}
                s_add_u32 m0, {sM}, {(r*6+jj)*1024}
                buffer_load_dwordx4 v{vA0+(r&1)}, {SWQ}, {sT0} offen lds''', tag=f'p{jj}')
            for r in range(2):
                if m == 0:
                    a(f'''s_add_u32 {sT0}, {sB}, {r*8*2304 + jj*128}
                    s_add_u32 m0, {sT1}, {BB + (r*6+jj)*1024}
                    buffer_load_dwordx4 v{vA0+r}, {SWQ}, {sT0} offen lds''', tag=f'p{jj}')
                else:
                    a(f'''s_add_u32 {sT0}, {sB}, {(jj*64 + r*8)*768}
                    s_add_u32 m0, {sT1}, {BB + jj*8192 + r*1024}
                    buffer_load_dwordx4 v{vBo}, {SWO}, {sT0} offen lds''', tag=f'p{jj}')
        for jj in range(6):
            a.wait(vm=f'p{jj}'); a('s_barrier')
            for k4 in range(4):
                a(f'ds_read_b128 {vr(FA+4*k4,4)}, v{vAr+k4} offset:{jj*1024}', tag=f'r{k4}')
                for v in range(2):
                    d = FB + (k4*2+v)*4
                    if m == 0: a(f'ds_read_b128 {vr(d,4)}, v{vBr+k4} offset:{v*24576+jj*1024}', tag=f'r{k4}')
                    else:
                        o = jj*8192 + k4*2048
                        a(f'ds_read_b64_tr_b16 {vr(d,2)}, v{vBr+v} offset:{o}\nds_read_b64_tr_b16 {vr(d+2,2)}, v{vBr+v} offset:{o+512}', tag=f'r{k4}')
            for k4 in range(4):
                a.wait(lg=f'r{k4}')
                for v in range(2):
                    cin = '0' if (jj == 0 and k4 == 0) else vr(AC+16*v, 16)
                    a(f'v_mfma_f32_32x32x16_bf16 {vr(AC+16*v,16)}, {vr(FA+4*k4,4)}, {vr(FB+(k4*2+v)*4,4)}, {cin}')
        if m == 0: a('s_branch K1_pre2')
    a.label('K1_pre2')
    a(f'''s_mul_i32 s34, {sMm}, 24
    s_lshl_b32 s35, {sJt}, 2
    s_add_u32 s34, s34, s35
    v_bfe_u32 v4, v1, 4, 1
    v_add_u32 v4, s34, v4
    v_and_b32 v7, 15, v1
    v_lshlrev_b32 v7, 4, v7
    s_lshl_b32 s35, {sIt}, 2
    s_add_u32 s35, s35, {sW}
    s_mul_i32 s35, s35, 3072
    s_add_u32 s35, s35, {WS_W}
    s_lshl_b32 s36, {sIt}, 8
    s_lshl_b32 s37, {sW}, 2
    s_add_u32 s36, s36, s37
    s_add_u32 s36, s36, {WS_W + 12*3072}
    s_mov_b32 s37, 0x3f803f80''')
    for v in range(2):
        a(f'''v_add_u32 v5, {2*v}, v4
        v_mul_u32_u24 v6, 43, v5
        v_lshrrev_b32 v6, 7, v6
        v_mul_u32_u24 v8, 3, v6
        v_sub_u32 v5, v5, v8
        v_mul_u32_u24 v6, 39936, v6
        v_lshl_add_u32 v6, v5, 10, v6
        v_add_u32 v{20+v}, v6, v7
        v_lshl_add_u32 v{22+v}, v3, 8, v{20+v}
        v_mov_b32 v{24+v}, 0''')
        for i in range(8): a(f'v_cvt_pk_bf16_f32 v{32+8*v+i}, v{AC+16*v+2*i}, v{AC+16*v+2*i+1}')
        a(f'buffer_store_dwordx4 {vr(32+8*v,4)}, v{22+v}, {SWS}, s35 offen')
        a(f'buffer_store_dwordx4 {vr(36+8*v,4)}, v{22+v}, {SWS}, s35 offen offset:512')
        for i in range(8): a(f'v_dot2c_f32_bf16 v{24+v}, s37, v{32+8*v+i}')
    for v in range(2):
        a(f'''v_mov_b32 v26, v{24+v}
        v_permlane32_swap_b32 v{24+v}, v26
        v_add_f32 v26, v26, v{24+v}
        v_cvt_pk_bf16_f32 v27, v26, v26
        v_lshlrev_b32 v27, 16, v27
        v_sub_f32 v27, v26, v27
        v_cvt_pk_bf16_f32 v{28+v}, v26, v27''')
    a('s_mov_b32 exec_hi, 0')
    for v in range(2): a(f'buffer_store_dword v{28+v}, v{20+v}, {SWS}, s36 offen')
    a('s_mov_b64 exec, -1')
    if PROFILE:
        a.wait_all(); stamp(a, 'end'); stamp_flush(a, 0, 6)
    a.label('K1_end')
    a('s_endpgm')
    return a

def kernel_text(name, a):
    return f'.globl {name}\n.p2align 8\n.type {name},@function\n{name}:\n' + a.text()
def desc(name):
    return f'''.p2align 6
.amdhsa_kernel {name}
  .amdhsa_next_free_vgpr 512
  .amdhsa_next_free_sgpr 102
  .amdhsa_accum_offset 256
  .amdhsa_group_segment_fixed_size 0
  .amdhsa_kernarg_size 64
  .amdhsa_user_sgpr_count 2
  .amdhsa_user_sgpr_kernarg_segment_ptr 1
  .amdhsa_system_sgpr_workgroup_id_x 1
.end_amdhsa_kernel
'''
HEAD = open('standalone__video_timesformer__vision.s.ref').read().split('; Override launch')[0]
if __name__ == '__main__':
    out = sys.argv[1]
    ks = [('temporal_kernel', k1(), 155648)]
    try:
        from gen2 import k2
        if '--k1only' not in sys.argv: ks.append(('spatial_kernel', k2(), 81920))
    except ImportError: pass
    s = HEAD + ''.join(f'; @launch kernel={n} grid=(256,1,1) block=(256,1,1) lds={l}\n' for n, _, l in ks)
    s += '.amdgcn_target "amdgcn-amd-amdhsa--gfx950"\n.text\n' + ''.join(kernel_text(n, a) for n, a, _ in ks)
    s += '.fill 4096, 4, 0xbf800000\n.section .rodata,"a"\n' + ''.join(desc(n) for n, _, _ in ks)
    open(out, 'w').write(s)
    if PROFILE: open(out + '.stamps', 'w').write(repr([a.stamps for _, a, _ in ks]))
    for n, a, _ in ks: print(n, 'instructions', sum(1 for i in a.ins if not i.label), 'pad states', a.pads)
```

```python
from gen import *
def k2():
    a = Asm()
    sT, sW, sI = 's40', 's41', 's42'
    sRH, sS, sQT, sCH = 's43', 's44', 's45', 's46'
    sT0, sT1 = 's47', 's48'
    sTag, sXcc, sF1, sF2, sE, sDelta = 's53', 's54', 's55', 's56', 's57', 's58'
    sKo, sKr, sWs, sM, sSt1, sSt2, sQ, sVP, sOut = 's59', 's60', 's61', 's62', 's63', 's64', 's65', 's49', 's50'
    LW, LQ, LP, LT, LML, LO = 0, 40960, 55296, 63488, 67584, 68096
    prologue(a, 'K2_end', ('spatial_kernel', 16) if '--pf' in sys.argv else None)
    vL16, vSt, vW12, vTm, vTb = 10, 11, 12, 13, 14
    a('v_mov_b32 v17, 0\nv_mov_b32 v18, 0')
    a(f'''s_lshr_b32 {sRH}, {sI}, 4
    s_and_b32 {sS}, {sI}, 15
    s_lshr_b32 {sQT}, {sI}, 1
    s_and_b32 {sCH}, {sI}, 1
    v_lshlrev_b32 v{vL16}, 4, v1
    s_mul_i32 {sWs}, {sS}, 39936
    s_lshl_b32 {sM}, {sW}, 10
    s_add_u32 {sWs}, {sWs}, {sM}
    s_add_u32 {sWs}, {sWs}, {WS_W}
    s_mul_i32 s34, {sT}, 196608
    s_mul_i32 s35, {sW}, 24576
    s_add_u32 s34, s34, s35
    s_add_u32 s34, s34, {WS_X1}
    s_mul_i32 s35, {sRH}, 98304
    s_add_u32 {sKo}, s34, s35
    s_sub_u32 {sKr}, s34, s35
    s_add_u32 {sKr}, {sKr}, 98304
    v_lshrrev_b32 v2, 5, v1
    v_xor_b32 v2, {sRH}, v2
    v_and_b32 v3, 31, v1
    v_lshlrev_b32 v3, 4, v3
    v_lshl_add_u32 v{vSt}, v2, 11, v3
    s_mul_i32 s34, {sT}, 12288
    s_lshl_b32 s35, {sW}, 9
    s_add_u32 s34, s34, s35
    s_add_u32 {sSt1}, s34, {WS_ST}''')
    a('s_waitcnt lgkmcnt(0)')
    stamp(a, 'karg')
    srd(a, 16, 32, WS_SIZE); srd(a, 84, 30, 1572864)
    for i in range(10):
        a(f'''s_add_u32 {sT0}, {sWs}, {i*4096}
        s_add_u32 m0, {sM}, {LW + i*4096}
        buffer_load_dwordx4 v{vL16}, {SWS}, {sT0} offen lds''', tag='w')
    SR = 100
    for i in range(3):
        if i: a(f's_add_u32 {sSt1}, {sSt1}, 4096')
        a(f'buffer_load_dwordx4 {vr(SR+4*i,4)}, v{vSt}, {SWS}, {sSt1} offen', tag='st')
    def kld(tile, ks):
        base = sKo if tile < 2 else sKr
        off = (tile & 1)*12288 + ks*1024
        a(f's_add_u32 {sT0}, {base}, {off & ~4095}')
        a(f'buffer_load_dwordx4 {ar((tile*12+ks)*4,4)}, v{vL16}, {SWS}, {sT0} offen offset:{off & 4095}', tag=f'k{tile}_{ks}')
    AHEAD = 4
    for ks in range(AHEAD): kld(0, ks); kld(1, ks)
    stamp(a, 'issued')
    a(f'''s_lshl_b32 s34, {sT}, 7
    s_add_u32 {sE}, s34, {WS_E + 0x2000}
    s_add_u32 {sF1}, s34, {WS_F1 + 0x2000}
    s_lshl_b32 s34, {sT}, 9
    s_add_u32 {sF2}, s34, {WS_F2 + 0x2000}
    s_load_dword {sTag}, s[32:33], {sE}
    s_getreg_b32 {sXcc}, hwreg(HW_REG_XCC_ID)
    s_and_b32 {sXcc}, {sXcc}, 15''')
    a(f'''v_lshrrev_b32 v2, 4, v1
    v_and_b32 v3, 15, v1
    v_cmp_eq_u32 vcc, 3, v2
    v_lshlrev_b32 v4, 4, v3
    v_cndmask_b32 v{vW12}, v{vL16}, v4, vcc
    s_add_u32 s34, {sM}, {LT}
    v_lshl_add_u32 v5, v2, 2, v4
    v_add_u32 v{vTm}, s34, v5
    v_add_u32 v{vTb}, s34, v4
    v_lshl_add_u32 v{vTb+1}, v1, 2, s34
    v_lshl_add_u32 v{vTb+2}, v2, 4, s34
    s_mov_b32 s36, {fbits(1/384)}
    s_mov_b32 s37, {fbits(1e-5)}''')
    a.wait(vm='st')
    a(f'''v_pk_add_f32 {vr(SR,2)}, {vr(SR,2)}, {vr(SR+2,2)}
    v_pk_add_f32 {vr(SR+4,2)}, {vr(SR+4,2)}, {vr(SR+6,2)}
    v_pk_add_f32 {vr(SR+8,2)}, {vr(SR+8,2)}, {vr(SR+10,2)}
    v_pk_add_f32 {vr(SR,2)}, {vr(SR,2)}, {vr(SR+4,2)}
    v_pk_add_f32 {vr(SR,2)}, {vr(SR,2)}, {vr(SR+8,2)}
    v_mul_f32 v{SR}, s36, v{SR}
    v_mul_f32 v{SR+2}, v{SR}, v{SR}
    v_fma_f32 v{SR+1}, v{SR+1}, s36, -v{SR+2}
    v_max_f32 v{SR+1}, 0, v{SR+1}
    v_add_f32 v{SR+1}, s37, v{SR+1}
    v_rsq_f32 v{SR+1}, v{SR+1}
    v_cvt_pk_bf16_f32 v{SR}, -v{SR}, -v{SR}
    s_waitcnt lgkmcnt(0)
    ds_write_b32 v{vTm}, v{SR}
    ds_write_b32 v{vTm}, v{SR+1} offset:256
    ds_write_b32 v{vTb+1}, v{SR+1} offset:512''')
    MT, RT, RD = 104, 108, 112
    a(f'ds_read_b128 {vr(MT,4)}, v{vTb}\nds_read_b128 {vr(RT,4)}, v{vTb} offset:256', tag='t')
    for t in range(4): a(f'ds_read_b128 {vr(RD+4*t,4)}, v{vTb+2} offset:{512+64*t}', tag='t')
    a(f's_mul_i32 {sTag}, {sTag}, 0x9e3779b1\ns_add_u32 {sTag}, {sTag}, 0x7f4a7c15')
    a.wait(lg='t')
    MF = 192
    for t in range(4): a(f'v_cndmask_b32 v{MT+t}, v{MT+t}, 0, vcc')
    for t in range(4):
        for d in range(4): a(f'v_accvgpr_write_b32 a{MF+4*t+d}, v{MT+t}')
    a.wait(vm='w'); a('s_barrier')
    stamp(a, 'mm0')
    WF, ACC, PK = 32, 56, 84
    vA, vB = 17, 18
    def wrd(ks, u):
        d = WF + (ks & 1)*12 + 4*u
        va = vL16 if ks < 12 else vW12
        a(f'ds_read_b128 {vr(d,4)}, v{va} offset:{LW + (ks*3+u)*1024}', tag=f'f{ks}_{u}')
    rest = [(t, ks) for ks in range(12) for t in (2, 3)]
    NPRE = 6
    vmsave, lgsave = None, None
    a(f's_cmp_ge_u32 {sS}, 8\ns_cbranch_scc1 K2_v')
    for var in range(2):
        if var == 0: vmsave, lgsave = list(a.vm), list(a.lg)
        else: a.label('K2_v'); a.vm, a.lg = list(vmsave), list(lgsave)
        rq = list(rest)
        for u in range(3): wrd(0, u)
        for ks in range(13):
            if ks + AHEAD < 12: kld(0, ks + AHEAD); kld(1, ks + AHEAD)
            elif ks >= 10 and len(rq) > len(rest) - NPRE: kld(*rq.pop(0)); kld(*rq.pop(0))
            if ks < 12: a.wait(vm=f'k1_{ks}')
            for u in range(3):
                a.wait(lg=f'f{ks}_{u}')
                wf = vr(WF + (ks & 1)*12 + 4*u, 4)
                for t in range(2):
                    xf = ar((t*12+ks)*4, 4) if ks < 12 else ar(MF+4*t, 4)
                    d = vr(ACC + (t*3+u)*4, 4)
                    cin = '0' if ks == 0 else d
                    A, B = (wf, xf) if var == 0 else (xf, wf)
                    a(f'v_mfma_f32_16x16x32_bf16 {d}, {A}, {B}, {cin}')
                if ks < 12: wrd(ks + 1, u)
            if ks == 1:
                if var == 0:
                    a(f'''v_lshrrev_b32 v4, 5, v1
                    v_bfe_u32 v5, v1, 4, 1
                    v_lshlrev_b32 v{vA}, 4, v3
                    v_mul_u32_u24 v6, 13312, v5
                    v_add_u32 v{vB}, v6, v{vA}
                    v_lshl_add_u32 v{vA}, v4, 8, v{vA}
                    v_lshl_add_u32 v{vA}, v5, 3, v{vA}
                    s_lshr_b32 s34, {sS}, 2
                    s_lshl_b32 s34, s34, 8
                    v_mov_b32 v6, s34
                    v_cmp_eq_u32 vcc, 1, v4
                    v_mov_b32 v7, 512
                    v_cndmask_b32 v6, v6, v7, vcc
                    v_add_u32 v{vB}, v{vB}, v6
                    s_mov_b32 s36, {fbits(SCALE2)}
                    v_mul_f32 v{RT}, s36, v{RT}
                    v_mul_f32 v{RT+1}, s36, v{RT+1}''')
                    a(f'''s_lshl_b32 s34, {sT}, 4
                    s_lshl_b32 s35, {sRH}, 3
                    s_add_u32 s34, s34, s35
                    s_lshl_b32 s35, {sW}, 1
                    s_add_u32 s34, s34, s35
                    s_mul_i32 s34, s34, 13312
                    s_add_u32 s34, s34, {WS_Q}
                    s_mul_i32 s35, {sS}, 1536
                    s_add_u32 {sSt1}, s34, s35
                    s_and_b32 s35, {sS}, 3
                    s_lshl_b32 s35, s35, 2
                    s_add_u32 s34, s34, s35
                    s_add_u32 {sSt2}, s34, 12288''')
                else:
                    a(f'''s_lshl_b32 s34, {sT}, 3
                    s_lshl_b32 s35, {sW}, 1
                    s_add_u32 s34, s34, s35
                    s_add_u32 s34, s34, {sRH}
                    s_mul_i32 s34, s34, 24576
                    s_sub_u32 s35, {sS}, 8
                    s_mul_i32 s35, s35, 3072
                    s_add_u32 s34, s34, s35
                    s_add_u32 {sSt1}, s34, {WS_VP}''')
        stamp(a, 'mmend')
        if var == 0:
            a(f'v_mov_b32 v96, 0\nv_mov_b32 v97, 0\ns_mov_b32 s36, 0x3f803f80')
            for t in range(2):
                for u in range(3):
                    b = ACC + (t*3+u)*4
                    for d in range(2): a(f'v_pk_mul_f32 {vr(b+2*d,2)}, {vr(b+2*d,2)}, {vr(RT,2)} op_sel:[0,{t}] op_sel_hi:[1,{t}]')
                    for d in range(2): a(f'v_cvt_pk_bf16_f32 v{PK+(t*3+u)*2+d}, v{b+2*d}, v{b+2*d+1}')
            def pub0(s1, s2, fl, first=False):
                for t in range(2):
                    if t: a(f's_add_u32 {sT1}, {s1}, 13312')
                    for u in range(3):
                        a(f'buffer_store_dwordx2 {vr(PK+(t*3+u)*2,2)}, v{vA}, {SWS}, {sT1 if t else s1} offen offset:{u*512} {fl}', tag='out')
                if first:
                    for i in range(6):
                        for t in range(2): a(f'v_dot2c_f32_bf16 v{96+t}, s36, v{PK+t*6+i}')
                    for sw in ('v_permlane16_swap_b32', 'v_permlane32_swap_b32'):
                        a(f'v_mov_b32 v98, v96\nv_mov_b32 v99, v97\n{sw} v96, v98\n{sw} v97, v99\nv_add_f32 v96, v96, v98\nv_add_f32 v97, v97, v99')
                    a(f'''v_cmp_eq_u32 vcc, 1, v5
                    v_cndmask_b32 v96, v96, v97, vcc
                    v_cvt_pk_bf16_f32 v97, v96, v96
                    v_lshlrev_b32 v97, 16, v97
                    v_sub_f32 v97, v96, v97
                    v_cvt_pk_bf16_f32 v96, v96, v97
                    v_cmp_eq_u32 vcc, 1, v4
                    v_cndmask_b32 v96, v96, 0, vcc''')
                a(f'buffer_store_dword v96, v{vB}, {SWS}, {s2} offen {fl}', tag='out')
            pub0(sSt1, sSt2, '', True)
        else:
            for u in range(3):
                for t in range(2):
                    b = ACC + (t*3+u)*4
                    for d in range(2): a(f'v_pk_mul_f32 {vr(b+2*d,2)}, {vr(b+2*d,2)}, {vr(RD+4*t+2*d,2)}')
                    for d in range(2): a(f'v_cvt_pk_bf16_f32 v{PK+u*4+t*2+d}, v{b+2*d}, v{b+2*d+1}')
            def pub1(s1, fl):
                for u in range(3): a(f'buffer_store_dwordx4 {vr(PK+4*u,4)}, v{vL16}, {SWS}, {s1} offen offset:{u*1024} {fl}', tag='out')
            pub1(sSt1, '')
        for x in rq: kld(*x)
        a.wait(vm='out')
        if var == 0: a('s_branch K2_j')
    a.label('K2_j')
    a('s_barrier')
    publish_flag(a, sW, sF1, sI, sTag, sXcc, 20)
    stamp(a, 'flag')
    RS = 122 - 22
    RS = 98 + 0
    vR, vP0, vP1, vML, vMLr, vOW, vOR, vOG = 19, 20, 21, 22, 23, 24, 25, 27
    RSD = 6
    RS = 104
    a(f'''v_lshrrev_b32 v4, 5, v1
    v_bfe_u32 v5, v1, 4, 1
    v_lshlrev_b32 v{vR}, 4, v3
    v_lshl_add_u32 v{vR}, v4, 8, v{vR}
    v_lshl_add_u32 v{vR}, v5, 3, v{vR}
    s_mul_i32 s34, {sT}, 196608
    s_mul_i32 s35, {sQT}, 12288
    s_add_u32 s34, s34, s35
    s_mul_i32 s35, {sCH}, 6144
    s_add_u32 s34, s34, s35
    s_mul_i32 s35, {sW}, 1536
    s_add_u32 s34, s34, s35
    s_add_u32 s34, s34, {WS_X1}''')
    for u in range(3): a(f'buffer_load_dwordx2 {vr(RS+2*u,2)}, v{vR}, {SWS}, s34 offen offset:{u*512}', tag='rs')
    a(f'''s_lshl_b32 s34, {sW}, 1
    s_add_u32 s34, s34, {sRH}
    s_lshl_b32 s34, s34, 10
    s_add_u32 s34, s34, {LP}
    v_add_u32 v{vP0}, s34, v{vL16}
    v_xor_b32 v{vP1}, 1024, v{vP0}
    s_lshl_b32 s34, {sW}, 3
    s_add_u32 s34, s34, {LML}
    v_lshl_add_u32 v{vML}, v3, 5, s34
    v_lshlrev_b32 v{vMLr}, 5, v3
    v_add_u32 v{vMLr}, {LML}, v{vMLr}
    s_lshl_b32 s35, {sW}, 11
    s_add_u32 s35, s35, {LO}
    v_mul_u32_u24 v{vOW}, 112, v3
    v_lshl_add_u32 v{vOW}, v2, 3, v{vOW}
    v_add_u32 v{vOW}, s35, v{vOW}''')
    for h in range(2):
        a(f'''v_add_u32 v6, {64*h}, v1
        v_mul_u32_u24 v7, 43, v6
        v_lshrrev_b32 v7, 8, v7
        v_mul_u32_u24 v8, 6, v7
        v_sub_u32 v8, v6, v8
        v_lshlrev_b32 v8, 4, v8
        v_mul_u32_u24 v6, 112, v7
        v_add3_u32 v{vOR+h}, v6, v8, s35
        v_mul_u32_u24 v6, 768, v7
        v_add_u32 v{vOG+h}, v6, v8''')
    a(f'''s_lshl_b32 s34, {sT}, 4
    s_add_u32 s34, s34, {sQT}
    s_mul_i32 {sQ}, s34, 13312
    s_add_u32 {sQ}, {sQ}, {WS_Q}
    s_mul_i32 {sOut}, s34, 12288
    s_mul_i32 s35, {sCH}, 384
    s_add_u32 {sOut}, {sOut}, s35
    s_mul_i32 s35, {sW}, 96
    s_add_u32 {sOut}, {sOut}, s35
    s_mul_i32 {sVP}, {sT}, 196608
    s_mul_i32 s35, {sCH}, 12288
    s_add_u32 {sVP}, {sVP}, s35
    s_mul_i32 s35, {sW}, 3072
    s_add_u32 {sVP}, {sVP}, s35
    s_add_u32 {sVP}, {sVP}, {WS_VP}''')
    def repub():
        L1, L2 = a.newlabel('rp'), a.newlabel('rp')
        a(f's_add_u32 s36, {sSt1}, {SLOW}\ns_add_u32 s37, {sSt2}, {SLOW}\ns_cmp_ge_u32 {sS}, 8\ns_cbranch_scc1 {L1}')
        pub0('s36', 's37', 'sc0 sc1'); a(f's_branch {L2}')
        a.label(L1); pub1('s36', 'sc0 sc1'); a.label(L2)
    sync(a, 32, sF1, sF2, sE, sI, sTag, sXcc, sW, sDelta, repub, 32, None, 'k2s')
    stamp(a, 'synced')
    a(f's_add_u32 {sQ}, {sQ}, {sDelta}\ns_add_u32 {sVP}, {sVP}, {sDelta}\ns_add_u32 {sT1}, {sQ}, {sM}')
    for i in range(3):
        a(f'''s_add_u32 {sT0}, {sT1}, {i*4096}
        s_add_u32 m0, {sM}, {LQ + i*4096}
        buffer_load_dwordx4 v{vL16}, {SWS}, {sT0} offen sc1 lds''', tag='q')
    a(f'''s_add_u32 {sT0}, {sQ}, 12288
    s_mov_b32 m0, {LQ + 12288}
    buffer_load_dwordx4 v{vL16}, {SWS}, {sT0} offen sc1 lds''', tag='q')
    VF = 128
    def vld(k8):
        if k8: a(f's_add_u32 {sVP}, {sVP}, 24576')
        for u in range(3): a(f'buffer_load_dwordx4 {vr(VF+(k8*3+u)*4,4)}, v{vL16}, {SWS}, {sVP} offen offset:{u*1024} sc1', tag=f'vp{k8}')
    vld(0); vld(1)
    bump_epoch(a, sW, sI, sE, sTag, 6)
    a.wait(vm='q'); a('s_barrier')
    stamp(a, 'q_in')
    QF, SA = 32, 84
    for ks in range(13):
        a(f'ds_read_b128 {vr(QF+4*ks,4)}, v{vL16 if ks < 12 else vW12} offset:{LQ + ks*1024}', tag=f'q{ks}')
    for ks in range(13):
        a.wait(lg=f'q{ks}')
        for t in range(4):
            kf = ar((t*12+ks)*4, 4) if ks < 12 else ar(MF+4*t, 4)
            d = vr(SA+4*t, 4)
            a(f'v_mfma_f32_16x16x32_bf16 {d}, {kf}, {vr(QF+4*ks,4)}, {"0" if ks == 0 else d}')
        if ks in (0, 2, 4, 6, 8, 10): vld(2 + ks//2)
        if ks == 12:
            a('s_mov_b32 s36, 0xffff0000')
    stamp(a, 's_done')
    RF = 68
    for i in range(8): a(f'v_pk_mul_f32 {vr(SA+2*i,2)}, {vr(SA+2*i,2)}, {vr(RD+2*i,2)}')
    M_, T_ = 100, 101
    a(f'v_max3_f32 v{M_}, v{SA}, v{SA+1}, v{SA+2}\nv_max3_f32 v{T_}, v{SA+3}, v{SA+4}, v{SA+5}')
    a(f'v_max3_f32 v{M_}, v{M_}, v{SA+6}, v{SA+7}\nv_max3_f32 v{T_}, v{T_}, v{SA+8}, v{SA+9}')
    a(f'v_max3_f32 v{M_}, v{M_}, v{SA+10}, v{SA+11}\nv_max3_f32 v{T_}, v{T_}, v{SA+12}, v{SA+13}')
    a(f'v_max3_f32 v{M_}, v{M_}, v{SA+14}, v{SA+15}\nv_max_f32 v{M_}, v{M_}, v{T_}')
    for sw in ('v_permlane16_swap_b32', 'v_permlane32_swap_b32'):
        a(f'v_mov_b32 v{T_}, v{M_}\n{sw} v{M_}, v{T_}\nv_max_f32 v{M_}, v{M_}, v{T_}')
    for i in range(16): a(f'v_sub_f32 v{SA+i}, v{SA+i}, v{M_}')
    for i in range(16): a(f'v_exp_f32 v{SA+i}, v{SA+i}')
    PW = 60
    for i in range(8): a(f'v_cvt_pk_bf16_f32 v{PW+i}, v{SA+2*i}, v{SA+2*i+1}')
    a(f'ds_write_b128 v{vP0}, {vr(PW,4)}\nds_write_b128 v{vP1}, {vr(PW+4,4)}')
    for w_ in (4, 2, 1):
        for i in range(w_): a(f'v_pk_add_f32 {vr(SA+2*i,2)}, {vr(SA+2*i,2)}, {vr(SA+2*i+2*w_,2)}')
    a(f'v_add_f32 v{T_}, v{SA}, v{SA+1}')
    for sw in ('v_permlane16_swap_b32', 'v_permlane32_swap_b32'):
        a(f'v_mov_b32 v102, v{T_}\n{sw} v{T_}, v102\nv_add_f32 v{T_}, v{T_}, v102')
    a(f's_mov_b64 exec, 0xffff\nds_write_b64 v{vML}, {vr(M_,2)}\ns_mov_b64 exec, -1')
    a('s_waitcnt lgkmcnt(0)'); a.lg = []
    a('s_barrier')
    stamp(a, 'p_done')
    PF, PA, ML = 224, 32, 84
    RF = 112
    a(f'ds_read_b128 {vr(PF,4)}, v{vL16} offset:{LP}', tag='p0')
    a(f'ds_read_b128 {vr(ML,4)}, v{vMLr}\nds_read_b128 {vr(ML+4,4)}, v{vMLr} offset:16', tag='ml')
    for k8 in range(1, 8): a(f'ds_read_b128 {vr(PF+4*k8,4)}, v{vL16} offset:{LP + k8*1024}', tag=f'p{k8}')
    fx = []
    for u in range(3):
        for d in range(2): fx += [f'v_lshlrev_b32 v{RF+4*u+2*d}, 16, v{RS+2*u+d}', f'v_and_b32 v{RF+4*u+2*d+1}, s36, v{RS+2*u+d}']
    fx += [f'v_max3_f32 v92, v{ML}, v{ML+2}, v{ML+4}', f'v_max_f32 v92, v92, v{ML+6}']
    for w_ in range(4): fx.append(f'v_sub_f32 v{ML+2*w_}, v{ML+2*w_}, v92')
    for w_ in range(4): fx.append(f'v_exp_f32 v{ML+2*w_}, v{ML+2*w_}')
    fx += [f'v_mul_f32 v92, v{ML}, v{ML+1}'] + [f'v_fmac_f32 v92, v{ML+2*w_}, v{ML+2*w_+1}' for w_ in range(1, 4)]
    fx += ['v_rcp_f32 v92, v92'] + [f'v_mul_f32 v{ML+2*w_}, v{ML+2*w_}, v92' for w_ in range(4)]
    for k8 in range(8):
        a.wait(vm=f'vp{k8}', lg=f'p{k8}')
        for u in range(3):
            d = vr(PA + (u*4 + (k8 >> 1))*4, 4)
            a(f'v_mfma_f32_16x16x32_bf16 {d}, {vr(VF+(k8*3+u)*4,4)}, {vr(PF+4*k8,4)}, {"0" if k8 % 2 == 0 else d}')
            if k8 >= 1:
                for _ in range(2):
                    if fx: a(fx.pop(0))
    for x in fx: a(x)
    stamp(a, 'pv_done')
    for w_ in range(4):
        for u in range(3):
            for d in range(2):
                b = PA + (u*4 + w_)*4 + 2*d
                a(f'v_pk_fma_f32 {vr(RF+4*u+2*d,2)}, {vr(b,2)}, {vr(ML+2*w_,2)}, {vr(RF+4*u+2*d,2)} op_sel_hi:[1,0,1]')
    OP = 96
    for u in range(3):
        for d in range(2): a(f'v_cvt_pk_bf16_f32 v{OP+2*u+d}, v{RF+4*u+2*d}, v{RF+4*u+2*d+1}')
        a(f'ds_write_b64 v{vOW}, {vr(OP+2*u,2)} offset:{u*32}')
    a('s_waitcnt lgkmcnt(0)'); a.lg = []
    a(f'ds_read_b128 {vr(104,4)}, v{vOR}', tag='o0')
    a(f's_mov_b32 exec_hi, 0\nds_read_b128 {vr(108,4)}, v{vOR+1}\ns_mov_b32 exec_hi, -1', tag='o1')
    a.wait(lg='o0')
    a(f'buffer_store_dwordx4 {vr(104,4)}, v{vOG}, {SOUT}, {sOut} offen')
    a.wait(lg='o1')
    a(f's_mov_b32 exec_hi, 0\nbuffer_store_dwordx4 {vr(108,4)}, v{vOG+1}, {SOUT}, {sOut} offen\ns_mov_b32 exec_hi, -1')
    if PROFILE: a.wait_all()
    stamp(a, 'end')
    stamp_flush(a, 1)
    if HP:
        import gen as G
        kern, name = HP[0].split(':')
        a(f's_mov_b32 s37, {WS_PROF}\ns_load_dword s34, s[32:33], s37')
        if kern == '0': a('s_waitcnt lgkmcnt(0)\ns_mov_b32 s35, s34')
        elif kern == '1':
            a(f'''s_min_u32 s36, s2, 191
            s_lshl_b32 s36, s36, 3
            s_add_u32 s36, s36, {sW}
            s_lshl_b32 s36, s36, 6
            s_add_u32 s36, s36, {WS_PROF + 4*G.K1STAMPS.index(name)}
            s_load_dword s35, s[32:33], s36
            s_waitcnt lgkmcnt(0)''')
        else: a(f's_waitcnt lgkmcnt(0)\ns_mov_b32 s35, s{STAMP_REGS[a.stamps.index(name)]}')
        a('''s_sub_u32 s35, s35, s34
        s_mul_i32 s35, s35, 4
        s_add_u32 s35, s35, 4000
        HPL:
        s_memrealtime s[36:37]
        s_waitcnt lgkmcnt(0)
        s_sub_u32 s36, s36, s34
        s_cmp_lt_i32 s36, s35
        s_cbranch_scc1 HPL''')
    a.label('K2_end')
    a('s_endpgm')
    return a
```

```python
import sys, math
sys.path.insert(0, 'gen')
from asm import Asm
HP = [x[5:] for x in sys.argv if x.startswith('--hp=')]
PROFILE = '--prof' in sys.argv or bool(HP)
K1STAMPS = []
WS_V  = 0x000000
WS_S  = 0x180000
WS_X1 = 0x240000
WS_ST = 0x3C0000
WS_W  = 0x3E0000
WS_Q  = 0x480000
WS_VP = 0x620000
WS_F1 = 0x7A0000
WS_F2 = 0x7A4000
WS_E  = 0x7A8000
WS_PROF = 0x7C0000
SLOW = 0x800000
WS_SIZE = 0x1000000
LIM_FAST = int([x for x in sys.argv if x.startswith('--lim=')][0][6:]) if any(x.startswith('--lim=') for x in sys.argv) else 12
LIM_SLOW = 1 << 20
SCALE2 = 384 ** -0.5 * math.log2(math.e)
import struct
def opt(name, default):
    for x in sys.argv:
        if x.startswith(f'--{name}='): return int(x.split('=')[1])
    return default
def fbits(x): return '0x%08x' % struct.unpack('<I', struct.pack('<f', x))[0]
def vr(b, n): return f'v[{b}:{b+n-1}]' if n > 1 else f'v{b}'
def ar(b, n): return f'a[{b}:{b+n-1}]' if n > 1 else f'a{b}'
SX, SWQ, SWO, SWS, SOUT = 's[4:7]', 's[8:11]', 's[12:15]', 's[16:19]', 's[84:87]'
def srd(a, base, ptr, size):
    a(f's_mov_b32 s{base}, s{ptr}\ns_mov_b32 s{base+1}, s{ptr+1}\ns_mov_b32 s{base+2}, {size}\ns_mov_b32 s{base+3}, 0x20000')
STAMP_REGS = [66, 68, 70, 72, 74, 76, 78, 80, 82, 88, 90, 92, 94, 96, 98, 100]
SKIP = []
for x in sys.argv:
    if x.startswith('--skip='): SKIP = x[7:].split(',')
def stamp(a, name):
    if not PROFILE or name in SKIP: return
    if not hasattr(a, 'stamps'): a.stamps = []
    if name not in a.stamps: a.stamps.append(name)
    k = a.stamps.index(name)
    a(f's_memrealtime s[{STAMP_REGS[k]}:{STAMP_REGS[k]+1}]')
def stamp_flush(a, kern, n=0):
    if not PROFILE: return
    a('s_waitcnt lgkmcnt(0)')
    for k in range(16): a(f'v_mov_b32 v{100+k}, s{STAMP_REGS[k]}')
    a(f'''v_lshrrev_b32 v8, 6, v0
    s_lshl_b32 s34, s2, 3
    v_add_u32 v8, s34, v8
    v_lshlrev_b32 v8, 6, v8
    v_add_u32 v8, {WS_PROF + kern*0x20000}, v8''')
    for k in range(4): a(f'buffer_store_dwordx4 v[{100+4*k}:{103+4*k}], v8, {SWS}, 0 offen offset:{16*k}')

def sync(a, n, sF1, sF2, sE, sMem, sTag, sXcc, sW, sDelta, republish, v0t, isleader, name):
    va, vb, vc = v0t, v0t+1, v0t+2
    vd = v0t + 4
    Lf, Ls, Ld, Lsl = [a.newlabel(name) for _ in range(4)]
    a(f'''s_mov_b32 exec_lo, {hex((1 << n) - 1)}
    s_mov_b32 exec_hi, 0
    v_lshlrev_b32 v{va}, 2, v1
    s_add_u32 s34, {sTag}, {sXcc}
    s_add_u32 s34, s34, 1
    v_mov_b32 v{vb}, s34
    s_mov_b32 {sDelta}, 0
    s_mov_b32 s35, {LIM_FAST}''')
    a.label(Lf)
    a(f'buffer_load_dword v{vc}, v{va}, {SWS}, {sF1} offen sc1')
    a.wait_all(lg=False)
    a(f'''v_cmp_ne_u32 vcc, v{vc}, v{vb}
    s_cbranch_vccz {Ld}
    s_sub_u32 s35, s35, 1
    s_cmp_lg_u32 s35, 0
    s_cbranch_scc1 {Lf}''')
    a.cond = True
    a('s_mov_b64 exec, -1')
    republish()
    a.wait_all(lg=False)
    a(f'''s_mov_b64 exec, 1
    s_lshl_b32 s34, {sMem}, 4
    s_lshl_b32 s35, {sW}, 2
    s_add_u32 s34, s34, s35
    v_mov_b32 v{vc}, s34
    v_mov_b32 v{vd}, {sTag}
    buffer_store_dword v{vd}, v{vc}, {SWS}, {sF2} offen sc0 sc1
    s_mov_b32 exec_lo, {hex((1 << n) - 1)}
    v_lshlrev_b32 v{vc+1}, 4, v1
    s_mov_b32 s35, {LIM_SLOW}''')
    a.label(Ls)
    a(f'''buffer_load_dword v{vc}, v{va}, {SWS}, {sF1} offen sc1
    buffer_load_dwordx4 v[{vd}:{vd+3}], v{vc+1}, {SWS}, {sF2} offen sc0 sc1''')
    a.wait_all(lg=False)
    a(f'''v_cmp_ne_u32 vcc, v{vc}, v{vb}
    s_cbranch_vccz {Ld}
    v_xor_b32 v{vd}, {sTag}, v{vd}
    v_xor_b32 v{vd+1}, {sTag}, v{vd+1}
    v_xor_b32 v{vd+2}, {sTag}, v{vd+2}
    v_xor_b32 v{vd+3}, {sTag}, v{vd+3}
    v_or_b32 v{vd}, v{vd}, v{vd+1}
    v_or3_b32 v{vd}, v{vd}, v{vd+2}, v{vd+3}
    v_cmp_ne_u32 vcc, 0, v{vd}
    s_cbranch_vccz {Lsl}
    s_sub_u32 s35, s35, 1
    s_cmp_lg_u32 s35, 0
    s_cbranch_scc1 {Ls}''')
    a.label(Lsl)
    a(f's_mov_b32 {sDelta}, {SLOW}')
    a.cond = False
    a.label(Ld)
    a('s_mov_b64 exec, -1')

def publish_flag(a, sW, sF1, sMem, sTag, sXcc, v0t):
    L = a.newlabel('pf')
    a(f's_cmp_lg_u32 {sW}, 0\ns_cbranch_scc1 {L}')
    a.cond = True
    n0 = len(a.vm)
    a(f'''s_mov_b64 exec, 1
    s_add_u32 s34, {sTag}, {sXcc}
    s_add_u32 s34, s34, 1
    s_lshl_b32 s35, {sMem}, 2
    v_mov_b32 v{v0t}, s35
    v_mov_b32 v{v0t+1}, s34
    buffer_store_dword v{v0t+1}, v{v0t}, {SWS}, {sF1} offen
    s_mov_b64 exec, -1''')
    a.vm.pop()
    a.cond = False
    a.label(L)
def bump_epoch(a, sW, sMem, sE, sTag, v0t):
    L = a.newlabel('be')
    a(f's_or_b32 s34, {sW}, {sMem}\ns_cmp_lg_u32 s34, 0\ns_cbranch_scc1 {L}')
    a.cond = True
    a(f'''s_mov_b64 exec, 1
    v_mov_b32 v{v0t}, 0
    v_mov_b32 v{v0t+1}, {sTag}
    buffer_store_dword v{v0t+1}, v{v0t}, {SWS}, {sE} offen sc0 sc1
    s_mov_b64 exec, -1''')
    a.vm.pop()
    a.cond = False
    a.label(L)

def prologue(a, endlabel, pref=None):
    a(f'''s_cmp_ge_u32 s2, 256
    s_cbranch_scc1 {endlabel}
    s_load_dwordx4 s[20:23], s[0:1], 0
    s_load_dwordx4 s[24:27], s[0:1], 16
    s_load_dwordx4 s[28:31], s[0:1], 32
    s_load_dwordx2 s[32:33], s[0:1], 56
    v_and_b32 v1, 63, v0
    v_lshrrev_b32 v2, 6, v0
    s_and_b32 s40, s2, 7
    v_readfirstlane_b32 s41, v2
    s_lshr_b32 s42, s2, 3''')
    if pref:
        base, nkb = pref
        L = a.newlabel('pc')
        a(f'''s_getpc_b64 s[38:39]''')
        a.label(L)
        a(f'''s_sub_u32 s38, s38, {L}-{base}
        s_subb_u32 s39, s39, 0
        s_lshl_b32 s34, s42, 2
        s_add_u32 s34, s34, s41
        s_and_b32 s34, s34, {nkb-1}
        s_lshl_b32 s34, s34, 10
        v_lshl_add_u32 v9, v1, 4, s34
        global_load_dwordx4 v[252:255], v9, s[38:39]''', tag='pf')
    stamp(a, 'start')

def k1():
    a = Asm()
    sXCD, sW, sI = 's40', 's41', 's42'
    sG, sJ, sP, sHF = 's43', 's44', 's45', 's46'
    sX, sWb, sM, sO, sT0, sT1 = 's47', 's48', 's49', 's50', 's51', 's52'
    sTag, sXcc, sF1, sF2, sE, sDelta = 's53', 's54', 's55', 's56', 's57', 's58'
    sVst, sSst, sVld, sSld, sX1, sST = 's59', 's60', 's61', 's62', 's63', 's64'
    sRole = 's65'
    STF = {0: '', 1: 'sc1', 2: 'sc0 sc1', 3: 'nt'}[opt('stf', 0)]
    prologue(a, 'K1_end', ('temporal_kernel', 32) if '--pf' in sys.argv else None)
    T8, G8 = 2, 3
    vX, vO, vNW, vXF, vAW, vW = 10, 12, 13, 14, 18, 32
    vVst, vSst, vL16, vSld, vX1, vST, vXRd, vAO = 21, 22, 23, 24, 25, 26, 27, 28
    ROT = opt('rot', 0)
    sR = ['s3', 's38', 's39', 's84', 's85', 's86']
    a(f"""s_lshr_b32 {sRole}, {sW}, 2
    s_and_b32 {sW}, {sW}, 3
    s_cmp_ge_u32 {sI}, 24
    s_cbranch_scc1 K1_pre
    s_mul_i32 s34, {sI}, 43
    s_lshr_b32 s34, s34, 8
    s_mul_i32 s35, s34, 6
    s_sub_u32 {sJ}, {sI}, s35
    s_lshl_b32 {sG}, {sXCD}, 2
    s_add_u32 {sG}, {sG}, s34
    s_lshr_b32 {sP}, {sW}, 1
    s_and_b32 {sHF}, {sW}, 1
    v_lshrrev_b32 v{T8}, 3, v1
    v_and_b32 v{G8}, 7, v1
    s_mov_b32 s35, 196608
    v_mul_lo_u32 v{vX}, v{T8}, s35
    v_lshl_add_u32 v{vX}, v{G8}, 4, v{vX}
    s_lshl_b32 s36, {sG}, 3
    s_lshl_b32 s35, {sW}, 1
    s_add_u32 s36, s36, s35
    s_mul_i32 {sX}, s36, 768
    s_lshl_b32 {sM}, {sW}, 11""")
    if ROT:
        if ROT == 3: a(f's_mov_b32 s34, {sXCD}')
        elif ROT == 4: a(f's_mul_i32 s34, {sXCD}, 3\ns_lshr_b32 s34, s34, 2')
        else: a(f's_mul_i32 s34, s34, 3\ns_lshr_b32 s34, s34, 1' + (f'\ns_add_u32 s34, s34, {sJ}' if ROT == 2 else ''))
        for i in range(6):
            a(f's_cmp_ge_u32 s34, 6\ns_cselect_b32 s35, 6, 0\ns_sub_u32 {sR[i]}, s34, s35' + (f'\ns_add_u32 s34, {sR[i]}, 1' if i < 5 else ''))
    def st_addr():
        a(f"""v_bfe_u32 v4, v1, 4, 1
        v_lshrrev_b32 v5, 5, v1
        v_and_b32 v6, 15, v1
        v_mul_u32_u24 v{vVst}, 12288, v4
        v_lshl_add_u32 v{vVst}, v5, 8, v{vVst}
        v_lshl_add_u32 v{vVst}, v6, 4, v{vVst}
        v_lshlrev_b32 v{vSst}, 9, v4
        v_lshl_add_u32 v{vSst}, v5, 8, v{vSst}
        v_lshl_add_u32 v{vSst}, v{G8}, 5, v{vSst}
        v_bfe_u32 v7, v1, 3, 1
        v_lshl_add_u32 v{vSst}, v7, 4, v{vSst}
        s_mul_i32 s34, {sG}, 49152
        s_add_u32 s34, s34, {WS_V}
        s_mul_i32 s35, {sW}, 12288
        s_add_u32 {sVld}, s34, s35
        s_mul_i32 s35, {sP}, 24576
        s_add_u32 s34, s34, s35
        s_lshl_b32 s35, {sJ}, 1
        s_add_u32 s35, s35, {sHF}
        s_lshl_b32 s36, s35, 10
        s_add_u32 {sVst}, s34, s36
        s_mul_i32 s34, {sG}, 24576
        s_add_u32 s34, s34, {WS_S}
        s_lshl_b32 s36, {sW}, 9
        s_add_u32 {sSld}, s34, s36
        s_lshl_b32 s36, s35, 11
        s_add_u32 s34, s34, s36
        s_lshl_b32 s36, {sP}, 10
        s_add_u32 {sSst}, s34, s36""")
    a(f's_cmp_lg_u32 {sRole}, 0\ns_cbranch_scc1 K1_ld')
    SLOT = [0, 32768, 65536, 98304, 131072, 0]
    XO_ = 24576; WOB = 32768; XR = 81920
    XF, WF, ACC, CS, MA, SEL, CA, CB = 160, 32, 100, 148, 68, 72, 76, 88
    a(f"""s_lshl_b32 s34, {sG}, 7
    s_add_u32 {sE}, s34, {WS_E}
    s_add_u32 {sF1}, s34, {WS_F1}
    s_add_u32 {sF2}, s34, {WS_F2}
    s_getreg_b32 {sXcc}, hwreg(HW_REG_XCC_ID)
    s_and_b32 {sXcc}, {sXcc}, 15
    v_and_b32 v4, 31, v1
    v_lshrrev_b32 v5, 5, v1
    v_bfe_u32 v6, v1, 1, 3
    v_xor_b32 v6, v6, v5
    v_lshlrev_b32 v4, 7, v4
    v_lshl_add_u32 v4, v6, 4, v4
    s_lshl_b32 s35, {sP}, 12
    s_add_u32 s35, s35, {XO_}
    v_add_u32 v{vXF}, s35, v4
    v_xor_b32 v{vXF+1}, 32, v{vXF}
    v_xor_b32 v{vXF+2}, 64, v{vXF}
    v_xor_b32 v{vXF+3}, 96, v{vXF}
    v_bfe_u32 v6, v1, 2, 2
    v_lshl_add_u32 v4, v5, 3, v6
    v_lshlrev_b32 v4, 7, v4
    v_lshrrev_b32 v7, 1, v6
    v_xor_b32 v7, {sHF}, v7
    v_lshl_add_u32 v4, v7, 6, v4
    v_bfe_u32 v7, v1, 4, 1
    v_lshl_add_u32 v4, v7, 5, v4
    v_and_b32 v7, 1, v1
    v_lshl_add_u32 v4, v7, 4, v4
    v_bfe_u32 v7, v1, 1, 1
    v_lshl_add_u32 v{vAW}, v7, 3, v4
    v_add_u32 v{vAW+1}, 0x10000, v{vAW}
    v_add_u32 v{vAW+2}, 0x20000, v{vAW}
    s_waitcnt lgkmcnt(0)
    s_load_dword {sTag}, s[32:33], {sE}""")
    stamp(a, 'karg')
    srd(a, 16, 32, WS_SIZE)
    for k in range(4): a(f'v_add_u32 v{96+k}, 0x10000, v{vXF+k}\nv_add_u32 v{92+k}, 0x20000, v{vXF+k}')
    st_addr()
    vBP = 11
    a(f"""v_lshlrev_b32 v{vL16}, 4, v1
    v_lshlrev_b32 v{vSld}, 11, v5
    v_lshl_add_u32 v{vSld}, v4, 8, v{vSld}
    v_lshl_add_u32 v{vSld}, v6, 4, v{vSld}
    v_bfe_u32 v7, v1, 1, 3
    v_and_b32 v8, 1, v1
    s_mov_b32 s34, 196608
    v_mul_lo_u32 v{vX1}, v7, s34
    v_lshl_add_u32 v{vX1}, v4, 9, v{vX1}
    v_lshl_add_u32 v{vX1}, v5, 8, v{vX1}
    v_lshl_add_u32 v{vX1}, v8, 4, v{vX1}
    v_mul_u32_u24 v{vST}, 12288, v7
    v_lshl_add_u32 v{vST}, v8, 4, v{vST}
    v_lshlrev_b32 v{vXRd}, 10, v8
    v_lshl_add_u32 v{vXRd}, v7, 7, v{vXRd}
    v_lshrrev_b32 v9, 4, v1
    v_lshl_add_u32 v{vXRd}, v9, 3, v{vXRd}
    s_add_u32 s34, {sM}, {XR}
    v_add_u32 v{vXRd}, s34, v{vXRd}
    s_lshl_b32 s34, {sHF}, 6
    v_lshl_add_u32 v13, v8, 5, s34
    v_lshl_add_u32 v{vBP}, v7, 2, v13
    v_lshl_add_u32 v13, v4, 4, v13
    v_bfe_u32 v7, v1, 2, 2
    v_lshl_add_u32 v{vAO}, v9, 3, v7
    v_lshlrev_b32 v{vAO}, 7, v{vAO}
    v_lshrrev_b32 v7, 1, v7
    v_lshl_add_u32 v7, v4, 1, v7
    v_lshl_add_u32 v{vAO}, v7, 5, v{vAO}
    v_and_b32 v7, 3, v1
    v_lshl_add_u32 v{vAO}, v7, 3, v{vAO}
    v_add_u32 v{vAO}, {WOB}, v{vAO}
    v_xor_b32 v{vAO+1}, 32, v{vAO}
    v_xor_b32 v{vAO+2}, 64, v{vAO}
    v_xor_b32 v{vAO+3}, 96, v{vAO}
    v_cmp_eq_u32 vcc, v5, v8
    v_cndmask_b32 v9, 0, 1.0, vcc
    v_bfe_u32 v7, v1, 2, 1
    v_cmp_eq_u32 vcc, v7, v4
    v_mov_b32 v7, 0x3f803f80
    v_cndmask_b32 v{SEL}, 0, v7, vcc
    v_cndmask_b32 v{SEL+1}, 0, v7, vcc
    v_cndmask_b32 v{SEL+2}, 0, v7, vcc
    v_cndmask_b32 v{SEL+3}, 0, v7, vcc
    s_lshr_b32 s34, {sG}, 1
    s_mul_i32 s34, s34, 12288
    s_lshl_b32 s35, {sJ}, 11
    s_add_u32 s34, s34, s35
    s_and_b32 s35, {sG}, 1
    s_lshl_b32 s35, s35, 7
    s_add_u32 s34, s34, s35
    s_lshl_b32 s35, {sW}, 5
    s_add_u32 s34, s34, s35
    s_add_u32 {sX1}, s34, {WS_X1}
    s_lshr_b32 s34, {sJ}, 1
    s_lshl_b32 s34, s34, 12
    s_lshl_b32 s36, {sG}, 7
    s_add_u32 s34, s34, s36
    s_add_u32 s34, s34, s35
    s_and_b32 s36, {sJ}, 1
    s_lshl_b32 s36, s36, 3
    s_add_u32 s34, s34, s36
    s_add_u32 {sST}, s34, {WS_ST}
    s_mov_b32 s38, {fbits(-1/384)}
    s_mov_b32 s84, -1
    s_mov_b32 s85, 0""")
    for r in range(CA, CB + 4):
        if (r - CA) % 4: a(f'v_mov_b32 v{r}, 0')
    def emit(x):
        if isinstance(x, tuple): a(x[0], tag=x[1])
        else: a(x)
    a('s_waitcnt lgkmcnt(0)')
    a(f's_mul_i32 {sTag}, {sTag}, 0x9e3779b1\ns_add_u32 {sTag}, {sTag}, 0x7f4a7c15')
    if '--bst' in sys.argv: stamp(a, 'a0')
    a('s_barrier')
    stamp(a, 'mm0')
    def xrd(ks):
        off = SLOT[ks >> 2]
        base = (vXF, 96, 92)[off >> 16] + (ks & 3)
        a(f'ds_read_b128 {vr(XF+4*ks,4)}, v{base} offset:{off & 0xffff}', tag=f'f{ks}')
    def trd(ks, P):
        c, k4 = ks >> 2, ks & 3
        off = SLOT[c] + P*8192 + k4*2048
        base = vAW + (off >> 16); off &= 0xffff
        d = WF + (ks % 3)*12 + P*4
        a(f'ds_read_b64_tr_b16 {vr(d,2)}, v{base} offset:{off}\nds_read_b64_tr_b16 {vr(d+2,2)}, v{base} offset:{off+512}', tag=f'f{ks}')
    for ks in range(2):
        xrd(ks)
        for P in range(3): trd(ks, P)
    BARS = {2: 1, 6: 2, 10: 3, 14: 4, 18: 5}
    def m16(d, b, first): a(f'v_mfma_f32_16x16x32_bf16 {vr(d,4)}, {vr(SEL,4)}, {b}, {"0" if first else vr(d,4)}')
    for ks in range(24):
        if ks in BARS:
            if '--bst' in sys.argv: stamp(a, f'a{BARS[ks]}')
            a('s_barrier')
            if BARS[ks] in (2, 4, 5) and '--bst' not in sys.argv: stamp(a, f'c{BARS[ks]}')
        a.wait(lg=f'f{ks}')
        wf = lambda P: vr(WF + (ks % 3)*12 + P*4, 4)
        main = lambda P: a(f'v_mfma_f32_32x32x16_bf16 {vr(ACC+16*P,16)}, {wf(P)}, {vr(XF+4*ks,4)}, {"0" if ks == 0 else vr(ACC+16*P,16)}')
        if ks < 23:
            for P in range(3):
                main(P)
                if ks + 2 < 24:
                    if P == 0: xrd(ks + 2)
                    trd(ks + 2, P)
                if '--nocs' not in sys.argv or ks == 0: m16(CS + 4*P, wf(P), ks == 0)
            if '--nom' not in sys.argv or ks == 0: m16(MA, vr(XF+4*ks, 4), ks == 0)
        else:
            m16(MA, vr(XF+4*ks, 4), False)
            for P in range(3): m16(CS + 4*P, wf(P), False)
            main(0)
            a(f's_mov_b32 s36, 0xffff0000')
            main(1)
            a(f"""v_mul_f32 v{MA}, s38, v{MA}
            v_cvt_pk_bf16_f32 v{CA}, v{CS}, v{CS}
            v_cvt_pk_bf16_f32 v{CA+4}, v{CS+4}, v{CS+4}
            v_cvt_pk_bf16_f32 v{CA+8}, v{CS+8}, v{CS+8}
            v_cvt_pk_bf16_f32 v{CB}, v{MA}, v{MA}
            v_and_b32 v{CA}, s36, v{CA}""")
            main(2)
            a(f"""v_and_b32 v{CA+4}, s36, v{CA+4}
            v_and_b32 v{CA+8}, s36, v{CA+8}
            v_cndmask_b32 v{CB}, 0, v{CB}, s[84:85]
            v_sub_f32 v{CA}, v{CS}, v{CA}
            v_sub_f32 v{CA+4}, v{CS+4}, v{CA+4}
            v_sub_f32 v{CA+8}, v{CS+8}, v{CA+8}
            v_cvt_pk_bf16_f32 v{CA}, v{CS}, v{CA}
            v_cvt_pk_bf16_f32 v{CA+4}, v{CS+4}, v{CA+4}
            v_cvt_pk_bf16_f32 v{CA+8}, v{CS+8}, v{CA+8}""")
            for P in range(3): a(f'v_mfma_f32_32x32x16_bf16 {vr(ACC+16*P,16)}, {vr(CA+4*P,4)}, {vr(CB,4)}, {vr(ACC+16*P,16)}')
    stamp(a, 'mmend')
    PQ, PK, PV, SC = 32, 40, 48, 100
    SQ = 76
    for P, d in ((0, PQ), (1, PK)):
        for i in range(8): a(f'v_cvt_pk_bf16_f32 v{d+i}, v{ACC+16*P+2*i}, v{ACC+16*P+2*i+1}')
    a(f'v_mfma_f32_32x32x16_bf16 {vr(SC,16)}, {vr(PK,4)}, {vr(PQ,4)}, 0')
    a(f'v_mfma_f32_32x32x16_bf16 {vr(SC,16)}, {vr(PK+4,4)}, {vr(PQ+4,4)}, {vr(SC,16)}')
    for i in range(8): a(f'v_cvt_pk_bf16_f32 v{PV+i}, v{ACC+32+2*i}, v{ACC+32+2*i+1}')
    def pub_a(sv, ss, fl):
        a(f'buffer_store_dwordx4 {vr(PV,4)}, v{vVst}, {SWS}, {sv} offen {fl}', tag='st')
        a(f'buffer_store_dwordx4 {vr(PV+4,4)}, v{vVst}, {SWS}, {sv} offen offset:512 {fl}', tag='st')
        for b in range(4):
            m = 0xff << (8*b)
            a(f's_mov_b32 exec_lo, {hex(m)}\ns_mov_b32 exec_hi, {hex(m)}')
            a(f'buffer_store_dwordx4 {vr(SC+4*b,4)}, v{vSst}, {SWS}, {ss} offen {fl}', tag='st')
        a('s_mov_b64 exec, -1')
    pub_a(sVst, sSst, '')
    stamp(a, 'stored')
    a(f'v_mov_b32 v{SQ}, 0\nv_mov_b32 v{SQ+1}, 0')
    ND0 = opt('nd0', 64)
    for i in range(ND0): a(f'v_dot2c_f32_bf16 v{SQ+(i&1)}, v{XF+i}, v{XF+i}')
    a.wait_all()
    a('s_barrier')
    publish_flag(a, sW, sF1, sJ, sTag, sXcc, 2)
    stamp(a, 'flag')
    RES = 64; RR = 92
    RING = [116, 132, 32, 100]
    def word(s):
        for u in range(4):
            d = RING[s % 4] + 4*u
            a(f'ds_read_b64_tr_b16 {vr(d,2)}, v{vAO+u} offset:{s*4096}\nds_read_b64_tr_b16 {vr(d+2,2)}, v{vAO+u} offset:{s*4096+512}', tag=f'o{s}')
    for u in range(4): a(f'ds_read_b64 {vr(148+2*u,2)}, v{vXRd} offset:{u*32}', tag='xrd')
    for s in range(3): word(s)
    for i in range(ND0, 96): a(f'v_dot2c_f32_bf16 v{SQ+(i&1)}, v{XF+i}, v{XF+i}')
    a(f"""s_mov_b32 s37, {fbits(1e-5)}
    v_mul_f32 v{SQ+2}, v{MA}, v{MA}
    v_add_f32 v{SQ}, v{SQ}, v{SQ+1}
    v_mov_b32 v{SQ+1}, v{SQ}
    v_permlane32_swap_b32 v{SQ}, v{SQ+1}
    v_add_f32 v{SQ}, v{SQ}, v{SQ+1}
    v_fma_f32 v{SQ}, -v{SQ}, s38, -v{SQ+2}
    v_max_f32 v{SQ}, 0, v{SQ}
    v_add_f32 v{SQ}, s37, v{SQ}
    v_rsq_f32 v{SQ}, v{SQ}
    v_add_u32 v{SQ+1}, 4, v13
    v_add_u32 v{SQ+2}, 8, v13
    v_add_u32 v{SQ+3}, 12, v13""")
    a(f'ds_bpermute_b32 v{RR+4}, v{vBP}, v{SQ}\nds_bpermute_b32 v{RR}, v13, v{SQ}', tag='bp')
    for e in range(1, 4): a(f'ds_bpermute_b32 v{RR+e}, v{SQ+e}, v{SQ}', tag='bp')
    a.wait(lg='xrd')
    for u in range(4):
        for d in range(2): a(f'v_lshlrev_b32 v{RES+4*u+2*d}, 16, v{148+2*u+d}\nv_and_b32 v{RES+4*u+2*d+1}, s36, v{148+2*u+d}') if not (u == 3) else None
    a.wait(lg='bp')
    for d in range(2): a(f'v_lshlrev_b32 v{RES+12+2*d}, 16, v{154+d}\nv_and_b32 v{RES+12+2*d+1}, s36, v{154+d}')
    a(f'v_mul_f32 v{RR+4}, {fbits(SCALE2)}, v{RR+4}')
    def repub():
        a(f's_add_u32 s36, {sVst}, {SLOW}\ns_add_u32 s37, {sSst}, {SLOW}')
        pub_a('s36', 's37', 'sc0 sc1')
    sync(a, 6, sF1, sF2, sE, sJ, sTag, sXcc, sW, sDelta, repub, 56, None, 'k1s')
    stamp(a, 'synced')
    VF, SP, Y = 208, 160, 184
    a(f's_add_u32 {sVld}, {sVld}, {sDelta}\ns_add_u32 {sSld}, {sSld}, {sDelta}')
    def vld(s):
        return ((f's_add_u32 {sVld}, {sVld}, 4096\n' if s & 3 == 0 and s else '') + f'buffer_load_dwordx4 {vr(VF+4*s,4)}, v{vL16}, {SWS}, {sVld} offen offset:{(s&3)*1024} sc1', f'v{s}')
    def sld(i):
        return ((f's_add_u32 {sSld}, {sSld}, 4096\n' if i else '') + f'buffer_load_dwordx4 {vr(SP+4*i,4)}, v{vSld}, {SWS}, {sSld} offen sc1', f's{i}')
    SPOS = opt('spos', 3)
    lq = [vld(s) for s in range(SPOS)] + [sld(i) for i in range(6)] + [vld(s) for s in range(SPOS, 12)]
    for k in range(opt('nl0', 8)): emit(lq.pop(0))
    word(3)
    sm = []
    for i in range(1, 6):
        for d in range(4): sm.append(f'v_add_f32 v{SP+d}, v{SP+d}, v{SP+4*i+d}')
    for d in range(4): sm.append(f'v_mov_b32 v{SP+4+d}, v{SP+d}')
    for d in range(4): sm.append(f'v_permlane32_swap_b32 v{SP+d}, v{SP+4+d}')
    for d in range(4): sm.append(f'v_add_f32 v{SP+d}, v{SP+d}, v{SP+4+d}')
    for d in range(4): sm.append(f'v_mul_f32 v{SP+d}, v{SP+d}, v{RR+d}')
    sm += [f'v_max_f32 v{SP+4}, v{SP}, v{SP+1}', f'v_max3_f32 v{SP+4}, v{SP+4}, v{SP+2}, v{SP+3}', f'v_mov_b32 v{SP+5}, v{SP+4}',
           f'v_permlane16_swap_b32 v{SP+4}, v{SP+5}', f'v_max_f32 v{SP+4}, v{SP+4}, v{SP+5}', f'v_mul_f32 v{SP+4}, v{RR+4}, v{SP+4}']
    for d in range(4): sm.append(f'v_fma_f32 v{SP+d}, v{SP+d}, v{RR+4}, -v{SP+4}')
    for d in range(4): sm.append(f'v_exp_f32 v{SP+d}, v{SP+d}')
    sm += [f'v_add_f32 v{SP+4}, v{SP}, v{SP+1}', f'v_add_f32 v{SP+5}, v{SP+2}, v{SP+3}', f'v_add_f32 v{SP+4}, v{SP+4}, v{SP+5}',
           f'v_mov_b32 v{SP+5}, v{SP+4}'] + [f'v_mul_f32 v{SP+d}, v{SP+d}, v{RR+d}' for d in range(2)] + [f'v_permlane16_swap_b32 v{SP+4}, v{SP+5}', f'v_add_f32 v{SP+4}, v{SP+4}, v{SP+5}',
           f'v_rcp_f32 v{SP+4}, v{SP+4}'] + [f'v_mul_f32 v{SP+d}, v{SP+d}, v{RR+d}' for d in range(2, 4)] + [f'v_mul_f32 v{SP+4}, v{SP+4}, v9']
    for d in range(4): sm.append(f'v_mul_f32 v{SP+d}, v{SP+d}, v{SP+4}')
    PP, YP, XO, S2 = 80, 82, 48, 90
    sm += [f'v_cvt_pk_bf16_f32 v{PP}, v{SP}, v{SP+1}', f'v_cvt_pk_bf16_f32 v{PP+1}, v{SP+2}, v{SP+3}', f'v_mov_b32 v{S2}, 0', f'v_mov_b32 v{S2+1}, 0', 's_mov_b32 s36, 0x3f803f80']
    def drain(n):
        while n > 0 and sm: a(sm.pop(0)); n -= 1
    for s in range(12):
        a.wait(vm=f'v{s}', lg=f'o{s}')
        for u in range(4):
            cin = '0' if s == 0 else vr(Y+4*u, 4)
            a(f'v_mfma_f32_16x16x32_bf16 {vr(Y+4*u,4)}, {vr(VF+4*s,4)}, {vr(RING[s%4]+4*u,4)}, {cin}')
            if u in (0, 2) and lq: emit(lq.pop(0))
            if s >= SPOS: drain(2)
        if s + 4 < 12: word(s + 4)
    drain(1000)
    stamp(a, 'ygemm')
    for u in range(4):
        for d in range(2): a(f'v_cvt_pk_bf16_f32 v{YP+2*u+d}, v{Y+4*u+2*d}, v{Y+4*u+2*d+1}')
    for u in range(4):
        a(f'v_mfma_f32_16x16x16_bf16 {vr(RES+4*u,4)}, {vr(YP+2*u,2)}, {vr(PP,2)}, {vr(RES+4*u,4)}')
    bump_epoch(a, sW, sJ, sE, sTag, 2)
    for u in range(4):
        for d in range(2): a(f'v_cvt_pk_bf16_f32 v{XO+2*u+d}, v{RES+4*u+2*d}, v{RES+4*u+2*d+1}')
    for u in (0, 2):
        for d in range(2): a(f'v_permlane16_swap_b32 v{XO+2*u+d}, v{XO+2*u+2+d}')
    a(f'buffer_store_dwordx4 {vr(XO,4)}, v{vX1}, {SWS}, {sX1} offen {STF}')
    a(f'buffer_store_dwordx4 {vr(XO+4,4)}, v{vX1}, {SWS}, {sX1} offen offset:1024 {STF}')
    for i in range(8): a(f'v_dot2c_f32_bf16 v{S2}, s36, v{XO+i}\nv_dot2c_f32_bf16 v{S2+1}, v{XO+i}, v{XO+i}')
    for sw in ('v_permlane16_swap_b32', 'v_permlane32_swap_b32'):
        a(f'v_mov_b32 v56, v{S2}\nv_mov_b32 v57, v{S2+1}')
        a(f'{sw} v{S2}, v56\n{sw} v{S2+1}, v57')
        a(f'v_add_f32 v{S2}, v{S2}, v56\nv_add_f32 v{S2+1}, v{S2+1}, v57')
    a(f's_mov_b64 exec, 0xffff\nbuffer_store_dwordx2 {vr(S2,2)}, v{vST}, {SWS}, {sST} offen {STF}\ns_mov_b64 exec, -1')
    if PROFILE: a.wait_all()
    stamp(a, 'end')
    stamp_flush(a, 0)
    a('s_endpgm')
    a.label('K1_ld'); a.vm = []; a.lg = []
    vXs = 38
    sRx = ['s59', 's60', 's61', 's62', 's63', 's64']
    a(f"""v_lshlrev_b32 v4, 1, v{T8}
    v_and_b32 v4, 4, v4
    v_xor_b32 v4, v4, v{G8}
    v_mul_u32_u24 v{vW}, 2304, v{T8}
    v_lshl_add_u32 v{vW}, v4, 4, v{vW}
    s_mul_i32 {sWb}, {sW}, {16*2304}
    s_lshl_b32 s34, {sJ}, 7
    s_add_u32 {sWb}, {sWb}, s34
    v_lshrrev_b32 v4, 1, v{T8}
    v_lshlrev_b32 v4, 4, v4
    v_xor_b32 v{vXs}, v4, v{vX}
    v_xor_b32 v{vXs+1}, 64, v{vXs}
    v_add_u32 v{vXs+1}, 768, v{vXs+1}""")
    for k in range(1, 6): a(f'v_add_u32 v{vW+k}, {(k>>1)*768 + (k&1)*18432}, v{vW}')
    for i in range(6):
        if ROT: a(f's_lshl_b32 s34, {sR[i]}, 7\ns_add_u32 {sRx[i]}, s34, {sX}\ns_mul_i32 {sR[i]}, {sR[i]}, 147456\ns_add_u32 {sR[i]}, {sR[i]}, {sWb}')
        else: a(f's_add_u32 {sR[i]}, {sWb}, {i*147456}\ns_add_u32 {sRx[i]}, {sX}, {i*128}')
    a('s_waitcnt lgkmcnt(0)')
    srd(a, 4, 20, 1572864); srd(a, 8, 22, 884736)
    def wdma(c):
        for th in range(2):
            a(f's_add_u32 m0, {sM}, {SLOT[c] + XO_ + th*1024}\nbuffer_load_dwordx4 v{vXs+th}, {SX}, {sRx[c]} offen lds', tag=f'w{c}')
        for k in range(6):
            a(f's_add_u32 m0, {sM}, {SLOT[c] + (k>>1)*8192 + (k&1)*1024}\nbuffer_load_dwordx4 v{vW+k}, {SWQ}, {sR[c]} offen lds', tag=f'w{c}')
    NL = opt('nl', 2)
    for c in range(NL):
        wdma(c)
        if c == 0: srd(a, 16, 32, WS_SIZE); srd(a, 12, 24, 294912)
        if c == 1:
            a(f"""v_and_b32 v4, 2, v{T8}
            s_lshl_b32 s34, {sHF}, 2
            v_or_b32 v4, s34, v4
            v_xor_b32 v4, v4, v{G8}
            v_mul_u32_u24 v{vO}, 768, v{T8}
            v_lshl_add_u32 v{vO}, v4, 4, v{vO}
            s_mul_i32 {sO}, {sW}, 6144
            s_lshl_b32 s34, {sJ}, 7
            s_add_u32 {sO}, {sO}, s34
            s_add_u32 {sT0}, {sX}, s34
            s_lshl_b32 {sT1}, {sW}, 10""")
    stamp(a, 'Lissued')
    def wo(h):
        for i in range(6*h, 6*h+6):
            a(f's_add_u32 m0, {sT1}, {WOB + i*4096}\n' + (f's_add_u32 {sO}, {sO}, 24576\n' if i else '') + f'buffer_load_dwordx4 v{vO}, {SWO}, {sO} offen lds', tag='wo')
    def touch():
        st_addr()
        a(f'buffer_load_dwordx4 v[40:43], v{vVst}, {SWS}, {sVst} offen\nbuffer_load_dwordx4 v[44:47], v{vVst}, {SWS}, {sVst} offen offset:512\nbuffer_load_dwordx4 v[48:51], v{vSst}, {SWS}, {sSst} offen', tag='touch')
    nxt = NL
    for c in range(6):
        a.wait(vm=f'w{c}')
        if '--bst' in sys.argv: stamp(a, f'L{c}')
        a('s_barrier')
        if nxt < 5 or (nxt == 5 and c >= 2): wdma(nxt); nxt += 1
        if c == opt('tpos', 3) and opt('touch', 1): assert nxt == 6; touch()
        if c == 4:
            wo(0)
            for th in range(2):
                a(f's_add_u32 m0, {sM}, {XR + th*1024}\n' + (f's_add_u32 {sT0}, {sT0}, 768\n' if th else '') + f'buffer_load_dwordx4 v{vX}, {SX}, {sT0} offen lds', tag='xr')
        if c == 5: wo(1)
    a.wait_all()
    stamp(a, 'Lend')
    a('s_barrier')
    stamp_flush(a, 0)
    a('s_endpgm')
    a.label('K1_pre'); a.vm = []; a.lg = []
    sSp, sMm, sIt, sJt, sA, sB = 's43', 's44', 's45', 's46', 's47', 's48'
    a(f'''s_cmp_lg_u32 {sRole}, 0
    s_cbranch_scc1 K1_end
    s_sub_u32 {sJt}, {sI}, 24
    s_cmp_ge_u32 {sJt}, {0 if '--nopre' in sys.argv else 6}
    s_cbranch_scc1 K1_end
    s_cmp_ge_u32 {sXCD}, 6
    s_cbranch_scc1 K1_end
    s_cmp_ge_u32 {sXCD}, 3
    s_cselect_b32 {sMm}, 1, 0
    s_mul_i32 s34, {sMm}, 3
    s_sub_u32 {sIt}, {sXCD}, s34''')
    vA0, vA1, vBo, vAr, vBr = 10, 11, 12, 14, 18
    a(f'''v_lshrrev_b32 v2, 3, v1
    v_and_b32 v3, 7, v1
    v_lshrrev_b32 v4, 1, v2
    v_xor_b32 v4, v4, v3
    v_mul_u32_u24 v5, 2304, v2
    v_lshl_add_u32 v{vA0}, v4, 4, v5
    v_xor_b32 v{vA1}, 64, v{vA0}
    v_lshlrev_b32 v4, 1, v2
    v_and_b32 v4, 4, v4
    v_xor_b32 v4, v4, v3
    v_mul_u32_u24 v5, 768, v2
    v_lshl_add_u32 v{vBo}, v4, 4, v5
    s_lshl_b32 s34, {sIt}, 2
    s_add_u32 s34, s34, {sW}
    s_mul_i32 {sA}, s34, {32*2304}
    s_mul_i32 s35, {sMm}, 1536
    s_add_u32 {sA}, {sA}, s35
    s_mul_i32 {sM}, {sW}, 24576''')
    a('s_waitcnt lgkmcnt(0)')
    srd(a, 8, 26, 884736); srd(a, 12, 28, 294912); srd(a, 16, 32, WS_SIZE)
    BB = 98304
    a(f'''v_and_b32 v2, 31, v1
    v_lshrrev_b32 v3, 5, v1
    v_and_b32 v4, 19, v2
    v_bfe_u32 v5, v2, 2, 1
    v_lshl_add_u32 v4, v5, 3, v4
    v_bfe_u32 v5, v2, 3, 1
    v_lshl_add_u32 v4, v5, 2, v4
    v_lshrrev_b32 v5, 3, v4
    v_mul_u32_u24 v5, 6144, v5
    v_and_b32 v6, 7, v4
    v_lshl_add_u32 v5, v6, 7, v5
    v_bfe_u32 v6, v4, 1, 3
    v_xor_b32 v6, v6, v3
    v_lshl_add_u32 v5, v6, 4, v5
    v_add_u32 v{vAr}, {sM}, v5''')
    for k in range(1, 4): a(f'v_xor_b32 v{vAr+k}, {32*k}, v{vAr}')
    FA, FB, AC = 32, 48, 128
    for m in range(2):
        if m == 0: a(f's_cmp_eq_u32 {sMm}, 1\ns_cbranch_scc1 K1_pre1')
        else: a.label('K1_pre1'); a.vm = []; a.lg = []
        if m == 0:
            a(f'''s_lshl_b32 s34, {sJt}, 2
            s_add_u32 s34, s34, {sW}
            s_mul_i32 {sB}, s34, {16*2304}
            s_add_u32 {sB}, {sB}, 768
            s_mul_i32 {sT1}, {sW}, 12288
            v_lshrrev_b32 v5, 3, v2
            v_mul_u32_u24 v5, 6144, v5
            v_and_b32 v6, 7, v2
            v_lshl_add_u32 v5, v6, 7, v5
            v_bfe_u32 v6, v2, 1, 3
            v_xor_b32 v6, v6, v3
            v_lshl_add_u32 v5, v6, 4, v5
            v_add_u32 v{vBr}, {BB}, v5''')
            for k in range(1, 4): a(f'v_xor_b32 v{vBr+k}, {32*k}, v{vBr}')
        else:
            a(f'''s_mul_i32 {sB}, {sW}, {16*768}
            s_lshl_b32 s34, {sJt}, 7
            s_add_u32 {sB}, {sB}, s34
            s_lshl_b32 {sT1}, {sW}, 11
            v_bfe_u32 v6, v1, 2, 2
            v_lshl_add_u32 v4, v3, 3, v6
            v_lshlrev_b32 v4, 7, v4
            v_lshrrev_b32 v7, 1, v6
            v_lshl_add_u32 v4, v7, 6, v4
            v_bfe_u32 v7, v1, 4, 1
            v_lshl_add_u32 v4, v7, 5, v4
            v_and_b32 v7, 3, v1
            v_lshl_add_u32 v4, v7, 3, v4
            v_add_u32 v{vBr}, {BB}, v4
            v_xor_b32 v{vBr+1}, 64, v{vBr}''')
        for jj in range(6):
            for r in range(4):
                a(f'''s_add_u32 {sT0}, {sA}, {r*8*2304 + jj*128}
                s_add_u32 m0, {sM}, {(r*6+jj)*1024}
                buffer_load_dwordx4 v{vA0+(r&1)}, {SWQ}, {sT0} offen lds''', tag=f'p{jj}')
            for r in range(2):
                if m == 0:
                    a(f'''s_add_u32 {sT0}, {sB}, {r*8*2304 + jj*128}
                    s_add_u32 m0, {sT1}, {BB + (r*6+jj)*1024}
                    buffer_load_dwordx4 v{vA0+r}, {SWQ}, {sT0} offen lds''', tag=f'p{jj}')
                else:
                    a(f'''s_add_u32 {sT0}, {sB}, {(jj*64 + r*8)*768}
                    s_add_u32 m0, {sT1}, {BB + jj*8192 + r*1024}
                    buffer_load_dwordx4 v{vBo}, {SWO}, {sT0} offen lds''', tag=f'p{jj}')
        for jj in range(6):
            a.wait(vm=f'p{jj}'); a('s_barrier')
            for k4 in range(4):
                a(f'ds_read_b128 {vr(FA+4*k4,4)}, v{vAr+k4} offset:{jj*1024}', tag=f'r{k4}')
                for v in range(2):
                    d = FB + (k4*2+v)*4
                    if m == 0: a(f'ds_read_b128 {vr(d,4)}, v{vBr+k4} offset:{v*24576+jj*1024}', tag=f'r{k4}')
                    else:
                        o = jj*8192 + k4*2048
                        a(f'ds_read_b64_tr_b16 {vr(d,2)}, v{vBr+v} offset:{o}\nds_read_b64_tr_b16 {vr(d+2,2)}, v{vBr+v} offset:{o+512}', tag=f'r{k4}')
            for k4 in range(4):
                a.wait(lg=f'r{k4}')
                for v in range(2):
                    cin = '0' if (jj == 0 and k4 == 0) else vr(AC+16*v, 16)
                    a(f'v_mfma_f32_32x32x16_bf16 {vr(AC+16*v,16)}, {vr(FA+4*k4,4)}, {vr(FB+(k4*2+v)*4,4)}, {cin}')
        if m == 0: a('s_branch K1_pre2')
    a.label('K1_pre2')
    a(f'''s_mul_i32 s34, {sMm}, 24
    s_lshl_b32 s35, {sJt}, 2
    s_add_u32 s34, s34, s35
    v_bfe_u32 v4, v1, 4, 1
    v_add_u32 v4, s34, v4
    v_and_b32 v7, 15, v1
    v_lshlrev_b32 v7, 4, v7
    s_lshl_b32 s35, {sIt}, 2
    s_add_u32 s35, s35, {sW}
    s_mul_i32 s35, s35, 3072
    s_add_u32 s35, s35, {WS_W}
    s_lshl_b32 s36, {sIt}, 8
    s_lshl_b32 s37, {sW}, 2
    s_add_u32 s36, s36, s37
    s_add_u32 s36, s36, {WS_W + 12*3072}
    s_mov_b32 s37, 0x3f803f80''')
    for v in range(2):
        a(f'''v_add_u32 v5, {2*v}, v4
        v_mul_u32_u24 v6, 43, v5
        v_lshrrev_b32 v6, 7, v6
        v_mul_u32_u24 v8, 3, v6
        v_sub_u32 v5, v5, v8
        v_mul_u32_u24 v6, 39936, v6
        v_lshl_add_u32 v6, v5, 10, v6
        v_add_u32 v{20+v}, v6, v7
        v_lshl_add_u32 v{22+v}, v3, 8, v{20+v}
        v_mov_b32 v{24+v}, 0''')
        for i in range(8): a(f'v_cvt_pk_bf16_f32 v{32+8*v+i}, v{AC+16*v+2*i}, v{AC+16*v+2*i+1}')
        a(f'buffer_store_dwordx4 {vr(32+8*v,4)}, v{22+v}, {SWS}, s35 offen {STF}')
        a(f'buffer_store_dwordx4 {vr(36+8*v,4)}, v{22+v}, {SWS}, s35 offen offset:512 {STF}')
        for i in range(8): a(f'v_dot2c_f32_bf16 v{24+v}, s37, v{32+8*v+i}')
    for v in range(2):
        a(f'''v_mov_b32 v26, v{24+v}
        v_permlane32_swap_b32 v{24+v}, v26
        v_add_f32 v26, v26, v{24+v}
        v_cvt_pk_bf16_f32 v27, v26, v26
        v_lshlrev_b32 v27, 16, v27
        v_sub_f32 v27, v26, v27
        v_cvt_pk_bf16_f32 v{28+v}, v26, v27''')
    a('s_mov_b32 exec_hi, 0')
    for v in range(2): a(f'buffer_store_dword v{28+v}, v{20+v}, {SWS}, s36 offen {STF}')
    a('s_mov_b64 exec, -1')
    if PROFILE:
        a.wait_all(); stamp(a, 'end'); stamp_flush(a, 0, 6)
    a.label('K1_end')
    a('s_endpgm')
    import gen as G
    G.K1STAMPS[:] = getattr(a, 'stamps', [])
    return a

def kernel_text(name, a):
    return f'.globl {name}\n.p2align 8\n.type {name},@function\n{name}:\n' + a.text()
def desc(name, nv):
    return f'''.p2align 6
.amdhsa_kernel {name}
  .amdhsa_next_free_vgpr {nv}
  .amdhsa_next_free_sgpr 102
  .amdhsa_accum_offset 256
  .amdhsa_group_segment_fixed_size 0
  .amdhsa_kernarg_size 64
  .amdhsa_user_sgpr_count 2
  .amdhsa_user_sgpr_kernarg_segment_ptr 1
  .amdhsa_system_sgpr_workgroup_id_x 1
.end_amdhsa_kernel
'''
HEAD = open('standalone__video_timesformer__vision.s.ref').read().split('; Override launch')[0]
if __name__ == '__main__':
    out = sys.argv[1]
    ks = [('temporal_kernel', k1(), 163840, 512, 256)]
    try:
        from gen2 import k2
        if '--k1only' not in sys.argv: ks.append(('spatial_kernel', k2(), 81920, 256, 512))
    except ImportError: pass
    s = HEAD + ''.join(f'; @launch kernel={n} grid=(256,1,1) block=({b},1,1) lds={l}\n' for n, _, l, b, nv in ks)
    s += '.amdgcn_target "amdgcn-amd-amdhsa--gfx950"\n.text\n' + ''.join(kernel_text(k[0], k[1]) for k in ks)
    s += '.fill 4096, 4, 0xbf800000\n.section .rodata,"a"\n' + ''.join(desc(k[0], k[4]) for k in ks)
    open(out, 'w').write(s)
    if PROFILE: open(out + '.stamps', 'w').write(repr([k[1].stamps for k in ks]))
    for n, a, *_ in ks: print(n, 'instructions', sum(1 for i in a.ins if not i.label), 'pad states', a.pads)
```

```python
def phase2(a, G):
    globals().update({k: v for k, v in G.items() if not k.startswith('__')})
    sT = sXCD
    sRH, sS, sQT, sCH, sT0, sT1 = 's50', 's51', 's52', 's53', 's54', 's55'
    sK, sSt1, sSt2, sQ, sVP, sOut, sF1, sF2, sOwn, sE8, sRs = 's56', 's57', 's58', 's59', 's60', 's61', 's62', 's63', 's64', 's65', 's66'
    LW, LT, LQ, LP, LML, LO = 0, 40960, 49152, 0, 71680, 73728
    vWa, vWb = 116, 117
    vL16, vW12, vTb, vA, vB, vSt = 10, 11, 12, 15, 9, 8
    RD, MF = 16, 24
    KF, SR = 160, 64
    def common(role):
        a(f'''s_lshr_b32 {sRH}, {sI}, 4
        s_and_b32 {sS}, {sI}, 15
        s_lshr_b32 {sQT}, {sI}, 1
        s_and_b32 {sCH}, {sI}, 1
        s_xor_b32 s34, {sRH}, {role}
        s_lshl_b32 {sE8}, {sW}, 1
        s_add_u32 {sE8}, {sE8}, s34
        s_lshl_b32 s34, s34, 2
        s_add_u32 s34, s34, {sW}
        s_mul_i32 {sK}, s34, 24576
        s_mul_i32 s35, {sT}, 196608
        s_add_u32 {sK}, {sK}, s35
        s_add_u32 {sK}, {sK}, {WS_X1}
        s_lshl_b32 s34, s34, 9
        s_mul_i32 s35, {sT}, 24576
        s_add_u32 s34, s34, s35
        s_add_u32 {sSt1}, s34, {WS_ST}
        s_lshl_b32 s34, {sT}, 9
        s_add_u32 {sF1}, s34, {FC1}
        s_add_u32 {sF2}, s34, {FC2}
        s_lshl_b32 s34, {sT}, 4
        s_add_u32 s34, s34, {sQT}
        s_mul_i32 {sQ}, s34, 13312
        s_add_u32 {sQ}, {sQ}, {WS_Q}
        v_lshrrev_b32 v2, 4, v1
        v_and_b32 v3, 15, v1
        v_lshrrev_b32 v4, 5, v1
        v_bfe_u32 v5, v1, 4, 1
        v_and_b32 v6, 31, v1
        v_lshlrev_b32 v{vSt}, 4, v6
        v_mul_u32_u24 v7, 12288, v4
        v_add_u32 v{vSt}, v{vSt}, v7
        v_cmp_eq_u32 vcc, 3, v2
        v_lshlrev_b32 v7, 4, v3
        v_cndmask_b32 v{vW12}, v{vL16}, v7, vcc
        s_add_u32 s34, {sM1K}, {LT + role*4096}
        v_lshl_add_u32 v{vTb}, v6, 2, s34
        v_lshl_add_u32 v{vTb+1}, v3, 2, s34
        v_lshl_add_u32 v{vTb+2}, v2, 4, s34''')
    def stats_load():
        for i in range(3):
            if i: a(f's_add_u32 {sSt1}, {sSt1}, 4096')
            a(f'buffer_load_dwordx4 {vr(SR+4*i,4)}, v{vSt}, {SWS}, {sSt1} offen sc1', tag='st')
    def stats_math(need_rt):
        a(f's_mov_b32 s36, {fbits(1/384)}\ns_mov_b32 s37, {fbits(1e-5)}')
        a.wait(vm='st')
        a(f'''v_pk_add_f32 {vr(SR,2)}, {vr(SR,2)}, {vr(SR+2,2)}
        v_pk_add_f32 {vr(SR+4,2)}, {vr(SR+4,2)}, {vr(SR+6,2)}
        v_pk_add_f32 {vr(SR+8,2)}, {vr(SR+8,2)}, {vr(SR+10,2)}
        v_pk_add_f32 {vr(SR,2)}, {vr(SR,2)}, {vr(SR+4,2)}
        v_pk_add_f32 {vr(SR,2)}, {vr(SR,2)}, {vr(SR+8,2)}
        v_mov_b32 v{SR+2}, v{SR}
        v_mov_b32 v{SR+3}, v{SR+1}
        v_permlane32_swap_b32 v{SR}, v{SR+2}
        v_permlane32_swap_b32 v{SR+1}, v{SR+3}
        v_pk_add_f32 {vr(SR,2)}, {vr(SR,2)}, {vr(SR+2,2)}
        v_mul_f32 v{SR}, s36, v{SR}
        v_mul_f32 v{SR+2}, v{SR}, v{SR}
        v_fma_f32 v{SR+1}, v{SR+1}, s36, -v{SR+2}
        v_max_f32 v{SR+1}, 0, v{SR+1}
        v_add_f32 v{SR+1}, s37, v{SR+1}
        v_rsq_f32 v{SR+1}, v{SR+1}
        v_cvt_pk_bf16_f32 v{SR}, -v{SR}, -v{SR}
        v_cmp_eq_u32 vcc, 3, v2
        ds_write_b32 v{vTb}, v{SR}
        ds_write_b32 v{vTb}, v{SR+1} offset:128''')
        a(f'ds_read2_b32 {vr(SR+4,2)}, v{vTb+1} offset0:0 offset1:16', tag='t')
        if need_rt: a(f'ds_read2_b32 {vr(RT,2)}, v{vTb+1} offset0:32 offset1:48', tag='t')
        for t in range(2): a(f'ds_read_b128 {vr(RD+4*t,4)}, v{vTb+2} offset:{128+64*t}', tag='t')
        a.wait(lg='t')
        for t in range(2):
            a(f'v_cndmask_b32 v{MF+4*t}, v{SR+4+t}, 0, vcc')
            for d in range(1, 4): a(f'v_mov_b32 v{MF+4*t+d}, v{MF+4*t}')
    def kld(t, ks):
        off = t*12288 + ks*1024
        a(f's_add_u32 {sT0}, {sK}, {off & ~4095}\nbuffer_load_dwordx4 {vr(KF+(t*12+ks)*4,4)}, v{vL16}, {SWS}, {sT0} offen offset:{off & 4095} sc1', tag=f'k{t}_{ks}')
    QF, SA, VF, RT = 32, 56, 64, 6
    vP, vML, vMLr = 13, 14, 12
    M_, T_ = 4, 5
    def attn_addr(role):
        a(f'''s_lshl_b32 s34, {sE8}, 10
        s_add_u32 s34, s34, {LP}
        v_add_u32 v{vP}, s34, v{vL16}
        s_lshl_b32 s34, {sE8}, 2
        s_add_u32 s34, s34, {LML}
        v_lshl_add_u32 v{vML}, v3, 5, s34
        v_lshlrev_b32 v{vMLr}, 5, v3
        v_add_u32 v{vMLr}, {LML}, v{vMLr}''')
    def scores(fill):
        def qrd(ks): a(f'ds_read_b128 {vr(QF+4*(ks%6),4)}, v{vL16 if ks < 12 else vW12} offset:{LQ + ks*1024}', tag=f'q{ks}')
        for ks in range(5): qrd(ks)
        for ks in range(13):
            a.wait(lg=f'q{ks}')
            for t in range(2):
                kf = vr(KF+(t*12+ks)*4, 4) if ks < 12 else vr(MF+4*t, 4)
                d = vr(SA+4*t, 4)
                a(f'v_mfma_f32_16x16x32_bf16 {d}, {kf}, {vr(QF+4*(ks%6),4)}, {"0" if ks == 0 else d}')
            if ks + 5 < 13: qrd(ks + 5)
            if ks % 2 == 1 or opt('vfast', 0): fill()
        for i in range(8): a(f'v_mul_f32 v{SA+i}, v{SA+i}, v{RD+i}')
        a(f'v_max3_f32 v{M_}, v{SA}, v{SA+1}, v{SA+2}\nv_max3_f32 v{T_}, v{SA+3}, v{SA+4}, v{SA+5}\nv_max3_f32 v{M_}, v{M_}, v{SA+6}, v{SA+7}\nv_max_f32 v{M_}, v{M_}, v{T_}')
        for sw in ('v_permlane16_swap_b32', 'v_permlane32_swap_b32'):
            a(f'v_mov_b32 v{T_}, v{M_}'); fill(); a(f'{sw} v{M_}, v{T_}\nv_max_f32 v{M_}, v{M_}, v{T_}')
        a(f's_mov_b64 exec, 0xffff\nds_write_b32 v{vML}, v{M_}\ns_mov_b64 exec, -1')
        fill()
        a('s_waitcnt lgkmcnt(0)'); a.lg = []
        a('s_barrier')
        a(f'ds_read_b128 {vr(QF,4)}, v{vMLr}\nds_read_b128 {vr(QF+4,4)}, v{vMLr} offset:16', tag='mx')
        fill(); fill()
        a.wait(lg='mx')
        a(f'v_max3_f32 v{M_}, v{QF}, v{QF+1}, v{QF+2}\nv_max3_f32 v{T_}, v{QF+3}, v{QF+4}, v{QF+5}\nv_max3_f32 v{M_}, v{M_}, v{QF+6}, v{QF+7}\nv_max_f32 v{M_}, v{M_}, v{T_}')
        for i in range(8): a(f'v_sub_f32 v{SA+i}, v{SA+i}, v{M_}')
        for i in range(8): a(f'v_exp_f32 v{SA+i}, v{SA+i}')
        for i in range(4): a(f'v_cvt_pk_bf16_f32 v{QF+i}, v{SA+2*i}, v{SA+2*i+1}')
        a(f'ds_write_b128 v{vP}, {vr(QF,4)}')
        for w_ in (4, 2, 1):
            for i in range(w_): a(f'v_add_f32 v{SA+i}, v{SA+i}, v{SA+i+w_}')
        for sw in ('v_permlane16_swap_b32', 'v_permlane32_swap_b32'):
            a(f'v_mov_b32 v{T_}, v{SA}'); fill(); a(f'{sw} v{SA}, v{T_}\nv_add_f32 v{SA}, v{SA}, v{T_}')
        a(f's_mov_b64 exec, 0xffff\nds_write_b32 v{vML}, v{SA} offset:512\ns_mov_b64 exec, -1')
        a('s_waitcnt lgkmcnt(0)'); a.lg = []
        a('s_barrier')
    a.label('P2_c'); a.vm = []; a.lg = []
    common(0)
    WF, ACC, PK = 32, 76, 100
    a(f'''v_lshlrev_b32 v7, 4, v3
    v_lshl_add_u32 v{vA}, v4, 8, v7
    v_lshl_add_u32 v{vA}, v5, 3, v{vA}
    v_mul_u32_u24 v{vB}, 13312, v5
    v_add_u32 v{vB}, v{vB}, v7
    s_lshr_b32 s34, {sS}, 2
    s_lshl_b32 s34, s34, 8
    v_mov_b32 v6, s34
    v_cmp_eq_u32 vcc, 1, v4
    v_mov_b32 v7, 512
    v_cndmask_b32 v6, v6, v7, vcc
    v_add_u32 v{vB}, v{vB}, v6
    s_lshl_b32 {sOwn}, {sI}, 4
    s_lshl_b32 s34, {sW}, 2
    s_add_u32 {sOwn}, {sOwn}, s34
    s_mul_i32 {sVP}, {sT}, 196608
    s_mul_i32 s35, {sQT}, 12288
    s_add_u32 {sRs}, {sVP}, s35
    s_mul_i32 s34, {sCH}, 6144
    s_add_u32 {sRs}, {sRs}, s34
    s_mul_i32 s34, {sW}, 1536
    s_add_u32 {sRs}, {sRs}, s34
    s_add_u32 {sRs}, {sRs}, {WS_X1}
    s_add_u32 {sOut}, {sVP}, s35
    s_mul_i32 s35, {sCH}, 384
    s_add_u32 {sOut}, {sOut}, s35
    s_mul_i32 s35, {sW}, 96
    s_add_u32 {sOut}, {sOut}, s35
    s_mul_i32 s34, {sE8}, 24576
    s_add_u32 s34, s34, {sVP}
    s_mul_i32 s35, {sS}, 3072
    s_add_u32 s34, s34, s35
    s_add_u32 s67, s34, {WS_VP - 8*3072}
    s_mul_i32 s35, {sCH}, 12288
    s_add_u32 {sVP}, {sVP}, s35
    s_mul_i32 s35, {sW}, 3072
    s_add_u32 {sVP}, {sVP}, s35
    s_add_u32 {sVP}, {sVP}, {WS_VP}
    s_lshl_b32 s34, {sT}, 4
    s_lshl_b32 s35, {sRH}, 3
    s_add_u32 s34, s34, s35
    s_lshl_b32 s35, {sW}, 1
    s_add_u32 s34, s34, s35
    s_mul_i32 s34, s34, 13312
    s_add_u32 s34, s34, {WS_Q}
    s_mul_i32 s35, {sS}, 1536
    s_add_u32 s68, s34, s35
    s_and_b32 s35, {sS}, 3
    s_lshl_b32 s35, s35, 2
    s_add_u32 s34, s34, s35
    s_add_u32 {sSt2}, s34, 12288''')
    a(f'v_add_u32 v{vWa}, {LW34}, v{vL16}\nv_add_u32 v{vWb}, {LW34}, v{vW12}')
    a('s_barrier')
    stamp(a, 'gsync')
    stats_load()
    AHEAD = opt('ahead', 5)
    for ks in range(AHEAD): kld(0, ks); kld(1, ks)
    def wrd(ks, u):
        a(f'ds_read_b128 {vr(WF + (ks%2)*12 + 4*u,4)}, v{vWa if ks < 12 else vWb} offset:{(ks*3+u)*1024}', tag=f'f{ks}_{u}')
    L = a.newlabel('be')
    a(f's_or_b32 s34, {sW}, s2\ns_cmp_lg_u32 s34, 0\ns_cbranch_scc1 {L}')
    a.cond = True; a(f's_mov_b32 s34, {WE}'); flag(a, '0', 's34', sTag, 6, 'sc0 sc1'); a.vm.pop(); a.cond = False
    a.label(L)
    stats_math(True)
    a(f'v_mul_f32 v{RT}, {fbits(SCALE2)}, v{RT}\nv_mul_f32 v{RT+1}, {fbits(SCALE2)}, v{RT+1}')
    stamp(a, 'mm2')
    a(f's_cmp_ge_u32 {sS}, 8\ns_cbranch_scc1 P2_v')
    for var in range(2):
        if var == 0: vmsave, lgsave = list(a.vm), list(a.lg)
        else: a.label('P2_v'); a.vm, a.lg = list(vmsave), list(lgsave)
        for u in range(3): wrd(0, u)
        for ks in range(13):
            if ks + AHEAD < 12: kld(0, ks + AHEAD); kld(1, ks + AHEAD)
            if ks + AHEAD == 12: a('s_barrier')
            if ks < 12: a.wait(vm=f'k1_{ks}')
            for u in range(3):
                a.wait(lg=f'f{ks}_{u}')
                wf = vr(WF + (ks%2)*12 + 4*u, 4)
                for t in range(2):
                    xf = vr(KF+(t*12+ks)*4, 4) if ks < 12 else vr(MF+4*t, 4)
                    d = vr(ACC + (t*3+u)*4, 4)
                    A, B = (wf, xf) if var == 0 else (xf, wf)
                    a(f'v_mfma_f32_16x16x32_bf16 {d}, {A}, {B}, {"0" if ks == 0 else d}')
                if ks < 12: wrd(ks + 1, u)
        stamp(a, 'mm2end')
        if var == 0:
            AQ = 112
            a(f'v_mov_b32 v{AQ}, 0\nv_mov_b32 v{AQ+1}, 0\ns_mov_b32 s36, 0x3f803f80\ns_mov_b32 {sSt1}, s68')
            for t in range(2):
                for u in range(3):
                    b = ACC + (t*3+u)*4
                    for d in range(2): a(f'v_pk_mul_f32 {vr(b+2*d,2)}, {vr(b+2*d,2)}, {vr(RT,2)} op_sel:[0,{t}] op_sel_hi:[1,{t}]')
                    for d in range(2): a(f'v_cvt_pk_bf16_f32 v{PK+(t*3+u)*2+d}, v{b+2*d}, v{b+2*d+1}')
            def pub0(s1, s2, fl, first=False):
                for t in range(2):
                    if t: a(f's_add_u32 {sT1}, {s1}, 13312')
                    for u in range(3):
                        a(f'buffer_store_dwordx2 {vr(PK+(t*3+u)*2,2)}, v{vA}, {SWS}, {sT1 if t else s1} offen offset:{u*512} {fl}')
                if first:
                    for i in range(6):
                        for t in range(2): a(f'v_dot2c_f32_bf16 v{AQ+t}, s36, v{PK+t*6+i}')
                    for sw in ('v_permlane16_swap_b32', 'v_permlane32_swap_b32'):
                        a(f'v_mov_b32 v{AQ+2}, v{AQ}\nv_mov_b32 v{AQ+3}, v{AQ+1}\n{sw} v{AQ}, v{AQ+2}\n{sw} v{AQ+1}, v{AQ+3}\nv_add_f32 v{AQ}, v{AQ}, v{AQ+2}\nv_add_f32 v{AQ+1}, v{AQ+1}, v{AQ+3}')
                    a(f'''v_cmp_eq_u32 vcc, 1, v5
                    v_cndmask_b32 v{AQ}, v{AQ}, v{AQ+1}, vcc
                    v_cvt_pk_bf16_f32 v{AQ+1}, v{AQ}, v{AQ}
                    v_lshlrev_b32 v{AQ+1}, 16, v{AQ+1}
                    v_sub_f32 v{AQ+1}, v{AQ}, v{AQ+1}
                    v_cvt_pk_bf16_f32 v{AQ}, v{AQ}, v{AQ+1}
                    s_mov_b32 exec_lo, 0
                    v_mov_b32 v{AQ}, 0
                    s_mov_b32 exec_lo, -1''')
                a(f'buffer_store_dword v{AQ}, v{vB}, {SWS}, {s2} offen {fl}')
            pub0(sSt1, sSt2, '', True)
            a('s_branch P2_j')
        else:
            a(f's_mov_b32 {sSt1}, s67')
            for u in range(3):
                for t in range(2):
                    b = ACC + (t*3+u)*4
                    for d in range(2): a(f'v_pk_mul_f32 {vr(b+2*d,2)}, {vr(b+2*d,2)}, {vr(RD+4*t+2*d,2)}')
                    for d in range(2): a(f'v_cvt_pk_bf16_f32 v{PK+u*4+t*2+d}, v{b+2*d}, v{b+2*d+1}')
            def pub1(s1, fl):
                for u in range(3): a(f'buffer_store_dwordx4 {vr(PK+4*u,4)}, v{vL16}, {SWS}, {s1} offen offset:{u*1024} {fl}')
            pub1(sSt1, '')
    a.label('P2_j')
    attn_addr(0)
    vOW, vOR, vOG = 116, 117, 119
    a.wait_all()
    flag(a, sOwn, sF1, sFast, 6, '')
    stamp(a, 'flag2')
    def repub():
        L1, L2 = a.newlabel('rp'), a.newlabel('rp')
        a(f's_add_u32 s36, {sSt1}, {SLOW}\ns_add_u32 s37, {sSt2}, {SLOW}\ns_cmp_ge_u32 {sS}, 8\ns_cbranch_scc1 {L1}')
        pub0('s36', 's37', 'sc0 sc1'); a(f's_branch {L2}')
        a.label(L1); pub1('s36', 'sc0 sc1'); a.label(L2)
    lsync(a, 32, True, sF1, sF2, sOwn, repub, 32)
    stamp(a, 'sync2')
    a(f's_add_u32 {sVP}, {sVP}, {sDelta}\ns_add_u32 {sQ}, {sQ}, {sDelta}\ns_add_u32 {sT1}, {sQ}, {sM1K}')
    for i in range(3):
        a(f's_add_u32 {sT0}, {sT1}, {i*4096}\ns_add_u32 m0, {sM1K}, {LQ + i*4096}\nbuffer_load_dwordx4 v{vL16}, {SWS}, {sT0} offen sc1 lds', tag='q')
    a(f's_add_u32 {sT0}, {sQ}, 12288\ns_mov_b32 m0, {LQ + 12288}\nbuffer_load_dwordx4 v{vL16}, {SWS}, {sT0} offen sc1 lds', tag='q')
    vq = []
    for k8 in range(8):
        for u in range(3):
            vq.append(((f's_add_u32 {sVP}, {sVP}, 24576\n' if k8 and u == 0 else '') + f'buffer_load_dwordx4 {vr(VF+(k8*3+u)*4,4)}, v{vL16}, {SWS}, {sVP} offen offset:{u*1024} sc1', f'vp{k8}'))
    def fill():
        if vq: x = vq.pop(0); a(x[0], tag=x[1])
    for _ in range(opt('nv0', 5)): fill()
    a.wait(vm='q')
    a('s_barrier')
    stamp(a, 'q_in')
    scores(fill)
    stamp(a, 'p_done')
    while vq: fill()
    PF, PA, RS, RF, ML = 160, 32, 192, 200, 212
    for k8 in range(8): a(f'ds_read_b128 {vr(PF+4*k8,4)}, v{vL16} offset:{LP + k8*1024}', tag=f'p{k8}')
    a(f'ds_read_b128 {vr(ML,4)}, v{vMLr} offset:512\nds_read_b128 {vr(ML+4,4)}, v{vMLr} offset:528', tag='ml')
    for u in range(3): a(f'buffer_load_dwordx2 {vr(RS+2*u,2)}, v{vA}, {SWS}, {sRs} offen offset:{u*512} sc1', tag='rs')
    vOW, vOR, vOG = 220, 221, 223
    fx = [f's_lshl_b32 s35, {sW}, 11', f's_add_u32 s35, s35, {LO}', f'v_mul_u32_u24 v{vOW}, 112, v3', f'v_lshl_add_u32 v{vOW}, v2, 3, v{vOW}', f'v_add_u32 v{vOW}, s35, v{vOW}']
    for h in range(2):
        fx += [f'v_add_u32 v6, {64*h}, v1', 'v_mul_u32_u24 v7, 43, v6', 'v_lshrrev_b32 v7, 8, v7', 'v_mul_u32_u24 v4, 6, v7', 'v_sub_u32 v4, v6, v4', 'v_lshlrev_b32 v4, 4, v4',
               'v_mul_u32_u24 v6, 112, v7', f'v_add3_u32 v{vOR+h}, v6, v4, s35', 'v_mul_u32_u24 v6, 768, v7', f'v_add_u32 v{vOG+h}, v6, v4']
    fx += [('l', 'ml')] + [f'v_add_f32 v{ML+i}, v{ML+i}, v{ML+4+i}' for i in range(4)] + [f'v_add_f32 v{ML}, v{ML}, v{ML+1}', f'v_add_f32 v{ML+2}, v{ML+2}, v{ML+3}', f'v_add_f32 v{ML}, v{ML}, v{ML+2}', f'v_rcp_f32 v{ML}, v{ML}', 's_mov_b32 s36, 0xffff0000']
    def fxd(n):
        while n > 0 and fx:
            x = fx.pop(0)
            if isinstance(x, tuple): a.wait(lg=x[1])
            else: a(x); n -= 1
    for k8 in range(8):
        a.wait(vm=f'vp{k8}', lg=f'p{k8}')
        for u in range(3):
            d = vr(PA + 4*u, 4)
            a(f'v_mfma_f32_16x16x32_bf16 {d}, {vr(VF+(k8*3+u)*4,4)}, {vr(PF+4*k8,4)}, {"0" if k8 == 0 else d}')
            fxd(2)
    fxd(1000)
    a.wait(vm='rs')
    for u in range(3):
        for d in range(2): a(f'v_lshlrev_b32 v{RF+4*u+2*d}, 16, v{RS+2*u+d}\nv_and_b32 v{RF+4*u+2*d+1}, s36, v{RS+2*u+d}')
    stamp(a, 'pv_done')
    OP = 48
    for u in range(3):
        for d in range(2): a(f'v_pk_fma_f32 {vr(RF+4*u+2*d,2)}, {vr(PA+4*u+2*d,2)}, {vr(ML,2)}, {vr(RF+4*u+2*d,2)} op_sel_hi:[1,0,1]')
        for d in range(2): a(f'v_cvt_pk_bf16_f32 v{OP+2*u+d}, v{RF+4*u+2*d}, v{RF+4*u+2*d+1}')
        a(f'ds_write_b64 v{vOW}, {vr(OP+2*u,2)} offset:{u*32}')
    a(f'ds_read_b128 {vr(56,4)}, v{vOR}', tag='o0')
    a(f's_mov_b32 exec_hi, 0\nds_read_b128 {vr(60,4)}, v{vOR+1}\ns_mov_b32 exec_hi, -1', tag='o1')
    a.wait(lg='o0')
    a(f'buffer_store_dwordx4 {vr(56,4)}, v{vOG}, {SOUT}, {sOut} offen')
    a.wait(lg='o1')
    a(f's_mov_b32 exec_hi, 0\nbuffer_store_dwordx4 {vr(60,4)}, v{vOG+1}, {SOUT}, {sOut} offen\ns_mov_b32 exec_hi, -1')
    if PROFILE: a.wait_all()
    stamp(a, 'end')
    stamp_flush(a)
    a('s_endpgm')
    a.label('P2_l'); a.vm = []; a.lg = []
    common(1)
    a(f'''v_lshlrev_b32 v7, 7, v1
    s_cmp_eq_u32 {sW}, 1
    s_cbranch_scc1 P2_lw
    s_add_u32 s67, {sW}, 2
    s_and_b32 s67, s67, 3
    s_lshl_b32 s67, s67, 13
    s_add_u32 s67, s67, {GX}''')
    gpoll(a, 64, 7, 's67', 33)
    stamp(a, 'Lxf')
    a.label('P2_lw')
    a.wait_all()
    stamp(a, 'Lw')
    a.label('P2_lg'); a.vm = []
    a('s_barrier')
    stats_load()
    stats_math(False)
    attn_addr(1)
    a('s_barrier')
    KA = opt('ka', 6)
    for ks in range(KA): kld(0, ks); kld(1, ks)
    a.wait_all(lg=False)
    for ks in range(KA, 12): kld(0, ks); kld(1, ks)
    stamp(a, 'Lkiss')
    a.wait_all()
    stamp(a, 'Lk')
    a('s_barrier')
    scores(lambda: None)
    stamp_flush(a)
```

```python
import sys, math, struct
sys.path.insert(0, 'gen')
from asm import Asm
def opt(name, default):
    for x in sys.argv:
        if x.startswith(f'--{name}='): return int(x.split('=')[1])
    return default
HP = [x[5:] for x in sys.argv if x.startswith('--hp=')]
PROFILE = '--prof' in sys.argv or bool(HP)
SKIP = []
for x in sys.argv:
    if x.startswith('--skip='): SKIP = x[7:].split(',')
WS_W2 = 0x000000
WS_S  = 0x180000
WS_X1 = 0x240000
WS_W  = 0x3E0000
WS_Q  = 0x480000
WS_VP = 0x620000
WS_ST = 0x080000
FS1, FS2 = 0x7A0000, 0x7A2000
FC1, FC2 = 0x7A4000, 0x7A5000
GW2, GW, GX, WE = 0x7A8000, 0x7AA000, 0x7AC000, 0x7B4000
WS_PROF = 0x7C0000
SLOW = 0x800000
WS_SIZE = 0x1000000
LIM_FAST = opt('lim', 24)
LIM_SLOW = 1 << 20
SCALE2 = 384 ** -0.5 * math.log2(math.e)
def fbits(x): return '0x%08x' % struct.unpack('<I', struct.pack('<f', x))[0]
def vr(b, n): return f'v[{b}:{b+n-1}]' if n > 1 else f'v{b}'
SX, SWQ, SWO, SWS, SOUT = 's[4:7]', 's[8:11]', 's[12:15]', 's[16:19]', 's[24:27]'
WT = 'sc0 sc1' if opt('wt', 1) == 2 else 'sc1'
def srd(a, base, ptr, size):
    a(f's_mov_b32 s{base}, s{ptr}\ns_mov_b32 s{base+1}, s{ptr+1}\ns_mov_b32 s{base+2}, {size}\ns_mov_b32 s{base+3}, 0x20000')
STAMP_REGS = [70, 72, 74, 76, 78, 80, 82, 84, 86, 88, 90, 92, 94, 96, 98, 100]
class St:
    names = {'C': [], 'L': []}
def stamp(a, name):
    if not PROFILE or name in SKIP: return
    lst = St.names['L' if name.startswith('L') else 'C']
    if name not in lst: lst.append(name)
    k = lst.index(name)
    a(f's_memrealtime s[{STAMP_REGS[k]}:{STAMP_REGS[k]+1}]')
def stamp_flush(a):
    if not PROFILE: return
    a('s_waitcnt lgkmcnt(0)')
    for k in range(16): a(f'v_mov_b32 v{100+k}, s{STAMP_REGS[k]}')
    a(f'''v_lshrrev_b32 v8, 6, v0
    s_lshl_b32 s34, s2, 3
    v_add_u32 v8, s34, v8
    v_lshlrev_b32 v8, 6, v8
    v_add_u32 v8, {WS_PROF}, v8''')
    for k in range(4): a(f'buffer_store_dwordx4 v[{100+4*k}:{103+4*k}], v8, {SWS}, 0 offen offset:{16*k}')

sXCD, sW, sI, sRole = 's40', 's41', 's42', 's43'
sTag, sFast, sDelta = 's44', 's45', 's46'
sM1K = 's47'
TAIL = []

def lanes(a, n):
    a(f's_mov_b32 exec_lo, {hex((1 << min(n, 32)) - 1)}\ns_mov_b32 exec_hi, {hex((1 << max(n-32, 0)) - 1)}')
def gpoll(a, n, vA, sBase, vT):
    Lf, Lr, Ld = a.newlabel('gp'), a.newlabel('gr'), a.newlabel('gd')
    lanes(a, n)
    a(f's_mov_b32 s35, {LIM_SLOW}')
    a.label(Lf)
    a(f'buffer_load_dword v{vT}, v{vA}, {SWS}, {sBase} offen sc1')
    a.wait_all(lg=False)
    a(f'v_cmp_ne_u32 vcc, {sTag}, v{vT}\ns_cbranch_vccnz {Lr}')
    a.label(Ld)
    a('s_mov_b64 exec, -1')
    def tail():
        a.label(Lr); a(f's_sub_u32 s35, s35, 1\ns_cmp_lg_u32 s35, 0\ns_cbranch_scc1 {Lf}\ns_branch {Ld}')
    TAIL.append(tail)
def lsync(a, n, wide, sF1, sF2, sOwn, republish, vT):
    Lf, Lr, Ld, Ls = a.newlabel('lp'), a.newlabel('lr'), a.newlabel('ld'), a.newlabel('ls')
    vA, vD, vE = vT, vT + 2, vT + 6
    w = 4 if wide else 1
    ld = 'buffer_load_dwordx4' if wide else 'buffer_load_dword'
    def cmp(v, s):
        if not wide: a(f'v_cmp_ne_u32 vcc, {s}, v{v}'); return
        for k in range(4): a(f'v_xor_b32 v{v+k}, {s}, v{v+k}')
        a(f'v_or_b32 v{v}, v{v}, v{v+1}\nv_or3_b32 v{v}, v{v}, v{v+2}, v{v+3}\nv_cmp_ne_u32 vcc, 0, v{v}')
    lanes(a, n)
    a(f'v_lshlrev_b32 v{vA}, {4 if wide else 2}, v1\ns_mov_b32 {sDelta}, 0\ns_mov_b32 s35, {LIM_FAST}')
    a.label(Lf)
    a(f'{ld} {vr(vD, w)}, v{vA}, {SWS}, {sF1} offen sc1')
    a.wait_all(lg=False)
    cmp(vD, sFast)
    a(f's_cbranch_vccnz {Lr}')
    a.label(Ld)
    a('s_mov_b64 exec, -1')
    def tail():
        a.label(Lr)
        a(f's_sub_u32 s35, s35, 1\ns_cmp_lg_u32 s35, 0\ns_cbranch_scc1 {Lf}')
        if republish:
            a('s_mov_b64 exec, -1')
            republish()
            a.wait_all(lg=False)
            a(f'''s_mov_b64 exec, 1
            v_mov_b32 v{vD}, {sOwn}
            v_mov_b32 v{vD+1}, {sTag}
            buffer_store_dword v{vD+1}, v{vD}, {SWS}, {sF2} offen sc0 sc1''')
            lanes(a, n)
        a(f's_mov_b32 s35, {LIM_SLOW}')
        a.label(Ls)
        a(f'{ld} {vr(vD, w)}, v{vA}, {SWS}, {sF1} offen sc1\n{ld} {vr(vE, w)}, v{vA}, {SWS}, {sF2} offen sc0 sc1')
        a.wait_all(lg=False)
        cmp(vD, sFast)
        a(f's_cbranch_vccz {Ld}')
        cmp(vE, sTag)
        a(f's_mov_b32 {sDelta}, {SLOW}\ns_cbranch_vccz {Ld}\ns_mov_b32 {sDelta}, 0\ns_sub_u32 s35, s35, 1\ns_cmp_lg_u32 s35, 0\ns_cbranch_scc1 {Ls}\ns_branch {Ld}')
    TAIL.append(tail)
def flag(a, sOff, sBase, sVal, vT, fl):
    a(f'''s_mov_b64 exec, 1
    v_mov_b32 v{vT}, {sOff}
    v_mov_b32 v{vT+1}, {sVal}
    buffer_store_dword v{vT+1}, v{vT}, {SWS}, {sBase} offen {fl}
    s_mov_b64 exec, -1''')
def flag_w0(a, sOff, sBase, vT):
    L = a.newlabel('f0')
    a(f's_cmp_lg_u32 {sW}, 0\ns_cbranch_scc1 {L}')
    a.cond = True; flag(a, sOff, sBase, sTag, vT, 'sc0 sc1'); a.vm.pop(); a.cond = False
    a.label(L)
def tag_ready(a):
    a(f'''s_mul_i32 {sTag}, {sTag}, 0x9e3779b1
    s_add_u32 {sTag}, {sTag}, 0x7f4a7c15
    s_add_u32 {sFast}, {sFast}, {sTag}''')

LW34 = 102400
def wfetch(a):
    a(f'''v_lshlrev_b32 v7, 7, v1
    s_mov_b32 s67, {GW}
    s_and_b32 s68, {sI}, 15
    s_mul_i32 s68, s68, 39936
    s_add_u32 s68, s68, {WS_W}
    s_lshr_b32 s69, {sI}, 1
    s_lshl_b32 s34, {sXCD}, 4
    s_add_u32 s69, s69, s34
    s_mul_i32 s69, s69, 13312
    s_add_u32 s69, s69, {WS_Q + 12288}''')
    gpoll(a, 64, 7, 's67', 33)
    stamp(a, 'Lwf')
    for i in range(39):
        if i % 4 == 0: a(f's_mov_b32 m0, {LW34 + i*1024}' + ('\ns_add_u32 s68, s68, 4096' if i else ''))
        a(f'buffer_load_dwordx4 v10, {SWS}, s68 offen offset:{(i&3)*1024} sc1 lds')
    a(f'buffer_load_dwordx4 v[32:35], v10, {SWS}, s69 offen')

def build():
    a = Asm()
    def emit(x):
        if isinstance(x, tuple): a(x[0], tag=x[1])
        else: a(x)
    a(f'''s_cmp_ge_u32 s2, 256
    s_cbranch_scc1 K_end
    s_load_dwordx4 s[20:23], s[0:1], 0
    s_load_dwordx4 s[28:31], s[0:1], 16
    s_load_dwordx4 s[36:39], s[0:1], 32
    s_load_dwordx2 s[32:33], s[0:1], 56
    v_and_b32 v1, 63, v0
    v_lshrrev_b32 v2, 6, v0
    s_and_b32 {sXCD}, s2, 7
    v_readfirstlane_b32 {sW}, v2
    s_lshr_b32 {sI}, s2, 3''')
    stamp(a, 'start')
    a('s_getpc_b64 s[48:49]')
    a.label('K_pc')
    a(f'''s_sub_u32 s48, s48, K_pc-{KNAME}
    s_subb_u32 s49, s49, 0
    s_lshl_b32 s34, {sI}, 3
    s_add_u32 s34, s34, {sW}
    s_and_b32 s34, s34, 31
    s_lshl_b32 s34, s34, 10
    v_lshl_add_u32 v9, v1, 4, s34
    global_load_dwordx4 v[252:255], v9, s[48:49]
    s_lshr_b32 {sRole}, {sW}, 2
    s_and_b32 {sW}, {sW}, 3
    s_lshl_b32 {sM1K}, {sW}, 10
    s_getreg_b32 {sFast}, hwreg(HW_REG_XCC_ID)
    s_and_b32 {sFast}, {sFast}, 15
    s_add_u32 {sFast}, {sFast}, 1
    v_lshrrev_b32 v2, 3, v1
    v_and_b32 v3, 7, v1
    v_lshlrev_b32 v10, 4, v1
    s_cmp_lt_u32 {sI}, 8
    s_cbranch_scc1 K_pre''')
    T8, G8, vL16 = 2, 3, 10
    sG, sJ, sP, sHF, sX, sM = 's50', 's51', 's52', 's53', 's54', 's55'
    sR = ['s56', 's57', 's58', 's59', 's60', 's61']
    ROT = opt('rot', 4)
    a(f'''s_sub_u32 {sJ}, {sI}, 8
    s_mul_i32 s34, {sJ}, 43
    s_lshr_b32 s34, s34, 8
    s_mul_i32 s35, s34, 6
    s_sub_u32 {sJ}, {sJ}, s35
    s_lshl_b32 {sG}, {sXCD}, 2
    s_add_u32 {sG}, {sG}, s34
    s_lshr_b32 {sP}, {sW}, 1
    s_and_b32 {sHF}, {sW}, 1
    s_lshl_b32 {sM}, {sW}, 11''')
    if ROT: a(f's_mul_i32 s3, {sXCD}, 3\ns_lshr_b32 s3, s3, 2')
    a(f's_cmp_lg_u32 {sRole}, 0\ns_cbranch_scc1 A_ld')
    XS = lambda c: c*8192
    WQ0 = 49152
    W2L = 49152
    vXF, vAW, vSst, vX1, vST, vRes, vBP, vBS, vW2, vW2b = 12, 16, 18, 19, 20, 21, 22, 23, 24, 25
    XF, WF, ACC, CS, MA, SEL, CA, CB = 160, 32, 64, 96, 104, 108, 112, 120
    sSst, sSld, sX1, sST, sFS1, sFS2, sOwn, sGX = 's56', 's57', 's58', 's59', 's60', 's61', 's62', 's63'
    a(f'''v_and_b32 v4, 31, v1
    v_lshrrev_b32 v5, 5, v1
    v_bfe_u32 v6, v1, 1, 3
    v_xor_b32 v6, v6, v5
    v_lshlrev_b32 v4, 7, v4
    v_lshl_add_u32 v4, v6, 4, v4
    s_lshl_b32 s35, {sP}, 12
    v_add_u32 v{vXF}, s35, v4
    v_xor_b32 v{vXF+1}, 32, v{vXF}
    v_xor_b32 v{vXF+2}, 64, v{vXF}
    v_xor_b32 v{vXF+3}, 96, v{vXF}
    v_bfe_u32 v6, v1, 2, 2
    v_lshl_add_u32 v4, v5, 3, v6
    v_lshlrev_b32 v4, 7, v4
    v_lshrrev_b32 v7, 1, v6
    v_xor_b32 v7, {sHF}, v7
    v_lshl_add_u32 v4, v7, 6, v4
    v_bfe_u32 v7, v1, 4, 1
    v_lshl_add_u32 v4, v7, 5, v4
    v_and_b32 v8, 1, v1
    v_lshl_add_u32 v4, v8, 4, v4
    v_bfe_u32 v8, v1, 1, 1
    v_lshl_add_u32 v4, v8, 3, v4
    v_add_u32 v{vAW}, {WQ0}, v4
    v_add_u32 v{vAW+1}, {WQ0 + 65536}, v4
    v_bfe_u32 v8, v1, 2, 1
    v_cmp_eq_u32 vcc, v8, v7
    v_mov_b32 v7, 0x3f803f80
    s_mov_b32 s34, {WE}
    s_waitcnt lgkmcnt(0)
    s_load_dword {sTag}, s[32:33], s34''')
    for k in range(4): a(f'v_cndmask_b32 v{SEL+k}, 0, v7, vcc')
    srd(a, 16, 32, WS_SIZE); srd(a, 24, 38, 1572864)
    a(f'''v_lshlrev_b32 v{vSst}, 9, v5
    v_lshl_add_u32 v{vSst}, v{G8}, 6, v{vSst}
    v_bfe_u32 v6, v1, 3, 2
    v_lshl_add_u32 v{vSst}, v6, 4, v{vSst}
    s_mul_i32 s34, {sG}, 24576
    s_lshl_b32 s35, {sP}, 10
    s_add_u32 s34, s34, s35
    s_add_u32 {sSld}, s34, {WS_S}
    s_lshl_b32 s35, {sJ}, 1
    s_add_u32 s35, s35, {sHF}
    s_lshl_b32 {sOwn}, s35, 2
    s_lshl_b32 s3{6}, s35, 11
    s_add_u32 {sSst}, {sSld}, s36
    s_lshl_b32 s34, {sG}, 1
    s_add_u32 s34, s34, {sP}
    s_lshl_b32 s34, s34, 7
    s_add_u32 {sFS1}, s34, {FS1}
    s_add_u32 {sFS2}, s34, {FS2}''')
    a(f'''v_bfe_u32 v6, v1, 2, 3
    v_and_b32 v7, 3, v1
    s_mov_b32 s34, 196608
    v_mul_lo_u32 v{vX1}, v6, s34
    v_lshl_add_u32 v{vX1}, v5, 8, v{vX1}
    v_lshl_add_u32 v{vX1}, v7, 4, v{vX1}
    v_mul_u32_u24 v{vST}, 24576, v6
    v_lshl_add_u32 v{vST}, v7, 4, v{vST}
    v_lshl_add_u32 v8, v7, 3, v6
    v_lshlrev_b32 v{vBP}, 2, v8
    v_lshlrev_b32 v{vBS}, 5, v7
    v_lshl_add_u32 v{vBS}, v5, 4, v{vBS}
    v_bfe_u32 v4, v8, 1, 3
    s_lshl_b32 s34, {sHF}, 2
    v_xor_b32 v4, s34, v4
    v_xor_b32 v4, v4, v5
    v_lshlrev_b32 v4, 4, v4
    v_lshl_add_u32 v4, v8, 7, v4''')
    if ROT: a(f's_add_u32 s34, {sJ}, 6\ns_sub_u32 s34, s34, s3\ns_cmp_ge_u32 s34, 6\ns_cselect_b32 s36, 6, 0\ns_sub_u32 s34, s34, s36\ns_lshl_b32 s34, s34, 13')
    else: a(f's_lshl_b32 s34, {sJ}, 13')
    a(f'''s_lshl_b32 s36, {sP}, 12
    s_add_u32 s34, s34, s36
    v_add_u32 v{vRes}, s34, v4
    s_lshl_b32 s34, {sHF}, 10
    s_add_u32 s34, s34, {W2L}
    v_add_u32 v{vW2}, s34, v{vL16}
    v_and_b32 v4, 31, v1
    v_lshl_add_u32 v{vW2b}, v4, 4, s34
    s_lshr_b32 s34, {sG}, 1
    s_mul_i32 s34, s34, 12288
    s_lshl_b32 s36, s35, 10
    s_add_u32 s34, s34, s36
    s_and_b32 s36, {sG}, 1
    s_lshl_b32 s36, s36, 7
    s_add_u32 s34, s34, s36
    s_lshl_b32 s36, {sP}, 6
    s_add_u32 s34, s34, s36
    s_add_u32 {sX1}, s34, {WS_X1}
    s_lshl_b32 s34, {sJ}, 12
    s_add_u32 s34, s34, s36
    s_lshl_b32 s36, {sG}, 7
    s_add_u32 s34, s34, s36
    s_lshl_b32 s36, {sHF}, 3
    s_add_u32 s34, s34, s36
    s_add_u32 {sST}, s34, {WS_ST}
    s_mul_i32 s34, {sG}, 6
    s_add_u32 s34, s34, {sJ}
    s_lshl_b32 {sGX}, s34, 7
    s_mov_b32 s38, {fbits(-1/384)}
    s_mov_b32 s36, 0xffff0000
    s_mov_b32 s64, -1
    s_mov_b32 s65, 0
    s_mov_b32 s66, 0xff00ff00
    s_mov_b32 s67, 0xff00ff00
    s_mov_b32 s68, 0xffff0000
    s_mov_b32 s69, 0xffff0000''')
    for r in range(CA, CA + 8):
        if (r - CA) % 4: a(f'v_mov_b32 v{r}, 0')
    a('s_waitcnt lgkmcnt(0)')
    tag_ready(a)
    a('s_barrier')
    stamp(a, 'mm0')
    def rd(ks):
        c, k4 = ks >> 2, ks & 3
        a(f'ds_read_b128 {vr(XF+4*ks,4)}, v{vXF+k4} offset:{XS(c)}', tag=f'f{ks}')
        return [(c, k4, P) for P in range(2)]
    def trd(ks, P):
        c, k4 = ks >> 2, ks & 3
        off = c*16384 + P*8192 + k4*2048
        base = vAW + (off >> 16); off &= 0xffff
        d = WF + (ks % 3)*8 + P*4
        a(f'ds_read_b64_tr_b16 {vr(d,2)}, v{base} offset:{off}\nds_read_b64_tr_b16 {vr(d+2,2)}, v{base} offset:{off+512}', tag=f'f{ks}')
    def pre(ks, part):
        if part == 0: rd(ks); trd(ks, 0)
        else: trd(ks, 1)
    for ks in range(2): pre(ks, 0); pre(ks, 1)
    def m16(d, b, first): a(f'v_mfma_f32_16x16x32_bf16 {vr(d,4)}, {vr(SEL,4)}, {b}, {"0" if first else vr(d,4)}')
    for ks in range(24):
        bar = (ks & 3) == 3 and ks < 23
        if bar:
            a('s_barrier')
            if ks in (7, 15, 19): stamp(a, f'c{(ks+1)>>2}')
            pre(ks + 1, 0); pre(ks + 1, 1)
        a.wait(lg=f'f{ks}')
        wf = lambda P: vr(WF + (ks % 3)*8 + P*4, 4)
        main = lambda P: a(f'v_mfma_f32_32x32x16_bf16 {vr(ACC+16*P,16)}, {wf(P)}, {vr(XF+4*ks,4)}, {"0" if ks == 0 else vr(ACC+16*P,16)}')
        nx = ks + 2 if (ks & 3) != 2 and ks + 2 < 24 else None
        if ks < 23:
            for P in range(2):
                main(P)
                if nx: pre(nx, P)
                m16(CS + 4*P, wf(P), ks == 0)
            m16(MA, vr(XF+4*ks, 4), ks == 0)
        else:
            m16(MA, vr(XF+4*ks, 4), False)
            for P in range(2): m16(CS + 4*P, wf(P), False)
            main(0)
            main(1)
            a(f'''v_mul_f32 v{MA}, s38, v{MA}
            v_cvt_pk_bf16_f32 v{CA}, v{CS}, v{CS}
            v_cvt_pk_bf16_f32 v{CA+4}, v{CS+4}, v{CS+4}
            v_cvt_pk_bf16_f32 v{MA+1}, v{MA}, v{MA}
            v_and_b32 v{CA}, s36, v{CA}
            v_and_b32 v{CA+4}, s36, v{CA+4}
            v_cndmask_b32 v{CB}, 0, v{MA+1}, s[64:65]
            v_sub_f32 v{CA}, v{CS}, v{CA}
            v_sub_f32 v{CA+4}, v{CS+4}, v{CA+4}
            v_mov_b32 v{CB+1}, v{CB}
            v_cvt_pk_bf16_f32 v{CA}, v{CS}, v{CA}
            v_cvt_pk_bf16_f32 v{CA+4}, v{CS+4}, v{CA+4}
            v_mov_b32 v{CB+2}, v{CB}
            v_mov_b32 v{CB+3}, v{CB}''')
            for P in range(2): a(f'v_mfma_f32_32x32x16_bf16 {vr(ACC+16*P,16)}, {vr(CA+4*P,4)}, {vr(CB,4)}, {vr(ACC+16*P,16)}')
    stamp(a, 'mmend')
    PQ, PK, SC, SS, SQ, CM = 32, 40, 64, 96, 100, 124
    a(f'v_mov_b32 v{SQ}, 0\nv_mov_b32 v{SQ+1}, 0')
    for k in range(4): a(f'v_mov_b32 v{CM+k}, v{MA+1}')
    for P, d in ((0, PQ), (1, PK)):
        for i in range(8): a(f'v_cvt_pk_bf16_f32 v{d+i}, v{ACC+16*P+2*i}, v{ACC+16*P+2*i+1}')
    a(f'v_mfma_f32_32x32x16_bf16 {vr(SC,16)}, {vr(PK,4)}, {vr(PQ,4)}, 0')
    a(f'v_mfma_f32_32x32x16_bf16 {vr(SC,16)}, {vr(PK+4,4)}, {vr(PQ+4,4)}, {vr(SC,16)}')
    RAW = 48
    a(f'v_xor_b32 v4, 32, v{vRes}\nds_read_b128 {vr(RAW,4)}, v{vRes}\nds_read_b128 {vr(RAW+4,4)}, v4', tag='raw')
    for e in range(4): a(f'v_cndmask_b32 v{SC+e}, v{SC+e}, v{SC+4+e}, s[66:67]\nv_cndmask_b32 v{SC+8+e}, v{SC+8+e}, v{SC+12+e}, s[66:67]')
    for e in range(4): a(f'v_cndmask_b32 v{SS+e}, v{SC+e}, v{SC+8+e}, s[68:69]')
    a(f'buffer_store_dwordx4 {vr(SS,4)}, v{vSst}, {SWS}, {sSst} offen')
    stamp(a, 'stored')
    ND0 = opt('nd0', 72)
    for i in range(ND0): a(f'v_dot2c_f32_bf16 v{SQ+(i&1)}, v{XF+i}, v{XF+i}')
    a.wait_all(lg=False)
    flag(a, sOwn, sFS1, sFast, 4, '')
    stamp(a, 'flag')
    for i in range(ND0, 96): a(f'v_dot2c_f32_bf16 v{SQ+(i&1)}, v{XF+i}, v{XF+i}')
    RR, RES = 56, 80
    a(f'''s_mov_b32 s37, {fbits(1e-5)}
    v_mul_f32 v{SQ+2}, v{MA}, v{MA}
    v_add_u32 v5, 4, v{vBS}
    v_add_f32 v{SQ}, v{SQ}, v{SQ+1}
    v_mov_b32 v{SQ+1}, v{SQ}
    v_add_u32 v6, 8, v{vBS}
    v_add_u32 v7, 12, v{vBS}
    v_permlane32_swap_b32 v{SQ}, v{SQ+1}
    v_add_f32 v{SQ}, v{SQ}, v{SQ+1}
    v_fma_f32 v{SQ}, -v{SQ}, s38, -v{SQ+2}
    v_max_f32 v{SQ}, 0, v{SQ}
    v_add_f32 v{SQ}, s37, v{SQ}
    v_rsq_f32 v{SQ}, v{SQ}''')
    a(f'ds_bpermute_b32 v{RR+4}, v{vBP}, v{SQ}\nds_bpermute_b32 v{RR}, v{vBS}, v{SQ}', tag='bp')
    for e in range(1, 4): a(f'ds_bpermute_b32 v{RR+e}, v{4+e}, v{SQ}', tag='bp')
    a.wait(lg='raw')
    for d in range(8): a(f'v_lshlrev_b32 v{RES+2*d}, 16, v{RAW+d}\nv_and_b32 v{RES+2*d+1}, s36, v{RAW+d}')
    a.wait(lg='bp')
    a(f'v_mul_f32 v{RR+4}, {fbits(SCALE2)}, v{RR+4}')
    def repubA():
        a(f's_add_u32 s34, {sSst}, {SLOW}\nbuffer_store_dwordx4 {vr(SS,4)}, v{vSst}, {SWS}, s34 offen sc0 sc1')
    lsync(a, 12, False, sFS1, sFS2, sOwn, repubA, 32)
    stamp(a, 'synced')
    SP, Y, WR = 112, 64, 32
    SPR = [128, 132, 136, 140, 144, 148, 152, 156, 112, 116, 96, 100]
    a(f's_add_u32 {sSld}, {sSld}, {sDelta}')
    for i in range(12):
        if i and i % 2 == 0: a(f's_add_u32 {sSld}, {sSld}, 4096')
        a(f'buffer_load_dwordx4 {vr(SPR[i],4)}, v{vL16}, {SWS}, {sSld} offen offset:{(i&1)*2048} sc1', tag=f's{i}')
    a('s_barrier')
    stamp(a, 'w2in')
    def w2rd(ks): a(f'ds_read_b128 {vr(WR+4*(ks%6),4)}, v{vW2 if ks < 25 else vW2b} offset:{ks*2048}', tag=f'y{ks}')
    for ks in range(5): w2rd(ks)
    S0 = SPR[0]; T0 = SPR[1]
    sm = []
    for i in range(1, 12):
        sm.append(('w', f's{i}'))
        for d in range(4): sm.append(f'v_add_f32 v{S0+d}, v{S0+d}, v{SPR[i]+d}')
    for d in range(4): sm.append(f'v_mul_f32 v{S0+d}, v{S0+d}, v{RR+d}')
    sm += [f'v_max_f32 v{T0}, v{S0}, v{S0+1}', f'v_max3_f32 v{T0}, v{T0}, v{S0+2}, v{S0+3}', f'v_mov_b32 v{T0+1}, v{T0}', 's_mov_b32 s64, 0x11111111', 's_mov_b32 s65, 0x11111111',
           f'v_permlane32_swap_b32 v{T0}, v{T0+1}', f'v_max_f32 v{T0}, v{T0}, v{T0+1}', f'v_mul_f32 v{T0}, v{RR+4}, v{T0}']
    for d in range(4): sm.append(f'v_fma_f32 v{S0+d}, v{S0+d}, v{RR+4}, -v{T0}')
    for d in range(4): sm.append(f'v_exp_f32 v{S0+d}, v{S0+d}')
    sm += [f'v_add_f32 v{T0}, v{S0}, v{S0+1}', f'v_add_f32 v{T0+1}, v{S0+2}, v{S0+3}', f'v_add_f32 v{T0}, v{T0}, v{T0+1}', f'v_mov_b32 v{T0+1}, v{T0}']
    sm += [f'v_mul_f32 v{S0+d}, v{S0+d}, v{RR+d}' for d in range(2)] + [f'v_permlane32_swap_b32 v{T0}, v{T0+1}', f'v_add_f32 v{T0}, v{T0}, v{T0+1}', f'v_rcp_f32 v{T0}, v{T0}']
    sm += [f'v_mul_f32 v{S0+d}, v{S0+d}, v{RR+d}' for d in range(2, 4)]
    for d in range(4): sm.append(f'v_mul_f32 v{S0+d}, v{S0+d}, v{T0}')
    PB = 136
    sm += [f'v_cvt_pk_bf16_f32 v{T0}, v{S0}, v{S0+1}', f'v_cvt_pk_bf16_f32 v{T0+1}, v{S0+2}, v{S0+3}']
    for b in range(4):
        sm += [f'v_cndmask_b32 v{PB+2*b}, 0, v{T0}, s[64:65]', f'v_cndmask_b32 v{PB+2*b+1}, 0, v{T0+1}, s[64:65]']
        if b < 3: sm.append('s_lshl_b64 s[64:65], s[64:65], 1')
    S2 = 104
    sm += [f'v_mov_b32 v{S2}, 0', f'v_mov_b32 v{S2+1}, 0', 's_mov_b32 s36, 0x3f803f80']
    def drain(n):
        while n > 0 and sm:
            x = sm.pop(0)
            if isinstance(x, tuple): a.wait(vm=x[1])
            else: a(x); n -= 1
    for ks in range(26):
        a.wait(lg=f'y{ks}')
        xa = vr(XF+4*ks, 4) if ks < 24 else vr(CM if ks == 24 else CB, 4)
        a(f'v_mfma_f32_32x32x16_bf16 {vr(Y,16)}, {xa}, {vr(WR+4*(ks%6),4)}, {"0" if ks == 0 else vr(Y,16)}')
        if ks + 5 < 26: w2rd(ks + 5)
        if ks >= opt('sm0', 2): drain(4)
    drain(1000)
    stamp(a, 'ygemm')
    YP, XO = 144, 152
    for i in range(8): a(f'v_cvt_pk_bf16_f32 v{YP+i}, v{Y+2*i}, v{Y+2*i+1}')
    for k in range(2): a(f'v_mfma_f32_32x32x16_bf16 {vr(RES,16)}, {vr(YP+4*k,4)}, {vr(PB+4*k,4)}, {vr(RES,16)}')
    for i in range(8): a(f'v_cvt_pk_bf16_f32 v{XO+i}, v{RES+2*i}, v{RES+2*i+1}')
    a(f'buffer_store_dwordx4 {vr(XO,4)}, v{vX1}, {SWS}, {sX1} offen {WT}')
    a(f'buffer_store_dwordx4 {vr(XO+4,4)}, v{vX1}, {SWS}, {sX1} offen offset:512 {WT}')
    for i in range(8): a(f'v_dot2c_f32_bf16 v{S2}, s36, v{XO+i}\nv_dot2c_f32_bf16 v{S2+1}, v{XO+i}, v{XO+i}')
    a(f'''v_mov_b32 v{S2+2}, v{S2}
    v_mov_b32 v{S2+3}, v{S2+1}
    v_permlane32_swap_b32 v{S2}, v{S2+2}
    v_permlane32_swap_b32 v{S2+1}, v{S2+3}
    v_add_f32 v{S2}, v{S2}, v{S2+2}
    v_add_f32 v{S2+1}, v{S2+1}, v{S2+3}
    s_mov_b32 exec_hi, 0
    buffer_store_dwordx2 {vr(S2,2)}, v{vST}, {SWS}, {sST} offen {WT}
    s_mov_b32 exec_hi, -1
    s_mov_b32 s34, {GX}''')
    stamp(a, 'x1st')
    a.wait_all()
    a('s_barrier')
    flag_w0(a, sGX, 's34', 4)
    stamp(a, 'x1pub')
    a('s_branch P2_c')
    a.label('A_ld'); a.vm = []; a.lg = []
    vW, vXs, vP = 32, 36, 38
    sRx = ['s62', 's63', 's64', 's65', 's66', 's67']
    a(f'''s_mov_b32 s35, 196608
    v_mul_lo_u32 v{vXs}, v{T8}, s35
    v_lshrrev_b32 v4, 1, v{T8}
    v_xor_b32 v4, v4, v{G8}
    v_lshl_add_u32 v{vXs}, v4, 4, v{vXs}
    v_xor_b32 v{vXs+1}, 64, v{vXs}
    v_add_u32 v{vXs+1}, 768, v{vXs+1}
    s_lshl_b32 s34, {sG}, 3
    s_lshl_b32 s35, {sW}, 1
    s_add_u32 s34, s34, s35
    s_mul_i32 {sX}, s34, 768
    v_lshlrev_b32 v4, 1, v{T8}
    v_and_b32 v4, 4, v4
    v_xor_b32 v4, v4, v{G8}
    v_mul_u32_u24 v{vW}, 2304, v{T8}
    v_lshl_add_u32 v{vW}, v4, 4, v{vW}
    s_mul_i32 s68, {sW}, {16*2304}
    s_lshl_b32 s34, {sJ}, 7
    s_add_u32 s68, s68, s34''')
    for k in range(1, 4): a(f'v_add_u32 v{vW+k}, {(k>>1)*768 + (k&1)*18432}, v{vW}')
    for i in range(6):
        if ROT:
            a(f's_lshl_b32 s34, s3, 7\ns_add_u32 {sRx[i]}, s34, {sX}\ns_mul_i32 s34, s3, 147456\ns_add_u32 {sR[i]}, s34, s68')
            if i < 5: a('s_add_u32 s3, s3, 1\ns_cmp_ge_u32 s3, 6\ns_cselect_b32 s3, 0, s3')
        else: a(f's_add_u32 {sR[i]}, s68, {i*147456}\ns_add_u32 {sRx[i]}, {sX}, {i*128}')
    a(f's_mov_b32 s34, {WE}\ns_waitcnt lgkmcnt(0)\ns_load_dword {sTag}, s[32:33], s34')
    srd(a, 4, 20, 1572864); srd(a, 8, 22, 884736)
    def wdma(c):
        for th in range(2):
            a(f's_add_u32 m0, {sM}, {XS(c) + th*1024}\nbuffer_load_dwordx4 v{vXs+th}, {SX}, {sRx[c]} offen lds', tag=f'w{c}')
        for k in range(4):
            a(f's_add_u32 m0, {sM}, {WQ0 + c*16384 + (k>>1)*8192 + (k&1)*1024}\nbuffer_load_dwordx4 v{vW+k}, {SWQ}, {sR[c]} offen lds', tag=f'w{c}')
    NL = opt('nl', 3)
    for c in range(NL):
        wdma(c)
        if c == 0: srd(a, 16, 32, WS_SIZE); srd(a, 24, 38, 1572864)
    a(f'''v_mul_u32_u24 v{vP}, 768, v1
    s_lshl_b32 s34, {sJ}, 7
    s_add_u32 s68, s34, {GW2}
    s_mul_i32 s69, {sJ}, 53248
    s_add_u32 s69, s69, {WS_W2}
    s_waitcnt lgkmcnt(0)''')
    tag_ready(a)
    for c in range(6):
        a.wait(vm=f'w{c}')
        if c in (0, 3, 5): stamp(a, f'L{c}')
        a('s_barrier')
        if c + NL < 6: wdma(c + NL)
    a(f's_cmp_lg_u32 {sW}, 0\ns_cbranch_scc1 A_ld2')
    gpoll(a, 4, vP, 's68', 40)
    stamp(a, 'Lw2f')
    for gi in range(13):
        if gi == 12: a(f's_add_u32 s68, s69, 49152')
        elif gi == 0:
            if ROT: a(f's_mul_i32 s3, {sXCD}, 3\ns_lshr_b32 s3, s3, 2\ns_lshl_b32 s3, s3, 13\ns_add_u32 s68, s69, s3')
            else: a('s_mov_b32 s68, s69')
        else:
            if ROT and gi % 2 == 0: a('s_add_u32 s3, s3, 8192\ns_cmp_ge_u32 s3, 49152\ns_cselect_b32 s3, 0, s3\ns_add_u32 s68, s69, s3')
            else: a('s_add_u32 s68, s68, 4096')
        a(f's_mov_b32 m0, {W2L + gi*4096}')
        for k in range(4): a(f'buffer_load_dwordx4 v{vL16}, {SWS}, s68 offen offset:{k*1024} sc1 lds')
    a.wait_all()
    stamp(a, 'Lw2')
    a.label('A_ld2')
    a(f's_barrier\ns_cmp_lg_u32 {sW}, 1\ns_cbranch_scc1 A_ld3')
    wfetch(a)
    a.label('A_ld3')
    a('s_barrier\ns_branch P2_l')
    a.label('K_pre'); a.vm = []; a.lg = []
    sS8, sIt, sJt, sA, sB, sMm, sT0, sLA, sLB = 's50', 's51', 's52', 's53', 's54', 's55', 's56', 's57', 's58'
    a(f'''s_mov_b32 {sS8}, {sI}
    s_mov_b32 s34, {WE}
    s_and_b32 s59, {sXCD}, 1
    s_lshr_b32 s60, {sXCD}, 1
    s_cmp_lt_u32 {sS8}, 3
    s_cbranch_scc1 W_id0
    s_mul_i32 s35, s60, 9
    s_mul_i32 s61, s59, 5
    s_add_u32 s35, s35, s61
    s_add_u32 s35, s35, {sS8}
    s_sub_u32 s35, s35, 3
    s_mul_i32 s61, s35, 43
    s_lshr_b32 s61, s61, 8
    s_mul_i32 s62, s61, 6
    s_sub_u32 {sJt}, s35, s62
    s_cmp_ge_u32 s61, 3
    s_cselect_b32 {sMm}, 1, 0
    s_mul_i32 s62, {sMm}, 3
    s_sub_u32 {sIt}, s61, s62
    s_add_u32 s62, {sS8}, s59
    s_cmp_ge_u32 s62, 8
    s_cselect_b32 {sMm}, 3, {sMm}
    s_branch W_id1''')
    a.label('W_id0')
    a(f'''s_mov_b32 {sMm}, 2
    s_mov_b32 {sIt}, s60
    s_mul_i32 {sJt}, s59, 3
    s_add_u32 {sJt}, {sJt}, {sS8}''')
    a.label('W_id1')
    a(f'''s_waitcnt lgkmcnt(0)
    s_load_dword {sTag}, s[32:33], s34''')
    srd(a, 16, 32, WS_SIZE); srd(a, 24, 38, 1572864)
    a(f'''s_cmp_eq_u32 {sMm}, 3
    s_cbranch_scc1 W_done
    s_cmp_lg_u32 {sRole}, 0
    s_cbranch_scc1 W_ld''')
    BB = 98304
    FA, FB, AC = 32, 48, 128
    vAr, vBr = 14, 18
    a(f'''v_and_b32 v2, 31, v1
    v_lshrrev_b32 v3, 5, v1
    v_and_b32 v4, 19, v2
    v_bfe_u32 v5, v2, 2, 1
    v_lshl_add_u32 v4, v5, 3, v4
    v_bfe_u32 v5, v2, 3, 1
    v_lshl_add_u32 v4, v5, 2, v4
    v_lshrrev_b32 v5, 3, v4
    v_mul_u32_u24 v5, 6144, v5
    v_and_b32 v6, 7, v4
    v_lshl_add_u32 v5, v6, 7, v5
    v_bfe_u32 v6, v4, 1, 3
    v_xor_b32 v6, v6, v3
    v_lshl_add_u32 v11, v6, 4, v5
    v_bfe_u32 v6, v1, 2, 2
    v_lshl_add_u32 v4, v3, 3, v6
    v_lshlrev_b32 v4, 7, v4
    v_lshrrev_b32 v7, 1, v6
    v_lshl_add_u32 v4, v7, 6, v4
    v_bfe_u32 v7, v1, 4, 1
    v_lshl_add_u32 v12, v7, 5, v4
    s_mov_b32 s37, 0x3f803f80''')
    def a_addr(swave):
        a(f's_mul_i32 s34, {swave}, 24576\nv_add_u32 v{vAr}, s34, v11')
        for k in range(1, 4): a(f'v_xor_b32 v{vAr+k}, {32*k}, v{vAr}')
    def stages(nv, breads):
        for jj in range(6):
            a('s_barrier')
            for k4 in range(4):
                a(f'ds_read_b128 {vr(FA+4*k4,4)}, v{vAr+k4} offset:{jj*1024}', tag=f'r{k4}')
                for v in range(nv): breads(jj, k4, v, FB + (k4*2+v)*4)
            for k4 in range(4):
                a.wait(lg=f'r{k4}')
                for v in range(nv):
                    cin = '0' if (jj == 0 and k4 == 0) else vr(AC+16*v, 16)
                    a(f'v_mfma_f32_32x32x16_bf16 {vr(AC+16*v,16)}, {vr(FA+4*k4,4)}, {vr(FB+(k4*2+v)*4,4)}, {cin}')
    def btr(jj, k4, v, d):
        o = jj*8192 + k4*2048
        a(f'ds_read_b64_tr_b16 {vr(d,2)}, v{vBr+v} offset:{o}\nds_read_b64_tr_b16 {vr(d+2,2)}, v{vBr+v} offset:{o+512}', tag=f'r{k4}')
    def brow(jj, k4, v, d): a(f'ds_read_b128 {vr(d,4)}, v{vBr+k4} offset:{v*24576+jj*1024}', tag=f'r{k4}')
    def colsum(v, src, dst):
        a(f'v_mov_b32 v24, 0')
        for i in range(8): a(f'v_dot2c_f32_bf16 v24, s37, v{src+i}')
        a(f'''v_mov_b32 v26, v24
        v_permlane32_swap_b32 v24, v26
        v_add_f32 v26, v26, v24
        v_cvt_pk_bf16_f32 v27, v26, v26
        v_lshlrev_b32 v27, 16, v27
        v_sub_f32 v27, v26, v27
        v_cvt_pk_bf16_f32 v{dst}, v26, v27''')
    a_addr(sW)
    a(f's_cmp_lg_u32 {sMm}, 2\ns_cbranch_scc1 W_c0')
    a(f'''s_min_u32 s59, {sW}, 2''')
    a_addr('s59')
    a(f'''v_and_b32 v7, 1, v1
    v_lshl_add_u32 v4, v7, 4, v12
    v_bfe_u32 v7, v1, 1, 1
    v_lshl_add_u32 v4, v7, 3, v4
    v_add_u32 v{vBr}, {BB}, v4
    v_xor_b32 v{vBr+1}, 64, v{vBr}
    s_mul_i32 s34, {sIt}, 3
    s_add_u32 s34, s34, s59
    s_mul_i32 s35, {sJt}, 53248
    s_add_u32 s35, s35, {WS_W2}
    s_lshl_b32 s36, s34, 12
    s_add_u32 s61, s35, s36
    s_lshr_b32 s36, s34, 3
    s_lshl_b32 s36, s36, 11
    s_add_u32 s35, s35, s36
    s_bfe_u32 s36, s34, 0x10002
    s_lshl_b32 s36, s36, 9
    s_add_u32 s35, s35, s36
    s_and_b32 s36, s34, 3
    s_lshl_b32 s36, s36, 2
    s_add_u32 s35, s35, s36
    s_add_u32 s62, s35, {24*2048}
    s_mul_i32 s63, {sIt}, 6
    s_add_u32 s63, s63, {sJt}
    s_lshl_b32 s63, s63, 7
    s_mov_b32 s64, {GW2}''')
    stages(2, btr)
    stamp(a, 'pst')
    a(f's_cmp_eq_u32 {sW}, 3\ns_cbranch_scc1 W_c4')
    for v in range(2):
        for i in range(8): a(f'v_cvt_pk_bf16_f32 v{32+8*v+i}, v{AC+16*v+2*i}, v{AC+16*v+2*i+1}')
        a(f'buffer_store_dwordx4 {vr(32+8*v,4)}, v{vL16}, {SWS}, s61 offen offset:{v*1024} {WT}\nbuffer_store_dwordx4 {vr(36+8*v,4)}, v{vL16}, {SWS}, s61 offen offset:{2048+v*1024} {WT}')
    for v in range(2): colsum(v, 32+8*v, 28+v)
    a('s_mov_b32 exec_hi, 0')
    for v in range(2): a(f'buffer_store_dword v{28+v}, v{vL16}, {SWS}, s62 offen offset:{v*1024} {WT}')
    a('s_mov_b32 exec_hi, -1')
    a.label('W_c4')
    a.wait_all()
    tag_ready(a)
    a('s_barrier')
    flag_w0(a, 's63', 's64', 4)
    stamp(a, 'w2pub')
    a('s_branch W_done2')
    a.label('W_c0'); a.lg = []; a.vm = []
    a(f's_cmp_eq_u32 {sMm}, 1\ns_cbranch_scc1 W_c1')
    a(f'''v_lshrrev_b32 v5, 3, v2
    v_mul_u32_u24 v5, 6144, v5
    v_and_b32 v6, 7, v2
    v_lshl_add_u32 v5, v6, 7, v5
    v_bfe_u32 v6, v2, 1, 3
    v_xor_b32 v6, v6, v3
    v_lshl_add_u32 v5, v6, 4, v5
    v_add_u32 v{vBr}, {BB}, v5''')
    for k in range(1, 4): a(f'v_xor_b32 v{vBr+k}, {32*k}, v{vBr}')
    stages(2, brow)
    a('s_branch W_c2')
    a.label('W_c1'); a.lg = []
    a(f'''v_and_b32 v7, 3, v1
    v_lshl_add_u32 v4, v7, 3, v12
    v_add_u32 v{vBr}, {BB}, v4
    v_xor_b32 v{vBr+1}, 64, v{vBr}''')
    stages(2, btr)
    a.label('W_c2')
    a(f'''s_mul_i32 s34, {sMm}, 24
    s_lshl_b32 s35, {sJt}, 2
    s_add_u32 s34, s34, s35
    v_bfe_u32 v4, v1, 4, 1
    v_add_u32 v4, s34, v4
    v_and_b32 v7, 15, v1
    v_lshlrev_b32 v7, 4, v7
    s_lshl_b32 s35, {sIt}, 2
    s_add_u32 s35, s35, {sW}
    s_mul_i32 s35, s35, 3072
    s_add_u32 s35, s35, {WS_W}
    s_lshl_b32 s36, {sIt}, 8
    s_lshl_b32 s34, {sW}, 2
    s_add_u32 s36, s36, s34
    s_add_u32 s36, s36, {WS_W + 12*3072}''')
    for v in range(2):
        a(f'''v_add_u32 v5, {2*v}, v4
        v_mul_u32_u24 v6, 43, v5
        v_lshrrev_b32 v6, 7, v6
        v_mul_u32_u24 v8, 3, v6
        v_sub_u32 v5, v5, v8
        v_mul_u32_u24 v6, 39936, v6
        v_lshl_add_u32 v6, v5, 10, v6
        v_add_u32 v{20+v}, v6, v7
        v_lshl_add_u32 v{22+v}, v3, 8, v{20+v}''')
        for i in range(8): a(f'v_cvt_pk_bf16_f32 v{32+8*v+i}, v{AC+16*v+2*i}, v{AC+16*v+2*i+1}')
        a(f'buffer_store_dwordx4 {vr(32+8*v,4)}, v{22+v}, {SWS}, s35 offen {WT}')
        a(f'buffer_store_dwordx4 {vr(36+8*v,4)}, v{22+v}, {SWS}, s35 offen offset:512 {WT}')
        colsum(v, 32+8*v, 28+v)
    a('s_mov_b32 exec_hi, 0')
    for v in range(2): a(f'buffer_store_dword v{28+v}, v{20+v}, {SWS}, s36 offen {WT}')
    a('s_mov_b32 exec_hi, -1')
    a('s_branch W_done')
    a.label('W_ld'); a.vm = []; a.lg = []
    vA0, vBo = 12, 14
    a(f'''v_lshrrev_b32 v4, 1, v{T8}
    v_xor_b32 v4, v4, v{G8}
    v_mul_u32_u24 v5, 2304, v{T8}
    v_lshl_add_u32 v{vA0}, v4, 4, v5
    v_xor_b32 v{vA0+1}, 64, v{vA0}
    v_lshlrev_b32 v4, 1, v{T8}
    v_and_b32 v4, 4, v4
    v_xor_b32 v4, v4, v{G8}
    v_mul_u32_u24 v5, 768, v{T8}
    v_lshl_add_u32 v{vBo}, v4, 4, v5''')
    def lstages(nra, mode):
        def issue(jj):
            for r in range(nra):
                a(f'''s_add_u32 {sT0}, {sA}, {r*8*2304 + jj*128}
                s_add_u32 m0, {sLA}, {(r*6+jj)*1024}
                buffer_load_dwordx4 v{vA0+(r&1)}, {SWQ}, {sT0} offen lds''', tag=f'p{jj}')
            for r in range(2):
                if mode == 0:
                    a(f'''s_add_u32 {sT0}, {sB}, {r*8*2304 + jj*128}
                    s_add_u32 m0, {sLB}, {BB + (r*6+jj)*1024}
                    buffer_load_dwordx4 v{vA0+r}, {SWQ}, {sT0} offen lds''', tag=f'p{jj}')
                else:
                    a(f'''s_add_u32 {sT0}, {sB}, {(jj*64 + r*8)*768}
                    s_add_u32 m0, {sLB}, {BB + jj*8192 + r*1024}
                    buffer_load_dwordx4 v{vBo}, {SWO}, {sT0} offen lds''', tag=f'p{jj}')
        n0 = opt('pn0', 3)
        for jj in range(n0): issue(jj)
        for jj in range(6):
            a.wait(vm=f'p{jj}')
            if jj in (0, 3, 5) and nra == 3: stamp(a, f'Lp{jj}')
            a('s_barrier')
            if jj + n0 < 6: issue(jj + n0)
    a(f's_cmp_lg_u32 {sMm}, 2\ns_cbranch_scc1 W_l0')
    srd(a, 8, 22, 884736); srd(a, 12, 28, 294912)
    a(f'''s_lshl_b32 s34, {sIt}, 2
    s_add_u32 s34, s34, {sW}
    s_mul_i32 {sA}, s34, {24*2304}
    s_add_u32 {sA}, {sA}, 1536
    s_mul_i32 {sLA}, {sW}, 18432
    s_mul_i32 {sB}, {sW}, {16*768}
    s_lshl_b32 s34, {sJt}, 7
    s_add_u32 {sB}, {sB}, s34
    s_lshl_b32 {sLB}, {sW}, 11
    s_and_b32 s34, {sW}, 1
    s_lshl_b32 s34, s34, 6
    v_xor_b32 v{vA0}, s34, v{vA0}
    v_xor_b32 v{vA0+1}, s34, v{vA0+1}''')
    lstages(3, 1)
    a('s_branch W_done')
    a.label('W_l0'); a.vm = []
    srd(a, 8, 30, 884736); srd(a, 12, 36, 294912)
    a(f'''s_lshl_b32 s34, {sIt}, 2
    s_add_u32 s34, s34, {sW}
    s_mul_i32 {sA}, s34, {32*2304}
    s_mul_i32 s35, {sMm}, 1536
    s_add_u32 {sA}, {sA}, s35
    s_mul_i32 {sLA}, {sW}, 24576
    s_cmp_eq_u32 {sMm}, 1
    s_cbranch_scc1 W_l1
    s_lshl_b32 s34, {sJt}, 2
    s_add_u32 s34, s34, {sW}
    s_mul_i32 {sB}, s34, {16*2304}
    s_add_u32 {sB}, {sB}, 768
    s_mul_i32 {sLB}, {sW}, 12288''')
    lstages(4, 0)
    a('s_branch W_done')
    a.label('W_l1'); a.vm = []
    a(f'''s_mul_i32 {sB}, {sW}, {16*768}
    s_lshl_b32 s34, {sJt}, 7
    s_add_u32 {sB}, {sB}, s34
    s_lshl_b32 {sLB}, {sW}, 11''')
    lstages(4, 1)
    a.label('W_done'); a.vm = []; a.lg = []
    a.wait_all()
    tag_ready(a)
    a(f'''s_barrier
    s_cmp_lg_u32 {sRole}, 0
    s_cbranch_scc1 W_done3''')
    a.label('W_done2')
    a(f'''
    s_lshl_b32 s34, {sS8}, 3
    s_add_u32 s34, s34, {sXCD}
    s_lshl_b32 s34, s34, 7
    s_mov_b32 s35, {GW}''')
    flag_w0(a, 's34', 's35', 4)
    stamp(a, 'wpub')
    def wd3():
        a.label('W_done3')
        a(f's_cmp_lg_u32 {sW}, 1\ns_cbranch_scc1 P2_l')
        wfetch(a)
        a('s_branch P2_l')
    TAIL.append(wd3)
    import v6b
    v6b.phase2(a, globals())
    a.label('K_end')
    a('s_endpgm')
    a.cond = True
    k = 0
    while k < len(TAIL): a.vm = []; a.lg = []; TAIL[k](); k += 1
    return a

KNAME = 'standalone__video_timesformer__vision_kernel'
if __name__ == '__main__':
    out = sys.argv[1]
    a = build()
    head = open('standalone__video_timesformer__vision.s.ref').read().split('; Override launch')[0]
    s = head + '; @launch grid=(256,1,1) block=(512,1,1) lds=147456\n.amdgcn_target "amdgcn-amd-amdhsa--gfx950"\n.text\n'
    s += f'.globl {KNAME}\n.p2align 8\n.type {KNAME},@function\n{KNAME}:\n' + a.text()
    s += f'''.fill 4096, 4, 0xbf800000
  s_endpgm
.section .rodata,"a"
.p2align 6
.amdhsa_kernel {KNAME}
  .amdhsa_next_free_vgpr 256
  .amdhsa_next_free_sgpr 102
  .amdhsa_accum_offset 256
  .amdhsa_group_segment_fixed_size 0
  .amdhsa_kernarg_size 64
  .amdhsa_user_sgpr_count 2
  .amdhsa_user_sgpr_kernarg_segment_ptr 1
  .amdhsa_system_sgpr_workgroup_id_x 1
.end_amdhsa_kernel
'''
    open(out, 'w').write(s)
    if PROFILE: open(out + '.stamps', 'w').write(repr(St.names))
    print('instructions', sum(1 for i in a.ins if not i.label), 'pad states', a.pads)
```

```python
def phase2(a, G):
    globals().update({k: v for k, v in G.items() if not k.startswith('__')})
    sT = sXCD
    sRH, sS, sQT, sCH, sT0, sT1 = 's50', 's51', 's52', 's53', 's54', 's55'
    sK, sSt1, sSt2, sQ, sVP, sOut, sF1, sF2, sOwn, sE8, sRs = 's56', 's57', 's58', 's59', 's60', 's61', 's62', 's63', 's64', 's65', 's66'
    LW, LT, LQ, LP, LML, LO = 0, 40960, 49152, 0, 71680, 73728
    vWa, vWb = 116, 117
    vL16, vW12, vTb, vA, vB, vSt = 10, 11, 12, 15, 9, 8
    RD, MF = 16, 24
    KF, SR = 160, 64
    def common(role):
        a(f'''s_lshr_b32 {sRH}, {sI}, 4
        s_and_b32 {sS}, {sI}, 15
        s_lshr_b32 {sQT}, {sI}, 1
        s_and_b32 {sCH}, {sI}, 1
        s_xor_b32 s34, {sRH}, {role}
        s_lshl_b32 {sE8}, {sW}, 1
        s_add_u32 {sE8}, {sE8}, s34
        s_lshl_b32 s34, s34, 2
        s_add_u32 s34, s34, {sW}
        s_mul_i32 {sK}, s34, 24576
        s_mul_i32 s35, {sT}, 196608
        s_add_u32 {sK}, {sK}, s35
        s_add_u32 {sK}, {sK}, {WS_X1}
        s_lshl_b32 s34, s34, 9
        s_mul_i32 s35, {sT}, 24576
        s_add_u32 s34, s34, s35
        s_add_u32 {sSt1}, s34, {WS_ST}
        s_lshl_b32 s34, {sT}, 9
        s_add_u32 {sF1}, s34, {FC1}
        s_add_u32 {sF2}, s34, {FC2}
        s_lshl_b32 s34, {sT}, 4
        s_add_u32 s34, s34, {sQT}
        s_mul_i32 {sQ}, s34, 13312
        s_add_u32 {sQ}, {sQ}, {WS_Q}
        v_lshrrev_b32 v2, 4, v1
        v_and_b32 v3, 15, v1
        v_lshrrev_b32 v4, 5, v1
        v_bfe_u32 v5, v1, 4, 1
        v_and_b32 v6, 31, v1
        v_lshlrev_b32 v{vSt}, 4, v6
        v_mul_u32_u24 v7, 12288, v4
        v_add_u32 v{vSt}, v{vSt}, v7
        v_cmp_eq_u32 vcc, 3, v2
        v_lshlrev_b32 v7, 4, v3
        v_cndmask_b32 v{vW12}, v{vL16}, v7, vcc
        s_add_u32 s34, {sM1K}, {LT + role*4096}
        v_lshl_add_u32 v{vTb}, v6, 2, s34
        v_lshl_add_u32 v{vTb+1}, v3, 2, s34
        v_lshl_add_u32 v{vTb+2}, v2, 4, s34''')
    def stats_load():
        for i in range(3):
            if i: a(f's_add_u32 {sSt1}, {sSt1}, 4096')
            a(f'buffer_load_dwordx4 {vr(SR+4*i,4)}, v{vSt}, {SWS}, {sSt1} offen sc1', tag='st')
    def stats_math(need_rt):
        a(f's_mov_b32 s36, {fbits(1/384)}\ns_mov_b32 s37, {fbits(1e-5)}')
        a.wait(vm='st')
        a(f'''v_pk_add_f32 {vr(SR,2)}, {vr(SR,2)}, {vr(SR+2,2)}
        v_pk_add_f32 {vr(SR+4,2)}, {vr(SR+4,2)}, {vr(SR+6,2)}
        v_pk_add_f32 {vr(SR+8,2)}, {vr(SR+8,2)}, {vr(SR+10,2)}
        v_pk_add_f32 {vr(SR,2)}, {vr(SR,2)}, {vr(SR+4,2)}
        v_pk_add_f32 {vr(SR,2)}, {vr(SR,2)}, {vr(SR+8,2)}
        v_mov_b32 v{SR+2}, v{SR}
        v_mov_b32 v{SR+3}, v{SR+1}
        v_permlane32_swap_b32 v{SR}, v{SR+2}
        v_permlane32_swap_b32 v{SR+1}, v{SR+3}
        v_pk_add_f32 {vr(SR,2)}, {vr(SR,2)}, {vr(SR+2,2)}
        v_mul_f32 v{SR}, s36, v{SR}
        v_mul_f32 v{SR+2}, v{SR}, v{SR}
        v_fma_f32 v{SR+1}, v{SR+1}, s36, -v{SR+2}
        v_max_f32 v{SR+1}, 0, v{SR+1}
        v_add_f32 v{SR+1}, s37, v{SR+1}
        v_rsq_f32 v{SR+1}, v{SR+1}
        v_cvt_pk_bf16_f32 v{SR}, -v{SR}, -v{SR}
        v_cmp_eq_u32 vcc, 3, v2
        ds_write_b32 v{vTb}, v{SR}
        ds_write_b32 v{vTb}, v{SR+1} offset:128''')
        a(f'ds_read2_b32 {vr(SR+4,2)}, v{vTb+1} offset0:0 offset1:16', tag='t')
        if need_rt: a(f'ds_read2_b32 {vr(RT,2)}, v{vTb+1} offset0:32 offset1:48', tag='t')
        for t in range(2): a(f'ds_read_b128 {vr(RD+4*t,4)}, v{vTb+2} offset:{128+64*t}', tag='t')
        a.wait(lg='t')
        for t in range(2):
            a(f'v_cndmask_b32 v{MF+4*t}, v{SR+4+t}, 0, vcc')
            for d in range(1, 4): a(f'v_mov_b32 v{MF+4*t+d}, v{MF+4*t}')
    def kld(t, ks):
        off = t*12288 + ks*1024
        a(f's_add_u32 {sT0}, {sK}, {off & ~4095}\nbuffer_load_dwordx4 {vr(KF+(t*12+ks)*4,4)}, v{vL16}, {SWS}, {sT0} offen offset:{off & 4095} sc1', tag=f'k{t}_{ks}')
    QF, SA, VF, RT = 32, 56, 64, 6
    vP, vML, vMLr = 13, 14, 12
    M_, T_ = 4, 5
    def attn_addr(role):
        a(f'''s_lshl_b32 s34, {sE8}, 10
        s_add_u32 s34, s34, {LP}
        v_add_u32 v{vP}, s34, v{vL16}
        s_lshl_b32 s34, {sE8}, 2
        s_add_u32 s34, s34, {LML}
        v_lshl_add_u32 v{vML}, v3, 5, s34
        v_lshlrev_b32 v{vMLr}, 5, v3
        v_add_u32 v{vMLr}, {LML}, v{vMLr}''')
    def scores(fill):
        def qrd(ks): a(f'ds_read_b128 {vr(QF+4*(ks%6),4)}, v{vL16 if ks < 12 else vW12} offset:{LQ + ks*1024}', tag=f'q{ks}')
        for ks in range(5): qrd(ks)
        for ks in range(13):
            a.wait(lg=f'q{ks}')
            for t in range(2):
                kf = vr(KF+(t*12+ks)*4, 4) if ks < 12 else vr(MF+4*t, 4)
                d = vr(SA+4*t, 4)
                a(f'v_mfma_f32_16x16x32_bf16 {d}, {kf}, {vr(QF+4*(ks%6),4)}, {"0" if ks == 0 else d}')
            if ks + 5 < 13: qrd(ks + 5)
            if ks % 2 == 1 or opt('vfast', 0): fill()
        for i in range(8): a(f'v_mul_f32 v{SA+i}, v{SA+i}, v{RD+i}')
        a(f'v_max3_f32 v{M_}, v{SA}, v{SA+1}, v{SA+2}\nv_max3_f32 v{T_}, v{SA+3}, v{SA+4}, v{SA+5}\nv_max3_f32 v{M_}, v{M_}, v{SA+6}, v{SA+7}\nv_max_f32 v{M_}, v{M_}, v{T_}')
        for sw in ('v_permlane16_swap_b32', 'v_permlane32_swap_b32'):
            a(f'v_mov_b32 v{T_}, v{M_}'); fill(); a(f'{sw} v{M_}, v{T_}\nv_max_f32 v{M_}, v{M_}, v{T_}')
        a(f's_mov_b64 exec, 0xffff\nds_write_b32 v{vML}, v{M_}\ns_mov_b64 exec, -1')
        fill()
        a('s_waitcnt lgkmcnt(0)'); a.lg = []
        a('s_barrier')
        a(f'ds_read_b128 {vr(QF,4)}, v{vMLr}\nds_read_b128 {vr(QF+4,4)}, v{vMLr} offset:16', tag='mx')
        fill(); fill()
        a.wait(lg='mx')
        a(f'v_max3_f32 v{M_}, v{QF}, v{QF+1}, v{QF+2}\nv_max3_f32 v{T_}, v{QF+3}, v{QF+4}, v{QF+5}\nv_max3_f32 v{M_}, v{M_}, v{QF+6}, v{QF+7}\nv_max_f32 v{M_}, v{M_}, v{T_}')
        for i in range(8): a(f'v_sub_f32 v{SA+i}, v{SA+i}, v{M_}')
        for i in range(8): a(f'v_exp_f32 v{SA+i}, v{SA+i}')
        for i in range(4): a(f'v_cvt_pk_bf16_f32 v{QF+i}, v{SA+2*i}, v{SA+2*i+1}')
        a(f'ds_write_b128 v{vP}, {vr(QF,4)}')
        for w_ in (4, 2, 1):
            for i in range(w_): a(f'v_add_f32 v{SA+i}, v{SA+i}, v{SA+i+w_}')
        for sw in ('v_permlane16_swap_b32', 'v_permlane32_swap_b32'):
            a(f'v_mov_b32 v{T_}, v{SA}'); fill(); a(f'{sw} v{SA}, v{T_}\nv_add_f32 v{SA}, v{SA}, v{T_}')
        a(f's_mov_b64 exec, 0xffff\nds_write_b32 v{vML}, v{SA} offset:512\ns_mov_b64 exec, -1')
        a('s_waitcnt lgkmcnt(0)'); a.lg = []
        a('s_barrier')
    a.label('P2_c'); a.vm = []; a.lg = []
    common(0)
    WF, ACC, PK = 32, 76, 100
    a(f'''v_lshlrev_b32 v7, 4, v3
    v_lshl_add_u32 v{vA}, v4, 8, v7
    v_lshl_add_u32 v{vA}, v5, 3, v{vA}
    v_mul_u32_u24 v{vB}, 13312, v5
    v_add_u32 v{vB}, v{vB}, v7
    s_lshr_b32 s34, {sS}, 2
    s_lshl_b32 s34, s34, 8
    v_mov_b32 v6, s34
    v_cmp_eq_u32 vcc, 1, v4
    v_mov_b32 v7, 512
    v_cndmask_b32 v6, v6, v7, vcc
    v_add_u32 v{vB}, v{vB}, v6
    s_lshl_b32 {sOwn}, {sI}, 4
    s_lshl_b32 s34, {sW}, 2
    s_add_u32 {sOwn}, {sOwn}, s34
    s_mul_i32 {sVP}, {sT}, 196608
    s_mul_i32 s35, {sQT}, 12288
    s_add_u32 {sRs}, {sVP}, s35
    s_mul_i32 s34, {sCH}, 6144
    s_add_u32 {sRs}, {sRs}, s34
    s_mul_i32 s34, {sW}, 1536
    s_add_u32 {sRs}, {sRs}, s34
    s_add_u32 {sRs}, {sRs}, {WS_X1}
    s_add_u32 {sOut}, {sVP}, s35
    s_mul_i32 s35, {sCH}, 384
    s_add_u32 {sOut}, {sOut}, s35
    s_mul_i32 s35, {sW}, 96
    s_add_u32 {sOut}, {sOut}, s35
    s_mul_i32 s34, {sE8}, 24576
    s_add_u32 s34, s34, {sVP}
    s_mul_i32 s35, {sS}, 3072
    s_add_u32 s34, s34, s35
    s_add_u32 s67, s34, {WS_VP - 8*3072}
    s_mul_i32 s35, {sCH}, 12288
    s_add_u32 {sVP}, {sVP}, s35
    s_mul_i32 s35, {sW}, 3072
    s_add_u32 {sVP}, {sVP}, s35
    s_add_u32 {sVP}, {sVP}, {WS_VP}
    s_lshl_b32 s34, {sT}, 4
    s_lshl_b32 s35, {sRH}, 3
    s_add_u32 s34, s34, s35
    s_lshl_b32 s35, {sW}, 1
    s_add_u32 s34, s34, s35
    s_mul_i32 s34, s34, 13312
    s_add_u32 s34, s34, {WS_Q}
    s_mul_i32 s35, {sS}, 1536
    s_add_u32 s68, s34, s35
    s_and_b32 s35, {sS}, 3
    s_lshl_b32 s35, s35, 2
    s_add_u32 s34, s34, s35
    s_add_u32 {sSt2}, s34, 12288''')
    a(f'v_add_u32 v{vWa}, {LW34}, v{vL16}\nv_add_u32 v{vWb}, {LW34}, v{vW12}')
    a('s_barrier')
    stamp(a, 'gsync')
    stats_load()
    AHEAD = opt('ahead', 5)
    for ks in range(AHEAD): kld(0, ks); kld(1, ks)
    def wrd(ks, u):
        a(f'ds_read_b128 {vr(WF + (ks%2)*12 + 4*u,4)}, v{vWa if ks < 12 else vWb} offset:{(ks*3+u)*1024}', tag=f'f{ks}_{u}')
    L = a.newlabel('be')
    a(f's_or_b32 s34, {sW}, s2\ns_cmp_lg_u32 s34, 0\ns_cbranch_scc1 {L}')
    a.cond = True; a(f's_mov_b32 s34, {WE}'); flag(a, '0', 's34', sTag, 6, 'sc0 sc1'); a.vm.pop(); a.cond = False
    a.label(L)
    stats_math(True)
    a(f'v_mul_f32 v{RT}, {fbits(SCALE2)}, v{RT}\nv_mul_f32 v{RT+1}, {fbits(SCALE2)}, v{RT+1}')
    stamp(a, 'mm2')
    a(f's_cmp_ge_u32 {sS}, 8\ns_cbranch_scc1 P2_v')
    for var in range(2):
        if var == 0: vmsave, lgsave = list(a.vm), list(a.lg)
        else: a.label('P2_v'); a.vm, a.lg = list(vmsave), list(lgsave)
        for u in range(3): wrd(0, u)
        for ks in range(13):
            if ks + AHEAD < 12: kld(0, ks + AHEAD); kld(1, ks + AHEAD)
            if ks + AHEAD == 12: a('s_barrier')
            if ks < 12: a.wait(vm=f'k1_{ks}')
            for u in range(3):
                a.wait(lg=f'f{ks}_{u}')
                wf = vr(WF + (ks%2)*12 + 4*u, 4)
                for t in range(2):
                    xf = vr(KF+(t*12+ks)*4, 4) if ks < 12 else vr(MF+4*t, 4)
                    d = vr(ACC + (t*3+u)*4, 4)
                    A, B = (wf, xf) if var == 0 else (xf, wf)
                    a(f'v_mfma_f32_16x16x32_bf16 {d}, {A}, {B}, {"0" if ks == 0 else d}')
                if ks < 12: wrd(ks + 1, u)
        stamp(a, 'mm2end')
        if var == 0:
            AQ = 112
            a(f'v_mov_b32 v{AQ}, 0\nv_mov_b32 v{AQ+1}, 0\ns_mov_b32 s36, 0x3f803f80\ns_mov_b32 {sSt1}, s68')
            for t in range(2):
                for u in range(3):
                    b = ACC + (t*3+u)*4
                    for d in range(2): a(f'v_pk_mul_f32 {vr(b+2*d,2)}, {vr(b+2*d,2)}, {vr(RT,2)} op_sel:[0,{t}] op_sel_hi:[1,{t}]')
                    for d in range(2): a(f'v_cvt_pk_bf16_f32 v{PK+(t*3+u)*2+d}, v{b+2*d}, v{b+2*d+1}')
            def pub0(s1, s2, fl, first=False):
                for t in range(2):
                    if t: a(f's_add_u32 {sT1}, {s1}, 13312')
                    for u in range(3):
                        a(f'buffer_store_dwordx2 {vr(PK+(t*3+u)*2,2)}, v{vA}, {SWS}, {sT1 if t else s1} offen offset:{u*512} {fl}')
                if first:
                    for i in range(6):
                        for t in range(2): a(f'v_dot2c_f32_bf16 v{AQ+t}, s36, v{PK+t*6+i}')
                    for sw in ('v_permlane16_swap_b32', 'v_permlane32_swap_b32'):
                        a(f'v_mov_b32 v{AQ+2}, v{AQ}\nv_mov_b32 v{AQ+3}, v{AQ+1}\n{sw} v{AQ}, v{AQ+2}\n{sw} v{AQ+1}, v{AQ+3}\nv_add_f32 v{AQ}, v{AQ}, v{AQ+2}\nv_add_f32 v{AQ+1}, v{AQ+1}, v{AQ+3}')
                    a(f'''v_cmp_eq_u32 vcc, 1, v5
                    v_cndmask_b32 v{AQ}, v{AQ}, v{AQ+1}, vcc
                    v_cvt_pk_bf16_f32 v{AQ+1}, v{AQ}, v{AQ}
                    v_lshlrev_b32 v{AQ+1}, 16, v{AQ+1}
                    v_sub_f32 v{AQ+1}, v{AQ}, v{AQ+1}
                    v_cvt_pk_bf16_f32 v{AQ}, v{AQ}, v{AQ+1}
                    s_mov_b32 exec_lo, 0
                    v_mov_b32 v{AQ}, 0
                    s_mov_b32 exec_lo, -1''')
                a(f'buffer_store_dword v{AQ}, v{vB}, {SWS}, {s2} offen {fl}')
            pub0(sSt1, sSt2, '', True)
            a('s_branch P2_j')
        else:
            a(f's_mov_b32 {sSt1}, s67')
            for u in range(3):
                for t in range(2):
                    b = ACC + (t*3+u)*4
                    for d in range(2): a(f'v_pk_mul_f32 {vr(b+2*d,2)}, {vr(b+2*d,2)}, {vr(RD+4*t+2*d,2)}')
                    for d in range(2): a(f'v_cvt_pk_bf16_f32 v{PK+u*4+t*2+d}, v{b+2*d}, v{b+2*d+1}')
            def pub1(s1, fl):
                for u in range(3): a(f'buffer_store_dwordx4 {vr(PK+4*u,4)}, v{vL16}, {SWS}, {s1} offen offset:{u*1024} {fl}')
            pub1(sSt1, '')
    a.label('P2_j')
    attn_addr(0)
    vOW, vOR, vOG = 116, 117, 119
    a.wait_all()
    flag(a, sOwn, sF1, sFast, 6, '')
    stamp(a, 'flag2')
    def repub():
        L1, L2 = a.newlabel('rp'), a.newlabel('rp')
        a(f's_add_u32 s36, {sSt1}, {SLOW}\ns_add_u32 s37, {sSt2}, {SLOW}\ns_cmp_ge_u32 {sS}, 8\ns_cbranch_scc1 {L1}')
        pub0('s36', 's37', 'sc0 sc1'); a(f's_branch {L2}')
        a.label(L1); pub1('s36', 'sc0 sc1'); a.label(L2)
    lsync(a, 32, True, sF1, sF2, sOwn, repub, 32)
    stamp(a, 'sync2')
    a(f's_add_u32 {sVP}, {sVP}, {sDelta}\ns_add_u32 {sQ}, {sQ}, {sDelta}\ns_add_u32 {sT1}, {sQ}, {sM1K}')
    for i in range(3):
        a(f's_add_u32 {sT0}, {sT1}, {i*4096}\ns_add_u32 m0, {sM1K}, {LQ + i*4096}\nbuffer_load_dwordx4 v{vL16}, {SWS}, {sT0} offen sc1 lds', tag='q')
    a(f's_add_u32 {sT0}, {sQ}, 12288\ns_mov_b32 m0, {LQ + 12288}\nbuffer_load_dwordx4 v{vL16}, {SWS}, {sT0} offen sc1 lds', tag='q')
    vq = []
    for k8 in range(8):
        for u in range(3):
            vq.append(((f's_add_u32 {sVP}, {sVP}, 24576\n' if k8 and u == 0 else '') + f'buffer_load_dwordx4 {vr(VF+(k8*3+u)*4,4)}, v{vL16}, {SWS}, {sVP} offen offset:{u*1024} sc1', f'vp{k8}'))
    def fill():
        if vq: x = vq.pop(0); a(x[0], tag=x[1])
    for _ in range(opt('nv0', 5)): fill()
    a.wait(vm='q')
    a('s_barrier')
    stamp(a, 'q_in')
    scores(fill)
    stamp(a, 'p_done')
    while vq: fill()
    PF, PA, RS, RF, ML = 160, 32, 192, 200, 212
    for k8 in range(8): a(f'ds_read_b128 {vr(PF+4*k8,4)}, v{vL16} offset:{LP + k8*1024}', tag=f'p{k8}')
    a(f'ds_read_b128 {vr(ML,4)}, v{vMLr} offset:512\nds_read_b128 {vr(ML+4,4)}, v{vMLr} offset:528', tag='ml')
    for u in range(3): a(f'buffer_load_dwordx2 {vr(RS+2*u,2)}, v{vA}, {SWS}, {sRs} offen offset:{u*512} sc1', tag='rs')
    vOW, vOR, vOG = 220, 221, 223
    fx = [f's_lshl_b32 s35, {sW}, 11', f's_add_u32 s35, s35, {LO}', f'v_mul_u32_u24 v{vOW}, 112, v3', f'v_lshl_add_u32 v{vOW}, v2, 3, v{vOW}', f'v_add_u32 v{vOW}, s35, v{vOW}']
    for h in range(2):
        fx += [f'v_add_u32 v6, {64*h}, v1', 'v_mul_u32_u24 v7, 43, v6', 'v_lshrrev_b32 v7, 8, v7', 'v_mul_u32_u24 v4, 6, v7', 'v_sub_u32 v4, v6, v4', 'v_lshlrev_b32 v4, 4, v4',
               'v_mul_u32_u24 v6, 112, v7', f'v_add3_u32 v{vOR+h}, v6, v4, s35', 'v_mul_u32_u24 v6, 768, v7', f'v_add_u32 v{vOG+h}, v6, v4']
    fx += [('l', 'ml')] + [f'v_add_f32 v{ML+i}, v{ML+i}, v{ML+4+i}' for i in range(4)] + [f'v_add_f32 v{ML}, v{ML}, v{ML+1}', f'v_add_f32 v{ML+2}, v{ML+2}, v{ML+3}', f'v_add_f32 v{ML}, v{ML}, v{ML+2}', f'v_rcp_f32 v{ML}, v{ML}', 's_mov_b32 s36, 0xffff0000']
    def fxd(n):
        while n > 0 and fx:
            x = fx.pop(0)
            if isinstance(x, tuple): a.wait(lg=x[1])
            else: a(x); n -= 1
    for k8 in range(8):
        a.wait(vm=f'vp{k8}', lg=f'p{k8}')
        for u in range(3):
            d = vr(PA + 4*u, 4)
            a(f'v_mfma_f32_16x16x32_bf16 {d}, {vr(VF+(k8*3+u)*4,4)}, {vr(PF+4*k8,4)}, {"0" if k8 == 0 else d}')
            fxd(2)
    fxd(1000)
    a.wait(vm='rs')
    for u in range(3):
        for d in range(2): a(f'v_lshlrev_b32 v{RF+4*u+2*d}, 16, v{RS+2*u+d}\nv_and_b32 v{RF+4*u+2*d+1}, s36, v{RS+2*u+d}')
    stamp(a, 'pv_done')
    OP = 48
    for u in range(3):
        for d in range(2): a(f'v_pk_fma_f32 {vr(RF+4*u+2*d,2)}, {vr(PA+4*u+2*d,2)}, {vr(ML,2)}, {vr(RF+4*u+2*d,2)} op_sel_hi:[1,0,1]')
        for d in range(2): a(f'v_cvt_pk_bf16_f32 v{OP+2*u+d}, v{RF+4*u+2*d}, v{RF+4*u+2*d+1}')
        a(f'ds_write_b64 v{vOW}, {vr(OP+2*u,2)} offset:{u*32}')
    a(f'ds_read_b128 {vr(56,4)}, v{vOR}', tag='o0')
    a(f's_mov_b32 exec_hi, 0\nds_read_b128 {vr(60,4)}, v{vOR+1}\ns_mov_b32 exec_hi, -1', tag='o1')
    a.wait(lg='o0')
    a(f'buffer_store_dwordx4 {vr(56,4)}, v{vOG}, {SOUT}, {sOut} offen')
    a.wait(lg='o1')
    a(f's_mov_b32 exec_hi, 0\nbuffer_store_dwordx4 {vr(60,4)}, v{vOG+1}, {SOUT}, {sOut} offen\ns_mov_b32 exec_hi, -1')
    if PROFILE: a.wait_all()
    stamp(a, 'end')
    stamp_flush(a)
    a('s_endpgm')
    a.label('P2_l'); a.vm = []; a.lg = []
    common(1)
    a(f'''v_lshlrev_b32 v7, 7, v1
    s_cmp_eq_u32 {sW}, 1
    s_cbranch_scc1 P2_lw
    s_add_u32 s67, {sW}, 2
    s_and_b32 s67, s67, 3
    s_lshl_b32 s67, s67, 13
    s_add_u32 s67, s67, {GX}''')
    gpoll(a, 64, 7, 's67', 33)
    stamp(a, 'Lxf')
    a.label('P2_lw')
    a.wait_all()
    stamp(a, 'Lw')
    a.label('P2_lg'); a.vm = []
    a(f's_mul_i32 s67, {sT}, 196608\ns_mul_i32 s68, {sI}, 6144\ns_add_u32 s67, s67, s68\ns_add_u32 s67, s67, {WS_X1}\ns_mul_i32 s68, {sW}, 1536\ns_add_u32 s67, s67, s68')
    a('s_barrier')
    if opt('xpf', 1):
        a(f'buffer_load_dwordx4 v[32:35], v{vL16}, {SWS}, s67 offen sc1\ns_mov_b32 exec_hi, 0\nbuffer_load_dwordx4 v[36:39], v{vL16}, {SWS}, s67 offen offset:1024 sc1\ns_mov_b32 exec_hi, -1')
    stats_load()
    stats_math(False)
    attn_addr(1)
    a('s_barrier')
    KA = opt('ka', 6)
    for ks in range(KA): kld(0, ks); kld(1, ks)
    a.wait_all(lg=False)
    for ks in range(KA, 12): kld(0, ks); kld(1, ks)
    stamp(a, 'Lkiss')
    a.wait_all()
    stamp(a, 'Lk')
    a('s_barrier')
    scores(lambda: None)
    stamp_flush(a, 'L')
```

```python
import sys, math, struct
sys.path.insert(0, 'gen')
from asm import Asm
def opt(name, default):
    for x in sys.argv:
        if x.startswith(f'--{name}='): return int(x.split('=')[1])
    return default
HP = [x[5:] for x in sys.argv if x.startswith('--hp=')]
PROFILE = '--prof' in sys.argv or bool(HP)
SKIP = []
for x in sys.argv:
    if x.startswith('--skip='): SKIP = x[7:].split(',')
WS_V  = 0x000000
WS_S  = 0x180000
WS_X1 = 0x240000
WS_W  = 0x3E0000
WS_Q  = 0x480000
WS_VP = 0x620000
WS_ST = 0xF00000
FS1, FV1, FA2 = 0x7A0000, 0x7A2000, 0x7A3000
FC1, FC2 = 0x7A4000, 0x7A5000
GW2, GW, GX, WE = 0x7A8000, 0x7AA000, 0x7AC000, 0x7B4000
WS_PROF = 0x7C0000
SLOW = 0x800000
WS_SIZE = 0x1000000
LIM_FAST = opt('lim', 24)
LIM_SLOW = 1 << 20
SCALE2 = 384 ** -0.5 * math.log2(math.e)
def fbits(x): return '0x%08x' % struct.unpack('<I', struct.pack('<f', x))[0]
def vr(b, n): return f'v[{b}:{b+n-1}]' if n > 1 else f'v{b}'
SX, SWQ, SWO, SWS, SOUT = 's[4:7]', 's[8:11]', 's[12:15]', 's[16:19]', 's[24:27]'
WT = 'sc0 sc1' if opt('wt', 1) == 2 else 'sc1'
def srd(a, base, ptr, size):
    a(f's_mov_b32 s{base}, s{ptr}\ns_mov_b32 s{base+1}, s{ptr+1}\ns_mov_b32 s{base+2}, {size}\ns_mov_b32 s{base+3}, 0x20000')
STAMP_REGS = [70, 72, 74, 76, 78, 80, 82, 84, 86, 88, 90, 92, 94, 96, 98, 100]
class St:
    names = {'C': [], 'L': []}
def stamp(a, name):
    if not PROFILE or name in SKIP or (HP and name not in ('start', HP[0])): return
    lst = St.names['L' if name.startswith('L') else 'C']
    if name not in lst: lst.append(name)
    k = lst.index(name)
    a(f's_memrealtime s[{STAMP_REGS[k]}:{STAMP_REGS[k]+1}]')
def hp_end(a, role):
    name = HP[0]
    lst = St.names[role]
    src = f's{STAMP_REGS[lst.index(name)]}' if name in lst else 's70'
    L1, L2 = a.newlabel('hp'), a.newlabel('hp')
    a(f's_waitcnt vmcnt(0) lgkmcnt(0)\nv_mov_b32 v2, {WS_PROF + 0x30000}')
    a.label(L1)
    a(f'''buffer_load_dwordx2 v[4:5], v2, {SWS}, 0 offen sc0 sc1
    s_waitcnt vmcnt(0)
    v_readfirstlane_b32 s34, v4
    v_readfirstlane_b32 s35, v5
    s_cmp_lg_u32 s35, {sTag}
    s_cbranch_scc1 {L1}
    s_sub_u32 s35, {src}, s34
    s_max_i32 s35, s35, 0
    s_mul_i32 s35, s35, 4
    s_add_u32 s35, s35, 4000''')
    a.label(L2)
    a(f'''s_memrealtime s[36:37]
    s_waitcnt lgkmcnt(0)
    s_sub_u32 s36, s36, s34
    s_cmp_lt_i32 s36, s35
    s_cbranch_scc1 {L2}''')
def hp_t0(a):
    if not HP: return
    L = a.newlabel('hq')
    a(f's_or_b32 s34, s2, {sW}\ns_or_b32 s34, s34, {sRole}\ns_cmp_lg_u32 s34, 0\ns_cbranch_scc1 {L}')
    a(f'v_mov_b32 v2, {WS_PROF + 0x30000}\nv_mov_b32 v4, s70\nv_mov_b32 v5, {sTag}\nbuffer_store_dwordx2 v[4:5], v2, {SWS}, 0 offen sc0 sc1')
    a.vm.pop()
    a.label(L)
def stamp_flush(a, role='C'):
    if HP: hp_end(a, role); return
    if not PROFILE: return
    a('s_waitcnt lgkmcnt(0)')
    for k in range(16): a(f'v_mov_b32 v{100+k}, s{STAMP_REGS[k]}')
    a(f'''v_lshrrev_b32 v8, 6, v0
    s_lshl_b32 s34, s2, 3
    v_add_u32 v8, s34, v8
    v_lshlrev_b32 v8, 6, v8
    v_add_u32 v8, {WS_PROF}, v8''')
    for k in range(4): a(f'buffer_store_dwordx4 v[{100+4*k}:{103+4*k}], v8, {SWS}, 0 offen offset:{16*k}')

sXCD, sW, sI, sRole = 's40', 's41', 's42', 's43'
sTag, sFast, sDelta = 's44', 's45', 's46'
sM1K = 's47'
TAIL = []

def lanes(a, n):
    a(f's_mov_b32 exec_lo, {hex((1 << min(n, 32)) - 1)}\ns_mov_b32 exec_hi, {hex((1 << max(n-32, 0)) - 1)}')
def gpoll(a, n, vA, sBase, vT):
    Lf, Lr, Ld = a.newlabel('gp'), a.newlabel('gr'), a.newlabel('gd')
    lanes(a, n)
    a(f's_mov_b32 s35, {LIM_SLOW}')
    a.label(Lf)
    a(f'buffer_load_dword v{vT}, v{vA}, {SWS}, {sBase} offen sc1')
    a.wait_all(lg=False)
    a(f'v_cmp_ne_u32 vcc, {sTag}, v{vT}\ns_cbranch_vccnz {Lr}')
    a.label(Ld)
    a('s_mov_b64 exec, -1')
    def tail():
        a.label(Lr); a(f's_sub_u32 s35, s35, 1\ns_cmp_lg_u32 s35, 0\ns_cbranch_scc1 {Lf}\ns_branch {Ld}')
    TAIL.append(tail)
def lsync(a, n, wide, sF1, sF2, sOwn, republish, vT):
    Lf, Lr, Ld, Ls = a.newlabel('lp'), a.newlabel('lr'), a.newlabel('ld'), a.newlabel('ls')
    vA, vD, vE = vT, vT + 2, vT + 6
    w = 4 if wide else 1
    ld = 'buffer_load_dwordx4' if wide else 'buffer_load_dword'
    def cmp(v, s):
        if not wide: a(f'v_cmp_ne_u32 vcc, {s}, v{v}'); return
        for k in range(4): a(f'v_xor_b32 v{v+k}, {s}, v{v+k}')
        a(f'v_or_b32 v{v}, v{v}, v{v+1}\nv_or3_b32 v{v}, v{v}, v{v+2}, v{v+3}\nv_cmp_ne_u32 vcc, 0, v{v}')
    lanes(a, n)
    a(f'v_lshlrev_b32 v{vA}, {4 if wide else 2}, v1\ns_mov_b32 {sDelta}, 0\ns_mov_b32 s35, {LIM_FAST}')
    a.label(Lf)
    a(f'{ld} {vr(vD, w)}, v{vA}, {SWS}, {sF1} offen sc1')
    a.wait_all(lg=False)
    cmp(vD, sFast)
    a(f's_cbranch_vccnz {Lr}')
    a.label(Ld)
    a('s_mov_b64 exec, -1')
    def tail():
        a.label(Lr)
        a(f's_sub_u32 s35, s35, 1\ns_cmp_lg_u32 s35, 0\ns_cbranch_scc1 {Lf}')
        if republish:
            a('s_mov_b64 exec, -1')
            republish()
            a.wait_all(lg=False)
            a(f'''s_mov_b64 exec, 1
            v_mov_b32 v{vD}, {sOwn}
            v_mov_b32 v{vD+1}, {sTag}
            buffer_store_dword v{vD+1}, v{vD}, {SWS}, {sF2} offen sc0 sc1''')
            lanes(a, n)
        a(f's_mov_b32 s35, {LIM_SLOW}')
        a.label(Ls)
        a(f'{ld} {vr(vD, w)}, v{vA}, {SWS}, {sF1} offen sc1\n{ld} {vr(vE, w)}, v{vA}, {SWS}, {sF2} offen sc0 sc1')
        a.wait_all(lg=False)
        cmp(vD, sFast)
        a(f's_cbranch_vccz {Ld}')
        cmp(vE, sTag)
        a(f's_mov_b32 {sDelta}, {SLOW}\ns_cbranch_vccz {Ld}\ns_mov_b32 {sDelta}, 0\ns_sub_u32 s35, s35, 1\ns_cmp_lg_u32 s35, 0\ns_cbranch_scc1 {Ls}\ns_branch {Ld}')
    TAIL.append(tail)
def flag(a, sOff, sBase, sVal, vT, fl):
    a(f'''s_mov_b64 exec, 1
    v_mov_b32 v{vT}, {sOff}
    v_mov_b32 v{vT+1}, {sVal}
    buffer_store_dword v{vT+1}, v{vT}, {SWS}, {sBase} offen {fl}
    s_mov_b64 exec, -1''')
def flag_w0(a, sOff, sBase, vT):
    L = a.newlabel('f0')
    a(f's_cmp_lg_u32 {sW}, 0\ns_cbranch_scc1 {L}')
    a.cond = True; flag(a, sOff, sBase, sTag, vT, 'sc0 sc1'); a.vm.pop(); a.cond = False
    a.label(L)
def tag_ready(a):
    a(f'''s_mul_i32 {sTag}, {sTag}, 0x9e3779b1
    s_add_u32 {sTag}, {sTag}, 0x7f4a7c15
    s_add_u32 {sFast}, {sFast}, {sTag}''')

LW34 = 49152
def wfetch(a):
    a(f'''v_lshlrev_b32 v7, 7, v1
    s_mov_b32 s67, {GW}
    s_and_b32 s68, {sI}, 15
    s_mul_i32 s68, s68, 39936
    s_add_u32 s68, s68, {WS_W}
    s_lshr_b32 s69, {sI}, 1
    s_lshl_b32 s34, {sXCD}, 4
    s_add_u32 s69, s69, s34
    s_mul_i32 s69, s69, 13312
    s_add_u32 s69, s69, {WS_Q + 12288}''')
    gpoll(a, 64, 7, 's67', 33)
    stamp(a, 'Lwf')
    for i in range(39):
        if i % 4 == 0: a(f's_mov_b32 m0, {LW34 + i*1024}' + ('\ns_add_u32 s68, s68, 4096' if i else ''))
        a(f'buffer_load_dwordx4 v10, {SWS}, s68 offen offset:{(i&3)*1024} sc1 lds')
    a(f'buffer_load_dwordx4 v[32:35], v10, {SWS}, s69 offen')

def build():
    a = Asm()
    def emit(x):
        if isinstance(x, tuple): a(x[0], tag=x[1])
        else: a(x)
    a(f'''s_cmp_ge_u32 s2, 256
    s_cbranch_scc1 K_end
    s_load_dwordx4 s[20:23], s[0:1], 0
    s_load_dwordx4 s[28:31], s[0:1], 16
    s_load_dwordx4 s[36:39], s[0:1], 32
    s_load_dwordx2 s[32:33], s[0:1], 56
    v_and_b32 v1, 63, v0
    v_lshrrev_b32 v2, 6, v0
    s_and_b32 {sXCD}, s2, 7
    v_readfirstlane_b32 {sW}, v2
    s_lshr_b32 {sI}, s2, 3''')
    stamp(a, 'start')
    if HP:
        St.names['L'].append('Lstart')
        a('s_waitcnt lgkmcnt(0)')
        for r in STAMP_REGS[1:]: a(f's_mov_b32 s{r}, s70')
    a('s_getpc_b64 s[48:49]')
    a.label('K_pc')
    a(f'''s_sub_u32 s48, s48, K_pc-{KNAME}
    s_subb_u32 s49, s49, 0
    s_lshl_b32 s34, {sI}, 3
    s_add_u32 s34, s34, {sW}
    s_and_b32 s34, s34, 31
    s_lshl_b32 s34, s34, 10
    v_lshl_add_u32 v9, v1, 4, s34
    global_load_dwordx4 v[252:255], v9, s[48:49]
    s_lshr_b32 {sRole}, {sW}, 2
    s_and_b32 {sW}, {sW}, 3
    s_lshl_b32 {sM1K}, {sW}, 10
    s_getreg_b32 {sFast}, hwreg(HW_REG_XCC_ID)
    s_and_b32 {sFast}, {sFast}, 15
    s_add_u32 {sFast}, {sFast}, 1
    v_lshrrev_b32 v2, 3, v1
    v_and_b32 v3, 7, v1
    v_lshlrev_b32 v10, 4, v1
    s_cmp_lt_u32 {sI}, 8
    s_cbranch_scc1 K_pre''')
    T8, G8, vL16 = 2, 3, 10
    sG, sJ, sP, sHF, sX, sM = 's50', 's51', 's52', 's53', 's54', 's55'
    sR = ['s56', 's57', 's58', 's59', 's60', 's61']
    ROT = opt('rot', 4)
    a(f'''s_sub_u32 {sJ}, {sI}, 8
    s_mul_i32 s34, {sJ}, 43
    s_lshr_b32 s34, s34, 8
    s_mul_i32 s35, s34, 6
    s_sub_u32 {sJ}, {sJ}, s35
    s_lshl_b32 {sG}, {sXCD}, 2
    s_add_u32 {sG}, {sG}, s34
    s_lshr_b32 {sP}, {sW}, 1
    s_and_b32 {sHF}, {sW}, 1
    s_lshl_b32 {sM}, {sW}, 11''')
    if ROT: a(f's_mul_i32 s3, {sXCD}, 3\ns_lshr_b32 s3, s3, 2')
    a(f's_cmp_lg_u32 {sRole}, 0\ns_cbranch_scc1 A_ld')
    XS = lambda c: c*8192
    WV0 = 49152
    QS = [98304, 114688, 131072, 147456, 49152, 65536]
    WOL, VL = 0, 98304
    vXF, vAW, vSst, vX1, vST, vRes, vBP, vBS, vVr = 12, 16, 19, 20, 21, 22, 23, 24, 25
    XF, WF, ACC, CS, MA, SEL, CA, CB, CSV, ACV, CAV, PV, RAW, RR = 160, 32, 64, 96, 104, 108, 112, 120, 124, 128, 144, 148, 56, 26
    sSst, sSld, sX1, sST, sFS1, sFA2, sOwn, sGX, sVst, sFV = 's56', 's57', 's58', 's59', 's60', 's61', 's62', 's63', 's20', 's21'
    a(f"""v_and_b32 v4, 31, v1
    v_lshrrev_b32 v5, 5, v1
    v_bfe_u32 v6, v1, 1, 3
    v_xor_b32 v6, v6, v5
    v_lshlrev_b32 v4, 7, v4
    v_lshl_add_u32 v4, v6, 4, v4
    s_lshl_b32 s35, {sP}, 12
    v_add_u32 v{vXF}, s35, v4
    v_xor_b32 v{vXF+1}, 32, v{vXF}
    v_xor_b32 v{vXF+2}, 64, v{vXF}
    v_xor_b32 v{vXF+3}, 96, v{vXF}
    v_bfe_u32 v6, v1, 2, 2
    v_lshl_add_u32 v4, v5, 3, v6
    v_lshlrev_b32 v4, 7, v4
    v_lshrrev_b32 v7, 1, v6
    v_xor_b32 v7, {sHF}, v7
    v_lshl_add_u32 v4, v7, 6, v4
    v_bfe_u32 v7, v1, 4, 1
    v_lshl_add_u32 v4, v7, 5, v4
    v_and_b32 v8, 1, v1
    v_lshl_add_u32 v4, v8, 4, v4
    v_bfe_u32 v8, v1, 1, 1
    v_lshl_add_u32 v{vAW}, v8, 3, v4
    v_add_u32 v{vAW+1}, {WV0}, v{vAW}
    v_add_u32 v{vAW+2}, {QS[0]}, v{vAW}
    v_bfe_u32 v8, v1, 2, 1
    v_cmp_eq_u32 vcc, v8, v7
    v_mov_b32 v7, 0x3f803f80
    s_mov_b32 s34, {WE}
    s_waitcnt lgkmcnt(0)
    s_load_dword {sTag}, s[32:33], s34""")
    for k in range(4): a(f'v_cndmask_b32 v{SEL+k}, 0, v7, vcc')
    srd(a, 16, 32, WS_SIZE); srd(a, 24, 38, 1572864)
    a(f"""v_lshlrev_b32 v{vSst}, 9, v5
    v_lshl_add_u32 v{vSst}, v{G8}, 6, v{vSst}
    v_bfe_u32 v6, v1, 3, 2
    v_lshl_add_u32 v{vSst}, v6, 4, v{vSst}
    s_mul_i32 s34, {sG}, 24576
    s_lshl_b32 s35, {sP}, 10
    s_add_u32 s34, s34, s35
    s_add_u32 {sSld}, s34, {WS_S}
    s_lshl_b32 s35, {sJ}, 1
    s_add_u32 s35, s35, {sHF}
    s_lshl_b32 {sOwn}, s35, 2
    s_lshl_b32 s36, s35, 11
    s_add_u32 {sSst}, {sSld}, s36
    s_lshl_b32 s34, {sG}, 1
    s_add_u32 s34, s34, {sP}
    s_mul_i32 {sVst}, s34, 24576
    s_add_u32 {sVst}, {sVst}, s36
    s_lshl_b32 s34, s34, 7
    s_add_u32 {sFS1}, s34, {FS1}
    s_lshl_b32 s34, {sG}, 7
    s_mul_i32 s36, {sP}, 48
    s_add_u32 s34, s34, s36
    s_add_u32 {sFA2}, s34, {FA2}
    s_add_u32 {sFV}, s34, {FV1}""")
    a(f"""v_bfe_u32 v6, v1, 2, 3
    v_and_b32 v7, 3, v1
    s_mov_b32 s34, 196608
    v_mul_lo_u32 v{vX1}, v6, s34
    v_lshl_add_u32 v{vX1}, v5, 8, v{vX1}
    v_lshl_add_u32 v{vX1}, v7, 4, v{vX1}
    v_mul_u32_u24 v{vST}, 24576, v6
    v_lshl_add_u32 v{vST}, v7, 4, v{vST}
    v_lshl_add_u32 v8, v7, 3, v6
    v_lshlrev_b32 v{vBP}, 2, v8
    v_lshlrev_b32 v{vBS}, 5, v7
    v_lshl_add_u32 v{vBS}, v5, 4, v{vBS}
    v_bfe_u32 v4, v8, 1, 3
    s_lshl_b32 s34, {sHF}, 2
    v_xor_b32 v4, s34, v4
    v_xor_b32 v4, v4, v5
    v_lshlrev_b32 v4, 4, v4
    v_lshl_add_u32 v4, v8, 7, v4""")
    if ROT: a(f's_add_u32 s34, {sJ}, 6\ns_sub_u32 s34, s34, s3\ns_cmp_ge_u32 s34, 6\ns_cselect_b32 s36, 6, 0\ns_sub_u32 s34, s34, s36\ns_lshl_b32 s34, s34, 13')
    else: a(f's_lshl_b32 s34, {sJ}, 13')
    a(f"""s_lshl_b32 s36, {sP}, 12
    s_add_u32 s34, s34, s36
    v_add_u32 v{vRes}, s34, v4
    s_mul_i32 s34, {sP}, 24576
    s_add_u32 s34, s34, {VL}
    v_add_u32 v{vVr}, s34, v{vL16}
    s_lshr_b32 s34, {sG}, 1
    s_mul_i32 s34, s34, 12288
    s_lshl_b32 s36, s35, 10
    s_add_u32 s34, s34, s36
    s_and_b32 s36, {sG}, 1
    s_lshl_b32 s36, s36, 7
    s_add_u32 s34, s34, s36
    s_lshl_b32 s36, {sP}, 6
    s_add_u32 s34, s34, s36
    s_add_u32 {sX1}, s34, {WS_X1}
    s_lshl_b32 s34, {sJ}, 12
    s_add_u32 s34, s34, s36
    s_lshl_b32 s36, {sG}, 7
    s_add_u32 s34, s34, s36
    s_lshl_b32 s36, {sHF}, 3
    s_add_u32 s34, s34, s36
    s_add_u32 {sST}, s34, {WS_ST}
    s_mul_i32 s34, {sG}, 6
    s_add_u32 s34, s34, {sJ}
    s_lshl_b32 {sGX}, s34, 7
    s_mov_b32 s38, {fbits(-1/384)}
    s_mov_b32 s36, 0xffff0000
    s_mov_b32 s64, -1
    s_mov_b32 s65, 0
    s_mov_b32 s66, 0xff00ff00
    s_mov_b32 s67, 0xff00ff00
    s_mov_b32 s68, 0xffff0000
    s_mov_b32 s69, 0xffff0000""")
    for r in list(range(CA, CB + 4)) + list(range(CAV, CAV + 4)):
        if r % 4: a(f'v_mov_b32 v{r}, 0')
    a('s_waitcnt lgkmcnt(0)')
    tag_ready(a)
    def tr2(d, base, off, tag): a(f'ds_read_b64_tr_b16 {vr(d,2)}, v{base} offset:{off}\nds_read_b64_tr_b16 {vr(d+2,2)}, v{base} offset:{off+512}', tag=tag)
    def pre(n, part):
        if n < 24:
            if part == 0:
                a(f'ds_read_b128 {vr(XF+4*n,4)}, v{vXF+(n&3)} offset:{XS(n>>2)}', tag=f'f{n}')
                tr2(WF + (n % 3)*8, vAW + 1, n*2048, f'f{n}')
        elif n < 48:
            ks = n - 24; c = ks >> 2
            off = QS[c] + part*8192 + (ks & 3)*2048
            base, off = (vAW + 2, off - QS[0]) if c < 4 else (vAW + 1, off - WV0)
            tr2(WF + (n % 3)*8 + part*4, base, off, f'f{n}')
    def m16(d, b, first): a(f'v_mfma_f32_16x16x32_bf16 {vr(d,4)}, {vr(SEL,4)}, {b}, {"0" if first else vr(d,4)}')
    def hilo(ca, cs): return [f'v_cvt_pk_bf16_f32 v{ca}, v{cs}, v{cs}', f'v_and_b32 v{ca}, s36, v{ca}', f'v_sub_f32 v{ca}, v{cs}, v{ca}', f'v_cvt_pk_bf16_f32 v{ca}, v{cs}, v{ca}']
    fl = []
    fl += [(24, x) for x in [f'v_mul_f32 v{MA}, s38, v{MA}'] + hilo(CAV, CSV)[:2] + [f'v_cvt_pk_bf16_f32 v{MA+1}, v{MA}, v{MA}'] + hilo(CAV, CSV)[2:] + [f'v_cndmask_b32 v{CB}, 0, v{MA+1}, s[64:65]']]
    fl += [(25, f'v_mfma_f32_32x32x16_bf16 {vr(ACV,16)}, {vr(CAV,4)}, {vr(CB,4)}, {vr(ACV,16)}')]
    fl += [(27, f'v_cvt_pk_bf16_f32 v{PV+i}, v{ACV+2*i}, v{ACV+2*i+1}') for i in range(8)]
    fl += [(28, f'buffer_store_dwordx4 {vr(PV+4*k,4)}, v{vL16}, {SWS}, {sVst} offen offset:{k*1024}') for k in range(2)]
    fl += [(33, 's_waitcnt vmcnt(0)'), (33, 'FLAGV')]
    def fill(n, k):
        while k > 0 and fl and fl[0][0] <= n:
            x = fl.pop(0)[1]; k -= 1
            if x == 'FLAGV': a.vm = []; flag(a, sOwn, sFV, sFast, 4, ''); stamp(a, 'vpub')
            else: a(x)
    a('s_barrier')
    stamp(a, 'mm0')
    for n in range(2): pre(n, 0)
    for n in range(48):
        bar = (n & 7) == 7 and n < 47
        if bar:
            if n == 23: a(f'v_xor_b32 v4, 32, v{vRes}\nds_read_b128 {vr(RAW,4)}, v{vRes}\nds_read_b128 {vr(RAW+4,4)}, v4', tag='raw'); a.wait(lg='raw')
            a('s_barrier')
            stamp(a, f'b{(n+1)>>3}')
            pre(n + 1, 0); pre(n + 1, 1)
        a.wait(lg=f'f{n}')
        wf = lambda P: vr(WF + (n % 3)*8 + P*4, 4)
        nx = n + 2 if (n & 7) != 6 else None
        if n < 24:
            a(f'v_mfma_f32_32x32x16_bf16 {vr(ACV,16)}, {wf(0)}, {vr(XF+4*n,4)}, {"0" if n == 0 else vr(ACV,16)}')
            if nx: pre(nx, 0)
            m16(CSV, wf(0), n == 0)
            if nx: pre(nx, 1)
            m16(MA, vr(XF+4*n, 4), n == 0)
        else:
            ks = n - 24
            main = lambda P: a(f'v_mfma_f32_32x32x16_bf16 {vr(ACC+16*P,16)}, {wf(P)}, {vr(XF+4*ks,4)}, {"0" if ks == 0 else vr(ACC+16*P,16)}')
            if ks < 23:
                for P in range(2):
                    main(P)
                    if nx: pre(nx, P)
                    fill(n, 3)
                    m16(CS + 4*P, wf(P), ks == 0)
            else:
                for P in range(2): m16(CS + 4*P, wf(P), False)
                main(0); main(1)
                h0, h1 = hilo(CA, CS), hilo(CA + 4, CS + 4)
                for x, y in zip(h0, h1): a(x); a(y)
                for P in range(2): a(f'v_mfma_f32_32x32x16_bf16 {vr(ACC+16*P,16)}, {vr(CA+4*P,4)}, {vr(CB,4)}, {vr(ACC+16*P,16)}')
    assert not fl
    stamp(a, 'mmend')
    PQ, PK, SC, SS, SQ = 32, 40, 64, 96, 100
    a(f'v_mov_b32 v{SQ}, 0\nv_mov_b32 v{SQ+1}, 0')
    for P, d in ((0, PQ), (1, PK)):
        for i in range(8): a(f'v_cvt_pk_bf16_f32 v{d+i}, v{ACC+16*P+2*i}, v{ACC+16*P+2*i+1}')
    a(f'v_mfma_f32_32x32x16_bf16 {vr(SC,16)}, {vr(PK,4)}, {vr(PQ,4)}, 0')
    a(f'v_mfma_f32_32x32x16_bf16 {vr(SC,16)}, {vr(PK+4,4)}, {vr(PQ+4,4)}, {vr(SC,16)}')
    RES = 80
    for d in range(4): a(f'v_lshlrev_b32 v{RES+2*d}, 16, v{RAW+d}\nv_and_b32 v{RES+2*d+1}, s36, v{RAW+d}')
    for e in range(4): a(f'v_cndmask_b32 v{SC+e}, v{SC+e}, v{SC+4+e}, s[66:67]\nv_cndmask_b32 v{SC+8+e}, v{SC+8+e}, v{SC+12+e}, s[66:67]')
    for e in range(4): a(f'v_cndmask_b32 v{SS+e}, v{SC+e}, v{SC+8+e}, s[68:69]')
    a(f'buffer_store_dwordx4 {vr(SS,4)}, v{vSst}, {SWS}, {sSst} offen')
    stamp(a, 'stored')
    ND0 = opt('nd0', 64)
    for i in range(ND0): a(f'v_dot2c_f32_bf16 v{SQ+(i&1)}, v{XF+i}, v{XF+i}')
    a.wait_all(lg=False)
    flag(a, sOwn, sFS1, sFast, 4, '')
    stamp(a, 'flag')
    for i in range(ND0, 96): a(f'v_dot2c_f32_bf16 v{SQ+(i&1)}, v{XF+i}, v{XF+i}')
    a(f"""s_mov_b32 s37, {fbits(1e-5)}
    v_mul_f32 v{SQ+2}, v{MA}, v{MA}
    v_add_u32 v5, 4, v{vBS}
    v_add_f32 v{SQ}, v{SQ}, v{SQ+1}
    v_mov_b32 v{SQ+1}, v{SQ}
    v_add_u32 v6, 8, v{vBS}
    v_add_u32 v7, 12, v{vBS}
    v_permlane32_swap_b32 v{SQ}, v{SQ+1}
    v_add_f32 v{SQ}, v{SQ}, v{SQ+1}
    v_fma_f32 v{SQ}, -v{SQ}, s38, -v{SQ+2}
    v_max_f32 v{SQ}, 0, v{SQ}
    v_add_f32 v{SQ}, s37, v{SQ}
    v_rsq_f32 v{SQ}, v{SQ}""")
    a(f'ds_bpermute_b32 v{RR+4}, v{vBP}, v{SQ}\nds_bpermute_b32 v{RR}, v{vBS}, v{SQ}', tag='bp')
    for e in range(1, 4): a(f'ds_bpermute_b32 v{RR+e}, v{4+e}, v{SQ}', tag='bp')
    for d in range(4, 8): a(f'v_lshlrev_b32 v{RES+2*d}, 16, v{RAW+d}\nv_and_b32 v{RES+2*d+1}, s36, v{RAW+d}')
    a.wait(lg='bp')
    a(f'v_mul_f32 v{RR+4}, {fbits(SCALE2)}, v{RR+4}')
    def repubA():
        a(f's_add_u32 s34, {sSst}, {SLOW}\nbuffer_store_dwordx4 {vr(SS,4)}, v{vSst}, {SWS}, s34 offen sc0 sc1\ns_add_u32 s34, {sVst}, {SLOW}')
        for k in range(2): a(f'buffer_store_dwordx4 {vr(PV+4*k,4)}, v{vL16}, {SWS}, s34 offen offset:{k*1024} sc0 sc1')
    Y, VR, OR_ = 64, 160, 184
    SPR = [128, 132, 136, 140, 144, 112, 116, 96, 100, 124, 148, 152]
    def yrd(ks):
        a(f'ds_read_b128 {vr(VR+4*(ks%6),4)}, v{vVr} offset:{ks*1024}', tag=f'y{ks}')
        tr2(OR_ + 4*(ks%6), vAW, ks*2048, f'y{ks}')
    def ystep(ks):
        a.wait(lg=f'y{ks}')
        a(f'v_mfma_f32_32x32x16_bf16 {vr(Y,16)}, {vr(VR+4*(ks%6),4)}, {vr(OR_+4*(ks%6),4)}, {"0" if ks == 0 else vr(Y,16)}')
        if ks + 4 < 24: yrd(ks + 4)
    NY0 = opt('ny0', 8)
    if NY0:
        a('s_barrier')
        stamp(a, 'by')
        for ks in range(4): yrd(ks)
        for ks in range(NY0): ystep(ks)
    lsync(a, 12, False, sFS1, sFA2, sOwn, repubA, 32)
    stamp(a, 'synced')
    a(f's_add_u32 {sSld}, {sSld}, {sDelta}')
    for i in range(12):
        if i and i % 2 == 0: a(f's_add_u32 {sSld}, {sSld}, 4096')
        a(f'buffer_load_dwordx4 {vr(SPR[i],4)}, v{vL16}, {SWS}, {sSld} offen offset:{(i&1)*2048} sc1', tag=f's{i}')
        if NY0 and i % 2 == 1 and i >= 3: ystep(NY0); NY0 += 1
    if not NY0:
        a('s_barrier')
        stamp(a, 'by')
        for ks in range(4): yrd(ks)
    S0 = SPR[0]; T0 = SPR[1]
    sm = []
    for i in range(1, 12):
        sm.append(('w', f's{i}'))
        for d in range(4): sm.append(f'v_add_f32 v{S0+d}, v{S0+d}, v{SPR[i]+d}')
    for d in range(4): sm.append(f'v_mul_f32 v{S0+d}, v{S0+d}, v{RR+d}')
    sm += [f'v_max_f32 v{T0}, v{S0}, v{S0+1}', f'v_max3_f32 v{T0}, v{T0}, v{S0+2}, v{S0+3}', f'v_mov_b32 v{T0+1}, v{T0}', 's_mov_b32 s64, 0x11111111', 's_mov_b32 s65, 0x11111111',
           f'v_permlane32_swap_b32 v{T0}, v{T0+1}', f'v_max_f32 v{T0}, v{T0}, v{T0+1}', f'v_mul_f32 v{T0}, v{RR+4}, v{T0}']
    for d in range(4): sm.append(f'v_fma_f32 v{S0+d}, v{S0+d}, v{RR+4}, -v{T0}')
    for d in range(4): sm.append(f'v_exp_f32 v{S0+d}, v{S0+d}')
    sm += [f'v_add_f32 v{T0}, v{S0}, v{S0+1}', f'v_add_f32 v{T0+1}, v{S0+2}, v{S0+3}', f'v_add_f32 v{T0}, v{T0}, v{T0+1}', f'v_mov_b32 v{T0+1}, v{T0}']
    sm += [f'v_mul_f32 v{S0+d}, v{S0+d}, v{RR+d}' for d in range(2)] + [f'v_permlane32_swap_b32 v{T0}, v{T0+1}', f'v_add_f32 v{T0}, v{T0}, v{T0+1}', f'v_rcp_f32 v{T0}, v{T0}']
    sm += [f'v_mul_f32 v{S0+d}, v{S0+d}, v{RR+d}' for d in range(2, 4)]
    for d in range(4): sm.append(f'v_mul_f32 v{S0+d}, v{S0+d}, v{T0}')
    PB, YP, XO, S2 = 208, 216, 224, 232
    sm += [f'v_cvt_pk_bf16_f32 v{T0}, v{S0}, v{S0+1}', f'v_cvt_pk_bf16_f32 v{T0+1}, v{S0+2}, v{S0+3}']
    for b in range(4):
        sm += [f'v_cndmask_b32 v{PB+2*b}, 0, v{T0}, s[64:65]', f'v_cndmask_b32 v{PB+2*b+1}, 0, v{T0+1}, s[64:65]']
        if b < 3: sm.append('s_lshl_b64 s[64:65], s[64:65], 1')
    sm += [f'v_mov_b32 v{S2}, 0', f'v_mov_b32 v{S2+1}, 0', 's_mov_b32 s36, 0x3f803f80']
    def drain(n):
        while n > 0 and sm:
            x = sm.pop(0)
            if isinstance(x, tuple): a.wait(vm=x[1])
            else: a(x); n -= 1
    for ks in range(NY0, 24):
        ystep(ks)
        drain(opt('smn', 5))
    drain(1000)
    stamp(a, 'ygemm')
    for i in range(8): a(f'v_cvt_pk_bf16_f32 v{YP+i}, v{Y+2*i}, v{Y+2*i+1}')
    for k in range(2): a(f'v_mfma_f32_32x32x16_bf16 {vr(RES,16)}, {vr(YP+4*k,4)}, {vr(PB+4*k,4)}, {vr(RES,16)}')
    for i in range(8): a(f'v_cvt_pk_bf16_f32 v{XO+i}, v{RES+2*i}, v{RES+2*i+1}')
    a(f'buffer_store_dwordx4 {vr(XO,4)}, v{vX1}, {SWS}, {sX1} offen {WT}')
    a(f'buffer_store_dwordx4 {vr(XO+4,4)}, v{vX1}, {SWS}, {sX1} offen offset:512 {WT}')
    for i in range(8): a(f'v_dot2c_f32_bf16 v{S2}, s36, v{XO+i}\nv_dot2c_f32_bf16 v{S2+1}, v{XO+i}, v{XO+i}')
    a(f"""v_mov_b32 v{S2+2}, v{S2}
    v_mov_b32 v{S2+3}, v{S2+1}
    v_permlane32_swap_b32 v{S2}, v{S2+2}
    v_permlane32_swap_b32 v{S2+1}, v{S2+3}
    v_add_f32 v{S2}, v{S2}, v{S2+2}
    v_add_f32 v{S2+1}, v{S2+1}, v{S2+3}
    s_mov_b32 exec_hi, 0
    buffer_store_dwordx2 {vr(S2,2)}, v{vST}, {SWS}, {sST} offen {WT}
    s_mov_b32 exec_hi, -1
    s_mov_b32 s34, {GX}""")
    stamp(a, 'x1st')
    a.wait_all()
    a('s_barrier')
    flag_w0(a, sGX, 's34', 4)
    stamp(a, 'x1pub')
    a('s_branch P2_c')
    a.label('A_ld'); a.vm = []; a.lg = []
    vW, vXs, vO = 32, 38, 40
    sRx = ['s62', 's63', 's64', 's65', 's66', 's67']
    a(f"""s_mov_b32 s35, 196608
    v_mul_lo_u32 v{vXs}, v{T8}, s35
    v_lshrrev_b32 v4, 1, v{T8}
    v_xor_b32 v4, v4, v{G8}
    v_lshl_add_u32 v{vXs}, v4, 4, v{vXs}
    v_xor_b32 v{vXs+1}, 64, v{vXs}
    v_add_u32 v{vXs+1}, 768, v{vXs+1}
    s_lshl_b32 s34, {sG}, 3
    s_lshl_b32 s35, {sW}, 1
    s_add_u32 s34, s34, s35
    s_mul_i32 {sX}, s34, 768
    v_lshlrev_b32 v4, 1, v{T8}
    v_and_b32 v4, 4, v4
    v_xor_b32 v4, v4, v{G8}
    v_mul_u32_u24 v{vW}, 2304, v{T8}
    v_lshl_add_u32 v{vW}, v4, 4, v{vW}
    v_mul_u32_u24 v{vO}, 768, v{T8}
    v_lshl_add_u32 v{vO}, v4, 4, v{vO}
    s_mul_i32 s68, {sW}, {16*2304}
    s_lshl_b32 s34, {sJ}, 7
    s_add_u32 s68, s68, s34""")
    for k in range(1, 6): a(f'v_add_u32 v{vW+k}, {(k>>1)*768 + (k&1)*18432}, v{vW}')
    for i in range(6):
        if ROT:
            a(f's_lshl_b32 s34, s3, 7\ns_add_u32 {sRx[i]}, s34, {sX}\ns_mul_i32 s34, s3, 147456\ns_add_u32 {sR[i]}, s34, s68')
            if i < 5: a('s_add_u32 s3, s3, 1\ns_cmp_ge_u32 s3, 6\ns_cselect_b32 s3, 0, s3')
        else: a(f's_add_u32 {sR[i]}, s68, {i*147456}\ns_add_u32 {sRx[i]}, {sX}, {i*128}')
    a(f's_mov_b32 s34, {WE}\ns_waitcnt lgkmcnt(0)\ns_load_dword {sTag}, s[32:33], s34')
    srd(a, 4, 20, 1572864); srd(a, 8, 22, 884736)
    def d1(c):
        for th in range(2):
            a(f's_add_u32 m0, {sM}, {XS(c) + th*1024}\nbuffer_load_dwordx4 v{vXs+th}, {SX}, {sRx[c]} offen lds', tag=f'g{c>>1}')
            a(f's_add_u32 m0, {sM}, {WV0 + c*8192 + th*1024}\nbuffer_load_dwordx4 v{vW+4+th}, {SWQ}, {sR[c]} offen lds', tag=f'g{c>>1}')
    def d2(c):
        for k in range(4):
            a(f's_add_u32 m0, {sM}, {QS[c] + (k>>1)*8192 + (k&1)*1024}\nbuffer_load_dwordx4 v{vW+k}, {SWQ}, {sR[c]} offen lds', tag=f'g{3+(c>>1)}')
    def wo(u):
        for i in range(4*u, 4*u + 4):
            a(f's_add_u32 m0, {sM1K}, {WOL + i*4096}\n' + (f's_add_u32 s68, s68, 24576\n' if i else '') + f'buffer_load_dwordx4 v{vO}, {SWO}, s68 offen lds')
    units = [lambda c=c: d1(c) for c in range(6)] + [lambda c=c: d2(c) for c in range(6)] + [lambda u=u: wo(u) for u in range(3)]
    NU0 = opt('nu0', 5)
    for u in range(NU0):
        units.pop(0)()
        if u == 1: srd(a, 16, 32, WS_SIZE); srd(a, 24, 38, 1572864); srd(a, 12, 28, 294912)
    a(f"""s_mul_i32 s68, {sW}, 6144
    s_lshl_b32 s34, {sJ}, 7
    s_add_u32 s68, s68, s34
    s_lshl_b32 s34, {sG}, 7
    s_add_u32 s20, s34, {FV1}
    s_add_u32 s21, s34, {FA2}
    s_mul_i32 s69, {sG}, 49152
    s_mul_i32 s34, {sW}, 12288
    s_add_u32 s69, s69, s34
    s_add_u32 s22, s34, {VL}
    s_waitcnt lgkmcnt(0)""")
    tag_ready(a)
    done = NU0
    for g in range(6):
        a.wait(vm=f'g{g}')
        if g in (0, 2, 3, 5): stamp(a, f'L{g}')
        a('s_barrier')
        lim = {0: 10, 1: 10, 2: 11}.get(g, 15)
        for _ in range(2 if g < 4 else 3):
            if units and done < lim: units.pop(0)(); done += 1
    assert not units
    lsync(a, 24, False, 's20', 's21', None, None, 42)
    stamp(a, 'Lvf')
    a(f's_add_u32 s69, s69, {sDelta}')
    for i in range(12):
        if i % 4 == 0: a(f's_add_u32 m0, s22, {i*1024}' + ('\ns_add_u32 s69, s69, 4096' if i else ''))
        a(f'buffer_load_dwordx4 v{vL16}, {SWS}, s69 offen offset:{(i&3)*1024} sc1 lds')
    a.wait_all()
    stamp(a, 'Lv')
    a(f's_barrier\ns_cmp_lg_u32 {sW}, 1\ns_cbranch_scc1 A_ld3')
    wfetch(a)
    a.label('A_ld3')
    a('s_barrier\ns_branch P2_l')
    a.label('K_pre'); a.vm = []; a.lg = []
    sS8, sIt, sJt, sA, sB, sMm, sT0, sLA, sLB = 's50', 's51', 's52', 's53', 's54', 's55', 's56', 's57', 's58'
    a(f'''s_mov_b32 {sS8}, {sI}
    s_mov_b32 s34, {WE}
    s_and_b32 s59, {sXCD}, 1
    s_lshr_b32 s60, {sXCD}, 1
    s_mul_i32 s35, s60, 9
    s_mul_i32 s61, s59, 5
    s_add_u32 s35, s35, s61
    s_add_u32 s35, s35, {sS8}
    s_mul_i32 s61, s35, 43
    s_lshr_b32 s61, s61, 8
    s_mul_i32 s62, s61, 6
    s_sub_u32 {sJt}, s35, s62
    s_cmp_ge_u32 s61, 3
    s_cselect_b32 {sMm}, 1, 0
    s_mul_i32 s62, {sMm}, 3
    s_sub_u32 {sIt}, s61, s62
    s_add_u32 s62, {sS8}, s59
    s_cmp_ge_u32 s62, 5
    s_cselect_b32 {sMm}, 3, {sMm}''')
    a(f'''s_waitcnt lgkmcnt(0)
    s_load_dword {sTag}, s[32:33], s34''')
    srd(a, 16, 32, WS_SIZE); srd(a, 24, 38, 1572864)
    a(f'''s_cmp_eq_u32 {sMm}, 3
    s_cbranch_scc1 W_done
    s_cmp_lg_u32 {sRole}, 0
    s_cbranch_scc1 W_ld''')
    BB = 98304
    FA, FB, AC = 32, 48, 128
    vAr, vBr = 14, 18
    a(f'''v_and_b32 v2, 31, v1
    v_lshrrev_b32 v3, 5, v1
    v_and_b32 v4, 19, v2
    v_bfe_u32 v5, v2, 2, 1
    v_lshl_add_u32 v4, v5, 3, v4
    v_bfe_u32 v5, v2, 3, 1
    v_lshl_add_u32 v4, v5, 2, v4
    v_lshrrev_b32 v5, 3, v4
    v_mul_u32_u24 v5, 6144, v5
    v_and_b32 v6, 7, v4
    v_lshl_add_u32 v5, v6, 7, v5
    v_bfe_u32 v6, v4, 1, 3
    v_xor_b32 v6, v6, v3
    v_lshl_add_u32 v11, v6, 4, v5
    v_bfe_u32 v6, v1, 2, 2
    v_lshl_add_u32 v4, v3, 3, v6
    v_lshlrev_b32 v4, 7, v4
    v_lshrrev_b32 v7, 1, v6
    v_lshl_add_u32 v4, v7, 6, v4
    v_bfe_u32 v7, v1, 4, 1
    v_lshl_add_u32 v12, v7, 5, v4
    s_mov_b32 s37, 0x3f803f80''')
    def a_addr(swave):
        a(f's_mul_i32 s34, {swave}, 24576\nv_add_u32 v{vAr}, s34, v11')
        for k in range(1, 4): a(f'v_xor_b32 v{vAr+k}, {32*k}, v{vAr}')
    def stages(nv, breads):
        for jj in range(6):
            a('s_barrier')
            for k4 in range(4):
                a(f'ds_read_b128 {vr(FA+4*k4,4)}, v{vAr+k4} offset:{jj*1024}', tag=f'r{k4}')
                for v in range(nv): breads(jj, k4, v, FB + (k4*2+v)*4)
            for k4 in range(4):
                a.wait(lg=f'r{k4}')
                for v in range(nv):
                    cin = '0' if (jj == 0 and k4 == 0) else vr(AC+16*v, 16)
                    a(f'v_mfma_f32_32x32x16_bf16 {vr(AC+16*v,16)}, {vr(FA+4*k4,4)}, {vr(FB+(k4*2+v)*4,4)}, {cin}')
    def btr(jj, k4, v, d):
        o = jj*8192 + k4*2048
        a(f'ds_read_b64_tr_b16 {vr(d,2)}, v{vBr+v} offset:{o}\nds_read_b64_tr_b16 {vr(d+2,2)}, v{vBr+v} offset:{o+512}', tag=f'r{k4}')
    def brow(jj, k4, v, d): a(f'ds_read_b128 {vr(d,4)}, v{vBr+k4} offset:{v*24576+jj*1024}', tag=f'r{k4}')
    def colsum(v, src, dst):
        a(f'v_mov_b32 v24, 0')
        for i in range(8): a(f'v_dot2c_f32_bf16 v24, s37, v{src+i}')
        a(f'''v_mov_b32 v26, v24
        v_permlane32_swap_b32 v24, v26
        v_add_f32 v26, v26, v24
        v_cvt_pk_bf16_f32 v27, v26, v26
        v_lshlrev_b32 v27, 16, v27
        v_sub_f32 v27, v26, v27
        v_cvt_pk_bf16_f32 v{dst}, v26, v27''')
    a_addr(sW)
    a(f's_cmp_eq_u32 {sMm}, 1\ns_cbranch_scc1 W_c1')
    a(f'''v_lshrrev_b32 v5, 3, v2
    v_mul_u32_u24 v5, 6144, v5
    v_and_b32 v6, 7, v2
    v_lshl_add_u32 v5, v6, 7, v5
    v_bfe_u32 v6, v2, 1, 3
    v_xor_b32 v6, v6, v3
    v_lshl_add_u32 v5, v6, 4, v5
    v_add_u32 v{vBr}, {BB}, v5''')
    for k in range(1, 4): a(f'v_xor_b32 v{vBr+k}, {32*k}, v{vBr}')
    stages(2, brow)
    a('s_branch W_c2')
    a.label('W_c1'); a.lg = []
    a(f'''v_and_b32 v7, 3, v1
    v_lshl_add_u32 v4, v7, 3, v12
    v_add_u32 v{vBr}, {BB}, v4
    v_xor_b32 v{vBr+1}, 64, v{vBr}''')
    stages(2, btr)
    a.label('W_c2')
    a(f'''s_mul_i32 s34, {sMm}, 24
    s_lshl_b32 s35, {sJt}, 2
    s_add_u32 s34, s34, s35
    v_bfe_u32 v4, v1, 4, 1
    v_add_u32 v4, s34, v4
    v_and_b32 v7, 15, v1
    v_lshlrev_b32 v7, 4, v7
    s_lshl_b32 s35, {sIt}, 2
    s_add_u32 s35, s35, {sW}
    s_mul_i32 s35, s35, 3072
    s_add_u32 s35, s35, {WS_W}
    s_lshl_b32 s36, {sIt}, 8
    s_lshl_b32 s34, {sW}, 2
    s_add_u32 s36, s36, s34
    s_add_u32 s36, s36, {WS_W + 12*3072}''')
    for v in range(2):
        a(f'''v_add_u32 v5, {2*v}, v4
        v_mul_u32_u24 v6, 43, v5
        v_lshrrev_b32 v6, 7, v6
        v_mul_u32_u24 v8, 3, v6
        v_sub_u32 v5, v5, v8
        v_mul_u32_u24 v6, 39936, v6
        v_lshl_add_u32 v6, v5, 10, v6
        v_add_u32 v{20+v}, v6, v7
        v_lshl_add_u32 v{22+v}, v3, 8, v{20+v}''')
        for i in range(8): a(f'v_cvt_pk_bf16_f32 v{32+8*v+i}, v{AC+16*v+2*i}, v{AC+16*v+2*i+1}')
        a(f'buffer_store_dwordx4 {vr(32+8*v,4)}, v{22+v}, {SWS}, s35 offen {WT}')
        a(f'buffer_store_dwordx4 {vr(36+8*v,4)}, v{22+v}, {SWS}, s35 offen offset:512 {WT}')
        colsum(v, 32+8*v, 28+v)
    a('s_mov_b32 exec_hi, 0')
    for v in range(2): a(f'buffer_store_dword v{28+v}, v{20+v}, {SWS}, s36 offen {WT}')
    a('s_mov_b32 exec_hi, -1')
    a('s_branch W_done')
    a.label('W_ld'); a.vm = []; a.lg = []
    vA0, vBo = 12, 14
    a(f'''v_lshrrev_b32 v4, 1, v{T8}
    v_xor_b32 v4, v4, v{G8}
    v_mul_u32_u24 v5, 2304, v{T8}
    v_lshl_add_u32 v{vA0}, v4, 4, v5
    v_xor_b32 v{vA0+1}, 64, v{vA0}
    v_lshlrev_b32 v4, 1, v{T8}
    v_and_b32 v4, 4, v4
    v_xor_b32 v4, v4, v{G8}
    v_mul_u32_u24 v5, 768, v{T8}
    v_lshl_add_u32 v{vBo}, v4, 4, v5''')
    def lstages(nra, mode):
        def issue(jj):
            for r in range(nra):
                a(f'''s_add_u32 {sT0}, {sA}, {r*8*2304 + jj*128}
                s_add_u32 m0, {sLA}, {(r*6+jj)*1024}
                buffer_load_dwordx4 v{vA0+(r&1)}, {SWQ}, {sT0} offen lds''', tag=f'p{jj}')
            for r in range(2):
                if mode == 0:
                    a(f'''s_add_u32 {sT0}, {sB}, {r*8*2304 + jj*128}
                    s_add_u32 m0, {sLB}, {BB + (r*6+jj)*1024}
                    buffer_load_dwordx4 v{vA0+r}, {SWQ}, {sT0} offen lds''', tag=f'p{jj}')
                else:
                    a(f'''s_add_u32 {sT0}, {sB}, {(jj*64 + r*8)*768}
                    s_add_u32 m0, {sLB}, {BB + jj*8192 + r*1024}
                    buffer_load_dwordx4 v{vBo}, {SWO}, {sT0} offen lds''', tag=f'p{jj}')
        n0 = opt('pn0', 3)
        for jj in range(n0): issue(jj)
        for jj in range(6):
            a.wait(vm=f'p{jj}')
            if jj in (0, 3, 5) and nra == 3: stamp(a, f'Lp{jj}')
            a('s_barrier')
            if jj + n0 < 6: issue(jj + n0)
    srd(a, 8, 30, 884736); srd(a, 12, 36, 294912)
    a(f'''s_lshl_b32 s34, {sIt}, 2
    s_add_u32 s34, s34, {sW}
    s_mul_i32 {sA}, s34, {32*2304}
    s_mul_i32 s35, {sMm}, 1536
    s_add_u32 {sA}, {sA}, s35
    s_mul_i32 {sLA}, {sW}, 24576
    s_cmp_eq_u32 {sMm}, 1
    s_cbranch_scc1 W_l1
    s_lshl_b32 s34, {sJt}, 2
    s_add_u32 s34, s34, {sW}
    s_mul_i32 {sB}, s34, {16*2304}
    s_add_u32 {sB}, {sB}, 768
    s_mul_i32 {sLB}, {sW}, 12288''')
    lstages(4, 0)
    a('s_branch W_done')
    a.label('W_l1'); a.vm = []
    a(f'''s_mul_i32 {sB}, {sW}, {16*768}
    s_lshl_b32 s34, {sJt}, 7
    s_add_u32 {sB}, {sB}, s34
    s_lshl_b32 {sLB}, {sW}, 11''')
    lstages(4, 1)
    a.label('W_done'); a.vm = []; a.lg = []
    a.wait_all()
    tag_ready(a)
    a(f'''s_barrier
    s_cmp_lg_u32 {sRole}, 0
    s_cbranch_scc1 W_done3''')
    a(f'''
    s_lshl_b32 s34, {sS8}, 3
    s_add_u32 s34, s34, {sXCD}
    s_lshl_b32 s34, s34, 7
    s_mov_b32 s35, {GW}''')
    flag_w0(a, 's34', 's35', 4)
    stamp(a, 'wpub')
    hp_t0(a)
    def wd3():
        a.label('W_done3')
        a(f's_cmp_lg_u32 {sW}, 1\ns_cbranch_scc1 P2_l')
        wfetch(a)
        a('s_branch P2_l')
    TAIL.append(wd3)
    import v7b
    v7b.phase2(a, globals())
    a.label('K_end')
    a('s_endpgm')
    a.cond = True
    k = 0
    while k < len(TAIL): a.vm = []; a.lg = []; TAIL[k](); k += 1
    return a

KNAME = 'standalone__video_timesformer__vision_kernel'
if __name__ == '__main__':
    out = sys.argv[1]
    a = build()
    head = open('standalone__video_timesformer__vision.s.ref').read().split('; Override launch')[0]
    s = head + '; @launch grid=(256,1,1) block=(512,1,1) lds=163840\n.amdgcn_target "amdgcn-amd-amdhsa--gfx950"\n.text\n'
    s += f'.globl {KNAME}\n.p2align 8\n.type {KNAME},@function\n{KNAME}:\n' + a.text()
    s += f'''.fill 4096, 4, 0xbf800000
  s_endpgm
.section .rodata,"a"
.p2align 6
.amdhsa_kernel {KNAME}
  .amdhsa_next_free_vgpr 256
  .amdhsa_next_free_sgpr 102
  .amdhsa_accum_offset 256
  .amdhsa_group_segment_fixed_size 0
  .amdhsa_kernarg_size 64
  .amdhsa_user_sgpr_count 2
  .amdhsa_user_sgpr_kernarg_segment_ptr 1
  .amdhsa_system_sgpr_workgroup_id_x 1
.end_amdhsa_kernel
'''
    open(out, 'w').write(s)
    if PROFILE: open(out + '.stamps', 'w').write(repr(St.names))
    print('instructions', sum(1 for i in a.ins if not i.label), 'pad states', a.pads)
```

```python
def phase2(a, G):
    globals().update({k: v for k, v in G.items() if not k.startswith('__')})
    sT = sXCD
    sRH, sS, sQT, sCH, sT0, sT1 = 's50', 's51', 's52', 's53', 's54', 's55'
    sK, sSt1, sSt2, sQ, sVP, sOut, sF1, sF2, sOwn, sE8, sRs = 's56', 's57', 's58', 's59', 's60', 's61', 's62', 's63', 's64', 's65', 's66'
    LW, LT, LQ, LP, LML, LO = 0, 40960, 49152, 0, 71680, 73728
    vWa, vWb = 116, 117
    vL16, vW12, vTb, vA, vB, vSt = 10, 11, 12, 15, 9, 8
    RD, MF = 16, 24
    KF, SR = 160, 120
    def common(role):
        a(f'''s_lshr_b32 {sRH}, {sI}, 4
        s_and_b32 {sS}, {sI}, 15
        s_lshr_b32 {sQT}, {sI}, 1
        s_and_b32 {sCH}, {sI}, 1
        s_xor_b32 s34, {sRH}, {role}
        s_lshl_b32 {sE8}, {sW}, 1
        s_add_u32 {sE8}, {sE8}, s34
        s_lshl_b32 s34, s34, 2
        s_add_u32 s34, s34, {sW}
        s_mul_i32 {sK}, s34, 24576
        s_mul_i32 s35, {sT}, 196608
        s_add_u32 {sK}, {sK}, s35
        s_add_u32 {sK}, {sK}, {WS_X1}
        s_lshl_b32 s34, s34, 9
        s_mul_i32 s35, {sT}, 49152
        s_add_u32 s34, s34, s35
        s_add_u32 {sSt1}, s34, {WS_ST}
        s_lshl_b32 s34, {sT}, 9
        s_add_u32 {sF1}, s34, {FC1}
        s_add_u32 {sF2}, s34, {FC2}
        s_lshl_b32 s34, {sT}, 4
        s_add_u32 s34, s34, {sQT}
        s_mul_i32 {sQ}, s34, 13312
        s_add_u32 {sQ}, {sQ}, {WS_Q}
        v_lshrrev_b32 v2, 4, v1
        v_and_b32 v3, 15, v1
        v_lshrrev_b32 v4, 5, v1
        v_bfe_u32 v5, v1, 4, 1
        v_and_b32 v6, 31, v1
        v_lshlrev_b32 v{vSt}, 4, v6
        v_mul_u32_u24 v7, 24576, v4
        v_add_u32 v{vSt}, v{vSt}, v7
        v_cmp_eq_u32 vcc, 3, v2
        v_lshlrev_b32 v7, 4, v3
        v_cndmask_b32 v{vW12}, v{vL16}, v7, vcc
        s_add_u32 s34, {sM1K}, {LT + role*4096}
        v_lshl_add_u32 v{vTb}, v6, 2, s34
        v_lshl_add_u32 v{vTb+1}, v3, 2, s34
        v_lshl_add_u32 v{vTb+2}, v2, 4, s34''')
    def stats_load():
        for i in range(6):
            if i: a(f's_add_u32 {sSt1}, {sSt1}, 4096')
            a(f'buffer_load_dwordx4 {vr(SR+4*i,4)}, v{vSt}, {SWS}, {sSt1} offen sc1', tag='st')
    def stats_math(need_rt):
        a(f's_mov_b32 s36, {fbits(1/384)}\ns_mov_b32 s37, {fbits(1e-5)}')
        a.wait(vm='st')
        a(f'''v_pk_add_f32 {vr(SR,2)}, {vr(SR,2)}, {vr(SR+4,2)}
        v_pk_add_f32 {vr(SR+8,2)}, {vr(SR+8,2)}, {vr(SR+12,2)}
        v_pk_add_f32 {vr(SR+16,2)}, {vr(SR+16,2)}, {vr(SR+20,2)}
        v_pk_add_f32 {vr(SR,2)}, {vr(SR,2)}, {vr(SR+8,2)}
        v_pk_add_f32 {vr(SR,2)}, {vr(SR,2)}, {vr(SR+16,2)}
        v_mov_b32 v{SR+2}, v{SR}
        v_mov_b32 v{SR+3}, v{SR+1}
        v_permlane32_swap_b32 v{SR}, v{SR+2}
        v_permlane32_swap_b32 v{SR+1}, v{SR+3}
        v_pk_add_f32 {vr(SR,2)}, {vr(SR,2)}, {vr(SR+2,2)}
        v_mul_f32 v{SR}, s36, v{SR}
        v_mul_f32 v{SR+2}, v{SR}, v{SR}
        v_fma_f32 v{SR+1}, v{SR+1}, s36, -v{SR+2}
        v_max_f32 v{SR+1}, 0, v{SR+1}
        v_add_f32 v{SR+1}, s37, v{SR+1}
        v_rsq_f32 v{SR+1}, v{SR+1}
        v_cvt_pk_bf16_f32 v{SR}, -v{SR}, -v{SR}
        v_cmp_eq_u32 vcc, 3, v2
        ds_write_b32 v{vTb}, v{SR}
        ds_write_b32 v{vTb}, v{SR+1} offset:128''')
        a(f'ds_read2_b32 {vr(SR+4,2)}, v{vTb+1} offset0:0 offset1:16', tag='t')
        if need_rt: a(f'ds_read2_b32 {vr(RT,2)}, v{vTb+1} offset0:32 offset1:48', tag='t')
        for t in range(2): a(f'ds_read_b128 {vr(RD+4*t,4)}, v{vTb+2} offset:{128+64*t}', tag='t')
        a.wait(lg='t')
        for t in range(2):
            a(f'v_cndmask_b32 v{MF+4*t}, v{SR+4+t}, 0, vcc')
            for d in range(1, 4): a(f'v_mov_b32 v{MF+4*t+d}, v{MF+4*t}')
    def kld(t, ks):
        off = t*12288 + ks*1024
        a(f's_add_u32 {sT0}, {sK}, {off & ~4095}\nbuffer_load_dwordx4 {vr(KF+(t*12+ks)*4,4)}, v{vL16}, {SWS}, {sT0} offen offset:{off & 4095} sc1', tag=f'k{t}_{ks}')
    QF, SA, VF, RT = 32, 56, 64, 6
    vP, vML, vMLr = 13, 14, 12
    M_, T_ = 4, 5
    def attn_addr(role):
        a(f'''s_lshl_b32 s34, {sE8}, 10
        s_add_u32 s34, s34, {LP}
        v_add_u32 v{vP}, s34, v{vL16}
        s_lshl_b32 s34, {sE8}, 2
        s_add_u32 s34, s34, {LML}
        v_lshl_add_u32 v{vML}, v3, 5, s34
        v_lshlrev_b32 v{vMLr}, 5, v3
        v_add_u32 v{vMLr}, {LML}, v{vMLr}''')
    def scores(fill):
        def qrd(ks): a(f'ds_read_b128 {vr(QF+4*(ks%6),4)}, v{vL16 if ks < 12 else vW12} offset:{LQ + ks*1024}', tag=f'q{ks}')
        for ks in range(5): qrd(ks)
        for ks in range(13):
            a.wait(lg=f'q{ks}')
            for t in range(2):
                kf = vr(KF+(t*12+ks)*4, 4) if ks < 12 else vr(MF+4*t, 4)
                d = vr(SA+4*t, 4)
                a(f'v_mfma_f32_16x16x32_bf16 {d}, {kf}, {vr(QF+4*(ks%6),4)}, {"0" if ks == 0 else d}')
            if ks + 5 < 13: qrd(ks + 5)
            if ks % 2 == 1 or opt('vfast', 0): fill()
        for i in range(8): a(f'v_mul_f32 v{SA+i}, v{SA+i}, v{RD+i}')
        a(f'v_max3_f32 v{M_}, v{SA}, v{SA+1}, v{SA+2}\nv_max3_f32 v{T_}, v{SA+3}, v{SA+4}, v{SA+5}\nv_max3_f32 v{M_}, v{M_}, v{SA+6}, v{SA+7}\nv_max_f32 v{M_}, v{M_}, v{T_}')
        for sw in ('v_permlane16_swap_b32', 'v_permlane32_swap_b32'):
            a(f'v_mov_b32 v{T_}, v{M_}'); fill(); a(f'{sw} v{M_}, v{T_}\nv_max_f32 v{M_}, v{M_}, v{T_}')
        a(f's_mov_b64 exec, 0xffff\nds_write_b32 v{vML}, v{M_}\ns_mov_b64 exec, -1')
        fill()
        a('s_waitcnt lgkmcnt(0)'); a.lg = []
        a('s_barrier')
        a(f'ds_read_b128 {vr(QF,4)}, v{vMLr}\nds_read_b128 {vr(QF+4,4)}, v{vMLr} offset:16', tag='mx')
        fill(); fill()
        a.wait(lg='mx')
        a(f'v_max3_f32 v{M_}, v{QF}, v{QF+1}, v{QF+2}\nv_max3_f32 v{T_}, v{QF+3}, v{QF+4}, v{QF+5}\nv_max3_f32 v{M_}, v{M_}, v{QF+6}, v{QF+7}\nv_max_f32 v{M_}, v{M_}, v{T_}')
        for i in range(8): a(f'v_sub_f32 v{SA+i}, v{SA+i}, v{M_}')
        for i in range(8): a(f'v_exp_f32 v{SA+i}, v{SA+i}')
        for i in range(4): a(f'v_cvt_pk_bf16_f32 v{QF+i}, v{SA+2*i}, v{SA+2*i+1}')
        a(f'ds_write_b128 v{vP}, {vr(QF,4)}')
        for w_ in (4, 2, 1):
            for i in range(w_): a(f'v_add_f32 v{SA+i}, v{SA+i}, v{SA+i+w_}')
        for sw in ('v_permlane16_swap_b32', 'v_permlane32_swap_b32'):
            a(f'v_mov_b32 v{T_}, v{SA}'); fill(); a(f'{sw} v{SA}, v{T_}\nv_add_f32 v{SA}, v{SA}, v{T_}')
        a(f's_mov_b64 exec, 0xffff\nds_write_b32 v{vML}, v{SA} offset:512\ns_mov_b64 exec, -1')
        a('s_waitcnt lgkmcnt(0)'); a.lg = []
        a('s_barrier')
    a.label('P2_c'); a.vm = []; a.lg = []
    common(0)
    WF, ACC, PK = 32, 76, 100
    a(f'''v_lshlrev_b32 v7, 4, v3
    v_lshl_add_u32 v{vA}, v4, 8, v7
    v_lshl_add_u32 v{vA}, v5, 3, v{vA}
    v_mul_u32_u24 v{vB}, 13312, v5
    v_add_u32 v{vB}, v{vB}, v7
    s_lshr_b32 s34, {sS}, 2
    s_lshl_b32 s34, s34, 8
    v_mov_b32 v6, s34
    v_cmp_eq_u32 vcc, 1, v4
    v_mov_b32 v7, 512
    v_cndmask_b32 v6, v6, v7, vcc
    v_add_u32 v{vB}, v{vB}, v6
    s_lshl_b32 {sOwn}, {sI}, 4
    s_lshl_b32 s34, {sW}, 2
    s_add_u32 {sOwn}, {sOwn}, s34
    s_mul_i32 {sVP}, {sT}, 196608
    s_mul_i32 s35, {sQT}, 12288
    s_add_u32 {sRs}, {sVP}, s35
    s_mul_i32 s34, {sCH}, 6144
    s_add_u32 {sRs}, {sRs}, s34
    s_mul_i32 s34, {sW}, 1536
    s_add_u32 {sRs}, {sRs}, s34
    s_add_u32 {sRs}, {sRs}, {WS_X1}
    s_add_u32 {sOut}, {sVP}, s35
    s_mul_i32 s35, {sCH}, 384
    s_add_u32 {sOut}, {sOut}, s35
    s_mul_i32 s35, {sW}, 96
    s_add_u32 {sOut}, {sOut}, s35
    s_mul_i32 s34, {sE8}, 24576
    s_add_u32 s34, s34, {sVP}
    s_mul_i32 s35, {sS}, 3072
    s_add_u32 s34, s34, s35
    s_add_u32 s67, s34, {WS_VP - 8*3072}
    s_mul_i32 s35, {sCH}, 12288
    s_add_u32 {sVP}, {sVP}, s35
    s_mul_i32 s35, {sW}, 3072
    s_add_u32 {sVP}, {sVP}, s35
    s_add_u32 {sVP}, {sVP}, {WS_VP}
    s_lshl_b32 s34, {sT}, 4
    s_lshl_b32 s35, {sRH}, 3
    s_add_u32 s34, s34, s35
    s_lshl_b32 s35, {sW}, 1
    s_add_u32 s34, s34, s35
    s_mul_i32 s34, s34, 13312
    s_add_u32 s34, s34, {WS_Q}
    s_mul_i32 s35, {sS}, 1536
    s_add_u32 s68, s34, s35
    s_and_b32 s35, {sS}, 3
    s_lshl_b32 s35, s35, 2
    s_add_u32 s34, s34, s35
    s_add_u32 {sSt2}, s34, 12288''')
    if opt('touch', 1):
        Lt = a.newlabel('tc'); Lu = a.newlabel('tc')
        a(f's_cmp_ge_u32 {sS}, 8\ns_cbranch_scc1 {Lt}\ns_add_u32 s34, s68, 13312')
        for sb in ('s68', 's34'): a(f'buffer_load_dwordx4 v[64:67], v{vL16}, {SWS}, {sb} offen\ns_mov_b32 exec_hi, 0\nbuffer_load_dwordx4 v[64:67], v{vL16}, {SWS}, {sb} offen offset:1024\ns_mov_b32 exec_hi, -1')
        a(f's_branch {Lu}'); a.label(Lt)
        for u in range(3): a(f'buffer_load_dwordx4 v[64:67], v{vL16}, {SWS}, s67 offen offset:{u*1024}')
        a.label(Lu)
        a(f'v_lshlrev_b32 v6, 3, v1\nbuffer_load_dword v64, v6, {SWS}, {sF1} offen')
        a.vm = []
    a(f'v_add_u32 v{vWa}, {LW34}, v{vL16}\nv_add_u32 v{vWb}, {LW34}, v{vW12}')
    a('s_barrier')
    stamp(a, 'gsync')
    stats_load()
    AHEAD = opt('ahead', 5)
    for ks in range(AHEAD): kld(0, ks); kld(1, ks)
    def wrd(ks, u):
        a(f'ds_read_b128 {vr(WF + (ks%2)*12 + 4*u,4)}, v{vWa if ks < 12 else vWb} offset:{(ks*3+u)*1024}', tag=f'f{ks}_{u}')
    L = a.newlabel('be')
    a(f's_or_b32 s34, {sW}, s2\ns_cmp_lg_u32 s34, 0\ns_cbranch_scc1 {L}')
    a.cond = True; a(f's_mov_b32 s34, {WE}'); flag(a, '0', 's34', sTag, 6, 'sc0 sc1'); a.vm.pop(); a.cond = False
    a.label(L)
    stats_math(True)
    a(f'v_mul_f32 v{RT}, {fbits(SCALE2)}, v{RT}\nv_mul_f32 v{RT+1}, {fbits(SCALE2)}, v{RT+1}')
    stamp(a, 'mm2')
    a(f's_cmp_ge_u32 {sS}, 8\ns_cbranch_scc1 P2_v')
    for var in range(2):
        if var == 0: vmsave, lgsave = list(a.vm), list(a.lg)
        else: a.label('P2_v'); a.vm, a.lg = list(vmsave), list(lgsave)
        for u in range(3): wrd(0, u)
        for ks in range(13):
            if ks + AHEAD < 12: kld(0, ks + AHEAD); kld(1, ks + AHEAD)
            if ks + AHEAD == 12: a('s_barrier')
            if ks < 12: a.wait(vm=f'k1_{ks}')
            for u in range(3):
                a.wait(lg=f'f{ks}_{u}')
                wf = vr(WF + (ks%2)*12 + 4*u, 4)
                for t in range(2):
                    xf = vr(KF+(t*12+ks)*4, 4) if ks < 12 else vr(MF+4*t, 4)
                    d = vr(ACC + (t*3+u)*4, 4)
                    A, B = (wf, xf) if var == 0 else (xf, wf)
                    a(f'v_mfma_f32_16x16x32_bf16 {d}, {A}, {B}, {"0" if ks == 0 else d}')
                if ks < 12: wrd(ks + 1, u)
        stamp(a, 'mm2end')
        if var == 0:
            AQ = 112
            a(f'v_mov_b32 v{AQ}, 0\nv_mov_b32 v{AQ+1}, 0\ns_mov_b32 s36, 0x3f803f80\ns_mov_b32 {sSt1}, s68')
            for t in range(2):
                for u in range(3):
                    b = ACC + (t*3+u)*4
                    for d in range(2): a(f'v_pk_mul_f32 {vr(b+2*d,2)}, {vr(b+2*d,2)}, {vr(RT,2)} op_sel:[0,{t}] op_sel_hi:[1,{t}]')
                    for d in range(2): a(f'v_cvt_pk_bf16_f32 v{PK+(t*3+u)*2+d}, v{b+2*d}, v{b+2*d+1}')
            def pub0(s1, s2, fl, first=False):
                for t in range(2):
                    if t: a(f's_add_u32 {sT1}, {s1}, 13312')
                    for u in range(3):
                        a(f'buffer_store_dwordx2 {vr(PK+(t*3+u)*2,2)}, v{vA}, {SWS}, {sT1 if t else s1} offen offset:{u*512} {fl}')
                if first:
                    for i in range(6):
                        for t in range(2): a(f'v_dot2c_f32_bf16 v{AQ+t}, s36, v{PK+t*6+i}')
                    for sw in ('v_permlane16_swap_b32', 'v_permlane32_swap_b32'):
                        a(f'v_mov_b32 v{AQ+2}, v{AQ}\nv_mov_b32 v{AQ+3}, v{AQ+1}\n{sw} v{AQ}, v{AQ+2}\n{sw} v{AQ+1}, v{AQ+3}\nv_add_f32 v{AQ}, v{AQ}, v{AQ+2}\nv_add_f32 v{AQ+1}, v{AQ+1}, v{AQ+3}')
                    a(f'''v_cmp_eq_u32 vcc, 1, v5
                    v_cndmask_b32 v{AQ}, v{AQ}, v{AQ+1}, vcc
                    v_cvt_pk_bf16_f32 v{AQ+1}, v{AQ}, v{AQ}
                    v_lshlrev_b32 v{AQ+1}, 16, v{AQ+1}
                    v_sub_f32 v{AQ+1}, v{AQ}, v{AQ+1}
                    v_cvt_pk_bf16_f32 v{AQ}, v{AQ}, v{AQ+1}
                    s_mov_b32 exec_lo, 0
                    v_mov_b32 v{AQ}, 0
                    s_mov_b32 exec_lo, -1''')
                a(f'buffer_store_dword v{AQ}, v{vB}, {SWS}, {s2} offen {fl}')
            pub0(sSt1, sSt2, '', True)
            a('s_branch P2_j')
        else:
            a(f's_mov_b32 {sSt1}, s67')
            for u in range(3):
                for t in range(2):
                    b = ACC + (t*3+u)*4
                    for d in range(2): a(f'v_pk_mul_f32 {vr(b+2*d,2)}, {vr(b+2*d,2)}, {vr(RD+4*t+2*d,2)}')
                    for d in range(2): a(f'v_cvt_pk_bf16_f32 v{PK+u*4+t*2+d}, v{b+2*d}, v{b+2*d+1}')
            def pub1(s1, fl):
                for u in range(3): a(f'buffer_store_dwordx4 {vr(PK+4*u,4)}, v{vL16}, {SWS}, {s1} offen offset:{u*1024} {fl}')
            pub1(sSt1, '')
    a.label('P2_j')
    attn_addr(0)
    vOW, vOR, vOG = 116, 117, 119
    a.wait_all()
    flag(a, sOwn, sF1, sFast, 6, '')
    stamp(a, 'flag2')
    def repub():
        L1, L2 = a.newlabel('rp'), a.newlabel('rp')
        a(f's_add_u32 s36, {sSt1}, {SLOW}\ns_add_u32 s37, {sSt2}, {SLOW}\ns_cmp_ge_u32 {sS}, 8\ns_cbranch_scc1 {L1}')
        pub0('s36', 's37', 'sc0 sc1'); a(f's_branch {L2}')
        a.label(L1); pub1('s36', 'sc0 sc1'); a.label(L2)
    lsync(a, 32, True, sF1, sF2, sOwn, repub, 32)
    stamp(a, 'sync2')
    a(f's_add_u32 {sVP}, {sVP}, {sDelta}\ns_add_u32 {sQ}, {sQ}, {sDelta}\ns_add_u32 {sT1}, {sQ}, {sM1K}')
    for i in range(3):
        a(f's_add_u32 {sT0}, {sT1}, {i*4096}\ns_add_u32 m0, {sM1K}, {LQ + i*4096}\nbuffer_load_dwordx4 v{vL16}, {SWS}, {sT0} offen sc1 lds', tag='q')
    a(f's_add_u32 {sT0}, {sQ}, 12288\ns_mov_b32 m0, {LQ + 12288}\nbuffer_load_dwordx4 v{vL16}, {SWS}, {sT0} offen sc1 lds', tag='q')
    vq = []
    for k8 in range(8):
        for u in range(3):
            vq.append(((f's_add_u32 {sVP}, {sVP}, 24576\n' if k8 and u == 0 else '') + f'buffer_load_dwordx4 {vr(VF+(k8*3+u)*4,4)}, v{vL16}, {SWS}, {sVP} offen offset:{u*1024} sc1', f'vp{k8}'))
    def fill():
        if vq: x = vq.pop(0); a(x[0], tag=x[1])
    for _ in range(opt('nv0', 5)): fill()
    a.wait(vm='q')
    a('s_barrier')
    stamp(a, 'q_in')
    scores(fill)
    stamp(a, 'p_done')
    while vq: fill()
    PF, PA, RS, RF, ML = 160, 32, 192, 200, 212
    for k8 in range(8): a(f'ds_read_b128 {vr(PF+4*k8,4)}, v{vL16} offset:{LP + k8*1024}', tag=f'p{k8}')
    a(f'ds_read_b128 {vr(ML,4)}, v{vMLr} offset:512\nds_read_b128 {vr(ML+4,4)}, v{vMLr} offset:528', tag='ml')
    for u in range(3): a(f'buffer_load_dwordx2 {vr(RS+2*u,2)}, v{vA}, {SWS}, {sRs} offen offset:{u*512} sc1', tag='rs')
    vOW, vOR, vOG = 220, 221, 223
    fx = [f's_lshl_b32 s35, {sW}, 11', f's_add_u32 s35, s35, {LO}', f'v_mul_u32_u24 v{vOW}, 112, v3', f'v_lshl_add_u32 v{vOW}, v2, 3, v{vOW}', f'v_add_u32 v{vOW}, s35, v{vOW}']
    for h in range(2):
        fx += [f'v_add_u32 v6, {64*h}, v1', 'v_mul_u32_u24 v7, 43, v6', 'v_lshrrev_b32 v7, 8, v7', 'v_mul_u32_u24 v4, 6, v7', 'v_sub_u32 v4, v6, v4', 'v_lshlrev_b32 v4, 4, v4',
               'v_mul_u32_u24 v6, 112, v7', f'v_add3_u32 v{vOR+h}, v6, v4, s35', 'v_mul_u32_u24 v6, 768, v7', f'v_add_u32 v{vOG+h}, v6, v4']
    fx += [('l', 'ml')] + [f'v_add_f32 v{ML+i}, v{ML+i}, v{ML+4+i}' for i in range(4)] + [f'v_add_f32 v{ML}, v{ML}, v{ML+1}', f'v_add_f32 v{ML+2}, v{ML+2}, v{ML+3}', f'v_add_f32 v{ML}, v{ML}, v{ML+2}', f'v_rcp_f32 v{ML}, v{ML}', 's_mov_b32 s36, 0xffff0000']
    def fxd(n):
        while n > 0 and fx:
            x = fx.pop(0)
            if isinstance(x, tuple): a.wait(lg=x[1])
            else: a(x); n -= 1
    for k8 in range(8):
        a.wait(vm=f'vp{k8}', lg=f'p{k8}')
        for u in range(3):
            d = vr(PA + 4*u, 4)
            a(f'v_mfma_f32_16x16x32_bf16 {d}, {vr(VF+(k8*3+u)*4,4)}, {vr(PF+4*k8,4)}, {"0" if k8 == 0 else d}')
            fxd(2)
    fxd(1000)
    a.wait(vm='rs')
    for u in range(3):
        for d in range(2): a(f'v_lshlrev_b32 v{RF+4*u+2*d}, 16, v{RS+2*u+d}\nv_and_b32 v{RF+4*u+2*d+1}, s36, v{RS+2*u+d}')
    stamp(a, 'pv_done')
    OP = 48
    for u in range(3):
        for d in range(2): a(f'v_pk_fma_f32 {vr(RF+4*u+2*d,2)}, {vr(PA+4*u+2*d,2)}, {vr(ML,2)}, {vr(RF+4*u+2*d,2)} op_sel_hi:[1,0,1]')
        for d in range(2): a(f'v_cvt_pk_bf16_f32 v{OP+2*u+d}, v{RF+4*u+2*d}, v{RF+4*u+2*d+1}')
        a(f'ds_write_b64 v{vOW}, {vr(OP+2*u,2)} offset:{u*32}')
    a(f'ds_read_b128 {vr(56,4)}, v{vOR}', tag='o0')
    a(f's_mov_b32 exec_hi, 0\nds_read_b128 {vr(60,4)}, v{vOR+1}\ns_mov_b32 exec_hi, -1', tag='o1')
    a.wait(lg='o0')
    a(f'buffer_store_dwordx4 {vr(56,4)}, v{vOG}, {SOUT}, {sOut} offen')
    a.wait(lg='o1')
    a(f's_mov_b32 exec_hi, 0\nbuffer_store_dwordx4 {vr(60,4)}, v{vOG+1}, {SOUT}, {sOut} offen\ns_mov_b32 exec_hi, -1')
    if PROFILE: a.wait_all()
    stamp(a, 'end')
    stamp_flush(a)
    a('s_endpgm')
    a.label('P2_l'); a.vm = []; a.lg = []
    common(1)
    a(f'''v_lshlrev_b32 v7, 7, v1
    s_cmp_eq_u32 {sW}, 1
    s_cbranch_scc1 P2_lw
    s_add_u32 s67, {sW}, 2
    s_and_b32 s67, s67, 3
    s_lshl_b32 s67, s67, 13
    s_add_u32 s67, s67, {GX}''')
    gpoll(a, 64, 7, 's67', 33)
    stamp(a, 'Lxf')
    a.label('P2_lw')
    a.wait_all()
    stamp(a, 'Lw')
    a.label('P2_lg'); a.vm = []
    a(f's_mul_i32 s67, {sT}, 196608\ns_mul_i32 s68, {sI}, 6144\ns_add_u32 s67, s67, s68\ns_add_u32 s67, s67, {WS_X1}\ns_mul_i32 s68, {sW}, 1536\ns_add_u32 s67, s67, s68')
    a('s_barrier')
    if opt('xpf', 1):
        a(f'buffer_load_dwordx4 v[32:35], v{vL16}, {SWS}, s67 offen sc1\ns_mov_b32 exec_hi, 0\nbuffer_load_dwordx4 v[36:39], v{vL16}, {SWS}, s67 offen offset:1024 sc1\ns_mov_b32 exec_hi, -1')
    stats_load()
    stats_math(False)
    attn_addr(1)
    a('s_barrier')
    KA = opt('ka', 6)
    for ks in range(KA): kld(0, ks); kld(1, ks)
    a.wait_all(lg=False)
    for ks in range(KA, 12): kld(0, ks); kld(1, ks)
    stamp(a, 'Lkiss')
    a.wait_all()
    stamp(a, 'Lk')
    a('s_barrier')
    scores(lambda: None)
    stamp_flush(a, 'L')
```

```python
import sys, math, struct
sys.path.insert(0, 'gen')
from asm import Asm
def opt(name, default):
    for x in sys.argv:
        if x.startswith(f'--{name}='): return int(x.split('=')[1])
    return default
HP = [x[5:] for x in sys.argv if x.startswith('--hp=')]
PROFILE = '--prof' in sys.argv or bool(HP)
SKIP = []
for x in sys.argv:
    if x.startswith('--skip='): SKIP = x[7:].split(',')
WS_W2 = 0x000000
WS_S  = 0x180000
WS_X1 = 0x240000
WS_W  = 0x3E0000
WS_Q  = 0x480000
WS_VP = 0x620000
WS_ST = 0xF00000
FS1, FS2 = 0x7A0000, 0x7A2000
FC1, FC2 = 0x7A4000, 0x7A5000
GW2, GW, GX, WE = 0x7A8000, 0x7AA000, 0x7AC000, 0x7B4000
WS_PROF = 0x7C0000
SLOW = 0x800000
WS_SIZE = 0x1000000
LIM_FAST = opt('lim', 24)
LIM_SLOW = 1 << 20
SCALE2 = 384 ** -0.5 * math.log2(math.e)
def fbits(x): return '0x%08x' % struct.unpack('<I', struct.pack('<f', x))[0]
def vr(b, n): return f'v[{b}:{b+n-1}]' if n > 1 else f'v{b}'
SX, SWQ, SWO, SWS, SOUT = 's[4:7]', 's[8:11]', 's[12:15]', 's[16:19]', 's[24:27]'
WT = 'sc0 sc1' if opt('wt', 1) == 2 else 'sc1'
def srd(a, base, ptr, size):
    a(f's_mov_b32 s{base}, s{ptr}\ns_mov_b32 s{base+1}, s{ptr+1}\ns_mov_b32 s{base+2}, {size}\ns_mov_b32 s{base+3}, 0x20000')
STAMP_REGS = [70, 72, 74, 76, 78, 80, 82, 84, 86, 88, 90, 92, 94, 96, 98, 100]
class St:
    names = {'C': [], 'L': []}
def stamp(a, name):
    if not PROFILE or name in SKIP or (HP and name not in ('start', HP[0])): return
    lst = St.names['L' if name.startswith('L') else 'C']
    if name not in lst: lst.append(name)
    k = lst.index(name)
    a(f's_memrealtime s[{STAMP_REGS[k]}:{STAMP_REGS[k]+1}]')
def hp_end(a, role):
    name = HP[0]
    lst = St.names[role]
    src = f's{STAMP_REGS[lst.index(name)]}' if name in lst else 's70'
    L1, L2 = a.newlabel('hp'), a.newlabel('hp')
    a(f's_waitcnt vmcnt(0) lgkmcnt(0)\nv_mov_b32 v2, {WS_PROF + 0x30000}')
    a.label(L1)
    a(f'''buffer_load_dwordx2 v[4:5], v2, {SWS}, 0 offen sc0 sc1
    s_waitcnt vmcnt(0)
    v_readfirstlane_b32 s34, v4
    v_readfirstlane_b32 s35, v5
    s_cmp_lg_u32 s35, {sTag}
    s_cbranch_scc1 {L1}
    s_sub_u32 s35, {src}, s34
    s_max_i32 s35, s35, 0
    s_mul_i32 s35, s35, 4
    s_add_u32 s35, s35, 4000''')
    a.label(L2)
    a(f'''s_memrealtime s[36:37]
    s_waitcnt lgkmcnt(0)
    s_sub_u32 s36, s36, s34
    s_cmp_lt_i32 s36, s35
    s_cbranch_scc1 {L2}''')
def hp_t0(a):
    if not HP: return
    L = a.newlabel('hq')
    a(f's_or_b32 s34, s2, {sW}\ns_or_b32 s34, s34, {sRole}\ns_cmp_lg_u32 s34, 0\ns_cbranch_scc1 {L}')
    a(f'v_mov_b32 v2, {WS_PROF + 0x30000}\nv_mov_b32 v4, s70\nv_mov_b32 v5, {sTag}\nbuffer_store_dwordx2 v[4:5], v2, {SWS}, 0 offen sc0 sc1')
    a.vm.pop()
    a.label(L)
def stamp_flush(a, role='C'):
    if HP: hp_end(a, role); return
    if not PROFILE: return
    a('s_waitcnt lgkmcnt(0)')
    for k in range(16): a(f'v_mov_b32 v{100+k}, s{STAMP_REGS[k]}')
    a(f'''v_lshrrev_b32 v8, 6, v0
    s_lshl_b32 s34, s2, 3
    v_add_u32 v8, s34, v8
    v_lshlrev_b32 v8, 6, v8
    v_add_u32 v8, {WS_PROF}, v8''')
    for k in range(4): a(f'buffer_store_dwordx4 v[{100+4*k}:{103+4*k}], v8, {SWS}, 0 offen offset:{16*k}')

sXCD, sW, sI, sRole = 's40', 's41', 's42', 's43'
sTag, sFast, sDelta = 's44', 's45', 's46'
sM1K = 's47'
TAIL = []

def lanes(a, n):
    a(f's_mov_b32 exec_lo, {hex((1 << min(n, 32)) - 1)}\ns_mov_b32 exec_hi, {hex((1 << max(n-32, 0)) - 1)}')
def gpoll(a, n, vA, sBase, vT):
    Lf, Lr, Ld = a.newlabel('gp'), a.newlabel('gr'), a.newlabel('gd')
    lanes(a, n)
    a(f's_mov_b32 s35, {LIM_SLOW}')
    a.label(Lf)
    a(f'buffer_load_dword v{vT}, v{vA}, {SWS}, {sBase} offen sc1')
    a.wait_all(lg=False)
    a(f'v_cmp_ne_u32 vcc, {sTag}, v{vT}\ns_cbranch_vccnz {Lr}')
    a.label(Ld)
    a('s_mov_b64 exec, -1')
    def tail():
        a.label(Lr); a(f's_sub_u32 s35, s35, 1\ns_cmp_lg_u32 s35, 0\ns_cbranch_scc1 {Lf}\ns_branch {Ld}')
    TAIL.append(tail)
def lsync(a, n, wide, sF1, sF2, sOwn, republish, vT):
    Lf, Lr, Ld, Ls = a.newlabel('lp'), a.newlabel('lr'), a.newlabel('ld'), a.newlabel('ls')
    vA, vD, vE = vT, vT + 2, vT + 6
    w = 4 if wide else 1
    ld = 'buffer_load_dwordx4' if wide else 'buffer_load_dword'
    def cmp(v, s):
        if not wide: a(f'v_cmp_ne_u32 vcc, {s}, v{v}'); return
        for k in range(4): a(f'v_xor_b32 v{v+k}, {s}, v{v+k}')
        a(f'v_or_b32 v{v}, v{v}, v{v+1}\nv_or3_b32 v{v}, v{v}, v{v+2}, v{v+3}\nv_cmp_ne_u32 vcc, 0, v{v}')
    lanes(a, n)
    a(f'v_lshlrev_b32 v{vA}, {4 if wide else 2}, v1\ns_mov_b32 {sDelta}, 0\ns_mov_b32 s35, {LIM_FAST}')
    a.label(Lf)
    a(f'{ld} {vr(vD, w)}, v{vA}, {SWS}, {sF1} offen sc1')
    a.wait_all(lg=False)
    cmp(vD, sFast)
    a(f's_cbranch_vccnz {Lr}')
    a.label(Ld)
    a('s_mov_b64 exec, -1')
    def tail():
        a.label(Lr)
        a(f's_sub_u32 s35, s35, 1\ns_cmp_lg_u32 s35, 0\ns_cbranch_scc1 {Lf}')
        if republish:
            a('s_mov_b64 exec, -1')
            republish()
            a.wait_all(lg=False)
            a(f'''s_mov_b64 exec, 1
            v_mov_b32 v{vD}, {sOwn}
            v_mov_b32 v{vD+1}, {sTag}
            buffer_store_dword v{vD+1}, v{vD}, {SWS}, {sF2} offen sc0 sc1''')
            lanes(a, n)
        a(f's_mov_b32 s35, {LIM_SLOW}')
        a.label(Ls)
        a(f'{ld} {vr(vD, w)}, v{vA}, {SWS}, {sF1} offen sc1\n{ld} {vr(vE, w)}, v{vA}, {SWS}, {sF2} offen sc0 sc1')
        a.wait_all(lg=False)
        cmp(vD, sFast)
        a(f's_cbranch_vccz {Ld}')
        cmp(vE, sTag)
        a(f's_mov_b32 {sDelta}, {SLOW}\ns_cbranch_vccz {Ld}\ns_mov_b32 {sDelta}, 0\ns_sub_u32 s35, s35, 1\ns_cmp_lg_u32 s35, 0\ns_cbranch_scc1 {Ls}\ns_branch {Ld}')
    TAIL.append(tail)
def flag(a, sOff, sBase, sVal, vT, fl):
    a(f'''s_mov_b64 exec, 1
    v_mov_b32 v{vT}, {sOff}
    v_mov_b32 v{vT+1}, {sVal}
    buffer_store_dword v{vT+1}, v{vT}, {SWS}, {sBase} offen {fl}
    s_mov_b64 exec, -1''')
def gflag(a, sOff, sBase, vT):
    a(f'''s_mov_b64 exec, 15
    v_lshl_add_u32 v{vT}, v1, 4, {sOff}
    v_mov_b32 v{vT+2}, {sTag}
    v_mov_b32 v{vT+3}, {sTag}
    v_mov_b32 v{vT+4}, {sTag}
    v_mov_b32 v{vT+5}, {sTag}
    buffer_store_dwordx4 {vr(vT+2,4)}, v{vT}, {SWS}, {sBase} offen sc0 sc1
    s_mov_b64 exec, -1''')
def flag_w0(a, sOff, sBase, vT):
    L = a.newlabel('f0')
    a(f's_cmp_lg_u32 {sW}, 0\ns_cbranch_scc1 {L}')
    a.cond = True; gflag(a, sOff, sBase, vT); a.vm.pop(); a.cond = False
    a.label(L)
def tag_ready(a):
    a(f'''s_mul_i32 {sTag}, {sTag}, 0x9e3779b1
    s_add_u32 {sTag}, {sTag}, 0x7f4a7c15
    s_add_u32 {sFast}, {sFast}, {sTag}''')

LW34 = 102400
def wfetch(a):
    a(f'''v_lshlrev_b32 v7, 7, v1
    s_mov_b32 s67, {GW}
    s_and_b32 s68, {sI}, 15
    s_mul_i32 s68, s68, 39936
    s_add_u32 s68, s68, {WS_W}
    s_lshr_b32 s69, {sI}, 1
    s_lshl_b32 s34, {sXCD}, 4
    s_add_u32 s69, s69, s34
    s_mul_i32 s69, s69, 13312
    s_add_u32 s69, s69, {WS_Q + 12288}''')
    gpoll(a, 64, 7, 's67', 33)
    stamp(a, 'Lwf')
    for i in range(39):
        if i % 4 == 0: a(f's_mov_b32 m0, {LW34 + i*1024}' + ('\ns_add_u32 s68, s68, 4096' if i else ''))
        a(f'buffer_load_dwordx4 v10, {SWS}, s68 offen offset:{(i&3)*1024} sc1 lds')
    a(f'buffer_load_dwordx4 v[32:35], v10, {SWS}, s69 offen')

def build():
    a = Asm()
    def emit(x):
        if isinstance(x, tuple): a(x[0], tag=x[1])
        else: a(x)
    a(f'''s_cmp_ge_u32 s2, 256
    s_cbranch_scc1 K_end
    s_load_dwordx4 s[20:23], s[0:1], 0
    s_load_dwordx4 s[28:31], s[0:1], 16
    s_load_dwordx4 s[36:39], s[0:1], 32
    s_load_dwordx2 s[32:33], s[0:1], 56
    v_and_b32 v1, 63, v0
    v_lshrrev_b32 v2, 6, v0
    s_and_b32 {sXCD}, s2, 7
    v_readfirstlane_b32 {sW}, v2
    s_lshr_b32 {sI}, s2, 3''')
    stamp(a, 'start')
    if HP:
        St.names['L'].append('Lstart')
        a('s_waitcnt lgkmcnt(0)')
        for r in STAMP_REGS[1:]: a(f's_mov_b32 s{r}, s70')
    a('s_getpc_b64 s[48:49]')
    a.label('K_pc')
    a(f'''s_sub_u32 s48, s48, K_pc-{KNAME}
    s_subb_u32 s49, s49, 0
    s_lshl_b32 s34, {sI}, 3
    s_add_u32 s34, s34, {sW}
    s_and_b32 s34, s34, 31
    s_lshl_b32 s34, s34, 10
    v_lshl_add_u32 v9, v1, 4, s34
    global_load_dwordx4 v[252:255], v9, s[48:49]
    s_lshr_b32 {sRole}, {sW}, 2
    s_and_b32 {sW}, {sW}, 3
    s_lshl_b32 {sM1K}, {sW}, 10
    s_getreg_b32 {sFast}, hwreg(HW_REG_XCC_ID)
    s_and_b32 {sFast}, {sFast}, 15
    s_add_u32 {sFast}, {sFast}, 1
    v_lshrrev_b32 v2, 3, v1
    v_and_b32 v3, 7, v1
    v_lshlrev_b32 v10, 4, v1
    s_cmp_lt_u32 {sI}, 8
    s_cbranch_scc1 K_pre''')
    T8, G8, vL16 = 2, 3, 10
    sG, sJ, sP, sHF, sX, sM = 's50', 's51', 's52', 's53', 's54', 's55'
    sR = ['s56', 's57', 's58', 's59', 's60', 's61']
    ROT = opt('rot', 4)
    a(f'''s_sub_u32 {sJ}, {sI}, 8
    s_mul_i32 s34, {sJ}, 43
    s_lshr_b32 s34, s34, 8
    s_mul_i32 s35, s34, 6
    s_sub_u32 {sJ}, {sJ}, s35
    s_lshl_b32 {sG}, {sXCD}, 2
    s_add_u32 {sG}, {sG}, s34
    s_lshr_b32 {sP}, {sW}, 1
    s_and_b32 {sHF}, {sW}, 1
    s_lshl_b32 {sM}, {sW}, 11''')
    if ROT: a(f's_mul_i32 s3, {sXCD}, 3\ns_lshr_b32 s3, s3, 2')
    a(f's_cmp_lg_u32 {sRole}, 0\ns_cbranch_scc1 A_ld')
    XS = lambda c: c*8192
    WQ0 = 49152
    W2L = 49152
    vXF, vAW, vSst, vX1, vST, vRes, vBP, vBS, vW2, vW2b = 12, 16, 18, 19, 20, 21, 22, 23, 24, 25
    XF, WF, ACC, CS, MA, SEL, CA, CB = 160, 32, 64, 96, 104, 108, 112, 120
    sSst, sSld, sX1, sST, sFS1, sFS2, sOwn, sGX = 's56', 's57', 's58', 's59', 's60', 's61', 's62', 's63'
    a(f'''v_and_b32 v4, 31, v1
    v_lshrrev_b32 v5, 5, v1
    v_bfe_u32 v6, v1, 1, 3
    v_xor_b32 v6, v6, v5
    v_lshlrev_b32 v4, 7, v4
    v_lshl_add_u32 v4, v6, 4, v4
    s_lshl_b32 s35, {sP}, 12
    v_add_u32 v{vXF}, s35, v4
    v_xor_b32 v{vXF+1}, 32, v{vXF}
    v_xor_b32 v{vXF+2}, 64, v{vXF}
    v_xor_b32 v{vXF+3}, 96, v{vXF}
    v_bfe_u32 v6, v1, 2, 2
    v_lshl_add_u32 v4, v5, 3, v6
    v_lshlrev_b32 v4, 7, v4
    v_lshrrev_b32 v7, 1, v6
    v_xor_b32 v7, {sHF}, v7
    v_lshl_add_u32 v4, v7, 6, v4
    v_bfe_u32 v7, v1, 4, 1
    v_lshl_add_u32 v4, v7, 5, v4
    v_and_b32 v8, 1, v1
    v_lshl_add_u32 v4, v8, 4, v4
    v_bfe_u32 v8, v1, 1, 1
    v_lshl_add_u32 v4, v8, 3, v4
    v_add_u32 v{vAW}, {WQ0}, v4
    v_add_u32 v{vAW+1}, {WQ0 + 65536}, v4
    v_bfe_u32 v8, v1, 2, 1
    v_cmp_eq_u32 vcc, v8, v7
    v_mov_b32 v7, 0x3f803f80
    s_mov_b32 s34, {WE}
    s_waitcnt lgkmcnt(0)
    s_load_dword {sTag}, s[32:33], s34''')
    for k in range(4): a(f'v_cndmask_b32 v{SEL+k}, 0, v7, vcc')
    srd(a, 16, 32, WS_SIZE); srd(a, 24, 38, 1572864)
    a(f'''v_lshlrev_b32 v{vSst}, 9, v5
    v_lshl_add_u32 v{vSst}, v{G8}, 6, v{vSst}
    v_bfe_u32 v6, v1, 3, 2
    v_lshl_add_u32 v{vSst}, v6, 4, v{vSst}
    s_mul_i32 s34, {sG}, 24576
    s_lshl_b32 s35, {sP}, 10
    s_add_u32 s34, s34, s35
    s_add_u32 {sSld}, s34, {WS_S}
    s_lshl_b32 s35, {sJ}, 1
    s_add_u32 s35, s35, {sHF}
    s_lshl_b32 {sOwn}, s35, 2
    s_lshl_b32 s3{6}, s35, 11
    s_add_u32 {sSst}, {sSld}, s36
    s_lshl_b32 s34, {sG}, 1
    s_add_u32 s34, s34, {sP}
    s_lshl_b32 s34, s34, 7
    s_add_u32 {sFS1}, s34, {FS1}
    s_add_u32 {sFS2}, s34, {FS2}''')
    a(f'''v_bfe_u32 v6, v1, 2, 3
    v_and_b32 v7, 3, v1
    s_mov_b32 s34, 196608
    v_mul_lo_u32 v{vX1}, v6, s34
    v_lshl_add_u32 v{vX1}, v5, 8, v{vX1}
    v_lshl_add_u32 v{vX1}, v7, 4, v{vX1}
    v_mul_u32_u24 v{vST}, 49152, v6
    v_lshl_add_u32 v{vST}, v7, 4, v{vST}
    v_lshl_add_u32 v8, v7, 3, v6
    v_lshlrev_b32 v{vBP}, 2, v8
    v_lshlrev_b32 v{vBS}, 5, v7
    v_lshl_add_u32 v{vBS}, v5, 4, v{vBS}
    v_bfe_u32 v4, v8, 1, 3
    s_lshl_b32 s34, {sHF}, 2
    v_xor_b32 v4, s34, v4
    v_xor_b32 v4, v4, v5
    v_lshlrev_b32 v4, 4, v4
    v_lshl_add_u32 v4, v8, 7, v4''')
    if ROT: a(f's_add_u32 s34, {sJ}, 6\ns_sub_u32 s34, s34, s3\ns_cmp_ge_u32 s34, 6\ns_cselect_b32 s36, 6, 0\ns_sub_u32 s34, s34, s36\ns_lshl_b32 s34, s34, 13')
    else: a(f's_lshl_b32 s34, {sJ}, 13')
    a(f'''s_lshl_b32 s36, {sP}, 12
    s_add_u32 s34, s34, s36
    v_add_u32 v{vRes}, s34, v4
    s_lshl_b32 s34, {sHF}, 10
    s_add_u32 s34, s34, {W2L}
    v_add_u32 v{vW2}, s34, v{vL16}
    v_and_b32 v4, 31, v1
    v_lshlrev_b32 v4, 2, v4
    s_lshl_b32 s34, {sHF}, 7
    s_add_u32 s34, s34, {W2L + 49152}
    v_add_u32 v4, s34, v4
    v_lshl_add_u32 v{vW2b}, v5, 10, v4
    v_add_u32 v{vW2b+1}, 2048, v4
    s_lshr_b32 s34, {sG}, 1
    s_mul_i32 s34, s34, 12288
    s_lshl_b32 s36, s35, 10
    s_add_u32 s34, s34, s36
    s_and_b32 s36, {sG}, 1
    s_lshl_b32 s36, s36, 7
    s_add_u32 s34, s34, s36
    s_lshl_b32 s36, {sP}, 6
    s_add_u32 s34, s34, s36
    s_add_u32 {sX1}, s34, {WS_X1}
    s_lshl_b32 s34, s35, 12
    s_add_u32 s34, s34, s36
    s_lshl_b32 s36, {sG}, 7
    s_add_u32 s34, s34, s36
    s_add_u32 {sST}, s34, {WS_ST}
    s_mul_i32 s34, {sG}, 6
    s_add_u32 s34, s34, {sJ}
    s_lshl_b32 {sGX}, s34, 7
    s_mov_b32 s38, {fbits(-1/384)}
    s_mov_b32 s36, 0xffff0000
    s_mov_b32 s64, -1
    s_mov_b32 s65, 0
    s_mov_b32 s66, 0xff00ff00
    s_mov_b32 s67, 0xff00ff00
    s_mov_b32 s68, 0xffff0000
    s_mov_b32 s69, 0xffff0000''')
    for r in range(CA, CA + 8):
        if (r - CA) % 4: a(f'v_mov_b32 v{r}, 0')
    a('s_waitcnt lgkmcnt(0)')
    tag_ready(a)
    a('s_barrier')
    stamp(a, 'mm0')
    def rd(ks):
        c, k4 = ks >> 2, ks & 3
        a(f'ds_read_b128 {vr(XF+4*ks,4)}, v{vXF+k4} offset:{XS(c)}', tag=f'f{ks}')
        return [(c, k4, P) for P in range(2)]
    def trd(ks, P):
        c, k4 = ks >> 2, ks & 3
        off = c*16384 + P*8192 + k4*2048
        base = vAW + (off >> 16); off &= 0xffff
        d = WF + (ks % 3)*8 + P*4
        a(f'ds_read_b64_tr_b16 {vr(d,2)}, v{base} offset:{off}\nds_read_b64_tr_b16 {vr(d+2,2)}, v{base} offset:{off+512}', tag=f'f{ks}')
    def pre(ks, part):
        if part == 0: rd(ks); trd(ks, 0)
        else: trd(ks, 1)
    for ks in range(2): pre(ks, 0); pre(ks, 1)
    def m16(d, b, first): a(f'v_mfma_f32_16x16x32_bf16 {vr(d,4)}, {vr(SEL,4)}, {b}, {"0" if first else vr(d,4)}')
    for ks in range(24):
        bar = (ks & 3) == 3 and ks < 23
        if bar:
            if ks == 15: a.wait_all(lg=False)
            a('s_barrier')
            if ks in (7, 15, 19): stamp(a, f'c{(ks+1)>>2}')
            pre(ks + 1, 0); pre(ks + 1, 1)
        a.wait(lg=f'f{ks}')
        wf = lambda P: vr(WF + (ks % 3)*8 + P*4, 4)
        main = lambda P: a(f'v_mfma_f32_32x32x16_bf16 {vr(ACC+16*P,16)}, {wf(P)}, {vr(XF+4*ks,4)}, {"0" if ks == 0 else vr(ACC+16*P,16)}')
        nx = ks + 2 if (ks & 3) != 2 and ks + 2 < 24 else None
        if ks < 23:
            for P in range(2):
                main(P)
                if nx: pre(nx, P)
                m16(CS + 4*P, wf(P), ks == 0)
            m16(MA, vr(XF+4*ks, 4), ks == 0)
        else:
            m16(MA, vr(XF+4*ks, 4), False)
            for P in range(2): m16(CS + 4*P, wf(P), False)
            main(0)
            main(1)
            a(f'''v_mul_f32 v{MA}, s38, v{MA}
            v_cvt_pk_bf16_f32 v{CA}, v{CS}, v{CS}
            v_cvt_pk_bf16_f32 v{CA+4}, v{CS+4}, v{CS+4}
            v_cvt_pk_bf16_f32 v{MA+1}, v{MA}, v{MA}
            v_and_b32 v{CA}, s36, v{CA}
            v_and_b32 v{CA+4}, s36, v{CA+4}
            v_cndmask_b32 v{CB}, 0, v{MA+1}, s[64:65]
            v_sub_f32 v{CA}, v{CS}, v{CA}
            v_sub_f32 v{CA+4}, v{CS+4}, v{CA+4}
            v_mov_b32 v{CB+1}, v{CB}
            v_cvt_pk_bf16_f32 v{CA}, v{CS}, v{CA}
            v_cvt_pk_bf16_f32 v{CA+4}, v{CS+4}, v{CA+4}
            v_mov_b32 v{CB+2}, v{CB}
            v_mov_b32 v{CB+3}, v{CB}''')
            for P in range(2): a(f'v_mfma_f32_32x32x16_bf16 {vr(ACC+16*P,16)}, {vr(CA+4*P,4)}, {vr(CB,4)}, {vr(ACC+16*P,16)}')
    stamp(a, 'mmend')
    PQ, PK, SC, SS, SQ, CM = 32, 40, 64, 96, 100, 124
    a(f'v_mov_b32 v{SQ}, 0\nv_mov_b32 v{SQ+1}, 0')
    for k in range(4): a(f'v_mov_b32 v{CM+k}, v{MA+1}')
    for P, d in ((0, PQ), (1, PK)):
        for i in range(8): a(f'v_cvt_pk_bf16_f32 v{d+i}, v{ACC+16*P+2*i}, v{ACC+16*P+2*i+1}')
    a(f'v_mfma_f32_32x32x16_bf16 {vr(SC,16)}, {vr(PK,4)}, {vr(PQ,4)}, 0')
    a(f'v_mfma_f32_32x32x16_bf16 {vr(SC,16)}, {vr(PK+4,4)}, {vr(PQ+4,4)}, {vr(SC,16)}')
    RAW = 48
    a(f'v_xor_b32 v4, 32, v{vRes}\nds_read_b128 {vr(RAW,4)}, v{vRes}\nds_read_b128 {vr(RAW+4,4)}, v4', tag='raw')
    for e in range(4): a(f'v_cndmask_b32 v{SC+e}, v{SC+e}, v{SC+4+e}, s[66:67]\nv_cndmask_b32 v{SC+8+e}, v{SC+8+e}, v{SC+12+e}, s[66:67]')
    for e in range(4): a(f'v_cndmask_b32 v{SS+e}, v{SC+e}, v{SC+8+e}, s[68:69]')
    a(f'buffer_store_dwordx4 {vr(SS,4)}, v{vSst}, {SWS}, {sSst} offen')
    stamp(a, 'stored')
    ND0 = opt('nd0', 72)
    for i in range(ND0): a(f'v_dot2c_f32_bf16 v{SQ+(i&1)}, v{XF+i}, v{XF+i}')
    a.wait_all(lg=False)
    flag(a, sOwn, sFS1, sFast, 4, '')
    stamp(a, 'flag')
    for i in range(ND0, 96): a(f'v_dot2c_f32_bf16 v{SQ+(i&1)}, v{XF+i}, v{XF+i}')
    RR, RES = 56, 80
    a(f'''s_mov_b32 s37, {fbits(1e-5)}
    v_mul_f32 v{SQ+2}, v{MA}, v{MA}
    v_add_u32 v5, 4, v{vBS}
    v_add_f32 v{SQ}, v{SQ}, v{SQ+1}
    v_mov_b32 v{SQ+1}, v{SQ}
    v_add_u32 v6, 8, v{vBS}
    v_add_u32 v7, 12, v{vBS}
    v_permlane32_swap_b32 v{SQ}, v{SQ+1}
    v_add_f32 v{SQ}, v{SQ}, v{SQ+1}
    v_fma_f32 v{SQ}, -v{SQ}, s38, -v{SQ+2}
    v_max_f32 v{SQ}, 0, v{SQ}
    v_add_f32 v{SQ}, s37, v{SQ}
    v_rsq_f32 v{SQ}, v{SQ}''')
    a(f'ds_bpermute_b32 v{RR+4}, v{vBP}, v{SQ}\nds_bpermute_b32 v{RR}, v{vBS}, v{SQ}', tag='bp')
    for e in range(1, 4): a(f'ds_bpermute_b32 v{RR+e}, v{4+e}, v{SQ}', tag='bp')
    a.wait(lg='raw')
    for d in range(8): a(f'v_lshlrev_b32 v{RES+2*d}, 16, v{RAW+d}\nv_and_b32 v{RES+2*d+1}, s36, v{RAW+d}')
    a.wait(lg='bp')
    a(f'v_mul_f32 v{RR+4}, {fbits(SCALE2)}, v{RR+4}')
    def repubA():
        a(f's_add_u32 s34, {sSst}, {SLOW}\nbuffer_store_dwordx4 {vr(SS,4)}, v{vSst}, {SWS}, s34 offen sc0 sc1')
    lsync(a, 12, False, sFS1, sFS2, sOwn, repubA, 32)
    stamp(a, 'synced')
    SP, Y, WR = 112, 64, 32
    SPR = [128, 132, 136, 140, 144, 148, 152, 156, 112, 116, 96, 100]
    a(f's_add_u32 {sSld}, {sSld}, {sDelta}')
    for i in range(12):
        if i and i % 2 == 0: a(f's_add_u32 {sSld}, {sSld}, 4096')
        a(f'buffer_load_dwordx4 {vr(SPR[i],4)}, v{vL16}, {SWS}, {sSld} offen offset:{(i&1)*2048} sc1', tag=f's{i}')
    a('s_barrier')
    stamp(a, 'w2in')
    def w2rd(ks):
        if ks < 24: a(f'ds_read_b128 {vr(WR+4*(ks%6),4)}, v{vW2} offset:{ks*2048}', tag=f'y{ks}')
        else:
            for k in range(2): a(f'ds_read2st64_b32 {vr(WR+4*(ks%6)+2*k,2)}, v{vW2b+ks-24} offset0:{2*k} offset1:{2*k+1}', tag=f'y{ks}')
    for ks in range(5): w2rd(ks)
    S0 = SPR[0]; T0 = SPR[1]
    sm = []
    for i in range(1, 12):
        sm.append(('w', f's{i}'))
        for d in range(4): sm.append(f'v_add_f32 v{S0+d}, v{S0+d}, v{SPR[i]+d}')
    for d in range(4): sm.append(f'v_mul_f32 v{S0+d}, v{S0+d}, v{RR+d}')
    sm += [f'v_max_f32 v{T0}, v{S0}, v{S0+1}', f'v_max3_f32 v{T0}, v{T0}, v{S0+2}, v{S0+3}', f'v_mov_b32 v{T0+1}, v{T0}', 's_mov_b32 s64, 0x11111111', 's_mov_b32 s65, 0x11111111',
           f'v_permlane32_swap_b32 v{T0}, v{T0+1}', f'v_max_f32 v{T0}, v{T0}, v{T0+1}', f'v_mul_f32 v{T0}, v{RR+4}, v{T0}']
    for d in range(4): sm.append(f'v_fma_f32 v{S0+d}, v{S0+d}, v{RR+4}, -v{T0}')
    for d in range(4): sm.append(f'v_exp_f32 v{S0+d}, v{S0+d}')
    sm += [f'v_add_f32 v{T0}, v{S0}, v{S0+1}', f'v_add_f32 v{T0+1}, v{S0+2}, v{S0+3}', f'v_add_f32 v{T0}, v{T0}, v{T0+1}', f'v_mov_b32 v{T0+1}, v{T0}']
    sm += [f'v_mul_f32 v{S0+d}, v{S0+d}, v{RR+d}' for d in range(2)] + [f'v_permlane32_swap_b32 v{T0}, v{T0+1}', f'v_add_f32 v{T0}, v{T0}, v{T0+1}', f'v_rcp_f32 v{T0}, v{T0}']
    sm += [f'v_mul_f32 v{S0+d}, v{S0+d}, v{RR+d}' for d in range(2, 4)]
    for d in range(4): sm.append(f'v_mul_f32 v{S0+d}, v{S0+d}, v{T0}')
    PB = 136
    sm += [f'v_cvt_pk_bf16_f32 v{T0}, v{S0}, v{S0+1}', f'v_cvt_pk_bf16_f32 v{T0+1}, v{S0+2}, v{S0+3}']
    for b in range(4):
        sm += [f'v_cndmask_b32 v{PB+2*b}, 0, v{T0}, s[64:65]', f'v_cndmask_b32 v{PB+2*b+1}, 0, v{T0+1}, s[64:65]']
        if b < 3: sm.append('s_lshl_b64 s[64:65], s[64:65], 1')
    S2 = 104
    sm += [f'v_mov_b32 v{S2}, 0', f'v_mov_b32 v{S2+1}, 0', 's_mov_b32 s36, 0x3f803f80']
    def drain(n):
        while n > 0 and sm:
            x = sm.pop(0)
            if isinstance(x, tuple): a.wait(vm=x[1])
            else: a(x); n -= 1
    for ks in range(26):
        a.wait(lg=f'y{ks}')
        xa = vr(XF+4*ks, 4) if ks < 24 else vr(CM if ks == 24 else CB, 4)
        a(f'v_mfma_f32_32x32x16_bf16 {vr(Y,16)}, {xa}, {vr(WR+4*(ks%6),4)}, {"0" if ks == 0 else vr(Y,16)}')
        if ks + 5 < 26: w2rd(ks + 5)
        if ks >= opt('sm0', 2): drain(4)
    drain(1000)
    stamp(a, 'ygemm')
    YP, XO = 144, 152
    for i in range(8): a(f'v_cvt_pk_bf16_f32 v{YP+i}, v{Y+2*i}, v{Y+2*i+1}')
    for k in range(2): a(f'v_mfma_f32_32x32x16_bf16 {vr(RES,16)}, {vr(YP+4*k,4)}, {vr(PB+4*k,4)}, {vr(RES,16)}')
    for i in range(8): a(f'v_cvt_pk_bf16_f32 v{XO+i}, v{RES+2*i}, v{RES+2*i+1}')
    a(f'buffer_store_dwordx4 {vr(XO,4)}, v{vX1}, {SWS}, {sX1} offen {WT}')
    a(f'buffer_store_dwordx4 {vr(XO+4,4)}, v{vX1}, {SWS}, {sX1} offen offset:512 {WT}')
    for i in range(8): a(f'v_dot2c_f32_bf16 v{S2}, s36, v{XO+i}\nv_dot2c_f32_bf16 v{S2+1}, v{XO+i}, v{XO+i}')
    a(f'''v_mov_b32 v{S2+2}, v{S2}
    v_mov_b32 v{S2+3}, v{S2+1}
    v_permlane32_swap_b32 v{S2}, v{S2+2}
    v_permlane32_swap_b32 v{S2+1}, v{S2+3}
    v_add_f32 v{S2}, v{S2}, v{S2+2}
    v_add_f32 v{S2+1}, v{S2+1}, v{S2+3}
    s_mov_b32 exec_hi, 0
    buffer_store_dwordx4 {vr(S2,4)}, v{vST}, {SWS}, {sST} offen {WT}
    s_mov_b32 exec_hi, -1
    s_mov_b32 s34, {GX}''')
    stamp(a, 'x1st')
    a.wait_all()
    a('s_barrier')
    flag_w0(a, sGX, 's34', 32)
    stamp(a, 'x1pub')
    a('s_branch P2_c')
    a.label('A_ld'); a.vm = []; a.lg = []
    vW, vXs, vP = 32, 36, 38
    sRx = ['s62', 's63', 's64', 's65', 's66', 's67']
    a(f'''s_mov_b32 s35, 196608
    v_mul_lo_u32 v{vXs}, v{T8}, s35
    v_lshrrev_b32 v4, 1, v{T8}
    v_xor_b32 v4, v4, v{G8}
    v_lshl_add_u32 v{vXs}, v4, 4, v{vXs}
    v_xor_b32 v{vXs+1}, 64, v{vXs}
    v_add_u32 v{vXs+1}, 768, v{vXs+1}
    s_lshl_b32 s34, {sG}, 3
    s_lshl_b32 s35, {sW}, 1
    s_add_u32 s34, s34, s35
    s_mul_i32 {sX}, s34, 768
    v_lshlrev_b32 v4, 1, v{T8}
    v_and_b32 v4, 4, v4
    v_xor_b32 v4, v4, v{G8}
    v_mul_u32_u24 v{vW}, 2304, v{T8}
    v_lshl_add_u32 v{vW}, v4, 4, v{vW}
    s_mul_i32 s68, {sW}, {16*2304}
    s_lshl_b32 s34, {sJ}, 7
    s_add_u32 s68, s68, s34''')
    for k in range(1, 4): a(f'v_add_u32 v{vW+k}, {(k>>1)*768 + (k&1)*18432}, v{vW}')
    for i in range(6):
        if ROT:
            a(f's_lshl_b32 s34, s3, 7\ns_add_u32 {sRx[i]}, s34, {sX}\ns_mul_i32 s34, s3, 147456\ns_add_u32 {sR[i]}, s34, s68')
            if i < 5: a('s_add_u32 s3, s3, 1\ns_cmp_ge_u32 s3, 6\ns_cselect_b32 s3, 0, s3')
        else: a(f's_add_u32 {sR[i]}, s68, {i*147456}\ns_add_u32 {sRx[i]}, {sX}, {i*128}')
    a(f's_mov_b32 s34, {WE}\ns_waitcnt lgkmcnt(0)\ns_load_dword {sTag}, s[32:33], s34')
    srd(a, 4, 20, 1572864); srd(a, 8, 22, 884736)
    def wdma(c):
        for th in range(2):
            a(f's_add_u32 m0, {sM}, {XS(c) + th*1024}\nbuffer_load_dwordx4 v{vXs+th}, {SX}, {sRx[c]} offen lds', tag=f'w{c}')
        for k in range(4):
            a(f's_add_u32 m0, {sM}, {WQ0 + c*16384 + (k>>1)*8192 + (k&1)*1024}\nbuffer_load_dwordx4 v{vW+k}, {SWQ}, {sR[c]} offen lds', tag=f'w{c}')
    NL = opt('nl', 3)
    for c in range(NL):
        wdma(c)
        if c == 0: srd(a, 16, 32, WS_SIZE); srd(a, 24, 38, 1572864)
    a(f'''v_mul_u32_u24 v{vP}, 768, v1
    s_lshl_b32 s34, {sJ}, 7
    s_add_u32 s68, s34, {GW2}
    s_mul_i32 s69, {sJ}, 53248
    s_add_u32 s69, s69, {WS_W2}
    s_waitcnt lgkmcnt(0)''')
    tag_ready(a)
    for c in range(6):
        a.wait(vm=f'w{c}')
        if c in (0, 3, 5): stamp(a, f'L{c}')
        a('s_barrier')
        if c + NL < 6: wdma(c + NL)
        if c == opt('tpos', 2) and opt('touch', 1):
            a(f'''s_mul_i32 s34, {sG}, 24576
            s_lshl_b32 s35, {sJ}, 12
            s_add_u32 s34, s34, s35
            s_add_u32 s34, s34, {WS_S}
            s_add_u32 s34, s34, {sM1K}
            buffer_load_dwordx4 v[44:47], v{vL16}, {SWS}, s34 offen
            s_lshl_b32 s34, {sG}, 8
            s_add_u32 s34, s34, {FS1}
            v_lshlrev_b32 v48, 2, v1
            buffer_load_dword v49, v48, {SWS}, s34 offen''')
    a(f's_cmp_lg_u32 {sW}, 0\ns_cbranch_scc1 A_ld2')
    gpoll(a, 4, vP, 's68', 40)
    stamp(a, 'Lw2f')
    for gi in range(13):
        if gi == 12: a(f's_add_u32 s68, s69, 49152')
        elif gi == 0:
            if ROT: a(f's_mul_i32 s3, {sXCD}, 3\ns_lshr_b32 s3, s3, 2\ns_lshl_b32 s3, s3, 13\ns_add_u32 s68, s69, s3')
            else: a('s_mov_b32 s68, s69')
        else:
            if ROT and gi % 2 == 0: a('s_add_u32 s3, s3, 8192\ns_cmp_ge_u32 s3, 49152\ns_cselect_b32 s3, 0, s3\ns_add_u32 s68, s69, s3')
            else: a('s_add_u32 s68, s68, 4096')
        a(f's_mov_b32 m0, {W2L + gi*4096}')
        for k in range(4 if gi < 12 else 3): a(f'buffer_load_dwordx4 v{vL16}, {SWS}, s68 offen offset:{k*1024} sc1 lds')
    a.wait_all()
    stamp(a, 'Lw2')
    a.label('A_ld2')
    a(f's_barrier\ns_cmp_lg_u32 {sW}, 1\ns_cbranch_scc1 A_ld3')
    wfetch(a)
    a.label('A_ld3')
    a('s_barrier\ns_branch P2_l')
    a.label('K_pre'); a.vm = []; a.lg = []
    sS8, sIt, sJt, sA, sB, sMm, sT0, sLA, sLB = 's50', 's51', 's52', 's53', 's54', 's55', 's56', 's57', 's58'
    a(f'''s_mov_b32 {sS8}, {sI}
    s_mov_b32 s34, {WE}
    s_and_b32 s59, {sXCD}, 1
    s_lshr_b32 s60, {sXCD}, 1
    s_cmp_lt_u32 {sS8}, 3
    s_cbranch_scc1 W_id0
    s_mul_i32 s35, s60, 9
    s_mul_i32 s61, s59, 5
    s_add_u32 s35, s35, s61
    s_add_u32 s35, s35, {sS8}
    s_sub_u32 s35, s35, 3
    s_mul_i32 s61, s35, 43
    s_lshr_b32 s61, s61, 8
    s_mul_i32 s62, s61, 6
    s_sub_u32 {sJt}, s35, s62
    s_cmp_ge_u32 s61, 3
    s_cselect_b32 {sMm}, 1, 0
    s_mul_i32 s62, {sMm}, 3
    s_sub_u32 {sIt}, s61, s62
    s_add_u32 s62, {sS8}, s59
    s_cmp_ge_u32 s62, 8
    s_cselect_b32 {sMm}, 3, {sMm}
    s_branch W_id1''')
    a.label('W_id0')
    a(f'''s_mov_b32 {sMm}, 2
    s_mov_b32 {sIt}, s60
    s_mul_i32 {sJt}, s59, 3
    s_add_u32 {sJt}, {sJt}, {sS8}''')
    a.label('W_id1')
    a(f'''s_waitcnt lgkmcnt(0)
    s_load_dword {sTag}, s[32:33], s34''')
    srd(a, 16, 32, WS_SIZE); srd(a, 24, 38, 1572864)
    a(f'''s_cmp_eq_u32 {sMm}, 3
    s_cbranch_scc1 W_done
    s_cmp_lg_u32 {sRole}, 0
    s_cbranch_scc1 W_ld''')
    BB = 98304
    FA, FB, AC = 32, 48, 128
    vAr, vBr = 14, 18
    a(f'''v_and_b32 v2, 31, v1
    v_lshrrev_b32 v3, 5, v1
    v_and_b32 v4, 19, v2
    v_bfe_u32 v5, v2, 2, 1
    v_lshl_add_u32 v4, v5, 3, v4
    v_bfe_u32 v5, v2, 3, 1
    v_lshl_add_u32 v4, v5, 2, v4
    v_lshrrev_b32 v5, 3, v4
    v_mul_u32_u24 v5, 6144, v5
    v_and_b32 v6, 7, v4
    v_lshl_add_u32 v5, v6, 7, v5
    v_bfe_u32 v6, v4, 1, 3
    v_xor_b32 v6, v6, v3
    v_lshl_add_u32 v11, v6, 4, v5
    v_bfe_u32 v6, v1, 2, 2
    v_lshl_add_u32 v4, v3, 3, v6
    v_lshlrev_b32 v4, 7, v4
    v_lshrrev_b32 v7, 1, v6
    v_lshl_add_u32 v4, v7, 6, v4
    v_bfe_u32 v7, v1, 4, 1
    v_lshl_add_u32 v12, v7, 5, v4
    s_mov_b32 s37, 0x3f803f80''')
    def a_addr(swave):
        a(f's_mul_i32 s34, {swave}, 24576\nv_add_u32 v{vAr}, s34, v11')
        for k in range(1, 4): a(f'v_xor_b32 v{vAr+k}, {32*k}, v{vAr}')
    def stages(nv, breads):
        for jj in range(6):
            a('s_barrier')
            for k4 in range(4):
                a(f'ds_read_b128 {vr(FA+4*k4,4)}, v{vAr+k4} offset:{jj*1024}', tag=f'r{k4}')
                for v in range(nv): breads(jj, k4, v, FB + (k4*2+v)*4)
            for k4 in range(4):
                a.wait(lg=f'r{k4}')
                for v in range(nv):
                    cin = '0' if (jj == 0 and k4 == 0) else vr(AC+16*v, 16)
                    a(f'v_mfma_f32_32x32x16_bf16 {vr(AC+16*v,16)}, {vr(FA+4*k4,4)}, {vr(FB+(k4*2+v)*4,4)}, {cin}')
    def btr(jj, k4, v, d):
        o = jj*8192 + k4*2048
        a(f'ds_read_b64_tr_b16 {vr(d,2)}, v{vBr+v} offset:{o}\nds_read_b64_tr_b16 {vr(d+2,2)}, v{vBr+v} offset:{o+512}', tag=f'r{k4}')
    def brow(jj, k4, v, d): a(f'ds_read_b128 {vr(d,4)}, v{vBr+k4} offset:{v*24576+jj*1024}', tag=f'r{k4}')
    def colsum(v, src, dst):
        a(f'v_mov_b32 v24, 0')
        for i in range(8): a(f'v_dot2c_f32_bf16 v24, s37, v{src+i}')
        a(f'''v_mov_b32 v26, v24
        v_permlane32_swap_b32 v24, v26
        v_add_f32 v26, v26, v24
        v_cvt_pk_bf16_f32 v27, v26, v26
        v_lshlrev_b32 v27, 16, v27
        v_sub_f32 v27, v26, v27
        v_cvt_pk_bf16_f32 v{dst}, v26, v27''')
    a_addr(sW)
    a(f's_cmp_lg_u32 {sMm}, 2\ns_cbranch_scc1 W_c0')
    a(f'''s_min_u32 s59, {sW}, 2''')
    a_addr('s59')
    a(f'''v_and_b32 v7, 1, v1
    v_lshl_add_u32 v4, v7, 4, v12
    v_bfe_u32 v7, v1, 1, 1
    v_lshl_add_u32 v4, v7, 3, v4
    v_add_u32 v{vBr}, {BB}, v4
    v_xor_b32 v{vBr+1}, 64, v{vBr}
    s_mul_i32 s34, {sIt}, 3
    s_add_u32 s34, s34, s59
    s_mul_i32 s35, {sJt}, 53248
    s_add_u32 s35, s35, {WS_W2}
    s_lshl_b32 s36, s34, 12
    s_add_u32 s61, s35, s36
    s_lshl_b32 s36, s34, 8
    s_add_u32 s35, s35, s36
    s_add_u32 s62, s35, 49152
    v_lshlrev_b32 v30, 2, v1
    s_mul_i32 s63, {sIt}, 6
    s_add_u32 s63, s63, {sJt}
    s_lshl_b32 s63, s63, 7
    s_mov_b32 s64, {GW2}''')
    stages(2, btr)
    stamp(a, 'pst')
    a(f's_cmp_eq_u32 {sW}, 3\ns_cbranch_scc1 W_c4')
    for v in range(2):
        for i in range(8): a(f'v_cvt_pk_bf16_f32 v{32+8*v+i}, v{AC+16*v+2*i}, v{AC+16*v+2*i+1}')
        a(f'buffer_store_dwordx4 {vr(32+8*v,4)}, v{vL16}, {SWS}, s61 offen offset:{v*1024} {WT}\nbuffer_store_dwordx4 {vr(36+8*v,4)}, v{vL16}, {SWS}, s61 offen offset:{2048+v*1024} {WT}')
    for v in range(2): colsum(v, 32+8*v, 28+v)
    a('s_mov_b32 exec_hi, 0')
    for v in range(2): a(f'buffer_store_dword v{28+v}, v30, {SWS}, s62 offen offset:{v*128} {WT}')
    a('s_mov_b32 exec_hi, -1')
    a.label('W_c4')
    a.wait_all()
    tag_ready(a)
    a('s_barrier')
    flag_w0(a, 's63', 's64', 48)
    stamp(a, 'w2pub')
    a('s_branch W_done2')
    a.label('W_c0'); a.lg = []; a.vm = []
    a(f's_cmp_eq_u32 {sMm}, 1\ns_cbranch_scc1 W_c1')
    a(f'''v_lshrrev_b32 v5, 3, v2
    v_mul_u32_u24 v5, 6144, v5
    v_and_b32 v6, 7, v2
    v_lshl_add_u32 v5, v6, 7, v5
    v_bfe_u32 v6, v2, 1, 3
    v_xor_b32 v6, v6, v3
    v_lshl_add_u32 v5, v6, 4, v5
    v_add_u32 v{vBr}, {BB}, v5''')
    for k in range(1, 4): a(f'v_xor_b32 v{vBr+k}, {32*k}, v{vBr}')
    stages(2, brow)
    a('s_branch W_c2')
    a.label('W_c1'); a.lg = []
    a(f'''v_and_b32 v7, 3, v1
    v_lshl_add_u32 v4, v7, 3, v12
    v_add_u32 v{vBr}, {BB}, v4
    v_xor_b32 v{vBr+1}, 64, v{vBr}''')
    stages(2, btr)
    a.label('W_c2')
    a(f'''s_mul_i32 s34, {sMm}, 24
    s_lshl_b32 s35, {sJt}, 2
    s_add_u32 s34, s34, s35
    v_bfe_u32 v4, v1, 4, 1
    v_add_u32 v4, s34, v4
    v_and_b32 v7, 15, v1
    v_lshlrev_b32 v7, 4, v7
    s_lshl_b32 s35, {sIt}, 2
    s_add_u32 s35, s35, {sW}
    s_mul_i32 s35, s35, 3072
    s_add_u32 s35, s35, {WS_W}
    s_lshl_b32 s36, {sIt}, 8
    s_lshl_b32 s34, {sW}, 2
    s_add_u32 s36, s36, s34
    s_add_u32 s36, s36, {WS_W + 12*3072}''')
    for v in range(2):
        a(f'''v_add_u32 v5, {2*v}, v4
        v_mul_u32_u24 v6, 43, v5
        v_lshrrev_b32 v6, 7, v6
        v_mul_u32_u24 v8, 3, v6
        v_sub_u32 v5, v5, v8
        v_mul_u32_u24 v6, 39936, v6
        v_lshl_add_u32 v6, v5, 10, v6
        v_add_u32 v{20+v}, v6, v7
        v_lshl_add_u32 v{22+v}, v3, 8, v{20+v}''')
        for i in range(8): a(f'v_cvt_pk_bf16_f32 v{32+8*v+i}, v{AC+16*v+2*i}, v{AC+16*v+2*i+1}')
        a(f'buffer_store_dwordx4 {vr(32+8*v,4)}, v{22+v}, {SWS}, s35 offen {WT}')
        a(f'buffer_store_dwordx4 {vr(36+8*v,4)}, v{22+v}, {SWS}, s35 offen offset:512 {WT}')
        colsum(v, 32+8*v, 28+v)
    a('s_mov_b32 exec_hi, 0')
    for v in range(2): a(f'buffer_store_dword v{28+v}, v{20+v}, {SWS}, s36 offen {WT}')
    a('s_mov_b32 exec_hi, -1')
    a('s_branch W_done')
    a.label('W_ld'); a.vm = []; a.lg = []
    vA0, vBo = 12, 14
    a(f'''v_lshrrev_b32 v4, 1, v{T8}
    v_xor_b32 v4, v4, v{G8}
    v_mul_u32_u24 v5, 2304, v{T8}
    v_lshl_add_u32 v{vA0}, v4, 4, v5
    v_xor_b32 v{vA0+1}, 64, v{vA0}
    v_lshlrev_b32 v4, 1, v{T8}
    v_and_b32 v4, 4, v4
    v_xor_b32 v4, v4, v{G8}
    v_mul_u32_u24 v5, 768, v{T8}
    v_lshl_add_u32 v{vBo}, v4, 4, v5''')
    def lstages(nra, mode):
        def issue(jj):
            for r in range(nra):
                a(f'''s_add_u32 {sT0}, {sA}, {r*8*2304 + jj*128}
                s_add_u32 m0, {sLA}, {(r*6+jj)*1024}
                buffer_load_dwordx4 v{vA0+(r&1)}, {SWQ}, {sT0} offen lds''', tag=f'p{jj}')
            for r in range(2):
                if mode == 0:
                    a(f'''s_add_u32 {sT0}, {sB}, {r*8*2304 + jj*128}
                    s_add_u32 m0, {sLB}, {BB + (r*6+jj)*1024}
                    buffer_load_dwordx4 v{vA0+r}, {SWQ}, {sT0} offen lds''', tag=f'p{jj}')
                else:
                    a(f'''s_add_u32 {sT0}, {sB}, {(jj*64 + r*8)*768}
                    s_add_u32 m0, {sLB}, {BB + jj*8192 + r*1024}
                    buffer_load_dwordx4 v{vBo}, {SWO}, {sT0} offen lds''', tag=f'p{jj}')
        n0 = opt('pn0', 3)
        for jj in range(n0): issue(jj)
        for jj in range(6):
            a.wait(vm=f'p{jj}')
            if jj in (0, 3, 5) and nra == 3: stamp(a, f'Lp{jj}')
            a('s_barrier')
            if jj + n0 < 6: issue(jj + n0)
    a(f's_cmp_lg_u32 {sMm}, 2\ns_cbranch_scc1 W_l0')
    srd(a, 8, 22, 884736); srd(a, 12, 28, 294912)
    a(f'''s_lshl_b32 s34, {sIt}, 2
    s_add_u32 s34, s34, {sW}
    s_mul_i32 {sA}, s34, {24*2304}
    s_add_u32 {sA}, {sA}, 1536
    s_mul_i32 {sLA}, {sW}, 18432
    s_mul_i32 {sB}, {sW}, {16*768}
    s_lshl_b32 s34, {sJt}, 7
    s_add_u32 {sB}, {sB}, s34
    s_lshl_b32 {sLB}, {sW}, 11
    s_and_b32 s34, {sW}, 1
    s_lshl_b32 s34, s34, 6
    v_xor_b32 v{vA0}, s34, v{vA0}
    v_xor_b32 v{vA0+1}, s34, v{vA0+1}''')
    lstages(3, 1)
    a('s_branch W_done')
    a.label('W_l0'); a.vm = []
    srd(a, 8, 30, 884736); srd(a, 12, 36, 294912)
    a(f'''s_lshl_b32 s34, {sIt}, 2
    s_add_u32 s34, s34, {sW}
    s_mul_i32 {sA}, s34, {32*2304}
    s_mul_i32 s35, {sMm}, 1536
    s_add_u32 {sA}, {sA}, s35
    s_mul_i32 {sLA}, {sW}, 24576
    s_cmp_eq_u32 {sMm}, 1
    s_cbranch_scc1 W_l1
    s_lshl_b32 s34, {sJt}, 2
    s_add_u32 s34, s34, {sW}
    s_mul_i32 {sB}, s34, {16*2304}
    s_add_u32 {sB}, {sB}, 768
    s_mul_i32 {sLB}, {sW}, 12288''')
    lstages(4, 0)
    a('s_branch W_done')
    a.label('W_l1'); a.vm = []
    a(f'''s_mul_i32 {sB}, {sW}, {16*768}
    s_lshl_b32 s34, {sJt}, 7
    s_add_u32 {sB}, {sB}, s34
    s_lshl_b32 {sLB}, {sW}, 11''')
    lstages(4, 1)
    a.label('W_done'); a.vm = []; a.lg = []
    a.wait_all()
    tag_ready(a)
    a(f'''s_barrier
    s_cmp_lg_u32 {sRole}, 0
    s_cbranch_scc1 W_done3''')
    a.label('W_done2')
    a(f'''
    s_lshl_b32 s34, {sS8}, 3
    s_add_u32 s34, s34, {sXCD}
    s_lshl_b32 s34, s34, 7
    s_mov_b32 s35, {GW}''')
    flag_w0(a, 's34', 's35', 32)
    stamp(a, 'wpub')
    hp_t0(a)
    def wd3():
        a.label('W_done3')
        a(f's_cmp_lg_u32 {sW}, 1\ns_cbranch_scc1 P2_l')
        wfetch(a)
        a('s_branch P2_l')
    TAIL.append(wd3)
    import v7b
    v7b.phase2(a, globals())
    a.label('K_end')
    a('s_endpgm')
    a.cond = True
    k = 0
    while k < len(TAIL): a.vm = []; a.lg = []; TAIL[k](); k += 1
    return a

KNAME = 'standalone__video_timesformer__vision_kernel'
if __name__ == '__main__':
    out = sys.argv[1]
    a = build()
    head = open('standalone__video_timesformer__vision.s.ref').read().split('; Override launch')[0]
    s = head + '; @launch grid=(256,1,1) block=(512,1,1) lds=147456\n.amdgcn_target "amdgcn-amd-amdhsa--gfx950"\n.text\n'
    s += f'.globl {KNAME}\n.p2align 8\n.type {KNAME},@function\n{KNAME}:\n' + a.text()
    s += f'''.fill 4096, 4, 0xbf800000
  s_endpgm
.section .rodata,"a"
.p2align 6
.amdhsa_kernel {KNAME}
  .amdhsa_next_free_vgpr 256
  .amdhsa_next_free_sgpr 102
  .amdhsa_accum_offset 256
  .amdhsa_group_segment_fixed_size 0
  .amdhsa_kernarg_size 64
  .amdhsa_user_sgpr_count 2
  .amdhsa_user_sgpr_kernarg_segment_ptr 1
  .amdhsa_system_sgpr_workgroup_id_x 1
.end_amdhsa_kernel
'''
    open(out, 'w').write(s)
    if PROFILE: open(out + '.stamps', 'w').write(repr(St.names))
    print('instructions', sum(1 for i in a.ins if not i.label), 'pad states', a.pads)
```

```python
def phase2(a, G):
    globals().update({k: v for k, v in G.items() if not k.startswith('__')})
    sT = sXCD
    sRH, sS, sQT, sCH, sT0, sT1 = 's50', 's51', 's52', 's53', 's54', 's55'
    sK, sSt1, sSt2, sQ, sVP, sOut, sF1, sF2, sOwn, sE8, sRs = 's56', 's57', 's58', 's59', 's60', 's61', 's62', 's63', 's64', 's65', 's66'
    LW, LT, LQ, LP, LML, LO = 0, 40960, 49152, 0, 71680, 73728
    vWa, vWb = 116, 117
    vL16, vW12, vTb, vA, vB, vSt = 10, 11, 12, 15, 9, 8
    RD, MF = 16, 24
    KF, SR = 160, 120
    def common(role):
        a(f'''s_lshr_b32 {sRH}, {sI}, 4
        s_and_b32 {sS}, {sI}, 15
        s_lshr_b32 {sQT}, {sI}, 1
        s_and_b32 {sCH}, {sI}, 1
        s_xor_b32 s34, {sRH}, {role}
        s_lshl_b32 {sE8}, {sW}, 1
        s_add_u32 {sE8}, {sE8}, s34
        s_lshl_b32 s34, s34, 2
        s_add_u32 s34, s34, {sW}
        s_mul_i32 {sK}, s34, 24576
        s_mul_i32 s35, {sT}, 196608
        s_add_u32 {sK}, {sK}, s35
        s_add_u32 {sK}, {sK}, {WS_X1}
        s_lshl_b32 s34, s34, 9
        s_mul_i32 s35, {sT}, 49152
        s_add_u32 s34, s34, s35
        s_add_u32 {sSt1}, s34, {WS_ST}
        s_lshl_b32 s34, {sT}, 9
        s_add_u32 {sF1}, s34, {FC1}
        s_add_u32 {sF2}, s34, {FC2}
        s_lshl_b32 s34, {sT}, 4
        s_add_u32 s34, s34, {sQT}
        s_mul_i32 {sQ}, s34, 13312
        s_add_u32 {sQ}, {sQ}, {WS_Q}
        v_lshrrev_b32 v2, 4, v1
        v_and_b32 v3, 15, v1
        v_lshrrev_b32 v4, 5, v1
        v_bfe_u32 v5, v1, 4, 1
        v_and_b32 v6, 31, v1
        v_lshlrev_b32 v{vSt}, 4, v6
        v_mul_u32_u24 v7, 24576, v4
        v_add_u32 v{vSt}, v{vSt}, v7
        v_cmp_eq_u32 vcc, 3, v2
        v_lshlrev_b32 v7, 4, v3
        v_cndmask_b32 v{vW12}, v{vL16}, v7, vcc
        s_add_u32 s34, {sM1K}, {LT + role*4096}
        v_lshl_add_u32 v{vTb}, v6, 2, s34
        v_lshl_add_u32 v{vTb+1}, v3, 2, s34
        v_lshl_add_u32 v{vTb+2}, v2, 4, s34''')
    def stats_load():
        for i in range(6):
            if i: a(f's_add_u32 {sSt1}, {sSt1}, 4096')
            a(f'buffer_load_dwordx4 {vr(SR+4*i,4)}, v{vSt}, {SWS}, {sSt1} offen sc1', tag='st')
    def stats_math(need_rt, defer=False):
        q = [f's_mov_b32 s36, {fbits(1/384)}', f's_mov_b32 s37, {fbits(1e-5)}', ('v', 'st')]
        for k in (0, 1): q += [f'v_add_f32 v{SR+k}, v{SR+k}, v{SR+4+k}', f'v_add_f32 v{SR+8+k}, v{SR+8+k}, v{SR+12+k}', f'v_add_f32 v{SR+16+k}, v{SR+16+k}, v{SR+20+k}']
        for k in (0, 1): q += [f'v_add_f32 v{SR+k}, v{SR+k}, v{SR+8+k}']
        for k in (0, 1): q += [f'v_add_f32 v{SR+k}, v{SR+k}, v{SR+16+k}']
        q += f'''v_mov_b32 v{SR+2}, v{SR}
        v_mov_b32 v{SR+3}, v{SR+1}
        v_cmp_eq_u32 vcc, 3, v2
        v_permlane32_swap_b32 v{SR}, v{SR+2}
        v_permlane32_swap_b32 v{SR+1}, v{SR+3}
        v_add_f32 v{SR}, v{SR}, v{SR+2}
        v_add_f32 v{SR+1}, v{SR+1}, v{SR+3}
        v_mul_f32 v{SR}, s36, v{SR}
        v_mul_f32 v{SR+2}, v{SR}, v{SR}
        v_fma_f32 v{SR+1}, v{SR+1}, s36, -v{SR+2}
        v_max_f32 v{SR+1}, 0, v{SR+1}
        v_add_f32 v{SR+1}, s37, v{SR+1}
        v_rsq_f32 v{SR+1}, v{SR+1}
        v_cvt_pk_bf16_f32 v{SR}, -v{SR}, -v{SR}
        ds_write_b32 v{vTb}, v{SR}
        ds_write_b32 v{vTb}, v{SR+1} offset:128'''.split('\n')
        q.append((f'ds_read2_b32 {vr(SR+4,2)}, v{vTb+1} offset0:0 offset1:16', 't'))
        if need_rt: q.append((f'ds_read2_b32 {vr(RT,2)}, v{vTb+1} offset0:32 offset1:48', 't'))
        for t in range(2): q.append((f'ds_read_b128 {vr(RD+4*t,4)}, v{vTb+2} offset:{128+64*t}', 't'))
        q += ['s_nop 0', 's_nop 0', 's_nop 0', 's_nop 0'] if defer else []
        q.append(('l', 't'))
        for t in range(2):
            q.append(f'v_cndmask_b32 v{MF+4*t}, v{SR+4+t}, 0, vcc')
            for d in range(1, 4): q.append(f'v_mov_b32 v{MF+4*t+d}, v{MF+4*t}')
        if defer: return q
        run(q, 1000)
    def run(q, n):
        while n > 0 and q:
            x = q.pop(0); n -= 1
            if x == 's_nop 0': continue
            if isinstance(x, tuple):
                if x[0] == 'v': a.wait(vm=x[1])
                elif x[0] == 'l': a.wait(lg=x[1])
                else: a(x[0], tag=x[1])
            else: a(x)
    def kld(t, ks):
        off = t*12288 + ks*1024
        a(f's_add_u32 {sT0}, {sK}, {off & ~4095}\nbuffer_load_dwordx4 {vr(KF+(t*12+ks)*4,4)}, v{vL16}, {SWS}, {sT0} offen offset:{off & 4095} sc1', tag=f'k{t}_{ks}')
    QF, SA, VF, RT = 32, 56, 64, 6
    vP, vML, vMLr = 13, 14, 12
    M_, T_ = 4, 5
    def attn_addr(role):
        a(f'''s_lshl_b32 s34, {sE8}, 10
        s_add_u32 s34, s34, {LP}
        v_add_u32 v{vP}, s34, v{vL16}
        s_lshl_b32 s34, {sE8}, 2
        s_add_u32 s34, s34, {LML}
        v_lshl_add_u32 v{vML}, v3, 5, s34
        v_lshlrev_b32 v{vMLr}, 5, v3
        v_add_u32 v{vMLr}, {LML}, v{vMLr}''')
    def scores(fill):
        def qrd(ks): a(f'ds_read_b128 {vr(QF+4*(ks%4),4)}, v{vL16 if ks < 12 else vW12} offset:{LQ + ks*1024}', tag=f'q{ks}')
        for ks in range(3): qrd(ks)
        for ks in range(13):
            a.wait(lg=f'q{ks}')
            for t in range(2):
                kf = vr(KF+(t*12+ks)*4, 4) if ks < 12 else vr(MF+4*t, 4)
                d = vr(SA+4*t, 4)
                a(f'v_mfma_f32_16x16x32_bf16 {d}, {kf}, {vr(QF+4*(ks%4),4)}, {"0" if ks == 0 else d}')
            if ks + 3 < 13: qrd(ks + 3)
            if ks % 2 == 1 or opt('vfast', 0): fill()
        for i in range(8): a(f'v_mul_f32 v{SA+i}, v{SA+i}, v{RD+i}')
        a(f'v_max3_f32 v{M_}, v{SA}, v{SA+1}, v{SA+2}\nv_max3_f32 v{T_}, v{SA+3}, v{SA+4}, v{SA+5}\nv_max3_f32 v{M_}, v{M_}, v{SA+6}, v{SA+7}\nv_max_f32 v{M_}, v{M_}, v{T_}')
        for sw in ('v_permlane16_swap_b32', 'v_permlane32_swap_b32'):
            a(f'v_mov_b32 v{T_}, v{M_}'); fill(); a(f'{sw} v{M_}, v{T_}\nv_max_f32 v{M_}, v{M_}, v{T_}')
        a(f's_mov_b64 exec, 0xffff\nds_write_b32 v{vML}, v{M_}\ns_mov_b64 exec, -1')
        fill()
        a('s_waitcnt lgkmcnt(0)'); a.lg = []
        a('s_barrier')
        a(f'ds_read_b128 {vr(QF,4)}, v{vMLr}\nds_read_b128 {vr(QF+4,4)}, v{vMLr} offset:16', tag='mx')
        fill(); fill()
        a.wait(lg='mx')
        a(f'v_max3_f32 v{M_}, v{QF}, v{QF+1}, v{QF+2}\nv_max3_f32 v{T_}, v{QF+3}, v{QF+4}, v{QF+5}\nv_max3_f32 v{M_}, v{M_}, v{QF+6}, v{QF+7}\nv_max_f32 v{M_}, v{M_}, v{T_}')
        for i in range(8): a(f'v_sub_f32 v{SA+i}, v{SA+i}, v{M_}')
        for i in range(8): a(f'v_exp_f32 v{SA+i}, v{SA+i}')
        for i in range(4): a(f'v_cvt_pk_bf16_f32 v{QF+i}, v{SA+2*i}, v{SA+2*i+1}')
        a(f'ds_write_b128 v{vP}, {vr(QF,4)}')
        for w_ in (4, 2, 1):
            for i in range(w_): a(f'v_add_f32 v{SA+i}, v{SA+i}, v{SA+i+w_}')
        for sw in ('v_permlane16_swap_b32', 'v_permlane32_swap_b32'):
            a(f'v_mov_b32 v{T_}, v{SA}'); fill(); a(f'{sw} v{SA}, v{T_}\nv_add_f32 v{SA}, v{SA}, v{T_}')
        a(f's_mov_b64 exec, 0xffff\nds_write_b32 v{vML}, v{SA} offset:512\ns_mov_b64 exec, -1')
        a('s_waitcnt lgkmcnt(0)'); a.lg = []
        a('s_barrier')
    a.label('P2_c'); a.vm = []; a.lg = []
    stamp(a, 'p2c')
    common(0)
    WF, ACC, PK = 32, 76, 100
    a(f'''v_lshlrev_b32 v7, 4, v3
    v_lshl_add_u32 v{vA}, v4, 8, v7
    v_lshl_add_u32 v{vA}, v5, 3, v{vA}
    v_mul_u32_u24 v{vB}, 13312, v5
    v_add_u32 v{vB}, v{vB}, v7
    s_lshr_b32 s34, {sS}, 2
    s_lshl_b32 s34, s34, 8
    v_mov_b32 v6, s34
    v_cmp_eq_u32 vcc, 1, v4
    v_mov_b32 v7, 512
    v_cndmask_b32 v6, v6, v7, vcc
    v_add_u32 v{vB}, v{vB}, v6
    s_lshl_b32 {sOwn}, {sI}, 4
    s_lshl_b32 s34, {sW}, 2
    s_add_u32 {sOwn}, {sOwn}, s34
    s_mul_i32 {sVP}, {sT}, 196608
    s_mul_i32 s35, {sQT}, 12288
    s_add_u32 {sRs}, {sVP}, s35
    s_mul_i32 s34, {sCH}, 6144
    s_add_u32 {sRs}, {sRs}, s34
    s_mul_i32 s34, {sW}, 1536
    s_add_u32 {sRs}, {sRs}, s34
    s_add_u32 {sRs}, {sRs}, {WS_X1}
    s_add_u32 {sOut}, {sVP}, s35
    s_mul_i32 s35, {sCH}, 384
    s_add_u32 {sOut}, {sOut}, s35
    s_mul_i32 s35, {sW}, 96
    s_add_u32 {sOut}, {sOut}, s35
    s_mul_i32 s34, {sE8}, 24576
    s_add_u32 s34, s34, {sVP}
    s_mul_i32 s35, {sS}, 3072
    s_add_u32 s34, s34, s35
    s_add_u32 s67, s34, {WS_VP - 8*3072}
    s_mul_i32 s35, {sCH}, 12288
    s_add_u32 {sVP}, {sVP}, s35
    s_mul_i32 s35, {sW}, 3072
    s_add_u32 {sVP}, {sVP}, s35
    s_add_u32 {sVP}, {sVP}, {WS_VP}
    s_lshl_b32 s34, {sT}, 4
    s_lshl_b32 s35, {sRH}, 3
    s_add_u32 s34, s34, s35
    s_lshl_b32 s35, {sW}, 1
    s_add_u32 s34, s34, s35
    s_mul_i32 s34, s34, 13312
    s_add_u32 s34, s34, {WS_Q}
    s_mul_i32 s35, {sS}, 1536
    s_add_u32 s68, s34, s35
    s_and_b32 s35, {sS}, 3
    s_lshl_b32 s35, s35, 2
    s_add_u32 s34, s34, s35
    s_add_u32 {sSt2}, s34, 12288''')
    a(f'v_add_u32 v{vWa}, {LW34}, v{vL16}\nv_lshrrev_b32 v6, 8, v{vW12}\nv_mul_u32_u24 v6, 768, v6\nv_lshl_add_u32 v6, v3, 2, v6\nv_add_u32 v{vWb}, {LW34 + 36864}, v6')
    stamp(a, 'p2s')
    a('s_barrier')
    stamp(a, 'gsync')
    AHEAD = opt('ahead', 5)
    STP = opt('stp', 1)
    for ks in range(AHEAD):
        if ks == STP: stats_load()
        kld(0, ks); kld(1, ks)
    def wrd(ks, u):
        d = WF + (ks%2)*12 + 4*u
        if ks < 12: a(f'ds_read_b128 {vr(d,4)}, v{vWa} offset:{(ks*3+u)*1024}', tag=f'f{ks}_{u}')
        else: a(f'ds_read2_b32 {vr(d,2)}, v{vWb} offset0:{16*u} offset1:{16*u+48}\nds_read2_b32 {vr(d+2,2)}, v{vWb} offset0:{16*u+96} offset1:{16*u+144}', tag=f'f{ks}_{u}')
    late = stats_math(True, True)
    late += [f'v_mul_f32 v{RT}, {fbits(SCALE2)}, v{RT}', f'v_mul_f32 v{RT+1}, {fbits(SCALE2)}, v{RT+1}']
    stamp(a, 'mm2')
    a(f's_cmp_ge_u32 {sS}, 8\ns_cbranch_scc1 P2_v')
    for var in range(2):
        if var == 0: vmsave, lgsave = list(a.vm), list(a.lg)
        else: a.label('P2_v'); a.vm, a.lg = list(vmsave), list(lgsave)
        lq = list(late)
        for u in range(3): wrd(0, u)
        for ks in range(13):
            if ks == 12: run(lq, 1000)
            if ks + AHEAD < 12:
                if ks + AHEAD == STP: stats_load()
                kld(0, ks + AHEAD); kld(1, ks + AHEAD)
            if ks + AHEAD == 12 - opt('bke', 1) and opt('bk', 1): a('s_barrier')
            if ks < 12: a.wait(vm=f'k1_{ks}')
            if ks in (0, 4, 8, 11): stamp(a, f'k{ks}')
            for u in range(3):
                a.wait(lg=f'f{ks}_{u}')
                wf = vr(WF + (ks%2)*12 + 4*u, 4)
                for t in range(2):
                    xf = vr(KF+(t*12+ks)*4, 4) if ks < 12 else vr(MF+4*t, 4)
                    d = vr(ACC + (t*3+u)*4, 4)
                    A, B = (wf, xf) if var == 0 else (xf, wf)
                    a(f'v_mfma_f32_16x16x32_bf16 {d}, {A}, {B}, {"0" if ks == 0 else d}')
                if ks < 12: wrd(ks + 1, u)
                if ks >= max(1, STP - AHEAD + 3): run(lq, 2 if STP < AHEAD else 3)
        stamp(a, 'mm2end')
        if var == 0:
            AQ = 112
            a(f'v_mov_b32 v{AQ}, 0\nv_mov_b32 v{AQ+1}, 0\ns_mov_b32 s36, 0x3f803f80\ns_mov_b32 {sSt1}, s68')
            for t in range(2):
                for u in range(3):
                    b = ACC + (t*3+u)*4
                    for d in range(2): a(f'v_pk_mul_f32 {vr(b+2*d,2)}, {vr(b+2*d,2)}, {vr(RT,2)} op_sel:[0,{t}] op_sel_hi:[1,{t}]')
                    for d in range(2): a(f'v_cvt_pk_bf16_f32 v{PK+(t*3+u)*2+d}, v{b+2*d}, v{b+2*d+1}')
            def pub0(s1, s2, fl, first=False):
                for t in range(2):
                    if t: a(f's_add_u32 {sT1}, {s1}, 13312')
                    for u in range(3):
                        a(f'buffer_store_dwordx2 {vr(PK+(t*3+u)*2,2)}, v{vA}, {SWS}, {sT1 if t else s1} offen offset:{u*512} {fl}')
                if first:
                    for i in range(6):
                        for t in range(2): a(f'v_dot2c_f32_bf16 v{AQ+t}, s36, v{PK+t*6+i}')
                    for sw in ('v_permlane16_swap_b32', 'v_permlane32_swap_b32'):
                        a(f'v_mov_b32 v{AQ+2}, v{AQ}\nv_mov_b32 v{AQ+3}, v{AQ+1}\n{sw} v{AQ}, v{AQ+2}\n{sw} v{AQ+1}, v{AQ+3}\nv_add_f32 v{AQ}, v{AQ}, v{AQ+2}\nv_add_f32 v{AQ+1}, v{AQ+1}, v{AQ+3}')
                    a(f'''v_cmp_eq_u32 vcc, 1, v5
                    v_cndmask_b32 v{AQ}, v{AQ}, v{AQ+1}, vcc
                    v_cvt_pk_bf16_f32 v{AQ+1}, v{AQ}, v{AQ}
                    v_lshlrev_b32 v{AQ+1}, 16, v{AQ+1}
                    v_sub_f32 v{AQ+1}, v{AQ}, v{AQ+1}
                    v_cvt_pk_bf16_f32 v{AQ}, v{AQ}, v{AQ+1}
                    s_mov_b32 exec_lo, 0
                    v_mov_b32 v{AQ}, 0
                    s_mov_b32 exec_lo, -1''')
                a(f'buffer_store_dword v{AQ}, v{vB}, {SWS}, {s2} offen {fl}')
            pub0(sSt1, sSt2, '', True)
            a('s_branch P2_j')
        else:
            a(f's_mov_b32 {sSt1}, s67')
            for u in range(3):
                for t in range(2):
                    b = ACC + (t*3+u)*4
                    for d in range(2): a(f'v_pk_mul_f32 {vr(b+2*d,2)}, {vr(b+2*d,2)}, {vr(RD+4*t+2*d,2)}')
                    for d in range(2): a(f'v_cvt_pk_bf16_f32 v{PK+u*4+t*2+d}, v{b+2*d}, v{b+2*d+1}')
            def pub1(s1, fl):
                for u in range(3): a(f'buffer_store_dwordx4 {vr(PK+4*u,4)}, v{vL16}, {SWS}, {s1} offen offset:{u*1024} {fl}')
            pub1(sSt1, '')
    a.label('P2_j')
    attn_addr(0)
    vOW, vOR, vOG = 116, 117, 119
    a.wait_all()
    flag(a, sOwn, sF1, sFast, 6, '')
    stamp(a, 'flag2')
    RS = 48
    for u in range(3): a(f'buffer_load_dwordx2 {vr(RS+2*u,2)}, v{vA}, {SWS}, {sRs} offen offset:{u*512} sc1', tag='rs')
    def repub():
        L1, L2 = a.newlabel('rp'), a.newlabel('rp')
        a(f's_add_u32 s36, {sSt1}, {SLOW}\ns_add_u32 s37, {sSt2}, {SLOW}\ns_cmp_ge_u32 {sS}, 8\ns_cbranch_scc1 {L1}')
        pub0('s36', 's37', 'sc0 sc1'); a(f's_branch {L2}')
        a.label(L1); pub1('s36', 'sc0 sc1'); a.label(L2)
    lsync(a, 32, True, sF1, sF2, sOwn, repub, 32)
    stamp(a, 'sync2')
    a(f's_add_u32 {sVP}, {sVP}, {sDelta}\ns_add_u32 {sQ}, {sQ}, {sDelta}\ns_add_u32 {sT1}, {sQ}, {sM1K}')
    for i in range(3):
        a(f's_add_u32 {sT0}, {sT1}, {i*4096}\ns_add_u32 m0, {sM1K}, {LQ + i*4096}\nbuffer_load_dwordx4 v{vL16}, {SWS}, {sT0} offen sc1 lds', tag='q')
    a(f's_add_u32 {sT0}, {sQ}, 12288\ns_mov_b32 m0, {LQ + 12288}\nbuffer_load_dwordx4 v{vL16}, {SWS}, {sT0} offen sc1 lds', tag='q')
    vq = []
    for k8 in range(8):
        for u in range(3):
            vq.append(((f's_add_u32 {sVP}, {sVP}, 24576\n' if k8 and u == 0 else '') + f'buffer_load_dwordx4 {vr(VF+(k8*3+u)*4,4)}, v{vL16}, {SWS}, {sVP} offen offset:{u*1024} sc1', f'vp{k8}'))
    def fill():
        if vq: x = vq.pop(0); a(x[0], tag=x[1])
    for _ in range(opt('nv0', 5)): fill()
    a.wait(vm='q')
    a('s_barrier')
    stamp(a, 'q_in')
    scores(fill)
    stamp(a, 'p_done')
    while vq: fill()
    PF, PA, RF, ML = 160, 32, 200, 212
    for k8 in range(8): a(f'ds_read_b128 {vr(PF+4*k8,4)}, v{vL16} offset:{LP + k8*1024}', tag=f'p{k8}')
    a(f'ds_read_b128 {vr(ML,4)}, v{vMLr} offset:512\nds_read_b128 {vr(ML+4,4)}, v{vMLr} offset:528', tag='ml')
    vOW, vOR, vOG = 220, 221, 223
    fx = [f's_lshl_b32 s35, {sW}, 11', f's_add_u32 s35, s35, {LO}', f'v_mul_u32_u24 v{vOW}, 112, v3', f'v_lshl_add_u32 v{vOW}, v2, 3, v{vOW}', f'v_add_u32 v{vOW}, s35, v{vOW}']
    for h in range(2):
        fx += [f'v_add_u32 v6, {64*h}, v1', 'v_mul_u32_u24 v7, 43, v6', 'v_lshrrev_b32 v7, 8, v7', 'v_mul_u32_u24 v4, 6, v7', 'v_sub_u32 v4, v6, v4', 'v_lshlrev_b32 v4, 4, v4',
               'v_mul_u32_u24 v6, 112, v7', f'v_add3_u32 v{vOR+h}, v6, v4, s35', 'v_mul_u32_u24 v6, 768, v7', f'v_add_u32 v{vOG+h}, v6, v4']
    fx += [('l', 'ml')] + [f'v_add_f32 v{ML+i}, v{ML+i}, v{ML+4+i}' for i in range(4)] + [f'v_add_f32 v{ML}, v{ML}, v{ML+1}', f'v_add_f32 v{ML+2}, v{ML+2}, v{ML+3}', f'v_add_f32 v{ML}, v{ML}, v{ML+2}', f'v_rcp_f32 v{ML}, v{ML}', ]
    fx = ['s_mov_b32 s36, 0xffff0000'] + [x for u in range(3) for d in range(2) for x in (f'v_lshlrev_b32 v{RF+4*u+2*d}, 16, v{RS+2*u+d}', f'v_and_b32 v{RF+4*u+2*d+1}, s36, v{RS+2*u+d}')] + fx
    def fxd(n):
        while n > 0 and fx:
            x = fx.pop(0)
            if isinstance(x, tuple): a.wait(lg=x[1])
            else: a(x); n -= 1
    for k8 in range(8):
        a.wait(vm=f'vp{k8}', lg=f'p{k8}')
        for u in range(3):
            d = vr(PA + 4*u, 4)
            a(f'v_mfma_f32_16x16x32_bf16 {d}, {vr(VF+(k8*3+u)*4,4)}, {vr(PF+4*k8,4)}, {"0" if k8 == 0 else d}')
            fxd(3)
    fxd(1000)
    stamp(a, 'pv_done')
    OP = 192
    for u in range(3):
        for d in range(2): a(f'v_pk_fma_f32 {vr(RF+4*u+2*d,2)}, {vr(PA+4*u+2*d,2)}, {vr(ML,2)}, {vr(RF+4*u+2*d,2)} op_sel_hi:[1,0,1]')
        for d in range(2): a(f'v_cvt_pk_bf16_f32 v{OP+2*u+d}, v{RF+4*u+2*d}, v{RF+4*u+2*d+1}')
        a(f'ds_write_b64 v{vOW}, {vr(OP+2*u,2)} offset:{u*32}')
    a(f'ds_read_b128 {vr(56,4)}, v{vOR}', tag='o0')
    a(f's_mov_b32 exec_hi, 0\nds_read_b128 {vr(60,4)}, v{vOR+1}\ns_mov_b32 exec_hi, -1', tag='o1')
    a.wait(lg='o0')
    a(f'buffer_store_dwordx4 {vr(56,4)}, v{vOG}, {SOUT}, {sOut} offen')
    a.wait(lg='o1')
    a(f's_mov_b32 exec_hi, 0\nbuffer_store_dwordx4 {vr(60,4)}, v{vOG+1}, {SOUT}, {sOut} offen\ns_mov_b32 exec_hi, -1')
    if PROFILE: a.wait_all()
    stamp(a, 'end')
    stamp_flush(a)
    a('s_endpgm')
    a.label('P2_l'); a.vm = []; a.lg = []
    stamp(a, 'Lp2')
    common(1)
    stamp(a, 'Lcm')
    if opt('tp', 3) == 1: touch2(a)
    if not opt('wearly', 0): wcopy(a)
    a(f'''v_lshlrev_b32 v7, 7, v1
    s_mul_i32 s67, {sW}, {48*128}
    s_add_u32 s67, s67, {GX}''')
    gpoll(a, 48, 7, 's67', 33)
    stamp(a, 'Lxf')
    a.label('P2_lg')
    a(f's_mul_i32 s67, {sT}, 196608\ns_mul_i32 s68, {sI}, 6144\ns_add_u32 s67, s67, s68\ns_add_u32 s67, s67, {WS_X1}\ns_mul_i32 s68, {sW}, 1536\ns_add_u32 s67, s67, s68')
    a('s_barrier')
    if opt('xpf', 0):
        a(f'buffer_load_dwordx4 v[32:35], v{vL16}, {SWS}, s67 offen sc1\ns_mov_b32 exec_hi, 0\nbuffer_load_dwordx4 v[36:39], v{vL16}, {SWS}, s67 offen offset:1024 sc1\ns_mov_b32 exec_hi, -1')
    L = a.newlabel('be')
    a(f's_or_b32 s34, {sW}, s2\ns_cmp_lg_u32 s34, 0\ns_cbranch_scc1 {L}')
    a.cond = True; a(f's_mov_b32 s34, {WE}'); flag(a, '0', 's34', sTag, 40, 'sc0 sc1'); a.vm.pop(); a.cond = False
    a.label(L)
    if opt('bk', 1): a('s_barrier')
    stats_load()
    KA, KB = opt('ka', 5), opt('kb', 5)
    for ks in range(12):
        if ks == KA: stats_math(False); attn_addr(1)
        if ks == 0 and opt('tp', 3) == 2: touch2(a)
        if ks in (KA, KB): a.wait_all(lg=False)
        kld(0, ks); kld(1, ks)
    stamp(a, 'Lkiss')
    a.wait_all()
    stamp(a, 'Lk')
    a('s_barrier')
    scores(lambda: None)
    stamp_flush(a, 'L')
```

```python
import sys, math, struct
sys.path.insert(0, 'gen')
from asm import Asm
def opt(name, default):
    for x in sys.argv:
        if x.startswith(f'--{name}='): return int(x.split('=')[1])
    return default
HP = [x[5:] for x in sys.argv if x.startswith('--hp=')]
PROFILE = '--prof' in sys.argv or bool(HP)
SKIP = []
for x in sys.argv:
    if x.startswith('--skip='): SKIP = x[7:].split(',')
WS_W2 = 0x000000
WS_S  = 0x180000
WS_X1 = 0x240000
WS_W  = 0x3E0000
WS_Q  = 0x480000
WS_VP = 0x620000
WS_ST = 0xF00000
FS1, FS2 = 0x7A0000, 0x7A2000
FC1, FC2 = 0x7A4000, 0x7A5000
GW2, GW, GX, WE = 0x7A8000, 0x7AA000, 0x7AC000, 0x7B4000
WS_PROF = 0x7C0000
SLOW = 0x800000
WS_SIZE = 0x1000000
LIM_FAST = opt('lim', 24)
LIM_SLOW = 1 << 20
SCALE2 = 384 ** -0.5 * math.log2(math.e)
def fbits(x): return '0x%08x' % struct.unpack('<I', struct.pack('<f', x))[0]
def vr(b, n): return f'v[{b}:{b+n-1}]' if n > 1 else f'v{b}'
SX, SWQ, SWO, SWS, SOUT = 's[4:7]', 's[8:11]', 's[12:15]', 's[16:19]', 's[24:27]'
WT = 'sc0 sc1' if opt('wt', 1) == 2 else 'sc1'
def srd(a, base, ptr, size):
    a(f's_mov_b32 s{base}, s{ptr}\ns_mov_b32 s{base+1}, s{ptr+1}\ns_mov_b32 s{base+2}, {size}\ns_mov_b32 s{base+3}, 0x20000')
STAMP_REGS = [70, 72, 74, 76, 78, 80, 82, 84, 86, 88, 90, 92, 94, 96, 98, 100]
class St:
    names = {'C': [], 'L': []}
def stamp(a, name):
    if not PROFILE or name in SKIP or (HP and name not in ('start', HP[0])): return
    lst = St.names['L' if name.startswith('L') else 'C']
    if name not in lst: lst.append(name)
    k = lst.index(name)
    a(f's_memrealtime s[{STAMP_REGS[k]}:{STAMP_REGS[k]+1}]')
def hp_end(a, role):
    name = HP[0]
    lst = St.names[role]
    src = f's{STAMP_REGS[lst.index(name)]}' if name in lst else 's70'
    L1, L2 = a.newlabel('hp'), a.newlabel('hp')
    a(f's_waitcnt vmcnt(0) lgkmcnt(0)\nv_mov_b32 v2, {WS_PROF + 0x30000}')
    a.label(L1)
    a(f'''buffer_load_dwordx2 v[4:5], v2, {SWS}, 0 offen sc0 sc1
    s_waitcnt vmcnt(0)
    v_readfirstlane_b32 s34, v4
    v_readfirstlane_b32 s35, v5
    s_cmp_lg_u32 s35, {sTag}
    s_cbranch_scc1 {L1}
    s_sub_u32 s35, {src}, s34
    s_max_i32 s35, s35, 0
    s_mul_i32 s35, s35, 4
    s_add_u32 s35, s35, 4000''')
    a.label(L2)
    a(f'''s_memrealtime s[36:37]
    s_waitcnt lgkmcnt(0)
    s_sub_u32 s36, s36, s34
    s_cmp_lt_i32 s36, s35
    s_cbranch_scc1 {L2}''')
def hp_t0(a):
    if not HP: return
    L = a.newlabel('hq')
    a(f's_or_b32 s34, s2, {sW}\ns_or_b32 s34, s34, {sRole}\ns_cmp_lg_u32 s34, 0\ns_cbranch_scc1 {L}')
    a(f'v_mov_b32 v2, {WS_PROF + 0x30000}\nv_mov_b32 v4, s70\nv_mov_b32 v5, {sTag}\nbuffer_store_dwordx2 v[4:5], v2, {SWS}, 0 offen sc0 sc1')
    a.vm.pop()
    a.label(L)
def stamp_flush(a, role='C'):
    if HP: hp_end(a, role); return
    if not PROFILE: return
    a('s_waitcnt lgkmcnt(0)')
    for k in range(16): a(f'v_mov_b32 v{100+k}, s{STAMP_REGS[k]}')
    a(f'''v_lshrrev_b32 v8, 6, v0
    s_lshl_b32 s34, s2, 3
    v_add_u32 v8, s34, v8
    v_lshlrev_b32 v8, 6, v8
    v_add_u32 v8, {WS_PROF}, v8''')
    for k in range(4): a(f'buffer_store_dwordx4 v[{100+4*k}:{103+4*k}], v8, {SWS}, 0 offen offset:{16*k}')

sXCD, sW, sI, sRole = 's40', 's41', 's42', 's43'
sTag, sFast, sDelta = 's44', 's45', 's46'
sM1K = 's47'
TAIL = []

def lanes(a, n):
    a(f's_mov_b32 exec_lo, {hex((1 << min(n, 32)) - 1)}\ns_mov_b32 exec_hi, {hex((1 << max(n-32, 0)) - 1)}')
def gpoll(a, n, vA, sBase, vT):
    Lf, Lr, Ld = a.newlabel('gp'), a.newlabel('gr'), a.newlabel('gd')
    lanes(a, n)
    a(f's_mov_b32 s35, {LIM_SLOW}')
    a.label(Lf)
    a(f'buffer_load_dword v{vT}, v{vA}, {SWS}, {sBase} offen sc1')
    a.wait_all(lg=False)
    a(f'v_cmp_ne_u32 vcc, {sTag}, v{vT}\ns_cbranch_vccnz {Lr}')
    a.label(Ld)
    a('s_mov_b64 exec, -1')
    def tail():
        a.label(Lr); a(f's_sub_u32 s35, s35, 1\ns_cmp_lg_u32 s35, 0\ns_cbranch_scc1 {Lf}\ns_branch {Ld}')
    TAIL.append(tail)
def lsync(a, n, wide, sF1, sF2, sOwn, republish, vT):
    Lf, Lr, Ld, Ls = a.newlabel('lp'), a.newlabel('lr'), a.newlabel('ld'), a.newlabel('ls')
    vA, vD, vE = vT, vT + 2, vT + 6
    w = 4 if wide else 1
    ld = 'buffer_load_dwordx4' if wide else 'buffer_load_dword'
    def cmp(v, s):
        if not wide: a(f'v_cmp_ne_u32 vcc, {s}, v{v}'); return
        for k in range(4): a(f'v_xor_b32 v{v+k}, {s}, v{v+k}')
        a(f'v_or_b32 v{v}, v{v}, v{v+1}\nv_or3_b32 v{v}, v{v}, v{v+2}, v{v+3}\nv_cmp_ne_u32 vcc, 0, v{v}')
    lanes(a, n)
    a(f'v_lshlrev_b32 v{vA}, {4 if wide else 2}, v1\ns_mov_b32 {sDelta}, 0\ns_mov_b32 s35, {LIM_FAST}')
    a.label(Lf)
    a(f'{ld} {vr(vD, w)}, v{vA}, {SWS}, {sF1} offen sc1')
    a.wait_all(lg=False)
    cmp(vD, sFast)
    a(f's_cbranch_vccnz {Lr}')
    a.label(Ld)
    a('s_mov_b64 exec, -1')
    def tail():
        a.label(Lr)
        a(f's_sub_u32 s35, s35, 1\ns_cmp_lg_u32 s35, 0\ns_cbranch_scc1 {Lf}')
        if republish:
            a('s_mov_b64 exec, -1')
            republish()
            a.wait_all(lg=False)
            a(f'''s_mov_b64 exec, 1
            v_mov_b32 v{vD}, {sOwn}
            v_mov_b32 v{vD+1}, {sTag}
            buffer_store_dword v{vD+1}, v{vD}, {SWS}, {sF2} offen sc0 sc1''')
            lanes(a, n)
        a(f's_mov_b32 s35, {LIM_SLOW}')
        a.label(Ls)
        a(f'{ld} {vr(vD, w)}, v{vA}, {SWS}, {sF1} offen sc1\n{ld} {vr(vE, w)}, v{vA}, {SWS}, {sF2} offen sc0 sc1')
        a.wait_all(lg=False)
        cmp(vD, sFast)
        a(f's_cbranch_vccz {Ld}')
        cmp(vE, sTag)
        a(f's_mov_b32 {sDelta}, {SLOW}\ns_cbranch_vccz {Ld}\ns_mov_b32 {sDelta}, 0\ns_sub_u32 s35, s35, 1\ns_cmp_lg_u32 s35, 0\ns_cbranch_scc1 {Ls}\ns_branch {Ld}')
    TAIL.append(tail)
def flag(a, sOff, sBase, sVal, vT, fl):
    a(f'''s_mov_b64 exec, 1
    v_mov_b32 v{vT}, {sOff}
    v_mov_b32 v{vT+1}, {sVal}
    buffer_store_dword v{vT+1}, v{vT}, {SWS}, {sBase} offen {fl}
    s_mov_b64 exec, -1''')
def gflag(a, sOff, sBase, vT):
    a(f'''s_mov_b64 exec, 15
    v_lshl_add_u32 v{vT}, v1, 4, {sOff}
    v_mov_b32 v{vT+2}, {sTag}
    v_mov_b32 v{vT+3}, {sTag}
    v_mov_b32 v{vT+4}, {sTag}
    v_mov_b32 v{vT+5}, {sTag}
    buffer_store_dwordx4 {vr(vT+2,4)}, v{vT}, {SWS}, {sBase} offen sc0 sc1
    s_mov_b64 exec, -1''')
def flag_w0(a, sOff, sBase, vT):
    L = a.newlabel('f0')
    a(f's_cmp_lg_u32 {sW}, 0\ns_cbranch_scc1 {L}')
    a.cond = True; gflag(a, sOff, sBase, vT); a.vm.pop(); a.cond = False
    a.label(L)
def tag_ready(a):
    a(f'''s_mul_i32 {sTag}, {sTag}, 0x9e3779b1
    s_add_u32 {sTag}, {sTag}, 0x7f4a7c15
    s_add_u32 {sFast}, {sFast}, {sTag}''')

LW34 = 102400
LDONE = 147456
def wpoll(a):
    a(f'v_lshlrev_b32 v7, 7, v1\ns_mov_b32 s67, {GW}')
    gpoll(a, 64, 7, 's67', 33)
    stamp(a, 'Lwf')
def wcopy(a):
    a(f's_and_b32 s68, {sI}, 15\ns_mul_i32 s68, s68, 39936\ns_mul_i32 s34, {sW}, 10240\ns_add_u32 s68, s68, s34\ns_add_u32 s68, s68, {WS_W}\ns_add_u32 s34, s34, {LW34}')
    for i in range(10):
        if i % 4 == 0: a(f's_add_u32 m0, s34, {i*1024}' + ('\ns_add_u32 s68, s68, 4096' if i else ''))
        a(f'buffer_load_dwordx4 v10, {SWS}, s68 offen offset:{(i&3)*1024} sc1 lds')
def touch2(a):
    Lt = a.newlabel('tc'); Lu = a.newlabel('tc')
    a(f"""s_and_b32 s36, {sI}, 15
    s_lshr_b32 s37, {sI}, 4
    s_cmp_ge_u32 s36, 8
    s_cbranch_scc1 {Lt}
    s_lshl_b32 s34, {sXCD}, 4
    s_lshl_b32 s35, s37, 3
    s_add_u32 s34, s34, s35
    s_lshl_b32 s35, {sW}, 1
    s_add_u32 s34, s34, s35
    s_mul_i32 s34, s34, 13312
    s_mul_i32 s35, s36, 1536
    s_add_u32 s34, s34, s35
    s_add_u32 s34, s34, {WS_Q}
    s_add_u32 s35, s34, 13312""")
    for sb in ('s34', 's35'): a(f'buffer_load_dwordx4 v[64:67], v10, {SWS}, {sb} offen\ns_mov_b32 exec_hi, 0\nbuffer_load_dwordx4 v[64:67], v10, {SWS}, {sb} offen offset:1024\ns_mov_b32 exec_hi, -1')
    a(f's_branch {Lu}'); a.label(Lt)
    a(f"""s_lshl_b32 s34, {sW}, 1
    s_add_u32 s34, s34, s37
    s_lshl_b32 s35, {sXCD}, 3
    s_add_u32 s34, s34, s35
    s_mul_i32 s34, s34, 24576
    s_mul_i32 s35, s36, 3072
    s_add_u32 s34, s34, s35
    s_add_u32 s34, s34, {WS_VP - 8*3072}""")
    for u in range(3): a(f'buffer_load_dwordx4 v[64:67], v10, {SWS}, s34 offen offset:{u*1024}')
    a.label(Lu)
    a(f"""s_lshr_b32 s34, {sI}, 1
    s_lshl_b32 s35, {sXCD}, 4
    s_add_u32 s34, s34, s35
    s_mul_i32 s34, s34, 13312
    s_add_u32 s34, s34, {WS_Q + 12288}
    s_lshl_b32 s35, {sW}, 8
    v_lshl_add_u32 v68, v1, 2, s35
    buffer_load_dword v64, v68, {SWS}, s34 offen
    s_lshl_b32 s34, {sXCD}, 9
    s_add_u32 s34, s34, {FC1}
    v_lshlrev_b32 v68, 3, v1
    buffer_load_dword v64, v68, {SWS}, s34 offen""")
    a.vm = []

def build():
    a = Asm()
    def emit(x):
        if isinstance(x, tuple): a(x[0], tag=x[1])
        else: a(x)
    a(f'''s_cmp_ge_u32 s2, 256
    s_cbranch_scc1 K_end
    s_load_dwordx4 s[20:23], s[0:1], 0
    s_load_dwordx4 s[28:31], s[0:1], 16
    s_load_dwordx4 s[36:39], s[0:1], 32
    s_load_dwordx2 s[32:33], s[0:1], 56
    v_and_b32 v1, 63, v0
    v_lshrrev_b32 v2, 6, v0
    s_and_b32 {sXCD}, s2, 7
    v_readfirstlane_b32 {sW}, v2
    s_lshr_b32 {sI}, s2, 3''')
    stamp(a, 'start')
    if HP:
        St.names['L'].append('Lstart')
        a('s_waitcnt lgkmcnt(0)')
        for r in STAMP_REGS[1:]: a(f's_mov_b32 s{r}, s70')
    a('s_getpc_b64 s[48:49]')
    a.label('K_pc')
    a(f'''s_sub_u32 s48, s48, K_pc-{KNAME}
    s_subb_u32 s49, s49, 0
    s_lshl_b32 s34, {sI}, 3
    s_add_u32 s34, s34, {sW}
    s_and_b32 s34, s34, 31
    s_lshl_b32 s34, s34, 10
    v_lshl_add_u32 v9, v1, 4, s34
    global_load_dwordx4 v[252:255], v9, s[48:49]
    s_lshr_b32 {sRole}, {sW}, 2
    s_and_b32 {sW}, {sW}, 3
    s_lshl_b32 {sM1K}, {sW}, 10
    s_getreg_b32 {sFast}, hwreg(HW_REG_XCC_ID)
    s_and_b32 {sFast}, {sFast}, 15
    s_add_u32 {sFast}, {sFast}, 1
    v_lshrrev_b32 v2, 3, v1
    v_and_b32 v3, 7, v1
    v_lshlrev_b32 v10, 4, v1
    s_cmp_lt_u32 {sI}, 8
    s_cbranch_scc1 K_pre''')
    T8, G8, vL16 = 2, 3, 10
    sG, sJ, sP, sHF, sX, sM = 's50', 's51', 's52', 's53', 's54', 's55'
    sR = ['s56', 's57', 's58', 's59', 's60', 's61']
    ROT = opt('rot', 4)
    a(f'''s_sub_u32 {sJ}, {sI}, 8
    s_mul_i32 s34, {sJ}, 43
    s_lshr_b32 s34, s34, 8
    s_mul_i32 s35, s34, 6
    s_sub_u32 {sJ}, {sJ}, s35
    s_lshl_b32 {sG}, {sXCD}, 2
    s_add_u32 {sG}, {sG}, s34
    s_lshr_b32 {sP}, {sW}, 1
    s_and_b32 {sHF}, {sW}, 1
    s_lshl_b32 {sM}, {sW}, 11''')
    if ROT: a(f's_mul_i32 s3, {sXCD}, 3\ns_lshr_b32 s3, s3, 2')
    a(f's_cmp_lg_u32 {sRole}, 0\ns_cbranch_scc1 A_ld')
    XS = lambda c: c*8192
    WQ0 = 49152
    W2L = 49152
    vXF, vAW, vSst, vX1, vST, vRes, vBP, vBS, vW2, vW2b = 12, 16, 18, 19, 20, 21, 22, 23, 24, 25
    XF, WF, ACC, CS, MA, SEL, CA, CB = 160, 32, 64, 96, 104, 108, 112, 120
    sSst, sSld, sX1, sST, sFS1, sFS2, sOwn, sGX = 's56', 's57', 's58', 's59', 's60', 's61', 's62', 's63'
    a(f'''v_and_b32 v4, 31, v1
    v_lshrrev_b32 v5, 5, v1
    v_bfe_u32 v6, v1, 1, 3
    v_xor_b32 v6, v6, v5
    v_lshlrev_b32 v4, 7, v4
    v_lshl_add_u32 v4, v6, 4, v4
    s_lshl_b32 s35, {sP}, 12
    v_add_u32 v{vXF}, s35, v4
    v_xor_b32 v{vXF+1}, 32, v{vXF}
    v_xor_b32 v{vXF+2}, 64, v{vXF}
    v_xor_b32 v{vXF+3}, 96, v{vXF}
    v_bfe_u32 v6, v1, 2, 2
    v_lshl_add_u32 v4, v5, 3, v6
    v_lshlrev_b32 v4, 7, v4
    v_lshrrev_b32 v7, 1, v6
    v_xor_b32 v7, {sHF}, v7
    v_lshl_add_u32 v4, v7, 6, v4
    v_bfe_u32 v7, v1, 4, 1
    v_lshl_add_u32 v4, v7, 5, v4
    v_and_b32 v8, 1, v1
    v_lshl_add_u32 v4, v8, 4, v4
    v_bfe_u32 v8, v1, 1, 1
    v_lshl_add_u32 v4, v8, 3, v4
    v_add_u32 v{vAW}, {WQ0}, v4
    v_add_u32 v{vAW+1}, {WQ0 + 65536}, v4
    v_bfe_u32 v8, v1, 2, 1
    v_cmp_eq_u32 vcc, v8, v7
    v_mov_b32 v7, 0x3f803f80
    s_mov_b32 s34, {WE}
    s_waitcnt lgkmcnt(0)
    s_load_dword {sTag}, s[32:33], s34''')
    for k in range(4): a(f'v_cndmask_b32 v{SEL+k}, 0, v7, vcc')
    srd(a, 16, 32, WS_SIZE); srd(a, 24, 38, 1572864)
    a(f'''v_lshlrev_b32 v{vSst}, 9, v5
    v_lshl_add_u32 v{vSst}, v{G8}, 6, v{vSst}
    v_bfe_u32 v6, v1, 3, 2
    v_lshl_add_u32 v{vSst}, v6, 4, v{vSst}
    s_mul_i32 s34, {sG}, 24576
    s_lshl_b32 s35, {sP}, 10
    s_add_u32 s34, s34, s35
    s_add_u32 {sSld}, s34, {WS_S}
    s_lshl_b32 s35, {sJ}, 1
    s_add_u32 s35, s35, {sHF}
    s_lshl_b32 {sOwn}, s35, 2
    s_lshl_b32 s3{6}, s35, 11
    s_add_u32 {sSst}, {sSld}, s36
    s_lshl_b32 s34, {sG}, 1
    s_add_u32 s34, s34, {sP}
    s_lshl_b32 s34, s34, 7
    s_add_u32 {sFS1}, s34, {FS1}
    s_add_u32 {sFS2}, s34, {FS2}''')
    a(f'''v_bfe_u32 v6, v1, 2, 3
    v_and_b32 v7, 3, v1
    s_mov_b32 s34, 196608
    v_mul_lo_u32 v{vX1}, v6, s34
    v_lshl_add_u32 v{vX1}, v5, 8, v{vX1}
    v_lshl_add_u32 v{vX1}, v7, 4, v{vX1}
    v_mul_u32_u24 v{vST}, 49152, v6
    v_lshl_add_u32 v{vST}, v7, 4, v{vST}
    v_lshl_add_u32 v8, v7, 3, v6
    v_lshlrev_b32 v{vBP}, 2, v8
    v_lshlrev_b32 v{vBS}, 5, v7
    v_lshl_add_u32 v{vBS}, v5, 4, v{vBS}
    v_bfe_u32 v4, v8, 1, 3
    s_lshl_b32 s34, {sHF}, 2
    v_xor_b32 v4, s34, v4
    v_xor_b32 v4, v4, v5
    v_lshlrev_b32 v4, 4, v4
    v_lshl_add_u32 v4, v8, 7, v4''')
    if ROT: a(f's_add_u32 s34, {sJ}, 6\ns_sub_u32 s34, s34, s3\ns_cmp_ge_u32 s34, 6\ns_cselect_b32 s36, 6, 0\ns_sub_u32 s34, s34, s36\ns_lshl_b32 s34, s34, 13')
    else: a(f's_lshl_b32 s34, {sJ}, 13')
    a(f'''s_lshl_b32 s36, {sP}, 12
    s_add_u32 s34, s34, s36
    v_add_u32 v{vRes}, s34, v4
    s_lshl_b32 s34, {sHF}, 10
    s_add_u32 s34, s34, {W2L}
    v_add_u32 v{vW2}, s34, v{vL16}
    v_and_b32 v4, 31, v1
    v_lshlrev_b32 v4, 2, v4
    s_lshl_b32 s34, {sHF}, 7
    s_add_u32 s34, s34, {W2L + 49152}
    v_add_u32 v4, s34, v4
    v_lshl_add_u32 v{vW2b}, v5, 10, v4
    v_add_u32 v{vW2b+1}, 2048, v4
    s_lshr_b32 s34, {sG}, 1
    s_mul_i32 s34, s34, 12288
    s_lshl_b32 s36, s35, 10
    s_add_u32 s34, s34, s36
    s_and_b32 s36, {sG}, 1
    s_lshl_b32 s36, s36, 7
    s_add_u32 s34, s34, s36
    s_lshl_b32 s36, {sP}, 6
    s_add_u32 s34, s34, s36
    s_add_u32 {sX1}, s34, {WS_X1}
    s_lshl_b32 s34, s35, 12
    s_add_u32 s34, s34, s36
    s_lshl_b32 s36, {sG}, 7
    s_add_u32 s34, s34, s36
    s_add_u32 {sST}, s34, {WS_ST}
    s_mul_i32 s34, {sG}, 6
    s_add_u32 s34, s34, {sJ}
    s_lshl_b32 {sGX}, s34, 7
    s_mov_b32 s38, {fbits(-1/384)}
    s_mov_b32 s36, 0xffff0000
    s_mov_b32 s64, -1
    s_mov_b32 s65, 0
    s_mov_b32 s66, 0xff00ff00
    s_mov_b32 s67, 0xff00ff00
    s_mov_b32 s68, 0xffff0000
    s_mov_b32 s69, 0xffff0000''')
    for r in range(CA, CA + 8):
        if (r - CA) % 4: a(f'v_mov_b32 v{r}, 0')
    a('s_waitcnt lgkmcnt(0)')
    tag_ready(a)
    a('s_barrier')
    stamp(a, 'mm0')
    def rd(ks):
        c, k4 = ks >> 2, ks & 3
        a(f'ds_read_b128 {vr(XF+4*ks,4)}, v{vXF+k4} offset:{XS(c)}', tag=f'f{ks}')
        return [(c, k4, P) for P in range(2)]
    def trd(ks, P):
        c, k4 = ks >> 2, ks & 3
        off = c*16384 + P*8192 + k4*2048
        base = vAW + (off >> 16); off &= 0xffff
        d = WF + (ks % 3)*8 + P*4
        a(f'ds_read_b64_tr_b16 {vr(d,2)}, v{base} offset:{off}\nds_read_b64_tr_b16 {vr(d+2,2)}, v{base} offset:{off+512}', tag=f'f{ks}')
    def pre(ks, part):
        if part == 0: rd(ks); trd(ks, 0)
        else: trd(ks, 1)
    for ks in range(2): pre(ks, 0); pre(ks, 1)
    def m16(d, b, first): a(f'v_mfma_f32_16x16x32_bf16 {vr(d,4)}, {vr(SEL,4)}, {b}, {"0" if first else vr(d,4)}')
    for ks in range(24):
        bar = (ks & 3) == 3 and ks < 23
        if bar:
            if ks == 15: a.wait_all(lg=False)
            a('s_barrier')
            if ks in (7, 15, 19): stamp(a, f'c{(ks+1)>>2}')
            pre(ks + 1, 0); pre(ks + 1, 1)
        a.wait(lg=f'f{ks}')
        wf = lambda P: vr(WF + (ks % 3)*8 + P*4, 4)
        main = lambda P: a(f'v_mfma_f32_32x32x16_bf16 {vr(ACC+16*P,16)}, {wf(P)}, {vr(XF+4*ks,4)}, {"0" if ks == 0 else vr(ACC+16*P,16)}')
        nx = ks + 2 if (ks & 3) != 2 and ks + 2 < 24 else None
        if ks < 23:
            for P in range(2):
                main(P)
                if nx: pre(nx, P)
                m16(CS + 4*P, wf(P), ks == 0)
            m16(MA, vr(XF+4*ks, 4), ks == 0)
        else:
            m16(MA, vr(XF+4*ks, 4), False)
            for P in range(2): m16(CS + 4*P, wf(P), False)
            main(0)
            main(1)
            a(f'''v_mul_f32 v{MA}, s38, v{MA}
            v_cvt_pk_bf16_f32 v{CA}, v{CS}, v{CS}
            v_cvt_pk_bf16_f32 v{CA+4}, v{CS+4}, v{CS+4}
            v_cvt_pk_bf16_f32 v{MA+1}, v{MA}, v{MA}
            v_and_b32 v{CA}, s36, v{CA}
            v_and_b32 v{CA+4}, s36, v{CA+4}
            v_cndmask_b32 v{CB}, 0, v{MA+1}, s[64:65]
            v_sub_f32 v{CA}, v{CS}, v{CA}
            v_sub_f32 v{CA+4}, v{CS+4}, v{CA+4}
            v_mov_b32 v{CB+1}, v{CB}
            v_cvt_pk_bf16_f32 v{CA}, v{CS}, v{CA}
            v_cvt_pk_bf16_f32 v{CA+4}, v{CS+4}, v{CA+4}
            v_mov_b32 v{CB+2}, v{CB}
            v_mov_b32 v{CB+3}, v{CB}''')
            for P in range(2): a(f'v_mfma_f32_32x32x16_bf16 {vr(ACC+16*P,16)}, {vr(CA+4*P,4)}, {vr(CB,4)}, {vr(ACC+16*P,16)}')
    stamp(a, 'mmend')
    PQ, PK, SC, SS, SQ, CM = 32, 40, 64, 96, 100, 124
    a(f'v_mov_b32 v{SQ}, 0\nv_mov_b32 v{SQ+1}, 0')
    for k in range(4): a(f'v_mov_b32 v{CM+k}, v{MA+1}')
    for P, d in ((0, PQ), (1, PK)):
        for i in range(8): a(f'v_cvt_pk_bf16_f32 v{d+i}, v{ACC+16*P+2*i}, v{ACC+16*P+2*i+1}')
    a(f'v_mfma_f32_32x32x16_bf16 {vr(SC,16)}, {vr(PK,4)}, {vr(PQ,4)}, 0')
    a(f'v_mfma_f32_32x32x16_bf16 {vr(SC,16)}, {vr(PK+4,4)}, {vr(PQ+4,4)}, {vr(SC,16)}')
    RAW = 48
    a(f'v_xor_b32 v4, 32, v{vRes}\nds_read_b128 {vr(RAW,4)}, v{vRes}\nds_read_b128 {vr(RAW+4,4)}, v4', tag='raw')
    for e in range(4): a(f'v_cndmask_b32 v{SC+e}, v{SC+e}, v{SC+4+e}, s[66:67]\nv_cndmask_b32 v{SC+8+e}, v{SC+8+e}, v{SC+12+e}, s[66:67]')
    for e in range(4): a(f'v_cndmask_b32 v{SS+e}, v{SC+e}, v{SC+8+e}, s[68:69]')
    a(f'buffer_store_dwordx4 {vr(SS,4)}, v{vSst}, {SWS}, {sSst} offen')
    stamp(a, 'stored')
    ND0 = opt('nd0', 72)
    for i in range(ND0): a(f'v_dot2c_f32_bf16 v{SQ+(i&1)}, v{XF+i}, v{XF+i}')
    a.wait_all(lg=False)
    flag(a, sOwn, sFS1, sFast, 4, '')
    stamp(a, 'flag')
    for i in range(ND0, 96): a(f'v_dot2c_f32_bf16 v{SQ+(i&1)}, v{XF+i}, v{XF+i}')
    RR, RES = 56, 80
    a(f'''s_mov_b32 s37, {fbits(1e-5)}
    v_mul_f32 v{SQ+2}, v{MA}, v{MA}
    v_add_u32 v5, 4, v{vBS}
    v_add_f32 v{SQ}, v{SQ}, v{SQ+1}
    v_mov_b32 v{SQ+1}, v{SQ}
    v_add_u32 v6, 8, v{vBS}
    v_add_u32 v7, 12, v{vBS}
    v_permlane32_swap_b32 v{SQ}, v{SQ+1}
    v_add_f32 v{SQ}, v{SQ}, v{SQ+1}
    v_fma_f32 v{SQ}, -v{SQ}, s38, -v{SQ+2}
    v_max_f32 v{SQ}, 0, v{SQ}
    v_add_f32 v{SQ}, s37, v{SQ}
    v_rsq_f32 v{SQ}, v{SQ}''')
    a(f'ds_bpermute_b32 v{RR+4}, v{vBP}, v{SQ}\nds_bpermute_b32 v{RR}, v{vBS}, v{SQ}', tag='bp')
    for e in range(1, 4): a(f'ds_bpermute_b32 v{RR+e}, v{4+e}, v{SQ}', tag='bp')
    a.wait(lg='raw')
    for d in range(8): a(f'v_lshlrev_b32 v{RES+2*d}, 16, v{RAW+d}\nv_and_b32 v{RES+2*d+1}, s36, v{RAW+d}')
    a.wait(lg='bp')
    a(f'v_mul_f32 v{RR+4}, {fbits(SCALE2)}, v{RR+4}')
    def repubA():
        a(f's_add_u32 s34, {sSst}, {SLOW}\nbuffer_store_dwordx4 {vr(SS,4)}, v{vSst}, {SWS}, s34 offen sc0 sc1')
    lsync(a, 12, False, sFS1, sFS2, sOwn, repubA, 32)
    stamp(a, 'synced')
    SP, Y, WR = 112, 64, 32
    SPR = [128, 132, 136, 140, 144, 148, 152, 156, 112, 116, 96, 100]
    a(f's_add_u32 {sSld}, {sSld}, {sDelta}')
    for i in range(12):
        if i and i % 2 == 0: a(f's_add_u32 {sSld}, {sSld}, 4096')
        a(f'buffer_load_dwordx4 {vr(SPR[i],4)}, v{vL16}, {SWS}, {sSld} offen offset:{(i&1)*2048} sc1', tag=f's{i}')
    a('s_barrier')
    stamp(a, 'w2in')
    def w2rd(ks):
        if ks < 24: a(f'ds_read_b128 {vr(WR+4*(ks%6),4)}, v{vW2} offset:{ks*2048}', tag=f'y{ks}')
        else:
            for k in range(2): a(f'ds_read2st64_b32 {vr(WR+4*(ks%6)+2*k,2)}, v{vW2b+ks-24} offset0:{2*k} offset1:{2*k+1}', tag=f'y{ks}')
    for ks in range(5): w2rd(ks)
    S0 = SPR[0]; T0 = SPR[1]
    sm = []
    for i in range(1, 12):
        sm.append(('w', f's{i}'))
        for d in range(4): sm.append(f'v_add_f32 v{S0+d}, v{S0+d}, v{SPR[i]+d}')
    for d in range(4): sm.append(f'v_mul_f32 v{S0+d}, v{S0+d}, v{RR+d}')
    sm += [f'v_max_f32 v{T0}, v{S0}, v{S0+1}', f'v_max3_f32 v{T0}, v{T0}, v{S0+2}, v{S0+3}', f'v_mov_b32 v{T0+1}, v{T0}', 's_mov_b32 s64, 0x11111111', 's_mov_b32 s65, 0x11111111',
           f'v_permlane32_swap_b32 v{T0}, v{T0+1}', f'v_max_f32 v{T0}, v{T0}, v{T0+1}', f'v_mul_f32 v{T0}, v{RR+4}, v{T0}']
    for d in range(4): sm.append(f'v_fma_f32 v{S0+d}, v{S0+d}, v{RR+4}, -v{T0}')
    for d in range(4): sm.append(f'v_exp_f32 v{S0+d}, v{S0+d}')
    sm += [f'v_add_f32 v{T0}, v{S0}, v{S0+1}', f'v_add_f32 v{T0+1}, v{S0+2}, v{S0+3}', f'v_add_f32 v{T0}, v{T0}, v{T0+1}', f'v_mov_b32 v{T0+1}, v{T0}']
    sm += [f'v_mul_f32 v{S0+d}, v{S0+d}, v{RR+d}' for d in range(2)] + [f'v_permlane32_swap_b32 v{T0}, v{T0+1}', f'v_add_f32 v{T0}, v{T0}, v{T0+1}', f'v_rcp_f32 v{T0}, v{T0}']
    sm += [f'v_mul_f32 v{S0+d}, v{S0+d}, v{RR+d}' for d in range(2, 4)]
    for d in range(4): sm.append(f'v_mul_f32 v{S0+d}, v{S0+d}, v{T0}')
    PB = 136
    sm += [f'v_cvt_pk_bf16_f32 v{T0}, v{S0}, v{S0+1}', f'v_cvt_pk_bf16_f32 v{T0+1}, v{S0+2}, v{S0+3}']
    for b in range(4):
        sm += [f'v_cndmask_b32 v{PB+2*b}, 0, v{T0}, s[64:65]', f'v_cndmask_b32 v{PB+2*b+1}, 0, v{T0+1}, s[64:65]']
        if b < 3: sm.append('s_lshl_b64 s[64:65], s[64:65], 1')
    S2 = 104
    sm += [f'v_mov_b32 v{S2}, 0', f'v_mov_b32 v{S2+1}, 0', 's_mov_b32 s36, 0x3f803f80']
    def drain(n):
        while n > 0 and sm:
            x = sm.pop(0)
            if isinstance(x, tuple): a.wait(vm=x[1])
            else: a(x); n -= 1
    for ks in range(26):
        a.wait(lg=f'y{ks}')
        xa = vr(XF+4*ks, 4) if ks < 24 else vr(CM if ks == 24 else CB, 4)
        a(f'v_mfma_f32_32x32x16_bf16 {vr(Y,16)}, {xa}, {vr(WR+4*(ks%6),4)}, {"0" if ks == 0 else vr(Y,16)}')
        if ks + 5 < 26: w2rd(ks + 5)
        if ks >= opt('sm0', 2): drain(4)
    drain(1000)
    stamp(a, 'ygemm')
    YP, XO = 144, 152
    for i in range(8): a(f'v_cvt_pk_bf16_f32 v{YP+i}, v{Y+2*i}, v{Y+2*i+1}')
    for k in range(2): a(f'v_mfma_f32_32x32x16_bf16 {vr(RES,16)}, {vr(YP+4*k,4)}, {vr(PB+4*k,4)}, {vr(RES,16)}')
    for i in range(8): a(f'v_cvt_pk_bf16_f32 v{XO+i}, v{RES+2*i}, v{RES+2*i+1}')
    a(f'buffer_store_dwordx4 {vr(XO,4)}, v{vX1}, {SWS}, {sX1} offen {WT}')
    a(f'buffer_store_dwordx4 {vr(XO+4,4)}, v{vX1}, {SWS}, {sX1} offen offset:512 {WT}')
    for i in range(8): a(f'v_dot2c_f32_bf16 v{S2}, s36, v{XO+i}\nv_dot2c_f32_bf16 v{S2+1}, v{XO+i}, v{XO+i}')
    a(f'''v_mov_b32 v{S2+2}, v{S2}
    v_mov_b32 v{S2+3}, v{S2+1}
    v_permlane32_swap_b32 v{S2}, v{S2+2}
    v_permlane32_swap_b32 v{S2+1}, v{S2+3}
    v_add_f32 v{S2}, v{S2}, v{S2+2}
    v_add_f32 v{S2+1}, v{S2+1}, v{S2+3}
    s_mov_b32 exec_hi, 0
    buffer_store_dwordx4 {vr(S2,4)}, v{vST}, {SWS}, {sST} offen {WT}
    s_mov_b32 exec_hi, -1
    s_mov_b32 s34, {GX}''')
    stamp(a, 'x1st')
    a.wait_all()
    a('s_barrier')
    flag_w0(a, sGX, 's34', 32)
    stamp(a, 'x1pub')
    a('s_branch P2_c')
    a.label('A_ld'); a.vm = []; a.lg = []
    vW, vXs, vP = 32, 36, 38
    sRx = ['s62', 's63', 's64', 's65', 's66', 's67']
    a(f'''s_mov_b32 s35, 196608
    v_mul_lo_u32 v{vXs}, v{T8}, s35
    v_lshrrev_b32 v4, 1, v{T8}
    v_xor_b32 v4, v4, v{G8}
    v_lshl_add_u32 v{vXs}, v4, 4, v{vXs}
    v_xor_b32 v{vXs+1}, 64, v{vXs}
    v_add_u32 v{vXs+1}, 768, v{vXs+1}
    s_lshl_b32 s34, {sG}, 3
    s_lshl_b32 s35, {sW}, 1
    s_add_u32 s34, s34, s35
    s_mul_i32 {sX}, s34, 768
    v_lshlrev_b32 v4, 1, v{T8}
    v_and_b32 v4, 4, v4
    v_xor_b32 v4, v4, v{G8}
    v_mul_u32_u24 v{vW}, 2304, v{T8}
    v_lshl_add_u32 v{vW}, v4, 4, v{vW}
    s_mul_i32 s68, {sW}, {16*2304}
    s_lshl_b32 s34, {sJ}, 7
    s_add_u32 s68, s68, s34''')
    for k in range(1, 4): a(f'v_add_u32 v{vW+k}, {(k>>1)*768 + (k&1)*18432}, v{vW}')
    for i in range(6):
        if ROT:
            a(f's_lshl_b32 s34, s3, 7\ns_add_u32 {sRx[i]}, s34, {sX}\ns_mul_i32 s34, s3, 147456\ns_add_u32 {sR[i]}, s34, s68')
            if i < 5: a('s_add_u32 s3, s3, 1\ns_cmp_ge_u32 s3, 6\ns_cselect_b32 s3, 0, s3')
        else: a(f's_add_u32 {sR[i]}, s68, {i*147456}\ns_add_u32 {sRx[i]}, {sX}, {i*128}')
    for i in range(2):
        a(f'''s_lshl_b32 s34, {sJ}, 3
        s_lshl_b32 s35, {sW}, 1
        s_add_u32 s34, s34, s35
        s_add_u32 s34, s34, {i}
        s_mul_i32 s35, s34, 43
        s_lshr_b32 s35, s35, 8
        s_mul_i32 s14, s35, 6
        s_sub_u32 s34, s34, s14
        s_lshl_b32 s34, s34, 10
        s_mul_i32 s35, s35, 196608
        s_add_u32 s34, s34, s35
        s_mul_i32 s35, {sG}, 6144
        s_add_u32 s{12+i}, s34, s35''')
    a(f's_mov_b32 s34, {WE}\ns_waitcnt lgkmcnt(0)\ns_load_dword {sTag}, s[32:33], s34')
    srd(a, 4, 20, 1572864); srd(a, 8, 22, 884736)
    if opt('xp0', 1):
        for i in range(2): a(f'buffer_load_dwordx4 v[{56+4*i}:{59+4*i}], v{vL16}, {SX}, s{12+i} offen')
    def wdma(c):
        for th in range(2):
            a(f's_add_u32 m0, {sM}, {XS(c) + th*1024}\nbuffer_load_dwordx4 v{vXs+th}, {SX}, {sRx[c]} offen lds', tag=f'w{c}')
        for k in range(4):
            a(f's_add_u32 m0, {sM}, {WQ0 + c*16384 + (k>>1)*8192 + (k&1)*1024}\nbuffer_load_dwordx4 v{vW+k}, {SWQ}, {sR[c]} offen lds', tag=f'w{c}')
    NL = opt('nl', 3)
    for c in range(NL):
        wdma(c)
        if c == 0: srd(a, 16, 32, WS_SIZE); srd(a, 24, 38, 1572864)
    a(f'''v_mul_u32_u24 v{vP}, 768, v1
    s_lshl_b32 s34, {sJ}, 7
    s_add_u32 s68, s34, {GW2}
    s_mul_i32 s69, {sJ}, 53248
    s_add_u32 s69, s69, {WS_W2}
    s_waitcnt lgkmcnt(0)''')
    tag_ready(a)
    for c in range(6):
        a.wait(vm=f'w{c}')
        if c in (0, 3, 5): stamp(a, f'L{c}')
        a('s_barrier')
        if c + NL < 6: wdma(c + NL)
        if c == opt('tpos', 2) and opt('touch', 1):
            a(f'''s_mul_i32 s34, {sG}, 24576
            s_lshl_b32 s35, {sJ}, 12
            s_add_u32 s34, s34, s35
            s_add_u32 s34, s34, {WS_S}
            s_add_u32 s34, s34, {sM1K}
            buffer_load_dwordx4 v[44:47], v{vL16}, {SWS}, s34 offen
            s_lshl_b32 s34, {sG}, 8
            s_add_u32 s34, s34, {FS1}
            v_lshlrev_b32 v48, 2, v1
            buffer_load_dword v49, v48, {SWS}, s34 offen''')
    a(f's_mul_i32 s20, {sW}, 3')
    if ROT: a(f's_mul_i32 s3, {sXCD}, 3\ns_lshr_b32 s3, s3, 2\ns_lshl_b32 s3, s3, 1\ns_add_u32 s3, s3, s20')
    else: a('s_mov_b32 s3, s20')
    a(f's_lshl_b32 s20, s20, 12\ns_add_u32 s20, s20, {W2L}')
    for k in range(3):
        a(f's_cmp_ge_u32 s3, 12\ns_cselect_b32 s34, 12, 0\ns_sub_u32 s3, s3, s34\ns_lshl_b32 s34, s3, 12\ns_add_u32 s{21+k}, s69, s34\ns_add_u32 s3, s3, 1')
    a(f's_add_u32 s69, s69, 49152\ns_add_u32 s69, s69, {sM1K}')
    if opt('tp', 3) == 0: touch2(a)
    gpoll(a, 4, vP, 's68', 40)
    stamp(a, 'Lw2f')
    for k in range(3):
        a(f's_add_u32 m0, s20, {k*4096}')
        for q in range(4): a(f'buffer_load_dwordx4 v{vL16}, {SWS}, s{21+k} offen offset:{q*1024} sc1 lds')
    a(f's_add_u32 m0, {sM1K}, {W2L + 49152}\nbuffer_load_dwordx4 v{vL16}, {SWS}, s69 offen sc1 lds')
    a.wait_all()
    stamp(a, 'Lw2')
    a('s_barrier')
    wpoll(a)
    if opt('wearly', 0): wcopy(a)
    stamp(a, 'Lwi')
    a('s_barrier')
    stamp(a, 'Lbx')
    a('s_branch P2_l')
    a.label('K_pre'); a.vm = []; a.lg = []
    sS8, sIt, sJt, sA, sB, sMm, sT0, sLA, sLB = 's50', 's51', 's52', 's53', 's54', 's55', 's56', 's57', 's58'
    a(f'''s_mov_b32 {sS8}, {sI}
    s_mov_b32 s34, {WE}
    s_and_b32 s59, {sXCD}, 1
    s_lshr_b32 s60, {sXCD}, 1
    s_cmp_lt_u32 {sS8}, 3
    s_cbranch_scc1 W_id0
    s_mul_i32 s35, s60, 9
    s_mul_i32 s61, s59, 5
    s_add_u32 s35, s35, s61
    s_add_u32 s35, s35, {sS8}
    s_sub_u32 s35, s35, 3
    s_mul_i32 s61, s35, 43
    s_lshr_b32 s61, s61, 8
    s_mul_i32 s62, s61, 6
    s_sub_u32 {sJt}, s35, s62
    s_cmp_ge_u32 s61, 3
    s_cselect_b32 {sMm}, 1, 0
    s_mul_i32 s62, {sMm}, 3
    s_sub_u32 {sIt}, s61, s62
    s_add_u32 s62, {sS8}, s59
    s_cmp_ge_u32 s62, 8
    s_cselect_b32 {sMm}, 3, {sMm}
    s_branch W_id1''')
    a.label('W_id0')
    a(f'''s_mov_b32 {sMm}, 2
    s_mov_b32 {sIt}, s60
    s_mul_i32 {sJt}, s59, 3
    s_add_u32 {sJt}, {sJt}, {sS8}''')
    a.label('W_id1')
    a(f'''s_waitcnt lgkmcnt(0)
    s_load_dword {sTag}, s[32:33], s34''')
    srd(a, 16, 32, WS_SIZE); srd(a, 24, 38, 1572864)
    a(f'''s_cmp_eq_u32 {sMm}, 3
    s_cbranch_scc1 W_done
    s_cmp_lg_u32 {sRole}, 0
    s_cbranch_scc1 W_ld''')
    BB = 98304
    FA, FB, AC = 32, 48, 128
    vAr, vBr = 14, 18
    a(f'''v_and_b32 v2, 31, v1
    v_lshrrev_b32 v3, 5, v1
    v_and_b32 v4, 19, v2
    v_bfe_u32 v5, v2, 2, 1
    v_lshl_add_u32 v4, v5, 3, v4
    v_bfe_u32 v5, v2, 3, 1
    v_lshl_add_u32 v4, v5, 2, v4
    v_lshrrev_b32 v5, 3, v4
    v_mul_u32_u24 v5, 6144, v5
    v_and_b32 v6, 7, v4
    v_lshl_add_u32 v5, v6, 7, v5
    v_bfe_u32 v6, v4, 1, 3
    v_xor_b32 v6, v6, v3
    v_lshl_add_u32 v11, v6, 4, v5
    v_bfe_u32 v6, v1, 2, 2
    v_lshl_add_u32 v4, v3, 3, v6
    v_lshlrev_b32 v4, 7, v4
    v_lshrrev_b32 v7, 1, v6
    v_lshl_add_u32 v4, v7, 6, v4
    v_bfe_u32 v7, v1, 4, 1
    v_lshl_add_u32 v12, v7, 5, v4
    s_mov_b32 s37, 0x3f803f80''')
    def a_addr(swave):
        a(f's_mul_i32 s34, {swave}, 24576\nv_add_u32 v{vAr}, s34, v11')
        for k in range(1, 4): a(f'v_xor_b32 v{vAr+k}, {32*k}, v{vAr}')
    def stages(nv, breads):
        for jj in range(6):
            a('s_barrier')
            for k4 in range(4):
                a(f'ds_read_b128 {vr(FA+4*k4,4)}, v{vAr+k4} offset:{jj*1024}', tag=f'r{k4}')
                for v in range(nv): breads(jj, k4, v, FB + (k4*2+v)*4)
            for k4 in range(4):
                a.wait(lg=f'r{k4}')
                for v in range(nv):
                    cin = '0' if (jj == 0 and k4 == 0) else vr(AC+16*v, 16)
                    a(f'v_mfma_f32_32x32x16_bf16 {vr(AC+16*v,16)}, {vr(FA+4*k4,4)}, {vr(FB+(k4*2+v)*4,4)}, {cin}')
    def btr(jj, k4, v, d):
        o = jj*8192 + k4*2048
        a(f'ds_read_b64_tr_b16 {vr(d,2)}, v{vBr+v} offset:{o}\nds_read_b64_tr_b16 {vr(d+2,2)}, v{vBr+v} offset:{o+512}', tag=f'r{k4}')
    def brow(jj, k4, v, d): a(f'ds_read_b128 {vr(d,4)}, v{vBr+k4} offset:{v*24576+jj*1024}', tag=f'r{k4}')
    def colsum(v, src, dst):
        a(f'v_mov_b32 v24, 0')
        for i in range(8): a(f'v_dot2c_f32_bf16 v24, s37, v{src+i}')
        a(f'''v_mov_b32 v26, v24
        v_permlane32_swap_b32 v24, v26
        v_add_f32 v26, v26, v24
        v_cvt_pk_bf16_f32 v27, v26, v26
        v_lshlrev_b32 v27, 16, v27
        v_sub_f32 v27, v26, v27
        v_cvt_pk_bf16_f32 v{dst}, v26, v27''')
    a_addr(sW)
    a(f's_cmp_lg_u32 {sMm}, 2\ns_cbranch_scc1 W_c0')
    a(f'''s_min_u32 s59, {sW}, 2''')
    a_addr('s59')
    a(f'''v_and_b32 v7, 1, v1
    v_lshl_add_u32 v4, v7, 4, v12
    v_bfe_u32 v7, v1, 1, 1
    v_lshl_add_u32 v4, v7, 3, v4
    v_add_u32 v{vBr}, {BB}, v4
    v_xor_b32 v{vBr+1}, 64, v{vBr}
    s_mul_i32 s34, {sIt}, 3
    s_add_u32 s34, s34, s59
    s_mul_i32 s35, {sJt}, 53248
    s_add_u32 s35, s35, {WS_W2}
    s_lshl_b32 s36, s34, 12
    s_add_u32 s61, s35, s36
    s_lshl_b32 s36, s34, 8
    s_add_u32 s35, s35, s36
    s_add_u32 s62, s35, 49152
    v_lshlrev_b32 v30, 2, v1
    s_mul_i32 s63, {sIt}, 6
    s_add_u32 s63, s63, {sJt}
    s_lshl_b32 s63, s63, 7
    s_mov_b32 s64, {GW2}''')
    stages(2, btr)
    stamp(a, 'pst')
    a(f's_cmp_eq_u32 {sW}, 3\ns_cbranch_scc1 W_c4')
    for v in range(2):
        for i in range(8): a(f'v_cvt_pk_bf16_f32 v{32+8*v+i}, v{AC+16*v+2*i}, v{AC+16*v+2*i+1}')
        a(f'buffer_store_dwordx4 {vr(32+8*v,4)}, v{vL16}, {SWS}, s61 offen offset:{v*1024} {WT}\nbuffer_store_dwordx4 {vr(36+8*v,4)}, v{vL16}, {SWS}, s61 offen offset:{2048+v*1024} {WT}')
    for v in range(2): colsum(v, 32+8*v, 28+v)
    a('s_mov_b32 exec_hi, 0')
    for v in range(2): a(f'buffer_store_dword v{28+v}, v30, {SWS}, s62 offen offset:{v*128} {WT}')
    a('s_mov_b32 exec_hi, -1')
    a.label('W_c4')
    a.wait_all()
    tag_ready(a)
    a('s_barrier')
    flag_w0(a, 's63', 's64', 48)
    stamp(a, 'w2pub')
    a('s_branch W_done2')
    a.label('W_c0'); a.lg = []; a.vm = []
    a(f's_cmp_eq_u32 {sMm}, 1\ns_cbranch_scc1 W_c1')
    a(f'''v_lshrrev_b32 v5, 3, v2
    v_mul_u32_u24 v5, 6144, v5
    v_and_b32 v6, 7, v2
    v_lshl_add_u32 v5, v6, 7, v5
    v_bfe_u32 v6, v2, 1, 3
    v_xor_b32 v6, v6, v3
    v_lshl_add_u32 v5, v6, 4, v5
    v_add_u32 v{vBr}, {BB}, v5''')
    for k in range(1, 4): a(f'v_xor_b32 v{vBr+k}, {32*k}, v{vBr}')
    stages(2, brow)
    a('s_branch W_c2')
    a.label('W_c1'); a.lg = []
    a(f'''v_and_b32 v7, 3, v1
    v_lshl_add_u32 v4, v7, 3, v12
    v_add_u32 v{vBr}, {BB}, v4
    v_xor_b32 v{vBr+1}, 64, v{vBr}''')
    stages(2, btr)
    a.label('W_c2')
    a(f'''s_mul_i32 s34, {sMm}, 24
    s_lshl_b32 s35, {sJt}, 2
    s_add_u32 s34, s34, s35
    v_bfe_u32 v4, v1, 4, 1
    v_add_u32 v4, s34, v4
    v_and_b32 v7, 15, v1
    v_lshlrev_b32 v7, 4, v7
    s_lshl_b32 s35, {sIt}, 2
    s_add_u32 s35, s35, {sW}
    s_mul_i32 s35, s35, 3072
    s_add_u32 s35, s35, {WS_W}
    s_lshl_b32 s36, {sIt}, 2
    s_add_u32 s36, s36, {sW}
    s_mul_i32 s36, s36, 192
    s_add_u32 s36, s36, {WS_W + 12*3072}''')
    for v in range(2):
        a(f'''v_add_u32 v5, {2*v}, v4
        v_mul_u32_u24 v6, 43, v5
        v_lshrrev_b32 v6, 7, v6
        v_mul_u32_u24 v8, 3, v6
        v_sub_u32 v5, v5, v8
        v_mul_u32_u24 v6, 39936, v6
        v_lshl_add_u32 v{20+v}, v5, 6, v6
        v_lshl_add_u32 v6, v5, 10, v6
        v_add_u32 v6, v6, v7
        v_lshl_add_u32 v{22+v}, v3, 8, v6
        v_lshrrev_b32 v6, 2, v7
        v_add_u32 v{20+v}, v{20+v}, v6''')
        for i in range(8): a(f'v_cvt_pk_bf16_f32 v{32+8*v+i}, v{AC+16*v+2*i}, v{AC+16*v+2*i+1}')
        a(f'buffer_store_dwordx4 {vr(32+8*v,4)}, v{22+v}, {SWS}, s35 offen {WT}')
        a(f'buffer_store_dwordx4 {vr(36+8*v,4)}, v{22+v}, {SWS}, s35 offen offset:512 {WT}')
        colsum(v, 32+8*v, 28+v)
    a('s_mov_b32 exec_hi, 0')
    for v in range(2): a(f'buffer_store_dword v{28+v}, v{20+v}, {SWS}, s36 offen {WT}')
    a('s_mov_b32 exec_hi, -1')
    a('s_branch W_done')
    a.label('W_ld'); a.vm = []; a.lg = []
    vA0, vBo = 12, 14
    a(f'''v_lshrrev_b32 v4, 1, v{T8}
    v_xor_b32 v4, v4, v{G8}
    v_mul_u32_u24 v5, 2304, v{T8}
    v_lshl_add_u32 v{vA0}, v4, 4, v5
    v_xor_b32 v{vA0+1}, 64, v{vA0}
    v_lshlrev_b32 v4, 1, v{T8}
    v_and_b32 v4, 4, v4
    v_xor_b32 v4, v4, v{G8}
    v_mul_u32_u24 v5, 768, v{T8}
    v_lshl_add_u32 v{vBo}, v4, 4, v5''')
    sLn = ['s59', 's60', 's61', 's62', 's63', 's64']; sLb = ['s65', 's66', 's67', 's68', 's69', 's3']
    def lstages(nra, mode):
        if opt('prot', 1): a(f's_mul_i32 s34, {sIt}, 3\ns_lshr_b32 s34, s34, 1\ns_add_u32 s34, s34, {sJt}')
        else: a('s_mov_b32 s34, 0')
        for jj in range(6):
            a(f's_cmp_ge_u32 s34, 6\ns_cselect_b32 s35, 6, 0\ns_sub_u32 s34, s34, s35\ns_lshl_b32 s35, s34, 7\ns_add_u32 {sLn[jj]}, {sA}, s35')
            if mode == 1: a(f's_mul_i32 s35, s34, {64*768}')
            a(f's_add_u32 {sLb[jj]}, {sB}, s35\ns_add_u32 s34, s34, 1')
        def issue(jj):
            for r in range(nra):
                a(f'''s_add_u32 {sT0}, {sLn[jj]}, {r*8*2304}
                s_add_u32 m0, {sLA}, {(r*6+jj)*1024}
                buffer_load_dwordx4 v{vA0+(r&1)}, {SWQ}, {sT0} offen lds''', tag=f'p{jj}')
            for r in range(2):
                if mode == 0:
                    a(f'''s_add_u32 {sT0}, {sLb[jj]}, {r*8*2304}
                    s_add_u32 m0, {sLB}, {BB + (r*6+jj)*1024}
                    buffer_load_dwordx4 v{vA0+r}, {SWQ}, {sT0} offen lds''', tag=f'p{jj}')
                else:
                    a(f'''s_add_u32 {sT0}, {sLb[jj]}, {r*8*768}
                    s_add_u32 m0, {sLB}, {BB + jj*8192 + r*1024}
                    buffer_load_dwordx4 v{vBo}, {SWO}, {sT0} offen lds''', tag=f'p{jj}')
        n0 = opt('pn0', 3)
        for jj in range(n0): issue(jj)
        for jj in range(6):
            a.wait(vm=f'p{jj}')
            if jj in (0, 3, 5) and nra == 3: stamp(a, f'Lp{jj}')
            a('s_barrier')
            if jj + n0 < 6: issue(jj + n0)
    a(f's_cmp_lg_u32 {sMm}, 2\ns_cbranch_scc1 W_l0')
    srd(a, 8, 22, 884736); srd(a, 12, 28, 294912)
    a(f'''s_lshl_b32 s34, {sIt}, 2
    s_add_u32 s34, s34, {sW}
    s_mul_i32 {sA}, s34, {24*2304}
    s_add_u32 {sA}, {sA}, 1536
    s_mul_i32 {sLA}, {sW}, 18432
    s_mul_i32 {sB}, {sW}, {16*768}
    s_lshl_b32 s34, {sJt}, 7
    s_add_u32 {sB}, {sB}, s34
    s_lshl_b32 {sLB}, {sW}, 11
    s_and_b32 s34, {sW}, 1
    s_lshl_b32 s34, s34, 6
    v_xor_b32 v{vA0}, s34, v{vA0}
    v_xor_b32 v{vA0+1}, s34, v{vA0+1}''')
    lstages(3, 1)
    a('s_branch W_done')
    a.label('W_l0'); a.vm = []
    srd(a, 8, 30, 884736); srd(a, 12, 36, 294912)
    a(f'''s_lshl_b32 s34, {sIt}, 2
    s_add_u32 s34, s34, {sW}
    s_mul_i32 {sA}, s34, {32*2304}
    s_mul_i32 s35, {sMm}, 1536
    s_add_u32 {sA}, {sA}, s35
    s_mul_i32 {sLA}, {sW}, 24576
    s_cmp_eq_u32 {sMm}, 1
    s_cbranch_scc1 W_l1
    s_lshl_b32 s34, {sJt}, 2
    s_add_u32 s34, s34, {sW}
    s_mul_i32 {sB}, s34, {16*2304}
    s_add_u32 {sB}, {sB}, 768
    s_mul_i32 {sLB}, {sW}, 12288''')
    lstages(4, 0)
    a('s_branch W_done')
    a.label('W_l1'); a.vm = []
    a(f'''s_mul_i32 {sB}, {sW}, {16*768}
    s_lshl_b32 s34, {sJt}, 7
    s_add_u32 {sB}, {sB}, s34
    s_lshl_b32 {sLB}, {sW}, 11''')
    lstages(4, 1)
    a.label('W_done'); a.vm = []; a.lg = []
    a.wait_all()
    tag_ready(a)
    a(f'''s_barrier
    s_cmp_lg_u32 {sRole}, 0
    s_cbranch_scc1 W_done3''')
    a.label('W_done2')
    a(f'''
    s_lshl_b32 s34, {sS8}, 3
    s_add_u32 s34, s34, {sXCD}
    s_lshl_b32 s34, s34, 7
    s_mov_b32 s35, {GW}''')
    flag_w0(a, 's34', 's35', 32)
    stamp(a, 'wpub')
    hp_t0(a)
    if opt('tp', 3) == 3:
        a(f'''s_lshl_b32 s34, {sS8}, 2
        s_add_u32 s34, s34, {sW}
        s_mul_i32 s35, s34, 6656
        s_mul_i32 s36, {sXCD}, 212992
        s_add_u32 s35, s35, s36
        s_add_u32 s35, s35, {WS_Q}
        s_mul_i32 s36, s34, 6144
        s_mul_i32 s37, {sXCD}, 196608
        s_add_u32 s36, s36, s37
        s_add_u32 s36, s36, {WS_VP}''')
        for sb, n in (('s35', 7), ('s36', 6)):
            for i in range(n):
                if i == 4: a(f's_add_u32 {sb}, {sb}, 4096')
                a(f'buffer_load_dwordx4 v[64:67], v{vL16}, {SWS}, {sb} offen offset:{(i&3)*1024}')
        a(f's_lshl_b32 s34, {sXCD}, 9\ns_add_u32 s34, s34, {FC1}\nv_lshlrev_b32 v68, 3, v1\nbuffer_load_dword v64, v68, {SWS}, s34 offen')
        a.vm = []
    def wd3():
        a.label('W_done3')
        if opt('tp', 3) == 0: touch2(a)
        wpoll(a)
        if opt('wearly', 0): wcopy(a)
        a('s_branch P2_l')
    TAIL.append(wd3)
    import v11b
    v11b.phase2(a, globals())
    a.label('K_end')
    a('s_endpgm')
    a.cond = True
    k = 0
    while k < len(TAIL): a.vm = []; a.lg = []; TAIL[k](); k += 1
    return a

KNAME = 'standalone__video_timesformer__vision_kernel'
if __name__ == '__main__':
    out = sys.argv[1]
    a = build()
    head = open('standalone__video_timesformer__vision.s.ref').read().split('; Override launch')[0]
    s = head + '; @launch grid=(256,1,1) block=(512,1,1) lds=147712\n.amdgcn_target "amdgcn-amd-amdhsa--gfx950"\n.text\n'
    s += f'.globl {KNAME}\n.p2align 8\n.type {KNAME},@function\n{KNAME}:\n' + a.text()
    s += f'''.fill 4096, 4, 0xbf800000
  s_endpgm
.section .rodata,"a"
.p2align 6
.amdhsa_kernel {KNAME}
  .amdhsa_next_free_vgpr 256
  .amdhsa_next_free_sgpr 102
  .amdhsa_accum_offset 256
  .amdhsa_group_segment_fixed_size 0
  .amdhsa_kernarg_size 64
  .amdhsa_user_sgpr_count 2
  .amdhsa_user_sgpr_kernarg_segment_ptr 1
  .amdhsa_system_sgpr_workgroup_id_x 1
.end_amdhsa_kernel
'''
    open(out, 'w').write(s)
    if PROFILE: open(out + '.stamps', 'w').write(repr(St.names))
    print('instructions', sum(1 for i in a.ins if not i.label), 'pad states', a.pads)
```

```python
def phase2(a, G):
    globals().update({k: v for k, v in G.items() if not k.startswith('__')})
    sT = sXCD
    OWT = {0: '', 1: 'sc1', 2: 'nt'}[opt('owt', 0)]
    WT2 = WT if opt('wt2', 0) else ''
    sRH, sS, sQT, sCH, sT0, sT1 = 's50', 's51', 's52', 's53', 's54', 's55'
    sK, sSt1, sSt2, sQ, sVP, sOut, sF1, sF2, sOwn, sE8, sRs = 's56', 's57', 's58', 's59', 's60', 's61', 's62', 's63', 's64', 's65', 's66'
    LW, LT, LQ, LP, LML, LO = 0, 40960, 49152, 0, 71680, 73728
    vWa, vWb = 116, 117
    vL16, vW12, vTb, vA, vB, vSt = 10, 11, 12, 15, 9, 8
    RD, MF = 16, 24
    KF, SR = 160, 120
    def common(role):
        a(f'''s_lshr_b32 {sRH}, {sI}, 4
        s_and_b32 {sS}, {sI}, 15
        s_lshr_b32 {sQT}, {sI}, 1
        s_and_b32 {sCH}, {sI}, 1
        s_xor_b32 s34, {sRH}, {role}
        s_lshl_b32 {sE8}, {sW}, 1
        s_add_u32 {sE8}, {sE8}, s34
        s_lshl_b32 s34, s34, 2
        s_add_u32 s34, s34, {sW}
        s_mul_i32 {sK}, s34, 24576
        s_mul_i32 s35, {sT}, 196608
        s_add_u32 {sK}, {sK}, s35
        s_add_u32 {sK}, {sK}, {WS_X1}
        s_lshl_b32 s34, s34, 9
        s_mul_i32 s35, {sT}, 49152
        s_add_u32 s34, s34, s35
        s_add_u32 {sSt1}, s34, {WS_ST}
        s_lshl_b32 s34, {sT}, 9
        s_add_u32 {sF1}, s34, {FC1}
        s_add_u32 {sF2}, s34, {FC2}
        s_lshl_b32 s34, {sT}, 4
        s_add_u32 s34, s34, {sQT}
        s_mul_i32 {sQ}, s34, 13312
        s_add_u32 {sQ}, {sQ}, {WS_Q}
        v_lshrrev_b32 v2, 4, v1
        v_and_b32 v3, 15, v1
        v_lshrrev_b32 v4, 5, v1
        v_bfe_u32 v5, v1, 4, 1
        v_and_b32 v6, 31, v1
        v_lshlrev_b32 v{vSt}, 4, v6
        v_mul_u32_u24 v7, 24576, v4
        v_add_u32 v{vSt}, v{vSt}, v7
        v_cmp_eq_u32 vcc, 3, v2
        v_lshlrev_b32 v7, 4, v3
        v_cndmask_b32 v{vW12}, v{vL16}, v7, vcc
        s_add_u32 s34, {sM1K}, {LT + role*4096}
        v_lshl_add_u32 v{vTb}, v6, 2, s34
        v_lshl_add_u32 v{vTb+1}, v3, 2, s34
        v_lshl_add_u32 v{vTb+2}, v2, 4, s34''')
    def stats_load():
        for i in range(6):
            if i: a(f's_add_u32 {sSt1}, {sSt1}, 4096')
            a(f'buffer_load_dwordx4 {vr(SR+4*i,4)}, v{vSt}, {SWS}, {sSt1} offen sc1', tag='st')
    def stats_math(need_rt, defer=False):
        q = [f's_mov_b32 s36, {fbits(1/384)}', f's_mov_b32 s37, {fbits(1e-5)}', ('v', 'st')]
        for k in (0, 1): q += [f'v_add_f32 v{SR+k}, v{SR+k}, v{SR+4+k}', f'v_add_f32 v{SR+8+k}, v{SR+8+k}, v{SR+12+k}', f'v_add_f32 v{SR+16+k}, v{SR+16+k}, v{SR+20+k}']
        for k in (0, 1): q += [f'v_add_f32 v{SR+k}, v{SR+k}, v{SR+8+k}']
        for k in (0, 1): q += [f'v_add_f32 v{SR+k}, v{SR+k}, v{SR+16+k}']
        q += f'''v_mov_b32 v{SR+2}, v{SR}
        v_mov_b32 v{SR+3}, v{SR+1}
        v_cmp_eq_u32 vcc, 3, v2
        v_permlane32_swap_b32 v{SR}, v{SR+2}
        v_permlane32_swap_b32 v{SR+1}, v{SR+3}
        v_add_f32 v{SR}, v{SR}, v{SR+2}
        v_add_f32 v{SR+1}, v{SR+1}, v{SR+3}
        v_mul_f32 v{SR}, s36, v{SR}
        v_mul_f32 v{SR+2}, v{SR}, v{SR}
        v_fma_f32 v{SR+1}, v{SR+1}, s36, -v{SR+2}
        v_max_f32 v{SR+1}, 0, v{SR+1}
        v_add_f32 v{SR+1}, s37, v{SR+1}
        v_rsq_f32 v{SR+1}, v{SR+1}
        v_cvt_pk_bf16_f32 v{SR}, -v{SR}, -v{SR}
        ds_write_b32 v{vTb}, v{SR}
        ds_write_b32 v{vTb}, v{SR+1} offset:128'''.split('\n')
        q.append((f'ds_read2_b32 {vr(SR+4,2)}, v{vTb+1} offset0:0 offset1:16', 't'))
        if need_rt: q.append((f'ds_read2_b32 {vr(RT,2)}, v{vTb+1} offset0:32 offset1:48', 't'))
        for t in range(2): q.append((f'ds_read_b128 {vr(RD+4*t,4)}, v{vTb+2} offset:{128+64*t}', 't'))
        q += ['s_nop 0', 's_nop 0', 's_nop 0', 's_nop 0'] if defer else []
        q.append(('l', 't'))
        for t in range(2):
            q.append(f'v_cndmask_b32 v{MF+4*t}, v{SR+4+t}, 0, vcc')
            for d in range(1, 4): q.append(f'v_mov_b32 v{MF+4*t+d}, v{MF+4*t}')
        if defer: return q
        run(q, 1000)
    def run(q, n):
        while n > 0 and q:
            x = q.pop(0); n -= 1
            if x == 's_nop 0': continue
            if isinstance(x, tuple):
                if x[0] == 'v': a.wait(vm=x[1])
                elif x[0] == 'l': a.wait(lg=x[1])
                else: a(x[0], tag=x[1])
            else: a(x)
    def kld(t, ks):
        off = t*12288 + ks*1024
        a(f's_add_u32 {sT0}, {sK}, {off & ~4095}\nbuffer_load_dwordx4 {vr(KF+(t*12+ks)*4,4)}, v{vL16}, {SWS}, {sT0} offen offset:{off & 4095} sc1', tag=f'k{t}_{ks}')
    QF, SA, VF, RT = 32, 56, 64, 6
    vP, vML, vMLr = 13, 14, 12
    M_, T_ = 4, 5
    def attn_addr(role):
        a(f'''s_lshl_b32 s34, {sE8}, 10
        s_add_u32 s34, s34, {LP}
        v_add_u32 v{vP}, s34, v{vL16}
        s_lshl_b32 s34, {sE8}, 2
        s_add_u32 s34, s34, {LML}
        v_lshl_add_u32 v{vML}, v3, 5, s34
        v_lshlrev_b32 v{vMLr}, 5, v3
        v_add_u32 v{vMLr}, {LML}, v{vMLr}
        v_lshlrev_b32 v{vW12}, 2, v3
        v_lshl_add_u32 v{vW12}, v5, 8, v{vW12}
        v_add_u32 v{vW12}, {LQ + 12288}, v{vW12}
        s_mov_b32 exec_lo, 0''')
        for r in range(MF, MF + 8): a(f'v_mov_b32 v{r}, 0')
        a('s_mov_b32 exec_lo, -1')
    def scores(fill):
        def qrd(ks):
            d = QF + 4*(ks%4)
            if ks < 12: a(f'ds_read_b128 {vr(d,4)}, v{vL16} offset:{LQ + ks*1024}', tag=f'q{ks}')
            else: a(f'ds_read2_b32 {vr(d,2)}, v{vW12} offset0:0 offset1:16\nds_read2_b32 {vr(d+2,2)}, v{vW12} offset0:32 offset1:48', tag=f'q{ks}')
        for ks in range(3): qrd(ks)
        for ks in range(13):
            a.wait(lg=f'q{ks}')
            for t in range(2):
                kf = vr(KF+(t*12+ks)*4, 4) if ks < 12 else vr(MF+4*t, 4)
                d = vr(SA+4*t, 4)
                a(f'v_mfma_f32_16x16x32_bf16 {d}, {kf}, {vr(QF+4*(ks%4),4)}, {"0" if ks == 0 else d}')
            if ks + 3 < 13: qrd(ks + 3)
            if ks % 2 == 1 or opt('vfast', 0): fill()
        for i in range(8): a(f'v_mul_f32 v{SA+i}, v{SA+i}, v{RD+i}')
        a(f'v_max3_f32 v{M_}, v{SA}, v{SA+1}, v{SA+2}\nv_max3_f32 v{T_}, v{SA+3}, v{SA+4}, v{SA+5}\nv_max3_f32 v{M_}, v{M_}, v{SA+6}, v{SA+7}\nv_max_f32 v{M_}, v{M_}, v{T_}')
        for sw in ('v_permlane16_swap_b32', 'v_permlane32_swap_b32'):
            a(f'v_mov_b32 v{T_}, v{M_}'); fill(); a(f'{sw} v{M_}, v{T_}\nv_max_f32 v{M_}, v{M_}, v{T_}')
        a(f's_mov_b64 exec, 0xffff\nds_write_b32 v{vML}, v{M_}\ns_mov_b64 exec, -1')
        fill()
        a('s_waitcnt lgkmcnt(0)'); a.lg = []
        a('s_barrier')
        a(f'ds_read_b128 {vr(QF,4)}, v{vMLr}\nds_read_b128 {vr(QF+4,4)}, v{vMLr} offset:16', tag='mx')
        fill(); fill()
        a.wait(lg='mx')
        a(f'v_max3_f32 v{M_}, v{QF}, v{QF+1}, v{QF+2}\nv_max3_f32 v{T_}, v{QF+3}, v{QF+4}, v{QF+5}\nv_max3_f32 v{M_}, v{M_}, v{QF+6}, v{QF+7}\nv_max_f32 v{M_}, v{M_}, v{T_}')
        for i in range(8): a(f'v_sub_f32 v{SA+i}, v{SA+i}, v{M_}')
        for i in range(8): a(f'v_exp_f32 v{SA+i}, v{SA+i}')
        for i in range(4): a(f'v_cvt_pk_bf16_f32 v{QF+i}, v{SA+2*i}, v{SA+2*i+1}')
        a(f'ds_write_b128 v{vP}, {vr(QF,4)}')
        for w_ in (4, 2, 1):
            for i in range(w_): a(f'v_add_f32 v{SA+i}, v{SA+i}, v{SA+i+w_}')
        for sw in ('v_permlane16_swap_b32', 'v_permlane32_swap_b32'):
            a(f'v_mov_b32 v{T_}, v{SA}'); fill(); a(f'{sw} v{SA}, v{T_}\nv_add_f32 v{SA}, v{SA}, v{T_}')
        a(f's_mov_b64 exec, 0xffff\nds_write_b32 v{vML}, v{SA} offset:512\ns_mov_b64 exec, -1')
        a('s_waitcnt lgkmcnt(0)'); a.lg = []
        a('s_barrier')
    a.label('P2_c'); a.vm = []; a.lg = []
    stamp(a, 'p2c')
    common(0)
    WF, ACC, PK = 32, 76, 100
    a(f'''v_lshlrev_b32 v7, 4, v3
    v_lshl_add_u32 v{vA}, v4, 8, v7
    v_lshl_add_u32 v{vA}, v5, 3, v{vA}
    v_mul_u32_u24 v{vB}, 13312, v5
    v_lshl_add_u32 v{vB}, v3, 2, v{vB}
    s_lshl_b32 {sOwn}, {sI}, 4
    s_lshl_b32 s34, {sW}, 2
    s_add_u32 {sOwn}, {sOwn}, s34
    s_mul_i32 {sVP}, {sT}, 196608
    s_mul_i32 s35, {sQT}, 12288
    s_add_u32 {sRs}, {sVP}, s35
    s_mul_i32 s34, {sCH}, 6144
    s_add_u32 {sRs}, {sRs}, s34
    s_mul_i32 s34, {sW}, 1536
    s_add_u32 {sRs}, {sRs}, s34
    s_add_u32 {sRs}, {sRs}, {WS_X1}
    s_add_u32 {sOut}, {sVP}, s35
    s_mul_i32 s35, {sCH}, 384
    s_add_u32 {sOut}, {sOut}, s35
    s_mul_i32 s35, {sW}, 96
    s_add_u32 {sOut}, {sOut}, s35
    s_mul_i32 s34, {sE8}, 24576
    s_add_u32 s34, s34, {sVP}
    s_mul_i32 s35, {sS}, 3072
    s_add_u32 s34, s34, s35
    s_add_u32 s67, s34, {WS_VP - 8*3072}
    s_mul_i32 s35, {sCH}, 12288
    s_add_u32 {sVP}, {sVP}, s35
    s_mul_i32 s35, {sW}, 3072
    s_add_u32 {sVP}, {sVP}, s35
    s_add_u32 {sVP}, {sVP}, {WS_VP}
    s_lshl_b32 s34, {sT}, 4
    s_lshl_b32 s35, {sRH}, 3
    s_add_u32 s34, s34, s35
    s_lshl_b32 s35, {sW}, 1
    s_add_u32 s34, s34, s35
    s_mul_i32 s34, s34, 13312
    s_add_u32 s34, s34, {WS_Q}
    s_mul_i32 s35, {sS}, 1536
    s_add_u32 s68, s34, s35
    s_lshl_b32 s35, {sS}, 6
    s_add_u32 s34, s34, s35
    s_add_u32 {sSt2}, s34, 12288''')
    a(f'v_add_u32 v{vWa}, {LW34}, v{vL16}\nv_lshrrev_b32 v6, 8, v{vW12}\nv_mul_u32_u24 v6, 768, v6\nv_lshl_add_u32 v6, v3, 2, v6\nv_add_u32 v{vWb}, {LW34 + 36864}, v6')
    stamp(a, 'p2s')
    a('s_barrier')
    stamp(a, 'gsync')
    AHEAD = opt('ahead', 6)
    STP = opt('stp', 7)
    for ks in range(AHEAD):
        if ks == STP: stats_load()
        kld(0, ks); kld(1, ks)
    def wrd(ks, u):
        d = WF + (ks%2)*12 + 4*u
        if ks < 12: a(f'ds_read_b128 {vr(d,4)}, v{vWa} offset:{(ks*3+u)*1024}', tag=f'f{ks}_{u}')
        else: a(f'ds_read2_b32 {vr(d,2)}, v{vWb} offset0:{16*u} offset1:{16*u+48}\nds_read2_b32 {vr(d+2,2)}, v{vWb} offset0:{16*u+96} offset1:{16*u+144}', tag=f'f{ks}_{u}')
    late = stats_math(True, True)
    late += [f'v_mul_f32 v{RT}, {fbits(SCALE2)}, v{RT}', f'v_mul_f32 v{RT+1}, {fbits(SCALE2)}, v{RT+1}']
    stamp(a, 'mm2')
    a(f's_cmp_ge_u32 {sS}, 8\ns_cbranch_scc1 P2_v')
    for var in range(2):
        if var == 0: vmsave, lgsave = list(a.vm), list(a.lg)
        else: a.label('P2_v'); a.vm, a.lg = list(vmsave), list(lgsave)
        lq = list(late)
        for u in range(3): wrd(0, u)
        for ks in range(13):
            if ks == 12: run(lq, 1000)
            if ks + AHEAD < 12:
                if ks + AHEAD == STP: stats_load()
                kld(0, ks + AHEAD); kld(1, ks + AHEAD)
            if ks + AHEAD == 12 - opt('bke', 1) and opt('bk', 1): a('s_barrier')
            if ks < 12: a.wait(vm=f'k1_{ks}')
            if ks in (0, 4, 8, 11): stamp(a, f'k{ks}')
            for u in range(3):
                a.wait(lg=f'f{ks}_{u}')
                wf = vr(WF + (ks%2)*12 + 4*u, 4)
                for t in range(2):
                    xf = vr(KF+(t*12+ks)*4, 4) if ks < 12 else vr(MF+4*t, 4)
                    d = vr(ACC + (t*3+u)*4, 4)
                    A, B = (wf, xf) if var == 0 else (xf, wf)
                    a(f'v_mfma_f32_16x16x32_bf16 {d}, {A}, {B}, {"0" if ks == 0 else d}')
                if ks < 12: wrd(ks + 1, u)
                if ks >= max(1, STP - AHEAD + 3): run(lq, 2 if STP < AHEAD else 3)
        stamp(a, 'mm2end')
        if var == 0:
            AQ = 112
            a(f'v_mov_b32 v{AQ}, 0\nv_mov_b32 v{AQ+1}, 0\ns_mov_b32 s36, 0x3f803f80\ns_mov_b32 {sSt1}, s68')
            for t in range(2):
                for u in range(3):
                    b = ACC + (t*3+u)*4
                    for d in range(2): a(f'v_pk_mul_f32 {vr(b+2*d,2)}, {vr(b+2*d,2)}, {vr(RT,2)} op_sel:[0,{t}] op_sel_hi:[1,{t}]')
                    for d in range(2): a(f'v_cvt_pk_bf16_f32 v{PK+(t*3+u)*2+d}, v{b+2*d}, v{b+2*d+1}')
            def pub0(s1, s2, fl, first=False):
                for t in range(2):
                    if t: a(f's_add_u32 {sT1}, {s1}, 13312')
                    for u in range(3):
                        a(f'buffer_store_dwordx2 {vr(PK+(t*3+u)*2,2)}, v{vA}, {SWS}, {sT1 if t else s1} offen offset:{u*512} {fl}')
                if first:
                    for i in range(6):
                        for t in range(2): a(f'v_dot2c_f32_bf16 v{AQ+t}, s36, v{PK+t*6+i}')
                    for sw in ('v_permlane16_swap_b32', 'v_permlane32_swap_b32'):
                        a(f'v_mov_b32 v{AQ+2}, v{AQ}\nv_mov_b32 v{AQ+3}, v{AQ+1}\n{sw} v{AQ}, v{AQ+2}\n{sw} v{AQ+1}, v{AQ+3}\nv_add_f32 v{AQ}, v{AQ}, v{AQ+2}\nv_add_f32 v{AQ+1}, v{AQ+1}, v{AQ+3}')
                    a(f'''v_cmp_eq_u32 vcc, 1, v5
                    v_cndmask_b32 v{AQ}, v{AQ}, v{AQ+1}, vcc
                    v_cvt_pk_bf16_f32 v{AQ+1}, v{AQ}, v{AQ}
                    v_lshlrev_b32 v{AQ+1}, 16, v{AQ+1}
                    v_sub_f32 v{AQ+1}, v{AQ}, v{AQ+1}
                    v_cvt_pk_bf16_f32 v{AQ}, v{AQ}, v{AQ+1}''')
                a(f's_mov_b32 exec_hi, 0\nbuffer_store_dword v{AQ}, v{vB}, {SWS}, {s2} offen {fl}\ns_mov_b32 exec_hi, -1')
            pub0(sSt1, sSt2, WT2, True)
            a('s_branch P2_j')
        else:
            a(f's_mov_b32 {sSt1}, s67')
            for u in range(3):
                for t in range(2):
                    b = ACC + (t*3+u)*4
                    for d in range(2): a(f'v_pk_mul_f32 {vr(b+2*d,2)}, {vr(b+2*d,2)}, {vr(RD+4*t+2*d,2)}')
                    for d in range(2): a(f'v_cvt_pk_bf16_f32 v{PK+u*4+t*2+d}, v{b+2*d}, v{b+2*d+1}')
            def pub1(s1, fl):
                for u in range(3): a(f'buffer_store_dwordx4 {vr(PK+4*u,4)}, v{vL16}, {SWS}, {s1} offen offset:{u*1024} {fl}')
            pub1(sSt1, WT2)
    a.label('P2_j')
    attn_addr(0)
    vOW, vOR, vOG = 116, 117, 119
    a.wait_all()
    flag(a, sOwn, sF1, sFast, 6, '')
    stamp(a, 'flag2')
    RS = 48
    for u in range(3): a(f'buffer_load_dwordx2 {vr(RS+2*u,2)}, v{vA}, {SWS}, {sRs} offen offset:{u*512} sc1', tag='rs')
    def repub():
        L1, L2 = a.newlabel('rp'), a.newlabel('rp')
        a(f's_add_u32 s36, {sSt1}, {SLOW}\ns_add_u32 s37, {sSt2}, {SLOW}\ns_cmp_ge_u32 {sS}, 8\ns_cbranch_scc1 {L1}')
        pub0('s36', 's37', 'sc0 sc1'); a(f's_branch {L2}')
        a.label(L1); pub1('s36', 'sc0 sc1'); a.label(L2)
    lsync(a, 32, True, sF1, sF2, sOwn, (lambda: None) if WT2 else repub, 32, 0 if WT2 else SLOW)
    stamp(a, 'sync2')
    a(f's_add_u32 {sVP}, {sVP}, {sDelta}\ns_add_u32 {sQ}, {sQ}, {sDelta}\ns_add_u32 {sT1}, {sQ}, {sM1K}')
    for i in range(3):
        a(f's_add_u32 {sT0}, {sT1}, {i*4096}\ns_add_u32 m0, {sM1K}, {LQ + i*4096}\nbuffer_load_dwordx4 v{vL16}, {SWS}, {sT0} offen sc1 lds', tag='q')
    a(f's_add_u32 {sT0}, {sQ}, 12288\ns_mov_b32 m0, {LQ + 12288}\nbuffer_load_dwordx4 v{vL16}, {SWS}, {sT0} offen sc1 lds', tag='q')
    vq = []
    for k8 in range(8):
        for u in range(3):
            vq.append(((f's_add_u32 {sVP}, {sVP}, 24576\n' if k8 and u == 0 else '') + f'buffer_load_dwordx4 {vr(VF+(k8*3+u)*4,4)}, v{vL16}, {SWS}, {sVP} offen offset:{u*1024} sc1', f'vp{k8}'))
    def fill():
        if vq: x = vq.pop(0); a(x[0], tag=x[1])
    for _ in range(opt('nv0', 5)): fill()
    a.wait(vm='q')
    a('s_barrier')
    stamp(a, 'q_in')
    scores(fill)
    stamp(a, 'p_done')
    while vq: fill()
    PF, PA, RF, ML = 160, 32, 200, 212
    for k8 in range(8): a(f'ds_read_b128 {vr(PF+4*k8,4)}, v{vL16} offset:{LP + k8*1024}', tag=f'p{k8}')
    a(f'ds_read_b128 {vr(ML,4)}, v{vMLr} offset:512\nds_read_b128 {vr(ML+4,4)}, v{vMLr} offset:528', tag='ml')
    vOW, vOR, vOG = 220, 221, 223
    fx = [f's_lshl_b32 s35, {sW}, 11', f's_add_u32 s35, s35, {LO}', f'v_mul_u32_u24 v{vOW}, 112, v3', f'v_lshl_add_u32 v{vOW}, v2, 3, v{vOW}', f'v_add_u32 v{vOW}, s35, v{vOW}']
    for h in range(2):
        fx += [f'v_add_u32 v6, {64*h}, v1', 'v_mul_u32_u24 v7, 43, v6', 'v_lshrrev_b32 v7, 8, v7', 'v_mul_u32_u24 v4, 6, v7', 'v_sub_u32 v4, v6, v4', 'v_lshlrev_b32 v4, 4, v4',
               'v_mul_u32_u24 v6, 112, v7', f'v_add3_u32 v{vOR+h}, v6, v4, s35', 'v_mul_u32_u24 v6, 768, v7', f'v_add_u32 v{vOG+h}, v6, v4']
    fx += [('l', 'ml')] + [f'v_add_f32 v{ML+i}, v{ML+i}, v{ML+4+i}' for i in range(4)] + [f'v_add_f32 v{ML}, v{ML}, v{ML+1}', f'v_add_f32 v{ML+2}, v{ML+2}, v{ML+3}', f'v_add_f32 v{ML}, v{ML}, v{ML+2}', f'v_rcp_f32 v{ML}, v{ML}', ]
    fx = ['s_mov_b32 s36, 0xffff0000'] + [x for u in range(3) for d in range(2) for x in (f'v_lshlrev_b32 v{RF+4*u+2*d}, 16, v{RS+2*u+d}', f'v_and_b32 v{RF+4*u+2*d+1}, s36, v{RS+2*u+d}')] + fx
    def fxd(n):
        while n > 0 and fx:
            x = fx.pop(0)
            if isinstance(x, tuple): a.wait(lg=x[1])
            else: a(x); n -= 1
    for k8 in range(8):
        a.wait(vm=f'vp{k8}', lg=f'p{k8}')
        for u in range(3):
            d = vr(PA + 4*u, 4)
            a(f'v_mfma_f32_16x16x32_bf16 {d}, {vr(VF+(k8*3+u)*4,4)}, {vr(PF+4*k8,4)}, {"0" if k8 == 0 else d}')
            fxd(3)
    fxd(1000)
    stamp(a, 'pv_done')
    OP = 192
    for u in range(3):
        for d in range(2): a(f'v_pk_fma_f32 {vr(RF+4*u+2*d,2)}, {vr(PA+4*u+2*d,2)}, {vr(ML,2)}, {vr(RF+4*u+2*d,2)} op_sel_hi:[1,0,1]')
        for d in range(2): a(f'v_cvt_pk_bf16_f32 v{OP+2*u+d}, v{RF+4*u+2*d}, v{RF+4*u+2*d+1}')
        a(f'ds_write_b64 v{vOW}, {vr(OP+2*u,2)} offset:{u*32}')
    a(f'ds_read_b128 {vr(56,4)}, v{vOR}', tag='o0')
    a(f's_mov_b32 exec_hi, 0\nds_read_b128 {vr(60,4)}, v{vOR+1}\ns_mov_b32 exec_hi, -1', tag='o1')
    a.wait(lg='o0')
    a(f'buffer_store_dwordx4 {vr(56,4)}, v{vOG}, {SOUT}, {sOut} offen {OWT}')
    a.wait(lg='o1')
    a(f's_mov_b32 exec_hi, 0\nbuffer_store_dwordx4 {vr(60,4)}, v{vOG+1}, {SOUT}, {sOut} offen {OWT}\ns_mov_b32 exec_hi, -1')
    if PROFILE: a.wait_all()
    stamp(a, 'end')
    stamp_flush(a)
    a('s_endpgm')
    a.label('P2_l'); a.vm = []; a.lg = []
    stamp(a, 'Lp2')
    common(1)
    stamp(a, 'Lcm')
    if opt('tp', 3) == 1: touch2(a)
    if not opt('wearly', 0): wcopy(a)
    a(f'''v_lshlrev_b32 v7, 7, v1
    s_mul_i32 s67, {sW}, {48*128}
    s_add_u32 s67, s67, {GX}''')
    gpoll(a, 48, 7, 's67', 33)
    stamp(a, 'Lxf')
    a.label('P2_lg')
    a(f's_mul_i32 s67, {sT}, 196608\ns_mul_i32 s68, {sI}, 6144\ns_add_u32 s67, s67, s68\ns_add_u32 s67, s67, {WS_X1}\ns_mul_i32 s68, {sW}, 1536\ns_add_u32 s67, s67, s68')
    a('s_barrier')
    if opt('xpf', 0):
        a(f'buffer_load_dwordx4 v[32:35], v{vL16}, {SWS}, s67 offen sc1\ns_mov_b32 exec_hi, 0\nbuffer_load_dwordx4 v[36:39], v{vL16}, {SWS}, s67 offen offset:1024 sc1\ns_mov_b32 exec_hi, -1')
    L = a.newlabel('be')
    a(f's_or_b32 s34, {sW}, s2\ns_cmp_lg_u32 s34, 0\ns_cbranch_scc1 {L}')
    a.cond = True; a(f's_mov_b32 s34, {WE}'); flag(a, '0', 's34', sTag, 40, 'sc0 sc1'); a.vm.pop(); a.cond = False
    a.label(L)
    if opt('bk', 1): a('s_barrier')
    stats_load()
    KA, KB = opt('ka', 5), opt('kb', 5)
    for ks in range(12):
        if ks == KA: stats_math(False); attn_addr(1)
        if ks == 0 and opt('tp', 3) == 2: touch2(a)
        if ks in (KA, KB): a.wait_all(lg=False)
        kld(0, ks); kld(1, ks)
    stamp(a, 'Lkiss')
    a.wait_all()
    stamp(a, 'Lk')
    a('s_barrier')
    scores(lambda: None)
    stamp_flush(a, 'L')
```

```python
import sys, math, struct
sys.path.insert(0, 'gen')
from asm import Asm
def opt(name, default):
    for x in sys.argv:
        if x.startswith(f'--{name}='): return int(x.split('=')[1])
    return default
HP = [x[5:] for x in sys.argv if x.startswith('--hp=')]
PROFILE = '--prof' in sys.argv or bool(HP)
SKIP = []
for x in sys.argv:
    if x.startswith('--skip='): SKIP = x[7:].split(',')
WS_W2 = 0x000000
WS_S  = 0x180000
WS_X1 = 0x240000
WS_W  = 0x3E0000
WS_Q  = 0x480000
WS_VP = 0x620000
WS_ST = 0xF00000
FS1, FS2 = 0x7A0000, 0x7A2000
FC1, FC2 = 0x7A4000, 0x7A5000
GW2, GW, GX, WE = 0x7A8000, 0x7AA000, 0x7AC000, 0x7B4000
WS_PROF = 0x7C0000
SLOW = 0x800000
WS_SIZE = 0x1000000
LIM_FAST = opt('lim', 24)
LIM_SLOW = 1 << 20
SCALE2 = 384 ** -0.5 * math.log2(math.e)
def fbits(x): return '0x%08x' % struct.unpack('<I', struct.pack('<f', x))[0]
def vr(b, n): return f'v[{b}:{b+n-1}]' if n > 1 else f'v{b}'
SX, SWQ, SWO, SWS, SOUT = 's[4:7]', 's[8:11]', 's[12:15]', 's[16:19]', 's[24:27]'
WT = 'sc0 sc1' if opt('wt', 1) == 2 else 'sc1'
def srd(a, base, ptr, size):
    a(f's_mov_b32 s{base}, s{ptr}\ns_mov_b32 s{base+1}, s{ptr+1}\ns_mov_b32 s{base+2}, {size}\ns_mov_b32 s{base+3}, 0x20000')
STAMP_REGS = [70, 72, 74, 76, 78, 80, 82, 84, 86, 88, 90, 92, 94, 96, 98, 100]
class St:
    names = {'C': [], 'L': []}
def stamp(a, name):
    if not PROFILE or name in SKIP or (HP and name not in ('start', HP[0])): return
    lst = St.names['L' if name.startswith('L') else 'C']
    if name not in lst: lst.append(name)
    k = lst.index(name)
    a(f's_memrealtime s[{STAMP_REGS[k]}:{STAMP_REGS[k]+1}]')
def hp_end(a, role):
    name = HP[0]
    lst = St.names[role]
    src = f's{STAMP_REGS[lst.index(name)]}' if name in lst else 's70'
    L1, L2 = a.newlabel('hp'), a.newlabel('hp')
    a(f's_waitcnt vmcnt(0) lgkmcnt(0)\nv_mov_b32 v2, {WS_PROF + 0x30000}')
    a.label(L1)
    a(f'''buffer_load_dwordx2 v[4:5], v2, {SWS}, 0 offen sc0 sc1
    s_waitcnt vmcnt(0)
    v_readfirstlane_b32 s34, v4
    v_readfirstlane_b32 s35, v5
    s_cmp_lg_u32 s35, {sTag}
    s_cbranch_scc1 {L1}
    s_sub_u32 s35, {src}, s34
    s_max_i32 s35, s35, 0
    s_mul_i32 s35, s35, 4
    s_add_u32 s35, s35, 4000''')
    a.label(L2)
    a(f'''s_memrealtime s[36:37]
    s_waitcnt lgkmcnt(0)
    s_sub_u32 s36, s36, s34
    s_cmp_lt_i32 s36, s35
    s_cbranch_scc1 {L2}''')
def hp_t0(a):
    if not HP: return
    L = a.newlabel('hq')
    a(f's_or_b32 s34, s2, {sW}\ns_or_b32 s34, s34, {sRole}\ns_cmp_lg_u32 s34, 0\ns_cbranch_scc1 {L}')
    a(f'v_mov_b32 v2, {WS_PROF + 0x30000}\nv_mov_b32 v4, s70\nv_mov_b32 v5, {sTag}\nbuffer_store_dwordx2 v[4:5], v2, {SWS}, 0 offen sc0 sc1')
    a.vm.pop()
    a.label(L)
def stamp_flush(a, role='C'):
    if HP: hp_end(a, role); return
    if not PROFILE: return
    a('s_waitcnt lgkmcnt(0)')
    for k in range(16): a(f'v_mov_b32 v{100+k}, s{STAMP_REGS[k]}')
    a(f'''v_lshrrev_b32 v8, 6, v0
    s_lshl_b32 s34, s2, 3
    v_add_u32 v8, s34, v8
    v_lshlrev_b32 v8, 6, v8
    v_add_u32 v8, {WS_PROF}, v8''')
    for k in range(4): a(f'buffer_store_dwordx4 v[{100+4*k}:{103+4*k}], v8, {SWS}, 0 offen offset:{16*k}')

sXCD, sW, sI, sRole = 's40', 's41', 's42', 's43'
sTag, sFast, sDelta = 's44', 's45', 's46'
sM1K = 's47'
TAIL = []

def lanes(a, n):
    a(f's_mov_b32 exec_lo, {hex((1 << min(n, 32)) - 1)}\ns_mov_b32 exec_hi, {hex((1 << max(n-32, 0)) - 1)}')
def gpoll(a, n, vA, sBase, vT):
    Lf, Lr, Ld = a.newlabel('gp'), a.newlabel('gr'), a.newlabel('gd')
    lanes(a, n)
    a(f's_mov_b32 s35, {LIM_SLOW}')
    a.label(Lf)
    a(f'buffer_load_dword v{vT}, v{vA}, {SWS}, {sBase} offen sc1')
    a.wait_all(lg=False)
    a(f'v_cmp_ne_u32 vcc, {sTag}, v{vT}\ns_cbranch_vccnz {Lr}')
    a.label(Ld)
    a('s_mov_b64 exec, -1')
    def tail():
        a.label(Lr)
        if opt('gsl', 0): a(f's_sleep {opt("gsl", 0)}')
        a(f's_sub_u32 s35, s35, 1\ns_cmp_lg_u32 s35, 0\ns_cbranch_scc1 {Lf}\ns_branch {Ld}')
    TAIL.append(tail)
def lsync(a, n, wide, sF1, sF2, sOwn, republish, vT, delta=SLOW):
    Lf, Lr, Ld, Ls = a.newlabel('lp'), a.newlabel('lr'), a.newlabel('ld'), a.newlabel('ls')
    vA, vD, vE = vT, vT + 2, vT + 6
    w = 4 if wide else 1
    ld = 'buffer_load_dwordx4' if wide else 'buffer_load_dword'
    def cmp(v, s):
        if not wide: a(f'v_cmp_ne_u32 vcc, {s}, v{v}'); return
        for k in range(4): a(f'v_xor_b32 v{v+k}, {s}, v{v+k}')
        a(f'v_or_b32 v{v}, v{v}, v{v+1}\nv_or3_b32 v{v}, v{v}, v{v+2}, v{v+3}\nv_cmp_ne_u32 vcc, 0, v{v}')
    lanes(a, n)
    a(f'v_lshlrev_b32 v{vA}, {4 if wide else 2}, v1\ns_mov_b32 {sDelta}, 0\ns_mov_b32 s35, {LIM_FAST}')
    a.label(Lf)
    a(f'{ld} {vr(vD, w)}, v{vA}, {SWS}, {sF1} offen sc1')
    a.wait_all(lg=False)
    cmp(vD, sFast)
    a(f's_cbranch_vccnz {Lr}')
    a.label(Ld)
    a('s_mov_b64 exec, -1')
    def tail():
        a.label(Lr)
        a(f's_sub_u32 s35, s35, 1\ns_cmp_lg_u32 s35, 0\ns_cbranch_scc1 {Lf}')
        if republish:
            a('s_mov_b64 exec, -1')
            republish()
            a.wait_all(lg=False)
            a(f'''s_mov_b64 exec, 1
            v_mov_b32 v{vD}, {sOwn}
            v_mov_b32 v{vD+1}, {sTag}
            buffer_store_dword v{vD+1}, v{vD}, {SWS}, {sF2} offen sc0 sc1''')
            lanes(a, n)
        a(f's_mov_b32 s35, {LIM_SLOW}')
        a.label(Ls)
        a(f'{ld} {vr(vD, w)}, v{vA}, {SWS}, {sF1} offen sc1\n{ld} {vr(vE, w)}, v{vA}, {SWS}, {sF2} offen sc0 sc1')
        a.wait_all(lg=False)
        cmp(vD, sFast)
        a(f's_cbranch_vccz {Ld}')
        cmp(vE, sTag)
        a(f's_mov_b32 {sDelta}, {delta}\ns_cbranch_vccz {Ld}\ns_mov_b32 {sDelta}, 0\ns_sub_u32 s35, s35, 1\ns_cmp_lg_u32 s35, 0\ns_cbranch_scc1 {Ls}\ns_branch {Ld}')
    TAIL.append(tail)
def flag(a, sOff, sBase, sVal, vT, fl):
    a(f'''s_mov_b64 exec, 1
    v_mov_b32 v{vT}, {sOff}
    v_mov_b32 v{vT+1}, {sVal}
    buffer_store_dword v{vT+1}, v{vT}, {SWS}, {sBase} offen {fl}
    s_mov_b64 exec, -1''')
def gflag(a, sOff, sBase, vT):
    a(f'''s_mov_b64 exec, 15
    v_lshl_add_u32 v{vT}, v1, 4, {sOff}
    v_mov_b32 v{vT+2}, {sTag}
    v_mov_b32 v{vT+3}, {sTag}
    v_mov_b32 v{vT+4}, {sTag}
    v_mov_b32 v{vT+5}, {sTag}
    buffer_store_dwordx4 {vr(vT+2,4)}, v{vT}, {SWS}, {sBase} offen sc0 sc1
    s_mov_b64 exec, -1''')
def flag_w0(a, sOff, sBase, vT):
    L = a.newlabel('f0')
    a(f's_cmp_lg_u32 {sW}, 0\ns_cbranch_scc1 {L}')
    a.cond = True; gflag(a, sOff, sBase, vT); a.vm.pop(); a.cond = False
    a.label(L)
def tag_ready(a):
    a(f'''s_mul_i32 {sTag}, {sTag}, 0x9e3779b1
    s_add_u32 {sTag}, {sTag}, 0x7f4a7c15
    s_add_u32 {sFast}, {sFast}, {sTag}''')

LW34 = 102400
LSX = 147456
def wpoll(a):
    a(f'v_lshlrev_b32 v7, 7, v1\ns_mov_b32 s67, {GW}')
    gpoll(a, 64, 7, 's67', 33)
    stamp(a, 'Lwf')
def wcopy(a):
    a(f's_and_b32 s68, {sI}, 15\ns_mul_i32 s68, s68, 39936\ns_mul_i32 s34, {sW}, 10240\ns_add_u32 s68, s68, s34\ns_add_u32 s68, s68, {WS_W}\ns_add_u32 s34, s34, {LW34}')
    for i in range(10):
        if i % 4 == 0: a(f's_add_u32 m0, s34, {i*1024}' + ('\ns_add_u32 s68, s68, 4096' if i else ''))
        a(f'buffer_load_dwordx4 v10, {SWS}, s68 offen offset:{(i&3)*1024} sc1 lds')
def touch2(a):
    Lt = a.newlabel('tc'); Lu = a.newlabel('tc')
    a(f"""s_and_b32 s36, {sI}, 15
    s_lshr_b32 s37, {sI}, 4
    s_cmp_ge_u32 s36, 8
    s_cbranch_scc1 {Lt}
    s_lshl_b32 s34, {sXCD}, 4
    s_lshl_b32 s35, s37, 3
    s_add_u32 s34, s34, s35
    s_lshl_b32 s35, {sW}, 1
    s_add_u32 s34, s34, s35
    s_mul_i32 s34, s34, 13312
    s_mul_i32 s35, s36, 1536
    s_add_u32 s34, s34, s35
    s_add_u32 s34, s34, {WS_Q}
    s_add_u32 s35, s34, 13312""")
    for sb in ('s34', 's35'): a(f'buffer_load_dwordx4 v[64:67], v10, {SWS}, {sb} offen\ns_mov_b32 exec_hi, 0\nbuffer_load_dwordx4 v[64:67], v10, {SWS}, {sb} offen offset:1024\ns_mov_b32 exec_hi, -1')
    a(f's_branch {Lu}'); a.label(Lt)
    a(f"""s_lshl_b32 s34, {sW}, 1
    s_add_u32 s34, s34, s37
    s_lshl_b32 s35, {sXCD}, 3
    s_add_u32 s34, s34, s35
    s_mul_i32 s34, s34, 24576
    s_mul_i32 s35, s36, 3072
    s_add_u32 s34, s34, s35
    s_add_u32 s34, s34, {WS_VP - 8*3072}""")
    for u in range(3): a(f'buffer_load_dwordx4 v[64:67], v10, {SWS}, s34 offen offset:{u*1024}')
    a.label(Lu)
    a(f"""s_lshr_b32 s34, {sI}, 1
    s_lshl_b32 s35, {sXCD}, 4
    s_add_u32 s34, s34, s35
    s_mul_i32 s34, s34, 13312
    s_add_u32 s34, s34, {WS_Q + 12288}
    s_lshl_b32 s35, {sW}, 8
    v_lshl_add_u32 v68, v1, 2, s35
    buffer_load_dword v64, v68, {SWS}, s34 offen
    s_lshl_b32 s34, {sXCD}, 9
    s_add_u32 s34, s34, {FC1}
    v_lshlrev_b32 v68, 3, v1
    buffer_load_dword v64, v68, {SWS}, s34 offen""")
    a.vm = []

def build():
    a = Asm()
    def emit(x):
        if isinstance(x, tuple): a(x[0], tag=x[1])
        else: a(x)
    a(f'''s_cmp_ge_u32 s2, 256
    s_cbranch_scc1 K_end
    s_load_dwordx4 s[20:23], s[0:1], 0
    s_load_dwordx4 s[28:31], s[0:1], 16
    s_load_dwordx4 s[36:39], s[0:1], 32
    s_load_dwordx2 s[32:33], s[0:1], 56
    v_and_b32 v1, 63, v0
    v_lshrrev_b32 v2, 6, v0
    s_and_b32 {sXCD}, s2, 7
    v_readfirstlane_b32 {sW}, v2
    s_lshr_b32 {sI}, s2, 3''')
    stamp(a, 'start')
    if HP:
        St.names['L'].append('Lstart')
        a('s_waitcnt lgkmcnt(0)')
        for r in STAMP_REGS[1:]: a(f's_mov_b32 s{r}, s70')
    a('s_getpc_b64 s[48:49]')
    a.label('K_pc')
    a(f'''s_sub_u32 s48, s48, K_pc-{KNAME}
    s_subb_u32 s49, s49, 0
    s_lshl_b32 s34, {sI}, 3
    s_add_u32 s34, s34, {sW}
    s_and_b32 s34, s34, 31
    s_lshl_b32 s34, s34, 10
    v_lshl_add_u32 v9, v1, 4, s34
    global_load_dwordx4 v[252:255], v9, s[48:49]
    s_lshr_b32 {sRole}, {sW}, 2
    s_and_b32 {sW}, {sW}, 3
    s_lshl_b32 {sM1K}, {sW}, 10
    s_getreg_b32 {sFast}, hwreg(HW_REG_XCC_ID)
    s_and_b32 {sFast}, {sFast}, 15
    s_add_u32 {sFast}, {sFast}, 1
    v_lshrrev_b32 v2, 3, v1
    v_and_b32 v3, 7, v1
    v_lshlrev_b32 v10, 4, v1
    s_cmp_lt_u32 {sI}, 8
    s_cbranch_scc1 K_pre''')
    T8, G8, vL16 = 2, 3, 10
    sG, sJ, sP, sHF, sX, sM = 's50', 's51', 's52', 's53', 's54', 's55'
    sR = ['s56', 's57', 's58', 's59', 's60', 's61']
    ROT = opt('rot', 4)
    a(f'''s_sub_u32 {sJ}, {sI}, 8
    s_mul_i32 s34, {sJ}, 43
    s_lshr_b32 s34, s34, 8
    s_mul_i32 s35, s34, 6
    s_sub_u32 {sJ}, {sJ}, s35
    s_lshl_b32 {sG}, {sXCD}, 2
    s_add_u32 {sG}, {sG}, s34
    s_lshr_b32 {sP}, {sW}, 1
    s_and_b32 {sHF}, {sW}, 1
    s_lshl_b32 {sM}, {sW}, 11''')
    if ROT: a(f's_mul_i32 s3, {sXCD}, 3\ns_lshr_b32 s3, s3, 2')
    a(f's_cmp_lg_u32 {sRole}, 0\ns_cbranch_scc1 A_ld')
    XS = lambda c: c*8192
    WQ0 = 49152
    W2L = 49152
    vXF, vAW, vSst, vX1, vST, vRes, vBP, vBS, vW2, vW2b = 12, 16, 18, 19, 20, 21, 22, 23, 24, 25
    XF, WF, ACC, CS, MA, SEL, CA, CB = 160, 32, 64, 96, 104, 108, 112, 120
    sSst, sSld, sX1, sST, sFS1, sFS2, sOwn, sGX = 's56', 's57', 's58', 's59', 's60', 's61', 's62', 's63'
    a(f'''v_and_b32 v4, 31, v1
    v_lshrrev_b32 v5, 5, v1
    v_bfe_u32 v6, v1, 1, 3
    v_xor_b32 v6, v6, v5
    v_lshlrev_b32 v4, 7, v4
    v_lshl_add_u32 v4, v6, 4, v4
    s_lshl_b32 s35, {sP}, 12
    v_add_u32 v{vXF}, s35, v4
    v_xor_b32 v{vXF+1}, 32, v{vXF}
    v_xor_b32 v{vXF+2}, 64, v{vXF}
    v_xor_b32 v{vXF+3}, 96, v{vXF}
    v_bfe_u32 v6, v1, 2, 2
    v_lshl_add_u32 v4, v5, 3, v6
    v_lshlrev_b32 v4, 7, v4
    v_lshrrev_b32 v7, 1, v6
    v_xor_b32 v7, {sHF}, v7
    v_lshl_add_u32 v4, v7, 6, v4
    v_bfe_u32 v7, v1, 4, 1
    v_lshl_add_u32 v4, v7, 5, v4
    v_and_b32 v8, 1, v1
    v_lshl_add_u32 v4, v8, 4, v4
    v_bfe_u32 v8, v1, 1, 1
    v_lshl_add_u32 v4, v8, 3, v4
    v_add_u32 v{vAW}, {WQ0}, v4
    v_add_u32 v{vAW+1}, {WQ0 + 65536}, v4
    v_bfe_u32 v8, v1, 2, 1
    v_cmp_eq_u32 vcc, v8, v7
    v_mov_b32 v7, 0x3f803f80
    s_mov_b32 s34, {WE}
    s_waitcnt lgkmcnt(0)
    s_load_dword {sTag}, s[32:33], s34''')
    for k in range(4): a(f'v_cndmask_b32 v{SEL+k}, 0, v7, vcc')
    srd(a, 16, 32, WS_SIZE); srd(a, 24, 38, 1572864)
    a(f'''v_lshlrev_b32 v{vSst}, 9, v5
    v_lshl_add_u32 v{vSst}, v{G8}, 6, v{vSst}
    v_bfe_u32 v6, v1, 3, 2
    v_lshl_add_u32 v{vSst}, v6, 4, v{vSst}
    s_mul_i32 s34, {sG}, 24576
    s_lshl_b32 s35, {sP}, 10
    s_add_u32 s34, s34, s35
    s_add_u32 {sSld}, s34, {WS_S}
    s_lshl_b32 s35, {sJ}, 1
    s_add_u32 s35, s35, {sHF}
    s_lshl_b32 {sOwn}, s35, 2
    s_lshl_b32 s3{6}, s35, 11
    s_add_u32 {sSst}, {sSld}, s36
    s_lshl_b32 s34, {sG}, 1
    s_add_u32 s34, s34, {sP}
    s_lshl_b32 s34, s34, 7
    s_add_u32 {sFS1}, s34, {FS1}
    s_add_u32 {sFS2}, s34, {FS2}''')
    a(f'''v_bfe_u32 v6, v1, 2, 3
    v_and_b32 v7, 3, v1
    s_mov_b32 s34, 196608
    v_mul_lo_u32 v{vX1}, v6, s34
    v_lshl_add_u32 v{vX1}, v5, 8, v{vX1}
    v_lshl_add_u32 v{vX1}, v7, 4, v{vX1}
    v_mul_u32_u24 v{vST}, 49152, v6
    v_lshl_add_u32 v{vST}, v7, 4, v{vST}
    v_lshl_add_u32 v8, v7, 3, v6
    v_lshlrev_b32 v{vBP}, 2, v8
    v_lshlrev_b32 v{vBS}, 5, v7
    v_lshl_add_u32 v{vBS}, v5, 4, v{vBS}
    v_bfe_u32 v4, v8, 1, 3
    s_lshl_b32 s34, {sHF}, 2
    v_xor_b32 v4, s34, v4
    v_xor_b32 v4, v4, v5
    v_lshlrev_b32 v4, 4, v4
    v_lshl_add_u32 v4, v8, 7, v4''')
    if ROT: a(f's_add_u32 s34, {sJ}, 6\ns_sub_u32 s34, s34, s3\ns_cmp_ge_u32 s34, 6\ns_cselect_b32 s36, 6, 0\ns_sub_u32 s34, s34, s36\ns_lshl_b32 s34, s34, 13')
    else: a(f's_lshl_b32 s34, {sJ}, 13')
    a(f'''s_lshl_b32 s36, {sP}, 12
    s_add_u32 s34, s34, s36
    v_add_u32 v{vRes}, s34, v4
    s_lshl_b32 s34, {sHF}, 10
    s_add_u32 s34, s34, {W2L}
    v_add_u32 v{vW2}, s34, v{vL16}
    v_and_b32 v4, 31, v1
    v_lshlrev_b32 v4, 2, v4
    s_lshl_b32 s34, {sHF}, 7
    s_add_u32 s34, s34, {W2L + 49152}
    v_add_u32 v4, s34, v4
    v_lshl_add_u32 v{vW2b}, v5, 10, v4
    v_add_u32 v{vW2b+1}, 2048, v4
    s_lshr_b32 s34, {sG}, 1
    s_mul_i32 s34, s34, 12288
    s_lshl_b32 s36, s35, 10
    s_add_u32 s34, s34, s36
    s_and_b32 s36, {sG}, 1
    s_lshl_b32 s36, s36, 7
    s_add_u32 s34, s34, s36
    s_lshl_b32 s36, {sP}, 6
    s_add_u32 s34, s34, s36
    s_add_u32 {sX1}, s34, {WS_X1}
    s_lshl_b32 s34, s35, 12
    s_add_u32 s34, s34, s36
    s_lshl_b32 s36, {sG}, 7
    s_add_u32 s34, s34, s36
    s_add_u32 {sST}, s34, {WS_ST}
    s_mul_i32 s34, {sG}, 6
    s_add_u32 s34, s34, {sJ}
    s_lshl_b32 {sGX}, s34, 7
    s_mov_b32 s38, {fbits(-1/384)}
    s_mov_b32 s36, 0xffff0000
    s_mov_b32 s64, -1
    s_mov_b32 s65, 0
    s_mov_b32 s66, 0xff00ff00
    s_mov_b32 s67, 0xff00ff00
    s_mov_b32 s68, 0xffff0000
    s_mov_b32 s69, 0xffff0000''')
    for r in range(CA, CA + 8):
        if (r - CA) % 4: a(f'v_mov_b32 v{r}, 0')
    a('s_waitcnt lgkmcnt(0)')
    tag_ready(a)
    a('s_barrier')
    stamp(a, 'mm0')
    def rd(ks):
        c, k4 = ks >> 2, ks & 3
        a(f'ds_read_b128 {vr(XF+4*ks,4)}, v{vXF+k4} offset:{XS(c)}', tag=f'f{ks}')
        return [(c, k4, P) for P in range(2)]
    def trd(ks, P):
        c, k4 = ks >> 2, ks & 3
        off = c*16384 + P*8192 + k4*2048
        base = vAW + (off >> 16); off &= 0xffff
        d = WF + (ks % 3)*8 + P*4
        a(f'ds_read_b64_tr_b16 {vr(d,2)}, v{base} offset:{off}\nds_read_b64_tr_b16 {vr(d+2,2)}, v{base} offset:{off+512}', tag=f'f{ks}')
    def pre(ks, part):
        if part == 0: rd(ks); trd(ks, 0)
        else: trd(ks, 1)
    for ks in range(2): pre(ks, 0); pre(ks, 1)
    def m16(d, b, first): a(f'v_mfma_f32_16x16x32_bf16 {vr(d,4)}, {vr(SEL,4)}, {b}, {"0" if first else vr(d,4)}')
    for ks in range(24):
        bar = (ks & 3) == 3 and ks < 23
        if bar:
            if ks == 15: a.wait_all(lg=False)
            a('s_barrier')
            if ks in (7, 15, 19): stamp(a, f'c{(ks+1)>>2}')
            pre(ks + 1, 0); pre(ks + 1, 1)
        a.wait(lg=f'f{ks}')
        wf = lambda P: vr(WF + (ks % 3)*8 + P*4, 4)
        main = lambda P: a(f'v_mfma_f32_32x32x16_bf16 {vr(ACC+16*P,16)}, {wf(P)}, {vr(XF+4*ks,4)}, {"0" if ks == 0 else vr(ACC+16*P,16)}')
        nx = ks + 2 if (ks & 3) != 2 and ks + 2 < 24 else None
        if ks < 23:
            for P in range(2):
                main(P)
                if nx: pre(nx, P)
                m16(CS + 4*P, wf(P), ks == 0)
            m16(MA, vr(XF+4*ks, 4), ks == 0)
        else:
            m16(MA, vr(XF+4*ks, 4), False)
            for P in range(2): m16(CS + 4*P, wf(P), False)
            main(0)
            main(1)
            a(f'''v_mul_f32 v{MA}, s38, v{MA}
            v_cvt_pk_bf16_f32 v{CA}, v{CS}, v{CS}
            v_cvt_pk_bf16_f32 v{CA+4}, v{CS+4}, v{CS+4}
            v_cvt_pk_bf16_f32 v{MA+1}, v{MA}, v{MA}
            v_and_b32 v{CA}, s36, v{CA}
            v_and_b32 v{CA+4}, s36, v{CA+4}
            v_cndmask_b32 v{CB}, 0, v{MA+1}, s[64:65]
            v_sub_f32 v{CA}, v{CS}, v{CA}
            v_sub_f32 v{CA+4}, v{CS+4}, v{CA+4}
            v_mov_b32 v{CB+1}, v{CB}
            v_cvt_pk_bf16_f32 v{CA}, v{CS}, v{CA}
            v_cvt_pk_bf16_f32 v{CA+4}, v{CS+4}, v{CA+4}
            v_mov_b32 v{CB+2}, v{CB}
            v_mov_b32 v{CB+3}, v{CB}''')
            for P in range(2): a(f'v_mfma_f32_32x32x16_bf16 {vr(ACC+16*P,16)}, {vr(CA+4*P,4)}, {vr(CB,4)}, {vr(ACC+16*P,16)}')
    stamp(a, 'mmend')
    PQ, PK, SC, SS, SQ, CM = 32, 40, 64, 96, 100, 124
    a(f'v_mov_b32 v{SQ}, 0\nv_mov_b32 v{SQ+1}, 0')
    for k in range(4): a(f'v_mov_b32 v{CM+k}, v{MA+1}')
    for P, d in ((0, PQ), (1, PK)):
        for i in range(8): a(f'v_cvt_pk_bf16_f32 v{d+i}, v{ACC+16*P+2*i}, v{ACC+16*P+2*i+1}')
    a(f'v_mfma_f32_32x32x16_bf16 {vr(SC,16)}, {vr(PK,4)}, {vr(PQ,4)}, 0')
    a(f'v_mfma_f32_32x32x16_bf16 {vr(SC,16)}, {vr(PK+4,4)}, {vr(PQ+4,4)}, {vr(SC,16)}')
    RAW = 48
    a(f'v_xor_b32 v4, 32, v{vRes}\nds_read_b128 {vr(RAW,4)}, v{vRes}\nds_read_b128 {vr(RAW+4,4)}, v4', tag='raw')
    for e in range(4): a(f'v_cndmask_b32 v{SC+e}, v{SC+e}, v{SC+4+e}, s[66:67]\nv_cndmask_b32 v{SC+8+e}, v{SC+8+e}, v{SC+12+e}, s[66:67]')
    for e in range(4): a(f'v_cndmask_b32 v{SS+e}, v{SC+e}, v{SC+8+e}, s[68:69]')
    a(f'buffer_store_dwordx4 {vr(SS,4)}, v{vSst}, {SWS}, {sSst} offen')
    stamp(a, 'stored')
    ND0 = opt('nd0', 72)
    for i in range(ND0): a(f'v_dot2c_f32_bf16 v{SQ+(i&1)}, v{XF+i}, v{XF+i}')
    a.wait_all(lg=False)
    flag(a, sOwn, sFS1, sFast, 4, '')
    stamp(a, 'flag')
    for i in range(ND0, 96): a(f'v_dot2c_f32_bf16 v{SQ+(i&1)}, v{XF+i}, v{XF+i}')
    RR, RES = 56, 80
    a(f'''s_mov_b32 s37, {fbits(1e-5)}
    v_mul_f32 v{SQ+2}, v{MA}, v{MA}
    v_add_u32 v5, 4, v{vBS}
    v_add_f32 v{SQ}, v{SQ}, v{SQ+1}
    v_mov_b32 v{SQ+1}, v{SQ}
    v_add_u32 v6, 8, v{vBS}
    v_add_u32 v7, 12, v{vBS}
    v_permlane32_swap_b32 v{SQ}, v{SQ+1}
    v_add_f32 v{SQ}, v{SQ}, v{SQ+1}
    v_fma_f32 v{SQ}, -v{SQ}, s38, -v{SQ+2}
    v_max_f32 v{SQ}, 0, v{SQ}
    v_add_f32 v{SQ}, s37, v{SQ}
    v_rsq_f32 v{SQ}, v{SQ}''')
    a(f'ds_bpermute_b32 v{RR+4}, v{vBP}, v{SQ}\nds_bpermute_b32 v{RR}, v{vBS}, v{SQ}', tag='bp')
    for e in range(1, 4): a(f'ds_bpermute_b32 v{RR+e}, v{4+e}, v{SQ}', tag='bp')
    a.wait(lg='raw')
    for d in range(8): a(f'v_lshlrev_b32 v{RES+2*d}, 16, v{RAW+d}\nv_and_b32 v{RES+2*d+1}, s36, v{RAW+d}')
    a.wait(lg='bp')
    a(f'v_mul_f32 v{RR+4}, {fbits(SCALE2)}, v{RR+4}')
    def repubA():
        a(f's_add_u32 s34, {sSst}, {SLOW}\nbuffer_store_dwordx4 {vr(SS,4)}, v{vSst}, {SWS}, s34 offen sc0 sc1')
    lsync(a, 12, False, sFS1, sFS2, sOwn, repubA, 32)
    stamp(a, 'synced')
    SP, Y, WR = 112, 64, 32
    SPR = [128, 132, 136, 140, 144, 148, 152, 156, 112, 116, 96, 100]
    S0 = SPR[0]; T0 = SPR[1]
    sm = []
    def w2rd(ks):
        if ks < 24: a(f'ds_read_b128 {vr(WR+4*(ks%6),4)}, v{vW2} offset:{ks*2048}', tag=f'y{ks}')
        else:
            for k in range(2): a(f'ds_read2st64_b32 {vr(WR+4*(ks%6)+2*k,2)}, v{vW2b+ks-24} offset0:{2*k} offset1:{2*k+1}', tag=f'y{ks}')
    if opt('sdd', 1):
        a(f's_add_u32 {sSld}, {sSld}, {sDelta}\ns_mul_i32 s34, {sHF}, 12288\ns_add_u32 {sSld}, {sSld}, s34')
        for i in range(6):
            if i and i % 2 == 0: a(f's_add_u32 {sSld}, {sSld}, 4096')
            a(f'buffer_load_dwordx4 {vr(SPR[i],4)}, v{vL16}, {SWS}, {sSld} offen offset:{(i&1)*2048} sc1', tag=f's{i}')
        a(f's_add_u32 s34, {sM1K}, {LSX}\nv_add_u32 v4, s34, v{vL16}\nv_xor_b32 v5, 1024, v4')
        for i in range(1, 6):
            a.wait(vm=f's{i}')
            for d in (0, 2): a(f'v_pk_add_f32 {vr(S0+d,2)}, {vr(S0+d,2)}, {vr(SPR[i]+d,2)}')
        a(f'ds_write_b128 v4, {vr(S0,4)}\ns_waitcnt lgkmcnt(0)'); a.lg = []
        stamp(a, 'ssum')
        a('s_barrier')
        stamp(a, 'w2in')
        a(f'ds_read_b128 {vr(T0,4)}, v5', tag='sx')
        sm.append(('l', 'sx'))
        for d in range(4): sm.append(f'v_add_f32 v{S0+d}, v{S0+d}, v{T0+d}')
    else:
        a(f's_add_u32 {sSld}, {sSld}, {sDelta}')
        for i in range(12):
            if i and i % 2 == 0: a(f's_add_u32 {sSld}, {sSld}, 4096')
            a(f'buffer_load_dwordx4 {vr(SPR[i],4)}, v{vL16}, {SWS}, {sSld} offen offset:{(i&1)*2048} sc1', tag=f's{i}')
        a('s_barrier')
        stamp(a, 'w2in')
        for i in range(1, 12):
            sm.append(('w', f's{i}'))
            for d in range(4): sm.append(f'v_add_f32 v{S0+d}, v{S0+d}, v{SPR[i]+d}')
    for ks in range(5): w2rd(ks)
    for d in range(4): sm.append(f'v_mul_f32 v{S0+d}, v{S0+d}, v{RR+d}')
    sm += [f'v_max_f32 v{T0}, v{S0}, v{S0+1}', f'v_max3_f32 v{T0}, v{T0}, v{S0+2}, v{S0+3}', f'v_mov_b32 v{T0+1}, v{T0}', 's_mov_b32 s64, 0x11111111', 's_mov_b32 s65, 0x11111111',
           f'v_permlane32_swap_b32 v{T0}, v{T0+1}', f'v_max_f32 v{T0}, v{T0}, v{T0+1}', f'v_mul_f32 v{T0}, v{RR+4}, v{T0}']
    for d in range(4): sm.append(f'v_fma_f32 v{S0+d}, v{S0+d}, v{RR+4}, -v{T0}')
    for d in range(4): sm.append(f'v_exp_f32 v{S0+d}, v{S0+d}')
    sm += [f'v_add_f32 v{T0}, v{S0}, v{S0+1}', f'v_add_f32 v{T0+1}, v{S0+2}, v{S0+3}', f'v_add_f32 v{T0}, v{T0}, v{T0+1}', f'v_mov_b32 v{T0+1}, v{T0}']
    sm += [f'v_mul_f32 v{S0+d}, v{S0+d}, v{RR+d}' for d in range(2)] + [f'v_permlane32_swap_b32 v{T0}, v{T0+1}', f'v_add_f32 v{T0}, v{T0}, v{T0+1}', f'v_rcp_f32 v{T0}, v{T0}']
    sm += [f'v_mul_f32 v{S0+d}, v{S0+d}, v{RR+d}' for d in range(2, 4)]
    for d in range(4): sm.append(f'v_mul_f32 v{S0+d}, v{S0+d}, v{T0}')
    PB = 136
    sm += [f'v_cvt_pk_bf16_f32 v{T0}, v{S0}, v{S0+1}', f'v_cvt_pk_bf16_f32 v{T0+1}, v{S0+2}, v{S0+3}']
    for b in range(4):
        sm += [f'v_cndmask_b32 v{PB+2*b}, 0, v{T0}, s[64:65]', f'v_cndmask_b32 v{PB+2*b+1}, 0, v{T0+1}, s[64:65]']
        if b < 3: sm.append('s_lshl_b64 s[64:65], s[64:65], 1')
    S2 = 104
    sm += [f'v_mov_b32 v{S2}, 0', f'v_mov_b32 v{S2+1}, 0', 's_mov_b32 s36, 0x3f803f80']
    def drain(n):
        while n > 0 and sm:
            x = sm.pop(0)
            if isinstance(x, tuple): a.wait(vm=x[1]) if x[0] == 'w' else a.wait(lg=x[1])
            else: a(x); n -= 1
    for ks in range(26):
        a.wait(lg=f'y{ks}')
        xa = vr(XF+4*ks, 4) if ks < 24 else vr(CM if ks == 24 else CB, 4)
        a(f'v_mfma_f32_32x32x16_bf16 {vr(Y,16)}, {xa}, {vr(WR+4*(ks%6),4)}, {"0" if ks == 0 else vr(Y,16)}')
        if ks + 5 < 26: w2rd(ks + 5)
        if ks >= opt('sm0', 2): drain(4)
    drain(1000)
    stamp(a, 'ygemm')
    YP, XO = 144, 152
    for i in range(8): a(f'v_cvt_pk_bf16_f32 v{YP+i}, v{Y+2*i}, v{Y+2*i+1}')
    for k in range(2): a(f'v_mfma_f32_32x32x16_bf16 {vr(RES,16)}, {vr(YP+4*k,4)}, {vr(PB+4*k,4)}, {vr(RES,16)}')
    for i in range(8): a(f'v_cvt_pk_bf16_f32 v{XO+i}, v{RES+2*i}, v{RES+2*i+1}')
    a(f'buffer_store_dwordx4 {vr(XO,4)}, v{vX1}, {SWS}, {sX1} offen {WT}')
    a(f'buffer_store_dwordx4 {vr(XO+4,4)}, v{vX1}, {SWS}, {sX1} offen offset:512 {WT}')
    for i in range(8): a(f'v_dot2c_f32_bf16 v{S2}, s36, v{XO+i}\nv_dot2c_f32_bf16 v{S2+1}, v{XO+i}, v{XO+i}')
    a(f'''v_mov_b32 v{S2+2}, v{S2}
    v_mov_b32 v{S2+3}, v{S2+1}
    v_permlane32_swap_b32 v{S2}, v{S2+2}
    v_permlane32_swap_b32 v{S2+1}, v{S2+3}
    v_add_f32 v{S2}, v{S2}, v{S2+2}
    v_add_f32 v{S2+1}, v{S2+1}, v{S2+3}
    s_mov_b32 exec_hi, 0
    buffer_store_dwordx4 {vr(S2,4)}, v{vST}, {SWS}, {sST} offen {WT}
    s_mov_b32 exec_hi, -1
    s_mov_b32 s34, {GX}''')
    stamp(a, 'x1st')
    a.wait_all()
    a('s_barrier')
    flag_w0(a, sGX, 's34', 32)
    stamp(a, 'x1pub')
    a('s_branch P2_c')
    a.label('A_ld'); a.vm = []; a.lg = []
    vW, vXs, vP = 32, 36, 38
    sRx = ['s62', 's63', 's64', 's65', 's66', 's67']
    a(f'''s_mov_b32 s35, 196608
    v_mul_lo_u32 v{vXs}, v{T8}, s35
    v_lshrrev_b32 v4, 1, v{T8}
    v_xor_b32 v4, v4, v{G8}
    v_lshl_add_u32 v{vXs}, v4, 4, v{vXs}
    v_xor_b32 v{vXs+1}, 64, v{vXs}
    v_add_u32 v{vXs+1}, 768, v{vXs+1}
    s_lshl_b32 s34, {sG}, 3
    s_lshl_b32 s35, {sW}, 1
    s_add_u32 s34, s34, s35
    s_mul_i32 {sX}, s34, 768
    v_lshlrev_b32 v4, 1, v{T8}
    v_and_b32 v4, 4, v4
    v_xor_b32 v4, v4, v{G8}
    v_mul_u32_u24 v{vW}, 2304, v{T8}
    v_lshl_add_u32 v{vW}, v4, 4, v{vW}
    s_mul_i32 s68, {sW}, {16*2304}
    s_lshl_b32 s34, {sJ}, 7
    s_add_u32 s68, s68, s34''')
    for k in range(1, 4): a(f'v_add_u32 v{vW+k}, {(k>>1)*768 + (k&1)*18432}, v{vW}')
    for i in range(6):
        if ROT:
            a(f's_lshl_b32 s34, s3, 7\ns_add_u32 {sRx[i]}, s34, {sX}\ns_mul_i32 s34, s3, 147456\ns_add_u32 {sR[i]}, s34, s68')
            if i < 5: a('s_add_u32 s3, s3, 1\ns_cmp_ge_u32 s3, 6\ns_cselect_b32 s3, 0, s3')
        else: a(f's_add_u32 {sR[i]}, s68, {i*147456}\ns_add_u32 {sRx[i]}, {sX}, {i*128}')
    for i in range(2):
        a(f'''s_lshl_b32 s34, {sJ}, 3
        s_lshl_b32 s35, {sW}, 1
        s_add_u32 s34, s34, s35
        s_add_u32 s34, s34, {i}
        s_mul_i32 s35, s34, 43
        s_lshr_b32 s35, s35, 8
        s_mul_i32 s14, s35, 6
        s_sub_u32 s34, s34, s14
        s_lshl_b32 s34, s34, 10
        s_mul_i32 s35, s35, 196608
        s_add_u32 s34, s34, s35
        s_mul_i32 s35, {sG}, 6144
        s_add_u32 s{12+i}, s34, s35''')
    a(f's_mov_b32 s34, {WE}\ns_waitcnt lgkmcnt(0)\ns_load_dword {sTag}, s[32:33], s34')
    srd(a, 4, 20, 1572864); srd(a, 8, 22, 884736)
    if opt('xp0', 0):
        for i in range(2): a(f'buffer_load_dwordx4 v[{56+4*i}:{59+4*i}], v{vL16}, {SX}, s{12+i} offen')
    def wdma(c):
        for th in range(2):
            a(f's_add_u32 m0, {sM}, {XS(c) + th*1024}\nbuffer_load_dwordx4 v{vXs+th}, {SX}, {sRx[c]} offen lds', tag=f'w{c}')
        for k in range(4):
            a(f's_add_u32 m0, {sM}, {WQ0 + c*16384 + (k>>1)*8192 + (k&1)*1024}\nbuffer_load_dwordx4 v{vW+k}, {SWQ}, {sR[c]} offen lds', tag=f'w{c}')
    NL = opt('nl', 3)
    for c in range(NL):
        wdma(c)
        if c == 0: srd(a, 16, 32, WS_SIZE); srd(a, 24, 38, 1572864)
    a(f'''v_mul_u32_u24 v{vP}, 768, v1
    s_lshl_b32 s34, {sJ}, 7
    s_add_u32 s68, s34, {GW2}
    s_mul_i32 s69, {sJ}, 53248
    s_add_u32 s69, s69, {WS_W2}
    s_waitcnt lgkmcnt(0)''')
    tag_ready(a)
    for c in range(6):
        a.wait(vm=f'w{c}')
        if c in (0, 3, 5): stamp(a, f'L{c}')
        a('s_barrier')
        if c + NL < 6: wdma(c + NL)
        if c == opt('tpos', 0) and opt('touch', 1):
            a(f'''s_mul_i32 s34, {sG}, 24576
            s_lshl_b32 s35, {sJ}, 12
            s_add_u32 s34, s34, s35
            s_add_u32 s34, s34, {WS_S}
            s_add_u32 s34, s34, {sM1K}
            buffer_load_dwordx4 v[44:47], v{vL16}, {SWS}, s34 offen
            s_lshl_b32 s34, {sG}, 8
            s_add_u32 s34, s34, {FS1}
            v_lshlrev_b32 v48, 2, v1
            buffer_load_dword v49, v48, {SWS}, s34 offen
            s_lshl_b32 s34, {sXCD}, 9
            s_add_u32 s34, s34, {FC1}
            v_lshlrev_b32 v48, 3, v1
            buffer_load_dword v50, v48, {SWS}, s34 offen''')
    a(f's_mul_i32 s20, {sW}, 3')
    if ROT: a(f's_mul_i32 s3, {sXCD}, 3\ns_lshr_b32 s3, s3, 2\ns_lshl_b32 s3, s3, 1\ns_add_u32 s3, s3, s20')
    else: a('s_mov_b32 s3, s20')
    a(f's_lshl_b32 s20, s20, 12\ns_add_u32 s20, s20, {W2L}')
    for k in range(3):
        a(f's_cmp_ge_u32 s3, 12\ns_cselect_b32 s34, 12, 0\ns_sub_u32 s3, s3, s34\ns_lshl_b32 s34, s3, 12\ns_add_u32 s{21+k}, s69, s34\ns_add_u32 s3, s3, 1')
    a(f's_add_u32 s69, s69, 49152\ns_add_u32 s69, s69, {sM1K}')
    if opt('tp', 3) == 0: touch2(a)
    if opt('w21', 1):
        a(f's_cmp_lg_u32 {sW}, 0\ns_cbranch_scc1 A_ld2')
        gpoll(a, 4, vP, 's68', 40)
        stamp(a, 'Lw2f')
        a(f's_sub_u32 s69, s69, 49152')
        for gi in range(13):
            if gi == 12: a(f's_add_u32 s68, s69, 49152')
            elif gi == 0: a('s_mov_b32 s68, s21\ns_sub_u32 s3, s21, s69')
            elif gi % 2 == 0: a('s_add_u32 s3, s3, 8192\ns_cmp_ge_u32 s3, 49152\ns_cselect_b32 s3, 0, s3\ns_add_u32 s68, s69, s3')
            else: a('s_add_u32 s68, s68, 4096')
            a(f's_mov_b32 m0, {W2L + gi*4096}')
            for k in range(4 if gi < 12 else 3): a(f'buffer_load_dwordx4 v{vL16}, {SWS}, s68 offen offset:{k*1024} sc1 lds')
        a.label('A_ld2')
    else:
        gpoll(a, 4, vP, 's68', 40)
        stamp(a, 'Lw2f')
        for k in range(3):
            a(f's_add_u32 m0, s20, {k*4096}')
            for q in range(4): a(f'buffer_load_dwordx4 v{vL16}, {SWS}, s{21+k} offen offset:{q*1024} sc1 lds')
        a(f's_add_u32 m0, {sM1K}, {W2L + 49152}\nbuffer_load_dwordx4 v{vL16}, {SWS}, s69 offen sc1 lds')
    a.wait_all()
    stamp(a, 'Lw2')
    a('s_barrier')
    wpoll(a)
    if opt('wearly', 0): wcopy(a)
    stamp(a, 'Lwi')
    a('s_barrier')
    stamp(a, 'Lbx')
    a('s_branch P2_l')
    a.label('K_pre'); a.vm = []; a.lg = []
    sS8, sIt, sJt, sA, sB, sMm, sT0, sLA, sLB = 's50', 's51', 's52', 's53', 's54', 's55', 's56', 's57', 's58'
    a(f'''s_mov_b32 {sS8}, {sI}
    s_mov_b32 s34, {WE}
    s_and_b32 s59, {sXCD}, 1
    s_lshr_b32 s60, {sXCD}, 1
    s_cmp_lt_u32 {sS8}, 3
    s_cbranch_scc1 W_id0
    s_mul_i32 s35, s60, 9
    s_mul_i32 s61, s59, 5
    s_add_u32 s35, s35, s61
    s_add_u32 s35, s35, {sS8}
    s_sub_u32 s35, s35, 3
    s_mul_i32 s61, s35, 43
    s_lshr_b32 s61, s61, 8
    s_mul_i32 s62, s61, 6
    s_sub_u32 {sJt}, s35, s62
    s_cmp_ge_u32 s61, 3
    s_cselect_b32 {sMm}, 1, 0
    s_mul_i32 s62, {sMm}, 3
    s_sub_u32 {sIt}, s61, s62
    s_add_u32 s62, {sS8}, s59
    s_cmp_ge_u32 s62, 8
    s_cselect_b32 {sMm}, 3, {sMm}
    s_branch W_id1''')
    a.label('W_id0')
    a(f'''s_mov_b32 {sMm}, 2
    s_mov_b32 {sIt}, s60
    s_mul_i32 {sJt}, s59, 3
    s_add_u32 {sJt}, {sJt}, {sS8}''')
    a.label('W_id1')
    a(f'''s_waitcnt lgkmcnt(0)
    s_load_dword {sTag}, s[32:33], s34''')
    srd(a, 16, 32, WS_SIZE); srd(a, 24, 38, 1572864)
    a(f'''s_cmp_eq_u32 {sMm}, 3
    s_cbranch_scc1 W_done
    s_cmp_lg_u32 {sRole}, 0
    s_cbranch_scc1 W_ld''')
    BB = 98304
    FA, FB, AC = 32, 48, 128
    vAr, vBr = 14, 18
    a(f'''v_and_b32 v2, 31, v1
    v_lshrrev_b32 v3, 5, v1
    v_and_b32 v4, 19, v2
    v_bfe_u32 v5, v2, 2, 1
    v_lshl_add_u32 v4, v5, 3, v4
    v_bfe_u32 v5, v2, 3, 1
    v_lshl_add_u32 v4, v5, 2, v4
    v_lshrrev_b32 v5, 3, v4
    v_mul_u32_u24 v5, 6144, v5
    v_and_b32 v6, 7, v4
    v_lshl_add_u32 v5, v6, 7, v5
    v_bfe_u32 v6, v4, 1, 3
    v_xor_b32 v6, v6, v3
    v_lshl_add_u32 v11, v6, 4, v5
    v_bfe_u32 v6, v1, 2, 2
    v_lshl_add_u32 v4, v3, 3, v6
    v_lshlrev_b32 v4, 7, v4
    v_lshrrev_b32 v7, 1, v6
    v_lshl_add_u32 v4, v7, 6, v4
    v_bfe_u32 v7, v1, 4, 1
    v_lshl_add_u32 v12, v7, 5, v4
    s_mov_b32 s37, 0x3f803f80''')
    def a_addr(swave):
        a(f's_mul_i32 s34, {swave}, 24576\nv_add_u32 v{vAr}, s34, v11')
        for k in range(1, 4): a(f'v_xor_b32 v{vAr+k}, {32*k}, v{vAr}')
    def stages(nv, breads):
        for jj in range(6):
            a('s_barrier')
            for k4 in range(4):
                a(f'ds_read_b128 {vr(FA+4*k4,4)}, v{vAr+k4} offset:{jj*1024}', tag=f'r{k4}')
                for v in range(nv): breads(jj, k4, v, FB + (k4*2+v)*4)
            for k4 in range(4):
                a.wait(lg=f'r{k4}')
                for v in range(nv):
                    cin = '0' if (jj == 0 and k4 == 0) else vr(AC+16*v, 16)
                    a(f'v_mfma_f32_32x32x16_bf16 {vr(AC+16*v,16)}, {vr(FA+4*k4,4)}, {vr(FB+(k4*2+v)*4,4)}, {cin}')
    def btr(jj, k4, v, d):
        o = jj*8192 + k4*2048
        a(f'ds_read_b64_tr_b16 {vr(d,2)}, v{vBr+v} offset:{o}\nds_read_b64_tr_b16 {vr(d+2,2)}, v{vBr+v} offset:{o+512}', tag=f'r{k4}')
    def brow(jj, k4, v, d): a(f'ds_read_b128 {vr(d,4)}, v{vBr+k4} offset:{v*24576+jj*1024}', tag=f'r{k4}')
    def colsum(v, src, dst):
        a(f'v_mov_b32 v24, 0')
        for i in range(8): a(f'v_dot2c_f32_bf16 v24, s37, v{src+i}')
        a(f'''v_mov_b32 v26, v24
        v_permlane32_swap_b32 v24, v26
        v_add_f32 v26, v26, v24
        v_cvt_pk_bf16_f32 v27, v26, v26
        v_lshlrev_b32 v27, 16, v27
        v_sub_f32 v27, v26, v27
        v_cvt_pk_bf16_f32 v{dst}, v26, v27''')
    a_addr(sW)
    a(f's_cmp_lg_u32 {sMm}, 2\ns_cbranch_scc1 W_c0')
    a(f'''s_min_u32 s59, {sW}, 2''')
    a_addr('s59')
    a(f'''v_and_b32 v7, 1, v1
    v_lshl_add_u32 v4, v7, 4, v12
    v_bfe_u32 v7, v1, 1, 1
    v_lshl_add_u32 v4, v7, 3, v4
    v_add_u32 v{vBr}, {BB}, v4
    v_xor_b32 v{vBr+1}, 64, v{vBr}
    s_mul_i32 s34, {sIt}, 3
    s_add_u32 s34, s34, s59
    s_mul_i32 s35, {sJt}, 53248
    s_add_u32 s35, s35, {WS_W2}
    s_lshl_b32 s36, s34, 12
    s_add_u32 s61, s35, s36
    s_lshl_b32 s36, s34, 8
    s_add_u32 s35, s35, s36
    s_add_u32 s62, s35, 49152
    v_lshlrev_b32 v30, 2, v1
    s_mul_i32 s63, {sIt}, 6
    s_add_u32 s63, s63, {sJt}
    s_lshl_b32 s63, s63, 7
    s_mov_b32 s64, {GW2}''')
    stages(2, btr)
    stamp(a, 'pst')
    a(f's_cmp_eq_u32 {sW}, 3\ns_cbranch_scc1 W_c4')
    for v in range(2):
        for i in range(8): a(f'v_cvt_pk_bf16_f32 v{32+8*v+i}, v{AC+16*v+2*i}, v{AC+16*v+2*i+1}')
        a(f'buffer_store_dwordx4 {vr(32+8*v,4)}, v{vL16}, {SWS}, s61 offen offset:{v*1024} {WT}\nbuffer_store_dwordx4 {vr(36+8*v,4)}, v{vL16}, {SWS}, s61 offen offset:{2048+v*1024} {WT}')
    for v in range(2): colsum(v, 32+8*v, 28+v)
    a('s_mov_b32 exec_hi, 0')
    for v in range(2): a(f'buffer_store_dword v{28+v}, v30, {SWS}, s62 offen offset:{v*128} {WT}')
    a('s_mov_b32 exec_hi, -1')
    a.label('W_c4')
    a.wait_all()
    tag_ready(a)
    a('s_barrier')
    flag_w0(a, 's63', 's64', 48)
    stamp(a, 'w2pub')
    a('s_branch W_done2')
    a.label('W_c0'); a.lg = []; a.vm = []
    a(f's_cmp_eq_u32 {sMm}, 1\ns_cbranch_scc1 W_c1')
    a(f'''v_lshrrev_b32 v5, 3, v2
    v_mul_u32_u24 v5, 6144, v5
    v_and_b32 v6, 7, v2
    v_lshl_add_u32 v5, v6, 7, v5
    v_bfe_u32 v6, v2, 1, 3
    v_xor_b32 v6, v6, v3
    v_lshl_add_u32 v5, v6, 4, v5
    v_add_u32 v{vBr}, {BB}, v5''')
    for k in range(1, 4): a(f'v_xor_b32 v{vBr+k}, {32*k}, v{vBr}')
    stages(2, brow)
    a('s_branch W_c2')
    a.label('W_c1'); a.lg = []
    a(f'''v_and_b32 v7, 3, v1
    v_lshl_add_u32 v4, v7, 3, v12
    v_add_u32 v{vBr}, {BB}, v4
    v_xor_b32 v{vBr+1}, 64, v{vBr}''')
    stages(2, btr)
    a.label('W_c2')
    a(f'''s_mul_i32 s34, {sMm}, 24
    s_lshl_b32 s35, {sJt}, 2
    s_add_u32 s34, s34, s35
    v_bfe_u32 v4, v1, 4, 1
    v_add_u32 v4, s34, v4
    v_and_b32 v7, 15, v1
    v_lshlrev_b32 v7, 4, v7
    s_lshl_b32 s35, {sIt}, 2
    s_add_u32 s35, s35, {sW}
    s_mul_i32 s35, s35, 3072
    s_add_u32 s35, s35, {WS_W}
    s_lshl_b32 s36, {sIt}, 2
    s_add_u32 s36, s36, {sW}
    s_mul_i32 s36, s36, 192
    s_add_u32 s36, s36, {WS_W + 12*3072}''')
    for v in range(2):
        a(f'''v_add_u32 v5, {2*v}, v4
        v_mul_u32_u24 v6, 43, v5
        v_lshrrev_b32 v6, 7, v6
        v_mul_u32_u24 v8, 3, v6
        v_sub_u32 v5, v5, v8
        v_mul_u32_u24 v6, 39936, v6
        v_lshl_add_u32 v{20+v}, v5, 6, v6
        v_lshl_add_u32 v6, v5, 10, v6
        v_add_u32 v6, v6, v7
        v_lshl_add_u32 v{22+v}, v3, 8, v6
        v_lshrrev_b32 v6, 2, v7
        v_add_u32 v{20+v}, v{20+v}, v6''')
        for i in range(8): a(f'v_cvt_pk_bf16_f32 v{32+8*v+i}, v{AC+16*v+2*i}, v{AC+16*v+2*i+1}')
        a(f'buffer_store_dwordx4 {vr(32+8*v,4)}, v{22+v}, {SWS}, s35 offen {WT}')
        a(f'buffer_store_dwordx4 {vr(36+8*v,4)}, v{22+v}, {SWS}, s35 offen offset:512 {WT}')
        colsum(v, 32+8*v, 28+v)
    a('s_mov_b32 exec_hi, 0')
    for v in range(2): a(f'buffer_store_dword v{28+v}, v{20+v}, {SWS}, s36 offen {WT}')
    a('s_mov_b32 exec_hi, -1')
    a('s_branch W_done')
    a.label('W_ld'); a.vm = []; a.lg = []
    vA0, vBo = 12, 14
    a(f'''v_lshrrev_b32 v4, 1, v{T8}
    v_xor_b32 v4, v4, v{G8}
    v_mul_u32_u24 v5, 2304, v{T8}
    v_lshl_add_u32 v{vA0}, v4, 4, v5
    v_xor_b32 v{vA0+1}, 64, v{vA0}
    v_lshlrev_b32 v4, 1, v{T8}
    v_and_b32 v4, 4, v4
    v_xor_b32 v4, v4, v{G8}
    v_mul_u32_u24 v5, 768, v{T8}
    v_lshl_add_u32 v{vBo}, v4, 4, v5''')
    sLn = ['s59', 's60', 's61', 's62', 's63', 's64']; sLb = ['s65', 's66', 's67', 's68', 's69', 's3']
    def lstages(nra, mode):
        if opt('prot', 1) and (nra == 3 or opt('protw', 1)): a(f's_mul_i32 s34, {sIt}, 3\ns_lshr_b32 s34, s34, 1\ns_add_u32 s34, s34, {sJt}')
        else: a('s_mov_b32 s34, 0')
        for jj in range(6):
            a(f's_cmp_ge_u32 s34, 6\ns_cselect_b32 s35, 6, 0\ns_sub_u32 s34, s34, s35\ns_lshl_b32 s35, s34, 7\ns_add_u32 {sLn[jj]}, {sA}, s35')
            if mode == 1: a(f's_mul_i32 s35, s34, {64*768}')
            a(f's_add_u32 {sLb[jj]}, {sB}, s35\ns_add_u32 s34, s34, 1')
        def issue(jj):
            for r in range(nra):
                a(f'''s_add_u32 {sT0}, {sLn[jj]}, {r*8*2304}
                s_add_u32 m0, {sLA}, {(r*6+jj)*1024}
                buffer_load_dwordx4 v{vA0+(r&1)}, {SWQ}, {sT0} offen lds''', tag=f'p{jj}')
            for r in range(2):
                if mode == 0:
                    a(f'''s_add_u32 {sT0}, {sLb[jj]}, {r*8*2304}
                    s_add_u32 m0, {sLB}, {BB + (r*6+jj)*1024}
                    buffer_load_dwordx4 v{vA0+r}, {SWQ}, {sT0} offen lds''', tag=f'p{jj}')
                else:
                    a(f'''s_add_u32 {sT0}, {sLb[jj]}, {r*8*768}
                    s_add_u32 m0, {sLB}, {BB + jj*8192 + r*1024}
                    buffer_load_dwordx4 v{vBo}, {SWO}, {sT0} offen lds''', tag=f'p{jj}')
        n0 = opt('pn0', 3) if nra == 3 else opt('pn0w', 3)
        for jj in range(n0): issue(jj)
        for jj in range(6):
            a.wait(vm=f'p{jj}')
            if jj in (0, 3, 5) and nra == 3: stamp(a, f'Lp{jj}')
            a('s_barrier')
            if jj + n0 < 6: issue(jj + n0)
    a(f's_cmp_lg_u32 {sMm}, 2\ns_cbranch_scc1 W_l0')
    srd(a, 8, 22, 884736); srd(a, 12, 28, 294912)
    a(f'''s_lshl_b32 s34, {sIt}, 2
    s_add_u32 s34, s34, {sW}
    s_mul_i32 {sA}, s34, {24*2304}
    s_add_u32 {sA}, {sA}, 1536
    s_mul_i32 {sLA}, {sW}, 18432
    s_mul_i32 {sB}, {sW}, {16*768}
    s_lshl_b32 s34, {sJt}, 7
    s_add_u32 {sB}, {sB}, s34
    s_lshl_b32 {sLB}, {sW}, 11
    s_and_b32 s34, {sW}, 1
    s_lshl_b32 s34, s34, 6
    v_xor_b32 v{vA0}, s34, v{vA0}
    v_xor_b32 v{vA0+1}, s34, v{vA0+1}''')
    lstages(3, 1)
    a('s_branch W_done')
    a.label('W_l0'); a.vm = []
    srd(a, 8, 30, 884736); srd(a, 12, 36, 294912)
    a(f'''s_lshl_b32 s34, {sIt}, 2
    s_add_u32 s34, s34, {sW}
    s_mul_i32 {sA}, s34, {32*2304}
    s_mul_i32 s35, {sMm}, 1536
    s_add_u32 {sA}, {sA}, s35
    s_mul_i32 {sLA}, {sW}, 24576
    s_cmp_eq_u32 {sMm}, 1
    s_cbranch_scc1 W_l1
    s_lshl_b32 s34, {sJt}, 2
    s_add_u32 s34, s34, {sW}
    s_mul_i32 {sB}, s34, {16*2304}
    s_add_u32 {sB}, {sB}, 768
    s_mul_i32 {sLB}, {sW}, 12288''')
    lstages(4, 0)
    a('s_branch W_done')
    a.label('W_l1'); a.vm = []
    a(f'''s_mul_i32 {sB}, {sW}, {16*768}
    s_lshl_b32 s34, {sJt}, 7
    s_add_u32 {sB}, {sB}, s34
    s_lshl_b32 {sLB}, {sW}, 11''')
    lstages(4, 1)
    a.label('W_done'); a.vm = []; a.lg = []
    a.wait_all()
    tag_ready(a)
    a(f'''s_barrier
    s_cmp_lg_u32 {sRole}, 0
    s_cbranch_scc1 W_done3''')
    a.label('W_done2')
    a(f'''
    s_lshl_b32 s34, {sS8}, 3
    s_add_u32 s34, s34, {sXCD}
    s_lshl_b32 s34, s34, 7
    s_mov_b32 s35, {GW}''')
    flag_w0(a, 's34', 's35', 32)
    stamp(a, 'wpub')
    hp_t0(a)
    if opt('tp', 3) == 3:
        a(f'''s_lshl_b32 s34, {sS8}, 2
        s_add_u32 s34, s34, {sW}
        s_mul_i32 s35, s34, 6656
        s_mul_i32 s36, {sXCD}, 212992
        s_add_u32 s35, s35, s36
        s_add_u32 s35, s35, {WS_Q}
        s_mul_i32 s36, s34, 6144
        s_mul_i32 s37, {sXCD}, 196608
        s_add_u32 s36, s36, s37
        s_add_u32 s36, s36, {WS_VP}''')
        for sb, n in (('s35', 7), ('s36', 6)):
            for i in range(n):
                if i == 4: a(f's_add_u32 {sb}, {sb}, 4096')
                a(f'buffer_load_dwordx4 v[64:67], v{vL16}, {SWS}, {sb} offen offset:{(i&3)*1024}')
        a(f's_lshl_b32 s34, {sXCD}, 9\ns_add_u32 s34, s34, {FC1}\nv_lshlrev_b32 v68, 3, v1\nbuffer_load_dword v64, v68, {SWS}, s34 offen')
        a.vm = []
    def wd3():
        a.label('W_done3')
        if opt('tp', 3) == 0: touch2(a)
        wpoll(a)
        if opt('wearly', 0): wcopy(a)
        a('s_branch P2_l')
    TAIL.append(wd3)
    import v12b
    v12b.phase2(a, globals())
    a.label('K_end')
    a('s_endpgm')
    a.cond = True
    k = 0
    while k < len(TAIL): a.vm = []; a.lg = []; TAIL[k](); k += 1
    return a

KNAME = 'standalone__video_timesformer__vision_kernel'
if __name__ == '__main__':
    out = sys.argv[1]
    a = build()
    head = open('standalone__video_timesformer__vision.s.ref').read().split('; Override launch')[0]
    s = head + '; @launch grid=(256,1,1) block=(512,1,1) lds=151552\n.amdgcn_target "amdgcn-amd-amdhsa--gfx950"\n.text\n'
    s += f'.globl {KNAME}\n.p2align 8\n.type {KNAME},@function\n{KNAME}:\n' + a.text()
    s += f'''.fill 4096, 4, 0xbf800000
  s_endpgm
.section .rodata,"a"
.p2align 6
.amdhsa_kernel {KNAME}
  .amdhsa_next_free_vgpr 256
  .amdhsa_next_free_sgpr 102
  .amdhsa_accum_offset 256
  .amdhsa_group_segment_fixed_size 0
  .amdhsa_kernarg_size 64
  .amdhsa_user_sgpr_count 2
  .amdhsa_user_sgpr_kernarg_segment_ptr 1
  .amdhsa_system_sgpr_workgroup_id_x 1
.end_amdhsa_kernel
'''
    open(out, 'w').write(s)
    if PROFILE: open(out + '.stamps', 'w').write(repr(St.names))
    print('instructions', sum(1 for i in a.ins if not i.label), 'pad states', a.pads)
```

```python
def phase2(a, G):
    globals().update({k: v for k, v in G.items() if not k.startswith('__')})
    sT = sXCD
    OWT = {0: '', 1: 'sc1', 2: 'nt'}[opt('owt', 0)]
    WT2 = WT if opt('wt2', 1) else ''
    sRH, sS, sQT, sCH, sT0, sT1 = 's50', 's51', 's52', 's53', 's54', 's55'
    sK, sSt1, sSt2, sQ, sVP, sOut, sF1, sF2, sOwn, sE8, sRs = 's56', 's57', 's58', 's59', 's60', 's61', 's62', 's63', 's64', 's65', 's66'
    LW, LT, LQ, LP, LML, LO = 0, 40960, 49152, 0, 71680, 73728
    vWa, vWb = 116, 117
    vL16, vW12, vTb, vA, vB, vSt = 10, 11, 12, 15, 9, 8
    RD, MF = 16, 24
    KF, SR = 160, 120
    def common(role):
        a(f'''s_lshr_b32 {sRH}, {sI}, 4
        s_and_b32 {sS}, {sI}, 15
        s_lshr_b32 {sQT}, {sI}, 1
        s_and_b32 {sCH}, {sI}, 1
        s_xor_b32 s34, {sRH}, {role}
        s_lshl_b32 {sE8}, {sW}, 1
        s_add_u32 {sE8}, {sE8}, s34
        s_lshl_b32 s34, s34, 2
        s_add_u32 s34, s34, {sW}
        s_mul_i32 {sK}, s34, 24576
        s_mul_i32 s35, {sT}, 196608
        s_add_u32 {sK}, {sK}, s35
        s_add_u32 {sK}, {sK}, {WS_X1}
        s_lshl_b32 s34, s34, 9
        s_mul_i32 s35, {sT}, 49152
        s_add_u32 s34, s34, s35
        s_add_u32 {sSt1}, s34, {WS_ST}
        s_lshl_b32 s34, {sT}, 9
        s_add_u32 {sF1}, s34, {FC1}
        s_add_u32 {sF2}, s34, {FC2}
        s_lshl_b32 s34, {sT}, 4
        s_add_u32 s34, s34, {sQT}
        s_mul_i32 {sQ}, s34, 13312
        s_add_u32 {sQ}, {sQ}, {WS_Q}
        v_lshrrev_b32 v2, 4, v1
        v_and_b32 v3, 15, v1
        v_lshrrev_b32 v4, 5, v1
        v_bfe_u32 v5, v1, 4, 1
        v_and_b32 v6, 31, v1
        v_lshlrev_b32 v{vSt}, 4, v6
        v_mul_u32_u24 v7, 24576, v4
        v_add_u32 v{vSt}, v{vSt}, v7
        v_cmp_eq_u32 vcc, 3, v2
        v_lshlrev_b32 v7, 4, v3
        v_cndmask_b32 v{vW12}, v{vL16}, v7, vcc
        s_add_u32 s34, {sM1K}, {LT + role*4096}
        v_lshl_add_u32 v{vTb}, v6, 2, s34
        v_lshl_add_u32 v{vTb+1}, v3, 2, s34
        v_lshl_add_u32 v{vTb+2}, v2, 4, s34''')
    def stats_load():
        for i in range(6):
            if i: a(f's_add_u32 {sSt1}, {sSt1}, 4096')
            a(f'buffer_load_dwordx4 {vr(SR+4*i,4)}, v{vSt}, {SWS}, {sSt1} offen sc1', tag='st')
    def stats_math(need_rt, defer=False):
        q = [f's_mov_b32 s36, {fbits(1/384)}', f's_mov_b32 s37, {fbits(1e-5)}', ('v', 'st')]
        for k in (0, 1): q += [f'v_add_f32 v{SR+k}, v{SR+k}, v{SR+4+k}', f'v_add_f32 v{SR+8+k}, v{SR+8+k}, v{SR+12+k}', f'v_add_f32 v{SR+16+k}, v{SR+16+k}, v{SR+20+k}']
        for k in (0, 1): q += [f'v_add_f32 v{SR+k}, v{SR+k}, v{SR+8+k}']
        for k in (0, 1): q += [f'v_add_f32 v{SR+k}, v{SR+k}, v{SR+16+k}']
        q += f'''v_mov_b32 v{SR+2}, v{SR}
        v_mov_b32 v{SR+3}, v{SR+1}
        v_cmp_eq_u32 vcc, 3, v2
        v_permlane32_swap_b32 v{SR}, v{SR+2}
        v_permlane32_swap_b32 v{SR+1}, v{SR+3}
        v_add_f32 v{SR}, v{SR}, v{SR+2}
        v_add_f32 v{SR+1}, v{SR+1}, v{SR+3}
        v_mul_f32 v{SR}, s36, v{SR}
        v_mul_f32 v{SR+2}, v{SR}, v{SR}
        v_fma_f32 v{SR+1}, v{SR+1}, s36, -v{SR+2}
        v_max_f32 v{SR+1}, 0, v{SR+1}
        v_add_f32 v{SR+1}, s37, v{SR+1}
        v_rsq_f32 v{SR+1}, v{SR+1}
        v_cvt_pk_bf16_f32 v{SR}, -v{SR}, -v{SR}
        ds_write_b32 v{vTb}, v{SR}
        ds_write_b32 v{vTb}, v{SR+1} offset:128'''.split('\n')
        q.append((f'ds_read2_b32 {vr(SR+4,2)}, v{vTb+1} offset0:0 offset1:16', 't'))
        if need_rt: q.append((f'ds_read2_b32 {vr(RT,2)}, v{vTb+1} offset0:32 offset1:48', 't'))
        for t in range(2): q.append((f'ds_read_b128 {vr(RD+4*t,4)}, v{vTb+2} offset:{128+64*t}', 't'))
        q += ['s_nop 0', 's_nop 0', 's_nop 0', 's_nop 0'] if defer else []
        q.append(('l', 't'))
        for t in range(2):
            q.append(f'v_cndmask_b32 v{MF+4*t}, v{SR+4+t}, 0, vcc')
            for d in range(1, 4): q.append(f'v_mov_b32 v{MF+4*t+d}, v{MF+4*t}')
        if defer: return q
        run(q, 1000)
    def run(q, n):
        while n > 0 and q:
            x = q.pop(0); n -= 1
            if x == 's_nop 0': continue
            if isinstance(x, tuple):
                if x[0] == 'v': a.wait(vm=x[1])
                elif x[0] == 'l': a.wait(lg=x[1])
                else: a(x[0], tag=x[1])
            else: a(x)
    def kld(t, ks):
        off = t*12288 + ks*1024
        a(f's_add_u32 {sT0}, {sK}, {off & ~4095}\nbuffer_load_dwordx4 {vr(KF+(t*12+ks)*4,4)}, v{vL16}, {SWS}, {sT0} offen offset:{off & 4095} sc1', tag=f'k{t}_{ks}')
    QF, SA, VF, RT = 32, 56, 64, 6
    vP, vML, vMLr = 13, 14, 12
    M_, T_ = 4, 5
    def attn_addr(role):
        a(f'''s_lshl_b32 s34, {sE8}, 10
        s_add_u32 s34, s34, {LP}
        v_add_u32 v{vP}, s34, v{vL16}
        s_lshl_b32 s34, {sE8}, 2
        s_add_u32 s34, s34, {LML}
        v_lshl_add_u32 v{vML}, v3, 5, s34
        v_lshlrev_b32 v{vMLr}, 5, v3
        v_add_u32 v{vMLr}, {LML}, v{vMLr}
        v_lshlrev_b32 v{vW12}, 2, v3
        v_lshl_add_u32 v{vW12}, v5, 8, v{vW12}
        v_add_u32 v{vW12}, {LQ + 12288}, v{vW12}
        s_mov_b32 exec_lo, 0''')
        for r in range(MF, MF + 8): a(f'v_mov_b32 v{r}, 0')
        a('s_mov_b32 exec_lo, -1')
    def scores(fill):
        def qrd(ks):
            d = QF + 4*(ks%4)
            if ks < 12: a(f'ds_read_b128 {vr(d,4)}, v{vL16} offset:{LQ + ks*1024}', tag=f'q{ks}')
            else: a(f'ds_read2_b32 {vr(d,2)}, v{vW12} offset0:0 offset1:16\nds_read2_b32 {vr(d+2,2)}, v{vW12} offset0:32 offset1:48', tag=f'q{ks}')
        for ks in range(3): qrd(ks)
        for ks in range(13):
            a.wait(lg=f'q{ks}')
            for t in range(2):
                kf = vr(KF+(t*12+ks)*4, 4) if ks < 12 else vr(MF+4*t, 4)
                d = vr(SA+4*t, 4)
                a(f'v_mfma_f32_16x16x32_bf16 {d}, {kf}, {vr(QF+4*(ks%4),4)}, {"0" if ks == 0 else d}')
            if ks + 3 < 13: qrd(ks + 3)
            if ks % 2 == 1 or opt('vfast', 0): fill()
        for i in range(8): a(f'v_mul_f32 v{SA+i}, v{SA+i}, v{RD+i}')
        a(f'v_max3_f32 v{M_}, v{SA}, v{SA+1}, v{SA+2}\nv_max3_f32 v{T_}, v{SA+3}, v{SA+4}, v{SA+5}\nv_max3_f32 v{M_}, v{M_}, v{SA+6}, v{SA+7}\nv_max_f32 v{M_}, v{M_}, v{T_}')
        for sw in ('v_permlane16_swap_b32', 'v_permlane32_swap_b32'):
            a(f'v_mov_b32 v{T_}, v{M_}'); fill(); a(f'{sw} v{M_}, v{T_}\nv_max_f32 v{M_}, v{M_}, v{T_}')
        a(f's_mov_b64 exec, 0xffff\nds_write_b32 v{vML}, v{M_}\ns_mov_b64 exec, -1')
        fill()
        a('s_waitcnt lgkmcnt(0)'); a.lg = []
        a('s_barrier')
        a(f'ds_read_b128 {vr(QF,4)}, v{vMLr}\nds_read_b128 {vr(QF+4,4)}, v{vMLr} offset:16', tag='mx')
        fill(); fill()
        a.wait(lg='mx')
        a(f'v_max3_f32 v{M_}, v{QF}, v{QF+1}, v{QF+2}\nv_max3_f32 v{T_}, v{QF+3}, v{QF+4}, v{QF+5}\nv_max3_f32 v{M_}, v{M_}, v{QF+6}, v{QF+7}\nv_max_f32 v{M_}, v{M_}, v{T_}')
        for i in range(8): a(f'v_sub_f32 v{SA+i}, v{SA+i}, v{M_}')
        for i in range(8): a(f'v_exp_f32 v{SA+i}, v{SA+i}')
        for i in range(4): a(f'v_cvt_pk_bf16_f32 v{QF+i}, v{SA+2*i}, v{SA+2*i+1}')
        a(f'ds_write_b128 v{vP}, {vr(QF,4)}')
        for w_ in (4, 2, 1):
            for i in range(w_): a(f'v_add_f32 v{SA+i}, v{SA+i}, v{SA+i+w_}')
        for sw in ('v_permlane16_swap_b32', 'v_permlane32_swap_b32'):
            a(f'v_mov_b32 v{T_}, v{SA}'); fill(); a(f'{sw} v{SA}, v{T_}\nv_add_f32 v{SA}, v{SA}, v{T_}')
        a(f's_mov_b64 exec, 0xffff\nds_write_b32 v{vML}, v{SA} offset:512\ns_mov_b64 exec, -1')
        a('s_waitcnt lgkmcnt(0)'); a.lg = []
        a('s_barrier')
    a.label('P2_c'); a.vm = []; a.lg = []
    stamp(a, 'p2c')
    common(0)
    WF, ACC, PK = 32, 76, 100
    a(f'''v_lshlrev_b32 v7, 4, v3
    v_lshl_add_u32 v{vA}, v4, 8, v7
    v_lshl_add_u32 v{vA}, v5, 3, v{vA}
    v_mul_u32_u24 v{vB}, 13312, v5
    v_lshl_add_u32 v{vB}, v3, 2, v{vB}
    s_lshl_b32 {sOwn}, {sI}, 4
    s_lshl_b32 s34, {sW}, 2
    s_add_u32 {sOwn}, {sOwn}, s34
    s_mul_i32 {sVP}, {sT}, 196608
    s_mul_i32 s35, {sQT}, 12288
    s_add_u32 {sRs}, {sVP}, s35
    s_mul_i32 s34, {sCH}, 6144
    s_add_u32 {sRs}, {sRs}, s34
    s_mul_i32 s34, {sW}, 1536
    s_add_u32 {sRs}, {sRs}, s34
    s_add_u32 {sRs}, {sRs}, {WS_X1}
    s_add_u32 {sOut}, {sVP}, s35
    s_mul_i32 s35, {sCH}, 384
    s_add_u32 {sOut}, {sOut}, s35
    s_mul_i32 s35, {sW}, 96
    s_add_u32 {sOut}, {sOut}, s35
    s_mul_i32 s34, {sE8}, 24576
    s_add_u32 s34, s34, {sVP}
    s_mul_i32 s35, {sS}, 3072
    s_add_u32 s34, s34, s35
    s_add_u32 s67, s34, {WS_VP - 8*3072}
    s_mul_i32 s35, {sCH}, 12288
    s_add_u32 {sVP}, {sVP}, s35
    s_mul_i32 s35, {sW}, 3072
    s_add_u32 {sVP}, {sVP}, s35
    s_add_u32 {sVP}, {sVP}, {WS_VP}
    s_lshl_b32 s34, {sT}, 4
    s_lshl_b32 s35, {sRH}, 3
    s_add_u32 s34, s34, s35
    s_lshl_b32 s35, {sW}, 1
    s_add_u32 s34, s34, s35
    s_mul_i32 s34, s34, 13312
    s_add_u32 s34, s34, {WS_Q}
    s_mul_i32 s35, {sS}, 1536
    s_add_u32 s68, s34, s35
    s_lshl_b32 s35, {sS}, 6
    s_add_u32 s34, s34, s35
    s_add_u32 {sSt2}, s34, 12288''')
    a(f'v_add_u32 v{vWa}, {LW34}, v{vL16}\nv_lshrrev_b32 v6, 8, v{vW12}\nv_mul_u32_u24 v6, 768, v6\nv_lshl_add_u32 v6, v3, 2, v6\nv_add_u32 v{vWb}, {LW34 + 36864}, v6')
    stamp(a, 'p2s')
    a('s_barrier')
    stamp(a, 'gsync')
    AHEAD = opt('ahead', 6)
    STP = opt('stp', 7)
    for ks in range(AHEAD):
        if ks == STP: stats_load()
        kld(0, ks); kld(1, ks)
    def wrd(ks, u):
        d = WF + (ks%2)*12 + 4*u
        if ks < 12: a(f'ds_read_b128 {vr(d,4)}, v{vWa} offset:{(ks*3+u)*1024}', tag=f'f{ks}_{u}')
        else: a(f'ds_read2_b32 {vr(d,2)}, v{vWb} offset0:{16*u} offset1:{16*u+48}\nds_read2_b32 {vr(d+2,2)}, v{vWb} offset0:{16*u+96} offset1:{16*u+144}', tag=f'f{ks}_{u}')
    late = stats_math(True, True)
    late += [f'v_mul_f32 v{RT}, {fbits(SCALE2)}, v{RT}', f'v_mul_f32 v{RT+1}, {fbits(SCALE2)}, v{RT+1}']
    stamp(a, 'mm2')
    a(f's_cmp_ge_u32 {sS}, 8\ns_cbranch_scc1 P2_v')
    for var in range(2):
        if var == 0: vmsave, lgsave = list(a.vm), list(a.lg)
        else: a.label('P2_v'); a.vm, a.lg = list(vmsave), list(lgsave)
        lq = list(late)
        for u in range(3): wrd(0, u)
        for ks in range(13):
            if ks == 12: run(lq, 1000)
            if ks + AHEAD < 12:
                if ks + AHEAD == STP: stats_load()
                kld(0, ks + AHEAD); kld(1, ks + AHEAD)
            if ks + AHEAD == 12 - opt('bke', 1) and opt('bk', 1): a('s_barrier')
            if ks < 12: a.wait(vm=f'k1_{ks}')
            if ks in (0, 4, 8, 11): stamp(a, f'k{ks}')
            for u in range(3):
                a.wait(lg=f'f{ks}_{u}')
                wf = vr(WF + (ks%2)*12 + 4*u, 4)
                for t in range(2):
                    xf = vr(KF+(t*12+ks)*4, 4) if ks < 12 else vr(MF+4*t, 4)
                    d = vr(ACC + (t*3+u)*4, 4)
                    A, B = (wf, xf) if var == 0 else (xf, wf)
                    a(f'v_mfma_f32_16x16x32_bf16 {d}, {A}, {B}, {"0" if ks == 0 else d}')
                if ks < 12: wrd(ks + 1, u)
                if ks >= max(1, STP - AHEAD + 3): run(lq, 2 if STP < AHEAD else 3)
        stamp(a, 'mm2end')
        if var == 0:
            AQ = 112
            a(f'v_mov_b32 v{AQ}, 0\nv_mov_b32 v{AQ+1}, 0\ns_mov_b32 s36, 0x3f803f80\ns_mov_b32 {sSt1}, s68')
            for t in range(2):
                for u in range(3):
                    b = ACC + (t*3+u)*4
                    for d in range(2): a(f'v_pk_mul_f32 {vr(b+2*d,2)}, {vr(b+2*d,2)}, {vr(RT,2)} op_sel:[0,{t}] op_sel_hi:[1,{t}]')
                    for d in range(2): a(f'v_cvt_pk_bf16_f32 v{PK+(t*3+u)*2+d}, v{b+2*d}, v{b+2*d+1}')
            def pub0(s1, s2, fl, first=False):
                for t in range(2):
                    if t: a(f's_add_u32 {sT1}, {s1}, 13312')
                    for u in range(3):
                        a(f'buffer_store_dwordx2 {vr(PK+(t*3+u)*2,2)}, v{vA}, {SWS}, {sT1 if t else s1} offen offset:{u*512} {fl}')
                if first:
                    for i in range(6):
                        for t in range(2): a(f'v_dot2c_f32_bf16 v{AQ+t}, s36, v{PK+t*6+i}')
                    for sw in ('v_permlane16_swap_b32', 'v_permlane32_swap_b32'):
                        a(f'v_mov_b32 v{AQ+2}, v{AQ}\nv_mov_b32 v{AQ+3}, v{AQ+1}\n{sw} v{AQ}, v{AQ+2}\n{sw} v{AQ+1}, v{AQ+3}\nv_add_f32 v{AQ}, v{AQ}, v{AQ+2}\nv_add_f32 v{AQ+1}, v{AQ+1}, v{AQ+3}')
                    a(f'''v_cmp_eq_u32 vcc, 1, v5
                    v_cndmask_b32 v{AQ}, v{AQ}, v{AQ+1}, vcc
                    v_cvt_pk_bf16_f32 v{AQ+1}, v{AQ}, v{AQ}
                    v_lshlrev_b32 v{AQ+1}, 16, v{AQ+1}
                    v_sub_f32 v{AQ+1}, v{AQ}, v{AQ+1}
                    v_cvt_pk_bf16_f32 v{AQ}, v{AQ}, v{AQ+1}''')
                a(f's_mov_b32 exec_hi, 0\nbuffer_store_dword v{AQ}, v{vB}, {SWS}, {s2} offen {fl}\ns_mov_b32 exec_hi, -1')
            pub0(sSt1, sSt2, WT2, True)
            a('s_branch P2_j')
        else:
            a(f's_mov_b32 {sSt1}, s67')
            for u in range(3):
                for t in range(2):
                    b = ACC + (t*3+u)*4
                    for d in range(2): a(f'v_pk_mul_f32 {vr(b+2*d,2)}, {vr(b+2*d,2)}, {vr(RD+4*t+2*d,2)}')
                    for d in range(2): a(f'v_cvt_pk_bf16_f32 v{PK+u*4+t*2+d}, v{b+2*d}, v{b+2*d+1}')
            def pub1(s1, fl):
                for u in range(3): a(f'buffer_store_dwordx4 {vr(PK+4*u,4)}, v{vL16}, {SWS}, {s1} offen offset:{u*1024} {fl}')
            pub1(sSt1, WT2)
    a.label('P2_j')
    attn_addr(0)
    vOW, vOR, vOG = 116, 117, 119
    a.wait_all()
    flag(a, sOwn, sF1, sFast, 6, '')
    stamp(a, 'flag2')
    RS = 48
    for u in range(3): a(f'buffer_load_dwordx2 {vr(RS+2*u,2)}, v{vA}, {SWS}, {sRs} offen offset:{u*512} sc1', tag='rs')
    def repub():
        L1, L2 = a.newlabel('rp'), a.newlabel('rp')
        a(f's_add_u32 s36, {sSt1}, {SLOW}\ns_add_u32 s37, {sSt2}, {SLOW}\ns_cmp_ge_u32 {sS}, 8\ns_cbranch_scc1 {L1}')
        pub0('s36', 's37', 'sc0 sc1'); a(f's_branch {L2}')
        a.label(L1); pub1('s36', 'sc0 sc1'); a.label(L2)
    lsync(a, 32, True, sF1, sF2, sOwn, (lambda: None) if WT2 else repub, 32, 0 if WT2 else SLOW)
    stamp(a, 'sync2')
    a(f's_add_u32 {sVP}, {sVP}, {sDelta}\ns_add_u32 {sQ}, {sQ}, {sDelta}\ns_add_u32 {sT1}, {sQ}, {sM1K}')
    for i in range(3):
        a(f's_add_u32 {sT0}, {sT1}, {i*4096}\ns_add_u32 m0, {sM1K}, {LQ + i*4096}\nbuffer_load_dwordx4 v{vL16}, {SWS}, {sT0} offen sc1 lds', tag='q')
    a(f's_add_u32 {sT0}, {sQ}, 12288\ns_mov_b32 m0, {LQ + 12288}\nbuffer_load_dwordx4 v{vL16}, {SWS}, {sT0} offen sc1 lds', tag='q')
    vq = []
    for k8 in range(8):
        for u in range(3):
            vq.append(((f's_add_u32 {sVP}, {sVP}, 24576\n' if k8 and u == 0 else '') + f'buffer_load_dwordx4 {vr(VF+(k8*3+u)*4,4)}, v{vL16}, {SWS}, {sVP} offen offset:{u*1024} sc1', f'vp{k8}'))
    def fill():
        if vq: x = vq.pop(0); a(x[0], tag=x[1])
    for _ in range(opt('nv0', 5)): fill()
    a.wait(vm='q')
    a('s_barrier')
    stamp(a, 'q_in')
    scores(fill)
    stamp(a, 'p_done')
    while vq: fill()
    PF, PA, RF, ML = 160, 32, 200, 212
    for k8 in range(8): a(f'ds_read_b128 {vr(PF+4*k8,4)}, v{vL16} offset:{LP + k8*1024}', tag=f'p{k8}')
    a(f'ds_read_b128 {vr(ML,4)}, v{vMLr} offset:512\nds_read_b128 {vr(ML+4,4)}, v{vMLr} offset:528', tag='ml')
    vOW, vOR, vOG = 220, 221, 223
    fx = [f's_lshl_b32 s35, {sW}, 11', f's_add_u32 s35, s35, {LO}', f'v_mul_u32_u24 v{vOW}, 112, v3', f'v_lshl_add_u32 v{vOW}, v2, 3, v{vOW}', f'v_add_u32 v{vOW}, s35, v{vOW}']
    for h in range(2):
        fx += [f'v_add_u32 v6, {64*h}, v1', 'v_mul_u32_u24 v7, 43, v6', 'v_lshrrev_b32 v7, 8, v7', 'v_mul_u32_u24 v4, 6, v7', 'v_sub_u32 v4, v6, v4', 'v_lshlrev_b32 v4, 4, v4',
               'v_mul_u32_u24 v6, 112, v7', f'v_add3_u32 v{vOR+h}, v6, v4, s35', 'v_mul_u32_u24 v6, 768, v7', f'v_add_u32 v{vOG+h}, v6, v4']
    fx += [('l', 'ml')] + [f'v_add_f32 v{ML+i}, v{ML+i}, v{ML+4+i}' for i in range(4)] + [f'v_add_f32 v{ML}, v{ML}, v{ML+1}', f'v_add_f32 v{ML+2}, v{ML+2}, v{ML+3}', f'v_add_f32 v{ML}, v{ML}, v{ML+2}', f'v_rcp_f32 v{ML}, v{ML}', ]
    fx = ['s_mov_b32 s36, 0xffff0000'] + [x for u in range(3) for d in range(2) for x in (f'v_lshlrev_b32 v{RF+4*u+2*d}, 16, v{RS+2*u+d}', f'v_and_b32 v{RF+4*u+2*d+1}, s36, v{RS+2*u+d}')] + fx
    def fxd(n):
        while n > 0 and fx:
            x = fx.pop(0)
            if isinstance(x, tuple): a.wait(lg=x[1])
            else: a(x); n -= 1
    for k8 in range(8):
        a.wait(vm=f'vp{k8}', lg=f'p{k8}')
        for u in range(3):
            d = vr(PA + 4*u, 4)
            a(f'v_mfma_f32_16x16x32_bf16 {d}, {vr(VF+(k8*3+u)*4,4)}, {vr(PF+4*k8,4)}, {"0" if k8 == 0 else d}')
            fxd(3)
    fxd(1000)
    stamp(a, 'pv_done')
    OP = 192
    for u in range(3):
        for d in range(2): a(f'v_pk_fma_f32 {vr(RF+4*u+2*d,2)}, {vr(PA+4*u+2*d,2)}, {vr(ML,2)}, {vr(RF+4*u+2*d,2)} op_sel_hi:[1,0,1]')
        for d in range(2): a(f'v_cvt_pk_bf16_f32 v{OP+2*u+d}, v{RF+4*u+2*d}, v{RF+4*u+2*d+1}')
        a(f'ds_write_b64 v{vOW}, {vr(OP+2*u,2)} offset:{u*32}')
    a(f'ds_read_b128 {vr(56,4)}, v{vOR}', tag='o0')
    a(f's_mov_b32 exec_hi, 0\nds_read_b128 {vr(60,4)}, v{vOR+1}\ns_mov_b32 exec_hi, -1', tag='o1')
    a.wait(lg='o0')
    a(f'buffer_store_dwordx4 {vr(56,4)}, v{vOG}, {SOUT}, {sOut} offen {OWT}')
    a.wait(lg='o1')
    a(f's_mov_b32 exec_hi, 0\nbuffer_store_dwordx4 {vr(60,4)}, v{vOG+1}, {SOUT}, {sOut} offen {OWT}\ns_mov_b32 exec_hi, -1')
    if PROFILE: a.wait_all()
    stamp(a, 'end')
    stamp_flush(a)
    a('s_endpgm')
    a.label('P2_l'); a.vm = []; a.lg = []
    stamp(a, 'Lp2')
    common(1)
    stamp(a, 'Lcm')
    if opt('tp', 9) == 1: touch2(a)
    a(f'''v_lshlrev_b32 v7, 7, v1
    s_mul_i32 s67, {sW}, {48*128}
    s_add_u32 s67, s67, {GX}''')
    for _ in range(opt('wdel', 0)):
        a(f's_mov_b32 exec_hi, 0xffff\nbuffer_load_dword v33, v7, {SWS}, s67 offen sc1\ns_mov_b32 exec_hi, -1')
        a.wait_all(lg=False)
    if not opt('wearly', 0): wcopy(a)
    gpoll(a, 48, 7, 's67', 33)
    stamp(a, 'Lxf')
    a.label('P2_lg')
    a(f's_mul_i32 s67, {sT}, 196608\ns_mul_i32 s68, {sI}, 6144\ns_add_u32 s67, s67, s68\ns_add_u32 s67, s67, {WS_X1}\ns_mul_i32 s68, {sW}, 1536\ns_add_u32 s67, s67, s68')
    a('s_barrier')
    if opt('xpf', 0):
        a(f'buffer_load_dwordx4 v[32:35], v{vL16}, {SWS}, s67 offen sc1\ns_mov_b32 exec_hi, 0\nbuffer_load_dwordx4 v[36:39], v{vL16}, {SWS}, s67 offen offset:1024 sc1\ns_mov_b32 exec_hi, -1')
    L = a.newlabel('be')
    a(f's_or_b32 s34, {sW}, s2\ns_cmp_lg_u32 s34, 0\ns_cbranch_scc1 {L}')
    a.cond = True; a(f's_mov_b32 s34, {WE}'); flag(a, '0', 's34', sTag, 40, 'sc0 sc1'); a.vm.pop(); a.cond = False
    a.label(L)
    if opt('bk', 1): a('s_barrier')
    stats_load()
    KA, KB = opt('ka', 5), opt('kb', 5)
    for ks in range(12):
        if ks == KA: stats_math(False); attn_addr(1)
        if ks == 0 and opt('tp', 9) == 2: touch2(a)
        if ks in (KA, KB): a.wait_all(lg=False)
        kld(0, ks); kld(1, ks)
    stamp(a, 'Lkiss')
    a.wait_all()
    stamp(a, 'Lk')
    a('s_barrier')
    scores(lambda: None)
    stamp_flush(a, 'L')
```

```python
import sys, math, struct
sys.path.insert(0, 'gen')
from asm import Asm
def opt(name, default):
    for x in sys.argv:
        if x.startswith(f'--{name}='): return int(x.split('=')[1])
    return default
HP = [x[5:] for x in sys.argv if x.startswith('--hp=')]
PROFILE = '--prof' in sys.argv or bool(HP)
SKIP = []
for x in sys.argv:
    if x.startswith('--skip='): SKIP = x[7:].split(',')
WS_W2 = 0x000000
WS_S  = 0x180000
WS_X1 = 0x240000
WS_W  = 0x3E0000
WS_Q  = 0x480000
WS_VP = 0x620000
WS_ST = 0xF00000
FS1, FS2 = 0x7A0000, 0x7A2000
FC1, FC2 = 0x7A4000, 0x7A5000
GW2, GW, GX, WE = 0x7A8000, 0x7AA000, 0x7AC000, 0x7B4000
WS_PROF = 0x7C0000
SLOW = 0x800000
WS_SIZE = 0x1000000
LIM_FAST = opt('lim', 24)
LIM_SLOW = 1 << 20
SCALE2 = 384 ** -0.5 * math.log2(math.e)
def fbits(x): return '0x%08x' % struct.unpack('<I', struct.pack('<f', x))[0]
def vr(b, n): return f'v[{b}:{b+n-1}]' if n > 1 else f'v{b}'
SX, SWQ, SWO, SWS, SOUT = 's[4:7]', 's[8:11]', 's[12:15]', 's[16:19]', 's[24:27]'
WT = 'sc0 sc1' if opt('wt', 1) == 2 else 'sc1'
def srd(a, base, ptr, size):
    a(f's_mov_b32 s{base}, s{ptr}\ns_mov_b32 s{base+1}, s{ptr+1}\ns_mov_b32 s{base+2}, {size}\ns_mov_b32 s{base+3}, 0x20000')
STAMP_REGS = [70, 72, 74, 76, 78, 80, 82, 84, 86, 88, 90, 92, 94, 96, 98, 100]
class St:
    names = {'C': [], 'L': []}
def stamp(a, name):
    if not PROFILE or name in SKIP or (HP and name not in ('start', HP[0])): return
    lst = St.names['L' if name.startswith('L') else 'C']
    if name not in lst: lst.append(name)
    k = lst.index(name)
    a(f's_memrealtime s[{STAMP_REGS[k]}:{STAMP_REGS[k]+1}]')
def hp_end(a, role):
    name = HP[0]
    lst = St.names[role]
    src = f's{STAMP_REGS[lst.index(name)]}' if name in lst else 's70'
    L1, L2 = a.newlabel('hp'), a.newlabel('hp')
    a(f's_waitcnt vmcnt(0) lgkmcnt(0)\nv_mov_b32 v2, {WS_PROF + 0x30000}')
    a.label(L1)
    a(f'''buffer_load_dwordx2 v[4:5], v2, {SWS}, 0 offen sc0 sc1
    s_waitcnt vmcnt(0)
    v_readfirstlane_b32 s34, v4
    v_readfirstlane_b32 s35, v5
    s_cmp_lg_u32 s35, {sTag}
    s_cbranch_scc1 {L1}
    s_sub_u32 s35, {src}, s34
    s_max_i32 s35, s35, 0
    s_mul_i32 s35, s35, 4
    s_add_u32 s35, s35, 4000''')
    a.label(L2)
    a(f'''s_memrealtime s[36:37]
    s_waitcnt lgkmcnt(0)
    s_sub_u32 s36, s36, s34
    s_cmp_lt_i32 s36, s35
    s_cbranch_scc1 {L2}''')
def hp_t0(a):
    if not HP: return
    L = a.newlabel('hq')
    a(f's_or_b32 s34, s2, {sW}\ns_or_b32 s34, s34, {sRole}\ns_cmp_lg_u32 s34, 0\ns_cbranch_scc1 {L}')
    a(f'v_mov_b32 v2, {WS_PROF + 0x30000}\nv_mov_b32 v4, s70\nv_mov_b32 v5, {sTag}\nbuffer_store_dwordx2 v[4:5], v2, {SWS}, 0 offen sc0 sc1')
    a.vm.pop()
    a.label(L)
def stamp_flush(a, role='C'):
    if HP: hp_end(a, role); return
    if not PROFILE: return
    a('s_waitcnt lgkmcnt(0)')
    for k in range(16): a(f'v_mov_b32 v{100+k}, s{STAMP_REGS[k]}')
    a(f'''v_lshrrev_b32 v8, 6, v0
    s_lshl_b32 s34, s2, 3
    v_add_u32 v8, s34, v8
    v_lshlrev_b32 v8, 6, v8
    v_add_u32 v8, {WS_PROF}, v8''')
    for k in range(4): a(f'buffer_store_dwordx4 v[{100+4*k}:{103+4*k}], v8, {SWS}, 0 offen offset:{16*k}')

sXCD, sW, sI, sRole = 's40', 's41', 's42', 's43'
sTag, sFast, sDelta = 's44', 's45', 's46'
sM1K = 's47'
TAIL = []

def lanes(a, n):
    a(f's_mov_b32 exec_lo, {hex((1 << min(n, 32)) - 1)}\ns_mov_b32 exec_hi, {hex((1 << max(n-32, 0)) - 1)}')
def gpoll(a, n, vA, sBase, vT):
    Lf, Lr, Ld = a.newlabel('gp'), a.newlabel('gr'), a.newlabel('gd')
    lanes(a, n)
    a(f's_mov_b32 s35, {LIM_SLOW}')
    a.label(Lf)
    a(f'buffer_load_dword v{vT}, v{vA}, {SWS}, {sBase} offen sc1')
    a.wait_all(lg=False)
    a(f'v_cmp_ne_u32 vcc, {sTag}, v{vT}\ns_cbranch_vccnz {Lr}')
    a.label(Ld)
    a('s_mov_b64 exec, -1')
    def tail():
        a.label(Lr)
        if opt('gsl', 0): a(f's_sleep {opt("gsl", 0)}')
        a(f's_sub_u32 s35, s35, 1\ns_cmp_lg_u32 s35, 0\ns_cbranch_scc1 {Lf}\ns_branch {Ld}')
    TAIL.append(tail)
def lsync(a, n, wide, sF1, sF2, sOwn, republish, vT, delta=SLOW):
    Lf, Lr, Ld, Ls = a.newlabel('lp'), a.newlabel('lr'), a.newlabel('ld'), a.newlabel('ls')
    vA, vD, vE = vT, vT + 2, vT + 6
    w = 4 if wide else 1
    ld = 'buffer_load_dwordx4' if wide else 'buffer_load_dword'
    def cmp(v, s):
        if not wide: a(f'v_cmp_ne_u32 vcc, {s}, v{v}'); return
        for k in range(4): a(f'v_xor_b32 v{v+k}, {s}, v{v+k}')
        a(f'v_or_b32 v{v}, v{v}, v{v+1}\nv_or3_b32 v{v}, v{v}, v{v+2}, v{v+3}\nv_cmp_ne_u32 vcc, 0, v{v}')
    lanes(a, n)
    a(f'v_lshlrev_b32 v{vA}, {4 if wide else 2}, v1\ns_mov_b32 {sDelta}, 0\ns_mov_b32 s35, {LIM_FAST}')
    a.label(Lf)
    a(f'{ld} {vr(vD, w)}, v{vA}, {SWS}, {sF1} offen sc1')
    a.wait_all(lg=False)
    cmp(vD, sFast)
    a(f's_cbranch_vccnz {Lr}')
    a.label(Ld)
    a('s_mov_b64 exec, -1')
    def tail():
        a.label(Lr)
        a(f's_sub_u32 s35, s35, 1\ns_cmp_lg_u32 s35, 0\ns_cbranch_scc1 {Lf}')
        if republish:
            a('s_mov_b64 exec, -1')
            republish()
            a.wait_all(lg=False)
            a(f'''s_mov_b64 exec, 1
            v_mov_b32 v{vD}, {sOwn}
            v_mov_b32 v{vD+1}, {sTag}
            buffer_store_dword v{vD+1}, v{vD}, {SWS}, {sF2} offen sc0 sc1''')
            lanes(a, n)
        a(f's_mov_b32 s35, {LIM_SLOW}')
        a.label(Ls)
        a(f'{ld} {vr(vD, w)}, v{vA}, {SWS}, {sF1} offen sc1\n{ld} {vr(vE, w)}, v{vA}, {SWS}, {sF2} offen sc0 sc1')
        a.wait_all(lg=False)
        cmp(vD, sFast)
        a(f's_cbranch_vccz {Ld}')
        cmp(vE, sTag)
        a(f's_mov_b32 {sDelta}, {delta}\ns_cbranch_vccz {Ld}\ns_mov_b32 {sDelta}, 0\ns_sub_u32 s35, s35, 1\ns_cmp_lg_u32 s35, 0\ns_cbranch_scc1 {Ls}\ns_branch {Ld}')
    TAIL.append(tail)
def flag(a, sOff, sBase, sVal, vT, fl):
    a(f'''s_mov_b64 exec, 1
    v_mov_b32 v{vT}, {sOff}
    v_mov_b32 v{vT+1}, {sVal}
    buffer_store_dword v{vT+1}, v{vT}, {SWS}, {sBase} offen {fl}
    s_mov_b64 exec, -1''')
def gflag(a, sOff, sBase, vT):
    a(f'''s_mov_b64 exec, 15
    v_lshl_add_u32 v{vT}, v1, 4, {sOff}
    v_mov_b32 v{vT+2}, {sTag}
    v_mov_b32 v{vT+3}, {sTag}
    v_mov_b32 v{vT+4}, {sTag}
    v_mov_b32 v{vT+5}, {sTag}
    buffer_store_dwordx4 {vr(vT+2,4)}, v{vT}, {SWS}, {sBase} offen sc0 sc1
    s_mov_b64 exec, -1''')
def flag_w0(a, sOff, sBase, vT):
    L = a.newlabel('f0')
    a(f's_cmp_lg_u32 {sW}, 0\ns_cbranch_scc1 {L}')
    a.cond = True; gflag(a, sOff, sBase, vT); a.vm.pop(); a.cond = False
    a.label(L)
def tag_ready(a):
    a(f'''s_mul_i32 {sTag}, {sTag}, 0x9e3779b1
    s_add_u32 {sTag}, {sTag}, 0x7f4a7c15
    s_add_u32 {sFast}, {sFast}, {sTag}''')

LW34 = 102400
LSX = 147456
def wpoll(a):
    a(f'v_lshlrev_b32 v7, 7, v1\ns_mov_b32 s67, {GW}')
    gpoll(a, 64, 7, 's67', 33)
    stamp(a, 'Lwf')
def wcopy(a):
    a(f's_and_b32 s68, {sI}, 15\ns_mul_i32 s68, s68, 39936\ns_mul_i32 s34, {sW}, 10240\ns_add_u32 s68, s68, s34\ns_add_u32 s68, s68, {WS_W}\ns_add_u32 s34, s34, {LW34}')
    for i in range(10):
        if i % 4 == 0: a(f's_add_u32 m0, s34, {i*1024}' + ('\ns_add_u32 s68, s68, 4096' if i else ''))
        a(f'buffer_load_dwordx4 v10, {SWS}, s68 offen offset:{(i&3)*1024} sc1 lds')
def touch2(a):
    Lt = a.newlabel('tc'); Lu = a.newlabel('tc')
    a(f"""s_and_b32 s36, {sI}, 15
    s_lshr_b32 s37, {sI}, 4
    s_cmp_ge_u32 s36, 8
    s_cbranch_scc1 {Lt}
    s_lshl_b32 s34, {sXCD}, 4
    s_lshl_b32 s35, s37, 3
    s_add_u32 s34, s34, s35
    s_lshl_b32 s35, {sW}, 1
    s_add_u32 s34, s34, s35
    s_mul_i32 s34, s34, 13312
    s_mul_i32 s35, s36, 1536
    s_add_u32 s34, s34, s35
    s_add_u32 s34, s34, {WS_Q}
    s_add_u32 s35, s34, 13312""")
    for sb in ('s34', 's35'): a(f'buffer_load_dwordx4 v[64:67], v10, {SWS}, {sb} offen\ns_mov_b32 exec_hi, 0\nbuffer_load_dwordx4 v[64:67], v10, {SWS}, {sb} offen offset:1024\ns_mov_b32 exec_hi, -1')
    a(f's_branch {Lu}'); a.label(Lt)
    a(f"""s_lshl_b32 s34, {sW}, 1
    s_add_u32 s34, s34, s37
    s_lshl_b32 s35, {sXCD}, 3
    s_add_u32 s34, s34, s35
    s_mul_i32 s34, s34, 24576
    s_mul_i32 s35, s36, 3072
    s_add_u32 s34, s34, s35
    s_add_u32 s34, s34, {WS_VP - 8*3072}""")
    for u in range(3): a(f'buffer_load_dwordx4 v[64:67], v10, {SWS}, s34 offen offset:{u*1024}')
    a.label(Lu)
    a(f"""s_lshr_b32 s34, {sI}, 1
    s_lshl_b32 s35, {sXCD}, 4
    s_add_u32 s34, s34, s35
    s_mul_i32 s34, s34, 13312
    s_add_u32 s34, s34, {WS_Q + 12288}
    s_lshl_b32 s35, {sW}, 8
    v_lshl_add_u32 v68, v1, 2, s35
    buffer_load_dword v64, v68, {SWS}, s34 offen
    s_lshl_b32 s34, {sXCD}, 9
    s_add_u32 s34, s34, {FC1}
    v_lshlrev_b32 v68, 3, v1
    buffer_load_dword v64, v68, {SWS}, s34 offen""")
    a.vm = []

def build():
    a = Asm()
    def emit(x):
        if isinstance(x, tuple): a(x[0], tag=x[1])
        else: a(x)
    a(f'''s_cmp_ge_u32 s2, 256
    s_cbranch_scc1 K_end
    s_load_dwordx4 s[20:23], s[0:1], 0
    s_load_dwordx4 s[28:31], s[0:1], 16
    s_load_dwordx4 s[36:39], s[0:1], 32
    s_load_dwordx2 s[32:33], s[0:1], 56
    v_and_b32 v1, 63, v0
    v_lshrrev_b32 v2, 6, v0
    s_and_b32 {sXCD}, s2, 7
    v_readfirstlane_b32 {sW}, v2
    s_lshr_b32 {sI}, s2, 3''')
    stamp(a, 'start')
    if HP:
        St.names['L'].append('Lstart')
        a('s_waitcnt lgkmcnt(0)')
        for r in STAMP_REGS[1:]: a(f's_mov_b32 s{r}, s70')
    a('s_getpc_b64 s[48:49]')
    a.label('K_pc')
    a(f'''s_sub_u32 s48, s48, K_pc-{KNAME}
    s_subb_u32 s49, s49, 0
    s_lshl_b32 s34, {sI}, 3
    s_add_u32 s34, s34, {sW}
    s_and_b32 s34, s34, 31
    s_lshl_b32 s34, s34, 10
    v_lshl_add_u32 v9, v1, 4, s34
    global_load_dwordx4 v[252:255], v9, s[48:49]
    s_lshr_b32 {sRole}, {sW}, 2
    s_and_b32 {sW}, {sW}, 3
    s_lshl_b32 {sM1K}, {sW}, 10
    s_getreg_b32 {sFast}, hwreg(HW_REG_XCC_ID)
    s_and_b32 {sFast}, {sFast}, 15
    s_add_u32 {sFast}, {sFast}, 1
    v_lshrrev_b32 v2, 3, v1
    v_and_b32 v3, 7, v1
    v_lshlrev_b32 v10, 4, v1
    s_cmp_lt_u32 {sI}, 8
    s_cbranch_scc1 K_pre''')
    T8, G8, vL16 = 2, 3, 10
    sG, sJ, sP, sHF, sX, sM = 's50', 's51', 's52', 's53', 's54', 's55'
    sR = ['s56', 's57', 's58', 's59', 's60', 's61']
    ROT = opt('rot', 7)
    a(f'''s_sub_u32 {sJ}, {sI}, 8
    s_mul_i32 s34, {sJ}, 43
    s_lshr_b32 s34, s34, 8
    s_mul_i32 s35, s34, 6
    s_sub_u32 {sJ}, {sJ}, s35
    s_lshl_b32 {sG}, {sXCD}, 2
    s_add_u32 {sG}, {sG}, s34
    s_lshr_b32 {sP}, {sW}, 1
    s_and_b32 {sHF}, {sW}, 1
    s_lshl_b32 {sM}, {sW}, 11''')
    def rot_r(dst):
        if ROT == 4: a(f's_mul_i32 {dst}, {sXCD}, 3\ns_lshr_b32 {dst}, {dst}, 2')
        elif ROT == 5: a(f's_add_u32 {dst}, {sXCD}, 4\ns_and_b32 {dst}, {dst}, 7\ns_mul_i32 {dst}, {dst}, 3\ns_lshr_b32 {dst}, {dst}, 2')
        elif ROT == 6: a(f's_and_b32 {dst}, {sG}, 1\ns_mul_i32 {dst}, {dst}, 4\ns_add_u32 {dst}, {dst}, {sXCD}\ns_and_b32 {dst}, {dst}, 7\ns_mul_i32 {dst}, {dst}, 3\ns_lshr_b32 {dst}, {dst}, 2')
        elif ROT == 7: a(f's_mul_i32 {dst}, {sXCD}, 3\ns_lshr_b32 {dst}, {dst}, 2\ns_add_u32 {dst}, {dst}, {sJ}\ns_cmp_ge_u32 {dst}, 6\ns_cselect_b32 s34, 6, 0\ns_sub_u32 {dst}, {dst}, s34')
        elif ROT == 8: a(f's_and_b32 {dst}, {sG}, 3\ns_add_u32 {dst}, {dst}, {sXCD}\ns_add_u32 {dst}, {dst}, {sJ}\ns_mul_i32 s34, {dst}, 43\ns_lshr_b32 s34, s34, 8\ns_mul_i32 s34, s34, 6\ns_sub_u32 {dst}, {dst}, s34')
    if ROT: rot_r('s3')
    a(f's_cmp_lg_u32 {sRole}, 0\ns_cbranch_scc1 A_ld')
    XS = lambda c: c*8192
    WQ0 = 49152
    W2L = 49152
    vXF, vAW, vSst, vX1, vST, vRes, vBP, vBS, vW2, vW2b = 12, 16, 18, 19, 20, 21, 22, 23, 24, 25
    XF, WF, ACC, CS, MA, SEL, CA, CB = 160, 32, 64, 96, 104, 108, 112, 120
    sSst, sSld, sX1, sST, sFS1, sFS2, sOwn, sGX = 's56', 's57', 's58', 's59', 's60', 's61', 's62', 's63'
    a(f'''v_and_b32 v4, 31, v1
    v_lshrrev_b32 v5, 5, v1
    v_bfe_u32 v6, v1, 1, 3
    v_xor_b32 v6, v6, v5
    v_lshlrev_b32 v4, 7, v4
    v_lshl_add_u32 v4, v6, 4, v4
    s_lshl_b32 s35, {sP}, 12
    v_add_u32 v{vXF}, s35, v4
    v_xor_b32 v{vXF+1}, 32, v{vXF}
    v_xor_b32 v{vXF+2}, 64, v{vXF}
    v_xor_b32 v{vXF+3}, 96, v{vXF}
    v_bfe_u32 v6, v1, 2, 2
    v_lshl_add_u32 v4, v5, 3, v6
    v_lshlrev_b32 v4, 7, v4
    v_lshrrev_b32 v7, 1, v6
    v_xor_b32 v7, {sHF}, v7
    v_lshl_add_u32 v4, v7, 6, v4
    v_bfe_u32 v7, v1, 4, 1
    v_lshl_add_u32 v4, v7, 5, v4
    v_and_b32 v8, 1, v1
    v_lshl_add_u32 v4, v8, 4, v4
    v_bfe_u32 v8, v1, 1, 1
    v_lshl_add_u32 v4, v8, 3, v4
    v_add_u32 v{vAW}, {WQ0}, v4
    v_add_u32 v{vAW+1}, {WQ0 + 65536}, v4
    v_bfe_u32 v8, v1, 2, 1
    v_cmp_eq_u32 vcc, v8, v7
    v_mov_b32 v7, 0x3f803f80
    s_mov_b32 s34, {WE}
    s_waitcnt lgkmcnt(0)
    s_load_dword {sTag}, s[32:33], s34''')
    for k in range(4): a(f'v_cndmask_b32 v{SEL+k}, 0, v7, vcc')
    srd(a, 16, 32, WS_SIZE); srd(a, 24, 38, 1572864)
    a(f'''v_lshlrev_b32 v{vSst}, 9, v5
    v_lshl_add_u32 v{vSst}, v{G8}, 6, v{vSst}
    v_bfe_u32 v6, v1, 3, 2
    v_lshl_add_u32 v{vSst}, v6, 4, v{vSst}
    s_mul_i32 s34, {sG}, 24576
    s_lshl_b32 s35, {sP}, 10
    s_add_u32 s34, s34, s35
    s_add_u32 {sSld}, s34, {WS_S}
    s_lshl_b32 s35, {sJ}, 1
    s_add_u32 s35, s35, {sHF}
    s_lshl_b32 {sOwn}, s35, 2
    s_lshl_b32 s3{6}, s35, 11
    s_add_u32 {sSst}, {sSld}, s36
    s_lshl_b32 s34, {sG}, 1
    s_add_u32 s34, s34, {sP}
    s_lshl_b32 s34, s34, 7
    s_add_u32 {sFS1}, s34, {FS1}
    s_add_u32 {sFS2}, s34, {FS2}''')
    a(f'''v_bfe_u32 v6, v1, 2, 3
    v_and_b32 v7, 3, v1
    s_mov_b32 s34, 196608
    v_mul_lo_u32 v{vX1}, v6, s34
    v_lshl_add_u32 v{vX1}, v5, 8, v{vX1}
    v_lshl_add_u32 v{vX1}, v7, 4, v{vX1}
    v_mul_u32_u24 v{vST}, 49152, v6
    v_lshl_add_u32 v{vST}, v7, 4, v{vST}
    v_lshl_add_u32 v8, v7, 3, v6
    v_lshlrev_b32 v{vBP}, 2, v8
    v_lshlrev_b32 v{vBS}, 5, v7
    v_lshl_add_u32 v{vBS}, v5, 4, v{vBS}
    v_bfe_u32 v4, v8, 1, 3
    s_lshl_b32 s34, {sHF}, 2
    v_xor_b32 v4, s34, v4
    v_xor_b32 v4, v4, v5
    v_lshlrev_b32 v4, 4, v4
    v_lshl_add_u32 v4, v8, 7, v4''')
    if ROT: a(f's_add_u32 s34, {sJ}, 6\ns_sub_u32 s34, s34, s3\ns_cmp_ge_u32 s34, 6\ns_cselect_b32 s36, 6, 0\ns_sub_u32 s34, s34, s36\ns_lshl_b32 s34, s34, 13')
    else: a(f's_lshl_b32 s34, {sJ}, 13')
    a(f'''s_lshl_b32 s36, {sP}, 12
    s_add_u32 s34, s34, s36
    v_add_u32 v{vRes}, s34, v4
    s_lshl_b32 s34, {sHF}, 10
    s_add_u32 s34, s34, {W2L}
    v_add_u32 v{vW2}, s34, v{vL16}
    v_and_b32 v4, 31, v1
    v_lshlrev_b32 v4, 2, v4
    s_lshl_b32 s34, {sHF}, 7
    s_add_u32 s34, s34, {W2L + 49152}
    v_add_u32 v4, s34, v4
    v_lshl_add_u32 v{vW2b}, v5, 10, v4
    v_add_u32 v{vW2b+1}, 2048, v4
    s_lshr_b32 s34, {sG}, 1
    s_mul_i32 s34, s34, 12288
    s_lshl_b32 s36, s35, 10
    s_add_u32 s34, s34, s36
    s_and_b32 s36, {sG}, 1
    s_lshl_b32 s36, s36, 7
    s_add_u32 s34, s34, s36
    s_lshl_b32 s36, {sP}, 6
    s_add_u32 s34, s34, s36
    s_add_u32 {sX1}, s34, {WS_X1}
    s_lshl_b32 s34, s35, 12
    s_add_u32 s34, s34, s36
    s_lshl_b32 s36, {sG}, 7
    s_add_u32 s34, s34, s36
    s_add_u32 {sST}, s34, {WS_ST}
    s_mul_i32 s34, {sG}, 6
    s_add_u32 s34, s34, {sJ}
    s_lshl_b32 {sGX}, s34, 7
    s_mov_b32 s38, {fbits(-1/384)}
    s_mov_b32 s36, 0xffff0000
    s_mov_b32 s64, -1
    s_mov_b32 s65, 0
    s_mov_b32 s66, 0xff00ff00
    s_mov_b32 s67, 0xff00ff00
    s_mov_b32 s68, 0xffff0000
    s_mov_b32 s69, 0xffff0000''')
    for r in range(CA, CA + 8):
        if (r - CA) % 4: a(f'v_mov_b32 v{r}, 0')
    a('s_waitcnt lgkmcnt(0)')
    tag_ready(a)
    a('s_barrier')
    stamp(a, 'mm0')
    def rd(ks):
        c, k4 = ks >> 2, ks & 3
        a(f'ds_read_b128 {vr(XF+4*ks,4)}, v{vXF+k4} offset:{XS(c)}', tag=f'f{ks}')
        return [(c, k4, P) for P in range(2)]
    def trd(ks, P):
        c, k4 = ks >> 2, ks & 3
        off = c*16384 + P*8192 + k4*2048
        base = vAW + (off >> 16); off &= 0xffff
        d = WF + (ks % 3)*8 + P*4
        a(f'ds_read_b64_tr_b16 {vr(d,2)}, v{base} offset:{off}\nds_read_b64_tr_b16 {vr(d+2,2)}, v{base} offset:{off+512}', tag=f'f{ks}')
    def pre(ks, part):
        if part == 0: rd(ks); trd(ks, 0)
        else: trd(ks, 1)
    for ks in range(2): pre(ks, 0); pre(ks, 1)
    def m16(d, b, first): a(f'v_mfma_f32_16x16x32_bf16 {vr(d,4)}, {vr(SEL,4)}, {b}, {"0" if first else vr(d,4)}')
    for ks in range(24):
        bar = (ks & 3) == 3 and ks < 23
        if bar:
            if ks == 15: a.wait_all(lg=False)
            a('s_barrier')
            if ks in (7, 15, 19): stamp(a, f'c{(ks+1)>>2}')
            pre(ks + 1, 0); pre(ks + 1, 1)
        a.wait(lg=f'f{ks}')
        wf = lambda P: vr(WF + (ks % 3)*8 + P*4, 4)
        main = lambda P: a(f'v_mfma_f32_32x32x16_bf16 {vr(ACC+16*P,16)}, {wf(P)}, {vr(XF+4*ks,4)}, {"0" if ks == 0 else vr(ACC+16*P,16)}')
        nx = ks + 2 if (ks & 3) != 2 and ks + 2 < 24 else None
        if ks < 23:
            for P in range(2):
                main(P)
                if nx: pre(nx, P)
                m16(CS + 4*P, wf(P), ks == 0)
            m16(MA, vr(XF+4*ks, 4), ks == 0)
        else:
            m16(MA, vr(XF+4*ks, 4), False)
            for P in range(2): m16(CS + 4*P, wf(P), False)
            main(0)
            main(1)
            a(f'''v_mul_f32 v{MA}, s38, v{MA}
            v_cvt_pk_bf16_f32 v{CA}, v{CS}, v{CS}
            v_cvt_pk_bf16_f32 v{CA+4}, v{CS+4}, v{CS+4}
            v_cvt_pk_bf16_f32 v{MA+1}, v{MA}, v{MA}
            v_and_b32 v{CA}, s36, v{CA}
            v_and_b32 v{CA+4}, s36, v{CA+4}
            v_cndmask_b32 v{CB}, 0, v{MA+1}, s[64:65]
            v_sub_f32 v{CA}, v{CS}, v{CA}
            v_sub_f32 v{CA+4}, v{CS+4}, v{CA+4}
            v_mov_b32 v{CB+1}, v{CB}
            v_cvt_pk_bf16_f32 v{CA}, v{CS}, v{CA}
            v_cvt_pk_bf16_f32 v{CA+4}, v{CS+4}, v{CA+4}
            v_mov_b32 v{CB+2}, v{CB}
            v_mov_b32 v{CB+3}, v{CB}''')
            for P in range(2): a(f'v_mfma_f32_32x32x16_bf16 {vr(ACC+16*P,16)}, {vr(CA+4*P,4)}, {vr(CB,4)}, {vr(ACC+16*P,16)}')
    stamp(a, 'mmend')
    PQ, PK, SC, SS, SQ, CM = 32, 40, 64, 96, 100, 124
    a(f'v_mov_b32 v{SQ}, 0\nv_mov_b32 v{SQ+1}, 0')
    for k in range(4): a(f'v_mov_b32 v{CM+k}, v{MA+1}')
    for P, d in ((0, PQ), (1, PK)):
        for i in range(8): a(f'v_cvt_pk_bf16_f32 v{d+i}, v{ACC+16*P+2*i}, v{ACC+16*P+2*i+1}')
    a(f'v_mfma_f32_32x32x16_bf16 {vr(SC,16)}, {vr(PK,4)}, {vr(PQ,4)}, 0')
    a(f'v_mfma_f32_32x32x16_bf16 {vr(SC,16)}, {vr(PK+4,4)}, {vr(PQ+4,4)}, {vr(SC,16)}')
    RAW = 48
    a(f'v_xor_b32 v4, 32, v{vRes}\nds_read_b128 {vr(RAW,4)}, v{vRes}\nds_read_b128 {vr(RAW+4,4)}, v4', tag='raw')
    for e in range(4): a(f'v_cndmask_b32 v{SC+e}, v{SC+e}, v{SC+4+e}, s[66:67]\nv_cndmask_b32 v{SC+8+e}, v{SC+8+e}, v{SC+12+e}, s[66:67]')
    for e in range(4): a(f'v_cndmask_b32 v{SS+e}, v{SC+e}, v{SC+8+e}, s[68:69]')
    a(f'buffer_store_dwordx4 {vr(SS,4)}, v{vSst}, {SWS}, {sSst} offen {WT if opt("swt", 0) else ""}')
    stamp(a, 'stored')
    ND0 = opt('nd0', 72)
    for i in range(ND0): a(f'v_dot2c_f32_bf16 v{SQ+(i&1)}, v{XF+i}, v{XF+i}')
    a.wait_all(lg=False)
    flag(a, sOwn, sFS1, sFast, 4, '')
    stamp(a, 'flag')
    for i in range(ND0, 96): a(f'v_dot2c_f32_bf16 v{SQ+(i&1)}, v{XF+i}, v{XF+i}')
    RR, RES = 56, 80
    a(f'''s_mov_b32 s37, {fbits(1e-5)}
    v_mul_f32 v{SQ+2}, v{MA}, v{MA}
    v_add_u32 v5, 4, v{vBS}
    v_add_f32 v{SQ}, v{SQ}, v{SQ+1}
    v_mov_b32 v{SQ+1}, v{SQ}
    v_add_u32 v6, 8, v{vBS}
    v_add_u32 v7, 12, v{vBS}
    v_permlane32_swap_b32 v{SQ}, v{SQ+1}
    v_add_f32 v{SQ}, v{SQ}, v{SQ+1}
    v_fma_f32 v{SQ}, -v{SQ}, s38, -v{SQ+2}
    v_max_f32 v{SQ}, 0, v{SQ}
    v_add_f32 v{SQ}, s37, v{SQ}
    v_rsq_f32 v{SQ}, v{SQ}''')
    a(f'ds_bpermute_b32 v{RR+4}, v{vBP}, v{SQ}\nds_bpermute_b32 v{RR}, v{vBS}, v{SQ}', tag='bp')
    for e in range(1, 4): a(f'ds_bpermute_b32 v{RR+e}, v{4+e}, v{SQ}', tag='bp')
    a.wait(lg='raw')
    for d in range(8): a(f'v_lshlrev_b32 v{RES+2*d}, 16, v{RAW+d}\nv_and_b32 v{RES+2*d+1}, s36, v{RAW+d}')
    a.wait(lg='bp')
    a(f'v_mul_f32 v{RR+4}, {fbits(SCALE2)}, v{RR+4}')
    def repubA():
        a(f's_add_u32 s34, {sSst}, {SLOW}\nbuffer_store_dwordx4 {vr(SS,4)}, v{vSst}, {SWS}, s34 offen sc0 sc1')
    lsync(a, 12, False, sFS1, sFS2, sOwn, (lambda: None) if opt('swt', 0) else repubA, 32, 0 if opt('swt', 0) else SLOW)
    stamp(a, 'synced')
    SP, Y, WR = 112, 64, 32
    SPR = [128, 132, 136, 140, 144, 148, 152, 156, 112, 116, 96, 100]
    S0 = SPR[0]; T0 = SPR[1]
    sm = []
    def w2rd(ks):
        if ks < 24: a(f'ds_read_b128 {vr(WR+4*(ks%6),4)}, v{vW2} offset:{ks*2048}', tag=f'y{ks}')
        else:
            for k in range(2): a(f'ds_read2st64_b32 {vr(WR+4*(ks%6)+2*k,2)}, v{vW2b+ks-24} offset0:{2*k} offset1:{2*k+1}', tag=f'y{ks}')
    YH = opt('yh', 12)
    def ystep(ks, lim=26):
        a.wait(lg=f'y{ks}')
        xa = vr(XF+4*ks, 4) if ks < 24 else vr(CM if ks == 24 else CB, 4)
        a(f'v_mfma_f32_32x32x16_bf16 {vr(Y,16)}, {xa}, {vr(WR+4*(ks%6),4)}, {"0" if ks == 0 else vr(Y,16)}')
        if ks + 5 < lim: w2rd(ks + 5)
    a(f's_add_u32 {sSld}, {sSld}, {sDelta}\ns_mul_i32 s34, {sHF}, 12288\ns_add_u32 {sSld}, {sSld}, s34')
    for i in range(6):
        if i and i % 2 == 0: a(f's_add_u32 {sSld}, {sSld}, 4096')
        a(f'buffer_load_dwordx4 {vr(SPR[i],4)}, v{vL16}, {SWS}, {sSld} offen offset:{(i&1)*2048} sc1', tag=f's{i}')
    a(f's_add_u32 s34, {sM1K}, {LSX}\nv_add_u32 v4, s34, v{vL16}\nv_xor_b32 v5, 1024, v4')
    if YH:
        a('s_barrier')
        stamp(a, 'w2h')
        for ks in range(5): w2rd(ks)
        for ks in range(YH): ystep(ks, YH)
    for i in range(1, 6):
        a.wait(vm=f's{i}')
        for d in (0, 2): a(f'v_pk_add_f32 {vr(S0+d,2)}, {vr(S0+d,2)}, {vr(SPR[i]+d,2)}')
    a(f'ds_write_b128 v4, {vr(S0,4)}\ns_waitcnt lgkmcnt(0)'); a.lg = []
    stamp(a, 'ssum')
    a('s_barrier')
    stamp(a, 'w2in')
    a(f'ds_read_b128 {vr(T0,4)}, v5', tag='sx')
    sm.append(('l', 'sx'))
    for d in range(4): sm.append(f'v_add_f32 v{S0+d}, v{S0+d}, v{T0+d}')
    for ks in range(YH, YH + 5): w2rd(ks)
    for d in range(4): sm.append(f'v_mul_f32 v{S0+d}, v{S0+d}, v{RR+d}')
    sm += [f'v_max_f32 v{T0}, v{S0}, v{S0+1}', f'v_max3_f32 v{T0}, v{T0}, v{S0+2}, v{S0+3}', f'v_mov_b32 v{T0+1}, v{T0}', 's_mov_b32 s64, 0x11111111', 's_mov_b32 s65, 0x11111111',
           f'v_permlane32_swap_b32 v{T0}, v{T0+1}', f'v_max_f32 v{T0}, v{T0}, v{T0+1}', f'v_mul_f32 v{T0}, v{RR+4}, v{T0}']
    for d in range(4): sm.append(f'v_fma_f32 v{S0+d}, v{S0+d}, v{RR+4}, -v{T0}')
    for d in range(4): sm.append(f'v_exp_f32 v{S0+d}, v{S0+d}')
    sm += [f'v_add_f32 v{T0}, v{S0}, v{S0+1}', f'v_add_f32 v{T0+1}, v{S0+2}, v{S0+3}', f'v_add_f32 v{T0}, v{T0}, v{T0+1}', f'v_mov_b32 v{T0+1}, v{T0}']
    sm += [f'v_mul_f32 v{S0+d}, v{S0+d}, v{RR+d}' for d in range(2)] + [f'v_permlane32_swap_b32 v{T0}, v{T0+1}', f'v_add_f32 v{T0}, v{T0}, v{T0+1}', f'v_rcp_f32 v{T0}, v{T0}']
    sm += [f'v_mul_f32 v{S0+d}, v{S0+d}, v{RR+d}' for d in range(2, 4)]
    for d in range(4): sm.append(f'v_mul_f32 v{S0+d}, v{S0+d}, v{T0}')
    PB = 136
    sm += [f'v_cvt_pk_bf16_f32 v{T0}, v{S0}, v{S0+1}', f'v_cvt_pk_bf16_f32 v{T0+1}, v{S0+2}, v{S0+3}']
    for b in range(4):
        sm += [f'v_cndmask_b32 v{PB+2*b}, 0, v{T0}, s[64:65]', f'v_cndmask_b32 v{PB+2*b+1}, 0, v{T0+1}, s[64:65]']
        if b < 3: sm.append('s_lshl_b64 s[64:65], s[64:65], 1')
    S2 = 104
    sm += [f'v_mov_b32 v{S2}, 0', f'v_mov_b32 v{S2+1}, 0', 's_mov_b32 s36, 0x3f803f80']
    def drain(n):
        while n > 0 and sm:
            x = sm.pop(0)
            if isinstance(x, tuple): a.wait(vm=x[1]) if x[0] == 'w' else a.wait(lg=x[1])
            else: a(x); n -= 1
    for ks in range(YH, 26):
        ystep(ks)
        if ks >= YH + 1: drain(5 if YH else 4)
    drain(1000)
    stamp(a, 'ygemm')
    YP, XO = 144, 152
    for i in range(8): a(f'v_cvt_pk_bf16_f32 v{YP+i}, v{Y+2*i}, v{Y+2*i+1}')
    for k in range(2): a(f'v_mfma_f32_32x32x16_bf16 {vr(RES,16)}, {vr(YP+4*k,4)}, {vr(PB+4*k,4)}, {vr(RES,16)}')
    for i in range(8): a(f'v_cvt_pk_bf16_f32 v{XO+i}, v{RES+2*i}, v{RES+2*i+1}')
    a(f'buffer_store_dwordx4 {vr(XO,4)}, v{vX1}, {SWS}, {sX1} offen {WT}')
    a(f'buffer_store_dwordx4 {vr(XO+4,4)}, v{vX1}, {SWS}, {sX1} offen offset:512 {WT}')
    for i in range(8): a(f'v_dot2c_f32_bf16 v{S2}, s36, v{XO+i}\nv_dot2c_f32_bf16 v{S2+1}, v{XO+i}, v{XO+i}')
    a(f'''v_mov_b32 v{S2+2}, v{S2}
    v_mov_b32 v{S2+3}, v{S2+1}
    v_permlane32_swap_b32 v{S2}, v{S2+2}
    v_permlane32_swap_b32 v{S2+1}, v{S2+3}
    v_add_f32 v{S2}, v{S2}, v{S2+2}
    v_add_f32 v{S2+1}, v{S2+1}, v{S2+3}
    s_mov_b32 exec_hi, 0
    buffer_store_dwordx4 {vr(S2,4)}, v{vST}, {SWS}, {sST} offen {WT}
    s_mov_b32 exec_hi, -1
    s_mov_b32 s34, {GX}''')
    stamp(a, 'x1st')
    a.wait_all()
    a('s_barrier')
    flag_w0(a, sGX, 's34', 32)
    stamp(a, 'x1pub')
    a('s_branch P2_c')
    a.label('A_ld'); a.vm = []; a.lg = []
    vW, vXs, vP = 32, 36, 38
    sRx = ['s62', 's63', 's64', 's65', 's66', 's67']
    a(f'''s_mov_b32 s35, 196608
    v_mul_lo_u32 v{vXs}, v{T8}, s35
    v_lshrrev_b32 v4, 1, v{T8}
    v_xor_b32 v4, v4, v{G8}
    v_lshl_add_u32 v{vXs}, v4, 4, v{vXs}
    v_xor_b32 v{vXs+1}, 64, v{vXs}
    v_add_u32 v{vXs+1}, 768, v{vXs+1}
    s_lshl_b32 s34, {sG}, 3
    s_lshl_b32 s35, {sW}, 1
    s_add_u32 s34, s34, s35
    s_mul_i32 {sX}, s34, 768
    v_lshlrev_b32 v4, 1, v{T8}
    v_and_b32 v4, 4, v4
    v_xor_b32 v4, v4, v{G8}
    v_mul_u32_u24 v{vW}, 2304, v{T8}
    v_lshl_add_u32 v{vW}, v4, 4, v{vW}
    s_mul_i32 s68, {sW}, {16*2304}
    s_lshl_b32 s34, {sJ}, 7
    s_add_u32 s68, s68, s34''')
    for k in range(1, 4): a(f'v_add_u32 v{vW+k}, {(k>>1)*768 + (k&1)*18432}, v{vW}')
    for i in range(6):
        if ROT:
            a(f's_lshl_b32 s34, s3, 7\ns_add_u32 {sRx[i]}, s34, {sX}\ns_mul_i32 s34, s3, 147456\ns_add_u32 {sR[i]}, s34, s68')
            if i < 5: a('s_add_u32 s3, s3, 1\ns_cmp_ge_u32 s3, 6\ns_cselect_b32 s3, 0, s3')
        else: a(f's_add_u32 {sR[i]}, s68, {i*147456}\ns_add_u32 {sRx[i]}, {sX}, {i*128}')
    for i in range(2):
        a(f'''s_lshl_b32 s34, {sJ}, 3
        s_lshl_b32 s35, {sW}, 1
        s_add_u32 s34, s34, s35
        s_add_u32 s34, s34, {i}
        s_mul_i32 s35, s34, 43
        s_lshr_b32 s35, s35, 8
        s_mul_i32 s14, s35, 6
        s_sub_u32 s34, s34, s14
        s_lshl_b32 s34, s34, 10
        s_mul_i32 s35, s35, 196608
        s_add_u32 s34, s34, s35
        s_mul_i32 s35, {sG}, 6144
        s_add_u32 s{12+i}, s34, s35''')
    a(f's_mov_b32 s34, {WE}\ns_waitcnt lgkmcnt(0)\ns_load_dword {sTag}, s[32:33], s34')
    srd(a, 4, 20, 1572864); srd(a, 8, 22, 884736)
    def xpre():
        for i in range(2): a(f'buffer_load_dwordx4 v[{56+4*i}:{59+4*i}], v{vL16}, {SX}, s{12+i} offen')
    if opt('xp0', 0) == 1: xpre()
    def wdma(c):
        for th in range(2):
            a(f's_add_u32 m0, {sM}, {XS(c) + th*1024}\nbuffer_load_dwordx4 v{vXs+th}, {SX}, {sRx[c]} offen lds', tag=f'w{c}')
        for k in range(4):
            a(f's_add_u32 m0, {sM}, {WQ0 + c*16384 + (k>>1)*8192 + (k&1)*1024}\nbuffer_load_dwordx4 v{vW+k}, {SWQ}, {sR[c]} offen lds', tag=f'w{c}')
    NL = opt('nl', 2)
    for c in range(NL):
        wdma(c)
        if c == 0 and opt('xp0', 0) == 2: xpre()
        if c == 0: srd(a, 16, 32, WS_SIZE); srd(a, 24, 38, 1572864)
    a(f'''v_mul_u32_u24 v{vP}, 768, v1
    s_lshl_b32 s34, {sJ}, 7
    s_add_u32 s68, s34, {GW2}
    s_mul_i32 s69, {sJ}, 53248
    s_add_u32 s69, s69, {WS_W2}
    s_waitcnt lgkmcnt(0)''')
    tag_ready(a)
    for c in range(6):
        a.wait(vm=f'w{c}')
        if c in (0, 3, 5): stamp(a, f'L{c}')
        a('s_barrier')
        if c + NL < 6: wdma(c + NL)
        if c == opt('tpos', 3) and opt('touch', 1):
            a(f'''s_mul_i32 s34, {sG}, 24576
            s_lshl_b32 s35, {sJ}, 12
            s_add_u32 s34, s34, s35
            s_add_u32 s34, s34, {WS_S}
            s_add_u32 s34, s34, {sM1K}
            {"" if opt("swt", 0) else f"buffer_load_dwordx4 v[44:47], v{vL16}, {SWS}, s34 offen"}
            s_lshl_b32 s34, {sG}, 8
            s_add_u32 s34, s34, {FS1}
            v_lshlrev_b32 v48, 2, v1
            buffer_load_dword v49, v48, {SWS}, s34 offen
            s_lshl_b32 s34, {sXCD}, 9
            s_add_u32 s34, s34, {FC1}
            v_lshlrev_b32 v48, 3, v1
            buffer_load_dword v50, v48, {SWS}, s34 offen''')
    a(f's_mul_i32 s20, {sW}, 3')
    if ROT: rot_r('s3'); a('s_lshl_b32 s3, s3, 1\ns_add_u32 s3, s3, s20')
    else: a('s_mov_b32 s3, s20')
    a(f's_lshl_b32 s20, s20, 12\ns_add_u32 s20, s20, {W2L}')
    for k in range(3):
        a(f's_cmp_ge_u32 s3, 12\ns_cselect_b32 s34, 12, 0\ns_sub_u32 s3, s3, s34\ns_lshl_b32 s34, s3, 12\ns_add_u32 s{21+k}, s69, s34\ns_add_u32 s3, s3, 1')
    a(f's_add_u32 s69, s69, 49152\ns_add_u32 s69, s69, {sM1K}')
    if opt('tp', 9) == 0: touch2(a)
    if opt('w21', 1):
        a(f's_cmp_lg_u32 {sW}, 0\ns_cbranch_scc1 A_ld2')
        gpoll(a, 4, vP, 's68', 40)
        stamp(a, 'Lw2f')
        a(f's_sub_u32 s69, s69, 49152')
        for gi in range(13):
            if gi == 12: a(f's_add_u32 s68, s69, 49152')
            elif gi == 0: a('s_mov_b32 s68, s21\ns_sub_u32 s3, s21, s69')
            elif gi % 2 == 0: a('s_add_u32 s3, s3, 8192\ns_cmp_ge_u32 s3, 49152\ns_cselect_b32 s3, 0, s3\ns_add_u32 s68, s69, s3')
            else: a('s_add_u32 s68, s68, 4096')
            a(f's_mov_b32 m0, {W2L + gi*4096}')
            for k in range(4 if gi < 12 else 3): a(f'buffer_load_dwordx4 v{vL16}, {SWS}, s68 offen offset:{k*1024} sc1 lds', tag=f'h{gi}')
        if opt('yh', 12): a.wait(vm=f'h{opt("yh", 12)//2 - 1}')
        a.label('A_ld2')
        if opt('yh', 12): a('s_barrier')
    else:
        gpoll(a, 4, vP, 's68', 40)
        stamp(a, 'Lw2f')
        for k in range(3):
            a(f's_add_u32 m0, s20, {k*4096}')
            for q in range(4): a(f'buffer_load_dwordx4 v{vL16}, {SWS}, s{21+k} offen offset:{q*1024} sc1 lds')
        a(f's_add_u32 m0, {sM1K}, {W2L + 49152}\nbuffer_load_dwordx4 v{vL16}, {SWS}, s69 offen sc1 lds')
    a.wait_all()
    stamp(a, 'Lw2')
    a('s_barrier')
    wpoll(a)
    if opt('wearly', 0): wcopy(a)
    stamp(a, 'Lwi')
    a('s_barrier')
    stamp(a, 'Lbx')
    a('s_branch P2_l')
    a.label('K_pre'); a.vm = []; a.lg = []
    sS8, sIt, sJt, sA, sB, sMm, sT0, sLA, sLB = 's50', 's51', 's52', 's53', 's54', 's55', 's56', 's57', 's58'
    a(f'''s_mov_b32 {sS8}, {sI}
    s_mov_b32 s34, {WE}
    s_and_b32 s59, {sXCD}, 1
    s_lshr_b32 s60, {sXCD}, 1
    s_cmp_lt_u32 {sS8}, 3
    s_cbranch_scc1 W_id0
    s_mul_i32 s35, s60, 9
    s_mul_i32 s61, s59, 5
    s_add_u32 s35, s35, s61
    s_add_u32 s35, s35, {sS8}
    s_sub_u32 s35, s35, 3
    s_mul_i32 s61, s35, 43
    s_lshr_b32 s61, s61, 8
    s_mul_i32 s62, s61, 6
    s_sub_u32 {sJt}, s35, s62
    s_cmp_ge_u32 s61, 3
    s_cselect_b32 {sMm}, 1, 0
    s_mul_i32 s62, {sMm}, 3
    s_sub_u32 {sIt}, s61, s62
    s_add_u32 s62, {sS8}, s59
    s_cmp_ge_u32 s62, 8
    s_cselect_b32 {sMm}, 3, {sMm}
    s_branch W_id1''')
    a.label('W_id0')
    a(f'''s_mov_b32 {sMm}, 2
    s_mov_b32 {sIt}, s60
    s_mul_i32 {sJt}, s59, 3
    s_add_u32 {sJt}, {sJt}, {sS8}''')
    a.label('W_id1')
    a(f'''s_waitcnt lgkmcnt(0)
    s_load_dword {sTag}, s[32:33], s34''')
    srd(a, 16, 32, WS_SIZE); srd(a, 24, 38, 1572864)
    a(f'''s_cmp_eq_u32 {sMm}, 3
    s_cbranch_scc1 W_done
    s_cmp_lg_u32 {sRole}, 0
    s_cbranch_scc1 W_ld''')
    BB = 98304
    FA, FB, AC = 32, 48, 128
    vAr, vBr = 14, 18
    a(f'''v_and_b32 v2, 31, v1
    v_lshrrev_b32 v3, 5, v1
    v_and_b32 v4, 19, v2
    v_bfe_u32 v5, v2, 2, 1
    v_lshl_add_u32 v4, v5, 3, v4
    v_bfe_u32 v5, v2, 3, 1
    v_lshl_add_u32 v4, v5, 2, v4
    v_lshrrev_b32 v5, 3, v4
    v_mul_u32_u24 v5, 6144, v5
    v_and_b32 v6, 7, v4
    v_lshl_add_u32 v5, v6, 7, v5
    v_bfe_u32 v6, v4, 1, 3
    v_xor_b32 v6, v6, v3
    v_lshl_add_u32 v11, v6, 4, v5
    v_bfe_u32 v6, v1, 2, 2
    v_lshl_add_u32 v4, v3, 3, v6
    v_lshlrev_b32 v4, 7, v4
    v_lshrrev_b32 v7, 1, v6
    v_lshl_add_u32 v4, v7, 6, v4
    v_bfe_u32 v7, v1, 4, 1
    v_lshl_add_u32 v12, v7, 5, v4
    s_mov_b32 s37, 0x3f803f80''')
    def a_addr(swave):
        a(f's_mul_i32 s34, {swave}, 24576\nv_add_u32 v{vAr}, s34, v11')
        for k in range(1, 4): a(f'v_xor_b32 v{vAr+k}, {32*k}, v{vAr}')
    def stages(nv, breads):
        for jj in range(6):
            a('s_barrier')
            for k4 in range(4):
                a(f'ds_read_b128 {vr(FA+4*k4,4)}, v{vAr+k4} offset:{jj*1024}', tag=f'r{k4}')
                for v in range(nv): breads(jj, k4, v, FB + (k4*2+v)*4)
            for k4 in range(4):
                a.wait(lg=f'r{k4}')
                for v in range(nv):
                    cin = '0' if (jj == 0 and k4 == 0) else vr(AC+16*v, 16)
                    a(f'v_mfma_f32_32x32x16_bf16 {vr(AC+16*v,16)}, {vr(FA+4*k4,4)}, {vr(FB+(k4*2+v)*4,4)}, {cin}')
    def btr(jj, k4, v, d):
        o = jj*8192 + k4*2048
        a(f'ds_read_b64_tr_b16 {vr(d,2)}, v{vBr+v} offset:{o}\nds_read_b64_tr_b16 {vr(d+2,2)}, v{vBr+v} offset:{o+512}', tag=f'r{k4}')
    def brow(jj, k4, v, d): a(f'ds_read_b128 {vr(d,4)}, v{vBr+k4} offset:{v*24576+jj*1024}', tag=f'r{k4}')
    def colsum(v, src, dst):
        a(f'v_mov_b32 v24, 0')
        for i in range(8): a(f'v_dot2c_f32_bf16 v24, s37, v{src+i}')
        a(f'''v_mov_b32 v26, v24
        v_permlane32_swap_b32 v24, v26
        v_add_f32 v26, v26, v24
        v_cvt_pk_bf16_f32 v27, v26, v26
        v_lshlrev_b32 v27, 16, v27
        v_sub_f32 v27, v26, v27
        v_cvt_pk_bf16_f32 v{dst}, v26, v27''')
    a_addr(sW)
    a(f's_cmp_lg_u32 {sMm}, 2\ns_cbranch_scc1 W_c0')
    a(f'''s_min_u32 s59, {sW}, 2''')
    a_addr('s59')
    a(f'''v_and_b32 v7, 1, v1
    v_lshl_add_u32 v4, v7, 4, v12
    v_bfe_u32 v7, v1, 1, 1
    v_lshl_add_u32 v4, v7, 3, v4
    v_add_u32 v{vBr}, {BB}, v4
    v_xor_b32 v{vBr+1}, 64, v{vBr}
    s_mul_i32 s34, {sIt}, 3
    s_add_u32 s34, s34, s59
    s_mul_i32 s35, {sJt}, 53248
    s_add_u32 s35, s35, {WS_W2}
    s_lshl_b32 s36, s34, 12
    s_add_u32 s61, s35, s36
    s_lshl_b32 s36, s34, 8
    s_add_u32 s35, s35, s36
    s_add_u32 s62, s35, 49152
    v_lshlrev_b32 v30, 2, v1
    s_mul_i32 s63, {sIt}, 6
    s_add_u32 s63, s63, {sJt}
    s_lshl_b32 s63, s63, 7
    s_mov_b32 s64, {GW2}''')
    stages(2, btr)
    stamp(a, 'pst')
    a(f's_cmp_eq_u32 {sW}, 3\ns_cbranch_scc1 W_c4')
    for v in range(2):
        for i in range(8): a(f'v_cvt_pk_bf16_f32 v{32+8*v+i}, v{AC+16*v+2*i}, v{AC+16*v+2*i+1}')
        a(f'buffer_store_dwordx4 {vr(32+8*v,4)}, v{vL16}, {SWS}, s61 offen offset:{v*1024} {WT}\nbuffer_store_dwordx4 {vr(36+8*v,4)}, v{vL16}, {SWS}, s61 offen offset:{2048+v*1024} {WT}')
    for v in range(2): colsum(v, 32+8*v, 28+v)
    a('s_mov_b32 exec_hi, 0')
    for v in range(2): a(f'buffer_store_dword v{28+v}, v30, {SWS}, s62 offen offset:{v*128} {WT}')
    a('s_mov_b32 exec_hi, -1')
    a.label('W_c4')
    a.wait_all()
    tag_ready(a)
    a('s_barrier')
    flag_w0(a, 's63', 's64', 48)
    stamp(a, 'w2pub')
    a('s_branch W_done2')
    a.label('W_c0'); a.lg = []; a.vm = []
    a(f's_cmp_eq_u32 {sMm}, 1\ns_cbranch_scc1 W_c1')
    a(f'''v_lshrrev_b32 v5, 3, v2
    v_mul_u32_u24 v5, 6144, v5
    v_and_b32 v6, 7, v2
    v_lshl_add_u32 v5, v6, 7, v5
    v_bfe_u32 v6, v2, 1, 3
    v_xor_b32 v6, v6, v3
    v_lshl_add_u32 v5, v6, 4, v5
    v_add_u32 v{vBr}, {BB}, v5''')
    for k in range(1, 4): a(f'v_xor_b32 v{vBr+k}, {32*k}, v{vBr}')
    stages(2, brow)
    a('s_branch W_c2')
    a.label('W_c1'); a.lg = []
    a(f'''v_and_b32 v7, 3, v1
    v_lshl_add_u32 v4, v7, 3, v12
    v_add_u32 v{vBr}, {BB}, v4
    v_xor_b32 v{vBr+1}, 64, v{vBr}''')
    stages(2, btr)
    a.label('W_c2')
    a(f'''s_mul_i32 s34, {sMm}, 24
    s_lshl_b32 s35, {sJt}, 2
    s_add_u32 s34, s34, s35
    v_bfe_u32 v4, v1, 4, 1
    v_add_u32 v4, s34, v4
    v_and_b32 v7, 15, v1
    v_lshlrev_b32 v7, 4, v7
    s_lshl_b32 s35, {sIt}, 2
    s_add_u32 s35, s35, {sW}
    s_mul_i32 s35, s35, 3072
    s_add_u32 s35, s35, {WS_W}
    s_lshl_b32 s36, {sIt}, 2
    s_add_u32 s36, s36, {sW}
    s_mul_i32 s36, s36, 192
    s_add_u32 s36, s36, {WS_W + 12*3072}''')
    for v in range(2):
        a(f'''v_add_u32 v5, {2*v}, v4
        v_mul_u32_u24 v6, 43, v5
        v_lshrrev_b32 v6, 7, v6
        v_mul_u32_u24 v8, 3, v6
        v_sub_u32 v5, v5, v8
        v_mul_u32_u24 v6, 39936, v6
        v_lshl_add_u32 v{20+v}, v5, 6, v6
        v_lshl_add_u32 v6, v5, 10, v6
        v_add_u32 v6, v6, v7
        v_lshl_add_u32 v{22+v}, v3, 8, v6
        v_lshrrev_b32 v6, 2, v7
        v_add_u32 v{20+v}, v{20+v}, v6''')
        for i in range(8): a(f'v_cvt_pk_bf16_f32 v{32+8*v+i}, v{AC+16*v+2*i}, v{AC+16*v+2*i+1}')
        a(f'buffer_store_dwordx4 {vr(32+8*v,4)}, v{22+v}, {SWS}, s35 offen {WT}')
        a(f'buffer_store_dwordx4 {vr(36+8*v,4)}, v{22+v}, {SWS}, s35 offen offset:512 {WT}')
        colsum(v, 32+8*v, 28+v)
    a('s_mov_b32 exec_hi, 0')
    for v in range(2): a(f'buffer_store_dword v{28+v}, v{20+v}, {SWS}, s36 offen {WT}')
    a('s_mov_b32 exec_hi, -1')
    a('s_branch W_done')
    a.label('W_ld'); a.vm = []; a.lg = []
    vA0, vBo = 12, 14
    a(f'''v_lshrrev_b32 v4, 1, v{T8}
    v_xor_b32 v4, v4, v{G8}
    v_mul_u32_u24 v5, 2304, v{T8}
    v_lshl_add_u32 v{vA0}, v4, 4, v5
    v_xor_b32 v{vA0+1}, 64, v{vA0}
    v_lshlrev_b32 v4, 1, v{T8}
    v_and_b32 v4, 4, v4
    v_xor_b32 v4, v4, v{G8}
    v_mul_u32_u24 v5, 768, v{T8}
    v_lshl_add_u32 v{vBo}, v4, 4, v5''')
    sLn = ['s59', 's60', 's61', 's62', 's63', 's64']; sLb = ['s65', 's66', 's67', 's68', 's69', 's3']
    def lstages(nra, mode):
        if opt('prot', 1) and (nra == 3 or opt('protw', 1)): a(f's_mul_i32 s34, {sIt}, 3\ns_lshr_b32 s34, s34, 1\ns_add_u32 s34, s34, {sJt}')
        else: a('s_mov_b32 s34, 0')
        for jj in range(6):
            a(f's_cmp_ge_u32 s34, 6\ns_cselect_b32 s35, 6, 0\ns_sub_u32 s34, s34, s35\ns_lshl_b32 s35, s34, 7\ns_add_u32 {sLn[jj]}, {sA}, s35')
            if mode == 1: a(f's_mul_i32 s35, s34, {64*768}')
            a(f's_add_u32 {sLb[jj]}, {sB}, s35\ns_add_u32 s34, s34, 1')
        def issue(jj):
            for r in range(nra):
                a(f'''s_add_u32 {sT0}, {sLn[jj]}, {r*8*2304}
                s_add_u32 m0, {sLA}, {(r*6+jj)*1024}
                buffer_load_dwordx4 v{vA0+(r&1)}, {SWQ}, {sT0} offen lds''', tag=f'p{jj}')
            for r in range(2):
                if mode == 0:
                    a(f'''s_add_u32 {sT0}, {sLb[jj]}, {r*8*2304}
                    s_add_u32 m0, {sLB}, {BB + (r*6+jj)*1024}
                    buffer_load_dwordx4 v{vA0+r}, {SWQ}, {sT0} offen lds''', tag=f'p{jj}')
                else:
                    a(f'''s_add_u32 {sT0}, {sLb[jj]}, {r*8*768}
                    s_add_u32 m0, {sLB}, {BB + jj*8192 + r*1024}
                    buffer_load_dwordx4 v{vBo}, {SWO}, {sT0} offen lds''', tag=f'p{jj}')
        n0 = opt('pn0', 3) if nra == 3 else opt('pn0w', 3)
        for jj in range(n0): issue(jj)
        for jj in range(6):
            a.wait(vm=f'p{jj}')
            if jj in (0, 3, 5) and nra == 3: stamp(a, f'Lp{jj}')
            a('s_barrier')
            if jj + n0 < 6: issue(jj + n0)
    a(f's_cmp_lg_u32 {sMm}, 2\ns_cbranch_scc1 W_l0')
    srd(a, 8, 22, 884736); srd(a, 12, 28, 294912)
    a(f'''s_lshl_b32 s34, {sIt}, 2
    s_add_u32 s34, s34, {sW}
    s_mul_i32 {sA}, s34, {24*2304}
    s_add_u32 {sA}, {sA}, 1536
    s_mul_i32 {sLA}, {sW}, 18432
    s_mul_i32 {sB}, {sW}, {16*768}
    s_lshl_b32 s34, {sJt}, 7
    s_add_u32 {sB}, {sB}, s34
    s_lshl_b32 {sLB}, {sW}, 11
    s_and_b32 s34, {sW}, 1
    s_lshl_b32 s34, s34, 6
    v_xor_b32 v{vA0}, s34, v{vA0}
    v_xor_b32 v{vA0+1}, s34, v{vA0+1}''')
    lstages(3, 1)
    a('s_branch W_done')
    a.label('W_l0'); a.vm = []
    srd(a, 8, 30, 884736); srd(a, 12, 36, 294912)
    a(f'''s_lshl_b32 s34, {sIt}, 2
    s_add_u32 s34, s34, {sW}
    s_mul_i32 {sA}, s34, {32*2304}
    s_mul_i32 s35, {sMm}, 1536
    s_add_u32 {sA}, {sA}, s35
    s_mul_i32 {sLA}, {sW}, 24576
    s_cmp_eq_u32 {sMm}, 1
    s_cbranch_scc1 W_l1
    s_lshl_b32 s34, {sJt}, 2
    s_add_u32 s34, s34, {sW}
    s_mul_i32 {sB}, s34, {16*2304}
    s_add_u32 {sB}, {sB}, 768
    s_mul_i32 {sLB}, {sW}, 12288''')
    lstages(4, 0)
    a('s_branch W_done')
    a.label('W_l1'); a.vm = []
    a(f'''s_mul_i32 {sB}, {sW}, {16*768}
    s_lshl_b32 s34, {sJt}, 7
    s_add_u32 {sB}, {sB}, s34
    s_lshl_b32 {sLB}, {sW}, 11''')
    lstages(4, 1)
    a.label('W_done'); a.vm = []; a.lg = []
    a.wait_all()
    tag_ready(a)
    a(f'''s_barrier
    s_cmp_lg_u32 {sRole}, 0
    s_cbranch_scc1 W_done3''')
    a.label('W_done2')
    a(f'''
    s_lshl_b32 s34, {sS8}, 3
    s_add_u32 s34, s34, {sXCD}
    s_lshl_b32 s34, s34, 7
    s_mov_b32 s35, {GW}''')
    flag_w0(a, 's34', 's35', 32)
    stamp(a, 'wpub')
    hp_t0(a)
    if opt('tp', 9) == 3:
        a(f'''s_lshl_b32 s34, {sS8}, 2
        s_add_u32 s34, s34, {sW}
        s_mul_i32 s35, s34, 6656
        s_mul_i32 s36, {sXCD}, 212992
        s_add_u32 s35, s35, s36
        s_add_u32 s35, s35, {WS_Q}
        s_mul_i32 s36, s34, 6144
        s_mul_i32 s37, {sXCD}, 196608
        s_add_u32 s36, s36, s37
        s_add_u32 s36, s36, {WS_VP}''')
        for sb, n in (('s35', 7), ('s36', 6)):
            for i in range(n):
                if i == 4: a(f's_add_u32 {sb}, {sb}, 4096')
                a(f'buffer_load_dwordx4 v[64:67], v{vL16}, {SWS}, {sb} offen offset:{(i&3)*1024}')
        a(f's_lshl_b32 s34, {sXCD}, 9\ns_add_u32 s34, s34, {FC1}\nv_lshlrev_b32 v68, 3, v1\nbuffer_load_dword v64, v68, {SWS}, s34 offen')
        a.vm = []
    def wd3():
        a.label('W_done3')
        if opt('tp', 9) == 0: touch2(a)
        wpoll(a)
        if opt('wearly', 0): wcopy(a)
        a('s_branch P2_l')
    TAIL.append(wd3)
    import v12b
    v12b.phase2(a, globals())
    a.label('K_end')
    a('s_endpgm')
    a.cond = True
    k = 0
    while k < len(TAIL): a.vm = []; a.lg = []; TAIL[k](); k += 1
    return a

KNAME = 'standalone__video_timesformer__vision_kernel'
if __name__ == '__main__':
    out = sys.argv[1]
    a = build()
    head = open('standalone__video_timesformer__vision.s.ref').read().split('; Override launch')[0]
    s = head + '; @launch grid=(256,1,1) block=(512,1,1) lds=151552\n.amdgcn_target "amdgcn-amd-amdhsa--gfx950"\n.text\n'
    s += f'.globl {KNAME}\n.p2align 8\n.type {KNAME},@function\n{KNAME}:\n' + a.text()
    s += f'''.fill 4096, 4, 0xbf800000
  s_endpgm
.section .rodata,"a"
.p2align 6
.amdhsa_kernel {KNAME}
  .amdhsa_next_free_vgpr 256
  .amdhsa_next_free_sgpr 102
  .amdhsa_accum_offset 256
  .amdhsa_group_segment_fixed_size 0
  .amdhsa_kernarg_size 64
  .amdhsa_user_sgpr_count 2
  .amdhsa_user_sgpr_kernarg_segment_ptr 1
  .amdhsa_system_sgpr_workgroup_id_x 1
.end_amdhsa_kernel
'''
    open(out, 'w').write(s)
    if PROFILE: open(out + '.stamps', 'w').write(repr(St.names))
    print('instructions', sum(1 for i in a.ins if not i.label), 'pad states', a.pads)
```

```python
import sys, math, struct
sys.path.insert(0, 'gen')
from asm import Asm
def opt(name, default):
    for x in sys.argv:
        if x.startswith(f'--{name}='): return int(x.split('=')[1])
    return default
HP = [x[5:] for x in sys.argv if x.startswith('--hp=')]
PROFILE = '--prof' in sys.argv or bool(HP)
SKIP = []
for x in sys.argv:
    if x.startswith('--skip='): SKIP = x[7:].split(',')
WS_W2 = 0x000000
WS_S  = 0x180000
WS_X1 = 0x240000
WS_W  = 0x3E0000
WS_Q  = 0x480000
WS_VP = 0x620000
WS_ST = 0xF00000
FS1, FS2 = 0x7A0000, 0x7A2000
FC1, FC2 = 0x7A4000, 0x7A5000
GW2, GW, GX, WE = 0x7A8000, 0x7AA000, 0x7AC000, 0x7B4000
WS_PROF = 0x7C0000
SLOW = 0x800000
WS_SIZE = 0x1000000
LIM_FAST = opt('lim', 24)
LIM_SLOW = 1 << 20
SCALE2 = 384 ** -0.5 * math.log2(math.e)
def fbits(x): return '0x%08x' % struct.unpack('<I', struct.pack('<f', x))[0]
def vr(b, n): return f'v[{b}:{b+n-1}]' if n > 1 else f'v{b}'
SX, SWQ, SWO, SWS, SOUT = 's[4:7]', 's[8:11]', 's[12:15]', 's[16:19]', 's[24:27]'
WT = 'sc0 sc1' if opt('wt', 1) == 2 else 'sc1'
def srd(a, base, ptr, size):
    a(f's_mov_b32 s{base}, s{ptr}\ns_mov_b32 s{base+1}, s{ptr+1}\ns_mov_b32 s{base+2}, {size}\ns_mov_b32 s{base+3}, 0x20000')
STAMP_REGS = [70, 72, 74, 76, 78, 80, 82, 84, 86, 88, 90, 92, 94, 96, 98, 100]
class St:
    names = {'C': [], 'L': []}
def stamp(a, name):
    if not PROFILE or name in SKIP or (HP and name not in ('start', HP[0])): return
    lst = St.names['L' if name.startswith('L') else 'C']
    if name not in lst: lst.append(name)
    k = lst.index(name)
    a(f's_memrealtime s[{STAMP_REGS[k]}:{STAMP_REGS[k]+1}]')
def hp_end(a, role):
    name = HP[0]
    lst = St.names[role]
    src = f's{STAMP_REGS[lst.index(name)]}' if name in lst else 's70'
    L1, L2 = a.newlabel('hp'), a.newlabel('hp')
    a(f's_waitcnt vmcnt(0) lgkmcnt(0)\nv_mov_b32 v2, {WS_PROF + 0x30000}')
    a.label(L1)
    a(f'''buffer_load_dwordx2 v[4:5], v2, {SWS}, 0 offen sc0 sc1
    s_waitcnt vmcnt(0)
    v_readfirstlane_b32 s34, v4
    v_readfirstlane_b32 s35, v5
    s_cmp_lg_u32 s35, {sTag}
    s_cbranch_scc1 {L1}
    s_sub_u32 s35, {src}, s34
    s_max_i32 s35, s35, 0
    s_mul_i32 s35, s35, 4
    s_add_u32 s35, s35, 4000''')
    a.label(L2)
    a(f'''s_memrealtime s[36:37]
    s_waitcnt lgkmcnt(0)
    s_sub_u32 s36, s36, s34
    s_cmp_lt_i32 s36, s35
    s_cbranch_scc1 {L2}''')
def hp_t0(a):
    if not HP: return
    L = a.newlabel('hq')
    a(f's_or_b32 s34, s2, {sW}\ns_or_b32 s34, s34, {sRole}\ns_cmp_lg_u32 s34, 0\ns_cbranch_scc1 {L}')
    a(f'v_mov_b32 v2, {WS_PROF + 0x30000}\nv_mov_b32 v4, s70\nv_mov_b32 v5, {sTag}\nbuffer_store_dwordx2 v[4:5], v2, {SWS}, 0 offen sc0 sc1')
    a.vm.pop()
    a.label(L)
def stamp_flush(a, role='C'):
    if HP: hp_end(a, role); return
    if not PROFILE: return
    a('s_waitcnt lgkmcnt(0)')
    for k in range(16): a(f'v_mov_b32 v{100+k}, s{STAMP_REGS[k]}')
    a(f'''v_lshrrev_b32 v8, 6, v0
    s_lshl_b32 s34, s2, 3
    v_add_u32 v8, s34, v8
    v_lshlrev_b32 v8, 6, v8
    v_add_u32 v8, {WS_PROF}, v8''')
    for k in range(4): a(f'buffer_store_dwordx4 v[{100+4*k}:{103+4*k}], v8, {SWS}, 0 offen offset:{16*k}')

sXCD, sW, sI, sRole = 's40', 's41', 's42', 's43'
sTag, sFast, sDelta = 's44', 's45', 's46'
sM1K = 's47'
TAIL = []

def lanes(a, n):
    a(f's_mov_b32 exec_lo, {hex((1 << min(n, 32)) - 1)}\ns_mov_b32 exec_hi, {hex((1 << max(n-32, 0)) - 1)}')
def gpoll(a, n, vA, sBase, vT):
    Lf, Lr, Ld = a.newlabel('gp'), a.newlabel('gr'), a.newlabel('gd')
    lanes(a, n)
    a(f's_mov_b32 s35, {LIM_SLOW}')
    a.label(Lf)
    a(f'buffer_load_dword v{vT}, v{vA}, {SWS}, {sBase} offen sc1')
    a.wait_all(lg=False)
    a(f'v_cmp_ne_u32 vcc, {sTag}, v{vT}\ns_cbranch_vccnz {Lr}')
    a.label(Ld)
    a('s_mov_b64 exec, -1')
    def tail():
        a.label(Lr)
        if opt('gsl', 0): a(f's_sleep {opt("gsl", 0)}')
        a(f's_sub_u32 s35, s35, 1\ns_cmp_lg_u32 s35, 0\ns_cbranch_scc1 {Lf}\ns_branch {Ld}')
    TAIL.append(tail)
def lsync(a, n, wide, sF1, sF2, sOwn, republish, vT, delta=SLOW):
    Lf, Lr, Ld, Ls = a.newlabel('lp'), a.newlabel('lr'), a.newlabel('ld'), a.newlabel('ls')
    vA, vD, vE = vT, vT + 2, vT + 6
    w = 4 if wide else 1
    ld = 'buffer_load_dwordx4' if wide else 'buffer_load_dword'
    def cmp(v, s):
        if not wide: a(f'v_cmp_ne_u32 vcc, {s}, v{v}'); return
        for k in range(4): a(f'v_xor_b32 v{v+k}, {s}, v{v+k}')
        a(f'v_or_b32 v{v}, v{v}, v{v+1}\nv_or3_b32 v{v}, v{v}, v{v+2}, v{v+3}\nv_cmp_ne_u32 vcc, 0, v{v}')
    lanes(a, n)
    a(f'v_lshlrev_b32 v{vA}, {4 if wide else 2}, v1\ns_mov_b32 {sDelta}, 0\ns_mov_b32 s35, {LIM_FAST}')
    a.label(Lf)
    a(f'{ld} {vr(vD, w)}, v{vA}, {SWS}, {sF1} offen sc1')
    a.wait_all(lg=False)
    cmp(vD, sFast)
    a(f's_cbranch_vccnz {Lr}')
    a.label(Ld)
    a('s_mov_b64 exec, -1')
    def tail():
        a.label(Lr)
        a(f's_sub_u32 s35, s35, 1\ns_cmp_lg_u32 s35, 0\ns_cbranch_scc1 {Lf}')
        if republish:
            a('s_mov_b64 exec, -1')
            republish()
            a.wait_all(lg=False)
            a(f'''s_mov_b64 exec, 1
            v_mov_b32 v{vD}, {sOwn}
            v_mov_b32 v{vD+1}, {sTag}
            buffer_store_dword v{vD+1}, v{vD}, {SWS}, {sF2} offen sc0 sc1''')
            lanes(a, n)
        a(f's_mov_b32 s35, {LIM_SLOW}')
        a.label(Ls)
        a(f'{ld} {vr(vD, w)}, v{vA}, {SWS}, {sF1} offen sc1\n{ld} {vr(vE, w)}, v{vA}, {SWS}, {sF2} offen sc0 sc1')
        a.wait_all(lg=False)
        cmp(vD, sFast)
        a(f's_cbranch_vccz {Ld}')
        cmp(vE, sTag)
        a(f's_mov_b32 {sDelta}, {delta}\ns_cbranch_vccz {Ld}\ns_mov_b32 {sDelta}, 0\ns_sub_u32 s35, s35, 1\ns_cmp_lg_u32 s35, 0\ns_cbranch_scc1 {Ls}\ns_branch {Ld}')
    TAIL.append(tail)
def flag(a, sOff, sBase, sVal, vT, fl):
    a(f'''s_mov_b64 exec, 1
    v_mov_b32 v{vT}, {sOff}
    v_mov_b32 v{vT+1}, {sVal}
    buffer_store_dword v{vT+1}, v{vT}, {SWS}, {sBase} offen {fl}
    s_mov_b64 exec, -1''')
def gflag(a, sOff, sBase, vT):
    a(f'''s_mov_b64 exec, 15
    v_lshl_add_u32 v{vT}, v1, 4, {sOff}
    v_mov_b32 v{vT+2}, {sTag}
    v_mov_b32 v{vT+3}, {sTag}
    v_mov_b32 v{vT+4}, {sTag}
    v_mov_b32 v{vT+5}, {sTag}
    buffer_store_dwordx4 {vr(vT+2,4)}, v{vT}, {SWS}, {sBase} offen sc0 sc1
    s_mov_b64 exec, -1''')
def flag_w0(a, sOff, sBase, vT):
    L = a.newlabel('f0')
    a(f's_cmp_lg_u32 {sW}, 0\ns_cbranch_scc1 {L}')
    a.cond = True; gflag(a, sOff, sBase, vT); a.vm.pop(); a.cond = False
    a.label(L)
def tag_ready(a):
    a(f'''s_mul_i32 {sTag}, {sTag}, 0x9e3779b1
    s_add_u32 {sTag}, {sTag}, 0x7f4a7c15
    s_add_u32 {sFast}, {sFast}, {sTag}''')

LW34 = 102400
LSX = 147456
def wpoll(a):
    a(f'v_lshlrev_b32 v7, 7, v1\ns_mov_b32 s67, {GW}')
    gpoll(a, 64, 7, 's67', 33)
    stamp(a, 'Lwf')
def wcopy(a):
    a(f's_and_b32 s68, {sI}, 15\ns_mul_i32 s68, s68, 39936\ns_mul_i32 s34, {sW}, 10240\ns_add_u32 s68, s68, s34\ns_add_u32 s68, s68, {WS_W}\ns_add_u32 s34, s34, {LW34}')
    for i in range(10):
        if i % 4 == 0: a(f's_add_u32 m0, s34, {i*1024}' + ('\ns_add_u32 s68, s68, 4096' if i else ''))
        a(f'buffer_load_dwordx4 v10, {SWS}, s68 offen offset:{(i&3)*1024} sc1 lds')
def pages(a):
    a(f"""s_mov_b64 exec, 0xffff
    v_lshlrev_b32 v52, 20, v1
    buffer_load_dword v53, v52, {SWS}, 0 offen
    s_mov_b64 exec, 3
    buffer_load_dword v54, v52, {SOUT}, 0 offen
    s_mov_b64 exec, -1""")
def touch2(a):
    Lt = a.newlabel('tc'); Lu = a.newlabel('tc')
    a(f"""s_and_b32 s36, {sI}, 15
    s_lshr_b32 s37, {sI}, 4
    s_cmp_ge_u32 s36, 8
    s_cbranch_scc1 {Lt}
    s_lshl_b32 s34, {sXCD}, 4
    s_lshl_b32 s35, s37, 3
    s_add_u32 s34, s34, s35
    s_lshl_b32 s35, {sW}, 1
    s_add_u32 s34, s34, s35
    s_mul_i32 s34, s34, 13312
    s_mul_i32 s35, s36, 1536
    s_add_u32 s34, s34, s35
    s_add_u32 s34, s34, {WS_Q}
    s_add_u32 s35, s34, 13312""")
    for sb in ('s34', 's35'): a(f'buffer_load_dwordx4 v[64:67], v10, {SWS}, {sb} offen\ns_mov_b32 exec_hi, 0\nbuffer_load_dwordx4 v[64:67], v10, {SWS}, {sb} offen offset:1024\ns_mov_b32 exec_hi, -1')
    a(f's_branch {Lu}'); a.label(Lt)
    a(f"""s_lshl_b32 s34, {sW}, 1
    s_add_u32 s34, s34, s37
    s_lshl_b32 s35, {sXCD}, 3
    s_add_u32 s34, s34, s35
    s_mul_i32 s34, s34, 24576
    s_mul_i32 s35, s36, 3072
    s_add_u32 s34, s34, s35
    s_add_u32 s34, s34, {WS_VP - 8*3072}""")
    for u in range(3): a(f'buffer_load_dwordx4 v[64:67], v10, {SWS}, s34 offen offset:{u*1024}')
    a.label(Lu)
    a(f"""s_lshr_b32 s34, {sI}, 1
    s_lshl_b32 s35, {sXCD}, 4
    s_add_u32 s34, s34, s35
    s_mul_i32 s34, s34, 13312
    s_add_u32 s34, s34, {WS_Q + 12288}
    s_lshl_b32 s35, {sW}, 8
    v_lshl_add_u32 v68, v1, 2, s35
    buffer_load_dword v64, v68, {SWS}, s34 offen
    s_lshl_b32 s34, {sXCD}, 9
    s_add_u32 s34, s34, {FC1}
    v_lshlrev_b32 v68, 3, v1
    buffer_load_dword v64, v68, {SWS}, s34 offen""")
    a.vm = []

def build():
    a = Asm()
    def emit(x):
        if isinstance(x, tuple): a(x[0], tag=x[1])
        else: a(x)
    a(f'''s_cmp_ge_u32 s2, 256
    s_cbranch_scc1 K_end
    s_load_dwordx4 s[20:23], s[0:1], 0
    s_load_dwordx4 s[28:31], s[0:1], 16
    s_load_dwordx4 s[36:39], s[0:1], 32
    s_load_dwordx2 s[32:33], s[0:1], 56
    v_and_b32 v1, 63, v0
    v_lshrrev_b32 v2, 6, v0
    s_and_b32 {sXCD}, s2, 7
    v_readfirstlane_b32 {sW}, v2
    s_lshr_b32 {sI}, s2, 3''')
    stamp(a, 'start')
    if HP:
        St.names['L'].append('Lstart')
        a('s_waitcnt lgkmcnt(0)')
        for r in STAMP_REGS[1:]: a(f's_mov_b32 s{r}, s70')
    a('s_getpc_b64 s[48:49]')
    a.label('K_pc')
    a(f'''s_sub_u32 s48, s48, K_pc-{KNAME}
    s_subb_u32 s49, s49, 0
    s_lshl_b32 s34, {sI}, 3
    s_add_u32 s34, s34, {sW}
    s_and_b32 s34, s34, 31
    s_lshl_b32 s34, s34, 10
    v_lshl_add_u32 v9, v1, 4, s34
    global_load_dwordx4 v[252:255], v9, s[48:49]
    s_lshr_b32 {sRole}, {sW}, 2
    s_and_b32 {sW}, {sW}, 3
    s_lshl_b32 {sM1K}, {sW}, 10
    s_getreg_b32 {sFast}, hwreg(HW_REG_XCC_ID)
    s_and_b32 {sFast}, {sFast}, 15
    s_add_u32 {sFast}, {sFast}, 1
    v_lshrrev_b32 v2, 3, v1
    v_and_b32 v3, 7, v1
    v_lshlrev_b32 v10, 4, v1
    s_cmp_lt_u32 {sI}, 8
    s_cbranch_scc1 K_pre''')
    T8, G8, vL16 = 2, 3, 10
    sG, sJ, sP, sHF, sX, sM = 's50', 's51', 's52', 's53', 's54', 's55'
    sR = ['s56', 's57', 's58', 's59', 's60', 's61']
    ROT = opt('rot', 7)
    a(f'''s_sub_u32 {sJ}, {sI}, 8
    s_mul_i32 s34, {sJ}, 43
    s_lshr_b32 s34, s34, 8
    s_mul_i32 s35, s34, 6
    s_sub_u32 {sJ}, {sJ}, s35
    s_lshl_b32 {sG}, {sXCD}, 2
    s_add_u32 {sG}, {sG}, s34
    s_lshr_b32 {sP}, {sW}, 1
    s_and_b32 {sHF}, {sW}, 1
    s_lshl_b32 {sM}, {sW}, 11''')
    def rot_r(dst):
        if ROT == 4: a(f's_mul_i32 {dst}, {sXCD}, 3\ns_lshr_b32 {dst}, {dst}, 2')
        elif ROT == 5: a(f's_add_u32 {dst}, {sXCD}, 4\ns_and_b32 {dst}, {dst}, 7\ns_mul_i32 {dst}, {dst}, 3\ns_lshr_b32 {dst}, {dst}, 2')
        elif ROT == 6: a(f's_and_b32 {dst}, {sG}, 1\ns_mul_i32 {dst}, {dst}, 4\ns_add_u32 {dst}, {dst}, {sXCD}\ns_and_b32 {dst}, {dst}, 7\ns_mul_i32 {dst}, {dst}, 3\ns_lshr_b32 {dst}, {dst}, 2')
        elif ROT == 7: a(f's_mul_i32 {dst}, {sXCD}, 3\ns_lshr_b32 {dst}, {dst}, 2\ns_add_u32 {dst}, {dst}, {sJ}\ns_cmp_ge_u32 {dst}, 6\ns_cselect_b32 s34, 6, 0\ns_sub_u32 {dst}, {dst}, s34')
        elif ROT == 8: a(f's_and_b32 {dst}, {sG}, 3\ns_add_u32 {dst}, {dst}, {sXCD}\ns_add_u32 {dst}, {dst}, {sJ}\ns_mul_i32 s34, {dst}, 43\ns_lshr_b32 s34, s34, 8\ns_mul_i32 s34, s34, 6\ns_sub_u32 {dst}, {dst}, s34')
    if ROT: rot_r('s3')
    a(f's_cmp_lg_u32 {sRole}, 0\ns_cbranch_scc1 A_ld')
    XS = lambda c: c*8192
    WQ0 = 49152
    W2L = 49152
    vXF, vAW, vSst, vX1, vST, vRes, vBP, vBS, vW2, vW2b = 12, 16, 18, 19, 20, 21, 22, 23, 24, 25
    XF, WF, ACC, CS, MA, SEL, CA, CB = 160, 32, 64, 96, 104, 108, 112, 120
    sSst, sSld, sX1, sST, sFS1, sFS2, sOwn, sGX = 's56', 's57', 's58', 's59', 's60', 's61', 's62', 's63'
    a(f'''v_and_b32 v4, 31, v1
    v_lshrrev_b32 v5, 5, v1
    v_bfe_u32 v6, v1, 1, 3
    v_xor_b32 v6, v6, v5
    v_lshlrev_b32 v4, 7, v4
    v_lshl_add_u32 v4, v6, 4, v4
    s_lshl_b32 s35, {sP}, 12
    v_add_u32 v{vXF}, s35, v4
    v_xor_b32 v{vXF+1}, 32, v{vXF}
    v_xor_b32 v{vXF+2}, 64, v{vXF}
    v_xor_b32 v{vXF+3}, 96, v{vXF}
    v_bfe_u32 v6, v1, 2, 2
    v_lshl_add_u32 v4, v5, 3, v6
    v_lshlrev_b32 v4, 7, v4
    v_lshrrev_b32 v7, 1, v6
    v_xor_b32 v7, {sHF}, v7
    v_lshl_add_u32 v4, v7, 6, v4
    v_bfe_u32 v7, v1, 4, 1
    v_lshl_add_u32 v4, v7, 5, v4
    v_and_b32 v8, 1, v1
    v_lshl_add_u32 v4, v8, 4, v4
    v_bfe_u32 v8, v1, 1, 1
    v_lshl_add_u32 v4, v8, 3, v4
    v_add_u32 v{vAW}, {WQ0}, v4
    v_add_u32 v{vAW+1}, {WQ0 + 65536}, v4
    v_bfe_u32 v8, v1, 2, 1
    v_cmp_eq_u32 vcc, v8, v7
    v_mov_b32 v7, 0x3f803f80
    s_mov_b32 s34, {WE}
    s_waitcnt lgkmcnt(0)
    s_load_dword {sTag}, s[32:33], s34''')
    for k in range(4): a(f'v_cndmask_b32 v{SEL+k}, 0, v7, vcc')
    srd(a, 16, 32, WS_SIZE); srd(a, 24, 38, 1572864)
    a(f'''v_lshlrev_b32 v{vSst}, 9, v5
    v_lshl_add_u32 v{vSst}, v{G8}, 6, v{vSst}
    v_bfe_u32 v6, v1, 3, 2
    v_lshl_add_u32 v{vSst}, v6, 4, v{vSst}
    s_mul_i32 s34, {sG}, 24576
    s_lshl_b32 s35, {sP}, 10
    s_add_u32 s34, s34, s35
    s_add_u32 {sSld}, s34, {WS_S}
    s_lshl_b32 s35, {sJ}, 1
    s_add_u32 s35, s35, {sHF}
    s_lshl_b32 {sOwn}, s35, 2
    s_lshl_b32 s3{6}, s35, 11
    s_add_u32 {sSst}, {sSld}, s36
    s_lshl_b32 s34, {sG}, 1
    s_add_u32 s34, s34, {sP}
    s_lshl_b32 s34, s34, 7
    s_add_u32 {sFS1}, s34, {FS1}
    s_add_u32 {sFS2}, s34, {FS2}''')
    a(f'''v_bfe_u32 v6, v1, 2, 3
    v_and_b32 v7, 3, v1
    s_mov_b32 s34, 196608
    v_mul_lo_u32 v{vX1}, v6, s34
    v_lshl_add_u32 v{vX1}, v5, 8, v{vX1}
    v_lshl_add_u32 v{vX1}, v7, 4, v{vX1}
    v_mul_u32_u24 v{vST}, 49152, v6
    v_lshl_add_u32 v{vST}, v7, 4, v{vST}
    v_lshl_add_u32 v8, v7, 3, v6
    v_lshlrev_b32 v{vBP}, 2, v8
    v_lshlrev_b32 v{vBS}, 5, v7
    v_lshl_add_u32 v{vBS}, v5, 4, v{vBS}
    v_bfe_u32 v4, v8, 1, 3
    s_lshl_b32 s34, {sHF}, 2
    v_xor_b32 v4, s34, v4
    v_xor_b32 v4, v4, v5
    v_lshlrev_b32 v4, 4, v4
    v_lshl_add_u32 v4, v8, 7, v4''')
    if ROT: a(f's_add_u32 s34, {sJ}, 6\ns_sub_u32 s34, s34, s3\ns_cmp_ge_u32 s34, 6\ns_cselect_b32 s36, 6, 0\ns_sub_u32 s34, s34, s36\ns_lshl_b32 s34, s34, 13')
    else: a(f's_lshl_b32 s34, {sJ}, 13')
    a(f'''s_lshl_b32 s36, {sP}, 12
    s_add_u32 s34, s34, s36
    v_add_u32 v{vRes}, s34, v4
    s_lshl_b32 s34, {sHF}, 10
    s_add_u32 s34, s34, {W2L}
    v_add_u32 v{vW2}, s34, v{vL16}
    v_and_b32 v4, 31, v1
    v_lshlrev_b32 v4, 2, v4
    s_lshl_b32 s34, {sHF}, 7
    s_add_u32 s34, s34, {W2L + 49152}
    v_add_u32 v4, s34, v4
    v_lshl_add_u32 v{vW2b}, v5, 10, v4
    v_add_u32 v{vW2b+1}, 2048, v4
    s_lshr_b32 s34, {sG}, 1
    s_mul_i32 s34, s34, 12288
    s_lshl_b32 s36, s35, 10
    s_add_u32 s34, s34, s36
    s_and_b32 s36, {sG}, 1
    s_lshl_b32 s36, s36, 7
    s_add_u32 s34, s34, s36
    s_lshl_b32 s36, {sP}, 6
    s_add_u32 s34, s34, s36
    s_add_u32 {sX1}, s34, {WS_X1}
    s_lshl_b32 s34, s35, 12
    s_add_u32 s34, s34, s36
    s_lshl_b32 s36, {sG}, 7
    s_add_u32 s34, s34, s36
    s_add_u32 {sST}, s34, {WS_ST}
    s_mul_i32 s34, {sG}, 6
    s_add_u32 s34, s34, {sJ}
    s_lshl_b32 {sGX}, s34, 7
    s_mov_b32 s38, {fbits(-1/384)}
    s_mov_b32 s36, 0xffff0000
    s_mov_b32 s64, -1
    s_mov_b32 s65, 0
    s_mov_b32 s66, 0xff00ff00
    s_mov_b32 s67, 0xff00ff00
    s_mov_b32 s68, 0xffff0000
    s_mov_b32 s69, 0xffff0000''')
    for r in range(CA, CA + 8):
        if (r - CA) % 4: a(f'v_mov_b32 v{r}, 0')
    a('s_waitcnt lgkmcnt(0)')
    tag_ready(a)
    a('s_barrier')
    stamp(a, 'mm0')
    def rd(ks):
        c, k4 = ks >> 2, ks & 3
        a(f'ds_read_b128 {vr(XF+4*ks,4)}, v{vXF+k4} offset:{XS(c)}', tag=f'f{ks}')
        return [(c, k4, P) for P in range(2)]
    def trd(ks, P):
        c, k4 = ks >> 2, ks & 3
        off = c*16384 + P*8192 + k4*2048
        base = vAW + (off >> 16); off &= 0xffff
        d = WF + (ks % 3)*8 + P*4
        a(f'ds_read_b64_tr_b16 {vr(d,2)}, v{base} offset:{off}\nds_read_b64_tr_b16 {vr(d+2,2)}, v{base} offset:{off+512}', tag=f'f{ks}')
    def pre(ks, part):
        if part == 0: rd(ks); trd(ks, 0)
        else: trd(ks, 1)
    for ks in range(2): pre(ks, 0); pre(ks, 1)
    def m16(d, b, first): a(f'v_mfma_f32_16x16x32_bf16 {vr(d,4)}, {vr(SEL,4)}, {b}, {"0" if first else vr(d,4)}')
    for ks in range(24):
        bar = (ks & 3) == 3 and ks < 23
        if bar:
            if ks == 15: a.wait_all(lg=False)
            a('s_barrier')
            if ks in (7, 15, 19): stamp(a, f'c{(ks+1)>>2}')
            pre(ks + 1, 0); pre(ks + 1, 1)
        a.wait(lg=f'f{ks}')
        wf = lambda P: vr(WF + (ks % 3)*8 + P*4, 4)
        main = lambda P: a(f'v_mfma_f32_32x32x16_bf16 {vr(ACC+16*P,16)}, {wf(P)}, {vr(XF+4*ks,4)}, {"0" if ks == 0 else vr(ACC+16*P,16)}')
        nx = ks + 2 if (ks & 3) != 2 and ks + 2 < 24 else None
        if ks < 23:
            for P in range(2):
                main(P)
                if nx: pre(nx, P)
                m16(CS + 4*P, wf(P), ks == 0)
            m16(MA, vr(XF+4*ks, 4), ks == 0)
        else:
            m16(MA, vr(XF+4*ks, 4), False)
            for P in range(2): m16(CS + 4*P, wf(P), False)
            main(0)
            main(1)
            a(f'''v_mul_f32 v{MA}, s38, v{MA}
            v_cvt_pk_bf16_f32 v{CA}, v{CS}, v{CS}
            v_cvt_pk_bf16_f32 v{CA+4}, v{CS+4}, v{CS+4}
            v_cvt_pk_bf16_f32 v{MA+1}, v{MA}, v{MA}
            v_and_b32 v{CA}, s36, v{CA}
            v_and_b32 v{CA+4}, s36, v{CA+4}
            v_cndmask_b32 v{CB}, 0, v{MA+1}, s[64:65]
            v_sub_f32 v{CA}, v{CS}, v{CA}
            v_sub_f32 v{CA+4}, v{CS+4}, v{CA+4}
            v_mov_b32 v{CB+1}, v{CB}
            v_cvt_pk_bf16_f32 v{CA}, v{CS}, v{CA}
            v_cvt_pk_bf16_f32 v{CA+4}, v{CS+4}, v{CA+4}
            v_mov_b32 v{CB+2}, v{CB}
            v_mov_b32 v{CB+3}, v{CB}''')
            for P in range(2): a(f'v_mfma_f32_32x32x16_bf16 {vr(ACC+16*P,16)}, {vr(CA+4*P,4)}, {vr(CB,4)}, {vr(ACC+16*P,16)}')
    stamp(a, 'mmend')
    PQ, PK, SC, SS, SQ, CM = 32, 40, 64, 96, 100, 124
    a(f'v_mov_b32 v{SQ}, 0\nv_mov_b32 v{SQ+1}, 0')
    for k in range(4): a(f'v_mov_b32 v{CM+k}, v{MA+1}')
    for P, d in ((0, PQ), (1, PK)):
        for i in range(8): a(f'v_cvt_pk_bf16_f32 v{d+i}, v{ACC+16*P+2*i}, v{ACC+16*P+2*i+1}')
    a(f'v_mfma_f32_32x32x16_bf16 {vr(SC,16)}, {vr(PK,4)}, {vr(PQ,4)}, 0')
    a(f'v_mfma_f32_32x32x16_bf16 {vr(SC,16)}, {vr(PK+4,4)}, {vr(PQ+4,4)}, {vr(SC,16)}')
    RAW = 48
    a(f'v_xor_b32 v4, 32, v{vRes}\nds_read_b128 {vr(RAW,4)}, v{vRes}\nds_read_b128 {vr(RAW+4,4)}, v4', tag='raw')
    for e in range(4): a(f'v_cndmask_b32 v{SC+e}, v{SC+e}, v{SC+4+e}, s[66:67]\nv_cndmask_b32 v{SC+8+e}, v{SC+8+e}, v{SC+12+e}, s[66:67]')
    for e in range(4): a(f'v_cndmask_b32 v{SS+e}, v{SC+e}, v{SC+8+e}, s[68:69]')
    a(f'buffer_store_dwordx4 {vr(SS,4)}, v{vSst}, {SWS}, {sSst} offen {WT if opt("swt", 0) else ""}')
    stamp(a, 'stored')
    ND0 = opt('nd0', 72)
    for i in range(ND0): a(f'v_dot2c_f32_bf16 v{SQ+(i&1)}, v{XF+i}, v{XF+i}')
    a.wait_all(lg=False)
    flag(a, sOwn, sFS1, sFast, 4, '')
    stamp(a, 'flag')
    for i in range(ND0, 96): a(f'v_dot2c_f32_bf16 v{SQ+(i&1)}, v{XF+i}, v{XF+i}')
    RR, RES = 56, 80
    a(f'''s_mov_b32 s37, {fbits(1e-5)}
    v_mul_f32 v{SQ+2}, v{MA}, v{MA}
    v_add_u32 v5, 4, v{vBS}
    v_add_f32 v{SQ}, v{SQ}, v{SQ+1}
    v_mov_b32 v{SQ+1}, v{SQ}
    v_add_u32 v6, 8, v{vBS}
    v_add_u32 v7, 12, v{vBS}
    v_permlane32_swap_b32 v{SQ}, v{SQ+1}
    v_add_f32 v{SQ}, v{SQ}, v{SQ+1}
    v_fma_f32 v{SQ}, -v{SQ}, s38, -v{SQ+2}
    v_max_f32 v{SQ}, 0, v{SQ}
    v_add_f32 v{SQ}, s37, v{SQ}
    v_rsq_f32 v{SQ}, v{SQ}''')
    a(f'ds_bpermute_b32 v{RR+4}, v{vBP}, v{SQ}\nds_bpermute_b32 v{RR}, v{vBS}, v{SQ}', tag='bp')
    for e in range(1, 4): a(f'ds_bpermute_b32 v{RR+e}, v{4+e}, v{SQ}', tag='bp')
    a.wait(lg='raw')
    for d in range(8): a(f'v_lshlrev_b32 v{RES+2*d}, 16, v{RAW+d}\nv_and_b32 v{RES+2*d+1}, s36, v{RAW+d}')
    a.wait(lg='bp')
    a(f'v_mul_f32 v{RR+4}, {fbits(SCALE2)}, v{RR+4}')
    def repubA():
        a(f's_add_u32 s34, {sSst}, {SLOW}\nbuffer_store_dwordx4 {vr(SS,4)}, v{vSst}, {SWS}, s34 offen sc0 sc1')
    lsync(a, 12, False, sFS1, sFS2, sOwn, (lambda: None) if opt('swt', 0) else repubA, 32, 0 if opt('swt', 0) else SLOW)
    stamp(a, 'synced')
    SP, Y, WR = 112, 64, 32
    SPR = [128, 132, 136, 140, 144, 148, 152, 156, 112, 116, 96, 100]
    S0 = SPR[0]; T0 = SPR[1]
    sm = []
    def w2rd(ks):
        if ks < 24: a(f'ds_read_b128 {vr(WR+4*(ks%6),4)}, v{vW2} offset:{ks*2048}', tag=f'y{ks}')
        else:
            for k in range(2): a(f'ds_read2st64_b32 {vr(WR+4*(ks%6)+2*k,2)}, v{vW2b+ks-24} offset0:{2*k} offset1:{2*k+1}', tag=f'y{ks}')
    YH = opt('yh', 12)
    def ystep(ks, lim=26):
        a.wait(lg=f'y{ks}')
        xa = vr(XF+4*ks, 4) if ks < 24 else vr(CM if ks == 24 else CB, 4)
        a(f'v_mfma_f32_32x32x16_bf16 {vr(Y,16)}, {xa}, {vr(WR+4*(ks%6),4)}, {"0" if ks == 0 else vr(Y,16)}')
        if ks + 5 < lim: w2rd(ks + 5)
    a(f's_add_u32 {sSld}, {sSld}, {sDelta}\ns_mul_i32 s34, {sHF}, 12288\ns_add_u32 {sSld}, {sSld}, s34')
    for i in range(6):
        if i and i % 2 == 0: a(f's_add_u32 {sSld}, {sSld}, 4096')
        a(f'buffer_load_dwordx4 {vr(SPR[i],4)}, v{vL16}, {SWS}, {sSld} offen offset:{(i&1)*2048} sc1', tag=f's{i}')
    a(f's_add_u32 s34, {sM1K}, {LSX}\nv_add_u32 v4, s34, v{vL16}\nv_xor_b32 v5, 1024, v4')
    if YH:
        a('s_barrier')
        stamp(a, 'w2h')
        for ks in range(5): w2rd(ks)
        for ks in range(YH): ystep(ks, YH)
    for i in range(1, 6):
        a.wait(vm=f's{i}')
        for d in (0, 2): a(f'v_pk_add_f32 {vr(S0+d,2)}, {vr(S0+d,2)}, {vr(SPR[i]+d,2)}')
    a(f'ds_write_b128 v4, {vr(S0,4)}\ns_waitcnt lgkmcnt(0)'); a.lg = []
    stamp(a, 'ssum')
    a('s_barrier')
    stamp(a, 'w2in')
    a(f'ds_read_b128 {vr(T0,4)}, v5', tag='sx')
    sm.append(('l', 'sx'))
    for d in range(4): sm.append(f'v_add_f32 v{S0+d}, v{S0+d}, v{T0+d}')
    for ks in range(YH, YH + 5): w2rd(ks)
    for d in range(4): sm.append(f'v_mul_f32 v{S0+d}, v{S0+d}, v{RR+d}')
    sm += [f'v_max_f32 v{T0}, v{S0}, v{S0+1}', f'v_max3_f32 v{T0}, v{T0}, v{S0+2}, v{S0+3}', f'v_mov_b32 v{T0+1}, v{T0}', 's_mov_b32 s64, 0x11111111', 's_mov_b32 s65, 0x11111111',
           f'v_permlane32_swap_b32 v{T0}, v{T0+1}', f'v_max_f32 v{T0}, v{T0}, v{T0+1}', f'v_mul_f32 v{T0}, v{RR+4}, v{T0}']
    for d in range(4): sm.append(f'v_fma_f32 v{S0+d}, v{S0+d}, v{RR+4}, -v{T0}')
    for d in range(4): sm.append(f'v_exp_f32 v{S0+d}, v{S0+d}')
    sm += [f'v_add_f32 v{T0}, v{S0}, v{S0+1}', f'v_add_f32 v{T0+1}, v{S0+2}, v{S0+3}', f'v_add_f32 v{T0}, v{T0}, v{T0+1}', f'v_mov_b32 v{T0+1}, v{T0}']
    sm += [f'v_mul_f32 v{S0+d}, v{S0+d}, v{RR+d}' for d in range(2)] + [f'v_permlane32_swap_b32 v{T0}, v{T0+1}', f'v_add_f32 v{T0}, v{T0}, v{T0+1}', f'v_rcp_f32 v{T0}, v{T0}']
    sm += [f'v_mul_f32 v{S0+d}, v{S0+d}, v{RR+d}' for d in range(2, 4)]
    for d in range(4): sm.append(f'v_mul_f32 v{S0+d}, v{S0+d}, v{T0}')
    PB = 136
    sm += [f'v_cvt_pk_bf16_f32 v{T0}, v{S0}, v{S0+1}', f'v_cvt_pk_bf16_f32 v{T0+1}, v{S0+2}, v{S0+3}']
    for b in range(4):
        sm += [f'v_cndmask_b32 v{PB+2*b}, 0, v{T0}, s[64:65]', f'v_cndmask_b32 v{PB+2*b+1}, 0, v{T0+1}, s[64:65]']
        if b < 3: sm.append('s_lshl_b64 s[64:65], s[64:65], 1')
    S2 = 104
    sm += [f'v_mov_b32 v{S2}, 0', f'v_mov_b32 v{S2+1}, 0', 's_mov_b32 s36, 0x3f803f80']
    def drain(n):
        while n > 0 and sm:
            x = sm.pop(0)
            if isinstance(x, tuple): a.wait(vm=x[1]) if x[0] == 'w' else a.wait(lg=x[1])
            else: a(x); n -= 1
    for ks in range(YH, 26):
        ystep(ks)
        if ks >= YH + 1: drain(5 if YH else 4)
    drain(1000)
    stamp(a, 'ygemm')
    YP, XO = 144, 152
    for i in range(8): a(f'v_cvt_pk_bf16_f32 v{YP+i}, v{Y+2*i}, v{Y+2*i+1}')
    for k in range(2): a(f'v_mfma_f32_32x32x16_bf16 {vr(RES,16)}, {vr(YP+4*k,4)}, {vr(PB+4*k,4)}, {vr(RES,16)}')
    for i in range(8): a(f'v_cvt_pk_bf16_f32 v{XO+i}, v{RES+2*i}, v{RES+2*i+1}')
    a(f'buffer_store_dwordx4 {vr(XO,4)}, v{vX1}, {SWS}, {sX1} offen {WT}')
    a(f'buffer_store_dwordx4 {vr(XO+4,4)}, v{vX1}, {SWS}, {sX1} offen offset:512 {WT}')
    for i in range(8): a(f'v_dot2c_f32_bf16 v{S2}, s36, v{XO+i}\nv_dot2c_f32_bf16 v{S2+1}, v{XO+i}, v{XO+i}')
    a(f'''v_mov_b32 v{S2+2}, v{S2}
    v_mov_b32 v{S2+3}, v{S2+1}
    v_permlane32_swap_b32 v{S2}, v{S2+2}
    v_permlane32_swap_b32 v{S2+1}, v{S2+3}
    v_add_f32 v{S2}, v{S2}, v{S2+2}
    v_add_f32 v{S2+1}, v{S2+1}, v{S2+3}
    s_mov_b32 exec_hi, 0
    buffer_store_dwordx4 {vr(S2,4)}, v{vST}, {SWS}, {sST} offen {WT}
    s_mov_b32 exec_hi, -1
    s_mov_b32 s34, {GX}''')
    stamp(a, 'x1st')
    a.wait_all()
    a('s_barrier')
    flag_w0(a, sGX, 's34', 32)
    stamp(a, 'x1pub')
    a('s_branch P2_c')
    a.label('A_ld'); a.vm = []; a.lg = []
    vW, vXs, vP = 32, 36, 38
    sRx = ['s62', 's63', 's64', 's65', 's66', 's67']
    a(f'''s_mov_b32 s35, 196608
    v_mul_lo_u32 v{vXs}, v{T8}, s35
    v_lshrrev_b32 v4, 1, v{T8}
    v_xor_b32 v4, v4, v{G8}
    v_lshl_add_u32 v{vXs}, v4, 4, v{vXs}
    v_xor_b32 v{vXs+1}, 64, v{vXs}
    v_add_u32 v{vXs+1}, 768, v{vXs+1}
    s_lshl_b32 s34, {sG}, 3
    s_lshl_b32 s35, {sW}, 1
    s_add_u32 s34, s34, s35
    s_mul_i32 {sX}, s34, 768
    v_lshlrev_b32 v4, 1, v{T8}
    v_and_b32 v4, 4, v4
    v_xor_b32 v4, v4, v{G8}
    v_mul_u32_u24 v{vW}, 2304, v{T8}
    v_lshl_add_u32 v{vW}, v4, 4, v{vW}
    s_mul_i32 s68, {sW}, {16*2304}
    s_lshl_b32 s34, {sJ}, 7
    s_add_u32 s68, s68, s34''')
    for k in range(1, 4): a(f'v_add_u32 v{vW+k}, {(k>>1)*768 + (k&1)*18432}, v{vW}')
    for i in range(6):
        if ROT:
            a(f's_lshl_b32 s34, s3, 7\ns_add_u32 {sRx[i]}, s34, {sX}\ns_mul_i32 s34, s3, 147456\ns_add_u32 {sR[i]}, s34, s68')
            if i < 5: a('s_add_u32 s3, s3, 1\ns_cmp_ge_u32 s3, 6\ns_cselect_b32 s3, 0, s3')
        else: a(f's_add_u32 {sR[i]}, s68, {i*147456}\ns_add_u32 {sRx[i]}, {sX}, {i*128}')
    for i in range(2):
        a(f'''s_lshl_b32 s34, {sJ}, 3
        s_lshl_b32 s35, {sW}, 1
        s_add_u32 s34, s34, s35
        s_add_u32 s34, s34, {i}
        s_mul_i32 s35, s34, 43
        s_lshr_b32 s35, s35, 8
        s_mul_i32 s14, s35, 6
        s_sub_u32 s34, s34, s14
        s_lshl_b32 s34, s34, 10
        s_mul_i32 s35, s35, 196608
        s_add_u32 s34, s34, s35
        s_mul_i32 s35, {sG}, 6144
        s_add_u32 s{12+i}, s34, s35''')
    a(f's_mov_b32 s34, {WE}\ns_waitcnt lgkmcnt(0)\ns_load_dword {sTag}, s[32:33], s34')
    srd(a, 4, 20, 1572864); srd(a, 8, 22, 884736)
    def xpre():
        for i in range(2): a(f'buffer_load_dwordx4 v[{56+4*i}:{59+4*i}], v{vL16}, {SX}, s{12+i} offen')
    if opt('xp0', 0) == 1: xpre()
    def wdma(c):
        for th in range(2):
            a(f's_add_u32 m0, {sM}, {XS(c) + th*1024}\nbuffer_load_dwordx4 v{vXs+th}, {SX}, {sRx[c]} offen lds', tag=f'w{c}')
        for k in range(4):
            a(f's_add_u32 m0, {sM}, {WQ0 + c*16384 + (k>>1)*8192 + (k&1)*1024}\nbuffer_load_dwordx4 v{vW+k}, {SWQ}, {sR[c]} offen lds', tag=f'w{c}')
    NL = opt('nl', 2)
    for c in range(NL):
        wdma(c)
        if c == 0 and opt('xp0', 0) == 2: xpre()
        if c == 0: srd(a, 16, 32, WS_SIZE); srd(a, 24, 38, 1572864)
    a(f'''v_mul_u32_u24 v{vP}, 768, v1
    s_lshl_b32 s34, {sJ}, 7
    s_add_u32 s68, s34, {GW2}
    s_mul_i32 s69, {sJ}, 53248
    s_add_u32 s69, s69, {WS_W2}
    s_waitcnt lgkmcnt(0)''')
    tag_ready(a)
    for c in range(6):
        a.wait(vm=f'w{c}')
        if c in (0, 3, 5): stamp(a, f'L{c}')
        a('s_barrier')
        if c + NL < 6: wdma(c + NL)
        if c == opt('tlb', -1): pages(a)
        if c == opt('tpos', 3) and opt('touch', 1):
            a(f'''s_mul_i32 s34, {sG}, 24576
            s_lshl_b32 s35, {sJ}, 12
            s_add_u32 s34, s34, s35
            s_add_u32 s34, s34, {WS_S}
            s_add_u32 s34, s34, {sM1K}
            {"" if opt("swt", 0) else f"buffer_load_dwordx4 v[44:47], v{vL16}, {SWS}, s34 offen"}
            s_lshl_b32 s34, {sG}, 8
            s_add_u32 s34, s34, {FS1}
            v_lshlrev_b32 v48, 2, v1
            buffer_load_dword v49, v48, {SWS}, s34 offen
            s_lshl_b32 s34, {sXCD}, 9
            s_add_u32 s34, s34, {FC1}
            v_lshlrev_b32 v48, 3, v1
            buffer_load_dword v50, v48, {SWS}, s34 offen''')
    a(f's_mul_i32 s20, {sW}, 3')
    if ROT: rot_r('s3'); a('s_lshl_b32 s3, s3, 1\ns_add_u32 s3, s3, s20')
    else: a('s_mov_b32 s3, s20')
    a(f's_lshl_b32 s20, s20, 12\ns_add_u32 s20, s20, {W2L}')
    for k in range(3):
        a(f's_cmp_ge_u32 s3, 12\ns_cselect_b32 s34, 12, 0\ns_sub_u32 s3, s3, s34\ns_lshl_b32 s34, s3, 12\ns_add_u32 s{21+k}, s69, s34\ns_add_u32 s3, s3, 1')
    a(f's_add_u32 s69, s69, 49152\ns_add_u32 s69, s69, {sM1K}')
    if opt('tp', 9) == 0: touch2(a)
    if opt('w21', 1):
        a(f's_cmp_lg_u32 {sW}, 0\ns_cbranch_scc1 A_ld2')
        gpoll(a, 4, vP, 's68', 40)
        stamp(a, 'Lw2f')
        a(f's_sub_u32 s69, s69, 49152')
        for gi in range(13):
            if gi == 12: a(f's_add_u32 s68, s69, 49152')
            elif gi == 0: a('s_mov_b32 s68, s21\ns_sub_u32 s3, s21, s69')
            elif gi % 2 == 0: a('s_add_u32 s3, s3, 8192\ns_cmp_ge_u32 s3, 49152\ns_cselect_b32 s3, 0, s3\ns_add_u32 s68, s69, s3')
            else: a('s_add_u32 s68, s68, 4096')
            a(f's_mov_b32 m0, {W2L + gi*4096}')
            for k in range(4 if gi < 12 else 3): a(f'buffer_load_dwordx4 v{vL16}, {SWS}, s68 offen offset:{k*1024} sc1 lds', tag=f'h{gi}')
        if opt('yh', 12): a.wait(vm=f'h{opt("yh", 12)//2 - 1}')
        a.label('A_ld2')
        if opt('yh', 12): a('s_barrier')
    else:
        gpoll(a, 4, vP, 's68', 40)
        stamp(a, 'Lw2f')
        for k in range(3):
            a(f's_add_u32 m0, s20, {k*4096}')
            for q in range(4): a(f'buffer_load_dwordx4 v{vL16}, {SWS}, s{21+k} offen offset:{q*1024} sc1 lds')
        a(f's_add_u32 m0, {sM1K}, {W2L + 49152}\nbuffer_load_dwordx4 v{vL16}, {SWS}, s69 offen sc1 lds')
    a.wait_all()
    stamp(a, 'Lw2')
    a('s_barrier')
    wpoll(a)
    if opt('wearly', 0): wcopy(a)
    stamp(a, 'Lwi')
    a('s_barrier')
    stamp(a, 'Lbx')
    a('s_branch P2_l')
    a.label('K_pre'); a.vm = []; a.lg = []
    sS8, sIt, sJt, sA, sB, sMm, sT0, sLA, sLB = 's50', 's51', 's52', 's53', 's54', 's55', 's56', 's57', 's58'
    a(f'''s_mov_b32 {sS8}, {sI}
    s_mov_b32 s34, {WE}
    s_and_b32 s59, {sXCD}, 1
    s_lshr_b32 s60, {sXCD}, 1
    s_cmp_lt_u32 {sS8}, 3
    s_cbranch_scc1 W_id0
    s_mul_i32 s35, s60, 9
    s_mul_i32 s61, s59, 5
    s_add_u32 s35, s35, s61
    s_add_u32 s35, s35, {sS8}
    s_sub_u32 s35, s35, 3
    s_mul_i32 s61, s35, 43
    s_lshr_b32 s61, s61, 8
    s_mul_i32 s62, s61, 6
    s_sub_u32 {sJt}, s35, s62
    s_cmp_ge_u32 s61, 3
    s_cselect_b32 {sMm}, 1, 0
    s_mul_i32 s62, {sMm}, 3
    s_sub_u32 {sIt}, s61, s62
    s_add_u32 s62, {sS8}, s59
    s_cmp_ge_u32 s62, 8
    s_cselect_b32 {sMm}, 3, {sMm}
    s_branch W_id1''')
    a.label('W_id0')
    a(f'''s_mov_b32 {sMm}, 2
    s_mov_b32 {sIt}, s60
    s_mul_i32 {sJt}, s59, 3
    s_add_u32 {sJt}, {sJt}, {sS8}''')
    a.label('W_id1')
    a(f'''s_waitcnt lgkmcnt(0)
    s_load_dword {sTag}, s[32:33], s34''')
    srd(a, 16, 32, WS_SIZE); srd(a, 24, 38, 1572864)
    a(f'''s_cmp_eq_u32 {sMm}, 3
    s_cbranch_scc1 W_done
    s_cmp_lg_u32 {sRole}, 0
    s_cbranch_scc1 W_ld''')
    BB = 98304
    FA, FB, AC = 32, 48, 128
    vAr, vBr = 14, 18
    a(f'''v_and_b32 v2, 31, v1
    v_lshrrev_b32 v3, 5, v1
    v_and_b32 v4, 19, v2
    v_bfe_u32 v5, v2, 2, 1
    v_lshl_add_u32 v4, v5, 3, v4
    v_bfe_u32 v5, v2, 3, 1
    v_lshl_add_u32 v4, v5, 2, v4
    v_lshrrev_b32 v5, 3, v4
    v_mul_u32_u24 v5, 6144, v5
    v_and_b32 v6, 7, v4
    v_lshl_add_u32 v5, v6, 7, v5
    v_bfe_u32 v6, v4, 1, 3
    v_xor_b32 v6, v6, v3
    v_lshl_add_u32 v11, v6, 4, v5
    v_bfe_u32 v6, v1, 2, 2
    v_lshl_add_u32 v4, v3, 3, v6
    v_lshlrev_b32 v4, 7, v4
    v_lshrrev_b32 v7, 1, v6
    v_lshl_add_u32 v4, v7, 6, v4
    v_bfe_u32 v7, v1, 4, 1
    v_lshl_add_u32 v12, v7, 5, v4
    s_mov_b32 s37, 0x3f803f80''')
    def a_addr(swave):
        a(f's_mul_i32 s34, {swave}, 24576\nv_add_u32 v{vAr}, s34, v11')
        for k in range(1, 4): a(f'v_xor_b32 v{vAr+k}, {32*k}, v{vAr}')
    def stages(nv, breads):
        for jj in range(6):
            a('s_barrier')
            for k4 in range(4):
                a(f'ds_read_b128 {vr(FA+4*k4,4)}, v{vAr+k4} offset:{jj*1024}', tag=f'r{k4}')
                for v in range(nv): breads(jj, k4, v, FB + (k4*2+v)*4)
            for k4 in range(4):
                a.wait(lg=f'r{k4}')
                for v in range(nv):
                    cin = '0' if (jj == 0 and k4 == 0) else vr(AC+16*v, 16)
                    a(f'v_mfma_f32_32x32x16_bf16 {vr(AC+16*v,16)}, {vr(FA+4*k4,4)}, {vr(FB+(k4*2+v)*4,4)}, {cin}')
    def btr(jj, k4, v, d):
        o = jj*8192 + k4*2048
        a(f'ds_read_b64_tr_b16 {vr(d,2)}, v{vBr+v} offset:{o}\nds_read_b64_tr_b16 {vr(d+2,2)}, v{vBr+v} offset:{o+512}', tag=f'r{k4}')
    def brow(jj, k4, v, d): a(f'ds_read_b128 {vr(d,4)}, v{vBr+k4} offset:{v*24576+jj*1024}', tag=f'r{k4}')
    def colsum(v, src, dst):
        a(f'v_mov_b32 v24, 0')
        for i in range(8): a(f'v_dot2c_f32_bf16 v24, s37, v{src+i}')
        a(f'''v_mov_b32 v26, v24
        v_permlane32_swap_b32 v24, v26
        v_add_f32 v26, v26, v24
        v_cvt_pk_bf16_f32 v27, v26, v26
        v_lshlrev_b32 v27, 16, v27
        v_sub_f32 v27, v26, v27
        v_cvt_pk_bf16_f32 v{dst}, v26, v27''')
    a_addr(sW)
    a(f's_cmp_lg_u32 {sMm}, 2\ns_cbranch_scc1 W_c0')
    a(f'''s_min_u32 s59, {sW}, 2''')
    a_addr('s59')
    a(f'''v_and_b32 v7, 1, v1
    v_lshl_add_u32 v4, v7, 4, v12
    v_bfe_u32 v7, v1, 1, 1
    v_lshl_add_u32 v4, v7, 3, v4
    v_add_u32 v{vBr}, {BB}, v4
    v_xor_b32 v{vBr+1}, 64, v{vBr}
    s_mul_i32 s34, {sIt}, 3
    s_add_u32 s34, s34, s59
    s_mul_i32 s35, {sJt}, 53248
    s_add_u32 s35, s35, {WS_W2}
    s_lshl_b32 s36, s34, 12
    s_add_u32 s61, s35, s36
    s_lshl_b32 s36, s34, 8
    s_add_u32 s35, s35, s36
    s_add_u32 s62, s35, 49152
    v_lshlrev_b32 v30, 2, v1
    s_mul_i32 s63, {sIt}, 6
    s_add_u32 s63, s63, {sJt}
    s_lshl_b32 s63, s63, 7
    s_mov_b32 s64, {GW2}''')
    stages(2, btr)
    stamp(a, 'pst')
    a(f's_cmp_eq_u32 {sW}, 3\ns_cbranch_scc1 W_c4')
    for v in range(2):
        for i in range(8): a(f'v_cvt_pk_bf16_f32 v{32+8*v+i}, v{AC+16*v+2*i}, v{AC+16*v+2*i+1}')
        a(f'buffer_store_dwordx4 {vr(32+8*v,4)}, v{vL16}, {SWS}, s61 offen offset:{v*1024} {WT}\nbuffer_store_dwordx4 {vr(36+8*v,4)}, v{vL16}, {SWS}, s61 offen offset:{2048+v*1024} {WT}')
    for v in range(2): colsum(v, 32+8*v, 28+v)
    a('s_mov_b32 exec_hi, 0')
    for v in range(2): a(f'buffer_store_dword v{28+v}, v30, {SWS}, s62 offen offset:{v*128} {WT}')
    a('s_mov_b32 exec_hi, -1')
    a.label('W_c4')
    a.wait_all()
    tag_ready(a)
    a('s_barrier')
    flag_w0(a, 's63', 's64', 48)
    stamp(a, 'w2pub')
    a('s_branch W_done2')
    a.label('W_c0'); a.lg = []; a.vm = []
    a(f's_cmp_eq_u32 {sMm}, 1\ns_cbranch_scc1 W_c1')
    a(f'''v_lshrrev_b32 v5, 3, v2
    v_mul_u32_u24 v5, 6144, v5
    v_and_b32 v6, 7, v2
    v_lshl_add_u32 v5, v6, 7, v5
    v_bfe_u32 v6, v2, 1, 3
    v_xor_b32 v6, v6, v3
    v_lshl_add_u32 v5, v6, 4, v5
    v_add_u32 v{vBr}, {BB}, v5''')
    for k in range(1, 4): a(f'v_xor_b32 v{vBr+k}, {32*k}, v{vBr}')
    stages(2, brow)
    a('s_branch W_c2')
    a.label('W_c1'); a.lg = []
    a(f'''v_and_b32 v7, 3, v1
    v_lshl_add_u32 v4, v7, 3, v12
    v_add_u32 v{vBr}, {BB}, v4
    v_xor_b32 v{vBr+1}, 64, v{vBr}''')
    stages(2, btr)
    a.label('W_c2')
    a(f'''s_mul_i32 s34, {sMm}, 24
    s_lshl_b32 s35, {sJt}, 2
    s_add_u32 s34, s34, s35
    v_bfe_u32 v4, v1, 4, 1
    v_add_u32 v4, s34, v4
    v_and_b32 v7, 15, v1
    v_lshlrev_b32 v7, 4, v7
    s_lshl_b32 s35, {sIt}, 2
    s_add_u32 s35, s35, {sW}
    s_mul_i32 s35, s35, 3072
    s_add_u32 s35, s35, {WS_W}
    s_lshl_b32 s36, {sIt}, 2
    s_add_u32 s36, s36, {sW}
    s_mul_i32 s36, s36, 192
    s_add_u32 s36, s36, {WS_W + 12*3072}''')
    for v in range(2):
        a(f'''v_add_u32 v5, {2*v}, v4
        v_mul_u32_u24 v6, 43, v5
        v_lshrrev_b32 v6, 7, v6
        v_mul_u32_u24 v8, 3, v6
        v_sub_u32 v5, v5, v8
        v_mul_u32_u24 v6, 39936, v6
        v_lshl_add_u32 v{20+v}, v5, 6, v6
        v_lshl_add_u32 v6, v5, 10, v6
        v_add_u32 v6, v6, v7
        v_lshl_add_u32 v{22+v}, v3, 8, v6
        v_lshrrev_b32 v6, 2, v7
        v_add_u32 v{20+v}, v{20+v}, v6''')
        for i in range(8): a(f'v_cvt_pk_bf16_f32 v{32+8*v+i}, v{AC+16*v+2*i}, v{AC+16*v+2*i+1}')
        a(f'buffer_store_dwordx4 {vr(32+8*v,4)}, v{22+v}, {SWS}, s35 offen {WT}')
        a(f'buffer_store_dwordx4 {vr(36+8*v,4)}, v{22+v}, {SWS}, s35 offen offset:512 {WT}')
        colsum(v, 32+8*v, 28+v)
    a('s_mov_b32 exec_hi, 0')
    for v in range(2): a(f'buffer_store_dword v{28+v}, v{20+v}, {SWS}, s36 offen {WT}')
    a('s_mov_b32 exec_hi, -1')
    a('s_branch W_done')
    a.label('W_ld'); a.vm = []; a.lg = []
    vA0, vBo = 12, 14
    a(f'''v_lshrrev_b32 v4, 1, v{T8}
    v_xor_b32 v4, v4, v{G8}
    v_mul_u32_u24 v5, 2304, v{T8}
    v_lshl_add_u32 v{vA0}, v4, 4, v5
    v_xor_b32 v{vA0+1}, 64, v{vA0}
    v_lshlrev_b32 v4, 1, v{T8}
    v_and_b32 v4, 4, v4
    v_xor_b32 v4, v4, v{G8}
    v_mul_u32_u24 v5, 768, v{T8}
    v_lshl_add_u32 v{vBo}, v4, 4, v5''')
    sLn = ['s59', 's60', 's61', 's62', 's63', 's64']; sLb = ['s65', 's66', 's67', 's68', 's69', 's3']
    def lstages(nra, mode):
        if opt('prot', 1) and (nra == 3 or opt('protw', 1)): a(f's_mul_i32 s34, {sIt}, 3\ns_lshr_b32 s34, s34, 1\ns_add_u32 s34, s34, {sJt}')
        else: a('s_mov_b32 s34, 0')
        for jj in range(6):
            a(f's_cmp_ge_u32 s34, 6\ns_cselect_b32 s35, 6, 0\ns_sub_u32 s34, s34, s35\ns_lshl_b32 s35, s34, 7\ns_add_u32 {sLn[jj]}, {sA}, s35')
            if mode == 1: a(f's_mul_i32 s35, s34, {64*768}')
            a(f's_add_u32 {sLb[jj]}, {sB}, s35\ns_add_u32 s34, s34, 1')
        def issue(jj):
            for r in range(nra):
                a(f'''s_add_u32 {sT0}, {sLn[jj]}, {r*8*2304}
                s_add_u32 m0, {sLA}, {(r*6+jj)*1024}
                buffer_load_dwordx4 v{vA0+(r&1)}, {SWQ}, {sT0} offen lds''', tag=f'p{jj}')
            for r in range(2):
                if mode == 0:
                    a(f'''s_add_u32 {sT0}, {sLb[jj]}, {r*8*2304}
                    s_add_u32 m0, {sLB}, {BB + (r*6+jj)*1024}
                    buffer_load_dwordx4 v{vA0+r}, {SWQ}, {sT0} offen lds''', tag=f'p{jj}')
                else:
                    a(f'''s_add_u32 {sT0}, {sLb[jj]}, {r*8*768}
                    s_add_u32 m0, {sLB}, {BB + jj*8192 + r*1024}
                    buffer_load_dwordx4 v{vBo}, {SWO}, {sT0} offen lds''', tag=f'p{jj}')
        n0 = opt('pn0', 3) if nra == 3 else opt('pn0w', 3)
        for jj in range(n0): issue(jj)
        for jj in range(6):
            a.wait(vm=f'p{jj}')
            if jj in (0, 3, 5) and nra == 3: stamp(a, f'Lp{jj}')
            a('s_barrier')
            if jj + n0 < 6: issue(jj + n0)
    if opt('tlb', -1) >= 0: pages(a)
    a(f's_cmp_lg_u32 {sMm}, 2\ns_cbranch_scc1 W_l0')
    srd(a, 8, 22, 884736); srd(a, 12, 28, 294912)
    a(f'''s_lshl_b32 s34, {sIt}, 2
    s_add_u32 s34, s34, {sW}
    s_mul_i32 {sA}, s34, {24*2304}
    s_add_u32 {sA}, {sA}, 1536
    s_mul_i32 {sLA}, {sW}, 18432
    s_mul_i32 {sB}, {sW}, {16*768}
    s_lshl_b32 s34, {sJt}, 7
    s_add_u32 {sB}, {sB}, s34
    s_lshl_b32 {sLB}, {sW}, 11
    s_and_b32 s34, {sW}, 1
    s_lshl_b32 s34, s34, 6
    v_xor_b32 v{vA0}, s34, v{vA0}
    v_xor_b32 v{vA0+1}, s34, v{vA0+1}''')
    lstages(3, 1)
    a('s_branch W_done')
    a.label('W_l0'); a.vm = []
    srd(a, 8, 30, 884736); srd(a, 12, 36, 294912)
    a(f'''s_lshl_b32 s34, {sIt}, 2
    s_add_u32 s34, s34, {sW}
    s_mul_i32 {sA}, s34, {32*2304}
    s_mul_i32 s35, {sMm}, 1536
    s_add_u32 {sA}, {sA}, s35
    s_mul_i32 {sLA}, {sW}, 24576
    s_cmp_eq_u32 {sMm}, 1
    s_cbranch_scc1 W_l1
    s_lshl_b32 s34, {sJt}, 2
    s_add_u32 s34, s34, {sW}
    s_mul_i32 {sB}, s34, {16*2304}
    s_add_u32 {sB}, {sB}, 768
    s_mul_i32 {sLB}, {sW}, 12288''')
    lstages(4, 0)
    a('s_branch W_done')
    a.label('W_l1'); a.vm = []
    a(f'''s_mul_i32 {sB}, {sW}, {16*768}
    s_lshl_b32 s34, {sJt}, 7
    s_add_u32 {sB}, {sB}, s34
    s_lshl_b32 {sLB}, {sW}, 11''')
    lstages(4, 1)
    a.label('W_done'); a.vm = []; a.lg = []
    a.wait_all()
    tag_ready(a)
    a(f'''s_barrier
    s_cmp_lg_u32 {sRole}, 0
    s_cbranch_scc1 W_done3''')
    a.label('W_done2')
    a(f'''
    s_lshl_b32 s34, {sS8}, 3
    s_add_u32 s34, s34, {sXCD}
    s_lshl_b32 s34, s34, 7
    s_mov_b32 s35, {GW}''')
    flag_w0(a, 's34', 's35', 32)
    stamp(a, 'wpub')
    hp_t0(a)
    if opt('tp', 9) == 3:
        a(f'''s_lshl_b32 s34, {sS8}, 2
        s_add_u32 s34, s34, {sW}
        s_mul_i32 s35, s34, 6656
        s_mul_i32 s36, {sXCD}, 212992
        s_add_u32 s35, s35, s36
        s_add_u32 s35, s35, {WS_Q}
        s_mul_i32 s36, s34, 6144
        s_mul_i32 s37, {sXCD}, 196608
        s_add_u32 s36, s36, s37
        s_add_u32 s36, s36, {WS_VP}''')
        for sb, n in (('s35', 7), ('s36', 6)):
            for i in range(n):
                if i == 4: a(f's_add_u32 {sb}, {sb}, 4096')
                a(f'buffer_load_dwordx4 v[64:67], v{vL16}, {SWS}, {sb} offen offset:{(i&3)*1024}')
        a(f's_lshl_b32 s34, {sXCD}, 9\ns_add_u32 s34, s34, {FC1}\nv_lshlrev_b32 v68, 3, v1\nbuffer_load_dword v64, v68, {SWS}, s34 offen')
        a.vm = []
    def wd3():
        a.label('W_done3')
        if opt('tp', 9) == 0: touch2(a)
        wpoll(a)
        if opt('wearly', 0): wcopy(a)
        a('s_branch P2_l')
    TAIL.append(wd3)
    import v12b
    v12b.phase2(a, globals())
    a.label('K_end')
    a('s_endpgm')
    a.cond = True
    k = 0
    while k < len(TAIL): a.vm = []; a.lg = []; TAIL[k](); k += 1
    return a

KNAME = 'standalone__video_timesformer__vision_kernel'
if __name__ == '__main__':
    out = sys.argv[1]
    a = build()
    head = open('standalone__video_timesformer__vision.s.ref').read().split('; Override launch')[0]
    s = head + '; @launch grid=(256,1,1) block=(512,1,1) lds=151552\n.amdgcn_target "amdgcn-amd-amdhsa--gfx950"\n.text\n'
    s += f'.globl {KNAME}\n.p2align 8\n.type {KNAME},@function\n{KNAME}:\n' + a.text()
    s += f'''.fill 4096, 4, 0xbf800000
  s_endpgm
.section .rodata,"a"
.p2align 6
.amdhsa_kernel {KNAME}
  .amdhsa_next_free_vgpr 256
  .amdhsa_next_free_sgpr 102
  .amdhsa_accum_offset 256
  .amdhsa_group_segment_fixed_size 0
  .amdhsa_kernarg_size 64
  .amdhsa_user_sgpr_count 2
  .amdhsa_user_sgpr_kernarg_segment_ptr 1
  .amdhsa_system_sgpr_workgroup_id_x 1
.end_amdhsa_kernel
'''
    open(out, 'w').write(s)
    if PROFILE: open(out + '.stamps', 'w').write(repr(St.names))
    print('instructions', sum(1 for i in a.ins if not i.label), 'pad states', a.pads)
```

```python
def phase2(a, G):
    globals().update({k: v for k, v in G.items() if not k.startswith('__')})
    sT = sXCD
    OWT = {0: '', 1: 'sc1', 2: 'nt'}[opt('owt', 0)]
    WT2 = WT if opt('wt2', 1) else ''
    sRH, sS, sQT, sCH, sT0, sT1 = 's50', 's51', 's52', 's53', 's54', 's55'
    sK, sSt1, sSt2, sQ, sVP, sOut, sF1, sF2, sOwn, sE8, sRs = 's56', 's57', 's58', 's59', 's60', 's61', 's62', 's63', 's64', 's65', 's66'
    LW, LT, LQ, LP, LML, LO = 0, 40960, 49152, 0, 71680, 73728
    vWa, vWb = 116, 117
    vL16, vW12, vTb, vA, vB, vSt = 10, 11, 12, 15, 9, 8
    RD, MF = 16, 24
    KF, SR = 160, 120
    def common(role):
        a(f'''s_lshr_b32 {sRH}, {sI}, 4
        s_and_b32 {sS}, {sI}, 15
        s_lshr_b32 {sQT}, {sI}, 1
        s_and_b32 {sCH}, {sI}, 1
        s_xor_b32 s34, {sRH}, {role}
        s_lshl_b32 {sE8}, {sW}, 1
        s_add_u32 {sE8}, {sE8}, s34
        s_lshl_b32 s34, s34, 2
        s_add_u32 s34, s34, {sW}
        s_mul_i32 {sK}, s34, 24576
        s_mul_i32 s35, {sT}, 196608
        s_add_u32 {sK}, {sK}, s35
        s_add_u32 {sK}, {sK}, {WS_X1}
        s_lshl_b32 s34, s34, 9
        s_mul_i32 s35, {sT}, 49152
        s_add_u32 s34, s34, s35
        s_add_u32 {sSt1}, s34, {WS_ST}
        s_lshl_b32 s34, {sT}, 9
        s_add_u32 {sF1}, s34, {FC1}
        s_add_u32 {sF2}, s34, {FC2}
        s_lshl_b32 s34, {sT}, 4
        s_add_u32 s34, s34, {sQT}
        s_mul_i32 {sQ}, s34, 13312
        s_add_u32 {sQ}, {sQ}, {WS_Q}
        v_lshrrev_b32 v2, 4, v1
        v_and_b32 v3, 15, v1
        v_lshrrev_b32 v4, 5, v1
        v_bfe_u32 v5, v1, 4, 1
        v_and_b32 v6, 31, v1
        v_lshlrev_b32 v{vSt}, 4, v6
        v_mul_u32_u24 v7, 24576, v4
        v_add_u32 v{vSt}, v{vSt}, v7
        v_cmp_eq_u32 vcc, 3, v2
        v_lshlrev_b32 v7, 4, v3
        v_cndmask_b32 v{vW12}, v{vL16}, v7, vcc
        s_add_u32 s34, {sM1K}, {LT + role*4096}
        v_lshl_add_u32 v{vTb}, v6, 2, s34
        v_lshl_add_u32 v{vTb+1}, v3, 2, s34
        v_lshl_add_u32 v{vTb+2}, v2, 4, s34''')
    def stats_load():
        for i in range(6):
            if i: a(f's_add_u32 {sSt1}, {sSt1}, 4096')
            a(f'buffer_load_dwordx4 {vr(SR+4*i,4)}, v{vSt}, {SWS}, {sSt1} offen sc1', tag='st')
    def stats_math(need_rt, defer=False):
        q = [f's_mov_b32 s36, {fbits(1/384)}', f's_mov_b32 s37, {fbits(1e-5)}', ('v', 'st')]
        for k in (0, 1): q += [f'v_add_f32 v{SR+k}, v{SR+k}, v{SR+4+k}', f'v_add_f32 v{SR+8+k}, v{SR+8+k}, v{SR+12+k}', f'v_add_f32 v{SR+16+k}, v{SR+16+k}, v{SR+20+k}']
        for k in (0, 1): q += [f'v_add_f32 v{SR+k}, v{SR+k}, v{SR+8+k}']
        for k in (0, 1): q += [f'v_add_f32 v{SR+k}, v{SR+k}, v{SR+16+k}']
        q += f'''v_mov_b32 v{SR+2}, v{SR}
        v_mov_b32 v{SR+3}, v{SR+1}
        v_cmp_eq_u32 vcc, 3, v2
        v_permlane32_swap_b32 v{SR}, v{SR+2}
        v_permlane32_swap_b32 v{SR+1}, v{SR+3}
        v_add_f32 v{SR}, v{SR}, v{SR+2}
        v_add_f32 v{SR+1}, v{SR+1}, v{SR+3}
        v_mul_f32 v{SR}, s36, v{SR}
        v_mul_f32 v{SR+2}, v{SR}, v{SR}
        v_fma_f32 v{SR+1}, v{SR+1}, s36, -v{SR+2}
        v_max_f32 v{SR+1}, 0, v{SR+1}
        v_add_f32 v{SR+1}, s37, v{SR+1}
        v_rsq_f32 v{SR+1}, v{SR+1}
        v_cvt_pk_bf16_f32 v{SR}, -v{SR}, -v{SR}
        ds_write_b32 v{vTb}, v{SR}
        ds_write_b32 v{vTb}, v{SR+1} offset:128'''.split('\n')
        q.append((f'ds_read2_b32 {vr(SR+4,2)}, v{vTb+1} offset0:0 offset1:16', 't'))
        if need_rt: q.append((f'ds_read2_b32 {vr(RT,2)}, v{vTb+1} offset0:32 offset1:48', 't'))
        for t in range(2): q.append((f'ds_read_b128 {vr(RD+4*t,4)}, v{vTb+2} offset:{128+64*t}', 't'))
        q += ['s_nop 0', 's_nop 0', 's_nop 0', 's_nop 0'] if defer else []
        q.append(('l', 't'))
        for t in range(2):
            q.append(f'v_cndmask_b32 v{MF+4*t}, v{SR+4+t}, 0, vcc')
            for d in range(1, 4): q.append(f'v_mov_b32 v{MF+4*t+d}, v{MF+4*t}')
        if defer: return q
        run(q, 1000)
    def run(q, n):
        while n > 0 and q:
            x = q.pop(0); n -= 1
            if x == 's_nop 0': continue
            if isinstance(x, tuple):
                if x[0] == 'v': a.wait(vm=x[1])
                elif x[0] == 'l': a.wait(lg=x[1])
                else: a(x[0], tag=x[1])
            else: a(x)
    def kld(t, ks):
        off = t*12288 + ks*1024
        a(f's_add_u32 {sT0}, {sK}, {off & ~4095}\nbuffer_load_dwordx4 {vr(KF+(t*12+ks)*4,4)}, v{vL16}, {SWS}, {sT0} offen offset:{off & 4095} sc1', tag=f'k{t}_{ks}')
    QF, SA, VF, RT = 32, 56, 64, 6
    vP, vML, vMLr = 13, 14, 12
    M_, T_ = 4, 5
    def attn_addr(role):
        a(f'''s_lshl_b32 s34, {sE8}, 10
        s_add_u32 s34, s34, {LP}
        v_add_u32 v{vP}, s34, v{vL16}
        s_lshl_b32 s34, {sE8}, 2
        s_add_u32 s34, s34, {LML}
        v_lshl_add_u32 v{vML}, v3, 5, s34
        v_lshlrev_b32 v{vMLr}, 5, v3
        v_add_u32 v{vMLr}, {LML}, v{vMLr}
        v_lshlrev_b32 v{vW12}, 2, v3
        v_lshl_add_u32 v{vW12}, v5, 8, v{vW12}
        v_add_u32 v{vW12}, {LQ + 12288}, v{vW12}
        s_mov_b32 exec_lo, 0''')
        for r in range(MF, MF + 8): a(f'v_mov_b32 v{r}, 0')
        a('s_mov_b32 exec_lo, -1')
    def scores(fill):
        def qrd(ks):
            d = QF + 4*(ks%4)
            if ks < 12: a(f'ds_read_b128 {vr(d,4)}, v{vL16} offset:{LQ + ks*1024}', tag=f'q{ks}')
            else: a(f'ds_read2_b32 {vr(d,2)}, v{vW12} offset0:0 offset1:16\nds_read2_b32 {vr(d+2,2)}, v{vW12} offset0:32 offset1:48', tag=f'q{ks}')
        for ks in range(3): qrd(ks)
        for ks in range(13):
            a.wait(lg=f'q{ks}')
            for t in range(2):
                kf = vr(KF+(t*12+ks)*4, 4) if ks < 12 else vr(MF+4*t, 4)
                d = vr(SA+4*t, 4)
                a(f'v_mfma_f32_16x16x32_bf16 {d}, {kf}, {vr(QF+4*(ks%4),4)}, {"0" if ks == 0 else d}')
            if ks + 3 < 13: qrd(ks + 3)
            if ks % 2 == 1 or opt('vfast', 0): fill()
        for i in range(8): a(f'v_mul_f32 v{SA+i}, v{SA+i}, v{RD+i}')
        a(f'v_max3_f32 v{M_}, v{SA}, v{SA+1}, v{SA+2}\nv_max3_f32 v{T_}, v{SA+3}, v{SA+4}, v{SA+5}\nv_max3_f32 v{M_}, v{M_}, v{SA+6}, v{SA+7}\nv_max_f32 v{M_}, v{M_}, v{T_}')
        for sw in ('v_permlane16_swap_b32', 'v_permlane32_swap_b32'):
            a(f'v_mov_b32 v{T_}, v{M_}'); fill(); a(f'{sw} v{M_}, v{T_}\nv_max_f32 v{M_}, v{M_}, v{T_}')
        a(f's_mov_b64 exec, 0xffff\nds_write_b32 v{vML}, v{M_}\ns_mov_b64 exec, -1')
        fill()
        a('s_waitcnt lgkmcnt(0)'); a.lg = []
        a('s_barrier')
        a(f'ds_read_b128 {vr(QF,4)}, v{vMLr}\nds_read_b128 {vr(QF+4,4)}, v{vMLr} offset:16', tag='mx')
        fill(); fill()
        a.wait(lg='mx')
        a(f'v_max3_f32 v{M_}, v{QF}, v{QF+1}, v{QF+2}\nv_max3_f32 v{T_}, v{QF+3}, v{QF+4}, v{QF+5}\nv_max3_f32 v{M_}, v{M_}, v{QF+6}, v{QF+7}\nv_max_f32 v{M_}, v{M_}, v{T_}')
        for i in range(8): a(f'v_sub_f32 v{SA+i}, v{SA+i}, v{M_}')
        for i in range(8): a(f'v_exp_f32 v{SA+i}, v{SA+i}')
        for i in range(4): a(f'v_cvt_pk_bf16_f32 v{QF+i}, v{SA+2*i}, v{SA+2*i+1}')
        a(f'ds_write_b128 v{vP}, {vr(QF,4)}')
        for w_ in (4, 2, 1):
            for i in range(w_): a(f'v_add_f32 v{SA+i}, v{SA+i}, v{SA+i+w_}')
        for sw in ('v_permlane16_swap_b32', 'v_permlane32_swap_b32'):
            a(f'v_mov_b32 v{T_}, v{SA}'); fill(); a(f'{sw} v{SA}, v{T_}\nv_add_f32 v{SA}, v{SA}, v{T_}')
        a(f's_mov_b64 exec, 0xffff\nds_write_b32 v{vML}, v{SA} offset:512\ns_mov_b64 exec, -1')
        a('s_waitcnt lgkmcnt(0)'); a.lg = []
        a('s_barrier')
    a.label('P2_c'); a.vm = []; a.lg = []
    stamp(a, 'p2c')
    common(0)
    WF, ACC, PK = 32, 76, 100
    a(f'''v_lshlrev_b32 v7, 4, v3
    v_lshl_add_u32 v{vA}, v4, 8, v7
    v_lshl_add_u32 v{vA}, v5, 3, v{vA}
    v_mul_u32_u24 v{vB}, 13312, v5
    v_lshl_add_u32 v{vB}, v3, 2, v{vB}
    s_lshl_b32 {sOwn}, {sI}, 4
    s_lshl_b32 s34, {sW}, 2
    s_add_u32 {sOwn}, {sOwn}, s34
    s_mul_i32 {sVP}, {sT}, 196608
    s_mul_i32 s35, {sQT}, 12288
    s_add_u32 {sRs}, {sVP}, s35
    s_mul_i32 s34, {sCH}, 6144
    s_add_u32 {sRs}, {sRs}, s34
    s_mul_i32 s34, {sW}, 1536
    s_add_u32 {sRs}, {sRs}, s34
    s_add_u32 {sRs}, {sRs}, {WS_X1}
    s_add_u32 {sOut}, {sVP}, s35
    s_mul_i32 s35, {sCH}, 384
    s_add_u32 {sOut}, {sOut}, s35
    s_mul_i32 s35, {sW}, 96
    s_add_u32 {sOut}, {sOut}, s35
    s_mul_i32 s34, {sE8}, 24576
    s_add_u32 s34, s34, {sVP}
    s_mul_i32 s35, {sS}, 3072
    s_add_u32 s34, s34, s35
    s_add_u32 s67, s34, {WS_VP - 8*3072}
    s_mul_i32 s35, {sCH}, 12288
    s_add_u32 {sVP}, {sVP}, s35
    s_mul_i32 s35, {sW}, 3072
    s_add_u32 {sVP}, {sVP}, s35
    s_add_u32 {sVP}, {sVP}, {WS_VP}
    s_lshl_b32 s34, {sT}, 4
    s_lshl_b32 s35, {sRH}, 3
    s_add_u32 s34, s34, s35
    s_lshl_b32 s35, {sW}, 1
    s_add_u32 s34, s34, s35
    s_mul_i32 s34, s34, 13312
    s_add_u32 s34, s34, {WS_Q}
    s_mul_i32 s35, {sS}, 1536
    s_add_u32 s68, s34, s35
    s_lshl_b32 s35, {sS}, 6
    s_add_u32 s34, s34, s35
    s_add_u32 {sSt2}, s34, 12288''')
    a(f'v_add_u32 v{vWa}, {LW34}, v{vL16}\nv_lshrrev_b32 v6, 8, v{vW12}\nv_mul_u32_u24 v6, 768, v6\nv_lshl_add_u32 v6, v3, 2, v6\nv_add_u32 v{vWb}, {LW34 + 36864}, v6')
    stamp(a, 'p2s')
    a('s_barrier')
    stamp(a, 'gsync')
    AHEAD = opt('ahead', 6)
    STP = opt('stp', 7)
    for ks in range(AHEAD):
        if ks == STP: stats_load()
        kld(0, ks); kld(1, ks)
    def wrd(ks, u):
        d = WF + (ks%2)*12 + 4*u
        if ks < 12: a(f'ds_read_b128 {vr(d,4)}, v{vWa} offset:{(ks*3+u)*1024}', tag=f'f{ks}_{u}')
        else: a(f'ds_read2_b32 {vr(d,2)}, v{vWb} offset0:{16*u} offset1:{16*u+48}\nds_read2_b32 {vr(d+2,2)}, v{vWb} offset0:{16*u+96} offset1:{16*u+144}', tag=f'f{ks}_{u}')
    late = stats_math(True, True)
    late += [f'v_mul_f32 v{RT}, {fbits(SCALE2)}, v{RT}', f'v_mul_f32 v{RT+1}, {fbits(SCALE2)}, v{RT+1}']
    stamp(a, 'mm2')
    a(f's_cmp_ge_u32 {sS}, 8\ns_cbranch_scc1 P2_v')
    for var in range(2):
        if var == 0: vmsave, lgsave = list(a.vm), list(a.lg)
        else: a.label('P2_v'); a.vm, a.lg = list(vmsave), list(lgsave)
        lq = list(late)
        for u in range(3): wrd(0, u)
        for ks in range(13):
            if ks == 12: run(lq, 1000)
            if ks + AHEAD < 12:
                if ks + AHEAD == STP: stats_load()
                kld(0, ks + AHEAD); kld(1, ks + AHEAD)
            if ks + AHEAD == 12 - opt('bke', 1) and opt('bk', 1): a('s_barrier')
            if ks < 12: a.wait(vm=f'k1_{ks}')
            if ks in (0, 4, 8, 11): stamp(a, f'k{ks}')
            for u in range(3):
                a.wait(lg=f'f{ks}_{u}')
                wf = vr(WF + (ks%2)*12 + 4*u, 4)
                for t in range(2):
                    xf = vr(KF+(t*12+ks)*4, 4) if ks < 12 else vr(MF+4*t, 4)
                    d = vr(ACC + (t*3+u)*4, 4)
                    A, B = (wf, xf) if var == 0 else (xf, wf)
                    a(f'v_mfma_f32_16x16x32_bf16 {d}, {A}, {B}, {"0" if ks == 0 else d}')
                if ks < 12: wrd(ks + 1, u)
                if ks >= max(1, STP - AHEAD + 3): run(lq, 2 if STP < AHEAD else 3)
        stamp(a, 'mm2end')
        if var == 0:
            AQ = 112
            a(f'v_mov_b32 v{AQ}, 0\nv_mov_b32 v{AQ+1}, 0\ns_mov_b32 s36, 0x3f803f80\ns_mov_b32 {sSt1}, s68')
            for t in range(2):
                for u in range(3):
                    b = ACC + (t*3+u)*4
                    for d in range(2): a(f'v_pk_mul_f32 {vr(b+2*d,2)}, {vr(b+2*d,2)}, {vr(RT,2)} op_sel:[0,{t}] op_sel_hi:[1,{t}]')
                    for d in range(2): a(f'v_cvt_pk_bf16_f32 v{PK+(t*3+u)*2+d}, v{b+2*d}, v{b+2*d+1}')
            def pub0(s1, s2, fl, first=False):
                for t in range(2):
                    if t: a(f's_add_u32 {sT1}, {s1}, 13312')
                    for u in range(3):
                        a(f'buffer_store_dwordx2 {vr(PK+(t*3+u)*2,2)}, v{vA}, {SWS}, {sT1 if t else s1} offen offset:{u*512} {fl}')
                if first:
                    for i in range(6):
                        for t in range(2): a(f'v_dot2c_f32_bf16 v{AQ+t}, s36, v{PK+t*6+i}')
                    for sw in ('v_permlane16_swap_b32', 'v_permlane32_swap_b32'):
                        a(f'v_mov_b32 v{AQ+2}, v{AQ}\nv_mov_b32 v{AQ+3}, v{AQ+1}\n{sw} v{AQ}, v{AQ+2}\n{sw} v{AQ+1}, v{AQ+3}\nv_add_f32 v{AQ}, v{AQ}, v{AQ+2}\nv_add_f32 v{AQ+1}, v{AQ+1}, v{AQ+3}')
                    a(f'''v_cmp_eq_u32 vcc, 1, v5
                    v_cndmask_b32 v{AQ}, v{AQ}, v{AQ+1}, vcc
                    v_cvt_pk_bf16_f32 v{AQ+1}, v{AQ}, v{AQ}
                    v_lshlrev_b32 v{AQ+1}, 16, v{AQ+1}
                    v_sub_f32 v{AQ+1}, v{AQ}, v{AQ+1}
                    v_cvt_pk_bf16_f32 v{AQ}, v{AQ}, v{AQ+1}''')
                a(f's_mov_b32 exec_hi, 0\nbuffer_store_dword v{AQ}, v{vB}, {SWS}, {s2} offen {fl}\ns_mov_b32 exec_hi, -1')
            pub0(sSt1, sSt2, WT2, True)
            a('s_branch P2_j')
        else:
            a(f's_mov_b32 {sSt1}, s67')
            for u in range(3):
                for t in range(2):
                    b = ACC + (t*3+u)*4
                    for d in range(2): a(f'v_pk_mul_f32 {vr(b+2*d,2)}, {vr(b+2*d,2)}, {vr(RD+4*t+2*d,2)}')
                    for d in range(2): a(f'v_cvt_pk_bf16_f32 v{PK+u*4+t*2+d}, v{b+2*d}, v{b+2*d+1}')
            def pub1(s1, fl):
                for u in range(3): a(f'buffer_store_dwordx4 {vr(PK+4*u,4)}, v{vL16}, {SWS}, {s1} offen offset:{u*1024} {fl}')
            pub1(sSt1, WT2)
    a.label('P2_j')
    attn_addr(0)
    vOW, vOR, vOG = 116, 117, 119
    a.wait_all()
    flag(a, sOwn, sF1, sFast, 6, '')
    stamp(a, 'flag2')
    RS = 48
    for u in range(3): a(f'buffer_load_dwordx2 {vr(RS+2*u,2)}, v{vA}, {SWS}, {sRs} offen offset:{u*512} sc1', tag='rs')
    def repub():
        L1, L2 = a.newlabel('rp'), a.newlabel('rp')
        a(f's_add_u32 s36, {sSt1}, {SLOW}\ns_add_u32 s37, {sSt2}, {SLOW}\ns_cmp_ge_u32 {sS}, 8\ns_cbranch_scc1 {L1}')
        pub0('s36', 's37', 'sc0 sc1'); a(f's_branch {L2}')
        a.label(L1); pub1('s36', 'sc0 sc1'); a.label(L2)
    lsync(a, 32, True, sF1, sF2, sOwn, (lambda: None) if WT2 else repub, 32, 0 if WT2 else SLOW)
    stamp(a, 'sync2')
    a(f's_add_u32 {sVP}, {sVP}, {sDelta}\ns_add_u32 {sQ}, {sQ}, {sDelta}\ns_add_u32 {sT1}, {sQ}, {sM1K}')
    for i in range(3):
        a(f's_add_u32 {sT0}, {sT1}, {i*4096}\ns_add_u32 m0, {sM1K}, {LQ + i*4096}\nbuffer_load_dwordx4 v{vL16}, {SWS}, {sT0} offen sc1 lds', tag='q')
    a(f's_add_u32 {sT0}, {sQ}, 12288\ns_mov_b32 m0, {LQ + 12288}\nbuffer_load_dwordx4 v{vL16}, {SWS}, {sT0} offen sc1 lds', tag='q')
    vq = []
    for k8 in range(8):
        for u in range(3):
            vq.append(((f's_add_u32 {sVP}, {sVP}, 24576\n' if k8 and u == 0 else '') + f'buffer_load_dwordx4 {vr(VF+(k8*3+u)*4,4)}, v{vL16}, {SWS}, {sVP} offen offset:{u*1024} sc1', f'vp{k8}'))
    def fill():
        if vq: x = vq.pop(0); a(x[0], tag=x[1])
    for _ in range(opt('nv0', 5)): fill()
    a.wait(vm='q')
    a('s_barrier')
    stamp(a, 'q_in')
    scores(fill)
    stamp(a, 'p_done')
    while vq: fill()
    PF, PA, RF, ML = 160, 32, 200, 212
    for k8 in range(8): a(f'ds_read_b128 {vr(PF+4*k8,4)}, v{vL16} offset:{LP + k8*1024}', tag=f'p{k8}')
    a(f'ds_read_b128 {vr(ML,4)}, v{vMLr} offset:512\nds_read_b128 {vr(ML+4,4)}, v{vMLr} offset:528', tag='ml')
    vOW, vOR, vOG = 220, 221, 223
    fx = [f's_lshl_b32 s35, {sW}, 11', f's_add_u32 s35, s35, {LO}', f'v_mul_u32_u24 v{vOW}, 112, v3', f'v_lshl_add_u32 v{vOW}, v2, 3, v{vOW}', f'v_add_u32 v{vOW}, s35, v{vOW}']
    for h in range(2):
        fx += [f'v_add_u32 v6, {64*h}, v1', 'v_mul_u32_u24 v7, 43, v6', 'v_lshrrev_b32 v7, 8, v7', 'v_mul_u32_u24 v4, 6, v7', 'v_sub_u32 v4, v6, v4', 'v_lshlrev_b32 v4, 4, v4',
               'v_mul_u32_u24 v6, 112, v7', f'v_add3_u32 v{vOR+h}, v6, v4, s35', 'v_mul_u32_u24 v6, 768, v7', f'v_add_u32 v{vOG+h}, v6, v4']
    fx += [('l', 'ml')] + [f'v_add_f32 v{ML+i}, v{ML+i}, v{ML+4+i}' for i in range(4)] + [f'v_add_f32 v{ML}, v{ML}, v{ML+1}', f'v_add_f32 v{ML+2}, v{ML+2}, v{ML+3}', f'v_add_f32 v{ML}, v{ML}, v{ML+2}', f'v_rcp_f32 v{ML}, v{ML}', ]
    fx = ['s_mov_b32 s36, 0xffff0000'] + [x for u in range(3) for d in range(2) for x in (f'v_lshlrev_b32 v{RF+4*u+2*d}, 16, v{RS+2*u+d}', f'v_and_b32 v{RF+4*u+2*d+1}, s36, v{RS+2*u+d}')] + fx
    def fxd(n):
        while n > 0 and fx:
            x = fx.pop(0)
            if isinstance(x, tuple): a.wait(lg=x[1])
            else: a(x); n -= 1
    for k8 in range(8):
        a.wait(vm=f'vp{k8}', lg=f'p{k8}')
        for u in range(3):
            d = vr(PA + 4*u, 4)
            a(f'v_mfma_f32_16x16x32_bf16 {d}, {vr(VF+(k8*3+u)*4,4)}, {vr(PF+4*k8,4)}, {"0" if k8 == 0 else d}')
            fxd(3)
    fxd(1000)
    stamp(a, 'pv_done')
    OP = 192
    for u in range(3):
        for d in range(2): a(f'v_pk_fma_f32 {vr(RF+4*u+2*d,2)}, {vr(PA+4*u+2*d,2)}, {vr(ML,2)}, {vr(RF+4*u+2*d,2)} op_sel_hi:[1,0,1]')
        for d in range(2): a(f'v_cvt_pk_bf16_f32 v{OP+2*u+d}, v{RF+4*u+2*d}, v{RF+4*u+2*d+1}')
        a(f'ds_write_b64 v{vOW}, {vr(OP+2*u,2)} offset:{u*32}')
    a(f'ds_read_b128 {vr(56,4)}, v{vOR}', tag='o0')
    a(f's_mov_b32 exec_hi, 0\nds_read_b128 {vr(60,4)}, v{vOR+1}\ns_mov_b32 exec_hi, -1', tag='o1')
    a.wait(lg='o0')
    a(f'buffer_store_dwordx4 {vr(56,4)}, v{vOG}, {SOUT}, {sOut} offen {OWT}')
    a.wait(lg='o1')
    a(f's_mov_b32 exec_hi, 0\nbuffer_store_dwordx4 {vr(60,4)}, v{vOG+1}, {SOUT}, {sOut} offen {OWT}\ns_mov_b32 exec_hi, -1')
    if PROFILE: a.wait_all()
    stamp(a, 'end')
    stamp_flush(a)
    a('s_endpgm')
    a.label('P2_l'); a.vm = []; a.lg = []
    stamp(a, 'Lp2')
    common(1)
    stamp(a, 'Lcm')
    wpoll(a)
    wcopy(a)
    a(f's_mul_i32 s67, {sW}, {48*128}\ns_add_u32 s67, s67, {GX}')
    gpoll(a, 48, 7, 's67', 33)
    stamp(a, 'Lxf')
    a.label('P2_lg')
    a(f's_mul_i32 s67, {sT}, 196608\ns_mul_i32 s68, {sI}, 6144\ns_add_u32 s67, s67, s68\ns_add_u32 s67, s67, {WS_X1}\ns_mul_i32 s68, {sW}, 1536\ns_add_u32 s67, s67, s68')
    a('s_barrier')
    if opt('xpf', 0):
        a(f'buffer_load_dwordx4 v[32:35], v{vL16}, {SWS}, s67 offen sc1\ns_mov_b32 exec_hi, 0\nbuffer_load_dwordx4 v[36:39], v{vL16}, {SWS}, s67 offen offset:1024 sc1\ns_mov_b32 exec_hi, -1')
    L = a.newlabel('be')
    a(f's_or_b32 s34, {sW}, s2\ns_cmp_lg_u32 s34, 0\ns_cbranch_scc1 {L}')
    a.cond = True; a(f's_mov_b32 s34, {WE}'); flag(a, '0', 's34', sTag, 40, 'sc0 sc1'); a.vm.pop(); a.cond = False
    a.label(L)
    if opt('bk', 1): a('s_barrier')
    stats_load()
    KA, KB = opt('ka', 5), opt('kb', 5)
    for ks in range(12):
        if ks == KA: stats_math(False); attn_addr(1)
        if ks == 0 and opt('tp', 9) == 2: touch2(a)
        if ks in (KA, KB): a.wait_all(lg=False)
        kld(0, ks); kld(1, ks)
    stamp(a, 'Lkiss')
    a.wait_all()
    stamp(a, 'Lk')
    a('s_barrier')
    scores(lambda: None)
    stamp_flush(a, 'L')
```

```python
import sys, math, struct
sys.path.insert(0, 'gen')
from asm import Asm
def opt(name, default):
    for x in sys.argv:
        if x.startswith(f'--{name}='): return int(x.split('=')[1])
    return default
HP = [x[5:] for x in sys.argv if x.startswith('--hp=')]
PROFILE = '--prof' in sys.argv or bool(HP)
SKIP = []
for x in sys.argv:
    if x.startswith('--skip='): SKIP = x[7:].split(',')
WS_W2 = 0x000000
WS_S  = 0x180000
WS_X1 = 0x240000
WS_W  = 0x3E0000
WS_Q  = 0x480000
WS_VP = 0x620000
WS_ST = 0xF00000
FS1, FS2 = 0x7A0000, 0x7A2000
FC1, FC2 = 0x7A4000, 0x7A5000
GW2, GW, GX, WE, FP = 0x7A8000, 0x7AA000, 0x7AC000, 0x7B4000, 0x7A6000
WS_PROF = 0x7C0000
SLOW = 0x800000
WS_SIZE = 0x1000000
LIM_FAST = opt('lim', 24)
LIM_SLOW = 1 << 20
SCALE2 = 384 ** -0.5 * math.log2(math.e)
def fbits(x): return '0x%08x' % struct.unpack('<I', struct.pack('<f', x))[0]
def vr(b, n): return f'v[{b}:{b+n-1}]' if n > 1 else f'v{b}'
SX, SWQ, SWO, SWS, SOUT = 's[4:7]', 's[8:11]', 's[12:15]', 's[16:19]', 's[24:27]'
WT = 'sc0 sc1' if opt('wt', 1) == 2 else 'sc1'
def srd(a, base, ptr, size):
    a(f's_mov_b32 s{base}, s{ptr}\ns_mov_b32 s{base+1}, s{ptr+1}\ns_mov_b32 s{base+2}, {size}\ns_mov_b32 s{base+3}, 0x20000')
STAMP_REGS = [70, 72, 74, 76, 78, 80, 82, 84, 86, 88, 90, 92, 94, 96, 98, 100]
class St:
    names = {'C': [], 'L': []}
def stamp(a, name):
    if not PROFILE or name in SKIP or (HP and name not in ('start', HP[0])): return
    lst = St.names['L' if name.startswith('L') else 'C']
    if name not in lst: lst.append(name)
    k = lst.index(name)
    a(f's_memrealtime s[{STAMP_REGS[k]}:{STAMP_REGS[k]+1}]')
def hp_end(a, role):
    name = HP[0]
    lst = St.names[role]
    src = f's{STAMP_REGS[lst.index(name)]}' if name in lst else 's70'
    L1, L2 = a.newlabel('hp'), a.newlabel('hp')
    a(f's_waitcnt vmcnt(0) lgkmcnt(0)\nv_mov_b32 v2, {WS_PROF + 0x30000}')
    a.label(L1)
    a(f'''buffer_load_dwordx2 v[4:5], v2, {SWS}, 0 offen sc0 sc1
    s_waitcnt vmcnt(0)
    v_readfirstlane_b32 s34, v4
    v_readfirstlane_b32 s35, v5
    s_cmp_lg_u32 s35, {sTag}
    s_cbranch_scc1 {L1}
    s_sub_u32 s35, {src}, s34
    s_max_i32 s35, s35, 0
    s_mul_i32 s35, s35, 4
    s_add_u32 s35, s35, 4000''')
    a.label(L2)
    a(f'''s_memrealtime s[36:37]
    s_waitcnt lgkmcnt(0)
    s_sub_u32 s36, s36, s34
    s_cmp_lt_i32 s36, s35
    s_cbranch_scc1 {L2}''')
def hp_t0(a):
    if not HP: return
    L = a.newlabel('hq')
    a(f's_or_b32 s34, s2, {sW}\ns_or_b32 s34, s34, {sRole}\ns_cmp_lg_u32 s34, 0\ns_cbranch_scc1 {L}')
    a(f'v_mov_b32 v2, {WS_PROF + 0x30000}\nv_mov_b32 v4, s70\nv_mov_b32 v5, {sTag}\nbuffer_store_dwordx2 v[4:5], v2, {SWS}, 0 offen sc0 sc1')
    a.vm.pop()
    a.label(L)
def stamp_flush(a, role='C'):
    if HP: hp_end(a, role); return
    if not PROFILE: return
    a('s_waitcnt lgkmcnt(0)')
    for k in range(16): a(f'v_mov_b32 v{100+k}, s{STAMP_REGS[k]}')
    a(f'''v_lshrrev_b32 v8, 6, v0
    s_lshl_b32 s34, s2, 3
    v_add_u32 v8, s34, v8
    v_lshlrev_b32 v8, 6, v8
    v_add_u32 v8, {WS_PROF}, v8''')
    for k in range(4): a(f'buffer_store_dwordx4 v[{100+4*k}:{103+4*k}], v8, {SWS}, 0 offen offset:{16*k}')

sXCD, sW, sI, sRole = 's40', 's41', 's42', 's43'
sTag, sFast, sDelta = 's44', 's45', 's46'
sM1K = 's47'
TAIL = []

def lanes(a, n):
    a(f's_mov_b32 exec_lo, {hex((1 << min(n, 32)) - 1)}\ns_mov_b32 exec_hi, {hex((1 << max(n-32, 0)) - 1)}')
def gpoll(a, n, vA, sBase, vT):
    Lf, Lr, Ld = a.newlabel('gp'), a.newlabel('gr'), a.newlabel('gd')
    lanes(a, n)
    a(f's_mov_b32 s35, {LIM_SLOW}')
    a.label(Lf)
    a(f'buffer_load_dword v{vT}, v{vA}, {SWS}, {sBase} offen sc1')
    a.wait_all(lg=False)
    a(f'v_cmp_ne_u32 vcc, {sTag}, v{vT}\ns_cbranch_vccnz {Lr}')
    a.label(Ld)
    a('s_mov_b64 exec, -1')
    def tail():
        a.label(Lr)
        if opt('gsl', 0): a(f's_sleep {opt("gsl", 0)}')
        a(f's_sub_u32 s35, s35, 1\ns_cmp_lg_u32 s35, 0\ns_cbranch_scc1 {Lf}\ns_branch {Ld}')
    TAIL.append(tail)
def lsync(a, n, wide, sF1, sF2, sOwn, republish, vT, delta=SLOW):
    Lf, Lr, Ld, Ls = a.newlabel('lp'), a.newlabel('lr'), a.newlabel('ld'), a.newlabel('ls')
    vA, vD, vE = vT, vT + 2, vT + 6
    w = 4 if wide else 1
    ld = 'buffer_load_dwordx4' if wide else 'buffer_load_dword'
    def cmp(v, s):
        if not wide: a(f'v_cmp_ne_u32 vcc, {s}, v{v}'); return
        for k in range(4): a(f'v_xor_b32 v{v+k}, {s}, v{v+k}')
        a(f'v_or_b32 v{v}, v{v}, v{v+1}\nv_or3_b32 v{v}, v{v}, v{v+2}, v{v+3}\nv_cmp_ne_u32 vcc, 0, v{v}')
    lanes(a, n)
    a(f'v_lshlrev_b32 v{vA}, {4 if wide else 2}, v1\ns_mov_b32 {sDelta}, 0\ns_mov_b32 s35, {LIM_FAST}')
    a.label(Lf)
    a(f'{ld} {vr(vD, w)}, v{vA}, {SWS}, {sF1} offen sc1')
    a.wait_all(lg=False)
    cmp(vD, sFast)
    a(f's_cbranch_vccnz {Lr}')
    a.label(Ld)
    a('s_mov_b64 exec, -1')
    def tail():
        a.label(Lr)
        a(f's_sub_u32 s35, s35, 1\ns_cmp_lg_u32 s35, 0\ns_cbranch_scc1 {Lf}')
        if republish:
            a('s_mov_b64 exec, -1')
            republish()
            a.wait_all(lg=False)
            a(f'''s_mov_b64 exec, 1
            v_mov_b32 v{vD}, {sOwn}
            v_mov_b32 v{vD+1}, {sTag}
            buffer_store_dword v{vD+1}, v{vD}, {SWS}, {sF2} offen sc0 sc1''')
            lanes(a, n)
        a(f's_mov_b32 s35, {LIM_SLOW}')
        a.label(Ls)
        a(f'{ld} {vr(vD, w)}, v{vA}, {SWS}, {sF1} offen sc1\n{ld} {vr(vE, w)}, v{vA}, {SWS}, {sF2} offen sc0 sc1')
        a.wait_all(lg=False)
        cmp(vD, sFast)
        a(f's_cbranch_vccz {Ld}')
        cmp(vE, sTag)
        a(f's_mov_b32 {sDelta}, {delta}\ns_cbranch_vccz {Ld}\ns_mov_b32 {sDelta}, 0\ns_sub_u32 s35, s35, 1\ns_cmp_lg_u32 s35, 0\ns_cbranch_scc1 {Ls}\ns_branch {Ld}')
    TAIL.append(tail)
def flag(a, sOff, sBase, sVal, vT, fl):
    a(f'''s_mov_b64 exec, 1
    v_mov_b32 v{vT}, {sOff}
    v_mov_b32 v{vT+1}, {sVal}
    buffer_store_dword v{vT+1}, v{vT}, {SWS}, {sBase} offen {fl}
    s_mov_b64 exec, -1''')
def gflag(a, sOff, sBase, vT):
    a(f'''s_mov_b64 exec, 15
    v_lshl_add_u32 v{vT}, v1, 4, {sOff}
    v_mov_b32 v{vT+2}, {sTag}
    v_mov_b32 v{vT+3}, {sTag}
    v_mov_b32 v{vT+4}, {sTag}
    v_mov_b32 v{vT+5}, {sTag}
    buffer_store_dwordx4 {vr(vT+2,4)}, v{vT}, {SWS}, {sBase} offen sc0 sc1
    s_mov_b64 exec, -1''')
def flag_w0(a, sOff, sBase, vT):
    L = a.newlabel('f0')
    a(f's_cmp_lg_u32 {sW}, 0\ns_cbranch_scc1 {L}')
    a.cond = True; gflag(a, sOff, sBase, vT); a.vm.pop(); a.cond = False
    a.label(L)
def tag_ready(a):
    a(f'''s_mul_i32 {sTag}, {sTag}, 0x9e3779b1
    s_add_u32 {sTag}, {sTag}, 0x7f4a7c15
    s_add_u32 {sFast}, {sFast}, {sTag}''')

LW34 = 102400
LSX = 147456
def wpoll(a):
    a(f'v_lshlrev_b32 v7, 7, v1\ns_mov_b32 s67, {GW}')
    gpoll(a, 64, 7, 's67', 33)
    stamp(a, 'Lwf')
def wcopy(a):
    a(f's_and_b32 s68, {sI}, 15\ns_mul_i32 s68, s68, 39936\ns_mul_i32 s34, {sW}, 10240\ns_add_u32 s68, s68, s34\ns_add_u32 s68, s68, {WS_W}\ns_add_u32 s34, s34, {LW34}')
    for i in range(10):
        if i % 4 == 0: a(f's_add_u32 m0, s34, {i*1024}' + ('\ns_add_u32 s68, s68, 4096' if i else ''))
        a(f'buffer_load_dwordx4 v10, {SWS}, s68 offen offset:{(i&3)*1024} sc1 lds')
def pages(a):
    a(f"""s_mov_b64 exec, 0xffff
    v_lshlrev_b32 v52, 20, v1
    buffer_load_dword v53, v52, {SWS}, 0 offen
    s_mov_b64 exec, 3
    buffer_load_dword v54, v52, {SOUT}, 0 offen
    s_mov_b64 exec, -1""")
def touch2(a):
    Lt = a.newlabel('tc'); Lu = a.newlabel('tc')
    a(f"""s_and_b32 s36, {sI}, 15
    s_lshr_b32 s37, {sI}, 4
    s_cmp_ge_u32 s36, 8
    s_cbranch_scc1 {Lt}
    s_lshl_b32 s34, {sXCD}, 4
    s_lshl_b32 s35, s37, 3
    s_add_u32 s34, s34, s35
    s_lshl_b32 s35, {sW}, 1
    s_add_u32 s34, s34, s35
    s_mul_i32 s34, s34, 13312
    s_mul_i32 s35, s36, 1536
    s_add_u32 s34, s34, s35
    s_add_u32 s34, s34, {WS_Q}
    s_add_u32 s35, s34, 13312""")
    for sb in ('s34', 's35'): a(f'buffer_load_dwordx4 v[64:67], v10, {SWS}, {sb} offen\ns_mov_b32 exec_hi, 0\nbuffer_load_dwordx4 v[64:67], v10, {SWS}, {sb} offen offset:1024\ns_mov_b32 exec_hi, -1')
    a(f's_branch {Lu}'); a.label(Lt)
    a(f"""s_lshl_b32 s34, {sW}, 1
    s_add_u32 s34, s34, s37
    s_lshl_b32 s35, {sXCD}, 3
    s_add_u32 s34, s34, s35
    s_mul_i32 s34, s34, 24576
    s_mul_i32 s35, s36, 3072
    s_add_u32 s34, s34, s35
    s_add_u32 s34, s34, {WS_VP - 8*3072}""")
    for u in range(3): a(f'buffer_load_dwordx4 v[64:67], v10, {SWS}, s34 offen offset:{u*1024}')
    a.label(Lu)
    a(f"""s_lshr_b32 s34, {sI}, 1
    s_lshl_b32 s35, {sXCD}, 4
    s_add_u32 s34, s34, s35
    s_mul_i32 s34, s34, 13312
    s_add_u32 s34, s34, {WS_Q + 12288}
    s_lshl_b32 s35, {sW}, 8
    v_lshl_add_u32 v68, v1, 2, s35
    buffer_load_dword v64, v68, {SWS}, s34 offen
    s_lshl_b32 s34, {sXCD}, 9
    s_add_u32 s34, s34, {FC1}
    v_lshlrev_b32 v68, 3, v1
    buffer_load_dword v64, v68, {SWS}, s34 offen""")
    a.vm = []

def build():
    a = Asm()
    def emit(x):
        if isinstance(x, tuple): a(x[0], tag=x[1])
        else: a(x)
    a(f'''s_cmp_ge_u32 s2, 256
    s_cbranch_scc1 K_end
    s_load_dwordx4 s[20:23], s[0:1], 0
    s_load_dwordx4 s[28:31], s[0:1], 16
    s_load_dwordx4 s[36:39], s[0:1], 32
    s_load_dwordx2 s[32:33], s[0:1], 56
    v_and_b32 v1, 63, v0
    v_lshrrev_b32 v2, 6, v0
    s_and_b32 {sXCD}, s2, 7
    v_readfirstlane_b32 {sW}, v2
    s_lshr_b32 {sI}, s2, 3''')
    stamp(a, 'start')
    if HP:
        St.names['L'].append('Lstart')
        a('s_waitcnt lgkmcnt(0)')
        for r in STAMP_REGS[1:]: a(f's_mov_b32 s{r}, s70')
    a('s_getpc_b64 s[48:49]')
    a.label('K_pc')
    a(f'''s_sub_u32 s48, s48, K_pc-{KNAME}
    s_subb_u32 s49, s49, 0
    s_lshl_b32 s34, {sI}, 3
    s_add_u32 s34, s34, {sW}
    s_and_b32 s34, s34, 31
    s_lshl_b32 s34, s34, 10
    v_lshl_add_u32 v9, v1, 4, s34
    global_load_dwordx4 v[252:255], v9, s[48:49]
    s_lshr_b32 {sRole}, {sW}, 2
    s_and_b32 {sW}, {sW}, 3
    s_lshl_b32 {sM1K}, {sW}, 10
    s_getreg_b32 {sFast}, hwreg(HW_REG_XCC_ID)
    s_and_b32 {sFast}, {sFast}, 15
    s_add_u32 {sFast}, {sFast}, 1
    v_lshrrev_b32 v2, 3, v1
    v_and_b32 v3, 7, v1
    v_lshlrev_b32 v10, 4, v1
    s_cmp_lt_u32 {sI}, 8
    s_cbranch_scc1 K_pre''')
    T8, G8, vL16 = 2, 3, 10
    sG, sJ, sP, sHF, sX, sM = 's50', 's51', 's52', 's53', 's54', 's55'
    sR = ['s56', 's57', 's58', 's59', 's60', 's61']
    ROT = opt('rot', 7)
    a(f'''s_sub_u32 {sJ}, {sI}, 8
    s_mul_i32 s34, {sJ}, 43
    s_lshr_b32 s34, s34, 8
    s_mul_i32 s35, s34, 6
    s_sub_u32 {sJ}, {sJ}, s35
    s_lshl_b32 {sG}, {sXCD}, 2
    s_add_u32 {sG}, {sG}, s34
    s_lshr_b32 {sP}, {sW}, 1
    s_and_b32 {sHF}, {sW}, 1
    s_lshl_b32 {sM}, {sW}, 11''')
    def rot_r(dst):
        if ROT == 4: a(f's_mul_i32 {dst}, {sXCD}, 3\ns_lshr_b32 {dst}, {dst}, 2')
        elif ROT == 5: a(f's_add_u32 {dst}, {sXCD}, 4\ns_and_b32 {dst}, {dst}, 7\ns_mul_i32 {dst}, {dst}, 3\ns_lshr_b32 {dst}, {dst}, 2')
        elif ROT == 6: a(f's_and_b32 {dst}, {sG}, 1\ns_mul_i32 {dst}, {dst}, 4\ns_add_u32 {dst}, {dst}, {sXCD}\ns_and_b32 {dst}, {dst}, 7\ns_mul_i32 {dst}, {dst}, 3\ns_lshr_b32 {dst}, {dst}, 2')
        elif ROT == 7: a(f's_mul_i32 {dst}, {sXCD}, 3\ns_lshr_b32 {dst}, {dst}, 2\ns_add_u32 {dst}, {dst}, {sJ}\ns_cmp_ge_u32 {dst}, 6\ns_cselect_b32 s34, 6, 0\ns_sub_u32 {dst}, {dst}, s34')
        elif ROT == 8: a(f's_and_b32 {dst}, {sG}, 3\ns_add_u32 {dst}, {dst}, {sXCD}\ns_add_u32 {dst}, {dst}, {sJ}\ns_mul_i32 s34, {dst}, 43\ns_lshr_b32 s34, s34, 8\ns_mul_i32 s34, s34, 6\ns_sub_u32 {dst}, {dst}, s34')
    if ROT: rot_r('s3')
    a(f's_cmp_lg_u32 {sRole}, 0\ns_cbranch_scc1 A_ld')
    XS = lambda c: c*8192
    WQ0 = 49152
    W2L = 49152
    vXF, vAW, vSst, vX1, vST, vRes, vBP, vBS, vW2, vW2b = 12, 16, 18, 19, 20, 21, 22, 23, 24, 25
    XF, WF, ACC, CS, MA, SEL, CA, CB = 160, 32, 64, 96, 104, 108, 112, 120
    sSst, sSld, sX1, sST, sFS1, sFS2, sOwn, sGX = 's56', 's57', 's58', 's59', 's60', 's61', 's62', 's63'
    a(f'''v_and_b32 v4, 31, v1
    v_lshrrev_b32 v5, 5, v1
    v_bfe_u32 v6, v1, 1, 3
    v_xor_b32 v6, v6, v5
    v_lshlrev_b32 v4, 7, v4
    v_lshl_add_u32 v4, v6, 4, v4
    s_lshl_b32 s35, {sP}, 12
    v_add_u32 v{vXF}, s35, v4
    v_xor_b32 v{vXF+1}, 32, v{vXF}
    v_xor_b32 v{vXF+2}, 64, v{vXF}
    v_xor_b32 v{vXF+3}, 96, v{vXF}
    v_bfe_u32 v6, v1, 2, 2
    v_lshl_add_u32 v4, v5, 3, v6
    v_lshlrev_b32 v4, 7, v4
    v_lshrrev_b32 v7, 1, v6
    v_xor_b32 v7, {sHF}, v7
    v_lshl_add_u32 v4, v7, 6, v4
    v_bfe_u32 v7, v1, 4, 1
    v_lshl_add_u32 v4, v7, 5, v4
    v_and_b32 v8, 1, v1
    v_lshl_add_u32 v4, v8, 4, v4
    v_bfe_u32 v8, v1, 1, 1
    v_lshl_add_u32 v4, v8, 3, v4
    v_add_u32 v{vAW}, {WQ0}, v4
    v_add_u32 v{vAW+1}, {WQ0 + 65536}, v4
    v_bfe_u32 v8, v1, 2, 1
    v_cmp_eq_u32 vcc, v8, v7
    v_mov_b32 v7, 0x3f803f80
    s_mov_b32 s34, {WE}
    s_waitcnt lgkmcnt(0)
    s_load_dword {sTag}, s[32:33], s34''')
    for k in range(4): a(f'v_cndmask_b32 v{SEL+k}, 0, v7, vcc')
    srd(a, 16, 32, WS_SIZE); srd(a, 24, 38, 1572864)
    a(f'''v_lshlrev_b32 v{vSst}, 9, v5
    v_lshl_add_u32 v{vSst}, v{G8}, 6, v{vSst}
    v_bfe_u32 v6, v1, 3, 2
    v_lshl_add_u32 v{vSst}, v6, 4, v{vSst}
    s_mul_i32 s34, {sG}, 24576
    s_lshl_b32 s35, {sP}, 10
    s_add_u32 s34, s34, s35
    s_add_u32 {sSld}, s34, {WS_S}
    s_lshl_b32 s35, {sJ}, 1
    s_add_u32 s35, s35, {sHF}
    s_lshl_b32 {sOwn}, s35, 2
    s_lshl_b32 s3{6}, s35, 11
    s_add_u32 {sSst}, {sSld}, s36
    s_lshl_b32 s34, {sG}, 1
    s_add_u32 s34, s34, {sP}
    s_lshl_b32 s34, s34, 7
    s_add_u32 {sFS1}, s34, {FS1}
    s_add_u32 {sFS2}, s34, {FS2}''')
    a(f'''v_bfe_u32 v6, v1, 2, 3
    v_and_b32 v7, 3, v1
    s_mov_b32 s34, 196608
    v_mul_lo_u32 v{vX1}, v6, s34
    v_lshl_add_u32 v{vX1}, v5, 8, v{vX1}
    v_lshl_add_u32 v{vX1}, v7, 4, v{vX1}
    v_mul_u32_u24 v{vST}, 49152, v6
    v_lshl_add_u32 v{vST}, v7, 4, v{vST}
    v_lshl_add_u32 v8, v7, 3, v6
    v_lshlrev_b32 v{vBP}, 2, v8
    v_lshlrev_b32 v{vBS}, 5, v7
    v_lshl_add_u32 v{vBS}, v5, 4, v{vBS}
    v_bfe_u32 v4, v8, 1, 3
    s_lshl_b32 s34, {sHF}, 2
    v_xor_b32 v4, s34, v4
    v_xor_b32 v4, v4, v5
    v_lshlrev_b32 v4, 4, v4
    v_lshl_add_u32 v4, v8, 7, v4''')
    if ROT: a(f's_add_u32 s34, {sJ}, 6\ns_sub_u32 s34, s34, s3\ns_cmp_ge_u32 s34, 6\ns_cselect_b32 s36, 6, 0\ns_sub_u32 s34, s34, s36\ns_lshl_b32 s34, s34, 13')
    else: a(f's_lshl_b32 s34, {sJ}, 13')
    a(f'''s_lshl_b32 s36, {sP}, 12
    s_add_u32 s34, s34, s36
    v_add_u32 v{vRes}, s34, v4
    s_lshl_b32 s34, {sHF}, 10
    s_add_u32 s34, s34, {W2L}
    v_add_u32 v{vW2}, s34, v{vL16}
    v_and_b32 v4, 31, v1
    v_lshlrev_b32 v4, 2, v4
    s_lshl_b32 s34, {sHF}, 7
    s_add_u32 s34, s34, {W2L + 49152}
    v_add_u32 v4, s34, v4
    v_lshl_add_u32 v{vW2b}, v5, 10, v4
    v_add_u32 v{vW2b+1}, 2048, v4
    s_lshr_b32 s34, {sG}, 1
    s_mul_i32 s34, s34, 12288
    s_lshl_b32 s36, s35, 10
    s_add_u32 s34, s34, s36
    s_and_b32 s36, {sG}, 1
    s_lshl_b32 s36, s36, 7
    s_add_u32 s34, s34, s36
    s_lshl_b32 s36, {sP}, 6
    s_add_u32 s34, s34, s36
    s_add_u32 {sX1}, s34, {WS_X1}
    s_lshl_b32 s34, s35, 12
    s_add_u32 s34, s34, s36
    s_lshl_b32 s36, {sG}, 7
    s_add_u32 s34, s34, s36
    s_add_u32 {sST}, s34, {WS_ST}
    s_mul_i32 s34, {sG}, 6
    s_add_u32 s34, s34, {sJ}
    s_lshl_b32 {sGX}, s34, 7
    s_mov_b32 s38, {fbits(-1/384)}
    s_mov_b32 s36, 0xffff0000
    s_mov_b32 s64, -1
    s_mov_b32 s65, 0
    s_mov_b32 s66, 0xff00ff00
    s_mov_b32 s67, 0xff00ff00
    s_mov_b32 s68, 0xffff0000
    s_mov_b32 s69, 0xffff0000''')
    for r in range(CA, CA + 8):
        if (r - CA) % 4: a(f'v_mov_b32 v{r}, 0')
    a('s_waitcnt lgkmcnt(0)')
    tag_ready(a)
    a('s_barrier')
    stamp(a, 'mm0')
    def rd(ks):
        c, k4 = ks >> 2, ks & 3
        a(f'ds_read_b128 {vr(XF+4*ks,4)}, v{vXF+k4} offset:{XS(c)}', tag=f'f{ks}')
        return [(c, k4, P) for P in range(2)]
    def trd(ks, P):
        c, k4 = ks >> 2, ks & 3
        off = c*16384 + P*8192 + k4*2048
        base = vAW + (off >> 16); off &= 0xffff
        d = WF + (ks % 3)*8 + P*4
        a(f'ds_read_b64_tr_b16 {vr(d,2)}, v{base} offset:{off}\nds_read_b64_tr_b16 {vr(d+2,2)}, v{base} offset:{off+512}', tag=f'f{ks}')
    def pre(ks, part):
        if part == 0: rd(ks); trd(ks, 0)
        else: trd(ks, 1)
    for ks in range(2): pre(ks, 0); pre(ks, 1)
    def m16(d, b, first): a(f'v_mfma_f32_16x16x32_bf16 {vr(d,4)}, {vr(SEL,4)}, {b}, {"0" if first else vr(d,4)}')
    for ks in range(24):
        bar = (ks & 3) == 3 and ks < 23
        if bar:
            if ks == 15: a.wait_all(lg=False)
            a('s_barrier')
            if ks in (7, 15, 19): stamp(a, f'c{(ks+1)>>2}')
            pre(ks + 1, 0); pre(ks + 1, 1)
        a.wait(lg=f'f{ks}')
        wf = lambda P: vr(WF + (ks % 3)*8 + P*4, 4)
        main = lambda P: a(f'v_mfma_f32_32x32x16_bf16 {vr(ACC+16*P,16)}, {wf(P)}, {vr(XF+4*ks,4)}, {"0" if ks == 0 else vr(ACC+16*P,16)}')
        nx = ks + 2 if (ks & 3) != 2 and ks + 2 < 24 else None
        if ks < 23:
            for P in range(2):
                main(P)
                if nx: pre(nx, P)
                m16(CS + 4*P, wf(P), ks == 0)
            m16(MA, vr(XF+4*ks, 4), ks == 0)
        else:
            m16(MA, vr(XF+4*ks, 4), False)
            for P in range(2): m16(CS + 4*P, wf(P), False)
            main(0)
            main(1)
            a(f'''v_mul_f32 v{MA}, s38, v{MA}
            v_cvt_pk_bf16_f32 v{CA}, v{CS}, v{CS}
            v_cvt_pk_bf16_f32 v{CA+4}, v{CS+4}, v{CS+4}
            v_cvt_pk_bf16_f32 v{MA+1}, v{MA}, v{MA}
            v_and_b32 v{CA}, s36, v{CA}
            v_and_b32 v{CA+4}, s36, v{CA+4}
            v_cndmask_b32 v{CB}, 0, v{MA+1}, s[64:65]
            v_sub_f32 v{CA}, v{CS}, v{CA}
            v_sub_f32 v{CA+4}, v{CS+4}, v{CA+4}
            v_mov_b32 v{CB+1}, v{CB}
            v_cvt_pk_bf16_f32 v{CA}, v{CS}, v{CA}
            v_cvt_pk_bf16_f32 v{CA+4}, v{CS+4}, v{CA+4}
            v_mov_b32 v{CB+2}, v{CB}
            v_mov_b32 v{CB+3}, v{CB}''')
            for P in range(2): a(f'v_mfma_f32_32x32x16_bf16 {vr(ACC+16*P,16)}, {vr(CA+4*P,4)}, {vr(CB,4)}, {vr(ACC+16*P,16)}')
    stamp(a, 'mmend')
    PQ, PK, SC, SS, SQ, CM = 32, 40, 64, 96, 100, 124
    a(f'v_mov_b32 v{SQ}, 0\nv_mov_b32 v{SQ+1}, 0')
    for k in range(4): a(f'v_mov_b32 v{CM+k}, v{MA+1}')
    for P, d in ((0, PQ), (1, PK)):
        for i in range(8): a(f'v_cvt_pk_bf16_f32 v{d+i}, v{ACC+16*P+2*i}, v{ACC+16*P+2*i+1}')
    a(f'v_mfma_f32_32x32x16_bf16 {vr(SC,16)}, {vr(PK,4)}, {vr(PQ,4)}, 0')
    a(f'v_mfma_f32_32x32x16_bf16 {vr(SC,16)}, {vr(PK+4,4)}, {vr(PQ+4,4)}, {vr(SC,16)}')
    RAW = 48
    a(f'v_xor_b32 v4, 32, v{vRes}\nds_read_b128 {vr(RAW,4)}, v{vRes}\nds_read_b128 {vr(RAW+4,4)}, v4', tag='raw')
    for e in range(4): a(f'v_cndmask_b32 v{SC+e}, v{SC+e}, v{SC+4+e}, s[66:67]\nv_cndmask_b32 v{SC+8+e}, v{SC+8+e}, v{SC+12+e}, s[66:67]')
    for e in range(4): a(f'v_cndmask_b32 v{SS+e}, v{SC+e}, v{SC+8+e}, s[68:69]')
    a(f'buffer_store_dwordx4 {vr(SS,4)}, v{vSst}, {SWS}, {sSst} offen {WT if opt("swt", 0) else ""}')
    stamp(a, 'stored')
    ND0 = opt('nd0', 72)
    for i in range(ND0): a(f'v_dot2c_f32_bf16 v{SQ+(i&1)}, v{XF+i}, v{XF+i}')
    a.wait_all(lg=False)
    flag(a, sOwn, sFS1, sFast, 4, '')
    stamp(a, 'flag')
    for i in range(ND0, 96): a(f'v_dot2c_f32_bf16 v{SQ+(i&1)}, v{XF+i}, v{XF+i}')
    RR, RES = 56, 80
    a(f'''s_mov_b32 s37, {fbits(1e-5)}
    v_mul_f32 v{SQ+2}, v{MA}, v{MA}
    v_add_u32 v5, 4, v{vBS}
    v_add_f32 v{SQ}, v{SQ}, v{SQ+1}
    v_mov_b32 v{SQ+1}, v{SQ}
    v_add_u32 v6, 8, v{vBS}
    v_add_u32 v7, 12, v{vBS}
    v_permlane32_swap_b32 v{SQ}, v{SQ+1}
    v_add_f32 v{SQ}, v{SQ}, v{SQ+1}
    v_fma_f32 v{SQ}, -v{SQ}, s38, -v{SQ+2}
    v_max_f32 v{SQ}, 0, v{SQ}
    v_add_f32 v{SQ}, s37, v{SQ}
    v_rsq_f32 v{SQ}, v{SQ}''')
    a(f'ds_bpermute_b32 v{RR+4}, v{vBP}, v{SQ}\nds_bpermute_b32 v{RR}, v{vBS}, v{SQ}', tag='bp')
    for e in range(1, 4): a(f'ds_bpermute_b32 v{RR+e}, v{4+e}, v{SQ}', tag='bp')
    a.wait(lg='raw')
    for d in range(8): a(f'v_lshlrev_b32 v{RES+2*d}, 16, v{RAW+d}\nv_and_b32 v{RES+2*d+1}, s36, v{RAW+d}')
    a.wait(lg='bp')
    a(f'v_mul_f32 v{RR+4}, {fbits(SCALE2)}, v{RR+4}')
    def repubA():
        a(f's_add_u32 s34, {sSst}, {SLOW}\nbuffer_store_dwordx4 {vr(SS,4)}, v{vSst}, {SWS}, s34 offen sc0 sc1')
    lsync(a, 12, False, sFS1, sFS2, sOwn, (lambda: None) if opt('swt', 0) else repubA, 32, 0 if opt('swt', 0) else SLOW)
    stamp(a, 'synced')
    SP, Y, WR = 112, 64, 32
    SPR = [128, 132, 136, 140, 144, 148, 152, 156, 112, 116, 96, 100]
    S0 = SPR[0]; T0 = SPR[1]
    sm = []
    def w2rd(ks):
        if ks < 24: a(f'ds_read_b128 {vr(WR+4*(ks%6),4)}, v{vW2} offset:{ks*2048}', tag=f'y{ks}')
        else:
            for k in range(2): a(f'ds_read2st64_b32 {vr(WR+4*(ks%6)+2*k,2)}, v{vW2b+ks-24} offset0:{2*k} offset1:{2*k+1}', tag=f'y{ks}')
    YH = opt('yh', 12)
    def ystep(ks, lim=26):
        a.wait(lg=f'y{ks}')
        xa = vr(XF+4*ks, 4) if ks < 24 else vr(CM if ks == 24 else CB, 4)
        a(f'v_mfma_f32_32x32x16_bf16 {vr(Y,16)}, {xa}, {vr(WR+4*(ks%6),4)}, {"0" if ks == 0 else vr(Y,16)}')
        if ks + 5 < lim: w2rd(ks + 5)
    a(f's_add_u32 {sSld}, {sSld}, {sDelta}\ns_mul_i32 s34, {sHF}, 12288\ns_add_u32 {sSld}, {sSld}, s34')
    for i in range(6):
        if i and i % 2 == 0: a(f's_add_u32 {sSld}, {sSld}, 4096')
        a(f'buffer_load_dwordx4 {vr(SPR[i],4)}, v{vL16}, {SWS}, {sSld} offen offset:{(i&1)*2048} sc1', tag=f's{i}')
    a(f's_add_u32 s34, {sM1K}, {LSX}\nv_add_u32 v4, s34, v{vL16}\nv_xor_b32 v5, 1024, v4')
    if YH:
        a('s_barrier')
        stamp(a, 'w2h')
        for ks in range(5): w2rd(ks)
        for ks in range(YH): ystep(ks, YH)
    for i in range(1, 6):
        a.wait(vm=f's{i}')
        for d in (0, 2): a(f'v_pk_add_f32 {vr(S0+d,2)}, {vr(S0+d,2)}, {vr(SPR[i]+d,2)}')
    a(f'ds_write_b128 v4, {vr(S0,4)}\ns_waitcnt lgkmcnt(0)'); a.lg = []
    stamp(a, 'ssum')
    a('s_barrier')
    stamp(a, 'w2in')
    a(f'ds_read_b128 {vr(T0,4)}, v5', tag='sx')
    sm.append(('l', 'sx'))
    for d in range(4): sm.append(f'v_add_f32 v{S0+d}, v{S0+d}, v{T0+d}')
    for ks in range(YH, YH + 5): w2rd(ks)
    for d in range(4): sm.append(f'v_mul_f32 v{S0+d}, v{S0+d}, v{RR+d}')
    sm += [f'v_max_f32 v{T0}, v{S0}, v{S0+1}', f'v_max3_f32 v{T0}, v{T0}, v{S0+2}, v{S0+3}', f'v_mov_b32 v{T0+1}, v{T0}', 's_mov_b32 s64, 0x11111111', 's_mov_b32 s65, 0x11111111',
           f'v_permlane32_swap_b32 v{T0}, v{T0+1}', f'v_max_f32 v{T0}, v{T0}, v{T0+1}', f'v_mul_f32 v{T0}, v{RR+4}, v{T0}']
    for d in range(4): sm.append(f'v_fma_f32 v{S0+d}, v{S0+d}, v{RR+4}, -v{T0}')
    for d in range(4): sm.append(f'v_exp_f32 v{S0+d}, v{S0+d}')
    sm += [f'v_add_f32 v{T0}, v{S0}, v{S0+1}', f'v_add_f32 v{T0+1}, v{S0+2}, v{S0+3}', f'v_add_f32 v{T0}, v{T0}, v{T0+1}', f'v_mov_b32 v{T0+1}, v{T0}']
    sm += [f'v_mul_f32 v{S0+d}, v{S0+d}, v{RR+d}' for d in range(2)] + [f'v_permlane32_swap_b32 v{T0}, v{T0+1}', f'v_add_f32 v{T0}, v{T0}, v{T0+1}', f'v_rcp_f32 v{T0}, v{T0}']
    sm += [f'v_mul_f32 v{S0+d}, v{S0+d}, v{RR+d}' for d in range(2, 4)]
    for d in range(4): sm.append(f'v_mul_f32 v{S0+d}, v{S0+d}, v{T0}')
    PB = 136
    sm += [f'v_cvt_pk_bf16_f32 v{T0}, v{S0}, v{S0+1}', f'v_cvt_pk_bf16_f32 v{T0+1}, v{S0+2}, v{S0+3}']
    for b in range(4):
        sm += [f'v_cndmask_b32 v{PB+2*b}, 0, v{T0}, s[64:65]', f'v_cndmask_b32 v{PB+2*b+1}, 0, v{T0+1}, s[64:65]']
        if b < 3: sm.append('s_lshl_b64 s[64:65], s[64:65], 1')
    S2 = 104
    sm += [f'v_mov_b32 v{S2}, 0', f'v_mov_b32 v{S2+1}, 0', 's_mov_b32 s36, 0x3f803f80']
    def drain(n):
        while n > 0 and sm:
            x = sm.pop(0)
            if isinstance(x, tuple): a.wait(vm=x[1]) if x[0] == 'w' else a.wait(lg=x[1])
            else: a(x); n -= 1
    for ks in range(YH, 26):
        ystep(ks)
        if ks >= YH + 1: drain(5 if YH else 4)
    drain(1000)
    stamp(a, 'ygemm')
    YP, XO = 144, 152
    for i in range(8): a(f'v_cvt_pk_bf16_f32 v{YP+i}, v{Y+2*i}, v{Y+2*i+1}')
    for k in range(2): a(f'v_mfma_f32_32x32x16_bf16 {vr(RES,16)}, {vr(YP+4*k,4)}, {vr(PB+4*k,4)}, {vr(RES,16)}')
    for i in range(8): a(f'v_cvt_pk_bf16_f32 v{XO+i}, v{RES+2*i}, v{RES+2*i+1}')
    a(f'buffer_store_dwordx4 {vr(XO,4)}, v{vX1}, {SWS}, {sX1} offen {WT}')
    a(f'buffer_store_dwordx4 {vr(XO+4,4)}, v{vX1}, {SWS}, {sX1} offen offset:512 {WT}')
    for i in range(8): a(f'v_dot2c_f32_bf16 v{S2}, s36, v{XO+i}\nv_dot2c_f32_bf16 v{S2+1}, v{XO+i}, v{XO+i}')
    a(f'''v_mov_b32 v{S2+2}, v{S2}
    v_mov_b32 v{S2+3}, v{S2+1}
    v_permlane32_swap_b32 v{S2}, v{S2+2}
    v_permlane32_swap_b32 v{S2+1}, v{S2+3}
    v_add_f32 v{S2}, v{S2}, v{S2+2}
    v_add_f32 v{S2+1}, v{S2+1}, v{S2+3}
    s_mov_b32 exec_hi, 0
    buffer_store_dwordx4 {vr(S2,4)}, v{vST}, {SWS}, {sST} offen {WT}
    s_mov_b32 exec_hi, -1
    s_mov_b32 s34, {GX}''')
    stamp(a, 'x1st')
    a.wait_all()
    a('s_barrier')
    flag_w0(a, sGX, 's34', 32)
    stamp(a, 'x1pub')
    a('s_branch P2_c')
    a.label('A_ld'); a.vm = []; a.lg = []
    vW, vXs, vP = 32, 36, 38
    sRx = ['s62', 's63', 's64', 's65', 's66', 's67']
    a(f'''s_mov_b32 s35, 196608
    v_mul_lo_u32 v{vXs}, v{T8}, s35
    v_lshrrev_b32 v4, 1, v{T8}
    v_xor_b32 v4, v4, v{G8}
    v_lshl_add_u32 v{vXs}, v4, 4, v{vXs}
    v_xor_b32 v{vXs+1}, 64, v{vXs}
    v_add_u32 v{vXs+1}, 768, v{vXs+1}
    s_lshl_b32 s34, {sG}, 3
    s_lshl_b32 s35, {sW}, 1
    s_add_u32 s34, s34, s35
    s_mul_i32 {sX}, s34, 768
    v_lshlrev_b32 v4, 1, v{T8}
    v_and_b32 v4, 4, v4
    v_xor_b32 v4, v4, v{G8}
    v_mul_u32_u24 v{vW}, 2304, v{T8}
    v_lshl_add_u32 v{vW}, v4, 4, v{vW}
    s_mul_i32 s68, {sW}, {16*2304}
    s_lshl_b32 s34, {sJ}, 7
    s_add_u32 s68, s68, s34''')
    for k in range(1, 4): a(f'v_add_u32 v{vW+k}, {(k>>1)*768 + (k&1)*18432}, v{vW}')
    for i in range(6):
        if ROT:
            a(f's_lshl_b32 s34, s3, 7\ns_add_u32 {sRx[i]}, s34, {sX}\ns_mul_i32 s34, s3, 147456\ns_add_u32 {sR[i]}, s34, s68')
            if i < 5: a('s_add_u32 s3, s3, 1\ns_cmp_ge_u32 s3, 6\ns_cselect_b32 s3, 0, s3')
        else: a(f's_add_u32 {sR[i]}, s68, {i*147456}\ns_add_u32 {sRx[i]}, {sX}, {i*128}')
    for i in range(2):
        a(f'''s_lshl_b32 s34, {sJ}, 3
        s_lshl_b32 s35, {sW}, 1
        s_add_u32 s34, s34, s35
        s_add_u32 s34, s34, {i}
        s_mul_i32 s35, s34, 43
        s_lshr_b32 s35, s35, 8
        s_mul_i32 s14, s35, 6
        s_sub_u32 s34, s34, s14
        s_lshl_b32 s34, s34, 10
        s_mul_i32 s35, s35, 196608
        s_add_u32 s34, s34, s35
        s_mul_i32 s35, {sG}, 6144
        s_add_u32 s{12+i}, s34, s35''')
    a(f's_mov_b32 s34, {WE}\ns_waitcnt lgkmcnt(0)\ns_load_dword {sTag}, s[32:33], s34')
    srd(a, 4, 20, 1572864); srd(a, 8, 22, 884736)
    def xpre():
        for i in range(2): a(f'buffer_load_dwordx4 v[{56+4*i}:{59+4*i}], v{vL16}, {SX}, s{12+i} offen')
    if opt('xp0', 0) == 1: xpre()
    def wdma(c):
        for th in range(2):
            a(f's_add_u32 m0, {sM}, {XS(c) + th*1024}\nbuffer_load_dwordx4 v{vXs+th}, {SX}, {sRx[c]} offen lds', tag=f'w{c}')
        for k in range(4):
            a(f's_add_u32 m0, {sM}, {WQ0 + c*16384 + (k>>1)*8192 + (k&1)*1024}\nbuffer_load_dwordx4 v{vW+k}, {SWQ}, {sR[c]} offen lds', tag=f'w{c}')
    NL = opt('nl', 2)
    for c in range(NL):
        wdma(c)
        if c == 0 and opt('xp0', 0) == 2: xpre()
        if c == 0: srd(a, 16, 32, WS_SIZE); srd(a, 24, 38, 1572864)
    a(f'''v_mul_u32_u24 v{vP}, 768, v1
    s_lshl_b32 s34, {sJ}, 7
    s_add_u32 s68, s34, {GW2}
    s_mul_i32 s69, {sJ}, 53248
    s_add_u32 s69, s69, {WS_W2}
    s_waitcnt lgkmcnt(0)''')
    tag_ready(a)
    def progress():
        L = a.newlabel('pg')
        a(f's_cmp_lg_u32 {sI}, 8\ns_cbranch_scc1 {L}\ns_cmp_lg_u32 {sW}, 0\ns_cbranch_scc1 {L}')
        a.cond = True
        a(f's_lshl_b32 s34, {sXCD}, 7\ns_mov_b32 s35, {FP}'); flag(a, 's34', 's35', sFast, 52, ''); a.vm.pop()
        a.cond = False
        a.label(L)
    if opt('prg', -1) == 9: progress()
    for c in range(6):
        a.wait(vm=f'w{c}')
        if c in (0, 3, 5): stamp(a, f'L{c}')
        a('s_barrier')
        if c + NL < 6: wdma(c + NL)
        if c == opt('prg', -1): progress()
        if c == opt('tlb', 1): pages(a)
        if c == opt('tpos', 3) and opt('touch', 1):
            a(f'''s_mul_i32 s34, {sG}, 24576
            s_lshl_b32 s35, {sJ}, 12
            s_add_u32 s34, s34, s35
            s_add_u32 s34, s34, {WS_S}
            s_add_u32 s34, s34, {sM1K}
            {"" if opt("swt", 0) else f"buffer_load_dwordx4 v[44:47], v{vL16}, {SWS}, s34 offen"}
            s_lshl_b32 s34, {sG}, 8
            s_add_u32 s34, s34, {FS1}
            v_lshlrev_b32 v48, 2, v1
            buffer_load_dword v49, v48, {SWS}, s34 offen
            s_lshl_b32 s34, {sXCD}, 9
            s_add_u32 s34, s34, {FC1}
            v_lshlrev_b32 v48, 3, v1
            buffer_load_dword v50, v48, {SWS}, s34 offen''')
    a(f's_mul_i32 s20, {sW}, 3')
    if ROT: rot_r('s3'); a('s_lshl_b32 s3, s3, 1\ns_add_u32 s3, s3, s20')
    else: a('s_mov_b32 s3, s20')
    a(f's_lshl_b32 s20, s20, 12\ns_add_u32 s20, s20, {W2L}')
    for k in range(3):
        a(f's_cmp_ge_u32 s3, 12\ns_cselect_b32 s34, 12, 0\ns_sub_u32 s3, s3, s34\ns_lshl_b32 s34, s3, 12\ns_add_u32 s{21+k}, s69, s34\ns_add_u32 s3, s3, 1')
    a(f's_add_u32 s69, s69, 49152\ns_add_u32 s69, s69, {sM1K}')
    if opt('tp', 9) == 0: touch2(a)
    if opt('w21', 1):
        a(f's_cmp_lg_u32 {sW}, 0\ns_cbranch_scc1 A_ld2')
        gpoll(a, 4, vP, 's68', 40)
        stamp(a, 'Lw2f')
        a(f's_sub_u32 s69, s69, 49152')
        for gi in range(13):
            if gi == 12: a(f's_add_u32 s68, s69, 49152')
            elif gi == 0: a('s_mov_b32 s68, s21\ns_sub_u32 s3, s21, s69')
            elif gi % 2 == 0: a('s_add_u32 s3, s3, 8192\ns_cmp_ge_u32 s3, 49152\ns_cselect_b32 s3, 0, s3\ns_add_u32 s68, s69, s3')
            else: a('s_add_u32 s68, s68, 4096')
            a(f's_mov_b32 m0, {W2L + gi*4096}')
            for k in range(4 if gi < 12 else 3): a(f'buffer_load_dwordx4 v{vL16}, {SWS}, s68 offen offset:{k*1024} sc1 lds', tag=f'h{gi}')
        if opt('yh', 12): a.wait(vm=f'h{opt("yh", 12)//2 - 1}')
        a.label('A_ld2')
        if opt('yh', 12): a('s_barrier')
    else:
        gpoll(a, 4, vP, 's68', 40)
        stamp(a, 'Lw2f')
        for k in range(3):
            a(f's_add_u32 m0, s20, {k*4096}')
            for q in range(4): a(f'buffer_load_dwordx4 v{vL16}, {SWS}, s{21+k} offen offset:{q*1024} sc1 lds')
        a(f's_add_u32 m0, {sM1K}, {W2L + 49152}\nbuffer_load_dwordx4 v{vL16}, {SWS}, s69 offen sc1 lds')
    a.wait_all()
    stamp(a, 'Lw2')
    a('s_barrier\ns_barrier\ns_branch P2_l')
    a.label('K_pre'); a.vm = []; a.lg = []
    sS8, sIt, sJt, sA, sB, sMm, sT0, sLA, sLB = 's50', 's51', 's52', 's53', 's54', 's55', 's56', 's57', 's58'
    a(f'''s_mov_b32 {sS8}, {sI}
    s_mov_b32 s34, {WE}
    s_and_b32 s59, {sXCD}, 1
    s_lshr_b32 s60, {sXCD}, 1
    s_cmp_lt_u32 {sS8}, 3
    s_cbranch_scc1 W_id0
    s_mul_i32 s35, s60, 9
    s_mul_i32 s61, s59, 5
    s_add_u32 s35, s35, s61
    s_add_u32 s35, s35, {sS8}
    s_sub_u32 s35, s35, 3
    s_mul_i32 s61, s35, 43
    s_lshr_b32 s61, s61, 8
    s_mul_i32 s62, s61, 6
    s_sub_u32 {sJt}, s35, s62
    s_cmp_ge_u32 s61, 3
    s_cselect_b32 {sMm}, 1, 0
    s_mul_i32 s62, {sMm}, 3
    s_sub_u32 {sIt}, s61, s62
    s_add_u32 s62, {sS8}, s59
    s_cmp_ge_u32 s62, 8
    s_cselect_b32 {sMm}, 3, {sMm}
    s_branch W_id1''')
    a.label('W_id0')
    a(f'''s_mov_b32 {sMm}, 2
    s_mov_b32 {sIt}, s60
    s_mul_i32 {sJt}, s59, 3
    s_add_u32 {sJt}, {sJt}, {sS8}''')
    a.label('W_id1')
    a(f'''s_waitcnt lgkmcnt(0)
    s_load_dword {sTag}, s[32:33], s34''')
    srd(a, 16, 32, WS_SIZE); srd(a, 24, 38, 1572864)
    a(f'''s_cmp_eq_u32 {sMm}, 3
    s_cbranch_scc1 W_done
    s_cmp_lg_u32 {sRole}, 0
    s_cbranch_scc1 W_ld''')
    BB = 98304
    FA, FB, AC = 32, 48, 128
    vAr, vBr = 14, 18
    a(f'''v_and_b32 v2, 31, v1
    v_lshrrev_b32 v3, 5, v1
    v_and_b32 v4, 19, v2
    v_bfe_u32 v5, v2, 2, 1
    v_lshl_add_u32 v4, v5, 3, v4
    v_bfe_u32 v5, v2, 3, 1
    v_lshl_add_u32 v4, v5, 2, v4
    v_lshrrev_b32 v5, 3, v4
    v_mul_u32_u24 v5, 6144, v5
    v_and_b32 v6, 7, v4
    v_lshl_add_u32 v5, v6, 7, v5
    v_bfe_u32 v6, v4, 1, 3
    v_xor_b32 v6, v6, v3
    v_lshl_add_u32 v11, v6, 4, v5
    v_bfe_u32 v6, v1, 2, 2
    v_lshl_add_u32 v4, v3, 3, v6
    v_lshlrev_b32 v4, 7, v4
    v_lshrrev_b32 v7, 1, v6
    v_lshl_add_u32 v4, v7, 6, v4
    v_bfe_u32 v7, v1, 4, 1
    v_lshl_add_u32 v12, v7, 5, v4
    s_mov_b32 s37, 0x3f803f80''')
    def a_addr(swave):
        a(f's_mul_i32 s34, {swave}, 24576\nv_add_u32 v{vAr}, s34, v11')
        for k in range(1, 4): a(f'v_xor_b32 v{vAr+k}, {32*k}, v{vAr}')
    def stages(nv, breads):
        def rd(jj, k4):
            o = (jj & 1)*48*opt('ppipe', 1)
            a(f'ds_read_b128 {vr(FA+o+4*k4,4)}, v{vAr+k4} offset:{jj*1024}', tag=f'r{k4}')
            for v in range(nv): breads(jj, k4, v, FB + o + (k4*2+v)*4)
        def mm(jj, k4):
            o = (jj & 1)*48*opt('ppipe', 1)
            for v in range(nv):
                cin = '0' if (jj == 0 and k4 == 0) else vr(AC+16*v, 16)
                a(f'v_mfma_f32_32x32x16_bf16 {vr(AC+16*v,16)}, {vr(FA+o+4*k4,4)}, {vr(FB+o+(k4*2+v)*4,4)}, {cin}')
        for jj in range(6):
            a('s_barrier')
            if opt('ppipe', 1) and jj:
                rd(jj, 0); mm(jj - 1, 2); rd(jj, 1); mm(jj - 1, 3); rd(jj, 2); rd(jj, 3)
            else:
                for k4 in range(4): rd(jj, k4)
            last = 4 if (jj == 5 or not opt('ppipe', 1)) else 2
            for k4 in range(last):
                a.wait(lg=f'r{k4}'); mm(jj, k4)
            if last == 2: a.wait(lg='r3')
    def btr(jj, k4, v, d):
        o = jj*8192 + k4*2048
        a(f'ds_read_b64_tr_b16 {vr(d,2)}, v{vBr+v} offset:{o}\nds_read_b64_tr_b16 {vr(d+2,2)}, v{vBr+v} offset:{o+512}', tag=f'r{k4}')
    def brow(jj, k4, v, d): a(f'ds_read_b128 {vr(d,4)}, v{vBr+k4} offset:{v*24576+jj*1024}', tag=f'r{k4}')
    def colsum(v, src, dst):
        a(f'v_mov_b32 v24, 0')
        for i in range(8): a(f'v_dot2c_f32_bf16 v24, s37, v{src+i}')
        a(f'''v_mov_b32 v26, v24
        v_permlane32_swap_b32 v24, v26
        v_add_f32 v26, v26, v24
        v_cvt_pk_bf16_f32 v27, v26, v26
        v_lshlrev_b32 v27, 16, v27
        v_sub_f32 v27, v26, v27
        v_cvt_pk_bf16_f32 v{dst}, v26, v27''')
    def colsum2():
        a('v_mov_b32 v24, 0\nv_mov_b32 v25, 0')
        for i in range(8): a(f'v_dot2c_f32_bf16 v24, s37, v{32+i}\nv_dot2c_f32_bf16 v25, s37, v{40+i}')
        a('''v_mov_b32 v26, v24
        v_mov_b32 v27, v25
        v_permlane32_swap_b32 v24, v26
        v_permlane32_swap_b32 v25, v27
        v_add_f32 v24, v26, v24
        v_add_f32 v25, v27, v25
        v_cvt_pk_bf16_f32 v26, v24, v24
        v_cvt_pk_bf16_f32 v27, v25, v25
        v_lshlrev_b32 v26, 16, v26
        v_lshlrev_b32 v27, 16, v27
        v_sub_f32 v26, v24, v26
        v_sub_f32 v27, v25, v27
        v_cvt_pk_bf16_f32 v28, v24, v26
        v_cvt_pk_bf16_f32 v29, v25, v27''')
    a_addr(sW)
    a(f's_cmp_lg_u32 {sMm}, 2\ns_cbranch_scc1 W_c0')
    a(f'''s_min_u32 s59, {sW}, 2''')
    a_addr('s59')
    a(f'''v_and_b32 v7, 1, v1
    v_lshl_add_u32 v4, v7, 4, v12
    v_bfe_u32 v7, v1, 1, 1
    v_lshl_add_u32 v4, v7, 3, v4
    v_add_u32 v{vBr}, {BB}, v4
    v_xor_b32 v{vBr+1}, 64, v{vBr}
    s_mul_i32 s34, {sIt}, 3
    s_add_u32 s34, s34, s59
    s_mul_i32 s35, {sJt}, 53248
    s_add_u32 s35, s35, {WS_W2}
    s_lshl_b32 s36, s34, 12
    s_add_u32 s61, s35, s36
    s_lshl_b32 s36, s34, 8
    s_add_u32 s35, s35, s36
    s_add_u32 s62, s35, 49152
    v_lshlrev_b32 v30, 2, v1
    s_mul_i32 s63, {sIt}, 6
    s_add_u32 s63, s63, {sJt}
    s_lshl_b32 s63, s63, 7
    s_mov_b32 s64, {GW2}''')
    stages(2, btr)
    stamp(a, 'pst')
    a(f's_cmp_eq_u32 {sW}, 3\ns_cbranch_scc1 W_c4')
    for v in range(2):
        for i in range(8): a(f'v_cvt_pk_bf16_f32 v{32+8*v+i}, v{AC+16*v+2*i}, v{AC+16*v+2*i+1}')
        a(f'buffer_store_dwordx4 {vr(32+8*v,4)}, v{vL16}, {SWS}, s61 offen offset:{v*1024} {WT}\nbuffer_store_dwordx4 {vr(36+8*v,4)}, v{vL16}, {SWS}, s61 offen offset:{2048+v*1024} {WT}')
    colsum2()
    a('s_mov_b32 exec_hi, 0')
    for v in range(2): a(f'buffer_store_dword v{28+v}, v30, {SWS}, s62 offen offset:{v*128} {WT}')
    a('s_mov_b32 exec_hi, -1')
    a.label('W_c4')
    a.wait_all()
    tag_ready(a)
    a('s_barrier')
    flag_w0(a, 's63', 's64', 48)
    stamp(a, 'w2pub')
    a('s_branch W_done2')
    a.label('W_c0'); a.lg = []; a.vm = []
    a(f'''s_mul_i32 s34, {sMm}, 24
    s_lshl_b32 s61, {sJt}, 2
    s_add_u32 s34, s34, s61
    v_bfe_u32 v4, v1, 4, 1
    v_add_u32 v4, s34, v4
    v_and_b32 v7, 15, v1
    v_lshlrev_b32 v7, 4, v7
    s_lshl_b32 s61, {sIt}, 2
    s_add_u32 s61, s61, {sW}
    s_mul_i32 s61, s61, 3072
    s_add_u32 s61, s61, {WS_W}
    s_lshl_b32 s62, {sIt}, 2
    s_add_u32 s62, s62, {sW}
    s_mul_i32 s62, s62, 192
    s_add_u32 s62, s62, {WS_W + 12*3072}''')
    for v in range(2):
        a(f'''v_add_u32 v5, {2*v}, v4
        v_mul_u32_u24 v6, 43, v5
        v_lshrrev_b32 v6, 7, v6
        v_mul_u32_u24 v8, 3, v6
        v_sub_u32 v5, v5, v8
        v_mul_u32_u24 v6, 39936, v6
        v_lshl_add_u32 v{160+v}, v5, 6, v6
        v_lshl_add_u32 v6, v5, 10, v6
        v_add_u32 v6, v6, v7
        v_lshl_add_u32 v{162+v}, v3, 8, v6
        v_lshrrev_b32 v6, 2, v7
        v_add_u32 v{160+v}, v{160+v}, v6''')
    a(f's_cmp_eq_u32 {sMm}, 1\ns_cbranch_scc1 W_c1')
    a(f'''v_lshrrev_b32 v5, 3, v2
    v_mul_u32_u24 v5, 6144, v5
    v_and_b32 v6, 7, v2
    v_lshl_add_u32 v5, v6, 7, v5
    v_bfe_u32 v6, v2, 1, 3
    v_xor_b32 v6, v6, v3
    v_lshl_add_u32 v5, v6, 4, v5
    v_add_u32 v{vBr}, {BB}, v5''')
    for k in range(1, 4): a(f'v_xor_b32 v{vBr+k}, {32*k}, v{vBr}')
    stages(2, brow)
    a('s_branch W_c2')
    a.label('W_c1'); a.lg = []
    a(f'''v_and_b32 v7, 3, v1
    v_lshl_add_u32 v4, v7, 3, v12
    v_add_u32 v{vBr}, {BB}, v4
    v_xor_b32 v{vBr+1}, 64, v{vBr}''')
    stages(2, btr)
    a.label('W_c2')
    stamp(a, 'qst')
    for v in range(2):
        for i in range(8): a(f'v_cvt_pk_bf16_f32 v{32+8*v+i}, v{AC+16*v+2*i}, v{AC+16*v+2*i+1}')
        a(f'buffer_store_dwordx4 {vr(32+8*v,4)}, v{162+v}, {SWS}, s61 offen {WT}')
        a(f'buffer_store_dwordx4 {vr(36+8*v,4)}, v{162+v}, {SWS}, s61 offen offset:512 {WT}')
    colsum2()
    a('s_mov_b32 exec_hi, 0')
    for v in range(2): a(f'buffer_store_dword v{28+v}, v{160+v}, {SWS}, s62 offen {WT}')
    a('s_mov_b32 exec_hi, -1')
    stamp(a, 'qsto')
    a('s_branch W_done')
    a.label('W_ld'); a.vm = []; a.lg = []
    vA0, vBo = 12, 14
    a(f'''v_lshrrev_b32 v4, 1, v{T8}
    v_xor_b32 v4, v4, v{G8}
    v_mul_u32_u24 v5, 2304, v{T8}
    v_lshl_add_u32 v{vA0}, v4, 4, v5
    v_xor_b32 v{vA0+1}, 64, v{vA0}
    v_lshlrev_b32 v4, 1, v{T8}
    v_and_b32 v4, 4, v4
    v_xor_b32 v4, v4, v{G8}
    v_mul_u32_u24 v5, 768, v{T8}
    v_lshl_add_u32 v{vBo}, v4, 4, v5''')
    sLn = ['s59', 's60', 's61', 's62', 's63', 's64']; sLb = ['s65', 's66', 's67', 's68', 's69', 's3']
    def lstages(nra, mode):
        if opt('prot', 1) and (nra == 3 or opt('protw', 1)): a(f's_mul_i32 s34, {sIt}, 3\ns_lshr_b32 s34, s34, 1\ns_add_u32 s34, s34, {sJt}')
        else: a('s_mov_b32 s34, 0')
        for jj in range(6):
            a(f's_cmp_ge_u32 s34, 6\ns_cselect_b32 s35, 6, 0\ns_sub_u32 s34, s34, s35\ns_lshl_b32 s35, s34, 7\ns_add_u32 {sLn[jj]}, {sA}, s35')
            if mode == 1: a(f's_mul_i32 s35, s34, {64*768}')
            a(f's_add_u32 {sLb[jj]}, {sB}, s35\ns_add_u32 s34, s34, 1')
        def issue(jj):
            for r in range(nra):
                a(f'''s_add_u32 {sT0}, {sLn[jj]}, {r*8*2304}
                s_add_u32 m0, {sLA}, {(r*6+jj)*1024}
                buffer_load_dwordx4 v{vA0+(r&1)}, {SWQ}, {sT0} offen lds''', tag=f'p{jj}')
            for r in range(2):
                if mode == 0:
                    a(f'''s_add_u32 {sT0}, {sLb[jj]}, {r*8*2304}
                    s_add_u32 m0, {sLB}, {BB + (r*6+jj)*1024}
                    buffer_load_dwordx4 v{vA0+r}, {SWQ}, {sT0} offen lds''', tag=f'p{jj}')
                else:
                    a(f'''s_add_u32 {sT0}, {sLb[jj]}, {r*8*768}
                    s_add_u32 m0, {sLB}, {BB + jj*8192 + r*1024}
                    buffer_load_dwordx4 v{vBo}, {SWO}, {sT0} offen lds''', tag=f'p{jj}')
        n0 = opt('pn0', 3) if nra == 3 else opt('pn0w', 3)
        for jj in range(n0): issue(jj)
        for jj in range(6):
            a.wait(vm=f'p{jj}')
            if jj in (0, 3, 5): stamp(a, f'Lp{jj}' if nra == 3 else f'Lq{jj}')
            a('s_barrier')
            if jj + n0 < 6: issue(jj + n0)
    if opt('tlb', 1) >= 0: pages(a)
    a(f's_cmp_lg_u32 {sMm}, 2\ns_cbranch_scc1 W_l0')
    srd(a, 8, 22, 884736); srd(a, 12, 28, 294912)
    a(f'''s_lshl_b32 s34, {sIt}, 2
    s_add_u32 s34, s34, {sW}
    s_mul_i32 {sA}, s34, {24*2304}
    s_add_u32 {sA}, {sA}, 1536
    s_mul_i32 {sLA}, {sW}, 18432
    s_mul_i32 {sB}, {sW}, {16*768}
    s_lshl_b32 s34, {sJt}, 7
    s_add_u32 {sB}, {sB}, s34
    s_lshl_b32 {sLB}, {sW}, 11
    s_and_b32 s34, {sW}, 1
    s_lshl_b32 s34, s34, 6
    v_xor_b32 v{vA0}, s34, v{vA0}
    v_xor_b32 v{vA0+1}, s34, v{vA0+1}''')
    lstages(3, 1)
    a('s_branch W_done')
    a.label('W_l0'); a.vm = []
    if opt('prg', -1) >= 0:
        a(f'''s_waitcnt lgkmcnt(0)
        s_mul_i32 s35, {sTag}, 0x9e3779b1
        s_add_u32 s35, s35, 0x7f4a7c15
        s_add_u32 s35, s35, {sFast}
        s_lshl_b32 s34, {sXCD}, 7
        s_add_u32 s34, s34, {FP}
        v_mov_b32 v20, 0
        s_mov_b32 s56, {opt('prl', 16)}''')
        a.label('W_pw')
        a(f'''buffer_load_dword v21, v20, {SWS}, s34 offen sc1
        s_waitcnt vmcnt(0)
        v_cmp_ne_u32 vcc, s35, v21
        s_cbranch_vccz W_go
        s_sub_u32 s56, s56, 1
        s_cmp_lg_u32 s56, 0
        s_cbranch_scc1 W_pw''')
        a.label('W_go'); a.vm = []
        stamp(a, 'Lgo')
    srd(a, 8, 30, 884736); srd(a, 12, 36, 294912)
    a(f'''s_lshl_b32 s34, {sIt}, 2
    s_add_u32 s34, s34, {sW}
    s_mul_i32 {sA}, s34, {32*2304}
    s_mul_i32 s35, {sMm}, 1536
    s_add_u32 {sA}, {sA}, s35
    s_mul_i32 {sLA}, {sW}, 24576
    s_cmp_eq_u32 {sMm}, 1
    s_cbranch_scc1 W_l1
    s_lshl_b32 s34, {sJt}, 2
    s_add_u32 s34, s34, {sW}
    s_mul_i32 {sB}, s34, {16*2304}
    s_add_u32 {sB}, {sB}, 768
    s_mul_i32 {sLB}, {sW}, 12288''')
    lstages(4, 0)
    a('s_branch W_done')
    a.label('W_l1'); a.vm = []
    a(f'''s_mul_i32 {sB}, {sW}, {16*768}
    s_lshl_b32 s34, {sJt}, 7
    s_add_u32 {sB}, {sB}, s34
    s_lshl_b32 {sLB}, {sW}, 11''')
    lstages(4, 1)
    a.label('W_done'); a.vm = []; a.lg = []
    a.wait_all()
    tag_ready(a)
    a(f'''s_barrier
    s_cmp_lg_u32 {sRole}, 0
    s_cbranch_scc1 W_done3''')
    a.label('W_done2')
    a(f'''
    s_lshl_b32 s34, {sS8}, 3
    s_add_u32 s34, s34, {sXCD}
    s_lshl_b32 s34, s34, 7
    s_mov_b32 s35, {GW}''')
    flag_w0(a, 's34', 's35', 32)
    stamp(a, 'wpub')
    hp_t0(a)
    if opt('tp', 9) == 3:
        a(f'''s_lshl_b32 s34, {sS8}, 2
        s_add_u32 s34, s34, {sW}
        s_mul_i32 s35, s34, 6656
        s_mul_i32 s36, {sXCD}, 212992
        s_add_u32 s35, s35, s36
        s_add_u32 s35, s35, {WS_Q}
        s_mul_i32 s36, s34, 6144
        s_mul_i32 s37, {sXCD}, 196608
        s_add_u32 s36, s36, s37
        s_add_u32 s36, s36, {WS_VP}''')
        for sb, n in (('s35', 7), ('s36', 6)):
            for i in range(n):
                if i == 4: a(f's_add_u32 {sb}, {sb}, 4096')
                a(f'buffer_load_dwordx4 v[64:67], v{vL16}, {SWS}, {sb} offen offset:{(i&3)*1024}')
        a(f's_lshl_b32 s34, {sXCD}, 9\ns_add_u32 s34, s34, {FC1}\nv_lshlrev_b32 v68, 3, v1\nbuffer_load_dword v64, v68, {SWS}, s34 offen')
        a.vm = []
    def wd3():
        a.label('W_done3')
        if opt('tp', 9) == 0: touch2(a)
        a('s_branch P2_l')
    TAIL.append(wd3)
    import v12b
    v12b.phase2(a, globals())
    a.label('K_end')
    a('s_endpgm')
    a.cond = True
    k = 0
    while k < len(TAIL): a.vm = []; a.lg = []; TAIL[k](); k += 1
    return a

KNAME = 'standalone__video_timesformer__vision_kernel'
if __name__ == '__main__':
    out = sys.argv[1]
    a = build()
    head = open('standalone__video_timesformer__vision.s.ref').read().split('; Override launch')[0]
    s = head + '; @launch grid=(256,1,1) block=(512,1,1) lds=151552\n.amdgcn_target "amdgcn-amd-amdhsa--gfx950"\n.text\n'
    s += f'.globl {KNAME}\n.p2align 8\n.type {KNAME},@function\n{KNAME}:\n' + a.text()
    s += f'''.fill 4096, 4, 0xbf800000
  s_endpgm
.section .rodata,"a"
.p2align 6
.amdhsa_kernel {KNAME}
  .amdhsa_next_free_vgpr 256
  .amdhsa_next_free_sgpr 102
  .amdhsa_accum_offset 256
  .amdhsa_group_segment_fixed_size 0
  .amdhsa_kernarg_size 64
  .amdhsa_user_sgpr_count 2
  .amdhsa_user_sgpr_kernarg_segment_ptr 1
  .amdhsa_system_sgpr_workgroup_id_x 1
.end_amdhsa_kernel
'''
    open(out, 'w').write(s)
    if PROFILE: open(out + '.stamps', 'w').write(repr(St.names))
    print('instructions', sum(1 for i in a.ins if not i.label), 'pad states', a.pads)
```

```python
def phase2(a, G):
    globals().update({k: v for k, v in G.items() if not k.startswith('__')})
    sT = sXCD
    OWT = {0: '', 1: 'sc1', 2: 'nt'}[opt('owt', 0)]
    WT2 = WT if opt('wt2', 1) else ''
    sRH, sS, sQT, sCH, sT0, sT1 = 's50', 's51', 's52', 's53', 's54', 's55'
    sK, sSt1, sSt2, sQ, sVP, sOut, sF1, sF2, sOwn, sE8, sRs = 's56', 's57', 's58', 's59', 's60', 's61', 's62', 's63', 's64', 's65', 's66'
    LW, LT, LQ, LP, LML, LO = 0, 40960, 49152, 0, 71680, 73728
    vWa, vWb = 116, 117
    vL16, vW12, vTb, vA, vB, vSt = 10, 11, 12, 15, 9, 8
    RD, MF = 16, 24
    KF, SR = 160, 120
    def common(role):
        a(f'''s_lshr_b32 {sRH}, {sI}, 4
        s_and_b32 {sS}, {sI}, 15
        s_lshr_b32 {sQT}, {sI}, 1
        s_and_b32 {sCH}, {sI}, 1
        s_xor_b32 s34, {sRH}, {role}
        s_lshl_b32 {sE8}, {sW}, 1
        s_add_u32 {sE8}, {sE8}, s34
        s_lshl_b32 s34, s34, 2
        s_add_u32 s34, s34, {sW}
        s_mul_i32 {sK}, s34, 24576
        s_mul_i32 s35, {sT}, 196608
        s_add_u32 {sK}, {sK}, s35
        s_add_u32 {sK}, {sK}, {WS_X1}
        s_lshl_b32 s34, s34, 9
        s_mul_i32 s35, {sT}, 49152
        s_add_u32 s34, s34, s35
        s_add_u32 {sSt1}, s34, {WS_ST}
        s_lshl_b32 s34, {sT}, 9
        s_add_u32 {sF1}, s34, {FC1}
        s_add_u32 {sF2}, s34, {FC2}
        s_lshl_b32 s34, {sT}, 4
        s_add_u32 s34, s34, {sQT}
        s_mul_i32 {sQ}, s34, 13312
        s_add_u32 {sQ}, {sQ}, {WS_Q}
        v_lshrrev_b32 v2, 4, v1
        v_and_b32 v3, 15, v1
        v_lshrrev_b32 v4, 5, v1
        v_bfe_u32 v5, v1, 4, 1
        v_and_b32 v6, 31, v1
        v_lshlrev_b32 v{vSt}, 4, v6
        v_mul_u32_u24 v7, 24576, v4
        v_add_u32 v{vSt}, v{vSt}, v7
        v_cmp_eq_u32 vcc, 3, v2
        v_lshlrev_b32 v7, 4, v3
        v_cndmask_b32 v{vW12}, v{vL16}, v7, vcc
        s_add_u32 s34, {sM1K}, {LT + role*4096}
        v_lshl_add_u32 v{vTb}, v6, 2, s34
        v_lshl_add_u32 v{vTb+1}, v3, 2, s34
        v_lshl_add_u32 v{vTb+2}, v2, 4, s34''')
    def stats_load():
        for i in range(6):
            if i: a(f's_add_u32 {sSt1}, {sSt1}, 4096')
            a(f'buffer_load_dwordx4 {vr(SR+4*i,4)}, v{vSt}, {SWS}, {sSt1} offen sc1', tag='st')
    def stats_math(need_rt, defer=False):
        q = [f's_mov_b32 s36, {fbits(1/384)}', f's_mov_b32 s37, {fbits(1e-5)}', ('v', 'st')]
        for k in (0, 1): q += [f'v_add_f32 v{SR+k}, v{SR+k}, v{SR+4+k}', f'v_add_f32 v{SR+8+k}, v{SR+8+k}, v{SR+12+k}', f'v_add_f32 v{SR+16+k}, v{SR+16+k}, v{SR+20+k}']
        for k in (0, 1): q += [f'v_add_f32 v{SR+k}, v{SR+k}, v{SR+8+k}']
        for k in (0, 1): q += [f'v_add_f32 v{SR+k}, v{SR+k}, v{SR+16+k}']
        q += f'''v_mov_b32 v{SR+2}, v{SR}
        v_mov_b32 v{SR+3}, v{SR+1}
        v_cmp_eq_u32 vcc, 3, v2
        v_permlane32_swap_b32 v{SR}, v{SR+2}
        v_permlane32_swap_b32 v{SR+1}, v{SR+3}
        v_add_f32 v{SR}, v{SR}, v{SR+2}
        v_add_f32 v{SR+1}, v{SR+1}, v{SR+3}
        v_mul_f32 v{SR}, s36, v{SR}
        v_mul_f32 v{SR+2}, v{SR}, v{SR}
        v_fma_f32 v{SR+1}, v{SR+1}, s36, -v{SR+2}
        v_max_f32 v{SR+1}, 0, v{SR+1}
        v_add_f32 v{SR+1}, s37, v{SR+1}
        v_rsq_f32 v{SR+1}, v{SR+1}
        v_cvt_pk_bf16_f32 v{SR}, -v{SR}, -v{SR}
        ds_write_b32 v{vTb}, v{SR}
        ds_write_b32 v{vTb}, v{SR+1} offset:128'''.split('\n')
        q.append((f'ds_read2_b32 {vr(SR+4,2)}, v{vTb+1} offset0:0 offset1:16', 't'))
        if need_rt: q.append((f'ds_read2_b32 {vr(RT,2)}, v{vTb+1} offset0:32 offset1:48', 't'))
        for t in range(2): q.append((f'ds_read_b128 {vr(RD+4*t,4)}, v{vTb+2} offset:{128+64*t}', 't'))
        q += ['s_nop 0', 's_nop 0', 's_nop 0', 's_nop 0'] if defer else []
        q.append(('l', 't'))
        for t in range(2):
            q.append(f'v_cndmask_b32 v{MF+4*t}, v{SR+4+t}, 0, vcc')
            for d in range(1, 4): q.append(f'v_mov_b32 v{MF+4*t+d}, v{MF+4*t}')
        if defer: return q
        run(q, 1000)
    def run(q, n):
        while n > 0 and q:
            x = q.pop(0); n -= 1
            if x == 's_nop 0': continue
            if isinstance(x, tuple):
                if x[0] == 'v': a.wait(vm=x[1])
                elif x[0] == 'l': a.wait(lg=x[1])
                else: a(x[0], tag=x[1])
            else: a(x)
    def kld(t, ks):
        off = t*12288 + ks*1024
        a(f's_add_u32 {sT0}, {sK}, {off & ~4095}\nbuffer_load_dwordx4 {vr(KF+(t*12+ks)*4,4)}, v{vL16}, {SWS}, {sT0} offen offset:{off & 4095} sc1', tag=f'k{t}_{ks}')
    QF, SA, VF, RT = 32, 56, 64, 6
    vP, vML, vMLr = 13, 14, 12
    M_, T_ = 4, 5
    def attn_addr(role):
        a(f'''s_lshl_b32 s34, {sE8}, 10
        s_add_u32 s34, s34, {LP}
        v_add_u32 v{vP}, s34, v{vL16}
        s_lshl_b32 s34, {sE8}, 2
        s_add_u32 s34, s34, {LML}
        v_lshl_add_u32 v{vML}, v3, 5, s34
        v_lshlrev_b32 v{vMLr}, 5, v3
        v_add_u32 v{vMLr}, {LML}, v{vMLr}
        v_lshlrev_b32 v{vW12}, 2, v3
        v_lshl_add_u32 v{vW12}, v5, 8, v{vW12}
        v_add_u32 v{vW12}, {LQ + 12288}, v{vW12}
        s_mov_b32 exec_lo, 0''')
        for r in range(MF, MF + 8): a(f'v_mov_b32 v{r}, 0')
        a('s_mov_b32 exec_lo, -1')
    def scores(fill):
        def qrd(ks):
            d = QF + 4*(ks%4)
            if ks < 12: a(f'ds_read_b128 {vr(d,4)}, v{vL16} offset:{LQ + ks*1024}', tag=f'q{ks}')
            else: a(f'ds_read2_b32 {vr(d,2)}, v{vW12} offset0:0 offset1:16\nds_read2_b32 {vr(d+2,2)}, v{vW12} offset0:32 offset1:48', tag=f'q{ks}')
        for ks in range(3): qrd(ks)
        for ks in range(13):
            a.wait(lg=f'q{ks}')
            for t in range(2):
                kf = vr(KF+(t*12+ks)*4, 4) if ks < 12 else vr(MF+4*t, 4)
                d = vr(SA+4*t, 4)
                a(f'v_mfma_f32_16x16x32_bf16 {d}, {kf}, {vr(QF+4*(ks%4),4)}, {"0" if ks == 0 else d}')
            if ks + 3 < 13: qrd(ks + 3)
            if ks % 2 == 1 or opt('vfast', 0): fill()
        for i in range(8): a(f'v_mul_f32 v{SA+i}, v{SA+i}, v{RD+i}')
        a(f'v_max3_f32 v{M_}, v{SA}, v{SA+1}, v{SA+2}\nv_max3_f32 v{T_}, v{SA+3}, v{SA+4}, v{SA+5}\nv_max3_f32 v{M_}, v{M_}, v{SA+6}, v{SA+7}\nv_max_f32 v{M_}, v{M_}, v{T_}')
        for sw in ('v_permlane16_swap_b32', 'v_permlane32_swap_b32'):
            a(f'v_mov_b32 v{T_}, v{M_}'); fill(); a(f'{sw} v{M_}, v{T_}\nv_max_f32 v{M_}, v{M_}, v{T_}')
        a(f's_mov_b64 exec, 0xffff\nds_write_b32 v{vML}, v{M_}\ns_mov_b64 exec, -1')
        fill()
        a('s_waitcnt lgkmcnt(0)'); a.lg = []
        a('s_barrier')
        a(f'ds_read_b128 {vr(QF,4)}, v{vMLr}\nds_read_b128 {vr(QF+4,4)}, v{vMLr} offset:16', tag='mx')
        fill(); fill()
        a.wait(lg='mx')
        a(f'v_max3_f32 v{M_}, v{QF}, v{QF+1}, v{QF+2}\nv_max3_f32 v{T_}, v{QF+3}, v{QF+4}, v{QF+5}\nv_max3_f32 v{M_}, v{M_}, v{QF+6}, v{QF+7}\nv_max_f32 v{M_}, v{M_}, v{T_}')
        for i in range(8): a(f'v_sub_f32 v{SA+i}, v{SA+i}, v{M_}')
        for i in range(8): a(f'v_exp_f32 v{SA+i}, v{SA+i}')
        for i in range(4): a(f'v_cvt_pk_bf16_f32 v{QF+i}, v{SA+2*i}, v{SA+2*i+1}')
        a(f'ds_write_b128 v{vP}, {vr(QF,4)}')
        for w_ in (4, 2, 1):
            for i in range(w_): a(f'v_add_f32 v{SA+i}, v{SA+i}, v{SA+i+w_}')
        for sw in ('v_permlane16_swap_b32', 'v_permlane32_swap_b32'):
            a(f'v_mov_b32 v{T_}, v{SA}'); fill(); a(f'{sw} v{SA}, v{T_}\nv_add_f32 v{SA}, v{SA}, v{T_}')
        a(f's_mov_b64 exec, 0xffff\nds_write_b32 v{vML}, v{SA} offset:512\ns_mov_b64 exec, -1')
        a('s_waitcnt lgkmcnt(0)'); a.lg = []
        a('s_barrier')
    a.label('P2_c'); a.vm = []; a.lg = []
    stamp(a, 'p2c')
    common(0)
    WF, ACC, PK = 32, 76, 100
    a(f'''v_lshlrev_b32 v7, 4, v3
    v_lshl_add_u32 v{vA}, v4, 8, v7
    v_lshl_add_u32 v{vA}, v5, 3, v{vA}
    v_mul_u32_u24 v{vB}, 13312, v5
    v_lshl_add_u32 v{vB}, v3, 2, v{vB}
    s_lshl_b32 {sOwn}, {sI}, 4
    s_lshl_b32 s34, {sW}, 2
    s_add_u32 {sOwn}, {sOwn}, s34
    s_mul_i32 {sVP}, {sT}, 196608
    s_mul_i32 s35, {sQT}, 12288
    s_add_u32 {sRs}, {sVP}, s35
    s_mul_i32 s34, {sCH}, 6144
    s_add_u32 {sRs}, {sRs}, s34
    s_mul_i32 s34, {sW}, 1536
    s_add_u32 {sRs}, {sRs}, s34
    s_add_u32 {sRs}, {sRs}, {WS_X1}
    s_add_u32 {sOut}, {sVP}, s35
    s_mul_i32 s35, {sCH}, 384
    s_add_u32 {sOut}, {sOut}, s35
    s_mul_i32 s35, {sW}, 96
    s_add_u32 {sOut}, {sOut}, s35
    s_mul_i32 s34, {sE8}, 24576
    s_add_u32 s34, s34, {sVP}
    s_mul_i32 s35, {sS}, 3072
    s_add_u32 s34, s34, s35
    s_add_u32 s67, s34, {WS_VP - 8*3072}
    s_mul_i32 s35, {sCH}, 12288
    s_add_u32 {sVP}, {sVP}, s35
    s_mul_i32 s35, {sW}, 3072
    s_add_u32 {sVP}, {sVP}, s35
    s_add_u32 {sVP}, {sVP}, {WS_VP}
    s_lshl_b32 s34, {sT}, 4
    s_lshl_b32 s35, {sRH}, 3
    s_add_u32 s34, s34, s35
    s_lshl_b32 s35, {sW}, 1
    s_add_u32 s34, s34, s35
    s_mul_i32 s34, s34, 13312
    s_add_u32 s34, s34, {WS_Q}
    s_mul_i32 s35, {sS}, 1536
    s_add_u32 s68, s34, s35
    s_lshl_b32 s35, {sS}, 6
    s_add_u32 s34, s34, s35
    s_add_u32 {sSt2}, s34, 12288''')
    a(f'v_add_u32 v{vWa}, {LW34}, v{vL16}\nv_lshrrev_b32 v6, 8, v{vW12}\nv_mul_u32_u24 v6, 768, v6\nv_lshl_add_u32 v6, v3, 2, v6\nv_add_u32 v{vWb}, {LW34 + 36864}, v6')
    stamp(a, 'p2s')
    a('s_barrier')
    stamp(a, 'gsync')
    AHEAD = opt('ahead', 6)
    STP = opt('stp', 7)
    for ks in range(AHEAD):
        if ks == STP: stats_load()
        kld(0, ks); kld(1, ks)
    def wrd(ks, u):
        d = WF + (ks%2)*12 + 4*u
        if ks < 12: a(f'ds_read_b128 {vr(d,4)}, v{vWa} offset:{(ks*3+u)*1024}', tag=f'f{ks}_{u}')
        else: a(f'ds_read2_b32 {vr(d,2)}, v{vWb} offset0:{16*u} offset1:{16*u+48}\nds_read2_b32 {vr(d+2,2)}, v{vWb} offset0:{16*u+96} offset1:{16*u+144}', tag=f'f{ks}_{u}')
    late = stats_math(True, True)
    late += [f'v_mul_f32 v{RT}, {fbits(SCALE2)}, v{RT}', f'v_mul_f32 v{RT+1}, {fbits(SCALE2)}, v{RT+1}']
    stamp(a, 'mm2')
    a(f's_cmp_ge_u32 {sS}, 8\ns_cbranch_scc1 P2_v')
    for var in range(2):
        if var == 0: vmsave, lgsave = list(a.vm), list(a.lg)
        else: a.label('P2_v'); a.vm, a.lg = list(vmsave), list(lgsave)
        lq = list(late)
        for u in range(3): wrd(0, u)
        for ks in range(13):
            if ks == 12: run(lq, 1000)
            if ks + AHEAD < 12:
                if ks + AHEAD == STP: stats_load()
                kld(0, ks + AHEAD); kld(1, ks + AHEAD)
            if ks + AHEAD == 12 - opt('bke', 1) and opt('bk', 1): a('s_barrier')
            if ks < 12: a.wait(vm=f'k1_{ks}')
            if ks in (0, 4, 8, 11): stamp(a, f'k{ks}')
            for u in range(3):
                a.wait(lg=f'f{ks}_{u}')
                wf = vr(WF + (ks%2)*12 + 4*u, 4)
                for t in range(2):
                    xf = vr(KF+(t*12+ks)*4, 4) if ks < 12 else vr(MF+4*t, 4)
                    d = vr(ACC + (t*3+u)*4, 4)
                    A, B = (wf, xf) if var == 0 else (xf, wf)
                    a(f'v_mfma_f32_16x16x32_bf16 {d}, {A}, {B}, {"0" if ks == 0 else d}')
                if ks < 12: wrd(ks + 1, u)
                if ks >= max(1, STP - AHEAD + 3): run(lq, 2 if STP < AHEAD else 3)
        stamp(a, 'mm2end')
        if var == 0:
            AQ = 112
            a(f'v_mov_b32 v{AQ}, 0\nv_mov_b32 v{AQ+1}, 0\ns_mov_b32 s36, 0x3f803f80\ns_mov_b32 {sSt1}, s68')
            for t in range(2):
                for u in range(3):
                    b = ACC + (t*3+u)*4
                    for d in range(2): a(f'v_pk_mul_f32 {vr(b+2*d,2)}, {vr(b+2*d,2)}, {vr(RT,2)} op_sel:[0,{t}] op_sel_hi:[1,{t}]')
                    for d in range(2): a(f'v_cvt_pk_bf16_f32 v{PK+(t*3+u)*2+d}, v{b+2*d}, v{b+2*d+1}')
            def pub0(s1, s2, fl, first=False):
                for t in range(2):
                    if t: a(f's_add_u32 {sT1}, {s1}, 13312')
                    for u in range(3):
                        a(f'buffer_store_dwordx2 {vr(PK+(t*3+u)*2,2)}, v{vA}, {SWS}, {sT1 if t else s1} offen offset:{u*512} {fl}')
                if first:
                    for i in range(6):
                        for t in range(2): a(f'v_dot2c_f32_bf16 v{AQ+t}, s36, v{PK+t*6+i}')
                    for sw in ('v_permlane16_swap_b32', 'v_permlane32_swap_b32'):
                        a(f'v_mov_b32 v{AQ+2}, v{AQ}\nv_mov_b32 v{AQ+3}, v{AQ+1}\n{sw} v{AQ}, v{AQ+2}\n{sw} v{AQ+1}, v{AQ+3}\nv_add_f32 v{AQ}, v{AQ}, v{AQ+2}\nv_add_f32 v{AQ+1}, v{AQ+1}, v{AQ+3}')
                    a(f'''v_cmp_eq_u32 vcc, 1, v5
                    v_cndmask_b32 v{AQ}, v{AQ}, v{AQ+1}, vcc
                    v_cvt_pk_bf16_f32 v{AQ+1}, v{AQ}, v{AQ}
                    v_lshlrev_b32 v{AQ+1}, 16, v{AQ+1}
                    v_sub_f32 v{AQ+1}, v{AQ}, v{AQ+1}
                    v_cvt_pk_bf16_f32 v{AQ}, v{AQ}, v{AQ+1}''')
                a(f's_mov_b32 exec_hi, 0\nbuffer_store_dword v{AQ}, v{vB}, {SWS}, {s2} offen {fl}\ns_mov_b32 exec_hi, -1')
            pub0(sSt1, sSt2, WT2, True)
            a('s_branch P2_j')
        else:
            a(f's_mov_b32 {sSt1}, s67')
            for u in range(3):
                for t in range(2):
                    b = ACC + (t*3+u)*4
                    for d in range(2): a(f'v_pk_mul_f32 {vr(b+2*d,2)}, {vr(b+2*d,2)}, {vr(RD+4*t+2*d,2)}')
                    for d in range(2): a(f'v_cvt_pk_bf16_f32 v{PK+u*4+t*2+d}, v{b+2*d}, v{b+2*d+1}')
            def pub1(s1, fl):
                for u in range(3): a(f'buffer_store_dwordx4 {vr(PK+4*u,4)}, v{vL16}, {SWS}, {s1} offen offset:{u*1024} {fl}')
            pub1(sSt1, WT2)
    a.label('P2_j')
    attn_addr(0)
    vOW, vOR, vOG = 116, 117, 119
    a.wait_all()
    flag(a, sOwn, sF1, sFast, 6, '')
    stamp(a, 'flag2')
    RS = 48
    for u in range(3): a(f'buffer_load_dwordx2 {vr(RS+2*u,2)}, v{vA}, {SWS}, {sRs} offen offset:{u*512} sc1', tag='rs')
    def repub():
        L1, L2 = a.newlabel('rp'), a.newlabel('rp')
        a(f's_add_u32 s36, {sSt1}, {SLOW}\ns_add_u32 s37, {sSt2}, {SLOW}\ns_cmp_ge_u32 {sS}, 8\ns_cbranch_scc1 {L1}')
        pub0('s36', 's37', 'sc0 sc1'); a(f's_branch {L2}')
        a.label(L1); pub1('s36', 'sc0 sc1'); a.label(L2)
    lsync(a, 32, True, sF1, sF2, sOwn, (lambda: None) if WT2 else repub, 32, 0 if WT2 else SLOW)
    stamp(a, 'sync2')
    a(f's_add_u32 {sVP}, {sVP}, {sDelta}\ns_add_u32 {sQ}, {sQ}, {sDelta}\ns_add_u32 {sT1}, {sQ}, {sM1K}')
    for i in range(3):
        a(f's_add_u32 {sT0}, {sT1}, {i*4096}\ns_add_u32 m0, {sM1K}, {LQ + i*4096}\nbuffer_load_dwordx4 v{vL16}, {SWS}, {sT0} offen sc1 lds', tag='q')
    a(f's_add_u32 {sT0}, {sQ}, 12288\ns_mov_b32 m0, {LQ + 12288}\nbuffer_load_dwordx4 v{vL16}, {SWS}, {sT0} offen sc1 lds', tag='q')
    vq = []
    for k8 in range(8):
        for u in range(3):
            vq.append(((f's_add_u32 {sVP}, {sVP}, 24576\n' if k8 and u == 0 else '') + f'buffer_load_dwordx4 {vr(VF+(k8*3+u)*4,4)}, v{vL16}, {SWS}, {sVP} offen offset:{u*1024} sc1', f'vp{k8}'))
    def fill():
        if vq: x = vq.pop(0); a(x[0], tag=x[1])
    for _ in range(opt('nv0', 5)): fill()
    a.wait(vm='q')
    a('s_barrier')
    stamp(a, 'q_in')
    scores(fill)
    stamp(a, 'p_done')
    while vq: fill()
    PF, PA, RF, ML = 160, 32, 200, 212
    for k8 in range(8): a(f'ds_read_b128 {vr(PF+4*k8,4)}, v{vL16} offset:{LP + k8*1024}', tag=f'p{k8}')
    a(f'ds_read_b128 {vr(ML,4)}, v{vMLr} offset:512\nds_read_b128 {vr(ML+4,4)}, v{vMLr} offset:528', tag='ml')
    vOW, vOR, vOG = 220, 221, 223
    fx = [f's_lshl_b32 s35, {sW}, 11', f's_add_u32 s35, s35, {LO}', f'v_mul_u32_u24 v{vOW}, 112, v3', f'v_lshl_add_u32 v{vOW}, v2, 3, v{vOW}', f'v_add_u32 v{vOW}, s35, v{vOW}']
    for h in range(2):
        fx += [f'v_add_u32 v6, {64*h}, v1', 'v_mul_u32_u24 v7, 43, v6', 'v_lshrrev_b32 v7, 8, v7', 'v_mul_u32_u24 v4, 6, v7', 'v_sub_u32 v4, v6, v4', 'v_lshlrev_b32 v4, 4, v4',
               'v_mul_u32_u24 v6, 112, v7', f'v_add3_u32 v{vOR+h}, v6, v4, s35', 'v_mul_u32_u24 v6, 768, v7', f'v_add_u32 v{vOG+h}, v6, v4']
    fx += [('l', 'ml')] + [f'v_add_f32 v{ML+i}, v{ML+i}, v{ML+4+i}' for i in range(4)] + [f'v_add_f32 v{ML}, v{ML}, v{ML+1}', f'v_add_f32 v{ML+2}, v{ML+2}, v{ML+3}', f'v_add_f32 v{ML}, v{ML}, v{ML+2}', f'v_rcp_f32 v{ML}, v{ML}', ]
    fx = ['s_mov_b32 s36, 0xffff0000'] + [x for u in range(3) for d in range(2) for x in (f'v_lshlrev_b32 v{RF+4*u+2*d}, 16, v{RS+2*u+d}', f'v_and_b32 v{RF+4*u+2*d+1}, s36, v{RS+2*u+d}')] + fx
    def fxd(n):
        while n > 0 and fx:
            x = fx.pop(0)
            if isinstance(x, tuple): a.wait(lg=x[1])
            else: a(x); n -= 1
    for k8 in range(8):
        a.wait(vm=f'vp{k8}', lg=f'p{k8}')
        for u in range(3):
            d = vr(PA + 4*u, 4)
            a(f'v_mfma_f32_16x16x32_bf16 {d}, {vr(VF+(k8*3+u)*4,4)}, {vr(PF+4*k8,4)}, {"0" if k8 == 0 else d}')
            fxd(3)
    fxd(1000)
    stamp(a, 'pv_done')
    OP = 192
    for u in range(3):
        for d in range(2): a(f'v_pk_fma_f32 {vr(RF+4*u+2*d,2)}, {vr(PA+4*u+2*d,2)}, {vr(ML,2)}, {vr(RF+4*u+2*d,2)} op_sel_hi:[1,0,1]')
        for d in range(2): a(f'v_cvt_pk_bf16_f32 v{OP+2*u+d}, v{RF+4*u+2*d}, v{RF+4*u+2*d+1}')
        a(f'ds_write_b64 v{vOW}, {vr(OP+2*u,2)} offset:{u*32}')
    a(f'ds_read_b128 {vr(56,4)}, v{vOR}', tag='o0')
    a(f's_mov_b32 exec_hi, 0\nds_read_b128 {vr(60,4)}, v{vOR+1}\ns_mov_b32 exec_hi, -1', tag='o1')
    a.wait(lg='o0')
    a(f'buffer_store_dwordx4 {vr(56,4)}, v{vOG}, {SOUT}, {sOut} offen {OWT}')
    a.wait(lg='o1')
    a(f's_mov_b32 exec_hi, 0\nbuffer_store_dwordx4 {vr(60,4)}, v{vOG+1}, {SOUT}, {sOut} offen {OWT}\ns_mov_b32 exec_hi, -1')
    if PROFILE: a.wait_all()
    stamp(a, 'end')
    stamp_flush(a)
    a('s_endpgm')
    a.label('P2_l'); a.vm = []; a.lg = []
    stamp(a, 'Lp2')
    if opt('hint', 0):
        L = a.newlabel('hs')
        a(f's_cmp_lg_u32 {sI}, 31\ns_cbranch_scc1 {L}\ns_cmp_lg_u32 {sW}, 0\ns_cbranch_scc1 {L}')
        a.cond = True
        a(f's_lshl_b32 s34, {sT}, 7\ns_mov_b32 s35, {FP + 1024}'); flag(a, 's34', 's35', sFast, 52, ''); a.vm.pop()
        a.cond = False
        a.label(L)
    common(1)
    stamp(a, 'Lcm')
    wpoll(a)
    wcopy(a)
    if opt('hint', 0):
        Lh, Lg = a.newlabel('hw'), a.newlabel('hg')
        a(f's_cmp_ge_u32 {sI}, 8\ns_cbranch_scc1 {Lg}\ns_lshl_b32 s34, {sT}, 7\ns_add_u32 s34, s34, {FP + 1024}\nv_mov_b32 v34, 0\ns_mov_b32 s35, 64')
        a.label(Lh)
        a(f'''s_mov_b64 exec, 1
        buffer_load_dword v35, v34, {SWS}, s34 offen sc1
        s_waitcnt vmcnt(0)
        v_cmp_ne_u32 vcc, {sFast}, v35
        s_mov_b64 exec, -1
        s_cbranch_vccz {Lg}
        s_sub_u32 s35, s35, 1
        s_cmp_lg_u32 s35, 0
        s_cbranch_scc1 {Lh}''')
        a.label(Lg); a.vm = []
    a(f's_mul_i32 s67, {sW}, {48*128}\ns_add_u32 s67, s67, {GX}')
    gpoll(a, 48, 7, 's67', 33)
    stamp(a, 'Lxf')
    a.label('P2_lg')
    a(f's_mul_i32 s67, {sT}, 196608\ns_mul_i32 s68, {sI}, 6144\ns_add_u32 s67, s67, s68\ns_add_u32 s67, s67, {WS_X1}\ns_mul_i32 s68, {sW}, 1536\ns_add_u32 s67, s67, s68')
    a('s_barrier')
    if opt('xpf', 0):
        a(f'buffer_load_dwordx4 v[32:35], v{vL16}, {SWS}, s67 offen sc1\ns_mov_b32 exec_hi, 0\nbuffer_load_dwordx4 v[36:39], v{vL16}, {SWS}, s67 offen offset:1024 sc1\ns_mov_b32 exec_hi, -1')
    L = a.newlabel('be')
    a(f's_or_b32 s34, {sW}, s2\ns_cmp_lg_u32 s34, 0\ns_cbranch_scc1 {L}')
    a.cond = True; a(f's_mov_b32 s34, {WE}'); flag(a, '0', 's34', sTag, 40, 'sc0 sc1'); a.vm.pop(); a.cond = False
    a.label(L)
    if opt('bk', 1): a('s_barrier')
    stats_load()
    KA, KB = opt('ka', 5), opt('kb', 5)
    for ks in range(12):
        if ks == KA: stats_math(False); attn_addr(1)
        if ks == 0 and opt('tp', 9) == 2: touch2(a)
        if ks in (KA, KB): a.wait_all(lg=False)
        kld(0, ks); kld(1, ks)
    stamp(a, 'Lkiss')
    a.wait_all()
    stamp(a, 'Lk')
    a('s_barrier')
    scores(lambda: None)
    stamp_flush(a, 'L')
```

```python
def phase2(a, G):
    globals().update({k: v for k, v in G.items() if not k.startswith('__')})
    sT = sXCD
    OWT = {0: '', 1: 'sc1', 2: 'nt'}[opt('owt', 0)]
    WT2 = WT if opt('wt2', 1) else ''
    sRH, sS, sQT, sCH, sT0, sT1 = 's50', 's51', 's52', 's53', 's54', 's55'
    sK, sSt1, sSt2, sQ, sVP, sOut, sF1, sF2, sOwn, sE8, sRs = 's56', 's57', 's58', 's59', 's60', 's61', 's62', 's63', 's64', 's65', 's66'
    LW, LT, LQ, LP, LML, LO = 0, 40960, 49152, 0, 71680, 73728
    vWa, vWb = 116, 117
    vL16, vW12, vTb, vA, vB, vSt = 10, 11, 12, 15, 9, 8
    RD, MF = 16, 24
    KF, SR = 160, 120
    def common(role):
        a(f'''s_lshr_b32 {sRH}, {sI}, 4
        s_and_b32 {sS}, {sI}, 15
        s_lshr_b32 {sQT}, {sI}, 1
        s_and_b32 {sCH}, {sI}, 1
        s_xor_b32 s34, {sRH}, {role}
        s_lshl_b32 {sE8}, {sW}, 1
        s_add_u32 {sE8}, {sE8}, s34
        s_lshl_b32 s34, s34, 2
        s_add_u32 s34, s34, {sW}
        s_mul_i32 {sK}, s34, 24576
        s_mul_i32 s35, {sT}, 196608
        s_add_u32 {sK}, {sK}, s35
        s_add_u32 {sK}, {sK}, {WS_X1}
        s_lshl_b32 s34, s34, 9
        s_mul_i32 s35, {sT}, 49152
        s_add_u32 s34, s34, s35
        s_add_u32 {sSt1}, s34, {WS_ST}
        s_lshl_b32 s34, {sT}, 9
        s_add_u32 {sF1}, s34, {FC1}
        s_add_u32 {sF2}, s34, {FC2}
        s_lshl_b32 s34, {sT}, 4
        s_add_u32 s34, s34, {sQT}
        s_mul_i32 {sQ}, s34, 13312
        s_add_u32 {sQ}, {sQ}, {WS_Q}
        v_lshrrev_b32 v2, 4, v1
        v_and_b32 v3, 15, v1
        v_lshrrev_b32 v4, 5, v1
        v_bfe_u32 v5, v1, 4, 1
        v_and_b32 v6, 31, v1
        v_lshlrev_b32 v{vSt}, 4, v6
        v_mul_u32_u24 v7, 24576, v4
        v_add_u32 v{vSt}, v{vSt}, v7
        v_cmp_eq_u32 vcc, 3, v2
        v_lshlrev_b32 v7, 4, v3
        v_cndmask_b32 v{vW12}, v{vL16}, v7, vcc
        s_add_u32 s34, {sM1K}, {LT + role*4096}
        v_lshl_add_u32 v{vTb}, v6, 2, s34
        v_lshl_add_u32 v{vTb+1}, v3, 2, s34
        v_lshl_add_u32 v{vTb+2}, v2, 4, s34''')
    def stats_load():
        for i in range(6):
            if i: a(f's_add_u32 {sSt1}, {sSt1}, 4096')
            a(f'buffer_load_dwordx4 {vr(SR+4*i,4)}, v{vSt}, {SWS}, {sSt1} offen sc1', tag='st')
    def stats_math(need_rt, defer=False):
        q = [f's_mov_b32 s36, {fbits(1/384)}', f's_mov_b32 s37, {fbits(1e-5)}', ('v', 'st')]
        for k in (0, 1): q += [f'v_add_f32 v{SR+k}, v{SR+k}, v{SR+4+k}', f'v_add_f32 v{SR+8+k}, v{SR+8+k}, v{SR+12+k}', f'v_add_f32 v{SR+16+k}, v{SR+16+k}, v{SR+20+k}']
        for k in (0, 1): q += [f'v_add_f32 v{SR+k}, v{SR+k}, v{SR+8+k}']
        for k in (0, 1): q += [f'v_add_f32 v{SR+k}, v{SR+k}, v{SR+16+k}']
        q += f'''v_mov_b32 v{SR+2}, v{SR}
        v_mov_b32 v{SR+3}, v{SR+1}
        v_cmp_eq_u32 vcc, 3, v2
        v_permlane32_swap_b32 v{SR}, v{SR+2}
        v_permlane32_swap_b32 v{SR+1}, v{SR+3}
        v_add_f32 v{SR}, v{SR}, v{SR+2}
        v_add_f32 v{SR+1}, v{SR+1}, v{SR+3}
        v_mul_f32 v{SR}, s36, v{SR}
        v_mul_f32 v{SR+2}, v{SR}, v{SR}
        v_fma_f32 v{SR+1}, v{SR+1}, s36, -v{SR+2}
        v_max_f32 v{SR+1}, 0, v{SR+1}
        v_add_f32 v{SR+1}, s37, v{SR+1}
        v_rsq_f32 v{SR+1}, v{SR+1}
        v_cvt_pk_bf16_f32 v{SR}, -v{SR}, -v{SR}
        ds_write_b32 v{vTb}, v{SR}
        ds_write_b32 v{vTb}, v{SR+1} offset:128'''.split('\n')
        q.append((f'ds_read2_b32 {vr(SR+4,2)}, v{vTb+1} offset0:0 offset1:16', 't'))
        if need_rt: q.append((f'ds_read2_b32 {vr(RT,2)}, v{vTb+1} offset0:32 offset1:48', 't'))
        for t in range(2): q.append((f'ds_read_b128 {vr(RD+4*t,4)}, v{vTb+2} offset:{128+64*t}', 't'))
        q += ['s_nop 0', 's_nop 0', 's_nop 0', 's_nop 0'] if defer else []
        q.append(('l', 't'))
        for t in range(2):
            q.append(f'v_cndmask_b32 v{MF+4*t}, v{SR+4+t}, 0, vcc')
            for d in range(1, 4): q.append(f'v_mov_b32 v{MF+4*t+d}, v{MF+4*t}')
        if defer: return q
        run(q, 1000)
    def run(q, n):
        while n > 0 and q:
            x = q.pop(0); n -= 1
            if x == 's_nop 0': continue
            if isinstance(x, tuple):
                if x[0] == 'v': a.wait(vm=x[1])
                elif x[0] == 'l': a.wait(lg=x[1])
                else: a(x[0], tag=x[1])
            else: a(x)
    def kld(t, ks):
        off = t*12288 + ks*1024
        a(f's_add_u32 {sT0}, {sK}, {off & ~4095}\nbuffer_load_dwordx4 {vr(KF+(t*12+ks)*4,4)}, v{vL16}, {SWS}, {sT0} offen offset:{off & 4095} sc1', tag=f'k{t}_{ks}')
    QF, SA, VF, RT = 32, 56, 64, 6
    vP, vML, vMLr = 13, 14, 12
    M_, T_ = 4, 5
    def attn_addr(role):
        a(f'''s_lshl_b32 s34, {sE8}, 10
        s_add_u32 s34, s34, {LP}
        v_add_u32 v{vP}, s34, v{vL16}
        s_lshl_b32 s34, {sE8}, 2
        s_add_u32 s34, s34, {LML}
        v_lshl_add_u32 v{vML}, v3, 5, s34
        v_lshlrev_b32 v{vMLr}, 5, v3
        v_add_u32 v{vMLr}, {LML}, v{vMLr}
        v_lshlrev_b32 v{vW12}, 2, v3
        v_lshl_add_u32 v{vW12}, v5, 8, v{vW12}
        v_add_u32 v{vW12}, {LQ + 12288}, v{vW12}
        s_mov_b32 exec_lo, 0''')
        for r in range(MF, MF + 8): a(f'v_mov_b32 v{r}, 0')
        a('s_mov_b32 exec_lo, -1')
    def scores(fill, dry=False):
        def bar(n):
            if dry: stamp(a, f'Ls{n}'); a('s_barrier')
            else: stamp(a, f's{n}'); a('s_barrier')
        def qrd(ks):
            d = QF + 4*(ks%4)
            if ks < 12: a(f'ds_read_b128 {vr(d,4)}, v{vL16} offset:{LQ + ks*1024}', tag=f'q{ks}')
            else: a(f'ds_read2_b32 {vr(d,2)}, v{vW12} offset0:0 offset1:16\nds_read2_b32 {vr(d+2,2)}, v{vW12} offset0:32 offset1:48', tag=f'q{ks}')
        for ks in range(3): qrd(ks)
        for ks in range(13):
            a.wait(lg=f'q{ks}')
            for t in range(2):
                kf = vr(KF+(t*12+ks)*4, 4) if ks < 12 else vr(MF+4*t, 4)
                d = vr(SA+4*t, 4)
                a(f'v_mfma_f32_16x16x32_bf16 {d}, {kf}, {vr(QF+4*(ks%4),4)}, {"0" if ks == 0 else d}')
            if ks + 3 < 13: qrd(ks + 3)
            if ks % 2 == 1 or opt('vfast', 1): fill()
        for i in range(8): a(f'v_mul_f32 v{SA+i}, v{SA+i}, v{RD+i}')
        a(f'v_max3_f32 v{M_}, v{SA}, v{SA+1}, v{SA+2}\nv_max3_f32 v{T_}, v{SA+3}, v{SA+4}, v{SA+5}\nv_max3_f32 v{M_}, v{M_}, v{SA+6}, v{SA+7}\nv_max_f32 v{M_}, v{M_}, v{T_}')
        for sw in ('v_permlane16_swap_b32', 'v_permlane32_swap_b32'):
            a(f'v_mov_b32 v{T_}, v{M_}'); fill(); a(f'{sw} v{M_}, v{T_}\nv_max_f32 v{M_}, v{M_}, v{T_}')
        a(f's_mov_b64 exec, 0xffff\nds_write_b32 v{vML}, v{M_}\ns_mov_b64 exec, -1')
        fill()
        a('s_waitcnt lgkmcnt(0)'); a.lg = []
        bar(1)
        a(f'ds_read_b128 {vr(QF,4)}, v{vMLr}\nds_read_b128 {vr(QF+4,4)}, v{vMLr} offset:16', tag='mx')
        fill(); fill()
        a.wait(lg='mx')
        a(f'v_max3_f32 v{M_}, v{QF}, v{QF+1}, v{QF+2}\nv_max3_f32 v{T_}, v{QF+3}, v{QF+4}, v{QF+5}\nv_max3_f32 v{M_}, v{M_}, v{QF+6}, v{QF+7}\nv_max_f32 v{M_}, v{M_}, v{T_}')
        for i in range(8): a(f'v_sub_f32 v{SA+i}, v{SA+i}, v{M_}')
        for i in range(8): a(f'v_exp_f32 v{SA+i}, v{SA+i}')
        for i in range(4): a(f'v_cvt_pk_bf16_f32 v{QF+i}, v{SA+2*i}, v{SA+2*i+1}')
        a(f'ds_write_b128 v{vP}, {vr(QF,4)}')
        for w_ in (4, 2, 1):
            for i in range(w_): a(f'v_add_f32 v{SA+i}, v{SA+i}, v{SA+i+w_}')
        for sw in ('v_permlane16_swap_b32', 'v_permlane32_swap_b32'):
            a(f'v_mov_b32 v{T_}, v{SA}'); fill(); a(f'{sw} v{SA}, v{T_}\nv_add_f32 v{SA}, v{SA}, v{T_}')
        a(f's_mov_b64 exec, 0xffff\nds_write_b32 v{vML}, v{SA} offset:512\ns_mov_b64 exec, -1')
        a('s_waitcnt lgkmcnt(0)'); a.lg = []
        bar(2)
    a.label('P2_c'); a.vm = []; a.lg = []
    stamp(a, 'p2c')
    common(0)
    WF, ACC, PK = 32, 76, 100
    a(f'''v_lshlrev_b32 v7, 4, v3
    v_lshl_add_u32 v{vA}, v4, 8, v7
    v_lshl_add_u32 v{vA}, v5, 3, v{vA}
    v_mul_u32_u24 v{vB}, 13312, v5
    v_lshl_add_u32 v{vB}, v3, 2, v{vB}
    s_lshl_b32 {sOwn}, {sI}, 4
    s_lshl_b32 s34, {sW}, 2
    s_add_u32 {sOwn}, {sOwn}, s34
    s_mul_i32 {sVP}, {sT}, 196608
    s_mul_i32 s35, {sQT}, 12288
    s_add_u32 {sRs}, {sVP}, s35
    s_mul_i32 s34, {sCH}, 6144
    s_add_u32 {sRs}, {sRs}, s34
    s_mul_i32 s34, {sW}, 1536
    s_add_u32 {sRs}, {sRs}, s34
    s_add_u32 {sRs}, {sRs}, {WS_X1}
    s_add_u32 {sOut}, {sVP}, s35
    s_mul_i32 s35, {sCH}, 384
    s_add_u32 {sOut}, {sOut}, s35
    s_mul_i32 s35, {sW}, 96
    s_add_u32 {sOut}, {sOut}, s35
    s_mul_i32 s34, {sE8}, 24576
    s_add_u32 s34, s34, {sVP}
    s_mul_i32 s35, {sS}, 3072
    s_add_u32 s34, s34, s35
    s_add_u32 s67, s34, {WS_VP - 8*3072}
    s_mul_i32 s35, {sCH}, 12288
    s_add_u32 {sVP}, {sVP}, s35
    s_mul_i32 s35, {sW}, 3072
    s_add_u32 {sVP}, {sVP}, s35
    s_add_u32 {sVP}, {sVP}, {WS_VP}
    s_lshl_b32 s34, {sT}, 4
    s_lshl_b32 s35, {sRH}, 3
    s_add_u32 s34, s34, s35
    s_lshl_b32 s35, {sW}, 1
    s_add_u32 s34, s34, s35
    s_mul_i32 s34, s34, 13312
    s_add_u32 s34, s34, {WS_Q}
    s_mul_i32 s35, {sS}, 1536
    s_add_u32 s68, s34, s35
    s_lshl_b32 s35, {sS}, 6
    s_add_u32 s34, s34, s35
    s_add_u32 {sSt2}, s34, 12288''')
    for k in range(4): a(f'v_mov_b32 v{144+k}, 0x3f803f80')
    a(f'''v_add_u32 v148, 1024, v{vL16}
    v_add_u32 v149, 2048, v{vL16}
    v_add_u32 v150, {13312 - 512}, v{vL16}
    v_add_u32 v151, {13312 + 512}, v{vL16}
    s_cmp_lt_u32 {sS}, 8
    s_cselect_b64 vcc, -1, 0
    v_cndmask_b32 v149, v149, v151, vcc
    s_mov_b32 vcc_lo, 0
    v_cndmask_b32 v148, v148, v150, vcc''')
    a(f'v_add_u32 v{vWa}, {LW34}, v{vL16}\nv_lshrrev_b32 v6, 8, v{vW12}\nv_mul_u32_u24 v6, 768, v6\nv_lshl_add_u32 v6, v3, 2, v6\nv_add_u32 v{vWb}, {LW34 + 36864}, v6')
    stamp(a, 'p2s')
    a('s_barrier')
    stamp(a, 'gsync')
    AHEAD = opt('ahead', 6)
    STP = opt('stp', 7)
    for ks in range(AHEAD):
        if ks == STP: stats_load()
        kld(0, ks); kld(1, ks)
    def wrd(ks, u):
        d = WF + (ks%2)*12 + 4*u
        if ks < 12: a(f'ds_read_b128 {vr(d,4)}, v{vWa} offset:{(ks*3+u)*1024}', tag=f'f{ks}_{u}')
        else: a(f'ds_read2_b32 {vr(d,2)}, v{vWb} offset0:{16*u} offset1:{16*u+48}\nds_read2_b32 {vr(d+2,2)}, v{vWb} offset0:{16*u+96} offset1:{16*u+144}', tag=f'f{ks}_{u}')
    late = stats_math(True, True)
    late += [f'v_mul_f32 v{RT}, {fbits(SCALE2)}, v{RT}', f'v_mul_f32 v{RT+1}, {fbits(SCALE2)}, v{RT+1}']
    stamp(a, 'mm2')
    a(f's_cmp_ge_u32 {sS}, 8\ns_cbranch_scc1 P2_v')
    for var in range(2):
        if var == 0: vmsave, lgsave = list(a.vm), list(a.lg)
        else: a.label('P2_v'); a.vm, a.lg = list(vmsave), list(lgsave)
        lq = list(late)
        for u in range(3): wrd(0, u)
        for ks in range(13):
            if ks == 12: run(lq, 1000)
            if ks + AHEAD < 12:
                if ks + AHEAD == STP: stats_load()
                kld(0, ks + AHEAD); kld(1, ks + AHEAD)
            if ks + AHEAD == 12 - opt('bke', 1) and opt('bk', 1) == 1: a('s_barrier')
            if ks < 12: a.wait(vm=f'k1_{ks}')
            if ks in (0, 4, 8, 11): stamp(a, f'k{ks}')
            for u in range(3):
                a.wait(lg=f'f{ks}_{u}')
                wf = vr(WF + (ks%2)*12 + 4*u, 4)
                for t in range(2):
                    xf = vr(KF+(t*12+ks)*4, 4) if ks < 12 else vr(MF+4*t, 4)
                    d = vr(ACC + (t*3+u)*4, 4)
                    A, B = (wf, xf) if var == 0 else (xf, wf)
                    a(f'v_mfma_f32_16x16x32_bf16 {d}, {A}, {B}, {"0" if ks == 0 else d}')
                if ks < 12: wrd(ks + 1, u)
                if ks >= max(1, STP - AHEAD + 3): run(lq, 2 if STP < AHEAD else 3)
        stamp(a, 'mm2end')
        if var == 0:
            AQ = 112
            a(f's_mov_b32 {sSt1}, s68')
            for t in range(2):
                for u in range(3):
                    b = ACC + (t*3+u)*4
                    for d in range(2): a(f'v_pk_mul_f32 {vr(b+2*d,2)}, {vr(b+2*d,2)}, {vr(RT,2)} op_sel:[0,{t}] op_sel_hi:[1,{t}]')
                    for d in range(2): a(f'v_cvt_pk_bf16_f32 v{PK+(t*3+u)*2+d}, v{b+2*d}, v{b+2*d+1}')
            for t in range(2):
                a(f'v_mfma_f32_16x16x32_bf16 {vr(ACC+4*t,4)}, {vr(144,4)}, {vr(PK+6*t,4)}, 0')
            def pub0(s1, s2, fl, first=False):
                for t in range(2):
                    if t:
                        a(f's_add_u32 {sT1}, {s1}, 13312\ns_nop 1')
                        for tt in range(2): a(f'v_mfma_f32_16x16x16_bf16 {vr(ACC+8+4*tt,4)}, {vr(144,2)}, {vr(PK+6*tt+4,2)}, {vr(ACC+4*tt,4)}')
                    for u in range(3):
                        a(f'buffer_store_dwordx2 {vr(PK+(t*3+u)*2,2)}, v{vA}, {SWS}, {sT1 if t else s1} offen offset:{u*512} {fl}')
                if first:
                    a(f'''v_cmp_eq_u32 vcc, 1, v5
                    v_cndmask_b32 v{AQ}, v{ACC+8}, v{ACC+12}, vcc
                    v_cvt_pk_bf16_f32 v{AQ+1}, v{AQ}, v{AQ}
                    v_lshlrev_b32 v{AQ+1}, 16, v{AQ+1}
                    v_sub_f32 v{AQ+1}, v{AQ}, v{AQ+1}
                    v_cvt_pk_bf16_f32 v{AQ}, v{AQ}, v{AQ+1}''')
                a(f's_mov_b32 exec_hi, 0\nbuffer_store_dword v{AQ}, v{vB}, {SWS}, {s2} offen {fl}\ns_mov_b32 exec_hi, -1')
            pub0(sSt1, sSt2, WT2, True)
            a('s_branch P2_j')
        else:
            a(f's_mov_b32 {sSt1}, s67')
            for u in range(3):
                for t in range(2):
                    b = ACC + (t*3+u)*4
                    for d in range(2): a(f'v_pk_mul_f32 {vr(b+2*d,2)}, {vr(b+2*d,2)}, {vr(RD+4*t+2*d,2)}')
                    for d in range(2): a(f'v_cvt_pk_bf16_f32 v{PK+u*4+t*2+d}, v{b+2*d}, v{b+2*d+1}')
            def pub1(s1, fl):
                for u in range(3): a(f'buffer_store_dwordx4 {vr(PK+4*u,4)}, v{vL16}, {SWS}, {s1} offen offset:{u*1024} {fl}')
            pub1(sSt1, WT2)
    a.label('P2_j')
    if opt('bk', 1) == 3: a('s_barrier')
    attn_addr(0)
    a.wait_all()
    flag(a, sOwn, sF1, sFast, 6, '')
    stamp(a, 'flag2')
    if opt('rb', 0):
        for v in (vL16, 148, 149): a(f'buffer_load_dwordx4 v[152:155], v{v}, {SWS}, {sSt1} offen sc1')
        a(f's_mov_b32 exec_hi, 0\nbuffer_load_dword v152, v{vB}, {SWS}, {sSt2} offen sc1\ns_mov_b32 exec_hi, -1')
    RS = 48
    for u in range(3): a(f'buffer_load_dwordx2 {vr(RS+2*u,2)}, v{vA}, {SWS}, {sRs} offen offset:{u*512} sc1', tag='rs')
    vOW, vOR, vOG = 8, 54, 6
    a(f's_lshl_b32 s35, {sW}, 11\ns_add_u32 s35, s35, {LO}\nv_mul_u32_u24 v{vOW}, 112, v3\nv_lshl_add_u32 v{vOW}, v2, 3, v{vOW}\nv_add_u32 v{vOW}, s35, v{vOW}')
    for h in range(2):
        a(f'''v_add_u32 v56, {64*h}, v1
        v_mul_u32_u24 v57, 43, v56
        v_lshrrev_b32 v57, 8, v57
        v_mul_u32_u24 v58, 6, v57
        v_sub_u32 v58, v56, v58
        v_lshlrev_b32 v58, 4, v58
        v_mul_u32_u24 v56, 112, v57
        v_add3_u32 v{vOR+h}, v56, v58, s35
        v_mul_u32_u24 v56, 768, v57
        v_add_u32 v{vOG+h}, v56, v58''')
    SV = ['s20', 's21', 's22', 's23', 's28', 's29', 's30', 's31']
    a(f's_and_b32 s3, {sQT}, {7 if opt("vrot", 0) else 0}')
    for i in range(8): a(f's_xor_b32 s34, s3, {i}\ns_mul_i32 s34, s34, 24576\ns_add_u32 {SV[i]}, {sVP}, s34')
    a(f's_lshl_b32 s3, s3, 10')
    lsync(a, 32, True, sF1, sF2, sOwn, lambda: None, 32, 0)
    stamp(a, 'sync2')
    a(f's_add_u32 {sT1}, {sQ}, {sM1K}')
    for i in range(3):
        a(f's_add_u32 {sT0}, {sT1}, {i*4096}\ns_add_u32 m0, {sM1K}, {LQ + i*4096}\nbuffer_load_dwordx4 v{vL16}, {SWS}, {sT0} offen sc1 lds', tag='q')
    a(f's_add_u32 {sT0}, {sQ}, 12288\ns_mov_b32 m0, {LQ + 12288}\nbuffer_load_dwordx4 v{vL16}, {SWS}, {sT0} offen sc1 lds', tag='q')
    vq = []
    for k8 in range(8):
        for u in range(3):
            vq.append((f'buffer_load_dwordx4 {vr(VF+(k8*3+u)*4,4)}, v{vL16}, {SWS}, {SV[k8]} offen offset:{u*1024} sc1', f'vp{k8}'))
    def fill():
        if vq: x = vq.pop(0); a(x[0], tag=x[1])
    for _ in range(opt('nv0', 4)): fill()
    a.wait(vm='q')
    a('s_barrier')
    stamp(a, 'q_in')
    scores(fill)
    stamp(a, 'p_done')
    while vq: fill()
    PF, PA, RF, ML = 160, 32, 200, 212
    assert LP == 0
    a(f'v_xor_b32 v56, s3, v{vL16}')
    for k8 in range(8):
        if k8: a(f'v_xor_b32 v{56+k8}, {k8*1024}, v56')
        a(f'ds_read_b128 {vr(PF+4*k8,4)}, v{56+k8}', tag=f'p{k8}')
    a(f'ds_read_b128 {vr(ML,4)}, v{vMLr} offset:512\nds_read_b128 {vr(ML+4,4)}, v{vMLr} offset:528', tag='ml')
    fx = []
    fx += [('l', 'ml')] + [f'v_add_f32 v{ML+i}, v{ML+i}, v{ML+4+i}' for i in range(4)] + [f'v_add_f32 v{ML}, v{ML}, v{ML+1}', f'v_add_f32 v{ML+2}, v{ML+2}, v{ML+3}', f'v_add_f32 v{ML}, v{ML}, v{ML+2}', f'v_rcp_f32 v{ML}, v{ML}', ]
    fx = ['s_mov_b32 s36, 0xffff0000'] + [x for u in range(3) for d in range(2) for x in (f'v_lshlrev_b32 v{RF+4*u+2*d}, 16, v{RS+2*u+d}', f'v_and_b32 v{RF+4*u+2*d+1}, s36, v{RS+2*u+d}')] + fx
    def fxd(n):
        while n > 0 and fx:
            x = fx.pop(0)
            if isinstance(x, tuple): a.wait(lg=x[1])
            else: a(x); n -= 1
    for k8 in range(8):
        a.wait(vm=f'vp{k8}', lg=f'p{k8}')
        for u in range(3):
            d = vr(PA + 4*u, 4)
            a(f'v_mfma_f32_16x16x32_bf16 {d}, {vr(VF+(k8*3+u)*4,4)}, {vr(PF+4*k8,4)}, {"0" if k8 == 0 else d}')
            fxd(1 if k8 < 4 else 2)
    fxd(1000)
    stamp(a, 'pv_done')
    OP = 192
    for u in range(3):
        for d in range(2): a(f'v_pk_fma_f32 {vr(RF+4*u+2*d,2)}, {vr(PA+4*u+2*d,2)}, {vr(ML,2)}, {vr(RF+4*u+2*d,2)} op_sel_hi:[1,0,1]')
        for d in range(2): a(f'v_cvt_pk_bf16_f32 v{OP+2*u+d}, v{RF+4*u+2*d}, v{RF+4*u+2*d+1}')
        a(f'ds_write_b64 v{vOW}, {vr(OP+2*u,2)} offset:{u*32}')
    a(f'ds_read_b128 {vr(56,4)}, v{vOR}', tag='o0')
    a(f's_mov_b32 exec_hi, 0\nds_read_b128 {vr(60,4)}, v{vOR+1}\ns_mov_b32 exec_hi, -1', tag='o1')
    a.wait(lg='o0')
    a(f'buffer_store_dwordx4 {vr(56,4)}, v{vOG}, {SOUT}, {sOut} offen {OWT}')
    a.wait(lg='o1')
    a(f's_mov_b32 exec_hi, 0\nbuffer_store_dwordx4 {vr(60,4)}, v{vOG+1}, {SOUT}, {sOut} offen {OWT}\ns_mov_b32 exec_hi, -1')
    if PROFILE: a.wait_all()
    stamp(a, 'end')
    stamp_flush(a)
    a('s_endpgm')
    a.label('P2_l'); a.vm = []; a.lg = []
    stamp(a, 'Lp2')
    if opt('hint', 1):
        L = a.newlabel('hs')
        a(f's_cmp_lg_u32 {sI}, 31\ns_cbranch_scc1 {L}\ns_cmp_lg_u32 {sW}, 0\ns_cbranch_scc1 {L}')
        a.cond = True
        a(f's_lshl_b32 s34, {sT}, 7\ns_mov_b32 s35, {FP + 1024}'); flag(a, 's34', 's35', sFast, 52, ''); a.vm.pop()
        a.cond = False
        a.label(L)
    common(1)
    stamp(a, 'Lcm')
    wpoll(a)
    wcopy(a)
    if opt('hint', 1):
        Lh, Lg = a.newlabel('hw'), a.newlabel('hg')
        a(f's_cmp_ge_u32 {sI}, 8\ns_cbranch_scc1 {Lg}\ns_lshl_b32 s34, {sT}, 7\ns_add_u32 s34, s34, {FP + 1024}\nv_mov_b32 v34, 0\ns_mov_b32 s35, 64')
        a.label(Lh)
        a(f'''s_mov_b64 exec, 1
        buffer_load_dword v35, v34, {SWS}, s34 offen sc1
        s_waitcnt vmcnt(0)
        v_cmp_ne_u32 vcc, {sFast}, v35
        s_mov_b64 exec, -1
        s_cbranch_vccz {Lg}
        s_sub_u32 s35, s35, 1
        s_cmp_lg_u32 s35, 0
        s_cbranch_scc1 {Lh}''')
        a.label(Lg); a.vm = []
    a(f's_mul_i32 s67, {sW}, {48*128}\ns_add_u32 s67, s67, {GX}')
    gpoll(a, 48, 7, 's67', 33)
    stamp(a, 'Lxf')
    a.label('P2_lg')
    a(f's_mul_i32 s67, {sT}, 196608\ns_mul_i32 s68, {sI}, 6144\ns_add_u32 s67, s67, s68\ns_add_u32 s67, s67, {WS_X1}\ns_mul_i32 s68, {sW}, 1536\ns_add_u32 s67, s67, s68')
    a('s_barrier')
    if opt('xpf', 0):
        a(f'buffer_load_dwordx4 v[32:35], v{vL16}, {SWS}, s67 offen sc1\ns_mov_b32 exec_hi, 0\nbuffer_load_dwordx4 v[36:39], v{vL16}, {SWS}, s67 offen offset:1024 sc1\ns_mov_b32 exec_hi, -1')
    L = a.newlabel('be')
    a(f's_or_b32 s34, {sW}, s2\ns_cmp_lg_u32 s34, 0\ns_cbranch_scc1 {L}')
    a.cond = True; a(f's_mov_b32 s34, {WE}'); flag(a, '0', 's34', sTag, 40, 'sc0 sc1'); a.vm.pop(); a.cond = False
    a.label(L)
    if opt('bk', 1): a('s_barrier')
    stats_load()
    KA, KB = opt('ka', 3), opt('kb', 3)
    for ks in range(12):
        if ks == KA: stats_math(False); attn_addr(1)
        if ks == 0 and opt('tp', 9) == 2: touch2(a)
        if ks in (KA, KB): a.wait_all(lg=False)
        kld(0, ks); kld(1, ks)
    stamp(a, 'Lkiss')
    a.wait_all()
    stamp(a, 'Lk')
    a('s_barrier')
    scores(lambda: None, True)
    stamp_flush(a, 'L')
```

```python
import sys, math, struct
sys.path.insert(0, 'gen')
from asm import Asm
def opt(name, default):
    for x in sys.argv:
        if x.startswith(f'--{name}='): return int(x.split('=')[1])
    return default
HP = [x[5:] for x in sys.argv if x.startswith('--hp=')]
PROFILE = '--prof' in sys.argv or bool(HP)
SKIP = []
for x in sys.argv:
    if x.startswith('--skip='): SKIP = x[7:].split(',')
WS_W2 = 0x000000
WS_S  = 0x180000
WS_X1 = 0x240000
WS_W  = 0x3E0000
WS_Q  = 0x480000
WS_VP = 0x620000
WS_ST = 0xF00000
FS1, FS2 = 0x7A0000, 0x7A2000
FC1, FC2 = 0x7A4000, 0x7A5000
GW2, GW, GX, WE, FP = 0x7A8000, 0x7AA000, 0x7AC000, 0x7B4000, 0x7A6000
WS_PROF = 0x7C0000
SLOW = 0x800000
WS_SIZE = 0x1000000
LIM_FAST = opt('lim', 24)
LIM_SLOW = 1 << 20
SCALE2 = 384 ** -0.5 * math.log2(math.e)
def fbits(x): return '0x%08x' % struct.unpack('<I', struct.pack('<f', x))[0]
def vr(b, n): return f'v[{b}:{b+n-1}]' if n > 1 else f'v{b}'
SX, SWQ, SWO, SWS, SOUT = 's[4:7]', 's[8:11]', 's[12:15]', 's[16:19]', 's[24:27]'
WT = 'sc0 sc1' if opt('wt', 1) == 2 else 'sc1'
def srd(a, base, ptr, size):
    a(f's_mov_b32 s{base}, s{ptr}\ns_mov_b32 s{base+1}, s{ptr+1}\ns_mov_b32 s{base+2}, {size}\ns_mov_b32 s{base+3}, 0x20000')
STAMP_REGS = [70, 72, 74, 76, 78, 80, 82, 84, 86, 88, 90, 92, 94, 96, 98, 100]
class St:
    names = {'C': [], 'L': []}
def stamp(a, name):
    if not PROFILE or name in SKIP or (HP and name not in ('start', HP[0])): return
    lst = St.names['L' if name.startswith('L') else 'C']
    if name not in lst: lst.append(name)
    k = lst.index(name)
    a(f's_memrealtime s[{STAMP_REGS[k]}:{STAMP_REGS[k]+1}]')
def hp_end(a, role):
    name = HP[0]
    lst = St.names[role]
    src = f's{STAMP_REGS[lst.index(name)]}' if name in lst else 's70'
    L1, L2 = a.newlabel('hp'), a.newlabel('hp')
    a(f's_waitcnt vmcnt(0) lgkmcnt(0)\nv_mov_b32 v2, {WS_PROF + 0x30000}')
    a.label(L1)
    a(f'''buffer_load_dwordx2 v[4:5], v2, {SWS}, 0 offen sc0 sc1
    s_waitcnt vmcnt(0)
    v_readfirstlane_b32 s34, v4
    v_readfirstlane_b32 s35, v5
    s_cmp_lg_u32 s35, {sTag}
    s_cbranch_scc1 {L1}
    s_sub_u32 s35, {src}, s34
    s_max_i32 s35, s35, 0
    s_mul_i32 s35, s35, 4
    s_add_u32 s35, s35, 4000''')
    a.label(L2)
    a(f'''s_memrealtime s[36:37]
    s_waitcnt lgkmcnt(0)
    s_sub_u32 s36, s36, s34
    s_cmp_lt_i32 s36, s35
    s_cbranch_scc1 {L2}''')
def hp_t0(a):
    if not HP: return
    L = a.newlabel('hq')
    a(f's_or_b32 s34, s2, {sW}\ns_or_b32 s34, s34, {sRole}\ns_cmp_lg_u32 s34, 0\ns_cbranch_scc1 {L}')
    a(f'v_mov_b32 v2, {WS_PROF + 0x30000}\nv_mov_b32 v4, s70\nv_mov_b32 v5, {sTag}\nbuffer_store_dwordx2 v[4:5], v2, {SWS}, 0 offen sc0 sc1')
    a.vm.pop()
    a.label(L)
def stamp_flush(a, role='C'):
    if HP: hp_end(a, role); return
    if not PROFILE: return
    a('s_waitcnt lgkmcnt(0)')
    for k in range(16): a(f'v_mov_b32 v{100+k}, s{STAMP_REGS[k]}')
    a(f'''v_lshrrev_b32 v8, 6, v0
    s_lshl_b32 s34, s2, 3
    v_add_u32 v8, s34, v8
    v_lshlrev_b32 v8, 6, v8
    v_add_u32 v8, {WS_PROF}, v8''')
    for k in range(4): a(f'buffer_store_dwordx4 v[{100+4*k}:{103+4*k}], v8, {SWS}, 0 offen offset:{16*k}')

sXCD, sW, sI, sRole = 's40', 's41', 's42', 's43'
sTag, sFast, sDelta = 's44', 's45', 's46'
sM1K = 's47'
TAIL = []

def lanes(a, n):
    a(f's_mov_b32 exec_lo, {hex((1 << min(n, 32)) - 1)}\ns_mov_b32 exec_hi, {hex((1 << max(n-32, 0)) - 1)}')
def gpoll(a, n, vA, sBase, vT):
    Lf, Lr, Ld = a.newlabel('gp'), a.newlabel('gr'), a.newlabel('gd')
    lanes(a, n)
    a(f's_mov_b32 s35, {LIM_SLOW}')
    a.label(Lf)
    a(f'buffer_load_dword v{vT}, v{vA}, {SWS}, {sBase} offen sc1')
    a.wait_all(lg=False)
    a(f'v_cmp_ne_u32 vcc, {sTag}, v{vT}\ns_cbranch_vccnz {Lr}')
    a.label(Ld)
    a('s_mov_b64 exec, -1')
    def tail():
        a.label(Lr)
        if opt('gsl', 0): a(f's_sleep {opt("gsl", 0)}')
        a(f's_sub_u32 s35, s35, 1\ns_cmp_lg_u32 s35, 0\ns_cbranch_scc1 {Lf}\ns_branch {Ld}')
    TAIL.append(tail)
def lsync(a, n, wide, sF1, sF2, sOwn, republish, vT, delta=SLOW):
    Lf, Lr, Ld, Ls = a.newlabel('lp'), a.newlabel('lr'), a.newlabel('ld'), a.newlabel('ls')
    vA, vD, vE = vT, vT + 2, vT + 6
    w = 4 if wide else 1
    ld = 'buffer_load_dwordx4' if wide else 'buffer_load_dword'
    def cmp(v, s):
        if not wide: a(f'v_cmp_ne_u32 vcc, {s}, v{v}'); return
        for k in range(4): a(f'v_xor_b32 v{v+k}, {s}, v{v+k}')
        a(f'v_or_b32 v{v}, v{v}, v{v+1}\nv_or3_b32 v{v}, v{v}, v{v+2}, v{v+3}\nv_cmp_ne_u32 vcc, 0, v{v}')
    lanes(a, n)
    a(f'v_lshlrev_b32 v{vA}, {4 if wide else 2}, v1\ns_mov_b32 {sDelta}, 0\ns_mov_b32 s35, {LIM_FAST}')
    a.label(Lf)
    a(f'{ld} {vr(vD, w)}, v{vA}, {SWS}, {sF1} offen sc1')
    a.wait_all(lg=False)
    cmp(vD, sFast)
    a(f's_cbranch_vccnz {Lr}')
    a.label(Ld)
    a('s_mov_b64 exec, -1')
    def tail():
        a.label(Lr)
        a(f's_sub_u32 s35, s35, 1\ns_cmp_lg_u32 s35, 0\ns_cbranch_scc1 {Lf}')
        if republish:
            a('s_mov_b64 exec, -1')
            republish()
            a.wait_all(lg=False)
            a(f'''s_mov_b64 exec, 1
            v_mov_b32 v{vD}, {sOwn}
            v_mov_b32 v{vD+1}, {sTag}
            buffer_store_dword v{vD+1}, v{vD}, {SWS}, {sF2} offen sc0 sc1''')
            lanes(a, n)
        a(f's_mov_b32 s35, {LIM_SLOW}')
        a.label(Ls)
        a(f'{ld} {vr(vD, w)}, v{vA}, {SWS}, {sF1} offen sc1\n{ld} {vr(vE, w)}, v{vA}, {SWS}, {sF2} offen sc0 sc1')
        a.wait_all(lg=False)
        cmp(vD, sFast)
        a(f's_cbranch_vccz {Ld}')
        cmp(vE, sTag)
        a(f's_mov_b32 {sDelta}, {delta}\ns_cbranch_vccz {Ld}\ns_mov_b32 {sDelta}, 0\ns_sub_u32 s35, s35, 1\ns_cmp_lg_u32 s35, 0\ns_cbranch_scc1 {Ls}\ns_branch {Ld}')
    TAIL.append(tail)
def flag(a, sOff, sBase, sVal, vT, fl):
    a(f'''s_mov_b64 exec, 1
    v_mov_b32 v{vT}, {sOff}
    v_mov_b32 v{vT+1}, {sVal}
    buffer_store_dword v{vT+1}, v{vT}, {SWS}, {sBase} offen {fl}
    s_mov_b64 exec, -1''')
def gflag(a, sOff, sBase, vT):
    a(f'''s_mov_b64 exec, 15
    v_lshl_add_u32 v{vT}, v1, 4, {sOff}
    v_mov_b32 v{vT+2}, {sTag}
    v_mov_b32 v{vT+3}, {sTag}
    v_mov_b32 v{vT+4}, {sTag}
    v_mov_b32 v{vT+5}, {sTag}
    buffer_store_dwordx4 {vr(vT+2,4)}, v{vT}, {SWS}, {sBase} offen sc0 sc1
    s_mov_b64 exec, -1''')
def flag_w0(a, sOff, sBase, vT):
    L = a.newlabel('f0')
    a(f's_cmp_lg_u32 {sW}, 0\ns_cbranch_scc1 {L}')
    a.cond = True; gflag(a, sOff, sBase, vT); a.vm.pop(); a.cond = False
    a.label(L)
def tag_ready(a):
    a(f'''s_mul_i32 {sTag}, {sTag}, 0x9e3779b1
    s_add_u32 {sTag}, {sTag}, 0x7f4a7c15
    s_add_u32 {sFast}, {sFast}, {sTag}''')

LW34 = 102400
LSX = 147456
def wpoll(a):
    a(f'v_lshlrev_b32 v7, 7, v1\ns_mov_b32 s67, {GW}')
    gpoll(a, 64, 7, 's67', 33)
    stamp(a, 'Lwf')
def wcopy(a):
    a(f's_and_b32 s68, {sI}, 15\ns_mul_i32 s68, s68, 39936\ns_mul_i32 s34, {sW}, 10240\ns_add_u32 s68, s68, s34\ns_add_u32 s68, s68, {WS_W}\ns_add_u32 s34, s34, {LW34}')
    for i in range(10):
        if i % 4 == 0: a(f's_add_u32 m0, s34, {i*1024}' + ('\ns_add_u32 s68, s68, 4096' if i else ''))
        a(f'buffer_load_dwordx4 v10, {SWS}, s68 offen offset:{(i&3)*1024} sc1 lds')
def pages(a):
    a(f"""s_mov_b64 exec, 0xffff
    v_lshlrev_b32 v52, 20, v1
    buffer_load_dword v53, v52, {SWS}, 0 offen
    s_mov_b64 exec, 3
    buffer_load_dword v54, v52, {SOUT}, 0 offen
    s_mov_b64 exec, -1""")
def touch2(a):
    Lt = a.newlabel('tc'); Lu = a.newlabel('tc')
    a(f"""s_and_b32 s36, {sI}, 15
    s_lshr_b32 s37, {sI}, 4
    s_cmp_ge_u32 s36, 8
    s_cbranch_scc1 {Lt}
    s_lshl_b32 s34, {sXCD}, 4
    s_lshl_b32 s35, s37, 3
    s_add_u32 s34, s34, s35
    s_lshl_b32 s35, {sW}, 1
    s_add_u32 s34, s34, s35
    s_mul_i32 s34, s34, 13312
    s_mul_i32 s35, s36, 1536
    s_add_u32 s34, s34, s35
    s_add_u32 s34, s34, {WS_Q}
    s_add_u32 s35, s34, 13312""")
    for sb in ('s34', 's35'): a(f'buffer_load_dwordx4 v[64:67], v10, {SWS}, {sb} offen\ns_mov_b32 exec_hi, 0\nbuffer_load_dwordx4 v[64:67], v10, {SWS}, {sb} offen offset:1024\ns_mov_b32 exec_hi, -1')
    a(f's_branch {Lu}'); a.label(Lt)
    a(f"""s_lshl_b32 s34, {sW}, 1
    s_add_u32 s34, s34, s37
    s_lshl_b32 s35, {sXCD}, 3
    s_add_u32 s34, s34, s35
    s_mul_i32 s34, s34, 24576
    s_mul_i32 s35, s36, 3072
    s_add_u32 s34, s34, s35
    s_add_u32 s34, s34, {WS_VP - 8*3072}""")
    for u in range(3): a(f'buffer_load_dwordx4 v[64:67], v10, {SWS}, s34 offen offset:{u*1024}')
    a.label(Lu)
    a(f"""s_lshr_b32 s34, {sI}, 1
    s_lshl_b32 s35, {sXCD}, 4
    s_add_u32 s34, s34, s35
    s_mul_i32 s34, s34, 13312
    s_add_u32 s34, s34, {WS_Q + 12288}
    s_lshl_b32 s35, {sW}, 8
    v_lshl_add_u32 v68, v1, 2, s35
    buffer_load_dword v64, v68, {SWS}, s34 offen
    s_lshl_b32 s34, {sXCD}, 9
    s_add_u32 s34, s34, {FC1}
    v_lshlrev_b32 v68, 3, v1
    buffer_load_dword v64, v68, {SWS}, s34 offen""")
    a.vm = []

def build():
    a = Asm()
    def emit(x):
        if isinstance(x, tuple): a(x[0], tag=x[1])
        else: a(x)
    a(f'''s_cmp_ge_u32 s2, 256
    s_cbranch_scc1 K_end
    s_load_dwordx4 s[20:23], s[0:1], 0
    s_load_dwordx4 s[28:31], s[0:1], 16
    s_load_dwordx4 s[36:39], s[0:1], 32
    s_load_dwordx2 s[32:33], s[0:1], 56
    v_and_b32 v1, 63, v0
    v_lshrrev_b32 v2, 6, v0
    s_and_b32 {sXCD}, s2, 7
    v_readfirstlane_b32 {sW}, v2
    s_lshr_b32 {sI}, s2, 3''')
    stamp(a, 'start')
    if HP:
        St.names['L'].append('Lstart')
        a('s_waitcnt lgkmcnt(0)')
        for r in STAMP_REGS[1:]: a(f's_mov_b32 s{r}, s70')
    a('s_getpc_b64 s[48:49]')
    a.label('K_pc')
    a(f'''s_sub_u32 s48, s48, K_pc-{KNAME}
    s_subb_u32 s49, s49, 0
    s_lshl_b32 s34, {sI}, 3
    s_add_u32 s34, s34, {sW}
    s_and_b32 s34, s34, 31
    s_lshl_b32 s34, s34, 10
    v_lshl_add_u32 v9, v1, 4, s34
    global_load_dwordx4 v[252:255], v9, s[48:49]
    s_lshr_b32 {sRole}, {sW}, 2
    s_and_b32 {sW}, {sW}, 3
    s_lshl_b32 {sM1K}, {sW}, 10
    s_getreg_b32 {sFast}, hwreg(HW_REG_XCC_ID)
    s_and_b32 {sFast}, {sFast}, 15
    s_add_u32 {sFast}, {sFast}, 1
    v_lshrrev_b32 v2, 3, v1
    v_and_b32 v3, 7, v1
    v_lshlrev_b32 v10, 4, v1
    s_cmp_lt_u32 {sI}, 8
    s_cbranch_scc1 K_pre''')
    T8, G8, vL16 = 2, 3, 10
    sG, sJ, sP, sHF, sX, sM = 's50', 's51', 's52', 's53', 's54', 's55'
    sR = ['s56', 's57', 's58', 's59', 's60', 's61']
    ROT = opt('rot', 7)
    a(f'''s_sub_u32 {sJ}, {sI}, 8
    s_mul_i32 s34, {sJ}, 43
    s_lshr_b32 s34, s34, 8
    s_mul_i32 s35, s34, 6
    s_sub_u32 {sJ}, {sJ}, s35
    s_lshl_b32 {sG}, {sXCD}, 2
    s_add_u32 {sG}, {sG}, s34
    s_lshr_b32 {sP}, {sW}, 1
    s_and_b32 {sHF}, {sW}, 1
    s_lshl_b32 {sM}, {sW}, 11''')
    def rot_r(dst):
        if ROT == 4: a(f's_mul_i32 {dst}, {sXCD}, 3\ns_lshr_b32 {dst}, {dst}, 2')
        elif ROT == 5: a(f's_add_u32 {dst}, {sXCD}, 4\ns_and_b32 {dst}, {dst}, 7\ns_mul_i32 {dst}, {dst}, 3\ns_lshr_b32 {dst}, {dst}, 2')
        elif ROT == 6: a(f's_and_b32 {dst}, {sG}, 1\ns_mul_i32 {dst}, {dst}, 4\ns_add_u32 {dst}, {dst}, {sXCD}\ns_and_b32 {dst}, {dst}, 7\ns_mul_i32 {dst}, {dst}, 3\ns_lshr_b32 {dst}, {dst}, 2')
        elif ROT == 7: a(f's_mul_i32 {dst}, {sXCD}, 3\ns_lshr_b32 {dst}, {dst}, 2\ns_add_u32 {dst}, {dst}, {sJ}\ns_cmp_ge_u32 {dst}, 6\ns_cselect_b32 s34, 6, 0\ns_sub_u32 {dst}, {dst}, s34')
        elif ROT == 8: a(f's_and_b32 {dst}, {sG}, 3\ns_add_u32 {dst}, {dst}, {sXCD}\ns_add_u32 {dst}, {dst}, {sJ}\ns_mul_i32 s34, {dst}, 43\ns_lshr_b32 s34, s34, 8\ns_mul_i32 s34, s34, 6\ns_sub_u32 {dst}, {dst}, s34')
    if ROT: rot_r('s3')
    a(f's_cmp_lg_u32 {sRole}, 0\ns_cbranch_scc1 A_ld')
    XS = lambda c: c*8192
    WQ0 = 49152
    W2L = 49152
    vXF, vAW, vSst, vX1, vST, vRes, vBP, vBS, vW2, vW2b = 12, 16, 18, 19, 20, 21, 22, 23, 24, 25
    XF, WF, ACC, CS, MA, SEL, CA, CB = 160, 32, 64, 96, 104, 108, 112, 120
    sSst, sSld, sX1, sST, sFS1, sFS2, sOwn, sGX = 's56', 's57', 's58', 's59', 's60', 's61', 's62', 's63'
    a(f'''v_and_b32 v4, 31, v1
    v_lshrrev_b32 v5, 5, v1
    v_bfe_u32 v6, v1, 1, 3
    v_xor_b32 v6, v6, v5
    v_lshlrev_b32 v4, 7, v4
    v_lshl_add_u32 v4, v6, 4, v4
    s_lshl_b32 s35, {sP}, 12
    v_add_u32 v{vXF}, s35, v4
    v_xor_b32 v{vXF+1}, 32, v{vXF}
    v_xor_b32 v{vXF+2}, 64, v{vXF}
    v_xor_b32 v{vXF+3}, 96, v{vXF}
    v_bfe_u32 v6, v1, 2, 2
    v_lshl_add_u32 v4, v5, 3, v6
    v_lshlrev_b32 v4, 7, v4
    v_lshrrev_b32 v7, 1, v6
    v_xor_b32 v7, {sHF}, v7
    v_lshl_add_u32 v4, v7, 6, v4
    v_bfe_u32 v7, v1, 4, 1
    v_lshl_add_u32 v4, v7, 5, v4
    v_and_b32 v8, 1, v1
    v_lshl_add_u32 v4, v8, 4, v4
    v_bfe_u32 v8, v1, 1, 1
    v_lshl_add_u32 v4, v8, 3, v4
    v_add_u32 v{vAW}, {WQ0}, v4
    v_add_u32 v{vAW+1}, {WQ0 + 65536}, v4
    v_bfe_u32 v8, v1, 2, 1
    v_cmp_eq_u32 vcc, v8, v7
    v_mov_b32 v7, 0x3f803f80
    s_mov_b32 s34, {WE}
    s_waitcnt lgkmcnt(0)
    s_load_dword {sTag}, s[32:33], s34''')
    for k in range(4): a(f'v_cndmask_b32 v{SEL+k}, 0, v7, vcc')
    srd(a, 16, 32, WS_SIZE); srd(a, 24, 38, 1572864)
    a(f'''v_lshlrev_b32 v{vSst}, 9, v5
    v_lshl_add_u32 v{vSst}, v{G8}, 6, v{vSst}
    v_bfe_u32 v6, v1, 3, 2
    v_lshl_add_u32 v{vSst}, v6, 4, v{vSst}
    s_mul_i32 s34, {sG}, 24576
    s_lshl_b32 s35, {sP}, 10
    s_add_u32 s34, s34, s35
    s_add_u32 {sSld}, s34, {WS_S}
    s_lshl_b32 s35, {sJ}, 1
    s_add_u32 s35, s35, {sHF}
    s_lshl_b32 {sOwn}, s35, 2
    s_lshl_b32 s3{6}, s35, 11
    s_add_u32 {sSst}, {sSld}, s36
    s_lshl_b32 s34, {sG}, 1
    s_add_u32 s34, s34, {sP}
    s_lshl_b32 s34, s34, 7
    s_add_u32 {sFS1}, s34, {FS1}
    s_add_u32 {sFS2}, s34, {FS2}''')
    a(f'''v_bfe_u32 v6, v1, 2, 3
    v_and_b32 v7, 3, v1
    s_mov_b32 s34, 196608
    v_mul_lo_u32 v{vX1}, v6, s34
    v_lshl_add_u32 v{vX1}, v5, 8, v{vX1}
    v_lshl_add_u32 v{vX1}, v7, 4, v{vX1}
    v_mul_u32_u24 v{vST}, 49152, v6
    v_lshl_add_u32 v{vST}, v7, 4, v{vST}
    v_lshl_add_u32 v8, v7, 3, v6
    v_lshlrev_b32 v{vBP}, 2, v8
    v_lshlrev_b32 v{vBS}, 5, v7
    v_lshl_add_u32 v{vBS}, v5, 4, v{vBS}
    v_bfe_u32 v4, v8, 1, 3
    s_lshl_b32 s34, {sHF}, 2
    v_xor_b32 v4, s34, v4
    v_xor_b32 v4, v4, v5
    v_lshlrev_b32 v4, 4, v4
    v_lshl_add_u32 v4, v8, 7, v4''')
    if ROT: a(f's_add_u32 s34, {sJ}, 6\ns_sub_u32 s34, s34, s3\ns_cmp_ge_u32 s34, 6\ns_cselect_b32 s36, 6, 0\ns_sub_u32 s34, s34, s36\ns_lshl_b32 s34, s34, 13')
    else: a(f's_lshl_b32 s34, {sJ}, 13')
    a(f'''s_lshl_b32 s36, {sP}, 12
    s_add_u32 s34, s34, s36
    v_add_u32 v{vRes}, s34, v4
    s_lshl_b32 s34, {sHF}, 10
    s_add_u32 s34, s34, {W2L}
    v_add_u32 v{vW2}, s34, v{vL16}
    v_and_b32 v4, 31, v1
    v_lshlrev_b32 v4, 2, v4
    s_lshl_b32 s34, {sHF}, 7
    s_add_u32 s34, s34, {W2L + 49152}
    v_add_u32 v4, s34, v4
    v_lshl_add_u32 v{vW2b}, v5, 10, v4
    v_add_u32 v{vW2b+1}, 2048, v4
    s_lshr_b32 s34, {sG}, 1
    s_mul_i32 s34, s34, 12288
    s_lshl_b32 s36, s35, 10
    s_add_u32 s34, s34, s36
    s_and_b32 s36, {sG}, 1
    s_lshl_b32 s36, s36, 7
    s_add_u32 s34, s34, s36
    s_lshl_b32 s36, {sP}, 6
    s_add_u32 s34, s34, s36
    s_add_u32 {sX1}, s34, {WS_X1}
    s_lshl_b32 s34, s35, 12
    s_add_u32 s34, s34, s36
    s_lshl_b32 s36, {sG}, 7
    s_add_u32 s34, s34, s36
    s_add_u32 {sST}, s34, {WS_ST}
    s_mul_i32 s34, {sG}, 6
    s_add_u32 s34, s34, {sJ}
    s_lshl_b32 {sGX}, s34, 7
    s_mov_b32 s38, {fbits(-1/384)}
    s_mov_b32 s36, 0xffff0000
    s_mov_b32 s64, -1
    s_mov_b32 s65, 0
    s_mov_b32 s66, 0xff00ff00
    s_mov_b32 s67, 0xff00ff00
    s_mov_b32 s68, 0xffff0000
    s_mov_b32 s69, 0xffff0000''')
    for r in range(CA, CA + 8):
        if (r - CA) % 4: a(f'v_mov_b32 v{r}, 0')
    a('s_waitcnt lgkmcnt(0)')
    tag_ready(a)
    a('s_barrier')
    stamp(a, 'mm0')
    def rd(ks):
        c, k4 = ks >> 2, ks & 3
        a(f'ds_read_b128 {vr(XF+4*ks,4)}, v{vXF+k4} offset:{XS(c)}', tag=f'f{ks}')
        return [(c, k4, P) for P in range(2)]
    def trd(ks, P):
        c, k4 = ks >> 2, ks & 3
        off = c*16384 + P*8192 + k4*2048
        base = vAW + (off >> 16); off &= 0xffff
        d = WF + (ks % 3)*8 + P*4
        a(f'ds_read_b64_tr_b16 {vr(d,2)}, v{base} offset:{off}\nds_read_b64_tr_b16 {vr(d+2,2)}, v{base} offset:{off+512}', tag=f'f{ks}')
    def pre(ks, part):
        if part == 0: rd(ks); trd(ks, 0)
        else: trd(ks, 1)
    for ks in range(2): pre(ks, 0); pre(ks, 1)
    def m16(d, b, first): a(f'v_mfma_f32_16x16x32_bf16 {vr(d,4)}, {vr(SEL,4)}, {b}, {"0" if first else vr(d,4)}')
    for ks in range(24):
        bar = (ks & 3) == 3 and ks < 23
        if bar:
            if ks == 15: a.wait_all(lg=False)
            a('s_barrier')
            if ks in (7, 15, 19): stamp(a, f'c{(ks+1)>>2}')
            pre(ks + 1, 0); pre(ks + 1, 1)
        a.wait(lg=f'f{ks}')
        wf = lambda P: vr(WF + (ks % 3)*8 + P*4, 4)
        main = lambda P: a(f'v_mfma_f32_32x32x16_bf16 {vr(ACC+16*P,16)}, {wf(P)}, {vr(XF+4*ks,4)}, {"0" if ks == 0 else vr(ACC+16*P,16)}')
        nx = ks + 2 if (ks & 3) != 2 and ks + 2 < 24 else None
        if ks < 23:
            for P in range(2):
                main(P)
                if nx: pre(nx, P)
                m16(CS + 4*P, wf(P), ks == 0)
            m16(MA, vr(XF+4*ks, 4), ks == 0)
        else:
            m16(MA, vr(XF+4*ks, 4), False)
            for P in range(2): m16(CS + 4*P, wf(P), False)
            main(0)
            main(1)
            a(f'''v_mul_f32 v{MA}, s38, v{MA}
            v_cvt_pk_bf16_f32 v{CA}, v{CS}, v{CS}
            v_cvt_pk_bf16_f32 v{CA+4}, v{CS+4}, v{CS+4}
            v_cvt_pk_bf16_f32 v{MA+1}, v{MA}, v{MA}
            v_and_b32 v{CA}, s36, v{CA}
            v_and_b32 v{CA+4}, s36, v{CA+4}
            v_cndmask_b32 v{CB}, 0, v{MA+1}, s[64:65]
            v_sub_f32 v{CA}, v{CS}, v{CA}
            v_sub_f32 v{CA+4}, v{CS+4}, v{CA+4}
            v_mov_b32 v{CB+1}, v{CB}
            v_cvt_pk_bf16_f32 v{CA}, v{CS}, v{CA}
            v_cvt_pk_bf16_f32 v{CA+4}, v{CS+4}, v{CA+4}
            v_mov_b32 v{CB+2}, v{CB}
            v_mov_b32 v{CB+3}, v{CB}''')
            for P in range(2): a(f'v_mfma_f32_32x32x16_bf16 {vr(ACC+16*P,16)}, {vr(CA+4*P,4)}, {vr(CB,4)}, {vr(ACC+16*P,16)}')
    stamp(a, 'mmend')
    PQ, PK, SC, SS, SQ, CM = 32, 40, 64, 96, 100, 124
    a(f'v_mov_b32 v{SQ}, 0\nv_mov_b32 v{SQ+1}, 0')
    for k in range(4): a(f'v_mov_b32 v{CM+k}, v{MA+1}')
    for P, d in ((0, PQ), (1, PK)):
        for i in range(8): a(f'v_cvt_pk_bf16_f32 v{d+i}, v{ACC+16*P+2*i}, v{ACC+16*P+2*i+1}')
    a(f'v_mfma_f32_32x32x16_bf16 {vr(SC,16)}, {vr(PK,4)}, {vr(PQ,4)}, 0')
    a(f'v_mfma_f32_32x32x16_bf16 {vr(SC,16)}, {vr(PK+4,4)}, {vr(PQ+4,4)}, {vr(SC,16)}')
    RAW = 48
    a(f'v_xor_b32 v4, 32, v{vRes}\nds_read_b128 {vr(RAW,4)}, v{vRes}\nds_read_b128 {vr(RAW+4,4)}, v4', tag='raw')
    for e in range(4): a(f'v_cndmask_b32 v{SC+e}, v{SC+e}, v{SC+4+e}, s[66:67]\nv_cndmask_b32 v{SC+8+e}, v{SC+8+e}, v{SC+12+e}, s[66:67]')
    for e in range(4): a(f'v_cndmask_b32 v{SS+e}, v{SC+e}, v{SC+8+e}, s[68:69]')
    a(f'buffer_store_dwordx4 {vr(SS,4)}, v{vSst}, {SWS}, {sSst} offen {WT if opt("swt", 0) else ""}')
    stamp(a, 'stored')
    ND0 = opt('nd0', 72)
    for i in range(ND0): a(f'v_dot2c_f32_bf16 v{SQ+(i&1)}, v{XF+i}, v{XF+i}')
    a.wait_all(lg=False)
    flag(a, sOwn, sFS1, sFast, 4, '')
    stamp(a, 'flag')
    for i in range(ND0, 96): a(f'v_dot2c_f32_bf16 v{SQ+(i&1)}, v{XF+i}, v{XF+i}')
    RR, RES = 56, 80
    a(f'''s_mov_b32 s37, {fbits(1e-5)}
    v_mul_f32 v{SQ+2}, v{MA}, v{MA}
    v_add_u32 v5, 4, v{vBS}
    v_add_f32 v{SQ}, v{SQ}, v{SQ+1}
    v_mov_b32 v{SQ+1}, v{SQ}
    v_add_u32 v6, 8, v{vBS}
    v_add_u32 v7, 12, v{vBS}
    v_permlane32_swap_b32 v{SQ}, v{SQ+1}
    v_add_f32 v{SQ}, v{SQ}, v{SQ+1}
    v_fma_f32 v{SQ}, -v{SQ}, s38, -v{SQ+2}
    v_max_f32 v{SQ}, 0, v{SQ}
    v_add_f32 v{SQ}, s37, v{SQ}
    v_rsq_f32 v{SQ}, v{SQ}''')
    a(f'ds_bpermute_b32 v{RR+4}, v{vBP}, v{SQ}\nds_bpermute_b32 v{RR}, v{vBS}, v{SQ}', tag='bp')
    for e in range(1, 4): a(f'ds_bpermute_b32 v{RR+e}, v{4+e}, v{SQ}', tag='bp')
    a.wait(lg='raw')
    for d in range(8): a(f'v_lshlrev_b32 v{RES+2*d}, 16, v{RAW+d}\nv_and_b32 v{RES+2*d+1}, s36, v{RAW+d}')
    a.wait(lg='bp')
    a(f'v_mul_f32 v{RR+4}, {fbits(SCALE2)}, v{RR+4}')
    def repubA():
        a(f's_add_u32 s34, {sSst}, {SLOW}\nbuffer_store_dwordx4 {vr(SS,4)}, v{vSst}, {SWS}, s34 offen sc0 sc1')
    lsync(a, 12, False, sFS1, sFS2, sOwn, (lambda: None) if opt('swt', 0) else repubA, 32, 0 if opt('swt', 0) else SLOW)
    stamp(a, 'synced')
    SP, Y, WR = 112, 64, 32
    SPR = [128, 132, 136, 140, 144, 148, 152, 156, 112, 116, 96, 100]
    S0 = SPR[0]; T0 = SPR[1]
    sm = []
    def w2rd(ks):
        if ks < 24: a(f'ds_read_b128 {vr(WR+4*(ks%6),4)}, v{vW2} offset:{ks*2048}', tag=f'y{ks}')
        else:
            for k in range(2): a(f'ds_read2st64_b32 {vr(WR+4*(ks%6)+2*k,2)}, v{vW2b+ks-24} offset0:{2*k} offset1:{2*k+1}', tag=f'y{ks}')
    YH = opt('yh', 12)
    def ystep(ks, lim=26):
        a.wait(lg=f'y{ks}')
        xa = vr(XF+4*ks, 4) if ks < 24 else vr(CM if ks == 24 else CB, 4)
        a(f'v_mfma_f32_32x32x16_bf16 {vr(Y,16)}, {xa}, {vr(WR+4*(ks%6),4)}, {"0" if ks == 0 else vr(Y,16)}')
        if ks + 5 < lim: w2rd(ks + 5)
    a(f's_add_u32 {sSld}, {sSld}, {sDelta}\ns_mul_i32 s34, {sHF}, 12288\ns_add_u32 {sSld}, {sSld}, s34')
    for i in range(6):
        if i and i % 2 == 0: a(f's_add_u32 {sSld}, {sSld}, 4096')
        a(f'buffer_load_dwordx4 {vr(SPR[i],4)}, v{vL16}, {SWS}, {sSld} offen offset:{(i&1)*2048} sc1', tag=f's{i}')
    a(f's_add_u32 s34, {sM1K}, {LSX}\nv_add_u32 v4, s34, v{vL16}\nv_xor_b32 v5, 1024, v4')
    if YH:
        a('s_barrier')
        stamp(a, 'w2h')
        for ks in range(5): w2rd(ks)
        for ks in range(YH): ystep(ks, YH)
    for i in range(1, 6):
        a.wait(vm=f's{i}')
        for d in (0, 2): a(f'v_pk_add_f32 {vr(S0+d,2)}, {vr(S0+d,2)}, {vr(SPR[i]+d,2)}')
    a(f'ds_write_b128 v4, {vr(S0,4)}\ns_waitcnt lgkmcnt(0)'); a.lg = []
    stamp(a, 'ssum')
    a('s_barrier')
    stamp(a, 'w2in')
    a(f'ds_read_b128 {vr(T0,4)}, v5', tag='sx')
    sm.append(('l', 'sx'))
    for d in range(4): sm.append(f'v_add_f32 v{S0+d}, v{S0+d}, v{T0+d}')
    for ks in range(YH, YH + 5): w2rd(ks)
    for d in range(4): sm.append(f'v_mul_f32 v{S0+d}, v{S0+d}, v{RR+d}')
    sm += [f'v_max_f32 v{T0}, v{S0}, v{S0+1}', f'v_max3_f32 v{T0}, v{T0}, v{S0+2}, v{S0+3}', f'v_mov_b32 v{T0+1}, v{T0}', 's_mov_b32 s64, 0x11111111', 's_mov_b32 s65, 0x11111111',
           f'v_permlane32_swap_b32 v{T0}, v{T0+1}', f'v_max_f32 v{T0}, v{T0}, v{T0+1}', f'v_mul_f32 v{T0}, v{RR+4}, v{T0}']
    for d in range(4): sm.append(f'v_fma_f32 v{S0+d}, v{S0+d}, v{RR+4}, -v{T0}')
    for d in range(4): sm.append(f'v_exp_f32 v{S0+d}, v{S0+d}')
    sm += [f'v_add_f32 v{T0}, v{S0}, v{S0+1}', f'v_add_f32 v{T0+1}, v{S0+2}, v{S0+3}', f'v_add_f32 v{T0}, v{T0}, v{T0+1}', f'v_mov_b32 v{T0+1}, v{T0}']
    sm += [f'v_mul_f32 v{S0+d}, v{S0+d}, v{RR+d}' for d in range(2)] + [f'v_permlane32_swap_b32 v{T0}, v{T0+1}', f'v_add_f32 v{T0}, v{T0}, v{T0+1}', f'v_rcp_f32 v{T0}, v{T0}']
    sm += [f'v_mul_f32 v{S0+d}, v{S0+d}, v{RR+d}' for d in range(2, 4)]
    for d in range(4): sm.append(f'v_mul_f32 v{S0+d}, v{S0+d}, v{T0}')
    PB = 136
    sm += [f'v_cvt_pk_bf16_f32 v{T0}, v{S0}, v{S0+1}', f'v_cvt_pk_bf16_f32 v{T0+1}, v{S0+2}, v{S0+3}']
    for b in range(4):
        sm += [f'v_cndmask_b32 v{PB+2*b}, 0, v{T0}, s[64:65]', f'v_cndmask_b32 v{PB+2*b+1}, 0, v{T0+1}, s[64:65]']
        if b < 3: sm.append('s_lshl_b64 s[64:65], s[64:65], 1')
    S2 = 104
    sm += [f'v_mov_b32 v{S2}, 0', f'v_mov_b32 v{S2+1}, 0', 's_mov_b32 s36, 0x3f803f80']
    def drain(n):
        while n > 0 and sm:
            x = sm.pop(0)
            if isinstance(x, tuple): a.wait(vm=x[1]) if x[0] == 'w' else a.wait(lg=x[1])
            else: a(x); n -= 1
    for ks in range(YH, 26):
        ystep(ks)
        if ks >= YH + 1: drain(5 if YH else 4)
    drain(1000)
    stamp(a, 'ygemm')
    YP, XO = 144, 152
    for i in range(8): a(f'v_cvt_pk_bf16_f32 v{YP+i}, v{Y+2*i}, v{Y+2*i+1}')
    for k in range(2): a(f'v_mfma_f32_32x32x16_bf16 {vr(RES,16)}, {vr(YP+4*k,4)}, {vr(PB+4*k,4)}, {vr(RES,16)}')
    for i in range(8): a(f'v_cvt_pk_bf16_f32 v{XO+i}, v{RES+2*i}, v{RES+2*i+1}')
    a(f'buffer_store_dwordx4 {vr(XO,4)}, v{vX1}, {SWS}, {sX1} offen {WT}')
    a(f'buffer_store_dwordx4 {vr(XO+4,4)}, v{vX1}, {SWS}, {sX1} offen offset:512 {WT}')
    for i in range(8): a(f'v_dot2c_f32_bf16 v{S2}, s36, v{XO+i}\nv_dot2c_f32_bf16 v{S2+1}, v{XO+i}, v{XO+i}')
    a(f'''v_mov_b32 v{S2+2}, v{S2}
    v_mov_b32 v{S2+3}, v{S2+1}
    v_permlane32_swap_b32 v{S2}, v{S2+2}
    v_permlane32_swap_b32 v{S2+1}, v{S2+3}
    v_add_f32 v{S2}, v{S2}, v{S2+2}
    v_add_f32 v{S2+1}, v{S2+1}, v{S2+3}
    s_mov_b32 exec_hi, 0
    buffer_store_dwordx4 {vr(S2,4)}, v{vST}, {SWS}, {sST} offen {WT}
    s_mov_b32 exec_hi, -1
    s_mov_b32 s34, {GX}''')
    stamp(a, 'x1st')
    a.wait_all()
    a('s_barrier')
    flag_w0(a, sGX, 's34', 32)
    stamp(a, 'x1pub')
    a('s_branch P2_c')
    a.label('A_ld'); a.vm = []; a.lg = []
    vW, vXs, vP = 32, 36, 38
    sRx = ['s62', 's63', 's64', 's65', 's66', 's67']
    a(f'''s_mov_b32 s35, 196608
    v_mul_lo_u32 v{vXs}, v{T8}, s35
    v_lshrrev_b32 v4, 1, v{T8}
    v_xor_b32 v4, v4, v{G8}
    v_lshl_add_u32 v{vXs}, v4, 4, v{vXs}
    v_xor_b32 v{vXs+1}, 64, v{vXs}
    v_add_u32 v{vXs+1}, 768, v{vXs+1}
    s_lshl_b32 s34, {sG}, 3
    s_lshl_b32 s35, {sW}, 1
    s_add_u32 s34, s34, s35
    s_mul_i32 {sX}, s34, 768
    v_lshlrev_b32 v4, 1, v{T8}
    v_and_b32 v4, 4, v4
    v_xor_b32 v4, v4, v{G8}
    v_mul_u32_u24 v{vW}, 2304, v{T8}
    v_lshl_add_u32 v{vW}, v4, 4, v{vW}
    s_mul_i32 s68, {sW}, {16*2304}
    s_lshl_b32 s34, {sJ}, 7
    s_add_u32 s68, s68, s34''')
    for k in range(1, 4): a(f'v_add_u32 v{vW+k}, {(k>>1)*768 + (k&1)*18432}, v{vW}')
    for i in range(6):
        if ROT:
            a(f's_lshl_b32 s34, s3, 7\ns_add_u32 {sRx[i]}, s34, {sX}\ns_mul_i32 s34, s3, 147456\ns_add_u32 {sR[i]}, s34, s68')
            if i < 5: a('s_add_u32 s3, s3, 1\ns_cmp_ge_u32 s3, 6\ns_cselect_b32 s3, 0, s3')
        else: a(f's_add_u32 {sR[i]}, s68, {i*147456}\ns_add_u32 {sRx[i]}, {sX}, {i*128}')
    for i in range(2):
        a(f'''s_lshl_b32 s34, {sJ}, 3
        s_lshl_b32 s35, {sW}, 1
        s_add_u32 s34, s34, s35
        s_add_u32 s34, s34, {i}
        s_mul_i32 s35, s34, 43
        s_lshr_b32 s35, s35, 8
        s_mul_i32 s14, s35, 6
        s_sub_u32 s34, s34, s14
        s_lshl_b32 s34, s34, 10
        s_mul_i32 s35, s35, 196608
        s_add_u32 s34, s34, s35
        s_mul_i32 s35, {sG}, 6144
        s_add_u32 s{12+i}, s34, s35''')
    a(f's_mov_b32 s34, {WE}\ns_waitcnt lgkmcnt(0)\ns_load_dword {sTag}, s[32:33], s34')
    srd(a, 4, 20, 1572864); srd(a, 8, 22, 884736)
    def xpre():
        for i in range(2): a(f'buffer_load_dwordx4 v[{56+4*i}:{59+4*i}], v{vL16}, {SX}, s{12+i} offen')
    if opt('xp0', 0) == 1: xpre()
    def wdma(c):
        for th in range(2):
            a(f's_add_u32 m0, {sM}, {XS(c) + th*1024}\nbuffer_load_dwordx4 v{vXs+th}, {SX}, {sRx[c]} offen lds', tag=f'w{c}')
        for k in range(4):
            a(f's_add_u32 m0, {sM}, {WQ0 + c*16384 + (k>>1)*8192 + (k&1)*1024}\nbuffer_load_dwordx4 v{vW+k}, {SWQ}, {sR[c]} offen lds', tag=f'w{c}')
    NL = opt('nl', 2)
    for c in range(NL):
        wdma(c)
        if c == 0 and opt('xp0', 0) == 2: xpre()
        if c == 0: srd(a, 16, 32, WS_SIZE); srd(a, 24, 38, 1572864)
    a(f'''v_mul_u32_u24 v{vP}, 768, v1
    s_lshl_b32 s34, {sJ}, 7
    s_add_u32 s68, s34, {GW2}
    s_mul_i32 s69, {sJ}, 53248
    s_add_u32 s69, s69, {WS_W2}
    s_waitcnt lgkmcnt(0)''')
    tag_ready(a)
    def progress():
        L = a.newlabel('pg')
        a(f's_cmp_lg_u32 {sI}, 8\ns_cbranch_scc1 {L}\ns_cmp_lg_u32 {sW}, 0\ns_cbranch_scc1 {L}')
        a.cond = True
        a(f's_lshl_b32 s34, {sXCD}, 7\ns_mov_b32 s35, {FP}'); flag(a, 's34', 's35', sFast, 52, ''); a.vm.pop()
        a.cond = False
        a.label(L)
    if opt('prg', 9) == 9: progress()
    for c in range(6):
        a.wait(vm=f'w{c}')
        if c in (0, 3, 5): stamp(a, f'L{c}')
        a('s_barrier')
        if c + NL < 6: wdma(c + NL)
        if c == opt('prg', 9): progress()
        if c == opt('tlb', 1): pages(a)
        if c == opt('tpos', 3) and opt('touch', 1):
            a(f'''s_mul_i32 s34, {sG}, 24576
            s_lshl_b32 s35, {sJ}, 12
            s_add_u32 s34, s34, s35
            s_add_u32 s34, s34, {WS_S}
            s_add_u32 s34, s34, {sM1K}
            {"" if opt("swt", 0) else f"buffer_load_dwordx4 v[44:47], v{vL16}, {SWS}, s34 offen"}
            s_lshl_b32 s34, {sG}, 8
            s_add_u32 s34, s34, {FS1}
            v_lshlrev_b32 v48, 2, v1
            buffer_load_dword v49, v48, {SWS}, s34 offen
            s_lshl_b32 s34, {sXCD}, 9
            s_add_u32 s34, s34, {FC1}
            v_lshlrev_b32 v48, 3, v1
            buffer_load_dword v50, v48, {SWS}, s34 offen''')
    a(f's_mul_i32 s20, {sW}, 3')
    if ROT: rot_r('s3'); a('s_lshl_b32 s3, s3, 1\ns_add_u32 s3, s3, s20')
    else: a('s_mov_b32 s3, s20')
    a(f's_lshl_b32 s20, s20, 12\ns_add_u32 s20, s20, {W2L}')
    for k in range(3):
        a(f's_cmp_ge_u32 s3, 12\ns_cselect_b32 s34, 12, 0\ns_sub_u32 s3, s3, s34\ns_lshl_b32 s34, s3, 12\ns_add_u32 s{21+k}, s69, s34\ns_add_u32 s3, s3, 1')
    a(f's_add_u32 s69, s69, 49152\ns_add_u32 s69, s69, {sM1K}')
    if opt('tp', 9) == 0: touch2(a)
    if opt('w21', 1):
        a(f's_cmp_lg_u32 {sW}, 0\ns_cbranch_scc1 A_ld2')
        gpoll(a, 4, vP, 's68', 40)
        stamp(a, 'Lw2f')
        a(f's_sub_u32 s69, s69, 49152')
        for gi in range(13):
            if gi == 12: a(f's_add_u32 s68, s69, 49152')
            elif gi == 0: a('s_mov_b32 s68, s21\ns_sub_u32 s3, s21, s69')
            elif gi % 2 == 0: a('s_add_u32 s3, s3, 8192\ns_cmp_ge_u32 s3, 49152\ns_cselect_b32 s3, 0, s3\ns_add_u32 s68, s69, s3')
            else: a('s_add_u32 s68, s68, 4096')
            a(f's_mov_b32 m0, {W2L + gi*4096}')
            for k in range(4 if gi < 12 else 3): a(f'buffer_load_dwordx4 v{vL16}, {SWS}, s68 offen offset:{k*1024} sc1 lds', tag=f'h{gi}')
        if opt('yh', 12): a.wait(vm=f'h{opt("yh", 12)//2 - 1}')
        a.label('A_ld2')
        if opt('yh', 12): a('s_barrier')
    else:
        gpoll(a, 4, vP, 's68', 40)
        stamp(a, 'Lw2f')
        for k in range(3):
            a(f's_add_u32 m0, s20, {k*4096}')
            for q in range(4): a(f'buffer_load_dwordx4 v{vL16}, {SWS}, s{21+k} offen offset:{q*1024} sc1 lds')
        a(f's_add_u32 m0, {sM1K}, {W2L + 49152}\nbuffer_load_dwordx4 v{vL16}, {SWS}, s69 offen sc1 lds')
    a.wait_all()
    stamp(a, 'Lw2')
    a('s_barrier\ns_barrier\ns_branch P2_l')
    a.label('K_pre'); a.vm = []; a.lg = []
    sS8, sIt, sJt, sA, sB, sMm, sT0, sLA, sLB = 's50', 's51', 's52', 's53', 's54', 's55', 's56', 's57', 's58'
    a(f'''s_mov_b32 {sS8}, {sI}
    s_mov_b32 s34, {WE}
    s_and_b32 s59, {sXCD}, 1
    s_lshr_b32 s60, {sXCD}, 1
    s_cmp_lt_u32 {sS8}, 3
    s_cbranch_scc1 W_id0
    s_mul_i32 s35, s60, 9
    s_mul_i32 s61, s59, 5
    s_add_u32 s35, s35, s61
    s_add_u32 s35, s35, {sS8}
    s_sub_u32 s35, s35, 3
    s_mul_i32 s61, s35, 43
    s_lshr_b32 s61, s61, 8
    s_mul_i32 s62, s61, 6
    s_sub_u32 {sJt}, s35, s62
    s_cmp_ge_u32 s61, 3
    s_cselect_b32 {sMm}, 1, 0
    s_mul_i32 s62, {sMm}, 3
    s_sub_u32 {sIt}, s61, s62
    s_add_u32 s62, {sS8}, s59
    s_cmp_ge_u32 s62, 8
    s_cselect_b32 {sMm}, 3, {sMm}
    s_branch W_id1''')
    a.label('W_id0')
    a(f'''s_mov_b32 {sMm}, 2
    s_mov_b32 {sIt}, s60
    s_mul_i32 {sJt}, s59, 3
    s_add_u32 {sJt}, {sJt}, {sS8}''')
    a.label('W_id1')
    a(f'''s_waitcnt lgkmcnt(0)
    s_load_dword {sTag}, s[32:33], s34''')
    srd(a, 16, 32, WS_SIZE); srd(a, 24, 38, 1572864)
    a(f'''s_cmp_eq_u32 {sMm}, 3
    s_cbranch_scc1 W_done
    s_cmp_lg_u32 {sRole}, 0
    s_cbranch_scc1 W_ld''')
    BB = 98304
    FA, FB, AC = 32, 48, 128
    vAr, vBr = 14, 18
    a(f'''v_and_b32 v2, 31, v1
    v_lshrrev_b32 v3, 5, v1
    v_and_b32 v4, 19, v2
    v_bfe_u32 v5, v2, 2, 1
    v_lshl_add_u32 v4, v5, 3, v4
    v_bfe_u32 v5, v2, 3, 1
    v_lshl_add_u32 v4, v5, 2, v4
    v_lshrrev_b32 v5, 3, v4
    v_mul_u32_u24 v5, 6144, v5
    v_and_b32 v6, 7, v4
    v_lshl_add_u32 v5, v6, 7, v5
    v_bfe_u32 v6, v4, 1, 3
    v_xor_b32 v6, v6, v3
    v_lshl_add_u32 v11, v6, 4, v5
    v_bfe_u32 v6, v1, 2, 2
    v_lshl_add_u32 v4, v3, 3, v6
    v_lshlrev_b32 v4, 7, v4
    v_lshrrev_b32 v7, 1, v6
    v_lshl_add_u32 v4, v7, 6, v4
    v_bfe_u32 v7, v1, 4, 1
    v_lshl_add_u32 v12, v7, 5, v4
    s_mov_b32 s37, 0x3f803f80''')
    def a_addr(swave):
        a(f's_mul_i32 s34, {swave}, 24576\nv_add_u32 v{vAr}, s34, v11')
        for k in range(1, 4): a(f'v_xor_b32 v{vAr+k}, {32*k}, v{vAr}')
    def stages(nv, breads):
        def rd(jj, k4):
            o = (jj & 1)*48*opt('ppipe', 1)
            a(f'ds_read_b128 {vr(FA+o+4*k4,4)}, v{vAr+k4} offset:{jj*1024}', tag=f'r{k4}')
            for v in range(nv): breads(jj, k4, v, FB + o + (k4*2+v)*4)
        def mm(jj, k4):
            o = (jj & 1)*48*opt('ppipe', 1)
            for v in range(nv):
                cin = '0' if (jj == 0 and k4 == 0) else vr(AC+16*v, 16)
                a(f'v_mfma_f32_32x32x16_bf16 {vr(AC+16*v,16)}, {vr(FA+o+4*k4,4)}, {vr(FB+o+(k4*2+v)*4,4)}, {cin}')
        for jj in range(6):
            a('s_barrier')
            if opt('ppipe', 1) and jj:
                rd(jj, 0); mm(jj - 1, 2); rd(jj, 1); mm(jj - 1, 3); rd(jj, 2); rd(jj, 3)
            else:
                for k4 in range(4): rd(jj, k4)
            last = 4 if (jj == 5 or not opt('ppipe', 1)) else 2
            for k4 in range(last):
                a.wait(lg=f'r{k4}'); mm(jj, k4)
            if last == 2: a.wait(lg='r3')
    def btr(jj, k4, v, d):
        o = jj*8192 + k4*2048
        a(f'ds_read_b64_tr_b16 {vr(d,2)}, v{vBr+v} offset:{o}\nds_read_b64_tr_b16 {vr(d+2,2)}, v{vBr+v} offset:{o+512}', tag=f'r{k4}')
    def brow(jj, k4, v, d): a(f'ds_read_b128 {vr(d,4)}, v{vBr+k4} offset:{v*24576+jj*1024}', tag=f'r{k4}')
    def colsum(v, src, dst):
        a(f'v_mov_b32 v24, 0')
        for i in range(8): a(f'v_dot2c_f32_bf16 v24, s37, v{src+i}')
        a(f'''v_mov_b32 v26, v24
        v_permlane32_swap_b32 v24, v26
        v_add_f32 v26, v26, v24
        v_cvt_pk_bf16_f32 v27, v26, v26
        v_lshlrev_b32 v27, 16, v27
        v_sub_f32 v27, v26, v27
        v_cvt_pk_bf16_f32 v{dst}, v26, v27''')
    def colsum2():
        a('v_mov_b32 v24, 0\nv_mov_b32 v25, 0')
        for i in range(8): a(f'v_dot2c_f32_bf16 v24, s37, v{32+i}\nv_dot2c_f32_bf16 v25, s37, v{40+i}')
        a('''v_mov_b32 v26, v24
        v_mov_b32 v27, v25
        v_permlane32_swap_b32 v24, v26
        v_permlane32_swap_b32 v25, v27
        v_add_f32 v24, v26, v24
        v_add_f32 v25, v27, v25
        v_cvt_pk_bf16_f32 v26, v24, v24
        v_cvt_pk_bf16_f32 v27, v25, v25
        v_lshlrev_b32 v26, 16, v26
        v_lshlrev_b32 v27, 16, v27
        v_sub_f32 v26, v24, v26
        v_sub_f32 v27, v25, v27
        v_cvt_pk_bf16_f32 v28, v24, v26
        v_cvt_pk_bf16_f32 v29, v25, v27''')
    a_addr(sW)
    a(f's_cmp_lg_u32 {sMm}, 2\ns_cbranch_scc1 W_c0')
    a(f'''s_min_u32 s59, {sW}, 2''')
    a_addr('s59')
    a(f'''v_and_b32 v7, 1, v1
    v_lshl_add_u32 v4, v7, 4, v12
    v_bfe_u32 v7, v1, 1, 1
    v_lshl_add_u32 v4, v7, 3, v4
    v_add_u32 v{vBr}, {BB}, v4
    v_xor_b32 v{vBr+1}, 64, v{vBr}
    s_mul_i32 s34, {sIt}, 3
    s_add_u32 s34, s34, s59
    s_mul_i32 s35, {sJt}, 53248
    s_add_u32 s35, s35, {WS_W2}
    s_lshl_b32 s36, s34, 12
    s_add_u32 s61, s35, s36
    s_lshl_b32 s36, s34, 8
    s_add_u32 s35, s35, s36
    s_add_u32 s62, s35, 49152
    v_lshlrev_b32 v30, 2, v1
    s_mul_i32 s63, {sIt}, 6
    s_add_u32 s63, s63, {sJt}
    s_lshl_b32 s63, s63, 7
    s_mov_b32 s64, {GW2}''')
    stages(2, btr)
    stamp(a, 'pst')
    a(f's_cmp_eq_u32 {sW}, 3\ns_cbranch_scc1 W_c4')
    for v in range(2):
        for i in range(8): a(f'v_cvt_pk_bf16_f32 v{32+8*v+i}, v{AC+16*v+2*i}, v{AC+16*v+2*i+1}')
        a(f'buffer_store_dwordx4 {vr(32+8*v,4)}, v{vL16}, {SWS}, s61 offen offset:{v*1024} {WT}\nbuffer_store_dwordx4 {vr(36+8*v,4)}, v{vL16}, {SWS}, s61 offen offset:{2048+v*1024} {WT}')
    colsum2()
    a('s_mov_b32 exec_hi, 0')
    for v in range(2): a(f'buffer_store_dword v{28+v}, v30, {SWS}, s62 offen offset:{v*128} {WT}')
    a('s_mov_b32 exec_hi, -1')
    a.label('W_c4')
    a.wait_all()
    tag_ready(a)
    a('s_barrier')
    flag_w0(a, 's63', 's64', 48)
    stamp(a, 'w2pub')
    a('s_branch W_done2')
    a.label('W_c0'); a.lg = []; a.vm = []
    a(f'''s_mul_i32 s34, {sMm}, 24
    s_lshl_b32 s61, {sJt}, 2
    s_add_u32 s34, s34, s61
    v_bfe_u32 v4, v1, 4, 1
    v_add_u32 v4, s34, v4
    v_and_b32 v7, 15, v1
    v_lshlrev_b32 v7, 4, v7
    s_lshl_b32 s61, {sIt}, 2
    s_add_u32 s61, s61, {sW}
    s_mul_i32 s61, s61, 3072
    s_add_u32 s61, s61, {WS_W}
    s_lshl_b32 s62, {sIt}, 2
    s_add_u32 s62, s62, {sW}
    s_mul_i32 s62, s62, 192
    s_add_u32 s62, s62, {WS_W + 12*3072}''')
    for v in range(2):
        a(f'''v_add_u32 v5, {2*v}, v4
        v_mul_u32_u24 v6, 43, v5
        v_lshrrev_b32 v6, 7, v6
        v_mul_u32_u24 v8, 3, v6
        v_sub_u32 v5, v5, v8
        v_mul_u32_u24 v6, 39936, v6
        v_lshl_add_u32 v{160+v}, v5, 6, v6
        v_lshl_add_u32 v6, v5, 10, v6
        v_add_u32 v6, v6, v7
        v_lshl_add_u32 v{162+v}, v3, 8, v6
        v_lshrrev_b32 v6, 2, v7
        v_add_u32 v{160+v}, v{160+v}, v6''')
    a(f's_cmp_eq_u32 {sMm}, 1\ns_cbranch_scc1 W_c1')
    a(f'''v_lshrrev_b32 v5, 3, v2
    v_mul_u32_u24 v5, 6144, v5
    v_and_b32 v6, 7, v2
    v_lshl_add_u32 v5, v6, 7, v5
    v_bfe_u32 v6, v2, 1, 3
    v_xor_b32 v6, v6, v3
    v_lshl_add_u32 v5, v6, 4, v5
    v_add_u32 v{vBr}, {BB}, v5''')
    for k in range(1, 4): a(f'v_xor_b32 v{vBr+k}, {32*k}, v{vBr}')
    stages(2, brow)
    a('s_branch W_c2')
    a.label('W_c1'); a.lg = []
    a(f'''v_and_b32 v7, 3, v1
    v_lshl_add_u32 v4, v7, 3, v12
    v_add_u32 v{vBr}, {BB}, v4
    v_xor_b32 v{vBr+1}, 64, v{vBr}''')
    stages(2, btr)
    a.label('W_c2')
    stamp(a, 'qst')
    for v in range(2):
        for i in range(8): a(f'v_cvt_pk_bf16_f32 v{32+8*v+i}, v{AC+16*v+2*i}, v{AC+16*v+2*i+1}')
        a(f'buffer_store_dwordx4 {vr(32+8*v,4)}, v{162+v}, {SWS}, s61 offen {WT}')
        a(f'buffer_store_dwordx4 {vr(36+8*v,4)}, v{162+v}, {SWS}, s61 offen offset:512 {WT}')
    colsum2()
    a('s_mov_b32 exec_hi, 0')
    for v in range(2): a(f'buffer_store_dword v{28+v}, v{160+v}, {SWS}, s62 offen {WT}')
    a('s_mov_b32 exec_hi, -1')
    stamp(a, 'qsto')
    a('s_branch W_done')
    a.label('W_ld'); a.vm = []; a.lg = []
    vA0, vBo = 12, 14
    a(f'''v_lshrrev_b32 v4, 1, v{T8}
    v_xor_b32 v4, v4, v{G8}
    v_mul_u32_u24 v5, 2304, v{T8}
    v_lshl_add_u32 v{vA0}, v4, 4, v5
    v_xor_b32 v{vA0+1}, 64, v{vA0}
    v_lshlrev_b32 v4, 1, v{T8}
    v_and_b32 v4, 4, v4
    v_xor_b32 v4, v4, v{G8}
    v_mul_u32_u24 v5, 768, v{T8}
    v_lshl_add_u32 v{vBo}, v4, 4, v5''')
    sLn = ['s59', 's60', 's61', 's62', 's63', 's64']; sLb = ['s65', 's66', 's67', 's68', 's69', 's3']
    def lstages(nra, mode):
        if opt('prot', 1) and (nra == 3 or opt('protw', 1)): a(f's_mul_i32 s34, {sIt}, 3\ns_lshr_b32 s34, s34, 1\ns_add_u32 s34, s34, {sJt}')
        else: a('s_mov_b32 s34, 0')
        for jj in range(6):
            a(f's_cmp_ge_u32 s34, 6\ns_cselect_b32 s35, 6, 0\ns_sub_u32 s34, s34, s35\ns_lshl_b32 s35, s34, 7\ns_add_u32 {sLn[jj]}, {sA}, s35')
            if mode == 1: a(f's_mul_i32 s35, s34, {64*768}')
            a(f's_add_u32 {sLb[jj]}, {sB}, s35\ns_add_u32 s34, s34, 1')
        def issue(jj):
            for r in range(nra):
                a(f'''s_add_u32 {sT0}, {sLn[jj]}, {r*8*2304}
                s_add_u32 m0, {sLA}, {(r*6+jj)*1024}
                buffer_load_dwordx4 v{vA0+(r&1)}, {SWQ}, {sT0} offen lds''', tag=f'p{jj}')
            for r in range(2):
                if mode == 0:
                    a(f'''s_add_u32 {sT0}, {sLb[jj]}, {r*8*2304}
                    s_add_u32 m0, {sLB}, {BB + (r*6+jj)*1024}
                    buffer_load_dwordx4 v{vA0+r}, {SWQ}, {sT0} offen lds''', tag=f'p{jj}')
                else:
                    a(f'''s_add_u32 {sT0}, {sLb[jj]}, {r*8*768}
                    s_add_u32 m0, {sLB}, {BB + jj*8192 + r*1024}
                    buffer_load_dwordx4 v{vBo}, {SWO}, {sT0} offen lds''', tag=f'p{jj}')
        n0 = opt('pn0', 3) if nra == 3 else opt('pn0w', 3)
        for jj in range(n0): issue(jj)
        for jj in range(6):
            a.wait(vm=f'p{jj}')
            if jj in (0, 3, 5): stamp(a, f'Lp{jj}' if nra == 3 else f'Lq{jj}')
            a('s_barrier')
            if jj + n0 < 6: issue(jj + n0)
    if opt('tlb', 1) >= 0: pages(a)
    a(f's_cmp_lg_u32 {sMm}, 2\ns_cbranch_scc1 W_l0')
    srd(a, 8, 22, 884736); srd(a, 12, 28, 294912)
    a(f'''s_lshl_b32 s34, {sIt}, 2
    s_add_u32 s34, s34, {sW}
    s_mul_i32 {sA}, s34, {24*2304}
    s_add_u32 {sA}, {sA}, 1536
    s_mul_i32 {sLA}, {sW}, 18432
    s_mul_i32 {sB}, {sW}, {16*768}
    s_lshl_b32 s34, {sJt}, 7
    s_add_u32 {sB}, {sB}, s34
    s_lshl_b32 {sLB}, {sW}, 11
    s_and_b32 s34, {sW}, 1
    s_lshl_b32 s34, s34, 6
    v_xor_b32 v{vA0}, s34, v{vA0}
    v_xor_b32 v{vA0+1}, s34, v{vA0+1}''')
    lstages(3, 1)
    a('s_branch W_done')
    a.label('W_l0'); a.vm = []
    if opt('prg', 9) >= 0:
        a(f'''s_waitcnt lgkmcnt(0)
        s_mul_i32 s35, {sTag}, 0x9e3779b1
        s_add_u32 s35, s35, 0x7f4a7c15
        s_add_u32 s35, s35, {sFast}
        s_lshl_b32 s34, {sXCD}, 7
        s_add_u32 s34, s34, {FP}
        v_mov_b32 v20, 0
        s_mov_b32 s56, {opt('prl', 16)}''')
        a.label('W_pw')
        a(f'''buffer_load_dword v21, v20, {SWS}, s34 offen sc1
        s_waitcnt vmcnt(0)
        v_cmp_ne_u32 vcc, s35, v21
        s_cbranch_vccz W_go
        s_sub_u32 s56, s56, 1
        s_cmp_lg_u32 s56, 0
        s_cbranch_scc1 W_pw''')
        a.label('W_go'); a.vm = []
        stamp(a, 'Lgo')
    srd(a, 8, 30, 884736); srd(a, 12, 36, 294912)
    a(f'''s_lshl_b32 s34, {sIt}, 2
    s_add_u32 s34, s34, {sW}
    s_mul_i32 {sA}, s34, {32*2304}
    s_mul_i32 s35, {sMm}, 1536
    s_add_u32 {sA}, {sA}, s35
    s_mul_i32 {sLA}, {sW}, 24576
    s_cmp_eq_u32 {sMm}, 1
    s_cbranch_scc1 W_l1
    s_lshl_b32 s34, {sJt}, 2
    s_add_u32 s34, s34, {sW}
    s_mul_i32 {sB}, s34, {16*2304}
    s_add_u32 {sB}, {sB}, 768
    s_mul_i32 {sLB}, {sW}, 12288''')
    lstages(4, 0)
    a('s_branch W_done')
    a.label('W_l1'); a.vm = []
    a(f'''s_mul_i32 {sB}, {sW}, {16*768}
    s_lshl_b32 s34, {sJt}, 7
    s_add_u32 {sB}, {sB}, s34
    s_lshl_b32 {sLB}, {sW}, 11''')
    lstages(4, 1)
    a.label('W_done'); a.vm = []; a.lg = []
    a.wait_all()
    tag_ready(a)
    a(f'''s_barrier
    s_cmp_lg_u32 {sRole}, 0
    s_cbranch_scc1 W_done3''')
    a.label('W_done2')
    a(f'''
    s_lshl_b32 s34, {sS8}, 3
    s_add_u32 s34, s34, {sXCD}
    s_lshl_b32 s34, s34, 7
    s_mov_b32 s35, {GW}''')
    flag_w0(a, 's34', 's35', 32)
    stamp(a, 'wpub')
    hp_t0(a)
    if opt('tp', 9) == 3:
        a(f'''s_lshl_b32 s34, {sS8}, 2
        s_add_u32 s34, s34, {sW}
        s_mul_i32 s35, s34, 6656
        s_mul_i32 s36, {sXCD}, 212992
        s_add_u32 s35, s35, s36
        s_add_u32 s35, s35, {WS_Q}
        s_mul_i32 s36, s34, 6144
        s_mul_i32 s37, {sXCD}, 196608
        s_add_u32 s36, s36, s37
        s_add_u32 s36, s36, {WS_VP}''')
        for sb, n in (('s35', 7), ('s36', 6)):
            for i in range(n):
                if i == 4: a(f's_add_u32 {sb}, {sb}, 4096')
                a(f'buffer_load_dwordx4 v[64:67], v{vL16}, {SWS}, {sb} offen offset:{(i&3)*1024}')
        a(f's_lshl_b32 s34, {sXCD}, 9\ns_add_u32 s34, s34, {FC1}\nv_lshlrev_b32 v68, 3, v1\nbuffer_load_dword v64, v68, {SWS}, s34 offen')
        a.vm = []
    def wd3():
        a.label('W_done3')
        if opt('tp', 9) == 0: touch2(a)
        a('s_branch P2_l')
    TAIL.append(wd3)
    import v17b
    v17b.phase2(a, globals())
    a.label('K_end')
    a('s_endpgm')
    a.cond = True
    k = 0
    while k < len(TAIL): a.vm = []; a.lg = []; TAIL[k](); k += 1
    return a

KNAME = 'standalone__video_timesformer__vision_kernel'
if __name__ == '__main__':
    out = sys.argv[1]
    a = build()
    head = open('standalone__video_timesformer__vision.s.ref').read().split('; Override launch')[0]
    s = head + '; @launch grid=(256,1,1) block=(512,1,1) lds=151552\n.amdgcn_target "amdgcn-amd-amdhsa--gfx950"\n.text\n'
    s += f'.globl {KNAME}\n.p2align 8\n.type {KNAME},@function\n{KNAME}:\n' + a.text()
    s += f'''.fill 4096, 4, 0xbf800000
  s_endpgm
.section .rodata,"a"
.p2align 6
.amdhsa_kernel {KNAME}
  .amdhsa_next_free_vgpr 256
  .amdhsa_next_free_sgpr 102
  .amdhsa_accum_offset 256
  .amdhsa_group_segment_fixed_size 0
  .amdhsa_kernarg_size 64
  .amdhsa_user_sgpr_count 2
  .amdhsa_user_sgpr_kernarg_segment_ptr 1
  .amdhsa_system_sgpr_workgroup_id_x 1
.end_amdhsa_kernel
'''
    open(out, 'w').write(s)
    if PROFILE: open(out + '.stamps', 'w').write(repr(St.names))
    print('instructions', sum(1 for i in a.ins if not i.label), 'pad states', a.pads)
```

```python
def phase2(a, G):
    globals().update({k: v for k, v in G.items() if not k.startswith('__')})
    sT = sXCD
    sRQ, sS, sQT, sCH, sT0, sT1 = 's50', 's51', 's52', 's53', 's54', 's55'
    sK, sSt1, sSt2, sQ, sVP, sOut, sF1, sF2, sOwn, sRs, sFS, sTP = 's56', 's57', 's58', 's59', 's60', 's61', 's62', 's63', 's64', 's66', 's65', 's3'
    LW, XB, LT = 0, 81920, 131072
    LQ, LS, LP, LML, LO = 0, 13312, 16384, 24576, 26624
    vL16, vQ12, vTb, vA, vB, vSt = 10, 11, 12, 15, 9, 8
    QF, M_, T_ = 32, 4, 5
    vP, vML, vMLr = 13, 14, 12
    def common():
        a(f'''s_lshr_b32 {sRQ}, {sI}, 3
        s_lshr_b32 {sTP}, {sW}, 1
        s_lshr_b32 {sQT}, {sI}, 1
        s_and_b32 {sCH}, {sI}, 1
        s_mul_i32 {sK}, {sT}, 196608
        s_mul_i32 s35, {sW}, 12288
        s_add_u32 {sK}, {sK}, s35
        s_add_u32 {sK}, {sK}, {WS_X1}
        v_lshrrev_b32 v2, 4, v1
        v_and_b32 v3, 15, v1
        v_bfe_u32 v5, v1, 4, 1''')
    def attn_addr(role):
        a(f'''s_lshl_b32 s34, {sTP}, 10
        s_and_b32 s35, {sW}, 1
        s_lshl_b32 s35, s35, 3
        s_add_u32 s34, s34, s35
        s_add_u32 s34, s34, {LP}
        v_add_u32 v{vP}, s34, v{vL16}
        s_lshl_b32 s34, {sW}, 2
        s_add_u32 s34, s34, {LML + 16*role}
        v_lshl_add_u32 v{vML}, v3, 5, s34
        v_lshlrev_b32 v{vMLr}, 5, v3
        v_add_u32 v{vMLr}, {LML}, v{vMLr}
        v_lshlrev_b32 v{vQ12}, 2, v3
        v_lshl_add_u32 v{vQ12}, v5, 8, v{vQ12}
        v_add_u32 v{vQ12}, {LQ + 12288}, v{vQ12}''')
    def scores(nt, KF, SA, RD, MF, vMa, vRa, vPt, fill, role):
        pre = 'L' if role else ''
        def qrd(ks):
            d = QF + 4*(ks%4)
            if ks < 12: a(f'ds_read_b128 {vr(d,4)}, v{vL16} offset:{LQ + ks*1024}', tag=f'q{ks}')
            else: a(f'ds_read2_b32 {vr(d,2)}, v{vQ12} offset0:0 offset1:16\nds_read2_b32 {vr(d+2,2)}, v{vQ12} offset0:32 offset1:48', tag=f'q{ks}')
        for ks in range(3): qrd(ks)
        for t in range(nt): a(f'ds_read_b32 v{MF+4*t}, v{vMa+t}\nds_read_b128 {vr(RD+4*t,4)}, v{vRa+t}', tag='fs')
        for ks in range(13):
            a.wait(lg=f'q{ks}')
            for t in range(nt):
                kf = vr(KF+(t*12+ks)*4, 4) if ks < 12 else vr(MF+4*t, 4)
                d = vr(SA+4*t, 4)
                a(f'v_mfma_f32_16x16x32_bf16 {d}, {kf}, {vr(QF+4*(ks%4),4)}, {"0" if ks == 0 else d}')
            if ks + 3 < 13: qrd(ks + 3)
            if ks == 3:
                a('s_mov_b32 s36, -1\ns_mov_b32 s37, 0')
                for t in range(nt): a(f'v_cndmask_b32 v{MF+4*t}, 0, v{MF+4*t}, s[36:37]')
            if 4 <= ks < 7:
                for t in range(nt): a(f'v_mov_b32 v{MF+4*t+ks-3}, v{MF+4*t}')
            fill()
        n = 4*nt
        for i in range(n): a(f'v_mul_f32 v{SA+i}, v{SA+i}, v{RD+i}')
        a(f'v_max3_f32 v{M_}, v{SA}, v{SA+1}, v{SA+2}')
        if nt == 1: a(f'v_max_f32 v{M_}, v{M_}, v{SA+3}')
        else:
            a(f'v_max3_f32 v{T_}, v{SA+3}, v{SA+4}, v{SA+5}\nv_max3_f32 v{M_}, v{M_}, v{SA+6}, v{SA+7}\nv_max3_f32 v{T_}, v{T_}, v{SA+8}, v{SA+9}\nv_max3_f32 v{M_}, v{M_}, v{SA+10}, v{SA+11}\nv_max_f32 v{M_}, v{M_}, v{T_}')
        for sw in ('v_permlane16_swap_b32', 'v_permlane32_swap_b32'):
            a(f'v_mov_b32 v{T_}, v{M_}'); fill(); a(f'{sw} v{M_}, v{T_}\nv_max_f32 v{M_}, v{M_}, v{T_}')
        a(f's_mov_b64 exec, 0xffff\nds_write_b32 v{vML}, v{M_}\ns_mov_b64 exec, -1')
        fill()
        a('s_waitcnt lgkmcnt(0)'); a.lg = []
        stamp(a, pre + 's1'); a('s_barrier')
        a(f'ds_read_b128 {vr(QF,4)}, v{vMLr}\nds_read_b128 {vr(QF+4,4)}, v{vMLr} offset:16', tag='mx')
        fill(); fill()
        a.wait(lg='mx')
        a(f'v_max3_f32 v{M_}, v{QF}, v{QF+1}, v{QF+2}\nv_max3_f32 v{T_}, v{QF+3}, v{QF+4}, v{QF+5}\nv_max3_f32 v{M_}, v{M_}, v{QF+6}, v{QF+7}\nv_max_f32 v{M_}, v{M_}, v{T_}')
        for i in range(n): a(f'v_sub_f32 v{SA+i}, v{SA+i}, v{M_}')
        for t in range(nt):
            for i in range(4): a(f'v_exp_f32 v{SA+4*t+i}, v{SA+4*t+i}')
            for i in range(2): a(f'v_cvt_pk_bf16_f32 v{QF+2*t+i}, v{SA+4*t+2*i}, v{SA+4*t+2*i+1}')
            a(f'ds_write_b64 v{vPt+t}, {vr(QF+2*t,2)}')
        for t in range(1, nt):
            for i in range(4): a(f'v_add_f32 v{SA+i}, v{SA+i}, v{SA+4*t+i}')
        a(f'v_add_f32 v{SA}, v{SA}, v{SA+2}\nv_add_f32 v{SA+1}, v{SA+1}, v{SA+3}\nv_add_f32 v{SA}, v{SA}, v{SA+1}')
        for sw in ('v_permlane16_swap_b32', 'v_permlane32_swap_b32'):
            a(f'v_mov_b32 v{T_}, v{SA}'); fill(); a(f'{sw} v{SA}, v{T_}\nv_add_f32 v{SA}, v{SA}, v{T_}')
        a(f's_mov_b64 exec, 0xffff\nds_write_b32 v{vML}, v{SA} offset:512\ns_mov_b64 exec, -1')
        a('s_waitcnt lgkmcnt(0)'); a.lg = []
        stamp(a, pre + 's2'); a('s_barrier')
    def tile_addr(sA_, k, vMa, vRa, vPt):
        a(f'''s_lshl_b32 s34, {sA_}, 2
        s_add_u32 s34, s34, {sW}
        s_lshl_b32 s34, s34, 6
        s_add_u32 s34, s34, {LS}
        v_lshl_add_u32 v{vMa+k}, v3, 2, s34
        s_add_u32 s34, s34, 1024
        v_lshl_add_u32 v{vRa+k}, v2, 4, s34
        s_lshl_b32 s34, {sA_}, 11
        v_add_u32 v{vPt+k}, s34, v{vP}''')
    def run(q, n):
        while n > 0 and q:
            x = q.pop(0); n -= 1
            if x == 's_nop 0': continue
            if isinstance(x, tuple):
                if x[0] == 'v': a.wait(vm=x[1])
                elif x[0] == 'l': a.wait(lg=x[1])
                else: a(x[0], tag=x[1])
            else: a(x)
    a.label('P2_c'); a.vm = []; a.lg = []
    stamp(a, 'p2c')
    common()
    RD, MF, RT = 16, 24, 6
    WF, XR, ACC, PK, AQ, SR, ONE = 100, 56, 76, 100, 112, 32, 72
    vWa, vWb, vXa = 72, 73, 11
    VF, KF = 64, 208
    a(f'''s_and_b32 {sS}, {sI}, 7
    s_lshl_b32 {sS}, {sS}, 1
    s_and_b32 s34, {sW}, 1
    s_add_u32 {sS}, {sS}, s34
    s_mul_i32 s35, s34, 39936
    v_add_u32 v{vWa}, s35, v{vL16}
    v_cmp_eq_u32 vcc, 3, v2
    v_cndmask_b32 v6, v2, 0, vcc
    v_mul_u32_u24 v6, 768, v6
    v_lshl_add_u32 v6, v3, 2, v6
    s_add_u32 s35, s35, 36864
    v_add_u32 v{vWb}, s35, v6
    s_mul_i32 s35, {sTP}, 24576
    s_add_u32 s35, s35, {XB}
    v_add_u32 v{vXa}, s35, v{vL16}
    s_mul_i32 s34, {sRQ}, 49152
    s_add_u32 {sK}, {sK}, s34
    s_lshl_b32 s69, {sRQ}, 1
    s_add_u32 s69, s69, {sTP}
    s_lshl_b32 s34, s69, 9
    s_mul_i32 s35, {sT}, 49152
    s_add_u32 s34, s34, s35
    s_add_u32 {sSt1}, s34, {WS_ST}
    s_lshl_b32 s34, {sT}, 11
    s_add_u32 {sFS}, s34, {WS_FS}
    s_lshl_b32 s34, {sT}, 9
    s_add_u32 {sF1}, s34, {FC1}
    s_add_u32 {sF2}, s34, {FC2}
    s_lshl_b32 s34, {sT}, 4
    s_add_u32 s35, s34, {sQT}
    s_mul_i32 {sQ}, s35, 13312
    s_add_u32 {sQ}, {sQ}, {WS_Q}
    s_lshl_b32 s35, s69, 1
    s_add_u32 s34, s34, s35
    s_mul_i32 s34, s34, 13312
    s_add_u32 s34, s34, {WS_Q}
    s_mul_i32 s35, {sS}, 1536
    s_add_u32 s68, s34, s35
    s_lshl_b32 s35, {sS}, 6
    s_add_u32 s34, s34, s35
    s_add_u32 {sSt2}, s34, 12288
    v_lshrrev_b32 v4, 5, v1
    v_and_b32 v6, 31, v1
    v_lshlrev_b32 v{vSt}, 4, v6
    v_mul_u32_u24 v7, 24576, v4
    v_add_u32 v{vSt}, v{vSt}, v7
    s_add_u32 s34, {sM1K}, {LT}
    v_lshl_add_u32 v{vTb}, v6, 2, s34
    v_lshl_add_u32 v{vTb+1}, v3, 2, s34
    v_lshl_add_u32 v{vTb+2}, v2, 4, s34
    v_lshlrev_b32 v74, 2, v6
    v_lshlrev_b32 v7, 4, v3
    v_lshl_add_u32 v{vA}, v4, 8, v7
    v_lshl_add_u32 v{vA}, v5, 3, v{vA}
    v_mul_u32_u24 v{vB}, 13312, v5
    v_lshl_add_u32 v{vB}, v3, 2, v{vB}
    s_lshl_b32 {sOwn}, {sI}, 4
    s_lshl_b32 s34, {sW}, 2
    s_add_u32 {sOwn}, {sOwn}, s34
    s_mul_i32 {sVP}, {sT}, 196608
    s_mul_i32 s35, {sQT}, 12288
    s_add_u32 {sRs}, {sVP}, s35
    s_mul_i32 s34, {sCH}, 6144
    s_add_u32 {sRs}, {sRs}, s34
    s_mul_i32 s34, {sW}, 1536
    s_add_u32 {sRs}, {sRs}, s34
    s_add_u32 {sRs}, {sRs}, {WS_X1}
    s_add_u32 {sOut}, {sVP}, s35
    s_mul_i32 s35, {sCH}, 384
    s_add_u32 {sOut}, {sOut}, s35
    s_mul_i32 s35, {sW}, 96
    s_add_u32 {sOut}, {sOut}, s35
    s_mul_i32 s34, s69, 24576
    s_add_u32 s34, s34, {sVP}
    s_mul_i32 s35, {sS}, 3072
    s_add_u32 s34, s34, s35
    s_add_u32 s67, s34, {WS_VP - 8*3072}
    s_mul_i32 s35, {sCH}, 12288
    s_add_u32 {sVP}, {sVP}, s35
    s_mul_i32 s35, {sW}, 3072
    s_add_u32 {sVP}, {sVP}, s35
    s_add_u32 {sVP}, {sVP}, {WS_VP}
    s_lshl_b32 s69, s69, 7
    s_add_u32 s69, s69, {sFS}
    s_mul_i32 s20, {sW}, 12288
    s_add_u32 s20, s20, {XB}''')
    a('v_mov_b32 v4, v74')
    stamp(a, 'p2s')
    a('s_barrier')
    stamp(a, 'gsync')
    wq = []
    for ks in range(13):
        for u in range(3):
            d = WF + (ks*3+u)*4
            if ks < 12: wq.append(f'ds_read_b128 {vr(d,4)}, v{vWa} offset:{(ks*3+u)*1024}')
            else: wq.append(f'ds_read2_b32 {vr(d,2)}, v{vWb} offset0:{16*u} offset1:{16*u+48}\nds_read2_b32 {vr(d+2,2)}, v{vWb} offset0:{16*u+96} offset1:{16*u+144}')
    vm = []
    for ks in range(12):
        vm.append(((f's_add_u32 m0, s20, {ks*1024}\n' + (f's_add_u32 {sK}, {sK}, 4096\n' if ks else '') if ks % 4 == 0 else '') + f'buffer_load_dwordx4 v{vL16}, {SWS}, {sK} offen offset:{(ks&3)*1024} sc1 lds', f'x{ks>>2}'))
    st = [((f's_add_u32 {sSt1}, {sSt1}, 4096\n' if i else '') + f'buffer_load_dwordx4 {vr(SR+4*i,4)}, v{vSt}, {SWS}, {sSt1} offen sc1', 'st') for i in range(6)]
    SP_ = opt('stp', 8)
    for k, (t, tag) in enumerate(vm[:SP_] + st + vm[SP_:]):
        a(t, tag=tag)
        if k >= 1:
            for _ in range(3):
                if wq: a(wq.pop(0))
    for x in wq: a(x)
    late = [f's_mov_b32 s36, {fbits(1/384)}', f's_mov_b32 s37, {fbits(1e-5)}', ('v', 'st')]
    for k in (0, 1): late += [f'v_add_f32 v{SR+k}, v{SR+k}, v{SR+4+k}', f'v_add_f32 v{SR+8+k}, v{SR+8+k}, v{SR+12+k}', f'v_add_f32 v{SR+16+k}, v{SR+16+k}, v{SR+20+k}']
    for k in (0, 1): late += [f'v_add_f32 v{SR+k}, v{SR+k}, v{SR+8+k}']
    for k in (0, 1): late += [f'v_add_f32 v{SR+k}, v{SR+k}, v{SR+16+k}']
    late += f'''v_mov_b32 v{SR+2}, v{SR}
    v_mov_b32 v{SR+3}, v{SR+1}
    v_cmp_eq_u32 vcc, 3, v2
    v_permlane32_swap_b32 v{SR}, v{SR+2}
    v_permlane32_swap_b32 v{SR+1}, v{SR+3}
    v_add_f32 v{SR}, v{SR}, v{SR+2}
    v_add_f32 v{SR+1}, v{SR+1}, v{SR+3}
    v_mul_f32 v{SR}, s36, v{SR}
    v_mul_f32 v{SR+2}, v{SR}, v{SR}
    v_fma_f32 v{SR+1}, v{SR+1}, s36, -v{SR+2}
    v_max_f32 v{SR+1}, 0, v{SR+1}
    v_add_f32 v{SR+1}, s37, v{SR+1}
    v_rsq_f32 v{SR+1}, v{SR+1}
    v_cvt_pk_bf16_f32 v{SR}, -v{SR}, -v{SR}
    ds_write_b32 v{vTb}, v{SR}
    ds_write_b32 v{vTb}, v{SR+1} offset:128'''.split('\n')
    late.append((f'ds_read2_b32 {vr(SR+4,2)}, v{vTb+1} offset0:0 offset1:16', 't'))
    late.append((f'ds_read2_b32 {vr(RT,2)}, v{vTb+1} offset0:32 offset1:48', 't'))
    for t in range(2): late.append((f'ds_read_b128 {vr(RD+4*t,4)}, v{vTb+2} offset:{128+64*t}', 't'))
    late += ['s_nop 0']*3 + [('l', 't')]
    for t in range(2):
        late.append(f'v_cndmask_b32 v{MF+4*t}, v{SR+4+t}, 0, vcc')
        for d in range(1, 4): late.append(f'v_mov_b32 v{MF+4*t+d}, v{MF+4*t}')
    late += [f'v_mov_b32 v{ONE+k}, 0x3f803f80' for k in range(4)]
    late += [f'v_mul_f32 v{RT}, {fbits(SCALE2)}, v{RT}', f'v_mul_f32 v{RT+1}, {fbits(SCALE2)}, v{RT+1}']
    def xrd(ks):
        for t in range(2): a(f'ds_read_b128 {vr(XR + (ks%2)*8 + 4*t,4)}, v{vXa} offset:{t*12288 + ks*1024}', tag=f'f{ks}')
    a(f's_cmp_ge_u32 {sS}, 8\ns_cbranch_scc1 P2_v')
    for var in range(2):
        if var == 0: vmsave, lgsave = list(a.vm), list(a.lg)
        else: a.label('P2_v'); a.vm, a.lg = list(vmsave), list(lgsave)
        lq = list(late)
        a.wait(vm='x0'); a('s_barrier')
        stamp(a, 'k0')
        xrd(0)
        for ks in range(13):
            if ks == 12: run(lq, 1000)
            if ks in (3, 7): a.wait(vm=f'x{(ks+1)>>2}'); a('s_barrier'); stamp(a, f'k{ks+1}')
            if ks < 12: a.wait(lg=f'f{ks}')
            for u in range(3):
                wf = vr(WF + (ks*3+u)*4, 4)
                for t in range(2):
                    xf = vr(XR + (ks%2)*8 + 4*t, 4) if ks < 12 else vr(MF+4*t, 4)
                    d = vr(ACC + (t*3+u)*4, 4)
                    A, B = (wf, xf) if var == 0 else (xf, wf)
                    a(f'v_mfma_f32_16x16x32_bf16 {d}, {A}, {B}, {"0" if ks == 0 else d}')
                    if ks >= opt('lq0', 5): run(lq, 2)
                if u == 0 and ks + 1 < 12: xrd(ks + 1)
        stamp(a, 'mm2end')
        Lf = a.newlabel('fs')
        if var == 0:
            a(f's_cmp_lg_u32 {sS}, 0\ns_cbranch_scc1 {Lf}')
            a.cond = True
            a(f's_mov_b32 exec_hi, 0\nbuffer_store_dword v{SR}, v4, {SWS}, s69 offen {WT}\nbuffer_store_dword v{SR+1}, v4, {SWS}, s69 offen offset:1024 {WT}\ns_mov_b32 exec_hi, -1')
            a.cond = False
            a.label(Lf)
            for t in range(2):
                for u in range(3):
                    b = ACC + (t*3+u)*4
                    for d in range(2): a(f'v_pk_mul_f32 {vr(b+2*d,2)}, {vr(b+2*d,2)}, {vr(RT,2)} op_sel:[0,{t}] op_sel_hi:[1,{t}]')
                    for d in range(2): a(f'v_cvt_pk_bf16_f32 v{PK+(t*3+u)*2+d}, v{b+2*d}, v{b+2*d+1}')
            for t in range(2): a(f'v_mfma_f32_16x16x32_bf16 {vr(ACC+4*t,4)}, {vr(ONE,4)}, {vr(PK+6*t,4)}, 0')
            for t in range(2):
                if t:
                    a(f's_add_u32 s68, s68, 13312\ns_nop 1')
                    for tt in range(2): a(f'v_mfma_f32_16x16x16_bf16 {vr(ACC+8+4*tt,4)}, {vr(ONE,2)}, {vr(PK+6*tt+4,2)}, {vr(ACC+4*tt,4)}')
                for u in range(3): a(f'buffer_store_dwordx2 {vr(PK+(t*3+u)*2,2)}, v{vA}, {SWS}, s68 offen offset:{u*512} {WT}')
            a(f'''v_cmp_eq_u32 vcc, 1, v5
            v_cndmask_b32 v{AQ}, v{ACC+8}, v{ACC+12}, vcc
            v_cvt_pk_bf16_f32 v{AQ+1}, v{AQ}, v{AQ}
            v_lshlrev_b32 v{AQ+1}, 16, v{AQ+1}
            v_sub_f32 v{AQ+1}, v{AQ}, v{AQ+1}
            v_cvt_pk_bf16_f32 v{AQ}, v{AQ}, v{AQ+1}
            s_mov_b32 exec_hi, 0
            buffer_store_dword v{AQ}, v{vB}, {SWS}, {sSt2} offen {WT}
            s_mov_b32 exec_hi, -1
            s_branch P2_j''')
        else:
            for u in range(3):
                for t in range(2):
                    b = ACC + (t*3+u)*4
                    for d in range(2): a(f'v_pk_mul_f32 {vr(b+2*d,2)}, {vr(b+2*d,2)}, {vr(RD+4*t+2*d,2)}')
                    for d in range(2): a(f'v_cvt_pk_bf16_f32 v{PK+u*4+t*2+d}, v{b+2*d}, v{b+2*d+1}')
                a(f'buffer_store_dwordx4 {vr(PK+4*u,4)}, v{vL16}, {SWS}, s67 offen offset:{u*1024} {WT}')
    a.label('P2_j')
    a(f'v_add_u32 v6, s20, v{vL16}')
    for ks in range(12): a(f'ds_read_b128 {vr(KF+4*ks,4)}, v6 offset:{ks*1024}')
    attn_addr(0)
    vMa, vRa, vPt = 54, 55, 13
    tile_addr(sRQ, 0, vMa, vRa, vPt)
    a.wait_all()
    flag(a, sOwn, sF1, sFast, 6, '')
    stamp(a, 'flag2')
    RS = 48
    for u in range(3): a(f'buffer_load_dwordx2 {vr(RS+2*u,2)}, v{vA}, {SWS}, {sRs} offen offset:{u*512} sc1', tag='rs')
    vOW, vOR, vOG = 8, 60, 6
    a(f's_lshl_b32 s35, {sW}, 11\ns_add_u32 s35, s35, {LO}\nv_mul_u32_u24 v{vOW}, 112, v3\nv_lshl_add_u32 v{vOW}, v2, 3, v{vOW}\nv_add_u32 v{vOW}, s35, v{vOW}')
    for h in range(2):
        a(f'''v_add_u32 v56, {64*h}, v1
        v_mul_u32_u24 v57, 43, v56
        v_lshrrev_b32 v57, 8, v57
        v_mul_u32_u24 v58, 6, v57
        v_sub_u32 v58, v56, v58
        v_lshlrev_b32 v58, 4, v58
        v_mul_u32_u24 v56, 112, v57
        v_add3_u32 v{vOR+h}, v56, v58, s35
        v_mul_u32_u24 v56, 768, v57
        v_add_u32 v{vOG+h}, v56, v58''')
    a(f'''s_add_u32 {sT1}, {sQ}, {sM1K}
    s_add_u32 s21, {sQ}, 12288
    s_mov_b32 s22, {LQ + 12288}
    s_lshr_b32 s34, {sW}, 1
    s_and_b32 s35, {sW}, 1
    s_lshl_b32 s35, s35, 10
    s_add_u32 s23, {sFS}, s35
    s_add_u32 s35, s35, {LS}
    s_cmp_eq_u32 s34, 1
    s_cselect_b32 s21, s23, s21
    s_cselect_b32 s22, s35, s22''')
    lsync(a, 32, True, sF1, sF2, sOwn, lambda: None, 32, 0)
    stamp(a, 'sync2')
    for i in range(3):
        a(f's_add_u32 {sT0}, {sT1}, {i*4096}\ns_add_u32 m0, {sM1K}, {LQ + i*4096}\nbuffer_load_dwordx4 v{vL16}, {SWS}, {sT0} offen sc1 lds', tag='q')
    a(f's_mov_b32 m0, s22\nbuffer_load_dwordx4 v{vL16}, {SWS}, s21 offen sc1 lds', tag='q')
    vq = []
    for k8 in range(8):
        for u in range(3):
            vq.append(((f's_add_u32 {sVP}, {sVP}, 24576\n' if k8 and u == 0 else '') + f'buffer_load_dwordx4 {vr(VF+(k8*3+u)*4,4)}, v{vL16}, {SWS}, {sVP} offen offset:{u*1024} sc1', f'vp{k8}'))
    def fill():
        if vq: x = vq.pop(0); a(x[0], tag=x[1])
    for _ in range(opt('nv0', 4)): fill()
    a.wait(vm='q')
    a('s_barrier')
    stamp(a, 'q_in')
    scores(1, KF, 56, RD, MF, vMa, vRa, vPt, fill, 0)
    stamp(a, 'p_done')
    while vq: fill()
    PF, PA, RF, ML = 160, 32, 200, 212
    for k8 in range(8): a(f'ds_read_b128 {vr(PF+4*k8,4)}, v{vL16} offset:{LP + k8*1024}', tag=f'p{k8}')
    a(f'ds_read_b128 {vr(ML,4)}, v{vMLr} offset:512\nds_read_b128 {vr(ML+4,4)}, v{vMLr} offset:528', tag='ml')
    fx = ['s_mov_b32 s36, 0xffff0000'] + [x for u in range(3) for d in range(2) for x in (f'v_lshlrev_b32 v{RF+4*u+2*d}, 16, v{RS+2*u+d}', f'v_and_b32 v{RF+4*u+2*d+1}, s36, v{RS+2*u+d}')]
    fx += [('l', 'ml')] + [f'v_add_f32 v{ML+i}, v{ML+i}, v{ML+4+i}' for i in range(4)] + [f'v_add_f32 v{ML}, v{ML}, v{ML+1}', f'v_add_f32 v{ML+2}, v{ML+2}, v{ML+3}', f'v_add_f32 v{ML}, v{ML}, v{ML+2}', f'v_rcp_f32 v{ML}, v{ML}']
    for k8 in range(8):
        a.wait(vm=f'vp{k8}', lg=f'p{k8}')
        for u in range(3):
            d = vr(PA + 4*u, 4)
            a(f'v_mfma_f32_16x16x32_bf16 {d}, {vr(VF+(k8*3+u)*4,4)}, {vr(PF+4*k8,4)}, {"0" if k8 == 0 else d}')
            run(fx, 1 if k8 < 4 else 2)
    run(fx, 1000)
    stamp(a, 'pv_done')
    OP = 192
    for u in range(3):
        for d in range(2): a(f'v_pk_fma_f32 {vr(RF+4*u+2*d,2)}, {vr(PA+4*u+2*d,2)}, {vr(ML,2)}, {vr(RF+4*u+2*d,2)} op_sel_hi:[1,0,1]')
        for d in range(2): a(f'v_cvt_pk_bf16_f32 v{OP+2*u+d}, v{RF+4*u+2*d}, v{RF+4*u+2*d+1}')
        a(f'ds_write_b64 v{vOW}, {vr(OP+2*u,2)} offset:{u*32}')
    a(f'ds_read_b128 {vr(44,4)}, v{vOR}', tag='o0')
    a(f's_mov_b32 exec_hi, 0\nds_read_b128 {vr(48,4)}, v{vOR+1}\ns_mov_b32 exec_hi, -1', tag='o1')
    a.wait(lg='o0')
    a(f'buffer_store_dwordx4 {vr(44,4)}, v{vOG}, {SOUT}, {sOut} offen')
    a.wait(lg='o1')
    a(f's_mov_b32 exec_hi, 0\nbuffer_store_dwordx4 {vr(48,4)}, v{vOG+1}, {SOUT}, {sOut} offen\ns_mov_b32 exec_hi, -1')
    if PROFILE: a.wait_all()
    stamp(a, 'end')
    stamp_flush(a)
    a('s_endpgm')
    a.label('P2_l'); a.vm = []; a.lg = []
    stamp(a, 'Lp2')
    if opt('hint', 1):
        L = a.newlabel('hs')
        a(f's_cmp_lg_u32 {sI}, 31\ns_cbranch_scc1 {L}\ns_cmp_lg_u32 {sW}, 0\ns_cbranch_scc1 {L}')
        a.cond = True
        a(f's_lshl_b32 s34, {sT}, 7\ns_mov_b32 s35, {FP + 1024}'); flag(a, 's34', 's35', sFast, 52, ''); a.vm.pop()
        a.cond = False
        a.label(L)
    a(f's_and_b32 s68, {sI}, 7\ns_mul_i32 s68, s68, 79872\ns_mul_i32 s69, {sW}, 20480\ns_add_u32 s68, s68, s69\ns_add_u32 s68, s68, {WS_W}')
    wpoll(a)
    for i in range(20):
        if i % 4 == 0: a(f's_add_u32 m0, s69, {LW + i*1024}' + ('\ns_add_u32 s68, s68, 4096' if i else ''))
        a(f'buffer_load_dwordx4 v{vL16}, {SWS}, s68 offen offset:{(i&3)*1024} sc1 lds')
    common()
    attn_addr(1)
    KL, SAL, RDL, MFL = 112, 48, 60, 72
    vMa, vRa, vPt = 84, 87, 90
    SK = ['s20', 's21', 's22']
    for k in range(3):
        a(f's_add_u32 s23, {sRQ}, {k+1}\ns_and_b32 s23, s23, 3\ns_mul_i32 s34, s23, 49152\ns_add_u32 {SK[k]}, {sK}, s34')
        tile_addr('s23', k, vMa, vRa, vPt)
    if opt('hint', 1):
        Lh, Lg = a.newlabel('hw'), a.newlabel('hg')
        a(f's_cmp_ge_u32 {sI}, 8\ns_cbranch_scc1 {Lg}\ns_lshl_b32 s34, {sT}, 7\ns_add_u32 s34, s34, {FP + 1024}\nv_mov_b32 v34, 0\ns_mov_b32 s35, 64')
        a.label(Lh)
        a(f'''s_mov_b64 exec, 1
        buffer_load_dword v35, v34, {SWS}, s34 offen sc1
        s_waitcnt vmcnt(0)
        v_cmp_ne_u32 vcc, {sFast}, v35
        s_mov_b64 exec, -1
        s_cbranch_vccz {Lg}
        s_sub_u32 s35, s35, 1
        s_cmp_lg_u32 s35, 0
        s_cbranch_scc1 {Lh}''')
        a.label(Lg); a.vm = []
    a(f's_mul_i32 s67, {sW}, {48*128}\ns_add_u32 s67, s67, {GX}')
    gpoll(a, 48, 7, 's67', 33)
    stamp(a, 'Lxf')
    a('s_barrier')
    L = a.newlabel('be')
    a(f's_or_b32 s34, {sW}, s2\ns_cmp_lg_u32 s34, 0\ns_cbranch_scc1 {L}')
    a.cond = True; a(f's_mov_b32 s34, {WE}'); flag(a, '0', 's34', sTag, 40, 'sc0 sc1'); a.vm.pop(); a.cond = False
    a.label(L)
    kq = [(t, ks) for t in range(3) for ks in range(12)]
    def kl(n):
        for _ in range(n):
            if not kq: return
            t, ks = kq.pop(0)
            if ks % 4 == 0 and ks: a(f's_add_u32 {SK[t]}, {SK[t]}, 4096')
            a(f'buffer_load_dwordx4 {vr(KL+(t*12+ks)*4,4)}, v{vL16}, {SWS}, {SK[t]} offen offset:{(ks&3)*1024} sc1')
    a('s_barrier'); kl(opt('kb0', 0))
    a('s_barrier'); kl(opt('kb1', 4))
    a('s_barrier'); kl(opt('kb2', 8))
    a.wait_all(lg=False)
    kl(opt('kb3', 36))
    a.wait_all(lg=False)
    kl(36)
    stamp(a, 'Lkiss')
    a.wait_all()
    stamp(a, 'Lk')
    a('s_barrier')
    scores(3, KL, SAL, RDL, MFL, vMa, vRa, vPt, lambda: None, 1)
    stamp_flush(a, 'L')
```

```python
import sys, math, struct
sys.path.insert(0, 'gen')
from asm import Asm
def opt(name, default):
    for x in sys.argv:
        if x.startswith(f'--{name}='): return int(x.split('=')[1])
    return default
HP = [x[5:] for x in sys.argv if x.startswith('--hp=')]
PROFILE = '--prof' in sys.argv or bool(HP)
SKIP = []
for x in sys.argv:
    if x.startswith('--skip='): SKIP = x[7:].split(',')
WS_W2 = 0x000000
WS_S  = 0x180000
WS_X1 = 0x240000
WS_W  = 0x3E0000
WS_Q  = 0x480000
WS_VP = 0x620000
WS_ST = 0xF00000
WS_FS = 0xF70000
FS1, FS2 = 0x7A0000, 0x7A2000
FC1, FC2 = 0x7A4000, 0x7A5000
GW2, GW, GX, WE, FP = 0x7A8000, 0x7AA000, 0x7AC000, 0x7B4000, 0x7A6000
WS_PROF = 0x7C0000
SLOW = 0x800000
WS_SIZE = 0x1000000
LIM_FAST = opt('lim', 24)
LIM_SLOW = 1 << 20
SCALE2 = 384 ** -0.5 * math.log2(math.e)
def fbits(x): return '0x%08x' % struct.unpack('<I', struct.pack('<f', x))[0]
def vr(b, n): return f'v[{b}:{b+n-1}]' if n > 1 else f'v{b}'
SX, SWQ, SWO, SWS, SOUT = 's[4:7]', 's[8:11]', 's[12:15]', 's[16:19]', 's[24:27]'
WT = 'sc0 sc1' if opt('wt', 1) == 2 else 'sc1'
def srd(a, base, ptr, size):
    a(f's_mov_b32 s{base}, s{ptr}\ns_mov_b32 s{base+1}, s{ptr+1}\ns_mov_b32 s{base+2}, {size}\ns_mov_b32 s{base+3}, 0x20000')
STAMP_REGS = [70, 72, 74, 76, 78, 80, 82, 84, 86, 88, 90, 92, 94, 96, 98, 100]
class St:
    names = {'C': [], 'L': []}
def stamp(a, name):
    if not PROFILE or name in SKIP or (HP and name not in ('start', HP[0])): return
    lst = St.names['L' if name.startswith('L') else 'C']
    if name not in lst: lst.append(name)
    k = lst.index(name)
    a(f's_memrealtime s[{STAMP_REGS[k]}:{STAMP_REGS[k]+1}]')
def hp_end(a, role):
    name = HP[0]
    lst = St.names[role]
    src = f's{STAMP_REGS[lst.index(name)]}' if name in lst else 's70'
    L1, L2 = a.newlabel('hp'), a.newlabel('hp')
    a(f's_waitcnt vmcnt(0) lgkmcnt(0)\nv_mov_b32 v2, {WS_PROF + 0x30000}')
    a.label(L1)
    a(f'''buffer_load_dwordx2 v[4:5], v2, {SWS}, 0 offen sc0 sc1
    s_waitcnt vmcnt(0)
    v_readfirstlane_b32 s34, v4
    v_readfirstlane_b32 s35, v5
    s_cmp_lg_u32 s35, {sTag}
    s_cbranch_scc1 {L1}
    s_sub_u32 s35, {src}, s34
    s_max_i32 s35, s35, 0
    s_mul_i32 s35, s35, 4
    s_add_u32 s35, s35, 4000''')
    a.label(L2)
    a(f'''s_memrealtime s[36:37]
    s_waitcnt lgkmcnt(0)
    s_sub_u32 s36, s36, s34
    s_cmp_lt_i32 s36, s35
    s_cbranch_scc1 {L2}''')
def hp_t0(a):
    if not HP: return
    L = a.newlabel('hq')
    a(f's_or_b32 s34, s2, {sW}\ns_or_b32 s34, s34, {sRole}\ns_cmp_lg_u32 s34, 0\ns_cbranch_scc1 {L}')
    a(f'v_mov_b32 v2, {WS_PROF + 0x30000}\nv_mov_b32 v4, s70\nv_mov_b32 v5, {sTag}\nbuffer_store_dwordx2 v[4:5], v2, {SWS}, 0 offen sc0 sc1')
    a.vm.pop()
    a.label(L)
def stamp_flush(a, role='C'):
    if HP: hp_end(a, role); return
    if not PROFILE: return
    a('s_waitcnt lgkmcnt(0)')
    for k in range(16): a(f'v_mov_b32 v{100+k}, s{STAMP_REGS[k]}')
    a(f'''v_lshrrev_b32 v8, 6, v0
    s_lshl_b32 s34, s2, 3
    v_add_u32 v8, s34, v8
    v_lshlrev_b32 v8, 6, v8
    v_add_u32 v8, {WS_PROF}, v8''')
    for k in range(4): a(f'buffer_store_dwordx4 v[{100+4*k}:{103+4*k}], v8, {SWS}, 0 offen offset:{16*k}')

sXCD, sW, sI, sRole = 's40', 's41', 's42', 's43'
sTag, sFast, sDelta = 's44', 's45', 's46'
sM1K = 's47'
TAIL = []

def lanes(a, n):
    a(f's_mov_b32 exec_lo, {hex((1 << min(n, 32)) - 1)}\ns_mov_b32 exec_hi, {hex((1 << max(n-32, 0)) - 1)}')
def gpoll(a, n, vA, sBase, vT):
    Lf, Lr, Ld = a.newlabel('gp'), a.newlabel('gr'), a.newlabel('gd')
    lanes(a, n)
    a(f's_mov_b32 s35, {LIM_SLOW}')
    a.label(Lf)
    a(f'buffer_load_dword v{vT}, v{vA}, {SWS}, {sBase} offen sc1')
    a.wait_all(lg=False)
    a(f'v_cmp_ne_u32 vcc, {sTag}, v{vT}\ns_cbranch_vccnz {Lr}')
    a.label(Ld)
    a('s_mov_b64 exec, -1')
    def tail():
        a.label(Lr)
        if opt('gsl', 0): a(f's_sleep {opt("gsl", 0)}')
        a(f's_sub_u32 s35, s35, 1\ns_cmp_lg_u32 s35, 0\ns_cbranch_scc1 {Lf}\ns_branch {Ld}')
    TAIL.append(tail)
def lsync(a, n, wide, sF1, sF2, sOwn, republish, vT, delta=SLOW):
    Lf, Lr, Ld, Ls = a.newlabel('lp'), a.newlabel('lr'), a.newlabel('ld'), a.newlabel('ls')
    vA, vD, vE = vT, vT + 2, vT + 6
    w = 4 if wide else 1
    ld = 'buffer_load_dwordx4' if wide else 'buffer_load_dword'
    def cmp(v, s):
        if not wide: a(f'v_cmp_ne_u32 vcc, {s}, v{v}'); return
        for k in range(4): a(f'v_xor_b32 v{v+k}, {s}, v{v+k}')
        a(f'v_or_b32 v{v}, v{v}, v{v+1}\nv_or3_b32 v{v}, v{v}, v{v+2}, v{v+3}\nv_cmp_ne_u32 vcc, 0, v{v}')
    lanes(a, n)
    a(f'v_lshlrev_b32 v{vA}, {4 if wide else 2}, v1\ns_mov_b32 {sDelta}, 0\ns_mov_b32 s35, {LIM_FAST}')
    a.label(Lf)
    a(f'{ld} {vr(vD, w)}, v{vA}, {SWS}, {sF1} offen sc1')
    a.wait_all(lg=False)
    cmp(vD, sFast)
    a(f's_cbranch_vccnz {Lr}')
    a.label(Ld)
    a('s_mov_b64 exec, -1')
    def tail():
        a.label(Lr)
        a(f's_sub_u32 s35, s35, 1\ns_cmp_lg_u32 s35, 0\ns_cbranch_scc1 {Lf}')
        if republish:
            a('s_mov_b64 exec, -1')
            republish()
            a.wait_all(lg=False)
            a(f'''s_mov_b64 exec, 1
            v_mov_b32 v{vD}, {sOwn}
            v_mov_b32 v{vD+1}, {sTag}
            buffer_store_dword v{vD+1}, v{vD}, {SWS}, {sF2} offen sc0 sc1''')
            lanes(a, n)
        a(f's_mov_b32 s35, {LIM_SLOW}')
        a.label(Ls)
        a(f'{ld} {vr(vD, w)}, v{vA}, {SWS}, {sF1} offen sc1\n{ld} {vr(vE, w)}, v{vA}, {SWS}, {sF2} offen sc0 sc1')
        a.wait_all(lg=False)
        cmp(vD, sFast)
        a(f's_cbranch_vccz {Ld}')
        cmp(vE, sTag)
        a(f's_mov_b32 {sDelta}, {delta}\ns_cbranch_vccz {Ld}\ns_mov_b32 {sDelta}, 0\ns_sub_u32 s35, s35, 1\ns_cmp_lg_u32 s35, 0\ns_cbranch_scc1 {Ls}\ns_branch {Ld}')
    TAIL.append(tail)
def flag(a, sOff, sBase, sVal, vT, fl):
    a(f'''s_mov_b64 exec, 1
    v_mov_b32 v{vT}, {sOff}
    v_mov_b32 v{vT+1}, {sVal}
    buffer_store_dword v{vT+1}, v{vT}, {SWS}, {sBase} offen {fl}
    s_mov_b64 exec, -1''')
def gflag(a, sOff, sBase, vT):
    a(f'''s_mov_b64 exec, 15
    v_lshl_add_u32 v{vT}, v1, 4, {sOff}
    v_mov_b32 v{vT+2}, {sTag}
    v_mov_b32 v{vT+3}, {sTag}
    v_mov_b32 v{vT+4}, {sTag}
    v_mov_b32 v{vT+5}, {sTag}
    buffer_store_dwordx4 {vr(vT+2,4)}, v{vT}, {SWS}, {sBase} offen sc0 sc1
    s_mov_b64 exec, -1''')
def flag_w0(a, sOff, sBase, vT):
    L = a.newlabel('f0')
    a(f's_cmp_lg_u32 {sW}, 0\ns_cbranch_scc1 {L}')
    a.cond = True; gflag(a, sOff, sBase, vT); a.vm.pop(); a.cond = False
    a.label(L)
def tag_ready(a):
    a(f'''s_mul_i32 {sTag}, {sTag}, 0x9e3779b1
    s_add_u32 {sTag}, {sTag}, 0x7f4a7c15
    s_add_u32 {sFast}, {sFast}, {sTag}''')

LW34 = 102400
LSX = 147456
def wpoll(a):
    a(f'v_lshlrev_b32 v7, 7, v1\ns_mov_b32 s67, {GW}')
    gpoll(a, 64, 7, 's67', 33)
    stamp(a, 'Lwf')
def wcopy(a):
    a(f's_and_b32 s68, {sI}, 15\ns_mul_i32 s68, s68, 39936\ns_mul_i32 s34, {sW}, 10240\ns_add_u32 s68, s68, s34\ns_add_u32 s68, s68, {WS_W}\ns_add_u32 s34, s34, {LW34}')
    for i in range(10):
        if i % 4 == 0: a(f's_add_u32 m0, s34, {i*1024}' + ('\ns_add_u32 s68, s68, 4096' if i else ''))
        a(f'buffer_load_dwordx4 v10, {SWS}, s68 offen offset:{(i&3)*1024} sc1 lds')
def pages(a):
    a(f"""s_mov_b64 exec, 0xffff
    v_lshlrev_b32 v52, 20, v1
    buffer_load_dword v53, v52, {SWS}, 0 offen
    s_mov_b64 exec, 3
    buffer_load_dword v54, v52, {SOUT}, 0 offen
    s_mov_b64 exec, -1""")
def touch2(a):
    Lt = a.newlabel('tc'); Lu = a.newlabel('tc')
    a(f"""s_and_b32 s36, {sI}, 15
    s_lshr_b32 s37, {sI}, 4
    s_cmp_ge_u32 s36, 8
    s_cbranch_scc1 {Lt}
    s_lshl_b32 s34, {sXCD}, 4
    s_lshl_b32 s35, s37, 3
    s_add_u32 s34, s34, s35
    s_lshl_b32 s35, {sW}, 1
    s_add_u32 s34, s34, s35
    s_mul_i32 s34, s34, 13312
    s_mul_i32 s35, s36, 1536
    s_add_u32 s34, s34, s35
    s_add_u32 s34, s34, {WS_Q}
    s_add_u32 s35, s34, 13312""")
    for sb in ('s34', 's35'): a(f'buffer_load_dwordx4 v[64:67], v10, {SWS}, {sb} offen\ns_mov_b32 exec_hi, 0\nbuffer_load_dwordx4 v[64:67], v10, {SWS}, {sb} offen offset:1024\ns_mov_b32 exec_hi, -1')
    a(f's_branch {Lu}'); a.label(Lt)
    a(f"""s_lshl_b32 s34, {sW}, 1
    s_add_u32 s34, s34, s37
    s_lshl_b32 s35, {sXCD}, 3
    s_add_u32 s34, s34, s35
    s_mul_i32 s34, s34, 24576
    s_mul_i32 s35, s36, 3072
    s_add_u32 s34, s34, s35
    s_add_u32 s34, s34, {WS_VP - 8*3072}""")
    for u in range(3): a(f'buffer_load_dwordx4 v[64:67], v10, {SWS}, s34 offen offset:{u*1024}')
    a.label(Lu)
    a(f"""s_lshr_b32 s34, {sI}, 1
    s_lshl_b32 s35, {sXCD}, 4
    s_add_u32 s34, s34, s35
    s_mul_i32 s34, s34, 13312
    s_add_u32 s34, s34, {WS_Q + 12288}
    s_lshl_b32 s35, {sW}, 8
    v_lshl_add_u32 v68, v1, 2, s35
    buffer_load_dword v64, v68, {SWS}, s34 offen
    s_lshl_b32 s34, {sXCD}, 9
    s_add_u32 s34, s34, {FC1}
    v_lshlrev_b32 v68, 3, v1
    buffer_load_dword v64, v68, {SWS}, s34 offen""")
    a.vm = []

def build():
    a = Asm()
    def emit(x):
        if isinstance(x, tuple): a(x[0], tag=x[1])
        else: a(x)
    a(f'''s_cmp_ge_u32 s2, 256
    s_cbranch_scc1 K_end
    s_load_dwordx4 s[20:23], s[0:1], 0
    s_load_dwordx4 s[28:31], s[0:1], 16
    s_load_dwordx4 s[36:39], s[0:1], 32
    s_load_dwordx2 s[32:33], s[0:1], 56
    v_and_b32 v1, 63, v0
    v_lshrrev_b32 v2, 6, v0
    s_and_b32 {sXCD}, s2, 7
    v_readfirstlane_b32 {sW}, v2
    s_lshr_b32 {sI}, s2, 3''')
    stamp(a, 'start')
    if HP:
        St.names['L'].append('Lstart')
        a('s_waitcnt lgkmcnt(0)')
        for r in STAMP_REGS[1:]: a(f's_mov_b32 s{r}, s70')
    a('s_getpc_b64 s[48:49]')
    a.label('K_pc')
    a(f'''s_sub_u32 s48, s48, K_pc-{KNAME}
    s_subb_u32 s49, s49, 0
    s_lshl_b32 s34, {sI}, 3
    s_add_u32 s34, s34, {sW}
    s_and_b32 s34, s34, 31
    s_lshl_b32 s34, s34, 10
    v_lshl_add_u32 v9, v1, 4, s34
    global_load_dwordx4 v[252:255], v9, s[48:49]
    s_lshr_b32 {sRole}, {sW}, 2
    s_and_b32 {sW}, {sW}, 3
    s_lshl_b32 {sM1K}, {sW}, 10
    s_getreg_b32 {sFast}, hwreg(HW_REG_XCC_ID)
    s_and_b32 {sFast}, {sFast}, 15
    s_add_u32 {sFast}, {sFast}, 1
    v_lshrrev_b32 v2, 3, v1
    v_and_b32 v3, 7, v1
    v_lshlrev_b32 v10, 4, v1
    s_cmp_lt_u32 {sI}, 8
    s_cbranch_scc1 K_pre''')
    T8, G8, vL16 = 2, 3, 10
    sG, sJ, sP, sHF, sX, sM = 's50', 's51', 's52', 's53', 's54', 's55'
    sR = ['s56', 's57', 's58', 's59', 's60', 's61']
    ROT = opt('rot', 7)
    a(f'''s_sub_u32 {sJ}, {sI}, 8
    s_mul_i32 s34, {sJ}, 43
    s_lshr_b32 s34, s34, 8
    s_mul_i32 s35, s34, 6
    s_sub_u32 {sJ}, {sJ}, s35
    s_lshl_b32 {sG}, {sXCD}, 2
    s_add_u32 {sG}, {sG}, s34
    s_lshr_b32 {sP}, {sW}, 1
    s_and_b32 {sHF}, {sW}, 1
    s_lshl_b32 {sM}, {sW}, 11''')
    def rot_r(dst):
        if ROT == 4: a(f's_mul_i32 {dst}, {sXCD}, 3\ns_lshr_b32 {dst}, {dst}, 2')
        elif ROT == 5: a(f's_add_u32 {dst}, {sXCD}, 4\ns_and_b32 {dst}, {dst}, 7\ns_mul_i32 {dst}, {dst}, 3\ns_lshr_b32 {dst}, {dst}, 2')
        elif ROT == 6: a(f's_and_b32 {dst}, {sG}, 1\ns_mul_i32 {dst}, {dst}, 4\ns_add_u32 {dst}, {dst}, {sXCD}\ns_and_b32 {dst}, {dst}, 7\ns_mul_i32 {dst}, {dst}, 3\ns_lshr_b32 {dst}, {dst}, 2')
        elif ROT == 7: a(f's_mul_i32 {dst}, {sXCD}, 3\ns_lshr_b32 {dst}, {dst}, 2\ns_add_u32 {dst}, {dst}, {sJ}\ns_cmp_ge_u32 {dst}, 6\ns_cselect_b32 s34, 6, 0\ns_sub_u32 {dst}, {dst}, s34')
        elif ROT == 8: a(f's_and_b32 {dst}, {sG}, 3\ns_add_u32 {dst}, {dst}, {sXCD}\ns_add_u32 {dst}, {dst}, {sJ}\ns_mul_i32 s34, {dst}, 43\ns_lshr_b32 s34, s34, 8\ns_mul_i32 s34, s34, 6\ns_sub_u32 {dst}, {dst}, s34')
    if ROT: rot_r('s3')
    a(f's_cmp_lg_u32 {sRole}, 0\ns_cbranch_scc1 A_ld')
    XS = lambda c: c*8192
    WQ0 = 49152
    W2L = 49152
    vXF, vAW, vSst, vX1, vST, vRes, vBP, vBS, vW2, vW2b = 12, 16, 18, 19, 20, 21, 22, 23, 24, 25
    XF, WF, ACC, CS, MA, SEL, CA, CB = 160, 32, 64, 96, 104, 108, 112, 120
    sSst, sSld, sX1, sST, sFS1, sFS2, sOwn, sGX = 's56', 's57', 's58', 's59', 's60', 's61', 's62', 's63'
    a(f'''v_and_b32 v4, 31, v1
    v_lshrrev_b32 v5, 5, v1
    v_bfe_u32 v6, v1, 1, 3
    v_xor_b32 v6, v6, v5
    v_lshlrev_b32 v4, 7, v4
    v_lshl_add_u32 v4, v6, 4, v4
    s_lshl_b32 s35, {sP}, 12
    v_add_u32 v{vXF}, s35, v4
    v_xor_b32 v{vXF+1}, 32, v{vXF}
    v_xor_b32 v{vXF+2}, 64, v{vXF}
    v_xor_b32 v{vXF+3}, 96, v{vXF}
    v_bfe_u32 v6, v1, 2, 2
    v_lshl_add_u32 v4, v5, 3, v6
    v_lshlrev_b32 v4, 7, v4
    v_lshrrev_b32 v7, 1, v6
    v_xor_b32 v7, {sHF}, v7
    v_lshl_add_u32 v4, v7, 6, v4
    v_bfe_u32 v7, v1, 4, 1
    v_lshl_add_u32 v4, v7, 5, v4
    v_and_b32 v8, 1, v1
    v_lshl_add_u32 v4, v8, 4, v4
    v_bfe_u32 v8, v1, 1, 1
    v_lshl_add_u32 v4, v8, 3, v4
    v_add_u32 v{vAW}, {WQ0}, v4
    v_add_u32 v{vAW+1}, {WQ0 + 65536}, v4
    v_bfe_u32 v8, v1, 2, 1
    v_cmp_eq_u32 vcc, v8, v7
    v_mov_b32 v7, 0x3f803f80
    s_mov_b32 s34, {WE}
    s_waitcnt lgkmcnt(0)
    s_load_dword {sTag}, s[32:33], s34''')
    for k in range(4): a(f'v_cndmask_b32 v{SEL+k}, 0, v7, vcc')
    srd(a, 16, 32, WS_SIZE); srd(a, 24, 38, 1572864)
    a(f'''v_lshlrev_b32 v{vSst}, 9, v5
    v_lshl_add_u32 v{vSst}, v{G8}, 6, v{vSst}
    v_bfe_u32 v6, v1, 3, 2
    v_lshl_add_u32 v{vSst}, v6, 4, v{vSst}
    s_mul_i32 s34, {sG}, 24576
    s_lshl_b32 s35, {sP}, 10
    s_add_u32 s34, s34, s35
    s_add_u32 {sSld}, s34, {WS_S}
    s_lshl_b32 s35, {sJ}, 1
    s_add_u32 s35, s35, {sHF}
    s_lshl_b32 {sOwn}, s35, 2
    s_lshl_b32 s3{6}, s35, 11
    s_add_u32 {sSst}, {sSld}, s36
    s_lshl_b32 s34, {sG}, 1
    s_add_u32 s34, s34, {sP}
    s_lshl_b32 s34, s34, 7
    s_add_u32 {sFS1}, s34, {FS1}
    s_add_u32 {sFS2}, s34, {FS2}''')
    a(f'''v_bfe_u32 v6, v1, 2, 3
    v_and_b32 v7, 3, v1
    s_mov_b32 s34, 196608
    v_mul_lo_u32 v{vX1}, v6, s34
    v_lshl_add_u32 v{vX1}, v5, 8, v{vX1}
    v_lshl_add_u32 v{vX1}, v7, 4, v{vX1}
    v_mul_u32_u24 v{vST}, 49152, v6
    v_lshl_add_u32 v{vST}, v7, 4, v{vST}
    v_lshl_add_u32 v8, v7, 3, v6
    v_lshlrev_b32 v{vBP}, 2, v8
    v_lshlrev_b32 v{vBS}, 5, v7
    v_lshl_add_u32 v{vBS}, v5, 4, v{vBS}
    v_bfe_u32 v4, v8, 1, 3
    s_lshl_b32 s34, {sHF}, 2
    v_xor_b32 v4, s34, v4
    v_xor_b32 v4, v4, v5
    v_lshlrev_b32 v4, 4, v4
    v_lshl_add_u32 v4, v8, 7, v4''')
    if ROT: a(f's_add_u32 s34, {sJ}, 6\ns_sub_u32 s34, s34, s3\ns_cmp_ge_u32 s34, 6\ns_cselect_b32 s36, 6, 0\ns_sub_u32 s34, s34, s36\ns_lshl_b32 s34, s34, 13')
    else: a(f's_lshl_b32 s34, {sJ}, 13')
    a(f'''s_lshl_b32 s36, {sP}, 12
    s_add_u32 s34, s34, s36
    v_add_u32 v{vRes}, s34, v4
    s_lshl_b32 s34, {sHF}, 10
    s_add_u32 s34, s34, {W2L}
    v_add_u32 v{vW2}, s34, v{vL16}
    v_and_b32 v4, 31, v1
    v_lshlrev_b32 v4, 2, v4
    s_lshl_b32 s34, {sHF}, 7
    s_add_u32 s34, s34, {W2L + 49152}
    v_add_u32 v4, s34, v4
    v_lshl_add_u32 v{vW2b}, v5, 10, v4
    v_add_u32 v{vW2b+1}, 2048, v4
    s_lshr_b32 s34, {sG}, 1
    s_mul_i32 s34, s34, 12288
    s_lshl_b32 s36, s35, 10
    s_add_u32 s34, s34, s36
    s_and_b32 s36, {sG}, 1
    s_lshl_b32 s36, s36, 7
    s_add_u32 s34, s34, s36
    s_lshl_b32 s36, {sP}, 6
    s_add_u32 s34, s34, s36
    s_add_u32 {sX1}, s34, {WS_X1}
    s_lshl_b32 s34, s35, 12
    s_add_u32 s34, s34, s36
    s_lshl_b32 s36, {sG}, 7
    s_add_u32 s34, s34, s36
    s_add_u32 {sST}, s34, {WS_ST}
    s_mul_i32 s34, {sG}, 6
    s_add_u32 s34, s34, {sJ}
    s_lshl_b32 {sGX}, s34, 7
    s_mov_b32 s38, {fbits(-1/384)}
    s_mov_b32 s36, 0xffff0000
    s_mov_b32 s64, -1
    s_mov_b32 s65, 0
    s_mov_b32 s66, 0xff00ff00
    s_mov_b32 s67, 0xff00ff00
    s_mov_b32 s68, 0xffff0000
    s_mov_b32 s69, 0xffff0000''')
    for r in range(CA, CA + 8):
        if (r - CA) % 4: a(f'v_mov_b32 v{r}, 0')
    a('s_waitcnt lgkmcnt(0)')
    tag_ready(a)
    a('s_barrier')
    stamp(a, 'mm0')
    def rd(ks):
        c, k4 = ks >> 2, ks & 3
        a(f'ds_read_b128 {vr(XF+4*ks,4)}, v{vXF+k4} offset:{XS(c)}', tag=f'f{ks}')
        return [(c, k4, P) for P in range(2)]
    def trd(ks, P):
        c, k4 = ks >> 2, ks & 3
        off = c*16384 + P*8192 + k4*2048
        base = vAW + (off >> 16); off &= 0xffff
        d = WF + (ks % 3)*8 + P*4
        a(f'ds_read_b64_tr_b16 {vr(d,2)}, v{base} offset:{off}\nds_read_b64_tr_b16 {vr(d+2,2)}, v{base} offset:{off+512}', tag=f'f{ks}')
    def pre(ks, part):
        if part == 0: rd(ks); trd(ks, 0)
        else: trd(ks, 1)
    for ks in range(2): pre(ks, 0); pre(ks, 1)
    def m16(d, b, first): a(f'v_mfma_f32_16x16x32_bf16 {vr(d,4)}, {vr(SEL,4)}, {b}, {"0" if first else vr(d,4)}')
    for ks in range(24):
        bar = (ks & 3) == 3 and ks < 23
        if bar:
            if ks == 15: a.wait_all(lg=False)
            a('s_barrier')
            if ks in (7, 15, 19): stamp(a, f'c{(ks+1)>>2}')
            pre(ks + 1, 0); pre(ks + 1, 1)
        a.wait(lg=f'f{ks}')
        wf = lambda P: vr(WF + (ks % 3)*8 + P*4, 4)
        main = lambda P: a(f'v_mfma_f32_32x32x16_bf16 {vr(ACC+16*P,16)}, {wf(P)}, {vr(XF+4*ks,4)}, {"0" if ks == 0 else vr(ACC+16*P,16)}')
        nx = ks + 2 if (ks & 3) != 2 and ks + 2 < 24 else None
        if ks < 23:
            for P in range(2):
                main(P)
                if nx: pre(nx, P)
                m16(CS + 4*P, wf(P), ks == 0)
            m16(MA, vr(XF+4*ks, 4), ks == 0)
        else:
            m16(MA, vr(XF+4*ks, 4), False)
            for P in range(2): m16(CS + 4*P, wf(P), False)
            main(0)
            main(1)
            a(f'''v_mul_f32 v{MA}, s38, v{MA}
            v_cvt_pk_bf16_f32 v{CA}, v{CS}, v{CS}
            v_cvt_pk_bf16_f32 v{CA+4}, v{CS+4}, v{CS+4}
            v_cvt_pk_bf16_f32 v{MA+1}, v{MA}, v{MA}
            v_and_b32 v{CA}, s36, v{CA}
            v_and_b32 v{CA+4}, s36, v{CA+4}
            v_cndmask_b32 v{CB}, 0, v{MA+1}, s[64:65]
            v_sub_f32 v{CA}, v{CS}, v{CA}
            v_sub_f32 v{CA+4}, v{CS+4}, v{CA+4}
            v_mov_b32 v{CB+1}, v{CB}
            v_cvt_pk_bf16_f32 v{CA}, v{CS}, v{CA}
            v_cvt_pk_bf16_f32 v{CA+4}, v{CS+4}, v{CA+4}
            v_mov_b32 v{CB+2}, v{CB}
            v_mov_b32 v{CB+3}, v{CB}''')
            for P in range(2): a(f'v_mfma_f32_32x32x16_bf16 {vr(ACC+16*P,16)}, {vr(CA+4*P,4)}, {vr(CB,4)}, {vr(ACC+16*P,16)}')
    stamp(a, 'mmend')
    PQ, PK, SC, SS, SQ, CM = 32, 40, 64, 96, 100, 124
    a(f'v_mov_b32 v{SQ}, 0\nv_mov_b32 v{SQ+1}, 0')
    for k in range(4): a(f'v_mov_b32 v{CM+k}, v{MA+1}')
    for P, d in ((0, PQ), (1, PK)):
        for i in range(8): a(f'v_cvt_pk_bf16_f32 v{d+i}, v{ACC+16*P+2*i}, v{ACC+16*P+2*i+1}')
    a(f'v_mfma_f32_32x32x16_bf16 {vr(SC,16)}, {vr(PK,4)}, {vr(PQ,4)}, 0')
    a(f'v_mfma_f32_32x32x16_bf16 {vr(SC,16)}, {vr(PK+4,4)}, {vr(PQ+4,4)}, {vr(SC,16)}')
    RAW = 48
    a(f'v_xor_b32 v4, 32, v{vRes}\nds_read_b128 {vr(RAW,4)}, v{vRes}\nds_read_b128 {vr(RAW+4,4)}, v4', tag='raw')
    for e in range(4): a(f'v_cndmask_b32 v{SC+e}, v{SC+e}, v{SC+4+e}, s[66:67]\nv_cndmask_b32 v{SC+8+e}, v{SC+8+e}, v{SC+12+e}, s[66:67]')
    for e in range(4): a(f'v_cndmask_b32 v{SS+e}, v{SC+e}, v{SC+8+e}, s[68:69]')
    a(f'buffer_store_dwordx4 {vr(SS,4)}, v{vSst}, {SWS}, {sSst} offen {WT if opt("swt", 0) else ""}')
    stamp(a, 'stored')
    ND0 = opt('nd0', 72)
    for i in range(ND0): a(f'v_dot2c_f32_bf16 v{SQ+(i&1)}, v{XF+i}, v{XF+i}')
    a.wait_all(lg=False)
    flag(a, sOwn, sFS1, sFast, 4, '')
    stamp(a, 'flag')
    for i in range(ND0, 96): a(f'v_dot2c_f32_bf16 v{SQ+(i&1)}, v{XF+i}, v{XF+i}')
    RR, RES = 56, 80
    a(f'''s_mov_b32 s37, {fbits(1e-5)}
    v_mul_f32 v{SQ+2}, v{MA}, v{MA}
    v_add_u32 v5, 4, v{vBS}
    v_add_f32 v{SQ}, v{SQ}, v{SQ+1}
    v_mov_b32 v{SQ+1}, v{SQ}
    v_add_u32 v6, 8, v{vBS}
    v_add_u32 v7, 12, v{vBS}
    v_permlane32_swap_b32 v{SQ}, v{SQ+1}
    v_add_f32 v{SQ}, v{SQ}, v{SQ+1}
    v_fma_f32 v{SQ}, -v{SQ}, s38, -v{SQ+2}
    v_max_f32 v{SQ}, 0, v{SQ}
    v_add_f32 v{SQ}, s37, v{SQ}
    v_rsq_f32 v{SQ}, v{SQ}''')
    a(f'ds_bpermute_b32 v{RR+4}, v{vBP}, v{SQ}\nds_bpermute_b32 v{RR}, v{vBS}, v{SQ}', tag='bp')
    for e in range(1, 4): a(f'ds_bpermute_b32 v{RR+e}, v{4+e}, v{SQ}', tag='bp')
    a.wait(lg='raw')
    for d in range(8): a(f'v_lshlrev_b32 v{RES+2*d}, 16, v{RAW+d}\nv_and_b32 v{RES+2*d+1}, s36, v{RAW+d}')
    a.wait(lg='bp')
    a(f'v_mul_f32 v{RR+4}, {fbits(SCALE2)}, v{RR+4}')
    def repubA():
        a(f's_add_u32 s34, {sSst}, {SLOW}\nbuffer_store_dwordx4 {vr(SS,4)}, v{vSst}, {SWS}, s34 offen sc0 sc1')
    lsync(a, 12, False, sFS1, sFS2, sOwn, (lambda: None) if opt('swt', 0) else repubA, 32, 0 if opt('swt', 0) else SLOW)
    stamp(a, 'synced')
    SP, Y, WR = 112, 64, 32
    SPR = [128, 132, 136, 140, 144, 148, 152, 156, 112, 116, 96, 100]
    S0 = SPR[0]; T0 = SPR[1]
    sm = []
    def w2rd(ks):
        if ks < 24: a(f'ds_read_b128 {vr(WR+4*(ks%6),4)}, v{vW2} offset:{ks*2048}', tag=f'y{ks}')
        else:
            for k in range(2): a(f'ds_read2st64_b32 {vr(WR+4*(ks%6)+2*k,2)}, v{vW2b+ks-24} offset0:{2*k} offset1:{2*k+1}', tag=f'y{ks}')
    YH = opt('yh', 14)
    def ystep(ks, lim=26):
        a.wait(lg=f'y{ks}')
        xa = vr(XF+4*ks, 4) if ks < 24 else vr(CM if ks == 24 else CB, 4)
        a(f'v_mfma_f32_32x32x16_bf16 {vr(Y,16)}, {xa}, {vr(WR+4*(ks%6),4)}, {"0" if ks == 0 else vr(Y,16)}')
        if ks + 5 < lim: w2rd(ks + 5)
    a(f's_add_u32 {sSld}, {sSld}, {sDelta}\ns_mul_i32 s34, {sHF}, 12288\ns_add_u32 {sSld}, {sSld}, s34')
    for i in range(6):
        if i and i % 2 == 0: a(f's_add_u32 {sSld}, {sSld}, 4096')
        a(f'buffer_load_dwordx4 {vr(SPR[i],4)}, v{vL16}, {SWS}, {sSld} offen offset:{(i&1)*2048} sc1', tag=f's{i}')
    a(f's_add_u32 s34, {sM1K}, {LSX}\nv_add_u32 v4, s34, v{vL16}\nv_xor_b32 v5, 1024, v4')
    for i in range(1, 6):
        a.wait(vm=f's{i}')
        for d in (0, 2): a(f'v_pk_add_f32 {vr(S0+d,2)}, {vr(S0+d,2)}, {vr(SPR[i]+d,2)}')
    a(f'ds_write_b128 v4, {vr(S0,4)}\ns_waitcnt lgkmcnt(0)'); a.lg = []
    stamp(a, 'ssum')
    a('s_barrier')
    stamp(a, 'w2h')
    a(f'ds_read_b128 {vr(T0,4)}, v5', tag='sx')
    sm.append(('l', 'sx'))
    for d in range(4): sm.append(f'v_add_f32 v{S0+d}, v{S0+d}, v{T0+d}')
    for ks in range(5): w2rd(ks)
    for d in range(4): sm.append(f'v_mul_f32 v{S0+d}, v{S0+d}, v{RR+d}')
    sm += [f'v_max_f32 v{T0}, v{S0}, v{S0+1}', f'v_max3_f32 v{T0}, v{T0}, v{S0+2}, v{S0+3}', f'v_mov_b32 v{T0+1}, v{T0}', 's_mov_b32 s64, 0x11111111', 's_mov_b32 s65, 0x11111111',
           f'v_permlane32_swap_b32 v{T0}, v{T0+1}', f'v_max_f32 v{T0}, v{T0}, v{T0+1}', f'v_mul_f32 v{T0}, v{RR+4}, v{T0}']
    for d in range(4): sm.append(f'v_fma_f32 v{S0+d}, v{S0+d}, v{RR+4}, -v{T0}')
    for d in range(4): sm.append(f'v_exp_f32 v{S0+d}, v{S0+d}')
    sm += [f'v_add_f32 v{T0}, v{S0}, v{S0+1}', f'v_add_f32 v{T0+1}, v{S0+2}, v{S0+3}', f'v_add_f32 v{T0}, v{T0}, v{T0+1}', f'v_mov_b32 v{T0+1}, v{T0}']
    sm += [f'v_mul_f32 v{S0+d}, v{S0+d}, v{RR+d}' for d in range(2)] + [f'v_permlane32_swap_b32 v{T0}, v{T0+1}', f'v_add_f32 v{T0}, v{T0}, v{T0+1}', f'v_rcp_f32 v{T0}, v{T0}']
    sm += [f'v_mul_f32 v{S0+d}, v{S0+d}, v{RR+d}' for d in range(2, 4)]
    for d in range(4): sm.append(f'v_mul_f32 v{S0+d}, v{S0+d}, v{T0}')
    PB = 136
    sm += [f'v_cvt_pk_bf16_f32 v{T0}, v{S0}, v{S0+1}', f'v_cvt_pk_bf16_f32 v{T0+1}, v{S0+2}, v{S0+3}']
    for b in range(4):
        sm += [f'v_cndmask_b32 v{PB+2*b}, 0, v{T0}, s[64:65]', f'v_cndmask_b32 v{PB+2*b+1}, 0, v{T0+1}, s[64:65]']
        if b < 3: sm.append('s_lshl_b64 s[64:65], s[64:65], 1')
    S2 = 104
    sm += [f'v_mov_b32 v{S2}, 0', f'v_mov_b32 v{S2+1}, 0', 's_mov_b32 s36, 0x3f803f80']
    def drain(n):
        while n > 0 and sm:
            x = sm.pop(0)
            if isinstance(x, tuple): a.wait(vm=x[1]) if x[0] == 'w' else a.wait(lg=x[1])
            else: a(x); n -= 1
    YB = YH - opt('ybe', 2)
    for ks in range(26):
        if ks == YB:
            if opt('yfin', 0): drain(1000)
            a('s_barrier')
            stamp(a, 'w2in')
            for k in range(YH, YB + 5): w2rd(k)
        ystep(ks, YH if ks < YB else 26)
        if ks >= 1: drain(opt('ydr', 6))
    drain(1000)
    stamp(a, 'ygemm')
    YP, XO = 144, 152
    for i in range(8): a(f'v_cvt_pk_bf16_f32 v{YP+i}, v{Y+2*i}, v{Y+2*i+1}')
    for k in range(2): a(f'v_mfma_f32_32x32x16_bf16 {vr(RES,16)}, {vr(YP+4*k,4)}, {vr(PB+4*k,4)}, {vr(RES,16)}')
    for i in range(8): a(f'v_cvt_pk_bf16_f32 v{XO+i}, v{RES+2*i}, v{RES+2*i+1}')
    a(f'buffer_store_dwordx4 {vr(XO,4)}, v{vX1}, {SWS}, {sX1} offen {WT}')
    a(f'buffer_store_dwordx4 {vr(XO+4,4)}, v{vX1}, {SWS}, {sX1} offen offset:512 {WT}')
    for i in range(8): a(f'v_dot2c_f32_bf16 v{S2}, s36, v{XO+i}\nv_dot2c_f32_bf16 v{S2+1}, v{XO+i}, v{XO+i}')
    a(f'''v_mov_b32 v{S2+2}, v{S2}
    v_mov_b32 v{S2+3}, v{S2+1}
    v_permlane32_swap_b32 v{S2}, v{S2+2}
    v_permlane32_swap_b32 v{S2+1}, v{S2+3}
    v_add_f32 v{S2}, v{S2}, v{S2+2}
    v_add_f32 v{S2+1}, v{S2+1}, v{S2+3}
    s_mov_b32 exec_hi, 0
    buffer_store_dwordx4 {vr(S2,4)}, v{vST}, {SWS}, {sST} offen {WT}
    s_mov_b32 exec_hi, -1
    s_mov_b32 s34, {GX}''')
    stamp(a, 'x1st')
    a.wait_all()
    a('s_barrier')
    flag_w0(a, sGX, 's34', 32)
    stamp(a, 'x1pub')
    a('s_branch P2_c')
    a.label('A_ld'); a.vm = []; a.lg = []
    vW, vXs, vP = 32, 36, 38
    sRx = ['s62', 's63', 's64', 's65', 's66', 's67']
    a(f'''s_mov_b32 s35, 196608
    v_mul_lo_u32 v{vXs}, v{T8}, s35
    v_lshrrev_b32 v4, 1, v{T8}
    v_xor_b32 v4, v4, v{G8}
    v_lshl_add_u32 v{vXs}, v4, 4, v{vXs}
    v_xor_b32 v{vXs+1}, 64, v{vXs}
    v_add_u32 v{vXs+1}, 768, v{vXs+1}
    s_lshl_b32 s34, {sG}, 3
    s_lshl_b32 s35, {sW}, 1
    s_add_u32 s34, s34, s35
    s_mul_i32 {sX}, s34, 768
    v_lshlrev_b32 v4, 1, v{T8}
    v_and_b32 v4, 4, v4
    v_xor_b32 v4, v4, v{G8}
    v_mul_u32_u24 v{vW}, 2304, v{T8}
    v_lshl_add_u32 v{vW}, v4, 4, v{vW}
    s_mul_i32 s68, {sW}, {16*2304}
    s_lshl_b32 s34, {sJ}, 7
    s_add_u32 s68, s68, s34''')
    for k in range(1, 4): a(f'v_add_u32 v{vW+k}, {(k>>1)*768 + (k&1)*18432}, v{vW}')
    for i in range(6):
        if ROT:
            a(f's_lshl_b32 s34, s3, 7\ns_add_u32 {sRx[i]}, s34, {sX}\ns_mul_i32 s34, s3, 147456\ns_add_u32 {sR[i]}, s34, s68')
            if i < 5: a('s_add_u32 s3, s3, 1\ns_cmp_ge_u32 s3, 6\ns_cselect_b32 s3, 0, s3')
        else: a(f's_add_u32 {sR[i]}, s68, {i*147456}\ns_add_u32 {sRx[i]}, {sX}, {i*128}')
    for i in range(2):
        a(f'''s_lshl_b32 s34, {sJ}, 3
        s_lshl_b32 s35, {sW}, 1
        s_add_u32 s34, s34, s35
        s_add_u32 s34, s34, {i}
        s_mul_i32 s35, s34, 43
        s_lshr_b32 s35, s35, 8
        s_mul_i32 s14, s35, 6
        s_sub_u32 s34, s34, s14
        s_lshl_b32 s34, s34, 10
        s_mul_i32 s35, s35, 196608
        s_add_u32 s34, s34, s35
        s_mul_i32 s35, {sG}, 6144
        s_add_u32 s{12+i}, s34, s35''')
    a(f's_mov_b32 s34, {WE}\ns_waitcnt lgkmcnt(0)\ns_load_dword {sTag}, s[32:33], s34')
    srd(a, 4, 20, 1572864); srd(a, 8, 22, 884736)
    def xpre():
        for i in range(2): a(f'buffer_load_dwordx4 v[{56+4*i}:{59+4*i}], v{vL16}, {SX}, s{12+i} offen')
    if opt('xp0', 0) == 1: xpre()
    def wdma(c):
        for th in range(2):
            a(f's_add_u32 m0, {sM}, {XS(c) + th*1024}\nbuffer_load_dwordx4 v{vXs+th}, {SX}, {sRx[c]} offen lds', tag=f'w{c}')
        for k in range(4):
            a(f's_add_u32 m0, {sM}, {WQ0 + c*16384 + (k>>1)*8192 + (k&1)*1024}\nbuffer_load_dwordx4 v{vW+k}, {SWQ}, {sR[c]} offen lds', tag=f'w{c}')
    NL = opt('nl', 2)
    for c in range(NL):
        wdma(c)
        if c == 0 and opt('xp0', 0) == 2: xpre()
        if c == 0: srd(a, 16, 32, WS_SIZE); srd(a, 24, 38, 1572864)
    a(f'''v_mul_u32_u24 v{vP}, 768, v1
    s_lshl_b32 s34, {sJ}, 7
    s_add_u32 s68, s34, {GW2}
    s_mul_i32 s69, {sJ}, 53248
    s_add_u32 s69, s69, {WS_W2}
    s_waitcnt lgkmcnt(0)''')
    tag_ready(a)
    def progress():
        L = a.newlabel('pg')
        a(f's_cmp_lg_u32 {sI}, 8\ns_cbranch_scc1 {L}\ns_cmp_lg_u32 {sW}, 0\ns_cbranch_scc1 {L}')
        a.cond = True
        a(f's_lshl_b32 s34, {sXCD}, 7\ns_mov_b32 s35, {FP}'); flag(a, 's34', 's35', sFast, 52, ''); a.vm.pop()
        a.cond = False
        a.label(L)
    if opt('prg', 9) == 9: progress()
    for c in range(6):
        a.wait(vm=f'w{c}')
        if c in (0, 3, 5): stamp(a, f'L{c}')
        a('s_barrier')
        if c + NL < 6: wdma(c + NL)
        if c == opt('prg', 9): progress()
        if c == opt('tlb', 1): pages(a)
        if c == opt('tpos', 3) and opt('touch', 1):
            a(f'''s_mul_i32 s34, {sG}, 24576
            s_lshl_b32 s35, {sJ}, 12
            s_add_u32 s34, s34, s35
            s_add_u32 s34, s34, {WS_S}
            s_add_u32 s34, s34, {sM1K}
            {"" if opt("swt", 0) else f"buffer_load_dwordx4 v[44:47], v{vL16}, {SWS}, s34 offen"}
            s_lshl_b32 s34, {sG}, 8
            s_add_u32 s34, s34, {FS1}
            v_lshlrev_b32 v48, 2, v1
            buffer_load_dword v49, v48, {SWS}, s34 offen
            s_lshl_b32 s34, {sXCD}, 9
            s_add_u32 s34, s34, {FC1}
            v_lshlrev_b32 v48, 3, v1
            buffer_load_dword v50, v48, {SWS}, s34 offen''')
    a(f's_mul_i32 s20, {sW}, 3')
    if ROT: rot_r('s3'); a('s_lshl_b32 s3, s3, 1\ns_add_u32 s3, s3, s20')
    else: a('s_mov_b32 s3, s20')
    a(f's_lshl_b32 s20, s20, 12\ns_add_u32 s20, s20, {W2L}')
    for k in range(3):
        a(f's_cmp_ge_u32 s3, 12\ns_cselect_b32 s34, 12, 0\ns_sub_u32 s3, s3, s34\ns_lshl_b32 s34, s3, 12\ns_add_u32 s{21+k}, s69, s34\ns_add_u32 s3, s3, 1')
    a(f's_add_u32 s69, s69, 49152\ns_add_u32 s69, s69, {sM1K}')
    if opt('tp', 9) == 0: touch2(a)
    if opt('w21', 1):
        a(f's_cmp_lg_u32 {sW}, 0\ns_cbranch_scc1 A_ld2')
        gpoll(a, 4, vP, 's68', 40)
        stamp(a, 'Lw2f')
        a(f's_sub_u32 s69, s69, 49152')
        for gi in range(13):
            if gi == 12: a(f's_add_u32 s68, s69, 49152')
            elif gi == 0: a('s_mov_b32 s68, s21\ns_sub_u32 s3, s21, s69')
            elif gi % 2 == 0: a('s_add_u32 s3, s3, 8192\ns_cmp_ge_u32 s3, 49152\ns_cselect_b32 s3, 0, s3\ns_add_u32 s68, s69, s3')
            else: a('s_add_u32 s68, s68, 4096')
            a(f's_mov_b32 m0, {W2L + gi*4096}')
            for k in range(4 if gi < 12 else 3): a(f'buffer_load_dwordx4 v{vL16}, {SWS}, s68 offen offset:{k*1024} sc1 lds', tag=f'h{gi}')
        if opt('yh', 14): a.wait(vm=f'h{opt("yh", 14)//2 - 1}')
        a.label('A_ld2')
        if opt('yh', 14): a('s_barrier')
    else:
        gpoll(a, 4, vP, 's68', 40)
        stamp(a, 'Lw2f')
        for k in range(3):
            a(f's_add_u32 m0, s20, {k*4096}')
            for q in range(4): a(f'buffer_load_dwordx4 v{vL16}, {SWS}, s{21+k} offen offset:{q*1024} sc1 lds')
        a(f's_add_u32 m0, {sM1K}, {W2L + 49152}\nbuffer_load_dwordx4 v{vL16}, {SWS}, s69 offen sc1 lds')
    a.wait_all()
    stamp(a, 'Lw2')
    a('s_barrier\ns_barrier\ns_branch P2_l')
    a.label('K_pre'); a.vm = []; a.lg = []
    sS8, sIt, sJt, sA, sB, sMm, sT0, sLA, sLB = 's50', 's51', 's52', 's53', 's54', 's55', 's56', 's57', 's58'
    a(f'''s_mov_b32 {sS8}, {sI}
    s_mov_b32 s34, {WE}
    s_and_b32 s59, {sXCD}, 1
    s_lshr_b32 s60, {sXCD}, 1
    s_cmp_lt_u32 {sS8}, 3
    s_cbranch_scc1 W_id0
    s_mul_i32 s35, s60, 9
    s_mul_i32 s61, s59, 5
    s_add_u32 s35, s35, s61
    s_add_u32 s35, s35, {sS8}
    s_sub_u32 s35, s35, 3
    s_mul_i32 s61, s35, 43
    s_lshr_b32 s61, s61, 8
    s_mul_i32 s62, s61, 6
    s_sub_u32 {sJt}, s35, s62
    s_cmp_ge_u32 s61, 3
    s_cselect_b32 {sMm}, 1, 0
    s_mul_i32 s62, {sMm}, 3
    s_sub_u32 {sIt}, s61, s62
    s_add_u32 s62, {sS8}, s59
    s_cmp_ge_u32 s62, 8
    s_cselect_b32 {sMm}, 3, {sMm}
    s_branch W_id1''')
    a.label('W_id0')
    a(f'''s_mov_b32 {sMm}, 2
    s_mov_b32 {sIt}, s60
    s_mul_i32 {sJt}, s59, 3
    s_add_u32 {sJt}, {sJt}, {sS8}''')
    a.label('W_id1')
    a(f'''s_waitcnt lgkmcnt(0)
    s_load_dword {sTag}, s[32:33], s34''')
    srd(a, 16, 32, WS_SIZE); srd(a, 24, 38, 1572864)
    a(f'''s_cmp_eq_u32 {sMm}, 3
    s_cbranch_scc1 W_done
    s_cmp_lg_u32 {sRole}, 0
    s_cbranch_scc1 W_ld''')
    BB = 98304
    FA, FB, AC = 32, 48, 128
    vAr, vBr = 14, 18
    a(f'''v_and_b32 v2, 31, v1
    v_lshrrev_b32 v3, 5, v1
    v_and_b32 v4, 19, v2
    v_bfe_u32 v5, v2, 2, 1
    v_lshl_add_u32 v4, v5, 3, v4
    v_bfe_u32 v5, v2, 3, 1
    v_lshl_add_u32 v4, v5, 2, v4
    v_lshrrev_b32 v5, 3, v4
    v_mul_u32_u24 v5, 6144, v5
    v_and_b32 v6, 7, v4
    v_lshl_add_u32 v5, v6, 7, v5
    v_bfe_u32 v6, v4, 1, 3
    v_xor_b32 v6, v6, v3
    v_lshl_add_u32 v11, v6, 4, v5
    v_bfe_u32 v6, v1, 2, 2
    v_lshl_add_u32 v4, v3, 3, v6
    v_lshlrev_b32 v4, 7, v4
    v_lshrrev_b32 v7, 1, v6
    v_lshl_add_u32 v4, v7, 6, v4
    v_bfe_u32 v7, v1, 4, 1
    v_lshl_add_u32 v12, v7, 5, v4
    s_mov_b32 s37, 0x3f803f80''')
    def a_addr(swave):
        a(f's_mul_i32 s34, {swave}, 24576\nv_add_u32 v{vAr}, s34, v11')
        for k in range(1, 4): a(f'v_xor_b32 v{vAr+k}, {32*k}, v{vAr}')
    def stages(nv, breads):
        def rd(jj, k4):
            o = (jj & 1)*48*opt('ppipe', 1)
            a(f'ds_read_b128 {vr(FA+o+4*k4,4)}, v{vAr+k4} offset:{jj*1024}', tag=f'r{k4}')
            for v in range(nv): breads(jj, k4, v, FB + o + (k4*2+v)*4)
        def mm(jj, k4):
            o = (jj & 1)*48*opt('ppipe', 1)
            for v in range(nv):
                cin = '0' if (jj == 0 and k4 == 0) else vr(AC+16*v, 16)
                a(f'v_mfma_f32_32x32x16_bf16 {vr(AC+16*v,16)}, {vr(FA+o+4*k4,4)}, {vr(FB+o+(k4*2+v)*4,4)}, {cin}')
        for jj in range(6):
            a('s_barrier')
            if opt('ppipe', 1) and jj:
                rd(jj, 0); mm(jj - 1, 2); rd(jj, 1); mm(jj - 1, 3); rd(jj, 2); rd(jj, 3)
            else:
                for k4 in range(4): rd(jj, k4)
            last = 4 if (jj == 5 or not opt('ppipe', 1)) else 2
            for k4 in range(last):
                a.wait(lg=f'r{k4}'); mm(jj, k4)
            if last == 2: a.wait(lg='r3')
    def btr(jj, k4, v, d):
        o = jj*8192 + k4*2048
        a(f'ds_read_b64_tr_b16 {vr(d,2)}, v{vBr+v} offset:{o}\nds_read_b64_tr_b16 {vr(d+2,2)}, v{vBr+v} offset:{o+512}', tag=f'r{k4}')
    def brow(jj, k4, v, d): a(f'ds_read_b128 {vr(d,4)}, v{vBr+k4} offset:{v*24576+jj*1024}', tag=f'r{k4}')
    def colsum(v, src, dst):
        a(f'v_mov_b32 v24, 0')
        for i in range(8): a(f'v_dot2c_f32_bf16 v24, s37, v{src+i}')
        a(f'''v_mov_b32 v26, v24
        v_permlane32_swap_b32 v24, v26
        v_add_f32 v26, v26, v24
        v_cvt_pk_bf16_f32 v27, v26, v26
        v_lshlrev_b32 v27, 16, v27
        v_sub_f32 v27, v26, v27
        v_cvt_pk_bf16_f32 v{dst}, v26, v27''')
    def colsum2():
        a('v_mov_b32 v24, 0\nv_mov_b32 v25, 0')
        for i in range(8): a(f'v_dot2c_f32_bf16 v24, s37, v{32+i}\nv_dot2c_f32_bf16 v25, s37, v{40+i}')
        a('''v_mov_b32 v26, v24
        v_mov_b32 v27, v25
        v_permlane32_swap_b32 v24, v26
        v_permlane32_swap_b32 v25, v27
        v_add_f32 v24, v26, v24
        v_add_f32 v25, v27, v25
        v_cvt_pk_bf16_f32 v26, v24, v24
        v_cvt_pk_bf16_f32 v27, v25, v25
        v_lshlrev_b32 v26, 16, v26
        v_lshlrev_b32 v27, 16, v27
        v_sub_f32 v26, v24, v26
        v_sub_f32 v27, v25, v27
        v_cvt_pk_bf16_f32 v28, v24, v26
        v_cvt_pk_bf16_f32 v29, v25, v27''')
    a_addr(sW)
    a(f's_cmp_lg_u32 {sMm}, 2\ns_cbranch_scc1 W_c0')
    a(f'''s_min_u32 s59, {sW}, 2''')
    a_addr('s59')
    a(f'''v_and_b32 v7, 1, v1
    v_lshl_add_u32 v4, v7, 4, v12
    v_bfe_u32 v7, v1, 1, 1
    v_lshl_add_u32 v4, v7, 3, v4
    v_add_u32 v{vBr}, {BB}, v4
    v_xor_b32 v{vBr+1}, 64, v{vBr}
    s_mul_i32 s34, {sIt}, 3
    s_add_u32 s34, s34, s59
    s_mul_i32 s35, {sJt}, 53248
    s_add_u32 s35, s35, {WS_W2}
    s_lshl_b32 s36, s34, 12
    s_add_u32 s61, s35, s36
    s_lshl_b32 s36, s34, 8
    s_add_u32 s35, s35, s36
    s_add_u32 s62, s35, 49152
    v_lshlrev_b32 v30, 2, v1
    s_mul_i32 s63, {sIt}, 6
    s_add_u32 s63, s63, {sJt}
    s_lshl_b32 s63, s63, 7
    s_mov_b32 s64, {GW2}''')
    stages(2, btr)
    stamp(a, 'pst')
    a(f's_cmp_eq_u32 {sW}, 3\ns_cbranch_scc1 W_c4')
    for v in range(2):
        for i in range(8): a(f'v_cvt_pk_bf16_f32 v{32+8*v+i}, v{AC+16*v+2*i}, v{AC+16*v+2*i+1}')
        a(f'buffer_store_dwordx4 {vr(32+8*v,4)}, v{vL16}, {SWS}, s61 offen offset:{v*1024} {WT}\nbuffer_store_dwordx4 {vr(36+8*v,4)}, v{vL16}, {SWS}, s61 offen offset:{2048+v*1024} {WT}')
    colsum2()
    a('s_mov_b32 exec_hi, 0')
    for v in range(2): a(f'buffer_store_dword v{28+v}, v30, {SWS}, s62 offen offset:{v*128} {WT}')
    a('s_mov_b32 exec_hi, -1')
    a.label('W_c4')
    a.wait_all()
    tag_ready(a)
    a('s_barrier')
    flag_w0(a, 's63', 's64', 48)
    stamp(a, 'w2pub')
    a('s_branch W_done2')
    a.label('W_c0'); a.lg = []; a.vm = []
    a(f'''s_mul_i32 s34, {sMm}, 24
    s_lshl_b32 s61, {sJt}, 2
    s_add_u32 s34, s34, s61
    v_bfe_u32 v4, v1, 4, 1
    v_add_u32 v4, s34, v4
    v_and_b32 v7, 15, v1
    v_lshlrev_b32 v7, 4, v7
    s_lshl_b32 s61, {sIt}, 2
    s_add_u32 s61, s61, {sW}
    s_mul_i32 s61, s61, 3072
    s_add_u32 s61, s61, {WS_W}
    s_lshl_b32 s62, {sIt}, 2
    s_add_u32 s62, s62, {sW}
    s_mul_i32 s62, s62, 192
    s_add_u32 s62, s62, {WS_W + 12*3072}''')
    for v in range(2):
        a(f'''v_add_u32 v5, {2*v}, v4
        v_mul_u32_u24 v6, 43, v5
        v_lshrrev_b32 v6, 7, v6
        v_mul_u32_u24 v8, 3, v6
        v_sub_u32 v5, v5, v8
        v_mul_u32_u24 v6, 39936, v6
        v_lshl_add_u32 v{160+v}, v5, 6, v6
        v_lshl_add_u32 v6, v5, 10, v6
        v_add_u32 v6, v6, v7
        v_lshl_add_u32 v{162+v}, v3, 8, v6
        v_lshrrev_b32 v6, 2, v7
        v_add_u32 v{160+v}, v{160+v}, v6''')
    a(f's_cmp_eq_u32 {sMm}, 1\ns_cbranch_scc1 W_c1')
    a(f'''v_lshrrev_b32 v5, 3, v2
    v_mul_u32_u24 v5, 6144, v5
    v_and_b32 v6, 7, v2
    v_lshl_add_u32 v5, v6, 7, v5
    v_bfe_u32 v6, v2, 1, 3
    v_xor_b32 v6, v6, v3
    v_lshl_add_u32 v5, v6, 4, v5
    v_add_u32 v{vBr}, {BB}, v5''')
    for k in range(1, 4): a(f'v_xor_b32 v{vBr+k}, {32*k}, v{vBr}')
    stages(2, brow)
    a('s_branch W_c2')
    a.label('W_c1'); a.lg = []
    a(f'''v_and_b32 v7, 3, v1
    v_lshl_add_u32 v4, v7, 3, v12
    v_add_u32 v{vBr}, {BB}, v4
    v_xor_b32 v{vBr+1}, 64, v{vBr}''')
    stages(2, btr)
    a.label('W_c2')
    stamp(a, 'qst')
    for v in range(2):
        for i in range(8): a(f'v_cvt_pk_bf16_f32 v{32+8*v+i}, v{AC+16*v+2*i}, v{AC+16*v+2*i+1}')
        a(f'buffer_store_dwordx4 {vr(32+8*v,4)}, v{162+v}, {SWS}, s61 offen {WT}')
        a(f'buffer_store_dwordx4 {vr(36+8*v,4)}, v{162+v}, {SWS}, s61 offen offset:512 {WT}')
    colsum2()
    a('s_mov_b32 exec_hi, 0')
    for v in range(2): a(f'buffer_store_dword v{28+v}, v{160+v}, {SWS}, s62 offen {WT}')
    a('s_mov_b32 exec_hi, -1')
    stamp(a, 'qsto')
    a('s_branch W_done')
    a.label('W_ld'); a.vm = []; a.lg = []
    vA0, vBo = 12, 14
    a(f'''v_lshrrev_b32 v4, 1, v{T8}
    v_xor_b32 v4, v4, v{G8}
    v_mul_u32_u24 v5, 2304, v{T8}
    v_lshl_add_u32 v{vA0}, v4, 4, v5
    v_xor_b32 v{vA0+1}, 64, v{vA0}
    v_lshlrev_b32 v4, 1, v{T8}
    v_and_b32 v4, 4, v4
    v_xor_b32 v4, v4, v{G8}
    v_mul_u32_u24 v5, 768, v{T8}
    v_lshl_add_u32 v{vBo}, v4, 4, v5''')
    sLn = ['s59', 's60', 's61', 's62', 's63', 's64']; sLb = ['s65', 's66', 's67', 's68', 's69', 's3']
    def lstages(nra, mode):
        if opt('prot', 1) and (nra == 3 or opt('protw', 1)): a(f's_mul_i32 s34, {sIt}, 3\ns_lshr_b32 s34, s34, 1\ns_add_u32 s34, s34, {sJt}')
        else: a('s_mov_b32 s34, 0')
        for jj in range(6):
            a(f's_cmp_ge_u32 s34, 6\ns_cselect_b32 s35, 6, 0\ns_sub_u32 s34, s34, s35\ns_lshl_b32 s35, s34, 7\ns_add_u32 {sLn[jj]}, {sA}, s35')
            if mode == 1: a(f's_mul_i32 s35, s34, {64*768}')
            a(f's_add_u32 {sLb[jj]}, {sB}, s35\ns_add_u32 s34, s34, 1')
        def issue(jj):
            for r in range(nra):
                a(f'''s_add_u32 {sT0}, {sLn[jj]}, {r*8*2304}
                s_add_u32 m0, {sLA}, {(r*6+jj)*1024}
                buffer_load_dwordx4 v{vA0+(r&1)}, {SWQ}, {sT0} offen lds''', tag=f'p{jj}')
            for r in range(2):
                if mode == 0:
                    a(f'''s_add_u32 {sT0}, {sLb[jj]}, {r*8*2304}
                    s_add_u32 m0, {sLB}, {BB + (r*6+jj)*1024}
                    buffer_load_dwordx4 v{vA0+r}, {SWQ}, {sT0} offen lds''', tag=f'p{jj}')
                else:
                    a(f'''s_add_u32 {sT0}, {sLb[jj]}, {r*8*768}
                    s_add_u32 m0, {sLB}, {BB + jj*8192 + r*1024}
                    buffer_load_dwordx4 v{vBo}, {SWO}, {sT0} offen lds''', tag=f'p{jj}')
        n0 = opt('pn0', 3) if nra == 3 else opt('pn0w', 3)
        for jj in range(n0): issue(jj)
        for jj in range(6):
            a.wait(vm=f'p{jj}')
            if jj in (0, 3, 5): stamp(a, f'Lp{jj}' if nra == 3 else f'Lq{jj}')
            a('s_barrier')
            if jj + n0 < 6: issue(jj + n0)
    if opt('tlb', 1) >= 0: pages(a)
    a(f's_cmp_lg_u32 {sMm}, 2\ns_cbranch_scc1 W_l0')
    srd(a, 8, 22, 884736); srd(a, 12, 28, 294912)
    a(f'''s_lshl_b32 s34, {sIt}, 2
    s_add_u32 s34, s34, {sW}
    s_mul_i32 {sA}, s34, {24*2304}
    s_add_u32 {sA}, {sA}, 1536
    s_mul_i32 {sLA}, {sW}, 18432
    s_mul_i32 {sB}, {sW}, {16*768}
    s_lshl_b32 s34, {sJt}, 7
    s_add_u32 {sB}, {sB}, s34
    s_lshl_b32 {sLB}, {sW}, 11
    s_and_b32 s34, {sW}, 1
    s_lshl_b32 s34, s34, 6
    v_xor_b32 v{vA0}, s34, v{vA0}
    v_xor_b32 v{vA0+1}, s34, v{vA0+1}''')
    lstages(3, 1)
    a('s_branch W_done')
    a.label('W_l0'); a.vm = []
    if opt('prg', 9) >= 0:
        a(f'''s_waitcnt lgkmcnt(0)
        s_mul_i32 s35, {sTag}, 0x9e3779b1
        s_add_u32 s35, s35, 0x7f4a7c15
        s_add_u32 s35, s35, {sFast}
        s_lshl_b32 s34, {sXCD}, 7
        s_add_u32 s34, s34, {FP}
        v_mov_b32 v20, 0
        s_mov_b32 s56, {opt('prl', 16)}''')
        a.label('W_pw')
        a(f'''buffer_load_dword v21, v20, {SWS}, s34 offen sc1
        s_waitcnt vmcnt(0)
        v_cmp_ne_u32 vcc, s35, v21
        s_cbranch_vccz W_go
        s_sub_u32 s56, s56, 1
        s_cmp_lg_u32 s56, 0
        s_cbranch_scc1 W_pw''')
        a.label('W_go'); a.vm = []
        stamp(a, 'Lgo')
    srd(a, 8, 30, 884736); srd(a, 12, 36, 294912)
    a(f'''s_lshl_b32 s34, {sIt}, 2
    s_add_u32 s34, s34, {sW}
    s_mul_i32 {sA}, s34, {32*2304}
    s_mul_i32 s35, {sMm}, 1536
    s_add_u32 {sA}, {sA}, s35
    s_mul_i32 {sLA}, {sW}, 24576
    s_cmp_eq_u32 {sMm}, 1
    s_cbranch_scc1 W_l1
    s_lshl_b32 s34, {sJt}, 2
    s_add_u32 s34, s34, {sW}
    s_mul_i32 {sB}, s34, {16*2304}
    s_add_u32 {sB}, {sB}, 768
    s_mul_i32 {sLB}, {sW}, 12288''')
    lstages(4, 0)
    a('s_branch W_done')
    a.label('W_l1'); a.vm = []
    a(f'''s_mul_i32 {sB}, {sW}, {16*768}
    s_lshl_b32 s34, {sJt}, 7
    s_add_u32 {sB}, {sB}, s34
    s_lshl_b32 {sLB}, {sW}, 11''')
    lstages(4, 1)
    a.label('W_done'); a.vm = []; a.lg = []
    a.wait_all()
    tag_ready(a)
    a(f'''s_barrier
    s_cmp_lg_u32 {sRole}, 0
    s_cbranch_scc1 W_done3''')
    a.label('W_done2')
    a(f'''
    s_lshl_b32 s34, {sS8}, 3
    s_add_u32 s34, s34, {sXCD}
    s_lshl_b32 s34, s34, 7
    s_mov_b32 s35, {GW}''')
    flag_w0(a, 's34', 's35', 32)
    stamp(a, 'wpub')
    hp_t0(a)
    if opt('tp', 9) == 3:
        a(f'''s_lshl_b32 s34, {sS8}, 2
        s_add_u32 s34, s34, {sW}
        s_mul_i32 s35, s34, 6656
        s_mul_i32 s36, {sXCD}, 212992
        s_add_u32 s35, s35, s36
        s_add_u32 s35, s35, {WS_Q}
        s_mul_i32 s36, s34, 6144
        s_mul_i32 s37, {sXCD}, 196608
        s_add_u32 s36, s36, s37
        s_add_u32 s36, s36, {WS_VP}''')
        for sb, n in (('s35', 7), ('s36', 6)):
            for i in range(n):
                if i == 4: a(f's_add_u32 {sb}, {sb}, 4096')
                a(f'buffer_load_dwordx4 v[64:67], v{vL16}, {SWS}, {sb} offen offset:{(i&3)*1024}')
        a(f's_lshl_b32 s34, {sXCD}, 9\ns_add_u32 s34, s34, {FC1}\nv_lshlrev_b32 v68, 3, v1\nbuffer_load_dword v64, v68, {SWS}, s34 offen')
        a.vm = []
    def wd3():
        a.label('W_done3')
        if opt('tp', 9) == 0: touch2(a)
        a('s_branch P2_l')
    TAIL.append(wd3)
    import v18b
    v18b.phase2(a, globals())
    a.label('K_end')
    a('s_endpgm')
    a.cond = True
    k = 0
    while k < len(TAIL): a.vm = []; a.lg = []; TAIL[k](); k += 1
    return a

KNAME = 'standalone__video_timesformer__vision_kernel'
if __name__ == '__main__':
    out = sys.argv[1]
    a = build()
    head = open('standalone__video_timesformer__vision.s.ref').read().split('; Override launch')[0]
    s = head + '; @launch grid=(256,1,1) block=(512,1,1) lds=151552\n.amdgcn_target "amdgcn-amd-amdhsa--gfx950"\n.text\n'
    s += f'.globl {KNAME}\n.p2align 8\n.type {KNAME},@function\n{KNAME}:\n' + a.text()
    s += f'''.fill 4096, 4, 0xbf800000
  s_endpgm
.section .rodata,"a"
.p2align 6
.amdhsa_kernel {KNAME}
  .amdhsa_next_free_vgpr 256
  .amdhsa_next_free_sgpr 102
  .amdhsa_accum_offset 256
  .amdhsa_group_segment_fixed_size 0
  .amdhsa_kernarg_size 64
  .amdhsa_user_sgpr_count 2
  .amdhsa_user_sgpr_kernarg_segment_ptr 1
  .amdhsa_system_sgpr_workgroup_id_x 1
.end_amdhsa_kernel
'''
    open(out, 'w').write(s)
    if PROFILE: open(out + '.stamps', 'w').write(repr(St.names))
    print('instructions', sum(1 for i in a.ins if not i.label), 'pad states', a.pads)
```

```python
def phase2(a, G):
    globals().update({k: v for k, v in G.items() if not k.startswith('__')})
    sT = sXCD
    sRQ, sS, sQT, sCH, sT0, sT1 = 's50', 's51', 's52', 's53', 's54', 's55'
    sK, sSt1, sSt2, sQ, sVP, sOut, sF1, sF2, sOwn, sRs, sFS, sTP = 's56', 's57', 's58', 's59', 's60', 's61', 's62', 's63', 's64', 's66', 's65', 's3'
    LW, XB, LT = 0, 81920, 131072
    LQ, LS, LP, LML, LO = 0, 13312, 16384, 24576, 26624
    vL16, vQ12, vTb, vA, vB, vSt = 10, 11, 12, 15, 9, 8
    QF, M_, T_ = 32, 4, 5
    vP, vML, vMLr = 13, 14, 12
    def common():
        a(f'''s_lshr_b32 {sRQ}, {sI}, 3
        s_lshr_b32 {sTP}, {sW}, 1
        s_lshr_b32 {sQT}, {sI}, 1
        s_and_b32 {sCH}, {sI}, 1
        s_mul_i32 {sK}, {sT}, 196608
        s_mul_i32 s35, {sW}, 12288
        s_add_u32 {sK}, {sK}, s35
        s_add_u32 {sK}, {sK}, {WS_X1}
        v_lshrrev_b32 v2, 4, v1
        v_and_b32 v3, 15, v1
        v_bfe_u32 v5, v1, 4, 1''')
    def attn_addr(role):
        a(f'''s_lshl_b32 s34, {sTP}, 10
        s_and_b32 s35, {sW}, 1
        s_lshl_b32 s35, s35, 3
        s_add_u32 s34, s34, s35
        s_add_u32 s34, s34, {LP}
        v_add_u32 v{vP}, s34, v{vL16}
        s_lshl_b32 s34, {sW}, 2
        s_add_u32 s34, s34, {LML + 16*role}
        v_lshl_add_u32 v{vML}, v3, 5, s34
        v_lshlrev_b32 v{vMLr}, 5, v3
        v_add_u32 v{vMLr}, {LML}, v{vMLr}
        v_lshlrev_b32 v{vQ12}, 2, v3
        v_lshl_add_u32 v{vQ12}, v5, 8, v{vQ12}
        v_add_u32 v{vQ12}, {LQ + 12288}, v{vQ12}''')
    def scores(nt, KF, SA, RD, MF, vMa, vRa, vPt, fill, role):
        pre = 'L' if role else ''
        def qrd(ks):
            d = QF + 4*(ks%4)
            if ks < 12: a(f'ds_read_b128 {vr(d,4)}, v{vL16} offset:{LQ + ks*1024}', tag=f'q{ks}')
            else: a(f'ds_read2_b32 {vr(d,2)}, v{vQ12} offset0:0 offset1:16\nds_read2_b32 {vr(d+2,2)}, v{vQ12} offset0:32 offset1:48', tag=f'q{ks}')
        for ks in range(3): qrd(ks)
        for t in range(nt): a(f'ds_read_b32 v{MF+4*t}, v{vMa+t}\nds_read_b128 {vr(RD+4*t,4)}, v{vRa+t}', tag='fs')
        for ks in range(13):
            a.wait(lg=f'q{ks}')
            for t in range(nt):
                kf = vr(KF+(t*12+ks)*4, 4) if ks < 12 else vr(MF+4*t, 4)
                d = vr(SA+4*t, 4)
                a(f'v_mfma_f32_16x16x32_bf16 {d}, {kf}, {vr(QF+4*(ks%4),4)}, {"0" if ks == 0 else d}')
            if ks + 3 < 13: qrd(ks + 3)
            if ks == 3:
                a('s_mov_b32 s36, -1\ns_mov_b32 s37, 0')
                for t in range(nt): a(f'v_cndmask_b32 v{MF+4*t}, 0, v{MF+4*t}, s[36:37]')
            if 4 <= ks < 7:
                for t in range(nt): a(f'v_mov_b32 v{MF+4*t+ks-3}, v{MF+4*t}')
            fill()
        n = 4*nt
        for i in range(n): a(f'v_mul_f32 v{SA+i}, v{SA+i}, v{RD+i}')
        a(f'v_max3_f32 v{M_}, v{SA}, v{SA+1}, v{SA+2}')
        if nt == 1: a(f'v_max_f32 v{M_}, v{M_}, v{SA+3}')
        else:
            a(f'v_max3_f32 v{T_}, v{SA+3}, v{SA+4}, v{SA+5}\nv_max3_f32 v{M_}, v{M_}, v{SA+6}, v{SA+7}\nv_max3_f32 v{T_}, v{T_}, v{SA+8}, v{SA+9}\nv_max3_f32 v{M_}, v{M_}, v{SA+10}, v{SA+11}\nv_max_f32 v{M_}, v{M_}, v{T_}')
        for sw in ('v_permlane16_swap_b32', 'v_permlane32_swap_b32'):
            a(f'v_mov_b32 v{T_}, v{M_}'); fill(); a(f'{sw} v{M_}, v{T_}\nv_max_f32 v{M_}, v{M_}, v{T_}')
        a(f's_mov_b64 exec, 0xffff\nds_write_b32 v{vML}, v{M_}\ns_mov_b64 exec, -1')
        fill()
        a('s_waitcnt lgkmcnt(0)'); a.lg = []
        stamp(a, pre + 's1'); a('s_barrier')
        a(f'ds_read_b128 {vr(QF,4)}, v{vMLr}\nds_read_b128 {vr(QF+4,4)}, v{vMLr} offset:16', tag='mx')
        fill(); fill()
        a.wait(lg='mx')
        a(f'v_max3_f32 v{M_}, v{QF}, v{QF+1}, v{QF+2}\nv_max3_f32 v{T_}, v{QF+3}, v{QF+4}, v{QF+5}\nv_max3_f32 v{M_}, v{M_}, v{QF+6}, v{QF+7}\nv_max_f32 v{M_}, v{M_}, v{T_}')
        for i in range(n): a(f'v_sub_f32 v{SA+i}, v{SA+i}, v{M_}')
        for t in range(nt):
            for i in range(4): a(f'v_exp_f32 v{SA+4*t+i}, v{SA+4*t+i}')
            for i in range(2): a(f'v_cvt_pk_bf16_f32 v{QF+2*t+i}, v{SA+4*t+2*i}, v{SA+4*t+2*i+1}')
            a(f'ds_write_b64 v{vPt+t}, {vr(QF+2*t,2)}')
        for t in range(1, nt):
            for i in range(4): a(f'v_add_f32 v{SA+i}, v{SA+i}, v{SA+4*t+i}')
        a(f'v_add_f32 v{SA}, v{SA}, v{SA+2}\nv_add_f32 v{SA+1}, v{SA+1}, v{SA+3}\nv_add_f32 v{SA}, v{SA}, v{SA+1}')
        for sw in ('v_permlane16_swap_b32', 'v_permlane32_swap_b32'):
            a(f'v_mov_b32 v{T_}, v{SA}'); fill(); a(f'{sw} v{SA}, v{T_}\nv_add_f32 v{SA}, v{SA}, v{T_}')
        a(f's_mov_b64 exec, 0xffff\nds_write_b32 v{vML}, v{SA} offset:512\ns_mov_b64 exec, -1')
        a('s_waitcnt lgkmcnt(0)'); a.lg = []
        stamp(a, pre + 's2'); a('s_barrier')
    def tile_addr(sA_, k, vMa, vRa, vPt):
        a(f'''s_lshl_b32 s34, {sA_}, 2
        s_add_u32 s34, s34, {sW}
        s_lshl_b32 s34, s34, 6
        s_add_u32 s34, s34, {LS}
        v_lshl_add_u32 v{vMa+k}, v3, 2, s34
        s_add_u32 s34, s34, 1024
        v_lshl_add_u32 v{vRa+k}, v2, 4, s34
        s_lshl_b32 s34, {sA_}, 11
        v_add_u32 v{vPt+k}, s34, v{vP}''')
    def run(q, n):
        while n > 0 and q:
            x = q.pop(0); n -= 1
            if x == 's_nop 0': continue
            if isinstance(x, tuple):
                if x[0] == 'v': a.wait(vm=x[1])
                elif x[0] == 'l': a.wait(lg=x[1])
                else: a(x[0], tag=x[1])
            else: a(x)
    a.label('P2_c'); a.vm = []; a.lg = []
    stamp(a, 'p2c')
    common()
    RD, MF, RT = 16, 24, 6
    WF, XR, ACC, PK, AQ, SR, ONE = 100, 56, 76, 100, 112, 32, 72
    vWa, vWb, vXa = 72, 73, 11
    VF, KF = 64, 208
    a(f'''s_and_b32 {sS}, {sI}, 7
    s_lshl_b32 {sS}, {sS}, 1
    s_and_b32 s34, {sW}, 1
    s_add_u32 {sS}, {sS}, s34
    s_mul_i32 s35, s34, 39936
    v_add_u32 v{vWa}, s35, v{vL16}
    v_cmp_eq_u32 vcc, 3, v2
    v_cndmask_b32 v6, v2, 0, vcc
    v_mul_u32_u24 v6, 768, v6
    v_lshl_add_u32 v6, v3, 2, v6
    s_add_u32 s35, s35, 36864
    v_add_u32 v{vWb}, s35, v6
    s_mul_i32 s35, {sTP}, 24576
    s_add_u32 s35, s35, {XB}
    v_add_u32 v{vXa}, s35, v{vL16}
    s_mul_i32 s34, {sRQ}, 49152
    s_add_u32 {sK}, {sK}, s34
    s_lshl_b32 s69, {sRQ}, 1
    s_add_u32 s69, s69, {sTP}
    s_lshl_b32 s34, s69, 9
    s_mul_i32 s35, {sT}, 49152
    s_add_u32 s34, s34, s35
    s_add_u32 {sSt1}, s34, {WS_ST}
    s_lshl_b32 s34, {sT}, 11
    s_add_u32 {sFS}, s34, {WS_FS}
    s_lshl_b32 s34, {sT}, 9
    s_add_u32 {sF1}, s34, {FC1}
    s_add_u32 {sF2}, s34, {FC2}
    s_lshl_b32 s34, {sT}, 4
    s_add_u32 s35, s34, {sQT}
    s_mul_i32 {sQ}, s35, 13312
    s_add_u32 {sQ}, {sQ}, {WS_Q}
    s_lshl_b32 s35, s69, 1
    s_add_u32 s34, s34, s35
    s_mul_i32 s34, s34, 13312
    s_add_u32 s34, s34, {WS_Q}
    s_mul_i32 s35, {sS}, 1536
    s_add_u32 s68, s34, s35
    s_lshl_b32 s35, {sS}, 6
    s_add_u32 s34, s34, s35
    s_add_u32 {sSt2}, s34, 12288
    v_lshrrev_b32 v4, 5, v1
    v_and_b32 v6, 31, v1
    v_lshlrev_b32 v{vSt}, 4, v6
    v_mul_u32_u24 v7, 24576, v4
    v_add_u32 v{vSt}, v{vSt}, v7
    s_add_u32 s34, {sM1K}, {LT}
    v_lshl_add_u32 v{vTb}, v6, 2, s34
    v_lshl_add_u32 v{vTb+1}, v3, 2, s34
    v_lshl_add_u32 v{vTb+2}, v2, 4, s34
    v_lshlrev_b32 v74, 2, v6
    v_lshlrev_b32 v7, 4, v3
    v_lshl_add_u32 v{vA}, v4, 8, v7
    v_lshl_add_u32 v{vA}, v5, 3, v{vA}
    v_mul_u32_u24 v{vB}, 13312, v5
    v_lshl_add_u32 v{vB}, v3, 2, v{vB}
    s_lshl_b32 {sOwn}, {sI}, 4
    s_lshl_b32 s34, {sW}, 2
    s_add_u32 {sOwn}, {sOwn}, s34
    s_mul_i32 {sVP}, {sT}, 196608
    s_mul_i32 s35, {sQT}, 12288
    s_add_u32 {sRs}, {sVP}, s35
    s_mul_i32 s34, {sCH}, 6144
    s_add_u32 {sRs}, {sRs}, s34
    s_mul_i32 s34, {sW}, 1536
    s_add_u32 {sRs}, {sRs}, s34
    s_add_u32 {sRs}, {sRs}, {WS_X1}
    s_add_u32 {sOut}, {sVP}, s35
    s_mul_i32 s35, {sCH}, 384
    s_add_u32 {sOut}, {sOut}, s35
    s_mul_i32 s35, {sW}, 96
    s_add_u32 {sOut}, {sOut}, s35
    s_mul_i32 s34, s69, 24576
    s_add_u32 s34, s34, {sVP}
    s_mul_i32 s35, {sS}, 3072
    s_add_u32 s34, s34, s35
    s_add_u32 s67, s34, {WS_VP - 8*3072}
    s_mul_i32 s35, {sCH}, 12288
    s_add_u32 {sVP}, {sVP}, s35
    s_mul_i32 s35, {sW}, 3072
    s_add_u32 {sVP}, {sVP}, s35
    s_add_u32 {sVP}, {sVP}, {WS_VP}
    s_lshl_b32 s69, s69, 7
    s_add_u32 s69, s69, {sFS}
    s_mul_i32 s20, {sW}, 12288
    s_add_u32 s20, s20, {XB}''')
    a('v_mov_b32 v4, v74')
    stamp(a, 'p2s')
    a('s_barrier')
    stamp(a, 'gsync')
    wq = []
    for ks in range(13):
        for u in range(3):
            d = WF + (ks*3+u)*4
            if ks < 12: wq.append(f'ds_read_b128 {vr(d,4)}, v{vWa} offset:{(ks*3+u)*1024}')
            else: wq.append(f'ds_read2_b32 {vr(d,2)}, v{vWb} offset0:{16*u} offset1:{16*u+48}\nds_read2_b32 {vr(d+2,2)}, v{vWb} offset0:{16*u+96} offset1:{16*u+144}')
    vm = []
    for ks in range(12):
        vm.append(((f's_add_u32 m0, s20, {ks*1024}\n' + (f's_add_u32 {sK}, {sK}, 4096\n' if ks else '') if ks % 4 == 0 else '') + f'buffer_load_dwordx4 v{vL16}, {SWS}, {sK} offen offset:{(ks&3)*1024} sc1 lds', f'x{ks>>2}'))
    st = [((f's_add_u32 {sSt1}, {sSt1}, 4096\n' if i else '') + f'buffer_load_dwordx4 {vr(SR+4*i,4)}, v{vSt}, {SWS}, {sSt1} offen sc1', 'st') for i in range(6)]
    SP_ = opt('stp', 8)
    for k, (t, tag) in enumerate(vm[:SP_] + st + vm[SP_:]):
        a(t, tag=tag)
        if k >= 1:
            for _ in range(3):
                if wq: a(wq.pop(0))
    for x in wq: a(x)
    late = [f's_mov_b32 s36, {fbits(1/384)}', f's_mov_b32 s37, {fbits(1e-5)}', ('v', 'st')]
    for k in (0, 1): late += [f'v_add_f32 v{SR+k}, v{SR+k}, v{SR+4+k}', f'v_add_f32 v{SR+8+k}, v{SR+8+k}, v{SR+12+k}', f'v_add_f32 v{SR+16+k}, v{SR+16+k}, v{SR+20+k}']
    for k in (0, 1): late += [f'v_add_f32 v{SR+k}, v{SR+k}, v{SR+8+k}']
    for k in (0, 1): late += [f'v_add_f32 v{SR+k}, v{SR+k}, v{SR+16+k}']
    late += f'''v_mov_b32 v{SR+2}, v{SR}
    v_mov_b32 v{SR+3}, v{SR+1}
    v_cmp_eq_u32 vcc, 3, v2
    v_permlane32_swap_b32 v{SR}, v{SR+2}
    v_permlane32_swap_b32 v{SR+1}, v{SR+3}
    v_add_f32 v{SR}, v{SR}, v{SR+2}
    v_add_f32 v{SR+1}, v{SR+1}, v{SR+3}
    v_mul_f32 v{SR}, s36, v{SR}
    v_mul_f32 v{SR+2}, v{SR}, v{SR}
    v_fma_f32 v{SR+1}, v{SR+1}, s36, -v{SR+2}
    v_max_f32 v{SR+1}, 0, v{SR+1}
    v_add_f32 v{SR+1}, s37, v{SR+1}
    v_rsq_f32 v{SR+1}, v{SR+1}
    v_cvt_pk_bf16_f32 v{SR}, -v{SR}, -v{SR}
    ds_write_b32 v{vTb}, v{SR}
    ds_write_b32 v{vTb}, v{SR+1} offset:128'''.split('\n')
    late.append((f'ds_read2_b32 {vr(SR+4,2)}, v{vTb+1} offset0:0 offset1:16', 't'))
    late.append((f'ds_read2_b32 {vr(RT,2)}, v{vTb+1} offset0:32 offset1:48', 't'))
    for t in range(2): late.append((f'ds_read_b128 {vr(RD+4*t,4)}, v{vTb+2} offset:{128+64*t}', 't'))
    late += ['s_nop 0']*3 + [('l', 't')]
    for t in range(2):
        late.append(f'v_cndmask_b32 v{MF+4*t}, v{SR+4+t}, 0, vcc')
        for d in range(1, 4): late.append(f'v_mov_b32 v{MF+4*t+d}, v{MF+4*t}')
    late += [f'v_mov_b32 v{ONE+k}, 0x3f803f80' for k in range(4)]
    late += [f'v_mul_f32 v{RT}, {fbits(SCALE2)}, v{RT}', f'v_mul_f32 v{RT+1}, {fbits(SCALE2)}, v{RT+1}']
    def xrd(ks):
        for t in range(2): a(f'ds_read_b128 {vr(XR + (ks%2)*8 + 4*t,4)}, v{vXa} offset:{t*12288 + ks*1024}', tag=f'f{ks}')
    a(f's_cmp_ge_u32 {sS}, 8\ns_cbranch_scc1 P2_v')
    for var in range(2):
        if var == 0: vmsave, lgsave = list(a.vm), list(a.lg)
        else: a.label('P2_v'); a.vm, a.lg = list(vmsave), list(lgsave)
        lq = list(late)
        a.wait(vm='x0'); a('s_barrier')
        stamp(a, 'k0')
        xrd(0)
        for ks in range(13):
            if ks == 12: run(lq, 1000)
            if ks in (3, 7): a.wait(vm=f'x{(ks+1)>>2}'); a('s_barrier'); stamp(a, f'k{ks+1}')
            if ks < 12: a.wait(lg=f'f{ks}')
            for u in range(3):
                wf = vr(WF + (ks*3+u)*4, 4)
                for t in range(2):
                    xf = vr(XR + (ks%2)*8 + 4*t, 4) if ks < 12 else vr(MF+4*t, 4)
                    d = vr(ACC + (t*3+u)*4, 4)
                    A, B = (wf, xf) if var == 0 else (xf, wf)
                    a(f'v_mfma_f32_16x16x32_bf16 {d}, {A}, {B}, {"0" if ks == 0 else d}')
                    if ks >= opt('lq0', 5): run(lq, 2)
                if u == 0 and ks + 1 < 12: xrd(ks + 1)
        stamp(a, 'mm2end')
        Lf = a.newlabel('fs')
        if var == 0:
            a(f's_cmp_lg_u32 {sS}, 0\ns_cbranch_scc1 {Lf}')
            a.cond = True
            a(f's_mov_b32 exec_hi, 0\nbuffer_store_dword v{SR}, v4, {SWS}, s69 offen {WT}\nbuffer_store_dword v{SR+1}, v4, {SWS}, s69 offen offset:1024 {WT}\ns_mov_b32 exec_hi, -1')
            a.cond = False
            a.label(Lf)
            for t in range(2):
                for u in range(3):
                    b = ACC + (t*3+u)*4
                    for d in range(2): a(f'v_pk_mul_f32 {vr(b+2*d,2)}, {vr(b+2*d,2)}, {vr(RT,2)} op_sel:[0,{t}] op_sel_hi:[1,{t}]')
                    for d in range(2): a(f'v_cvt_pk_bf16_f32 v{PK+(t*3+u)*2+d}, v{b+2*d}, v{b+2*d+1}')
            for t in range(2): a(f'v_mfma_f32_16x16x32_bf16 {vr(ACC+4*t,4)}, {vr(ONE,4)}, {vr(PK+6*t,4)}, 0')
            for t in range(2):
                if t:
                    a(f's_add_u32 s68, s68, 13312\ns_nop 1')
                    for tt in range(2): a(f'v_mfma_f32_16x16x16_bf16 {vr(ACC+8+4*tt,4)}, {vr(ONE,2)}, {vr(PK+6*tt+4,2)}, {vr(ACC+4*tt,4)}')
                for u in range(3): a(f'buffer_store_dwordx2 {vr(PK+(t*3+u)*2,2)}, v{vA}, {SWS}, s68 offen offset:{u*512} {WT}')
            a(f'''v_cmp_eq_u32 vcc, 1, v5
            v_cndmask_b32 v{AQ}, v{ACC+8}, v{ACC+12}, vcc
            v_cvt_pk_bf16_f32 v{AQ+1}, v{AQ}, v{AQ}
            v_lshlrev_b32 v{AQ+1}, 16, v{AQ+1}
            v_sub_f32 v{AQ+1}, v{AQ}, v{AQ+1}
            v_cvt_pk_bf16_f32 v{AQ}, v{AQ}, v{AQ+1}
            s_mov_b32 exec_hi, 0
            buffer_store_dword v{AQ}, v{vB}, {SWS}, {sSt2} offen {WT}
            s_mov_b32 exec_hi, -1
            s_branch P2_j''')
        else:
            for u in range(3):
                for t in range(2):
                    b = ACC + (t*3+u)*4
                    for d in range(2): a(f'v_pk_mul_f32 {vr(b+2*d,2)}, {vr(b+2*d,2)}, {vr(RD+4*t+2*d,2)}')
                    for d in range(2): a(f'v_cvt_pk_bf16_f32 v{PK+u*4+t*2+d}, v{b+2*d}, v{b+2*d+1}')
                a(f'buffer_store_dwordx4 {vr(PK+4*u,4)}, v{vL16}, {SWS}, s67 offen offset:{u*1024} {WT}')
    a.label('P2_j')
    a(f'v_add_u32 v6, s20, v{vL16}')
    for ks in range(12): a(f'ds_read_b128 {vr(KF+4*ks,4)}, v6 offset:{ks*1024}')
    attn_addr(0)
    vMa, vRa, vPt = 54, 55, 13
    tile_addr(sRQ, 0, vMa, vRa, vPt)
    a.wait_all()
    flag(a, sOwn, sF1, sFast, 6, '')
    stamp(a, 'flag2')
    RS = 48
    for u in range(3): a(f'buffer_load_dwordx2 {vr(RS+2*u,2)}, v{vA}, {SWS}, {sRs} offen offset:{u*512} sc1', tag='rs')
    vOW, vOR, vOG = 8, 60, 6
    a(f's_lshl_b32 s35, {sW}, 11\ns_add_u32 s35, s35, {LO}\nv_mul_u32_u24 v{vOW}, 112, v3\nv_lshl_add_u32 v{vOW}, v2, 3, v{vOW}\nv_add_u32 v{vOW}, s35, v{vOW}')
    for h in range(2):
        a(f'''v_add_u32 v56, {64*h}, v1
        v_mul_u32_u24 v57, 43, v56
        v_lshrrev_b32 v57, 8, v57
        v_mul_u32_u24 v58, 6, v57
        v_sub_u32 v58, v56, v58
        v_lshlrev_b32 v58, 4, v58
        v_mul_u32_u24 v56, 112, v57
        v_add3_u32 v{vOR+h}, v56, v58, s35
        v_mul_u32_u24 v56, 768, v57
        v_add_u32 v{vOG+h}, v56, v58''')
    a(f'''s_add_u32 {sT1}, {sQ}, {sM1K}
    s_add_u32 s21, {sQ}, 12288
    s_mov_b32 s22, {LQ + 12288}
    s_lshr_b32 s34, {sW}, 1
    s_and_b32 s35, {sW}, 1
    s_lshl_b32 s35, s35, 10
    s_add_u32 s23, {sFS}, s35
    s_add_u32 s35, s35, {LS}
    s_cmp_eq_u32 s34, 1
    s_cselect_b32 s21, s23, s21
    s_cselect_b32 s22, s35, s22''')
    lsync(a, 32, True, sF1, sF2, sOwn, lambda: None, 32, 0)
    stamp(a, 'sync2')
    for i in range(3):
        a(f's_add_u32 {sT0}, {sT1}, {i*4096}\ns_add_u32 m0, {sM1K}, {LQ + i*4096}\nbuffer_load_dwordx4 v{vL16}, {SWS}, {sT0} offen sc1 lds', tag='q')
    a(f's_mov_b32 m0, s22\nbuffer_load_dwordx4 v{vL16}, {SWS}, s21 offen sc1 lds', tag='q')
    vq = []
    for k8 in range(8):
        for u in range(3):
            vq.append(((f's_add_u32 {sVP}, {sVP}, 24576\n' if k8 and u == 0 else '') + f'buffer_load_dwordx4 {vr(VF+(k8*3+u)*4,4)}, v{vL16}, {SWS}, {sVP} offen offset:{u*1024} sc1', f'vp{k8}'))
    def fill():
        if vq: x = vq.pop(0); a(x[0], tag=x[1])
    for _ in range(opt('nv0', 4)): fill()
    a.wait(vm='q')
    a('s_barrier')
    stamp(a, 'q_in')
    scores(1, KF, 56, RD, MF, vMa, vRa, vPt, fill, 0)
    stamp(a, 'p_done')
    while vq: fill()
    PF, PA, RF, ML = 160, 32, 200, 212
    for k8 in range(8): a(f'ds_read_b128 {vr(PF+4*k8,4)}, v{vL16} offset:{LP + k8*1024}', tag=f'p{k8}')
    a(f'ds_read_b128 {vr(ML,4)}, v{vMLr} offset:512\nds_read_b128 {vr(ML+4,4)}, v{vMLr} offset:528', tag='ml')
    fx = ['s_mov_b32 s36, 0xffff0000'] + [x for u in range(3) for d in range(2) for x in (f'v_lshlrev_b32 v{RF+4*u+2*d}, 16, v{RS+2*u+d}', f'v_and_b32 v{RF+4*u+2*d+1}, s36, v{RS+2*u+d}')]
    fx += [('l', 'ml')] + [f'v_add_f32 v{ML+i}, v{ML+i}, v{ML+4+i}' for i in range(4)] + [f'v_add_f32 v{ML}, v{ML}, v{ML+1}', f'v_add_f32 v{ML+2}, v{ML+2}, v{ML+3}', f'v_add_f32 v{ML}, v{ML}, v{ML+2}', f'v_rcp_f32 v{ML}, v{ML}']
    for k8 in range(8):
        a.wait(vm=f'vp{k8}', lg=f'p{k8}')
        for u in range(3):
            d = vr(PA + 4*u, 4)
            a(f'v_mfma_f32_16x16x32_bf16 {d}, {vr(VF+(k8*3+u)*4,4)}, {vr(PF+4*k8,4)}, {"0" if k8 == 0 else d}')
            run(fx, 1 if k8 < 4 else 2)
    run(fx, 1000)
    stamp(a, 'pv_done')
    OP = 192
    for u in range(3):
        for d in range(2): a(f'v_pk_fma_f32 {vr(RF+4*u+2*d,2)}, {vr(PA+4*u+2*d,2)}, {vr(ML,2)}, {vr(RF+4*u+2*d,2)} op_sel_hi:[1,0,1]')
        for d in range(2): a(f'v_cvt_pk_bf16_f32 v{OP+2*u+d}, v{RF+4*u+2*d}, v{RF+4*u+2*d+1}')
        a(f'ds_write_b64 v{vOW}, {vr(OP+2*u,2)} offset:{u*32}')
    a(f'ds_read_b128 {vr(44,4)}, v{vOR}', tag='o0')
    a(f's_mov_b32 exec_hi, 0\nds_read_b128 {vr(48,4)}, v{vOR+1}\ns_mov_b32 exec_hi, -1', tag='o1')
    a.wait(lg='o0')
    a(f'buffer_store_dwordx4 {vr(44,4)}, v{vOG}, {SOUT}, {sOut} offen')
    a.wait(lg='o1')
    a(f's_mov_b32 exec_hi, 0\nbuffer_store_dwordx4 {vr(48,4)}, v{vOG+1}, {SOUT}, {sOut} offen\ns_mov_b32 exec_hi, -1')
    if PROFILE: a.wait_all()
    stamp(a, 'end')
    stamp_flush(a)
    a('s_endpgm')
    a.label('P2_l'); a.vm = []; a.lg = []
    stamp(a, 'Lp2')
    if opt('hint', 1):
        L = a.newlabel('hs')
        a(f's_cmp_lg_u32 {sI}, 31\ns_cbranch_scc1 {L}\ns_cmp_lg_u32 {sW}, 0\ns_cbranch_scc1 {L}')
        a.cond = True
        a(f's_lshl_b32 s34, {sT}, 7\ns_mov_b32 s35, {FP + 1024}'); flag(a, 's34', 's35', sFast, 52, ''); a.vm.pop()
        a.cond = False
        a.label(L)
    a(f's_and_b32 s68, {sI}, 7\ns_mul_i32 s68, s68, 79872\ns_mul_i32 s69, {sW}, 20480\ns_add_u32 s68, s68, s69\ns_add_u32 s68, s68, {WS_W}')
    wpoll(a)
    for i in range(20):
        if i % 4 == 0: a(f's_add_u32 m0, s69, {LW + i*1024}' + ('\ns_add_u32 s68, s68, 4096' if i else ''))
        a(f'buffer_load_dwordx4 v{vL16}, {SWS}, s68 offen offset:{(i&3)*1024} sc1 lds')
    common()
    attn_addr(1)
    KL, SAL, RDL, MFL = 112, 48, 60, 72
    vMa, vRa, vPt = 84, 87, 90
    SK = ['s20', 's21', 's22']
    for k in range(3):
        a(f's_add_u32 s23, {sRQ}, {k+1}\ns_and_b32 s23, s23, 3\ns_mul_i32 s34, s23, 49152\ns_add_u32 {SK[k]}, {sK}, s34')
        tile_addr('s23', k, vMa, vRa, vPt)
    if opt('hint', 1):
        Lh, Lg = a.newlabel('hw'), a.newlabel('hg')
        a(f's_cmp_ge_u32 {sI}, 8\ns_cbranch_scc1 {Lg}\ns_lshl_b32 s34, {sT}, 7\ns_add_u32 s34, s34, {FP + 1024}\nv_mov_b32 v34, 0\ns_mov_b32 s35, 64')
        a.label(Lh)
        a(f'''s_mov_b64 exec, 1
        buffer_load_dword v35, v34, {SWS}, s34 offen sc1
        s_waitcnt vmcnt(0)
        v_cmp_ne_u32 vcc, {sFast}, v35
        s_mov_b64 exec, -1
        s_cbranch_vccz {Lg}
        s_sub_u32 s35, s35, 1
        s_cmp_lg_u32 s35, 0
        s_cbranch_scc1 {Lh}''')
        a.label(Lg); a.vm = []
    a(f's_mul_i32 s67, {sW}, {48*128}\ns_add_u32 s67, s67, {GX}')
    gpoll(a, 48, 7, 's67', 33)
    stamp(a, 'Lxf')
    a('s_barrier')
    L = a.newlabel('be')
    a(f's_or_b32 s34, {sW}, s2\ns_cmp_lg_u32 s34, 0\ns_cbranch_scc1 {L}')
    a.cond = True; a(f's_mov_b32 s34, {WE}'); flag(a, '0', 's34', sTag, 40, 'sc0 sc1'); a.vm.pop(); a.cond = False
    a.label(L)
    kq = [(t, ks) for t in range(3) for ks in range(12)]
    def kl(n):
        for _ in range(n):
            if not kq: return
            t, ks = kq.pop(0)
            if ks % 4 == 0 and ks: a(f's_add_u32 {SK[t]}, {SK[t]}, 4096')
            a(f'buffer_load_dwordx4 {vr(KL+(t*12+ks)*4,4)}, v{vL16}, {SWS}, {SK[t]} offen offset:{(ks&3)*1024} sc1')
    a('s_barrier'); kl(opt('kb0', 3))
    a('s_barrier'); kl(opt('kb1', 5))
    a('s_barrier'); kl(opt('kb2', 6))
    a.wait_all(lg=False)
    kl(opt('kb3', 8))
    a.wait_all(lg=False)
    kl(36)
    stamp(a, 'Lkiss')
    a.wait_all()
    stamp(a, 'Lk')
    a('s_barrier')
    if opt('prio', 1) == 3: a('s_setprio 1')
    scores(3, KL, SAL, RDL, MFL, vMa, vRa, vPt, lambda: None, 1)
    stamp_flush(a, 'L')
```

```python
import sys, math, struct
sys.path.insert(0, 'gen')
from asm import Asm
def opt(name, default):
    for x in sys.argv:
        if x.startswith(f'--{name}='): return int(x.split('=')[1])
    return default
HP = [x[5:] for x in sys.argv if x.startswith('--hp=')]
PROFILE = '--prof' in sys.argv or bool(HP)
SKIP = []
for x in sys.argv:
    if x.startswith('--skip='): SKIP = x[7:].split(',')
WS_W2 = 0x000000
WS_S  = 0x180000
WS_X1 = 0x240000
WS_W  = 0x3E0000
WS_Q  = 0x480000
WS_VP = 0x620000
WS_ST = 0xF00000
WS_FS = 0xF70000
FS1, FS2 = 0x7A0000, 0x7A2000
FC1, FC2 = 0x7A4000, 0x7A5000
GW2, GW, GX, WE, FP = 0x7A8000, 0x7AA000, 0x7AC000, 0x7B4000, 0x7A6000
WS_PROF = 0x7C0000
SLOW = 0x800000
WS_SIZE = 0x1000000
LIM_FAST = opt('lim', 24)
LIM_SLOW = 1 << 20
SCALE2 = 384 ** -0.5 * math.log2(math.e)
def fbits(x): return '0x%08x' % struct.unpack('<I', struct.pack('<f', x))[0]
def vr(b, n): return f'v[{b}:{b+n-1}]' if n > 1 else f'v{b}'
SX, SWQ, SWO, SWS, SOUT = 's[4:7]', 's[8:11]', 's[12:15]', 's[16:19]', 's[24:27]'
WT = 'sc0 sc1' if opt('wt', 1) == 2 else 'sc1'
def srd(a, base, ptr, size):
    a(f's_mov_b32 s{base}, s{ptr}\ns_mov_b32 s{base+1}, s{ptr+1}\ns_mov_b32 s{base+2}, {size}\ns_mov_b32 s{base+3}, 0x20000')
STAMP_REGS = [70, 72, 74, 76, 78, 80, 82, 84, 86, 88, 90, 92, 94, 96, 98, 100]
class St:
    names = {'C': [], 'L': []}
def stamp(a, name):
    if not PROFILE or name in SKIP or (HP and name not in ('start', HP[0])): return
    lst = St.names['L' if name.startswith('L') else 'C']
    if name not in lst: lst.append(name)
    k = lst.index(name)
    a(f's_memrealtime s[{STAMP_REGS[k]}:{STAMP_REGS[k]+1}]')
def hp_end(a, role):
    name = HP[0]
    lst = St.names[role]
    src = f's{STAMP_REGS[lst.index(name)]}' if name in lst else 's70'
    L1, L2 = a.newlabel('hp'), a.newlabel('hp')
    a(f's_waitcnt vmcnt(0) lgkmcnt(0)\nv_mov_b32 v2, {WS_PROF + 0x30000}')
    a.label(L1)
    a(f'''buffer_load_dwordx2 v[4:5], v2, {SWS}, 0 offen sc0 sc1
    s_waitcnt vmcnt(0)
    v_readfirstlane_b32 s34, v4
    v_readfirstlane_b32 s35, v5
    s_cmp_lg_u32 s35, {sTag}
    s_cbranch_scc1 {L1}
    s_sub_u32 s35, {src}, s34
    s_max_i32 s35, s35, 0
    s_mul_i32 s35, s35, 4
    s_add_u32 s35, s35, 4000''')
    a.label(L2)
    a(f'''s_memrealtime s[36:37]
    s_waitcnt lgkmcnt(0)
    s_sub_u32 s36, s36, s34
    s_cmp_lt_i32 s36, s35
    s_cbranch_scc1 {L2}''')
def hp_t0(a):
    if not HP: return
    L = a.newlabel('hq')
    a(f's_or_b32 s34, s2, {sW}\ns_or_b32 s34, s34, {sRole}\ns_cmp_lg_u32 s34, 0\ns_cbranch_scc1 {L}')
    a(f'v_mov_b32 v2, {WS_PROF + 0x30000}\nv_mov_b32 v4, s70\nv_mov_b32 v5, {sTag}\nbuffer_store_dwordx2 v[4:5], v2, {SWS}, 0 offen sc0 sc1')
    a.vm.pop()
    a.label(L)
def stamp_flush(a, role='C'):
    if HP: hp_end(a, role); return
    if not PROFILE: return
    a('s_waitcnt lgkmcnt(0)')
    for k in range(16): a(f'v_mov_b32 v{100+k}, s{STAMP_REGS[k]}')
    a(f'''v_lshrrev_b32 v8, 6, v0
    s_lshl_b32 s34, s2, 3
    v_add_u32 v8, s34, v8
    v_lshlrev_b32 v8, 6, v8
    v_add_u32 v8, {WS_PROF}, v8''')
    for k in range(4): a(f'buffer_store_dwordx4 v[{100+4*k}:{103+4*k}], v8, {SWS}, 0 offen offset:{16*k}')

sXCD, sW, sI, sRole = 's40', 's41', 's42', 's43'
sTag, sFast, sDelta = 's44', 's45', 's46'
sM1K = 's47'
TAIL = []

def lanes(a, n):
    a(f's_mov_b32 exec_lo, {hex((1 << min(n, 32)) - 1)}\ns_mov_b32 exec_hi, {hex((1 << max(n-32, 0)) - 1)}')
def gpoll(a, n, vA, sBase, vT):
    Lf, Lr, Ld = a.newlabel('gp'), a.newlabel('gr'), a.newlabel('gd')
    lanes(a, n)
    a(f's_mov_b32 s35, {LIM_SLOW}')
    a.label(Lf)
    a(f'buffer_load_dword v{vT}, v{vA}, {SWS}, {sBase} offen sc1')
    a.wait_all(lg=False)
    a(f'v_cmp_ne_u32 vcc, {sTag}, v{vT}\ns_cbranch_vccnz {Lr}')
    a.label(Ld)
    a('s_mov_b64 exec, -1')
    def tail():
        a.label(Lr)
        if opt('gsl', 0): a(f's_sleep {opt("gsl", 0)}')
        a(f's_sub_u32 s35, s35, 1\ns_cmp_lg_u32 s35, 0\ns_cbranch_scc1 {Lf}\ns_branch {Ld}')
    TAIL.append(tail)
def lsync(a, n, wide, sF1, sF2, sOwn, republish, vT, delta=SLOW):
    Lf, Lr, Ld, Ls = a.newlabel('lp'), a.newlabel('lr'), a.newlabel('ld'), a.newlabel('ls')
    vA, vD, vE = vT, vT + 2, vT + 6
    w = 4 if wide else 1
    ld = 'buffer_load_dwordx4' if wide else 'buffer_load_dword'
    def cmp(v, s):
        if not wide: a(f'v_cmp_ne_u32 vcc, {s}, v{v}'); return
        for k in range(4): a(f'v_xor_b32 v{v+k}, {s}, v{v+k}')
        a(f'v_or_b32 v{v}, v{v}, v{v+1}\nv_or3_b32 v{v}, v{v}, v{v+2}, v{v+3}\nv_cmp_ne_u32 vcc, 0, v{v}')
    lanes(a, n)
    a(f'v_lshlrev_b32 v{vA}, {4 if wide else 2}, v1\ns_mov_b32 {sDelta}, 0\ns_mov_b32 s35, {LIM_FAST}')
    a.label(Lf)
    a(f'{ld} {vr(vD, w)}, v{vA}, {SWS}, {sF1} offen sc1')
    a.wait_all(lg=False)
    cmp(vD, sFast)
    a(f's_cbranch_vccnz {Lr}')
    a.label(Ld)
    a('s_mov_b64 exec, -1')
    def tail():
        a.label(Lr)
        a(f's_sub_u32 s35, s35, 1\ns_cmp_lg_u32 s35, 0\ns_cbranch_scc1 {Lf}')
        if republish:
            a('s_mov_b64 exec, -1')
            republish()
            a.wait_all(lg=False)
            a(f'''s_mov_b64 exec, 1
            v_mov_b32 v{vD}, {sOwn}
            v_mov_b32 v{vD+1}, {sTag}
            buffer_store_dword v{vD+1}, v{vD}, {SWS}, {sF2} offen sc0 sc1''')
            lanes(a, n)
        a(f's_mov_b32 s35, {LIM_SLOW}')
        a.label(Ls)
        a(f'{ld} {vr(vD, w)}, v{vA}, {SWS}, {sF1} offen sc1\n{ld} {vr(vE, w)}, v{vA}, {SWS}, {sF2} offen sc0 sc1')
        a.wait_all(lg=False)
        cmp(vD, sFast)
        a(f's_cbranch_vccz {Ld}')
        cmp(vE, sTag)
        a(f's_mov_b32 {sDelta}, {delta}\ns_cbranch_vccz {Ld}\ns_mov_b32 {sDelta}, 0\ns_sub_u32 s35, s35, 1\ns_cmp_lg_u32 s35, 0\ns_cbranch_scc1 {Ls}\ns_branch {Ld}')
    TAIL.append(tail)
def flag(a, sOff, sBase, sVal, vT, fl):
    a(f'''s_mov_b64 exec, 1
    v_mov_b32 v{vT}, {sOff}
    v_mov_b32 v{vT+1}, {sVal}
    buffer_store_dword v{vT+1}, v{vT}, {SWS}, {sBase} offen {fl}
    s_mov_b64 exec, -1''')
def gflag(a, sOff, sBase, vT):
    a(f'''s_mov_b64 exec, 15
    v_lshl_add_u32 v{vT}, v1, 4, {sOff}
    v_mov_b32 v{vT+2}, {sTag}
    v_mov_b32 v{vT+3}, {sTag}
    v_mov_b32 v{vT+4}, {sTag}
    v_mov_b32 v{vT+5}, {sTag}
    buffer_store_dwordx4 {vr(vT+2,4)}, v{vT}, {SWS}, {sBase} offen sc0 sc1
    s_mov_b64 exec, -1''')
def flag_w0(a, sOff, sBase, vT):
    L = a.newlabel('f0')
    a(f's_cmp_lg_u32 {sW}, 0\ns_cbranch_scc1 {L}')
    a.cond = True; gflag(a, sOff, sBase, vT); a.vm.pop(); a.cond = False
    a.label(L)
def tag_ready(a):
    a(f'''s_mul_i32 {sTag}, {sTag}, 0x9e3779b1
    s_add_u32 {sTag}, {sTag}, 0x7f4a7c15
    s_add_u32 {sFast}, {sFast}, {sTag}''')

LW34 = 102400
LSX = 147456
def wpoll(a):
    a(f'v_lshlrev_b32 v7, 7, v1\ns_mov_b32 s67, {GW}')
    gpoll(a, 64, 7, 's67', 33)
    stamp(a, 'Lwf')
def wcopy(a):
    a(f's_and_b32 s68, {sI}, 15\ns_mul_i32 s68, s68, 39936\ns_mul_i32 s34, {sW}, 10240\ns_add_u32 s68, s68, s34\ns_add_u32 s68, s68, {WS_W}\ns_add_u32 s34, s34, {LW34}')
    for i in range(10):
        if i % 4 == 0: a(f's_add_u32 m0, s34, {i*1024}' + ('\ns_add_u32 s68, s68, 4096' if i else ''))
        a(f'buffer_load_dwordx4 v10, {SWS}, s68 offen offset:{(i&3)*1024} sc1 lds')
def pages(a):
    a(f"""s_mov_b64 exec, 0xffff
    v_lshlrev_b32 v52, 20, v1
    buffer_load_dword v53, v52, {SWS}, 0 offen
    s_mov_b64 exec, 3
    buffer_load_dword v54, v52, {SOUT}, 0 offen
    s_mov_b64 exec, -1""")
def touch2(a):
    Lt = a.newlabel('tc'); Lu = a.newlabel('tc')
    a(f"""s_and_b32 s36, {sI}, 15
    s_lshr_b32 s37, {sI}, 4
    s_cmp_ge_u32 s36, 8
    s_cbranch_scc1 {Lt}
    s_lshl_b32 s34, {sXCD}, 4
    s_lshl_b32 s35, s37, 3
    s_add_u32 s34, s34, s35
    s_lshl_b32 s35, {sW}, 1
    s_add_u32 s34, s34, s35
    s_mul_i32 s34, s34, 13312
    s_mul_i32 s35, s36, 1536
    s_add_u32 s34, s34, s35
    s_add_u32 s34, s34, {WS_Q}
    s_add_u32 s35, s34, 13312""")
    for sb in ('s34', 's35'): a(f'buffer_load_dwordx4 v[64:67], v10, {SWS}, {sb} offen\ns_mov_b32 exec_hi, 0\nbuffer_load_dwordx4 v[64:67], v10, {SWS}, {sb} offen offset:1024\ns_mov_b32 exec_hi, -1')
    a(f's_branch {Lu}'); a.label(Lt)
    a(f"""s_lshl_b32 s34, {sW}, 1
    s_add_u32 s34, s34, s37
    s_lshl_b32 s35, {sXCD}, 3
    s_add_u32 s34, s34, s35
    s_mul_i32 s34, s34, 24576
    s_mul_i32 s35, s36, 3072
    s_add_u32 s34, s34, s35
    s_add_u32 s34, s34, {WS_VP - 8*3072}""")
    for u in range(3): a(f'buffer_load_dwordx4 v[64:67], v10, {SWS}, s34 offen offset:{u*1024}')
    a.label(Lu)
    a(f"""s_lshr_b32 s34, {sI}, 1
    s_lshl_b32 s35, {sXCD}, 4
    s_add_u32 s34, s34, s35
    s_mul_i32 s34, s34, 13312
    s_add_u32 s34, s34, {WS_Q + 12288}
    s_lshl_b32 s35, {sW}, 8
    v_lshl_add_u32 v68, v1, 2, s35
    buffer_load_dword v64, v68, {SWS}, s34 offen
    s_lshl_b32 s34, {sXCD}, 9
    s_add_u32 s34, s34, {FC1}
    v_lshlrev_b32 v68, 3, v1
    buffer_load_dword v64, v68, {SWS}, s34 offen""")
    a.vm = []

def build():
    a = Asm()
    def emit(x):
        if isinstance(x, tuple): a(x[0], tag=x[1])
        else: a(x)
    a(f'''s_cmp_ge_u32 s2, 256
    s_cbranch_scc1 K_end
    s_load_dwordx4 s[20:23], s[0:1], 0
    s_load_dwordx4 s[28:31], s[0:1], 16
    s_load_dwordx4 s[36:39], s[0:1], 32
    s_load_dwordx2 s[32:33], s[0:1], 56
    v_and_b32 v1, 63, v0
    v_lshrrev_b32 v2, 6, v0
    s_and_b32 {sXCD}, s2, 7
    v_readfirstlane_b32 {sW}, v2
    s_lshr_b32 {sI}, s2, 3''')
    stamp(a, 'start')
    if HP:
        St.names['L'].append('Lstart')
        a('s_waitcnt lgkmcnt(0)')
        for r in STAMP_REGS[1:]: a(f's_mov_b32 s{r}, s70')
    a('s_getpc_b64 s[48:49]')
    a.label('K_pc')
    a(f'''s_sub_u32 s48, s48, K_pc-{KNAME}
    s_subb_u32 s49, s49, 0
    s_lshl_b32 s34, {sI}, 3
    s_add_u32 s34, s34, {sW}
    s_and_b32 s34, s34, 31
    s_lshl_b32 s34, s34, 10
    v_lshl_add_u32 v9, v1, 4, s34
    global_load_dwordx4 v[252:255], v9, s[48:49]
    s_lshr_b32 {sRole}, {sW}, 2
    s_and_b32 {sW}, {sW}, 3
    s_lshl_b32 {sM1K}, {sW}, 10
    s_getreg_b32 {sFast}, hwreg(HW_REG_XCC_ID)
    s_and_b32 {sFast}, {sFast}, 15
    s_add_u32 {sFast}, {sFast}, 1
    v_lshrrev_b32 v2, 3, v1
    v_and_b32 v3, 7, v1
    v_lshlrev_b32 v10, 4, v1
    s_cmp_lt_u32 {sI}, 8
    s_cbranch_scc1 K_pre''')
    PRIO = opt('prio', 1)
    T8, G8, vL16 = 2, 3, 10
    sG, sJ, sP, sHF, sX, sM = 's50', 's51', 's52', 's53', 's54', 's55'
    sR = ['s56', 's57', 's58', 's59', 's60', 's61']
    ROT = opt('rot', 7)
    a(f'''s_sub_u32 {sJ}, {sI}, 8
    s_mul_i32 s34, {sJ}, 43
    s_lshr_b32 s34, s34, 8
    s_mul_i32 s35, s34, 6
    s_sub_u32 {sJ}, {sJ}, s35
    s_lshl_b32 {sG}, {sXCD}, 2
    s_add_u32 {sG}, {sG}, s34
    s_lshr_b32 {sP}, {sW}, 1
    s_and_b32 {sHF}, {sW}, 1
    s_lshl_b32 {sM}, {sW}, 11''')
    def rot_r(dst):
        if ROT == 4: a(f's_mul_i32 {dst}, {sXCD}, 3\ns_lshr_b32 {dst}, {dst}, 2')
        elif ROT == 5: a(f's_add_u32 {dst}, {sXCD}, 4\ns_and_b32 {dst}, {dst}, 7\ns_mul_i32 {dst}, {dst}, 3\ns_lshr_b32 {dst}, {dst}, 2')
        elif ROT == 6: a(f's_and_b32 {dst}, {sG}, 1\ns_mul_i32 {dst}, {dst}, 4\ns_add_u32 {dst}, {dst}, {sXCD}\ns_and_b32 {dst}, {dst}, 7\ns_mul_i32 {dst}, {dst}, 3\ns_lshr_b32 {dst}, {dst}, 2')
        elif ROT == 7: a(f's_mul_i32 {dst}, {sXCD}, 3\ns_lshr_b32 {dst}, {dst}, 2\ns_add_u32 {dst}, {dst}, {sJ}\ns_cmp_ge_u32 {dst}, 6\ns_cselect_b32 s34, 6, 0\ns_sub_u32 {dst}, {dst}, s34')
        elif ROT == 8: a(f's_and_b32 {dst}, {sG}, 3\ns_add_u32 {dst}, {dst}, {sXCD}\ns_add_u32 {dst}, {dst}, {sJ}\ns_mul_i32 s34, {dst}, 43\ns_lshr_b32 s34, s34, 8\ns_mul_i32 s34, s34, 6\ns_sub_u32 {dst}, {dst}, s34')
    if ROT: rot_r('s3')
    a(f's_cmp_lg_u32 {sRole}, 0\ns_cbranch_scc1 A_ld')
    if PRIO == 1: a('s_setprio 1')
    XS = lambda c: c*8192
    WQ0 = 49152
    W2L = 49152
    vXF, vAW, vSst, vX1, vST, vRes, vBP, vBS, vW2, vW2b = 12, 16, 18, 19, 20, 21, 22, 23, 24, 25
    XF, WF, ACC, CS, MA, SEL, CA, CB = 160, 32, 64, 96, 104, 108, 112, 120
    sSst, sSld, sX1, sST, sFS1, sFS2, sOwn, sGX = 's56', 's57', 's58', 's59', 's60', 's61', 's62', 's63'
    a(f'''v_and_b32 v4, 31, v1
    v_lshrrev_b32 v5, 5, v1
    v_bfe_u32 v6, v1, 1, 3
    v_xor_b32 v6, v6, v5
    v_lshlrev_b32 v4, 7, v4
    v_lshl_add_u32 v4, v6, 4, v4
    s_lshl_b32 s35, {sP}, 12
    v_add_u32 v{vXF}, s35, v4
    v_xor_b32 v{vXF+1}, 32, v{vXF}
    v_xor_b32 v{vXF+2}, 64, v{vXF}
    v_xor_b32 v{vXF+3}, 96, v{vXF}
    v_bfe_u32 v6, v1, 2, 2
    v_lshl_add_u32 v4, v5, 3, v6
    v_lshlrev_b32 v4, 7, v4
    v_lshrrev_b32 v7, 1, v6
    v_xor_b32 v7, {sHF}, v7
    v_lshl_add_u32 v4, v7, 6, v4
    v_bfe_u32 v7, v1, 4, 1
    v_lshl_add_u32 v4, v7, 5, v4
    v_and_b32 v8, 1, v1
    v_lshl_add_u32 v4, v8, 4, v4
    v_bfe_u32 v8, v1, 1, 1
    v_lshl_add_u32 v4, v8, 3, v4
    v_add_u32 v{vAW}, {WQ0}, v4
    v_add_u32 v{vAW+1}, {WQ0 + 65536}, v4
    v_bfe_u32 v8, v1, 2, 1
    v_cmp_eq_u32 vcc, v8, v7
    v_mov_b32 v7, 0x3f803f80
    s_mov_b32 s34, {WE}
    s_waitcnt lgkmcnt(0)
    s_load_dword {sTag}, s[32:33], s34''')
    for k in range(4): a(f'v_cndmask_b32 v{SEL+k}, 0, v7, vcc')
    srd(a, 16, 32, WS_SIZE); srd(a, 24, 38, 1572864)
    a(f'''v_lshlrev_b32 v{vSst}, 9, v5
    v_lshl_add_u32 v{vSst}, v{G8}, 6, v{vSst}
    v_bfe_u32 v6, v1, 3, 2
    v_lshl_add_u32 v{vSst}, v6, 4, v{vSst}
    s_mul_i32 s34, {sG}, 24576
    s_lshl_b32 s35, {sP}, 10
    s_add_u32 s34, s34, s35
    s_add_u32 {sSld}, s34, {WS_S}
    s_lshl_b32 s35, {sJ}, 1
    s_add_u32 s35, s35, {sHF}
    s_lshl_b32 {sOwn}, s35, 2
    s_lshl_b32 s3{6}, s35, 11
    s_add_u32 {sSst}, {sSld}, s36
    s_lshl_b32 s34, {sG}, 1
    s_add_u32 s34, s34, {sP}
    s_lshl_b32 s34, s34, 7
    s_add_u32 {sFS1}, s34, {FS1}
    s_add_u32 {sFS2}, s34, {FS2}''')
    a(f'''v_bfe_u32 v6, v1, 2, 3
    v_and_b32 v7, 3, v1
    s_mov_b32 s34, 196608
    v_mul_lo_u32 v{vX1}, v6, s34
    v_lshl_add_u32 v{vX1}, v5, 8, v{vX1}
    v_lshl_add_u32 v{vX1}, v7, 4, v{vX1}
    v_mul_u32_u24 v{vST}, 49152, v6
    v_lshl_add_u32 v{vST}, v7, 4, v{vST}
    v_lshl_add_u32 v8, v7, 3, v6
    v_lshlrev_b32 v{vBP}, 2, v8
    v_lshlrev_b32 v{vBS}, 5, v7
    v_lshl_add_u32 v{vBS}, v5, 4, v{vBS}
    v_bfe_u32 v4, v8, 1, 3
    s_lshl_b32 s34, {sHF}, 2
    v_xor_b32 v4, s34, v4
    v_xor_b32 v4, v4, v5
    v_lshlrev_b32 v4, 4, v4
    v_lshl_add_u32 v4, v8, 7, v4''')
    if ROT: a(f's_add_u32 s34, {sJ}, 6\ns_sub_u32 s34, s34, s3\ns_cmp_ge_u32 s34, 6\ns_cselect_b32 s36, 6, 0\ns_sub_u32 s34, s34, s36\ns_lshl_b32 s34, s34, 13')
    else: a(f's_lshl_b32 s34, {sJ}, 13')
    a(f'''s_lshl_b32 s36, {sP}, 12
    s_add_u32 s34, s34, s36
    v_add_u32 v{vRes}, s34, v4
    s_lshl_b32 s34, {sHF}, 10
    s_add_u32 s34, s34, {W2L}
    v_add_u32 v{vW2}, s34, v{vL16}
    v_and_b32 v4, 31, v1
    v_lshlrev_b32 v4, 2, v4
    s_lshl_b32 s34, {sHF}, 7
    s_add_u32 s34, s34, {W2L + 49152}
    v_add_u32 v4, s34, v4
    v_lshl_add_u32 v{vW2b}, v5, 10, v4
    v_add_u32 v{vW2b+1}, 2048, v4
    s_lshr_b32 s34, {sG}, 1
    s_mul_i32 s34, s34, 12288
    s_lshl_b32 s36, s35, 10
    s_add_u32 s34, s34, s36
    s_and_b32 s36, {sG}, 1
    s_lshl_b32 s36, s36, 7
    s_add_u32 s34, s34, s36
    s_lshl_b32 s36, {sP}, 6
    s_add_u32 s34, s34, s36
    s_add_u32 {sX1}, s34, {WS_X1}
    s_lshl_b32 s34, s35, 12
    s_add_u32 s34, s34, s36
    s_lshl_b32 s36, {sG}, 7
    s_add_u32 s34, s34, s36
    s_add_u32 {sST}, s34, {WS_ST}
    s_mul_i32 s34, {sG}, 6
    s_add_u32 s34, s34, {sJ}
    s_lshl_b32 {sGX}, s34, 7
    s_mov_b32 s38, {fbits(-1/384)}
    s_mov_b32 s36, 0xffff0000
    s_mov_b32 s64, -1
    s_mov_b32 s65, 0
    s_mov_b32 s66, 0xff00ff00
    s_mov_b32 s67, 0xff00ff00
    s_mov_b32 s68, 0xffff0000
    s_mov_b32 s69, 0xffff0000''')
    for r in range(CA, CA + 8):
        if (r - CA) % 4: a(f'v_mov_b32 v{r}, 0')
    a('s_waitcnt lgkmcnt(0)')
    tag_ready(a)
    a('s_barrier')
    stamp(a, 'mm0')
    def rd(ks):
        c, k4 = ks >> 2, ks & 3
        a(f'ds_read_b128 {vr(XF+4*ks,4)}, v{vXF+k4} offset:{XS(c)}', tag=f'f{ks}')
        return [(c, k4, P) for P in range(2)]
    def trd(ks, P):
        c, k4 = ks >> 2, ks & 3
        off = c*16384 + P*8192 + k4*2048
        base = vAW + (off >> 16); off &= 0xffff
        d = WF + (ks % 3)*8 + P*4
        a(f'ds_read_b64_tr_b16 {vr(d,2)}, v{base} offset:{off}\nds_read_b64_tr_b16 {vr(d+2,2)}, v{base} offset:{off+512}', tag=f'f{ks}')
    def pre(ks, part):
        if part == 0: rd(ks); trd(ks, 0)
        else: trd(ks, 1)
    for ks in range(2): pre(ks, 0); pre(ks, 1)
    def m16(d, b, first): a(f'v_mfma_f32_16x16x32_bf16 {vr(d,4)}, {vr(SEL,4)}, {b}, {"0" if first else vr(d,4)}')
    for ks in range(24):
        bar = (ks & 3) == 3 and ks < 23
        if bar:
            if ks == 15: a.wait_all(lg=False)
            a('s_barrier')
            if ks in (7, 15, 19): stamp(a, f'c{(ks+1)>>2}')
            pre(ks + 1, 0); pre(ks + 1, 1)
        a.wait(lg=f'f{ks}')
        wf = lambda P: vr(WF + (ks % 3)*8 + P*4, 4)
        main = lambda P: a(f'v_mfma_f32_32x32x16_bf16 {vr(ACC+16*P,16)}, {wf(P)}, {vr(XF+4*ks,4)}, {"0" if ks == 0 else vr(ACC+16*P,16)}')
        nx = ks + 2 if (ks & 3) != 2 and ks + 2 < 24 else None
        if ks < 23:
            for P in range(2):
                main(P)
                if nx: pre(nx, P)
                m16(CS + 4*P, wf(P), ks == 0)
            m16(MA, vr(XF+4*ks, 4), ks == 0)
        else:
            m16(MA, vr(XF+4*ks, 4), False)
            for P in range(2): m16(CS + 4*P, wf(P), False)
            main(0)
            main(1)
            a(f'''v_mul_f32 v{MA}, s38, v{MA}
            v_cvt_pk_bf16_f32 v{CA}, v{CS}, v{CS}
            v_cvt_pk_bf16_f32 v{CA+4}, v{CS+4}, v{CS+4}
            v_cvt_pk_bf16_f32 v{MA+1}, v{MA}, v{MA}
            v_and_b32 v{CA}, s36, v{CA}
            v_and_b32 v{CA+4}, s36, v{CA+4}
            v_cndmask_b32 v{CB}, 0, v{MA+1}, s[64:65]
            v_sub_f32 v{CA}, v{CS}, v{CA}
            v_sub_f32 v{CA+4}, v{CS+4}, v{CA+4}
            v_mov_b32 v{CB+1}, v{CB}
            v_cvt_pk_bf16_f32 v{CA}, v{CS}, v{CA}
            v_cvt_pk_bf16_f32 v{CA+4}, v{CS+4}, v{CA+4}
            v_mov_b32 v{CB+2}, v{CB}
            v_mov_b32 v{CB+3}, v{CB}''')
            for P in range(2): a(f'v_mfma_f32_32x32x16_bf16 {vr(ACC+16*P,16)}, {vr(CA+4*P,4)}, {vr(CB,4)}, {vr(ACC+16*P,16)}')
    stamp(a, 'mmend')
    PQ, PK, SC, SS, SQ, CM = 32, 40, 64, 96, 100, 124
    a(f'v_mov_b32 v{SQ}, 0\nv_mov_b32 v{SQ+1}, 0')
    for k in range(4): a(f'v_mov_b32 v{CM+k}, v{MA+1}')
    for P, d in ((0, PQ), (1, PK)):
        for i in range(8): a(f'v_cvt_pk_bf16_f32 v{d+i}, v{ACC+16*P+2*i}, v{ACC+16*P+2*i+1}')
    a(f'v_mfma_f32_32x32x16_bf16 {vr(SC,16)}, {vr(PK,4)}, {vr(PQ,4)}, 0')
    a(f'v_mfma_f32_32x32x16_bf16 {vr(SC,16)}, {vr(PK+4,4)}, {vr(PQ+4,4)}, {vr(SC,16)}')
    RAW = 48
    a(f'v_xor_b32 v4, 32, v{vRes}\nds_read_b128 {vr(RAW,4)}, v{vRes}\nds_read_b128 {vr(RAW+4,4)}, v4', tag='raw')
    for e in range(4): a(f'v_cndmask_b32 v{SC+e}, v{SC+e}, v{SC+4+e}, s[66:67]\nv_cndmask_b32 v{SC+8+e}, v{SC+8+e}, v{SC+12+e}, s[66:67]')
    for e in range(4): a(f'v_cndmask_b32 v{SS+e}, v{SC+e}, v{SC+8+e}, s[68:69]')
    a(f'buffer_store_dwordx4 {vr(SS,4)}, v{vSst}, {SWS}, {sSst} offen {WT if opt("swt", 0) else ""}')
    stamp(a, 'stored')
    ND0 = opt('nd0', 72)
    for i in range(ND0): a(f'v_dot2c_f32_bf16 v{SQ+(i&1)}, v{XF+i}, v{XF+i}')
    a.wait_all(lg=False)
    flag(a, sOwn, sFS1, sFast, 4, '')
    stamp(a, 'flag')
    for i in range(ND0, 96): a(f'v_dot2c_f32_bf16 v{SQ+(i&1)}, v{XF+i}, v{XF+i}')
    RR, RES = 56, 80
    a(f'''s_mov_b32 s37, {fbits(1e-5)}
    v_mul_f32 v{SQ+2}, v{MA}, v{MA}
    v_add_u32 v5, 4, v{vBS}
    v_add_f32 v{SQ}, v{SQ}, v{SQ+1}
    v_mov_b32 v{SQ+1}, v{SQ}
    v_add_u32 v6, 8, v{vBS}
    v_add_u32 v7, 12, v{vBS}
    v_permlane32_swap_b32 v{SQ}, v{SQ+1}
    v_add_f32 v{SQ}, v{SQ}, v{SQ+1}
    v_fma_f32 v{SQ}, -v{SQ}, s38, -v{SQ+2}
    v_max_f32 v{SQ}, 0, v{SQ}
    v_add_f32 v{SQ}, s37, v{SQ}
    v_rsq_f32 v{SQ}, v{SQ}''')
    a(f'ds_bpermute_b32 v{RR+4}, v{vBP}, v{SQ}\nds_bpermute_b32 v{RR}, v{vBS}, v{SQ}', tag='bp')
    for e in range(1, 4): a(f'ds_bpermute_b32 v{RR+e}, v{4+e}, v{SQ}', tag='bp')
    a.wait(lg='raw')
    for d in range(8): a(f'v_lshlrev_b32 v{RES+2*d}, 16, v{RAW+d}\nv_and_b32 v{RES+2*d+1}, s36, v{RAW+d}')
    a.wait(lg='bp')
    a(f'v_mul_f32 v{RR+4}, {fbits(SCALE2)}, v{RR+4}')
    def repubA():
        a(f's_add_u32 s34, {sSst}, {SLOW}\nbuffer_store_dwordx4 {vr(SS,4)}, v{vSst}, {SWS}, s34 offen sc0 sc1')
    lsync(a, 12, False, sFS1, sFS2, sOwn, (lambda: None) if opt('swt', 0) else repubA, 32, 0 if opt('swt', 0) else SLOW)
    stamp(a, 'synced')
    SP, Y, WR = 112, 64, 32
    SPR = [128, 132, 136, 140, 144, 148, 152, 156, 112, 116, 96, 100]
    S0 = SPR[0]; T0 = SPR[1]
    sm = []
    def w2rd(ks):
        if ks < 24: a(f'ds_read_b128 {vr(WR+4*(ks%6),4)}, v{vW2} offset:{ks*2048}', tag=f'y{ks}')
        else:
            for k in range(2): a(f'ds_read2st64_b32 {vr(WR+4*(ks%6)+2*k,2)}, v{vW2b+ks-24} offset0:{2*k} offset1:{2*k+1}', tag=f'y{ks}')
    YH = opt('yh', 14)
    def ystep(ks, lim=26):
        a.wait(lg=f'y{ks}')
        xa = vr(XF+4*ks, 4) if ks < 24 else vr(CM if ks == 24 else CB, 4)
        a(f'v_mfma_f32_32x32x16_bf16 {vr(Y,16)}, {xa}, {vr(WR+4*(ks%6),4)}, {"0" if ks == 0 else vr(Y,16)}')
        if ks + 5 < lim: w2rd(ks + 5)
    a(f's_add_u32 {sSld}, {sSld}, {sDelta}\ns_mul_i32 s34, {sHF}, 12288\ns_add_u32 {sSld}, {sSld}, s34')
    for i in range(6):
        if i and i % 2 == 0: a(f's_add_u32 {sSld}, {sSld}, 4096')
        a(f'buffer_load_dwordx4 {vr(SPR[i],4)}, v{vL16}, {SWS}, {sSld} offen offset:{(i&1)*2048} sc1', tag=f's{i}')
    a(f's_add_u32 s34, {sM1K}, {LSX}\nv_add_u32 v4, s34, v{vL16}\nv_xor_b32 v5, 1024, v4')
    for i in range(1, 6):
        a.wait(vm=f's{i}')
        for d in (0, 2): a(f'v_pk_add_f32 {vr(S0+d,2)}, {vr(S0+d,2)}, {vr(SPR[i]+d,2)}')
    a(f'ds_write_b128 v4, {vr(S0,4)}\ns_waitcnt lgkmcnt(0)'); a.lg = []
    stamp(a, 'ssum')
    a('s_barrier')
    stamp(a, 'w2h')
    a(f'ds_read_b128 {vr(T0,4)}, v5', tag='sx')
    sm.append(('l', 'sx'))
    for d in range(4): sm.append(f'v_add_f32 v{S0+d}, v{S0+d}, v{T0+d}')
    for ks in range(5): w2rd(ks)
    for d in range(4): sm.append(f'v_mul_f32 v{S0+d}, v{S0+d}, v{RR+d}')
    sm += [f'v_max_f32 v{T0}, v{S0}, v{S0+1}', f'v_max3_f32 v{T0}, v{T0}, v{S0+2}, v{S0+3}', f'v_mov_b32 v{T0+1}, v{T0}', 's_mov_b32 s64, 0x11111111', 's_mov_b32 s65, 0x11111111',
           f'v_permlane32_swap_b32 v{T0}, v{T0+1}', f'v_max_f32 v{T0}, v{T0}, v{T0+1}', f'v_mul_f32 v{T0}, v{RR+4}, v{T0}']
    for d in range(4): sm.append(f'v_fma_f32 v{S0+d}, v{S0+d}, v{RR+4}, -v{T0}')
    for d in range(4): sm.append(f'v_exp_f32 v{S0+d}, v{S0+d}')
    sm += [f'v_add_f32 v{T0}, v{S0}, v{S0+1}', f'v_add_f32 v{T0+1}, v{S0+2}, v{S0+3}', f'v_add_f32 v{T0}, v{T0}, v{T0+1}', f'v_mov_b32 v{T0+1}, v{T0}']
    sm += [f'v_mul_f32 v{S0+d}, v{S0+d}, v{RR+d}' for d in range(2)] + [f'v_permlane32_swap_b32 v{T0}, v{T0+1}', f'v_add_f32 v{T0}, v{T0}, v{T0+1}', f'v_rcp_f32 v{T0}, v{T0}']
    sm += [f'v_mul_f32 v{S0+d}, v{S0+d}, v{RR+d}' for d in range(2, 4)]
    for d in range(4): sm.append(f'v_mul_f32 v{S0+d}, v{S0+d}, v{T0}')
    PB = 136
    sm += [f'v_cvt_pk_bf16_f32 v{T0}, v{S0}, v{S0+1}', f'v_cvt_pk_bf16_f32 v{T0+1}, v{S0+2}, v{S0+3}']
    for b in range(4):
        sm += [f'v_cndmask_b32 v{PB+2*b}, 0, v{T0}, s[64:65]', f'v_cndmask_b32 v{PB+2*b+1}, 0, v{T0+1}, s[64:65]']
        if b < 3: sm.append('s_lshl_b64 s[64:65], s[64:65], 1')
    S2 = 104
    sm += [f'v_mov_b32 v{S2}, 0', f'v_mov_b32 v{S2+1}, 0', 's_mov_b32 s36, 0x3f803f80']
    def drain(n):
        while n > 0 and sm:
            x = sm.pop(0)
            if isinstance(x, tuple): a.wait(vm=x[1]) if x[0] == 'w' else a.wait(lg=x[1])
            else: a(x); n -= 1
    YB = YH - opt('ybe', 2)
    for ks in range(26):
        if ks == YB:
            if opt('yfin', 0): drain(1000)
            a('s_barrier')
            stamp(a, 'w2in')
            for k in range(YH, YB + 5): w2rd(k)
        ystep(ks, YH if ks < YB else 26)
        if ks >= 1: drain(opt('ydr', 6))
    drain(1000)
    stamp(a, 'ygemm')
    YP, XO = 144, 152
    for i in range(8): a(f'v_cvt_pk_bf16_f32 v{YP+i}, v{Y+2*i}, v{Y+2*i+1}')
    for k in range(2): a(f'v_mfma_f32_32x32x16_bf16 {vr(RES,16)}, {vr(YP+4*k,4)}, {vr(PB+4*k,4)}, {vr(RES,16)}')
    for i in range(8): a(f'v_cvt_pk_bf16_f32 v{XO+i}, v{RES+2*i}, v{RES+2*i+1}')
    a(f'buffer_store_dwordx4 {vr(XO,4)}, v{vX1}, {SWS}, {sX1} offen {WT}')
    a(f'buffer_store_dwordx4 {vr(XO+4,4)}, v{vX1}, {SWS}, {sX1} offen offset:512 {WT}')
    for i in range(8): a(f'v_dot2c_f32_bf16 v{S2}, s36, v{XO+i}\nv_dot2c_f32_bf16 v{S2+1}, v{XO+i}, v{XO+i}')
    a(f'''v_mov_b32 v{S2+2}, v{S2}
    v_mov_b32 v{S2+3}, v{S2+1}
    v_permlane32_swap_b32 v{S2}, v{S2+2}
    v_permlane32_swap_b32 v{S2+1}, v{S2+3}
    v_add_f32 v{S2}, v{S2}, v{S2+2}
    v_add_f32 v{S2+1}, v{S2+1}, v{S2+3}
    s_mov_b32 exec_hi, 0
    buffer_store_dwordx4 {vr(S2,4)}, v{vST}, {SWS}, {sST} offen {WT}
    s_mov_b32 exec_hi, -1
    s_mov_b32 s34, {GX}''')
    stamp(a, 'x1st')
    a.wait_all()
    a('s_barrier')
    flag_w0(a, sGX, 's34', 32)
    stamp(a, 'x1pub')
    a('s_branch P2_c')
    a.label('A_ld'); a.vm = []; a.lg = []
    if PRIO == 2: a('s_setprio 1')
    vW, vXs, vP = 32, 36, 38
    sRx = ['s62', 's63', 's64', 's65', 's66', 's67']
    a(f'''s_mov_b32 s35, 196608
    v_mul_lo_u32 v{vXs}, v{T8}, s35
    v_lshrrev_b32 v4, 1, v{T8}
    v_xor_b32 v4, v4, v{G8}
    v_lshl_add_u32 v{vXs}, v4, 4, v{vXs}
    v_xor_b32 v{vXs+1}, 64, v{vXs}
    v_add_u32 v{vXs+1}, 768, v{vXs+1}
    s_lshl_b32 s34, {sG}, 3
    s_lshl_b32 s35, {sW}, 1
    s_add_u32 s34, s34, s35
    s_mul_i32 {sX}, s34, 768
    v_lshlrev_b32 v4, 1, v{T8}
    v_and_b32 v4, 4, v4
    v_xor_b32 v4, v4, v{G8}
    v_mul_u32_u24 v{vW}, 2304, v{T8}
    v_lshl_add_u32 v{vW}, v4, 4, v{vW}
    s_mul_i32 s68, {sW}, {16*2304}
    s_lshl_b32 s34, {sJ}, 7
    s_add_u32 s68, s68, s34''')
    for k in range(1, 4): a(f'v_add_u32 v{vW+k}, {(k>>1)*768 + (k&1)*18432}, v{vW}')
    for i in range(6):
        if ROT:
            a(f's_lshl_b32 s34, s3, 7\ns_add_u32 {sRx[i]}, s34, {sX}\ns_mul_i32 s34, s3, 147456\ns_add_u32 {sR[i]}, s34, s68')
            if i < 5: a('s_add_u32 s3, s3, 1\ns_cmp_ge_u32 s3, 6\ns_cselect_b32 s3, 0, s3')
        else: a(f's_add_u32 {sR[i]}, s68, {i*147456}\ns_add_u32 {sRx[i]}, {sX}, {i*128}')
    for i in range(2):
        a(f'''s_lshl_b32 s34, {sJ}, 3
        s_lshl_b32 s35, {sW}, 1
        s_add_u32 s34, s34, s35
        s_add_u32 s34, s34, {i}
        s_mul_i32 s35, s34, 43
        s_lshr_b32 s35, s35, 8
        s_mul_i32 s14, s35, 6
        s_sub_u32 s34, s34, s14
        s_lshl_b32 s34, s34, 10
        s_mul_i32 s35, s35, 196608
        s_add_u32 s34, s34, s35
        s_mul_i32 s35, {sG}, 6144
        s_add_u32 s{12+i}, s34, s35''')
    a(f's_mov_b32 s34, {WE}\ns_waitcnt lgkmcnt(0)\ns_load_dword {sTag}, s[32:33], s34')
    srd(a, 4, 20, 1572864); srd(a, 8, 22, 884736)
    def xpre():
        for i in range(2): a(f'buffer_load_dwordx4 v[{56+4*i}:{59+4*i}], v{vL16}, {SX}, s{12+i} offen')
    if opt('xp0', 0) == 1: xpre()
    def wdma(c):
        for th in range(2):
            a(f's_add_u32 m0, {sM}, {XS(c) + th*1024}\nbuffer_load_dwordx4 v{vXs+th}, {SX}, {sRx[c]} offen lds', tag=f'w{c}')
        for k in range(4):
            a(f's_add_u32 m0, {sM}, {WQ0 + c*16384 + (k>>1)*8192 + (k&1)*1024}\nbuffer_load_dwordx4 v{vW+k}, {SWQ}, {sR[c]} offen lds', tag=f'w{c}')
    NL = opt('nl', 2)
    for c in range(NL):
        wdma(c)
        if c == 0 and opt('xp0', 0) == 2: xpre()
        if c == 0: srd(a, 16, 32, WS_SIZE); srd(a, 24, 38, 1572864)
    a(f'''v_mul_u32_u24 v{vP}, 768, v1
    s_lshl_b32 s34, {sJ}, 7
    s_add_u32 s68, s34, {GW2}
    s_mul_i32 s69, {sJ}, 53248
    s_add_u32 s69, s69, {WS_W2}
    s_waitcnt lgkmcnt(0)''')
    tag_ready(a)
    def progress():
        L = a.newlabel('pg')
        a(f's_cmp_lg_u32 {sI}, 8\ns_cbranch_scc1 {L}\ns_cmp_lg_u32 {sW}, 0\ns_cbranch_scc1 {L}')
        a.cond = True
        a(f's_lshl_b32 s34, {sXCD}, 7\ns_mov_b32 s35, {FP}'); flag(a, 's34', 's35', sFast, 52, ''); a.vm.pop()
        a.cond = False
        a.label(L)
    if opt('prg', 9) == 9: progress()
    for c in range(6):
        a.wait(vm=f'w{c}')
        if c in (0, 3, 5): stamp(a, f'L{c}')
        a('s_barrier')
        if c + NL < 6: wdma(c + NL)
        if c == opt('prg', 9): progress()
        if c == opt('tlb', 1): pages(a)
        if c == opt('tpos', 3) and opt('touch', 1):
            a(f'''s_mul_i32 s34, {sG}, 24576
            s_lshl_b32 s35, {sJ}, 12
            s_add_u32 s34, s34, s35
            s_add_u32 s34, s34, {WS_S}
            s_add_u32 s34, s34, {sM1K}
            {"" if opt("swt", 0) else f"buffer_load_dwordx4 v[44:47], v{vL16}, {SWS}, s34 offen"}
            s_lshl_b32 s34, {sG}, 8
            s_add_u32 s34, s34, {FS1}
            v_lshlrev_b32 v48, 2, v1
            buffer_load_dword v49, v48, {SWS}, s34 offen
            s_lshl_b32 s34, {sXCD}, 9
            s_add_u32 s34, s34, {FC1}
            v_lshlrev_b32 v48, 3, v1
            buffer_load_dword v50, v48, {SWS}, s34 offen''')
    a(f's_mul_i32 s20, {sW}, 3')
    if ROT: rot_r('s3'); a('s_lshl_b32 s3, s3, 1\ns_add_u32 s3, s3, s20')
    else: a('s_mov_b32 s3, s20')
    a(f's_lshl_b32 s20, s20, 12\ns_add_u32 s20, s20, {W2L}')
    for k in range(3):
        a(f's_cmp_ge_u32 s3, 12\ns_cselect_b32 s34, 12, 0\ns_sub_u32 s3, s3, s34\ns_lshl_b32 s34, s3, 12\ns_add_u32 s{21+k}, s69, s34\ns_add_u32 s3, s3, 1')
    a(f's_add_u32 s69, s69, 49152\ns_add_u32 s69, s69, {sM1K}')
    if opt('tp', 9) == 0: touch2(a)
    if opt('w21', 1):
        a(f's_cmp_lg_u32 {sW}, 0\ns_cbranch_scc1 A_ld2')
        gpoll(a, 4, vP, 's68', 40)
        stamp(a, 'Lw2f')
        a(f's_sub_u32 s69, s69, 49152')
        for gi in range(13):
            if gi == 12: a(f's_add_u32 s68, s69, 49152')
            elif gi == 0: a('s_mov_b32 s68, s21\ns_sub_u32 s3, s21, s69')
            elif gi % 2 == 0: a('s_add_u32 s3, s3, 8192\ns_cmp_ge_u32 s3, 49152\ns_cselect_b32 s3, 0, s3\ns_add_u32 s68, s69, s3')
            else: a('s_add_u32 s68, s68, 4096')
            a(f's_mov_b32 m0, {W2L + gi*4096}')
            for k in range(4 if gi < 12 else 3): a(f'buffer_load_dwordx4 v{vL16}, {SWS}, s68 offen offset:{k*1024} sc1 lds', tag=f'h{gi}')
        if opt('yh', 14): a.wait(vm=f'h{opt("yh", 14)//2 - 1}')
        a.label('A_ld2')
        if opt('yh', 14): a('s_barrier')
    else:
        gpoll(a, 4, vP, 's68', 40)
        stamp(a, 'Lw2f')
        for k in range(3):
            a(f's_add_u32 m0, s20, {k*4096}')
            for q in range(4): a(f'buffer_load_dwordx4 v{vL16}, {SWS}, s{21+k} offen offset:{q*1024} sc1 lds')
        a(f's_add_u32 m0, {sM1K}, {W2L + 49152}\nbuffer_load_dwordx4 v{vL16}, {SWS}, s69 offen sc1 lds')
    a.wait_all()
    stamp(a, 'Lw2')
    a('s_barrier\ns_barrier\ns_branch P2_l')
    a.label('K_pre'); a.vm = []; a.lg = []
    sS8, sIt, sJt, sA, sB, sMm, sT0, sLA, sLB = 's50', 's51', 's52', 's53', 's54', 's55', 's56', 's57', 's58'
    a(f'''s_mov_b32 {sS8}, {sI}
    s_mov_b32 s34, {WE}
    s_and_b32 s59, {sXCD}, 1
    s_lshr_b32 s60, {sXCD}, 1
    s_cmp_lt_u32 {sS8}, 3
    s_cbranch_scc1 W_id0
    s_mul_i32 s35, s60, 9
    s_mul_i32 s61, s59, 5
    s_add_u32 s35, s35, s61
    s_add_u32 s35, s35, {sS8}
    s_sub_u32 s35, s35, 3
    s_mul_i32 s61, s35, 43
    s_lshr_b32 s61, s61, 8
    s_mul_i32 s62, s61, 6
    s_sub_u32 {sJt}, s35, s62
    s_cmp_ge_u32 s61, 3
    s_cselect_b32 {sMm}, 1, 0
    s_mul_i32 s62, {sMm}, 3
    s_sub_u32 {sIt}, s61, s62
    s_add_u32 s62, {sS8}, s59
    s_cmp_ge_u32 s62, 8
    s_cselect_b32 {sMm}, 3, {sMm}
    s_branch W_id1''')
    a.label('W_id0')
    a(f'''s_mov_b32 {sMm}, 2
    s_mov_b32 {sIt}, s60
    s_mul_i32 {sJt}, s59, 3
    s_add_u32 {sJt}, {sJt}, {sS8}''')
    a.label('W_id1')
    a(f'''s_waitcnt lgkmcnt(0)
    s_load_dword {sTag}, s[32:33], s34''')
    srd(a, 16, 32, WS_SIZE); srd(a, 24, 38, 1572864)
    a(f'''s_cmp_eq_u32 {sMm}, 3
    s_cbranch_scc1 W_done
    s_cmp_lg_u32 {sRole}, 0
    s_cbranch_scc1 W_ld''')
    BB = 98304
    FA, FB, AC = 32, 48, 128
    vAr, vBr = 14, 18
    a(f'''v_and_b32 v2, 31, v1
    v_lshrrev_b32 v3, 5, v1
    v_and_b32 v4, 19, v2
    v_bfe_u32 v5, v2, 2, 1
    v_lshl_add_u32 v4, v5, 3, v4
    v_bfe_u32 v5, v2, 3, 1
    v_lshl_add_u32 v4, v5, 2, v4
    v_lshrrev_b32 v5, 3, v4
    v_mul_u32_u24 v5, 6144, v5
    v_and_b32 v6, 7, v4
    v_lshl_add_u32 v5, v6, 7, v5
    v_bfe_u32 v6, v4, 1, 3
    v_xor_b32 v6, v6, v3
    v_lshl_add_u32 v11, v6, 4, v5
    v_bfe_u32 v6, v1, 2, 2
    v_lshl_add_u32 v4, v3, 3, v6
    v_lshlrev_b32 v4, 7, v4
    v_lshrrev_b32 v7, 1, v6
    v_lshl_add_u32 v4, v7, 6, v4
    v_bfe_u32 v7, v1, 4, 1
    v_lshl_add_u32 v12, v7, 5, v4
    s_mov_b32 s37, 0x3f803f80''')
    def a_addr(swave):
        a(f's_mul_i32 s34, {swave}, 24576\nv_add_u32 v{vAr}, s34, v11')
        for k in range(1, 4): a(f'v_xor_b32 v{vAr+k}, {32*k}, v{vAr}')
    def stages(nv, breads):
        def rd(jj, k4):
            o = (jj & 1)*48*opt('ppipe', 1)
            a(f'ds_read_b128 {vr(FA+o+4*k4,4)}, v{vAr+k4} offset:{jj*1024}', tag=f'r{k4}')
            for v in range(nv): breads(jj, k4, v, FB + o + (k4*2+v)*4)
        def mm(jj, k4):
            o = (jj & 1)*48*opt('ppipe', 1)
            for v in range(nv):
                cin = '0' if (jj == 0 and k4 == 0) else vr(AC+16*v, 16)
                a(f'v_mfma_f32_32x32x16_bf16 {vr(AC+16*v,16)}, {vr(FA+o+4*k4,4)}, {vr(FB+o+(k4*2+v)*4,4)}, {cin}')
        for jj in range(6):
            a('s_barrier')
            if opt('ppipe', 1) and jj:
                rd(jj, 0); mm(jj - 1, 2); rd(jj, 1); mm(jj - 1, 3); rd(jj, 2); rd(jj, 3)
            else:
                for k4 in range(4): rd(jj, k4)
            last = 4 if (jj == 5 or not opt('ppipe', 1)) else 2
            for k4 in range(last):
                a.wait(lg=f'r{k4}'); mm(jj, k4)
            if last == 2: a.wait(lg='r3')
    def btr(jj, k4, v, d):
        o = jj*8192 + k4*2048
        a(f'ds_read_b64_tr_b16 {vr(d,2)}, v{vBr+v} offset:{o}\nds_read_b64_tr_b16 {vr(d+2,2)}, v{vBr+v} offset:{o+512}', tag=f'r{k4}')
    def brow(jj, k4, v, d): a(f'ds_read_b128 {vr(d,4)}, v{vBr+k4} offset:{v*24576+jj*1024}', tag=f'r{k4}')
    def colsum(v, src, dst):
        a(f'v_mov_b32 v24, 0')
        for i in range(8): a(f'v_dot2c_f32_bf16 v24, s37, v{src+i}')
        a(f'''v_mov_b32 v26, v24
        v_permlane32_swap_b32 v24, v26
        v_add_f32 v26, v26, v24
        v_cvt_pk_bf16_f32 v27, v26, v26
        v_lshlrev_b32 v27, 16, v27
        v_sub_f32 v27, v26, v27
        v_cvt_pk_bf16_f32 v{dst}, v26, v27''')
    def colsum2():
        a('v_mov_b32 v24, 0\nv_mov_b32 v25, 0')
        for i in range(8): a(f'v_dot2c_f32_bf16 v24, s37, v{32+i}\nv_dot2c_f32_bf16 v25, s37, v{40+i}')
        a('''v_mov_b32 v26, v24
        v_mov_b32 v27, v25
        v_permlane32_swap_b32 v24, v26
        v_permlane32_swap_b32 v25, v27
        v_add_f32 v24, v26, v24
        v_add_f32 v25, v27, v25
        v_cvt_pk_bf16_f32 v26, v24, v24
        v_cvt_pk_bf16_f32 v27, v25, v25
        v_lshlrev_b32 v26, 16, v26
        v_lshlrev_b32 v27, 16, v27
        v_sub_f32 v26, v24, v26
        v_sub_f32 v27, v25, v27
        v_cvt_pk_bf16_f32 v28, v24, v26
        v_cvt_pk_bf16_f32 v29, v25, v27''')
    a_addr(sW)
    a(f's_cmp_lg_u32 {sMm}, 2\ns_cbranch_scc1 W_c0')
    a(f'''s_min_u32 s59, {sW}, 2''')
    a_addr('s59')
    a(f'''v_and_b32 v7, 1, v1
    v_lshl_add_u32 v4, v7, 4, v12
    v_bfe_u32 v7, v1, 1, 1
    v_lshl_add_u32 v4, v7, 3, v4
    v_add_u32 v{vBr}, {BB}, v4
    v_xor_b32 v{vBr+1}, 64, v{vBr}
    s_mul_i32 s34, {sIt}, 3
    s_add_u32 s34, s34, s59
    s_mul_i32 s35, {sJt}, 53248
    s_add_u32 s35, s35, {WS_W2}
    s_lshl_b32 s36, s34, 12
    s_add_u32 s61, s35, s36
    s_lshl_b32 s36, s34, 8
    s_add_u32 s35, s35, s36
    s_add_u32 s62, s35, 49152
    v_lshlrev_b32 v30, 2, v1
    s_mul_i32 s63, {sIt}, 6
    s_add_u32 s63, s63, {sJt}
    s_lshl_b32 s63, s63, 7
    s_mov_b32 s64, {GW2}''')
    stages(2, btr)
    stamp(a, 'pst')
    a(f's_cmp_eq_u32 {sW}, 3\ns_cbranch_scc1 W_c4')
    for v in range(2):
        for i in range(8): a(f'v_cvt_pk_bf16_f32 v{32+8*v+i}, v{AC+16*v+2*i}, v{AC+16*v+2*i+1}')
        a(f'buffer_store_dwordx4 {vr(32+8*v,4)}, v{vL16}, {SWS}, s61 offen offset:{v*1024} {WT}\nbuffer_store_dwordx4 {vr(36+8*v,4)}, v{vL16}, {SWS}, s61 offen offset:{2048+v*1024} {WT}')
    colsum2()
    a('s_mov_b32 exec_hi, 0')
    for v in range(2): a(f'buffer_store_dword v{28+v}, v30, {SWS}, s62 offen offset:{v*128} {WT}')
    a('s_mov_b32 exec_hi, -1')
    a.label('W_c4')
    a.wait_all()
    tag_ready(a)
    a('s_barrier')
    flag_w0(a, 's63', 's64', 48)
    stamp(a, 'w2pub')
    a('s_branch W_done2')
    a.label('W_c0'); a.lg = []; a.vm = []
    a(f'''s_mul_i32 s34, {sMm}, 24
    s_lshl_b32 s61, {sJt}, 2
    s_add_u32 s34, s34, s61
    v_bfe_u32 v4, v1, 4, 1
    v_add_u32 v4, s34, v4
    v_and_b32 v7, 15, v1
    v_lshlrev_b32 v7, 4, v7
    s_lshl_b32 s61, {sIt}, 2
    s_add_u32 s61, s61, {sW}
    s_mul_i32 s61, s61, 3072
    s_add_u32 s61, s61, {WS_W}
    s_lshl_b32 s62, {sIt}, 2
    s_add_u32 s62, s62, {sW}
    s_mul_i32 s62, s62, 192
    s_add_u32 s62, s62, {WS_W + 12*3072}''')
    for v in range(2):
        a(f'''v_add_u32 v5, {2*v}, v4
        v_mul_u32_u24 v6, 43, v5
        v_lshrrev_b32 v6, 7, v6
        v_mul_u32_u24 v8, 3, v6
        v_sub_u32 v5, v5, v8
        v_mul_u32_u24 v6, 39936, v6
        v_lshl_add_u32 v{160+v}, v5, 6, v6
        v_lshl_add_u32 v6, v5, 10, v6
        v_add_u32 v6, v6, v7
        v_lshl_add_u32 v{162+v}, v3, 8, v6
        v_lshrrev_b32 v6, 2, v7
        v_add_u32 v{160+v}, v{160+v}, v6''')
    a(f's_cmp_eq_u32 {sMm}, 1\ns_cbranch_scc1 W_c1')
    a(f'''v_lshrrev_b32 v5, 3, v2
    v_mul_u32_u24 v5, 6144, v5
    v_and_b32 v6, 7, v2
    v_lshl_add_u32 v5, v6, 7, v5
    v_bfe_u32 v6, v2, 1, 3
    v_xor_b32 v6, v6, v3
    v_lshl_add_u32 v5, v6, 4, v5
    v_add_u32 v{vBr}, {BB}, v5''')
    for k in range(1, 4): a(f'v_xor_b32 v{vBr+k}, {32*k}, v{vBr}')
    stages(2, brow)
    a('s_branch W_c2')
    a.label('W_c1'); a.lg = []
    a(f'''v_and_b32 v7, 3, v1
    v_lshl_add_u32 v4, v7, 3, v12
    v_add_u32 v{vBr}, {BB}, v4
    v_xor_b32 v{vBr+1}, 64, v{vBr}''')
    stages(2, btr)
    a.label('W_c2')
    stamp(a, 'qst')
    for v in range(2):
        for i in range(8): a(f'v_cvt_pk_bf16_f32 v{32+8*v+i}, v{AC+16*v+2*i}, v{AC+16*v+2*i+1}')
        a(f'buffer_store_dwordx4 {vr(32+8*v,4)}, v{162+v}, {SWS}, s61 offen {WT}')
        a(f'buffer_store_dwordx4 {vr(36+8*v,4)}, v{162+v}, {SWS}, s61 offen offset:512 {WT}')
    colsum2()
    a('s_mov_b32 exec_hi, 0')
    for v in range(2): a(f'buffer_store_dword v{28+v}, v{160+v}, {SWS}, s62 offen {WT}')
    a('s_mov_b32 exec_hi, -1')
    stamp(a, 'qsto')
    a('s_branch W_done')
    a.label('W_ld'); a.vm = []; a.lg = []
    vA0, vBo = 12, 14
    a(f'''v_lshrrev_b32 v4, 1, v{T8}
    v_xor_b32 v4, v4, v{G8}
    v_mul_u32_u24 v5, 2304, v{T8}
    v_lshl_add_u32 v{vA0}, v4, 4, v5
    v_xor_b32 v{vA0+1}, 64, v{vA0}
    v_lshlrev_b32 v4, 1, v{T8}
    v_and_b32 v4, 4, v4
    v_xor_b32 v4, v4, v{G8}
    v_mul_u32_u24 v5, 768, v{T8}
    v_lshl_add_u32 v{vBo}, v4, 4, v5''')
    sLn = ['s59', 's60', 's61', 's62', 's63', 's64']; sLb = ['s65', 's66', 's67', 's68', 's69', 's3']
    def lstages(nra, mode):
        if opt('prot', 1) and (nra == 3 or opt('protw', 1)): a(f's_mul_i32 s34, {sIt}, 3\ns_lshr_b32 s34, s34, 1\ns_add_u32 s34, s34, {sJt}')
        else: a('s_mov_b32 s34, 0')
        for jj in range(6):
            a(f's_cmp_ge_u32 s34, 6\ns_cselect_b32 s35, 6, 0\ns_sub_u32 s34, s34, s35\ns_lshl_b32 s35, s34, 7\ns_add_u32 {sLn[jj]}, {sA}, s35')
            if mode == 1: a(f's_mul_i32 s35, s34, {64*768}')
            a(f's_add_u32 {sLb[jj]}, {sB}, s35\ns_add_u32 s34, s34, 1')
        def issue(jj):
            for r in range(nra):
                a(f'''s_add_u32 {sT0}, {sLn[jj]}, {r*8*2304}
                s_add_u32 m0, {sLA}, {(r*6+jj)*1024}
                buffer_load_dwordx4 v{vA0+(r&1)}, {SWQ}, {sT0} offen lds''', tag=f'p{jj}')
            for r in range(2):
                if mode == 0:
                    a(f'''s_add_u32 {sT0}, {sLb[jj]}, {r*8*2304}
                    s_add_u32 m0, {sLB}, {BB + (r*6+jj)*1024}
                    buffer_load_dwordx4 v{vA0+r}, {SWQ}, {sT0} offen lds''', tag=f'p{jj}')
                else:
                    a(f'''s_add_u32 {sT0}, {sLb[jj]}, {r*8*768}
                    s_add_u32 m0, {sLB}, {BB + jj*8192 + r*1024}
                    buffer_load_dwordx4 v{vBo}, {SWO}, {sT0} offen lds''', tag=f'p{jj}')
        n0 = opt('pn0', 3) if nra == 3 else opt('pn0w', 3)
        for jj in range(n0): issue(jj)
        for jj in range(6):
            a.wait(vm=f'p{jj}')
            if jj in (0, 3, 5): stamp(a, f'Lp{jj}' if nra == 3 else f'Lq{jj}')
            a('s_barrier')
            if jj + n0 < 6: issue(jj + n0)
    if opt('tlb', 1) >= 0: pages(a)
    a(f's_cmp_lg_u32 {sMm}, 2\ns_cbranch_scc1 W_l0')
    srd(a, 8, 22, 884736); srd(a, 12, 28, 294912)
    a(f'''s_lshl_b32 s34, {sIt}, 2
    s_add_u32 s34, s34, {sW}
    s_mul_i32 {sA}, s34, {24*2304}
    s_add_u32 {sA}, {sA}, 1536
    s_mul_i32 {sLA}, {sW}, 18432
    s_mul_i32 {sB}, {sW}, {16*768}
    s_lshl_b32 s34, {sJt}, 7
    s_add_u32 {sB}, {sB}, s34
    s_lshl_b32 {sLB}, {sW}, 11
    s_and_b32 s34, {sW}, 1
    s_lshl_b32 s34, s34, 6
    v_xor_b32 v{vA0}, s34, v{vA0}
    v_xor_b32 v{vA0+1}, s34, v{vA0+1}''')
    lstages(3, 1)
    a('s_branch W_done')
    a.label('W_l0'); a.vm = []
    if opt('prg', 9) >= 0:
        a(f'''s_waitcnt lgkmcnt(0)
        s_mul_i32 s35, {sTag}, 0x9e3779b1
        s_add_u32 s35, s35, 0x7f4a7c15
        s_add_u32 s35, s35, {sFast}
        s_lshl_b32 s34, {sXCD}, 7
        s_add_u32 s34, s34, {FP}
        v_mov_b32 v20, 0
        s_mov_b32 s56, {opt('prl', 16)}''')
        a.label('W_pw')
        a(f'''buffer_load_dword v21, v20, {SWS}, s34 offen sc1
        s_waitcnt vmcnt(0)
        v_cmp_ne_u32 vcc, s35, v21
        s_cbranch_vccz W_go
        s_sub_u32 s56, s56, 1
        s_cmp_lg_u32 s56, 0
        s_cbranch_scc1 W_pw''')
        a.label('W_go'); a.vm = []
        stamp(a, 'Lgo')
    srd(a, 8, 30, 884736); srd(a, 12, 36, 294912)
    a(f'''s_lshl_b32 s34, {sIt}, 2
    s_add_u32 s34, s34, {sW}
    s_mul_i32 {sA}, s34, {32*2304}
    s_mul_i32 s35, {sMm}, 1536
    s_add_u32 {sA}, {sA}, s35
    s_mul_i32 {sLA}, {sW}, 24576
    s_cmp_eq_u32 {sMm}, 1
    s_cbranch_scc1 W_l1
    s_lshl_b32 s34, {sJt}, 2
    s_add_u32 s34, s34, {sW}
    s_mul_i32 {sB}, s34, {16*2304}
    s_add_u32 {sB}, {sB}, 768
    s_mul_i32 {sLB}, {sW}, 12288''')
    lstages(4, 0)
    a('s_branch W_done')
    a.label('W_l1'); a.vm = []
    a(f'''s_mul_i32 {sB}, {sW}, {16*768}
    s_lshl_b32 s34, {sJt}, 7
    s_add_u32 {sB}, {sB}, s34
    s_lshl_b32 {sLB}, {sW}, 11''')
    lstages(4, 1)
    a.label('W_done'); a.vm = []; a.lg = []
    a.wait_all()
    tag_ready(a)
    a(f'''s_barrier
    s_cmp_lg_u32 {sRole}, 0
    s_cbranch_scc1 W_done3''')
    a.label('W_done2')
    a(f'''
    s_lshl_b32 s34, {sS8}, 3
    s_add_u32 s34, s34, {sXCD}
    s_lshl_b32 s34, s34, 7
    s_mov_b32 s35, {GW}''')
    flag_w0(a, 's34', 's35', 32)
    stamp(a, 'wpub')
    hp_t0(a)
    if opt('tp', 9) == 3:
        a(f'''s_lshl_b32 s34, {sS8}, 2
        s_add_u32 s34, s34, {sW}
        s_mul_i32 s35, s34, 6656
        s_mul_i32 s36, {sXCD}, 212992
        s_add_u32 s35, s35, s36
        s_add_u32 s35, s35, {WS_Q}
        s_mul_i32 s36, s34, 6144
        s_mul_i32 s37, {sXCD}, 196608
        s_add_u32 s36, s36, s37
        s_add_u32 s36, s36, {WS_VP}''')
        for sb, n in (('s35', 7), ('s36', 6)):
            for i in range(n):
                if i == 4: a(f's_add_u32 {sb}, {sb}, 4096')
                a(f'buffer_load_dwordx4 v[64:67], v{vL16}, {SWS}, {sb} offen offset:{(i&3)*1024}')
        a(f's_lshl_b32 s34, {sXCD}, 9\ns_add_u32 s34, s34, {FC1}\nv_lshlrev_b32 v68, 3, v1\nbuffer_load_dword v64, v68, {SWS}, s34 offen')
        a.vm = []
    def wd3():
        a.label('W_done3')
        if opt('tp', 9) == 0: touch2(a)
        a('s_branch P2_l')
    TAIL.append(wd3)
    import v18b
    v18b.phase2(a, globals())
    a.label('K_end')
    a('s_endpgm')
    a.cond = True
    k = 0
    while k < len(TAIL): a.vm = []; a.lg = []; TAIL[k](); k += 1
    return a

KNAME = 'standalone__video_timesformer__vision_kernel'
if __name__ == '__main__':
    out = sys.argv[1]
    a = build()
    head = open('standalone__video_timesformer__vision.s.ref').read().split('; Override launch')[0]
    head += '''; One launch, 256 workgroups (one per CU) of 4 compute + 4 loader/helper waves.
'''
    s = head + '; @launch grid=(256,1,1) block=(512,1,1) lds=151552\n.amdgcn_target "amdgcn-amd-amdhsa--gfx950"\n.text\n'
    s += f'.globl {KNAME}\n.p2align 8\n.type {KNAME},@function\n{KNAME}:\n' + a.text()
    s += f'''; unreachable filler: the code warm-up load at the top reads a fixed 32 KiB behind the entry point
.fill 2048, 4, 0xbf810000
.section .rodata,"a"
.p2align 6
.amdhsa_kernel {KNAME}
  .amdhsa_next_free_vgpr 256
  .amdhsa_next_free_sgpr 102
  .amdhsa_accum_offset 256
  .amdhsa_group_segment_fixed_size 0
  .amdhsa_kernarg_size 64
  .amdhsa_user_sgpr_count 2
  .amdhsa_user_sgpr_kernarg_segment_ptr 1
  .amdhsa_system_sgpr_workgroup_id_x 1
.end_amdhsa_kernel
'''
    open(out, 'w').write(s)
    if PROFILE: open(out + '.stamps', 'w').write(repr(St.names))
    print('instructions', sum(1 for i in a.ins if not i.label), 'pad states', a.pads)
```

```python
def phase2(a, G):
    globals().update({k: v for k, v in G.items() if not k.startswith('__')})
    sT = sXCD
    sRQ, sS, sQT, sCH, sT0, sT1 = 's50', 's51', 's52', 's53', 's54', 's55'
    sK, sSt1, sSt2, sQ, sVP, sOut, sF1, sF2, sOwn, sRs, sFS, sTP = 's56', 's57', 's58', 's59', 's60', 's61', 's62', 's63', 's64', 's66', 's65', 's3'
    LW, XB, LT = 0, 81920, 131072
    LQ, LS, LP, LML, LO = 0, 13312, 16384, 24576, 26624
    vL16, vQ12, vTb, vA, vB, vSt = 10, 11, 12, 15, 9, 8
    QF, M_, T_ = 32, 4, 5
    vP, vML, vMLr = 13, 14, 12
    def common():
        a(f'''s_lshr_b32 {sRQ}, {sI}, 3
        s_lshr_b32 {sTP}, {sW}, 1
        s_lshr_b32 {sQT}, {sI}, 1
        s_and_b32 {sCH}, {sI}, 1
        s_mul_i32 {sK}, {sT}, 196608
        s_mul_i32 s35, {sW}, 12288
        s_add_u32 {sK}, {sK}, s35
        s_add_u32 {sK}, {sK}, {WS_X1}
        v_lshrrev_b32 v2, 4, v1
        v_and_b32 v3, 15, v1
        v_bfe_u32 v5, v1, 4, 1''')
    def attn_addr(role):
        a(f'''s_lshl_b32 s34, {sTP}, 10
        s_and_b32 s35, {sW}, 1
        s_lshl_b32 s35, s35, 3
        s_add_u32 s34, s34, s35
        s_add_u32 s34, s34, {LP}
        v_add_u32 v{vP}, s34, v{vL16}
        s_lshl_b32 s34, {sW}, 2
        s_add_u32 s34, s34, {LML + 16*role}
        v_lshl_add_u32 v{vML}, v3, 5, s34
        v_lshlrev_b32 v{vMLr}, 5, v3
        v_add_u32 v{vMLr}, {LML}, v{vMLr}
        v_lshlrev_b32 v{vQ12}, 2, v3
        v_lshl_add_u32 v{vQ12}, v5, 8, v{vQ12}
        v_add_u32 v{vQ12}, {LQ + 12288}, v{vQ12}''')
    def scores(nt, KF, SA, RD, MF, vMa, vRa, vPt, fill, role):
        pre = 'L' if role else ''
        def qrd(ks):
            d = QF + 4*(ks%4)
            if ks < 12: a(f'ds_read_b128 {vr(d,4)}, v{vL16} offset:{LQ + ks*1024}', tag=f'q{ks}')
            else: a(f'ds_read2_b32 {vr(d,2)}, v{vQ12} offset0:0 offset1:16\nds_read2_b32 {vr(d+2,2)}, v{vQ12} offset0:32 offset1:48', tag=f'q{ks}')
        for ks in range(3): qrd(ks)
        for t in range(nt): a(f'ds_read_b32 v{MF+4*t}, v{vMa+t}\nds_read_b128 {vr(RD+4*t,4)}, v{vRa+t}', tag='fs')
        for ks in range(13):
            a.wait(lg=f'q{ks}')
            for t in range(nt):
                kf = vr(KF+(t*12+ks)*4, 4) if ks < 12 else vr(MF+4*t, 4)
                d = vr(SA+4*t, 4)
                a(f'v_mfma_f32_16x16x32_bf16 {d}, {kf}, {vr(QF+4*(ks%4),4)}, {"0" if ks == 0 else d}')
            if ks + 3 < 13: qrd(ks + 3)
            if ks == 3:
                a('s_mov_b32 s36, -1\ns_mov_b32 s37, 0')
                for t in range(nt): a(f'v_cndmask_b32 v{MF+4*t}, 0, v{MF+4*t}, s[36:37]')
            if 4 <= ks < 7:
                for t in range(nt): a(f'v_mov_b32 v{MF+4*t+ks-3}, v{MF+4*t}')
            fill()
        n = 4*nt
        for i in range(n): a(f'v_mul_f32 v{SA+i}, v{SA+i}, v{RD+i}')
        a(f'v_max3_f32 v{M_}, v{SA}, v{SA+1}, v{SA+2}')
        if nt == 1: a(f'v_max_f32 v{M_}, v{M_}, v{SA+3}')
        else:
            a(f'v_max3_f32 v{T_}, v{SA+3}, v{SA+4}, v{SA+5}\nv_max3_f32 v{M_}, v{M_}, v{SA+6}, v{SA+7}\nv_max3_f32 v{T_}, v{T_}, v{SA+8}, v{SA+9}\nv_max3_f32 v{M_}, v{M_}, v{SA+10}, v{SA+11}\nv_max_f32 v{M_}, v{M_}, v{T_}')
        for sw in ('v_permlane16_swap_b32', 'v_permlane32_swap_b32'):
            a(f'v_mov_b32 v{T_}, v{M_}'); fill(); a(f'{sw} v{M_}, v{T_}\nv_max_f32 v{M_}, v{M_}, v{T_}')
        a(f's_mov_b64 exec, 0xffff\nds_write_b32 v{vML}, v{M_}\ns_mov_b64 exec, -1')
        fill()
        a('s_waitcnt lgkmcnt(0)'); a.lg = []
        stamp(a, pre + 's1'); a('s_barrier')
        a(f'ds_read_b128 {vr(QF,4)}, v{vMLr}\nds_read_b128 {vr(QF+4,4)}, v{vMLr} offset:16', tag='mx')
        fill(); fill()
        a.wait(lg='mx')
        a(f'v_max3_f32 v{M_}, v{QF}, v{QF+1}, v{QF+2}\nv_max3_f32 v{T_}, v{QF+3}, v{QF+4}, v{QF+5}\nv_max3_f32 v{M_}, v{M_}, v{QF+6}, v{QF+7}\nv_max_f32 v{M_}, v{M_}, v{T_}')
        for i in range(n): a(f'v_sub_f32 v{SA+i}, v{SA+i}, v{M_}')
        for t in range(nt):
            for i in range(4): a(f'v_exp_f32 v{SA+4*t+i}, v{SA+4*t+i}')
            for i in range(2): a(f'v_cvt_pk_bf16_f32 v{QF+2*t+i}, v{SA+4*t+2*i}, v{SA+4*t+2*i+1}')
            a(f'ds_write_b64 v{vPt+t}, {vr(QF+2*t,2)}')
        for t in range(1, nt):
            for i in range(4): a(f'v_add_f32 v{SA+i}, v{SA+i}, v{SA+4*t+i}')
        a(f'v_add_f32 v{SA}, v{SA}, v{SA+2}\nv_add_f32 v{SA+1}, v{SA+1}, v{SA+3}\nv_add_f32 v{SA}, v{SA}, v{SA+1}')
        for sw in ('v_permlane16_swap_b32', 'v_permlane32_swap_b32'):
            a(f'v_mov_b32 v{T_}, v{SA}'); fill(); a(f'{sw} v{SA}, v{T_}\nv_add_f32 v{SA}, v{SA}, v{T_}')
        a(f's_mov_b64 exec, 0xffff\nds_write_b32 v{vML}, v{SA} offset:512\ns_mov_b64 exec, -1')
        a('s_waitcnt lgkmcnt(0)'); a.lg = []
        stamp(a, pre + 's2'); a('s_barrier')
    def tile_addr(sA_, k, vMa, vRa, vPt):
        a(f'''s_lshl_b32 s34, {sA_}, 2
        s_add_u32 s34, s34, {sW}
        s_lshl_b32 s34, s34, 6
        s_add_u32 s34, s34, {LS}
        v_lshl_add_u32 v{vMa+k}, v3, 2, s34
        s_add_u32 s34, s34, 1024
        v_lshl_add_u32 v{vRa+k}, v2, 4, s34
        s_lshl_b32 s34, {sA_}, 11
        v_add_u32 v{vPt+k}, s34, v{vP}''')
    def run(q, n):
        while n > 0 and q:
            x = q.pop(0); n -= 1
            if x == 's_nop 0': continue
            if isinstance(x, tuple):
                if x[0] == 'v': a.wait(vm=x[1])
                elif x[0] == 'l': a.wait(lg=x[1])
                else: a(x[0], tag=x[1])
            else: a(x)
    a.label('P2_c'); a.vm = []; a.lg = []
    stamp(a, 'p2c')
    common()
    RD, MF, RT = 16, 24, 6
    WF, XR, ACC, PK, AQ, SR, ONE = 100, 56, 76, 100, 112, 32, 72
    vWa, vWb, vXa = 72, 73, 11
    VF, KF = 64, 208
    a(f'''s_and_b32 {sS}, {sI}, 7
    s_lshl_b32 {sS}, {sS}, 1
    s_and_b32 s34, {sW}, 1
    s_add_u32 {sS}, {sS}, s34
    s_mul_i32 s35, s34, 39936
    v_add_u32 v{vWa}, s35, v{vL16}
    v_cmp_eq_u32 vcc, 3, v2
    v_cndmask_b32 v6, v2, 0, vcc
    v_mul_u32_u24 v6, 768, v6
    v_lshl_add_u32 v6, v3, 2, v6
    s_add_u32 s35, s35, 36864
    v_add_u32 v{vWb}, s35, v6
    s_mul_i32 s35, {sTP}, 24576
    s_add_u32 s35, s35, {XB}
    v_add_u32 v{vXa}, s35, v{vL16}
    s_mul_i32 s34, {sRQ}, 49152
    s_add_u32 {sK}, {sK}, s34
    s_lshl_b32 s69, {sRQ}, 1
    s_add_u32 s69, s69, {sTP}
    s_lshl_b32 s34, s69, 9
    s_mul_i32 s35, {sT}, 49152
    s_add_u32 s34, s34, s35
    s_add_u32 {sSt1}, s34, {WS_ST}
    s_lshl_b32 s34, {sT}, 11
    s_add_u32 {sFS}, s34, {WS_FS}
    s_lshl_b32 s34, {sT}, 9
    s_add_u32 {sF1}, s34, {FC1}
    s_add_u32 {sF2}, s34, {FC2}
    s_lshl_b32 s34, {sT}, 4
    s_add_u32 s35, s34, {sQT}
    s_mul_i32 {sQ}, s35, 13312
    s_add_u32 {sQ}, {sQ}, {WS_Q}
    s_lshl_b32 s35, s69, 1
    s_add_u32 s34, s34, s35
    s_mul_i32 s34, s34, 13312
    s_add_u32 s34, s34, {WS_Q}
    s_mul_i32 s35, {sS}, 1536
    s_add_u32 s68, s34, s35
    s_lshl_b32 s35, {sS}, 6
    s_add_u32 s34, s34, s35
    s_add_u32 {sSt2}, s34, 12288
    v_lshrrev_b32 v4, 5, v1
    v_and_b32 v6, 31, v1
    v_lshlrev_b32 v{vSt}, 4, v6
    v_mul_u32_u24 v7, 24576, v4
    v_add_u32 v{vSt}, v{vSt}, v7
    s_add_u32 s34, {sM1K}, {LT}
    v_lshl_add_u32 v{vTb}, v6, 2, s34
    v_lshl_add_u32 v{vTb+1}, v3, 2, s34
    v_lshl_add_u32 v{vTb+2}, v2, 4, s34
    v_lshlrev_b32 v74, 2, v6
    v_lshlrev_b32 v7, 4, v3
    v_lshl_add_u32 v{vA}, v4, 8, v7
    v_lshl_add_u32 v{vA}, v5, 3, v{vA}
    v_mul_u32_u24 v{vB}, 13312, v5
    v_lshl_add_u32 v{vB}, v3, 2, v{vB}
    s_lshl_b32 {sOwn}, {sI}, 4
    s_lshl_b32 s34, {sW}, 2
    s_add_u32 {sOwn}, {sOwn}, s34
    s_mul_i32 {sVP}, {sT}, 196608
    s_mul_i32 s35, {sQT}, 12288
    s_add_u32 {sRs}, {sVP}, s35
    s_mul_i32 s34, {sCH}, 6144
    s_add_u32 {sRs}, {sRs}, s34
    s_mul_i32 s34, {sW}, 1536
    s_add_u32 {sRs}, {sRs}, s34
    s_add_u32 {sRs}, {sRs}, {WS_X1}
    s_add_u32 {sOut}, {sVP}, s35
    s_mul_i32 s35, {sCH}, 384
    s_add_u32 {sOut}, {sOut}, s35
    s_mul_i32 s35, {sW}, 96
    s_add_u32 {sOut}, {sOut}, s35
    s_mul_i32 s34, s69, 24576
    s_add_u32 s34, s34, {sVP}
    s_mul_i32 s35, {sS}, 3072
    s_add_u32 s34, s34, s35
    s_add_u32 s67, s34, {WS_VP - 8*3072}
    s_mul_i32 s35, {sCH}, 12288
    s_add_u32 {sVP}, {sVP}, s35
    s_mul_i32 s35, {sW}, 3072
    s_add_u32 {sVP}, {sVP}, s35
    s_add_u32 {sVP}, {sVP}, {WS_VP}
    s_lshl_b32 s69, s69, 7
    s_add_u32 s69, s69, {sFS}
    s_mul_i32 s20, {sW}, 12288
    s_add_u32 s20, s20, {XB}''')
    a('v_mov_b32 v4, v74')
    stamp(a, 'p2s')
    a('s_barrier')
    stamp(a, 'gsync')
    wq = []
    for ks in range(13):
        for u in range(3):
            d = WF + (ks*3+u)*4
            if ks < 12: wq.append(f'ds_read_b128 {vr(d,4)}, v{vWa} offset:{(ks*3+u)*1024}')
            else: wq.append(f'ds_read2_b32 {vr(d,2)}, v{vWb} offset0:{16*u} offset1:{16*u+48}\nds_read2_b32 {vr(d+2,2)}, v{vWb} offset0:{16*u+96} offset1:{16*u+144}')
    vm = []
    for ks in range(12):
        vm.append(((f's_add_u32 m0, s20, {ks*1024}\n' + (f's_add_u32 {sK}, {sK}, 4096\n' if ks else '') if ks % 4 == 0 else '') + f'buffer_load_dwordx4 v{vL16}, {SWS}, {sK} offen offset:{(ks&3)*1024} sc1 lds', f'x{ks>>2}'))
    st = [((f's_add_u32 {sSt1}, {sSt1}, 4096\n' if i else '') + f'buffer_load_dwordx4 {vr(SR+4*i,4)}, v{vSt}, {SWS}, {sSt1} offen sc1', 'st') for i in range(6)]
    SP_ = opt('stp', 8)
    for k, (t, tag) in enumerate(vm[:SP_] + st + vm[SP_:]):
        a(t, tag=tag)
        if k >= 1:
            for _ in range(3):
                if wq: a(wq.pop(0))
    for x in wq: a(x)
    late = [f's_mov_b32 s36, {fbits(1/384)}', f's_mov_b32 s37, {fbits(1e-5)}', ('v', 'st')]
    for k in (0, 1): late += [f'v_add_f32 v{SR+k}, v{SR+k}, v{SR+4+k}', f'v_add_f32 v{SR+8+k}, v{SR+8+k}, v{SR+12+k}', f'v_add_f32 v{SR+16+k}, v{SR+16+k}, v{SR+20+k}']
    for k in (0, 1): late += [f'v_add_f32 v{SR+k}, v{SR+k}, v{SR+8+k}']
    for k in (0, 1): late += [f'v_add_f32 v{SR+k}, v{SR+k}, v{SR+16+k}']
    late += f'''v_mov_b32 v{SR+2}, v{SR}
    v_mov_b32 v{SR+3}, v{SR+1}
    v_cmp_eq_u32 vcc, 3, v2
    v_permlane32_swap_b32 v{SR}, v{SR+2}
    v_permlane32_swap_b32 v{SR+1}, v{SR+3}
    v_add_f32 v{SR}, v{SR}, v{SR+2}
    v_add_f32 v{SR+1}, v{SR+1}, v{SR+3}
    v_mul_f32 v{SR}, s36, v{SR}
    v_mul_f32 v{SR+2}, v{SR}, v{SR}
    v_fma_f32 v{SR+1}, v{SR+1}, s36, -v{SR+2}
    v_max_f32 v{SR+1}, 0, v{SR+1}
    v_add_f32 v{SR+1}, s37, v{SR+1}
    v_rsq_f32 v{SR+1}, v{SR+1}
    v_cvt_pk_bf16_f32 v{SR}, -v{SR}, -v{SR}
    ds_write_b32 v{vTb}, v{SR}
    ds_write_b32 v{vTb}, v{SR+1} offset:128'''.split('\n')
    late.append((f'ds_read2_b32 {vr(SR+4,2)}, v{vTb+1} offset0:0 offset1:16', 't'))
    late.append((f'ds_read2_b32 {vr(RT,2)}, v{vTb+1} offset0:32 offset1:48', 't'))
    for t in range(2): late.append((f'ds_read_b128 {vr(RD+4*t,4)}, v{vTb+2} offset:{128+64*t}', 't'))
    late += ['s_nop 0']*3 + [('l', 't')]
    for t in range(2):
        late.append(f'v_cndmask_b32 v{MF+4*t}, v{SR+4+t}, 0, vcc')
        for d in range(1, 4): late.append(f'v_mov_b32 v{MF+4*t+d}, v{MF+4*t}')
    late += [f'v_mov_b32 v{ONE+k}, 0x3f803f80' for k in range(4)]
    late += [f'v_mul_f32 v{RT}, {fbits(SCALE2)}, v{RT}', f'v_mul_f32 v{RT+1}, {fbits(SCALE2)}, v{RT+1}']
    def xrd(ks):
        for t in range(2): a(f'ds_read_b128 {vr(XR + (ks%2)*8 + 4*t,4)}, v{vXa} offset:{t*12288 + ks*1024}', tag=f'f{ks}')
    a(f's_cmp_ge_u32 {sS}, 8\ns_cbranch_scc1 P2_v')
    for var in range(2):
        if var == 0: vmsave, lgsave = list(a.vm), list(a.lg)
        else: a.label('P2_v'); a.vm, a.lg = list(vmsave), list(lgsave)
        lq = list(late)
        a.wait(vm='x0'); a('s_barrier')
        stamp(a, 'k0')
        xrd(0)
        for ks in range(13):
            if ks == 12: run(lq, 1000)
            if ks in (3, 7): a.wait(vm=f'x{(ks+1)>>2}'); a('s_barrier'); stamp(a, f'k{ks+1}')
            if ks < 12: a.wait(lg=f'f{ks}')
            for u in range(3):
                wf = vr(WF + (ks*3+u)*4, 4)
                for t in range(2):
                    xf = vr(XR + (ks%2)*8 + 4*t, 4) if ks < 12 else vr(MF+4*t, 4)
                    d = vr(ACC + (t*3+u)*4, 4)
                    A, B = (wf, xf) if var == 0 else (xf, wf)
                    a(f'v_mfma_f32_16x16x32_bf16 {d}, {A}, {B}, {"0" if ks == 0 else d}')
                    if ks >= opt('lq0', 5): run(lq, 2)
                if u == 0 and ks + 1 < 12: xrd(ks + 1)
        stamp(a, 'mm2end')
        Lf = a.newlabel('fs')
        if var == 0:
            a(f's_cmp_lg_u32 {sS}, 0\ns_cbranch_scc1 {Lf}')
            a.cond = True
            a(f's_mov_b32 exec_hi, 0\nbuffer_store_dword v{SR}, v4, {SWS}, s69 offen {WT}\nbuffer_store_dword v{SR+1}, v4, {SWS}, s69 offen offset:1024 {WT}\ns_mov_b32 exec_hi, -1')
            a.cond = False
            a.label(Lf)
            for t in range(2):
                for u in range(3):
                    b = ACC + (t*3+u)*4
                    for d in range(2): a(f'v_pk_mul_f32 {vr(b+2*d,2)}, {vr(b+2*d,2)}, {vr(RT,2)} op_sel:[0,{t}] op_sel_hi:[1,{t}]')
                    for d in range(2): a(f'v_cvt_pk_bf16_f32 v{PK+(t*3+u)*2+d}, v{b+2*d}, v{b+2*d+1}')
            for t in range(2): a(f'v_mfma_f32_16x16x32_bf16 {vr(ACC+4*t,4)}, {vr(ONE,4)}, {vr(PK+6*t,4)}, 0')
            for t in range(2):
                if t:
                    a(f's_add_u32 s68, s68, 13312\ns_nop 1')
                    for tt in range(2): a(f'v_mfma_f32_16x16x16_bf16 {vr(ACC+8+4*tt,4)}, {vr(ONE,2)}, {vr(PK+6*tt+4,2)}, {vr(ACC+4*tt,4)}')
                for u in range(3): a(f'buffer_store_dwordx2 {vr(PK+(t*3+u)*2,2)}, v{vA}, {SWS}, s68 offen offset:{u*512} {WT}')
            a(f'''v_cmp_eq_u32 vcc, 1, v5
            v_cndmask_b32 v{AQ}, v{ACC+8}, v{ACC+12}, vcc
            v_cvt_pk_bf16_f32 v{AQ+1}, v{AQ}, v{AQ}
            v_lshlrev_b32 v{AQ+1}, 16, v{AQ+1}
            v_sub_f32 v{AQ+1}, v{AQ}, v{AQ+1}
            v_cvt_pk_bf16_f32 v{AQ}, v{AQ}, v{AQ+1}
            s_mov_b32 exec_hi, 0
            buffer_store_dword v{AQ}, v{vB}, {SWS}, {sSt2} offen {WT}
            s_mov_b32 exec_hi, -1
            s_branch P2_j''')
        else:
            for u in range(3):
                for t in range(2):
                    b = ACC + (t*3+u)*4
                    for d in range(2): a(f'v_pk_mul_f32 {vr(b+2*d,2)}, {vr(b+2*d,2)}, {vr(RD+4*t+2*d,2)}')
                    for d in range(2): a(f'v_cvt_pk_bf16_f32 v{PK+u*4+t*2+d}, v{b+2*d}, v{b+2*d+1}')
                a(f'buffer_store_dwordx4 {vr(PK+4*u,4)}, v{vL16}, {SWS}, s67 offen offset:{u*1024} {WT}')
    a.label('P2_j')
    a(f'v_add_u32 v6, s20, v{vL16}')
    for ks in range(12): a(f'ds_read_b128 {vr(KF+4*ks,4)}, v6 offset:{ks*1024}')
    attn_addr(0)
    vMa, vRa, vPt = 54, 55, 13
    tile_addr(sRQ, 0, vMa, vRa, vPt)
    a.wait_all()
    flag(a, sOwn, sF1, sFast, 6, '')
    stamp(a, 'flag2')
    RS = 48
    for u in range(3): a(f'buffer_load_dwordx2 {vr(RS+2*u,2)}, v{vA}, {SWS}, {sRs} offen offset:{u*512} sc1', tag='rs')
    vOW, vOR, vOG = 8, 60, 6
    a(f's_lshl_b32 s35, {sW}, 11\ns_add_u32 s35, s35, {LO}\nv_mul_u32_u24 v{vOW}, 112, v3\nv_lshl_add_u32 v{vOW}, v2, 3, v{vOW}\nv_add_u32 v{vOW}, s35, v{vOW}')
    for h in range(2):
        a(f'''v_add_u32 v56, {64*h}, v1
        v_mul_u32_u24 v57, 43, v56
        v_lshrrev_b32 v57, 8, v57
        v_mul_u32_u24 v58, 6, v57
        v_sub_u32 v58, v56, v58
        v_lshlrev_b32 v58, 4, v58
        v_mul_u32_u24 v56, 112, v57
        v_add3_u32 v{vOR+h}, v56, v58, s35
        v_mul_u32_u24 v56, 768, v57
        v_add_u32 v{vOG+h}, v56, v58''')
    a(f'''s_add_u32 {sT1}, {sQ}, {sM1K}
    s_add_u32 s21, {sQ}, 12288
    s_mov_b32 s22, {LQ + 12288}
    s_lshr_b32 s34, {sW}, 1
    s_and_b32 s35, {sW}, 1
    s_lshl_b32 s35, s35, 10
    s_add_u32 s23, {sFS}, s35
    s_add_u32 s35, s35, {LS}
    s_cmp_eq_u32 s34, 1
    s_cselect_b32 s21, s23, s21
    s_cselect_b32 s22, s35, s22''')
    lsync(a, 32, True, sF1, sF2, sOwn, lambda: None, 32, 0)
    stamp(a, 'sync2')
    for i in range(3):
        a(f's_add_u32 {sT0}, {sT1}, {i*4096}\ns_add_u32 m0, {sM1K}, {LQ + i*4096}\nbuffer_load_dwordx4 v{vL16}, {SWS}, {sT0} offen sc1 lds', tag='q')
    a(f's_mov_b32 m0, s22\nbuffer_load_dwordx4 v{vL16}, {SWS}, s21 offen sc1 lds', tag='q')
    vq = []
    for k8 in range(8):
        for u in range(3):
            vq.append(((f's_add_u32 {sVP}, {sVP}, 24576\n' if k8 and u == 0 else '') + f'buffer_load_dwordx4 {vr(VF+(k8*3+u)*4,4)}, v{vL16}, {SWS}, {sVP} offen offset:{u*1024} sc1', f'vp{k8}'))
    def fill():
        if vq: x = vq.pop(0); a(x[0], tag=x[1])
    for _ in range(opt('nv0', 4)): fill()
    a.wait(vm='q')
    a('s_barrier')
    stamp(a, 'q_in')
    scores(1, KF, 56, RD, MF, vMa, vRa, vPt, fill, 0)
    stamp(a, 'p_done')
    while vq: fill()
    PF, PA, RF, ML = 160, 32, 200, 212
    for k8 in range(8): a(f'ds_read_b128 {vr(PF+4*k8,4)}, v{vL16} offset:{LP + k8*1024}', tag=f'p{k8}')
    a(f'ds_read_b128 {vr(ML,4)}, v{vMLr} offset:512\nds_read_b128 {vr(ML+4,4)}, v{vMLr} offset:528', tag='ml')
    fx = ['s_mov_b32 s36, 0xffff0000'] + [x for u in range(3) for d in range(2) for x in (f'v_lshlrev_b32 v{RF+4*u+2*d}, 16, v{RS+2*u+d}', f'v_and_b32 v{RF+4*u+2*d+1}, s36, v{RS+2*u+d}')]
    fx += [('l', 'ml')] + [f'v_add_f32 v{ML+i}, v{ML+i}, v{ML+4+i}' for i in range(4)] + [f'v_add_f32 v{ML}, v{ML}, v{ML+1}', f'v_add_f32 v{ML+2}, v{ML+2}, v{ML+3}', f'v_add_f32 v{ML}, v{ML}, v{ML+2}', f'v_rcp_f32 v{ML}, v{ML}']
    for k8 in range(8):
        a.wait(vm=f'vp{k8}', lg=f'p{k8}')
        for u in range(3):
            d = vr(PA + 4*u, 4)
            a(f'v_mfma_f32_16x16x32_bf16 {d}, {vr(VF+(k8*3+u)*4,4)}, {vr(PF+4*k8,4)}, {"0" if k8 == 0 else d}')
            run(fx, 1 if k8 < 4 else 2)
    run(fx, 1000)
    stamp(a, 'pv_done')
    OP = 192
    for u in range(3):
        for d in range(2): a(f'v_pk_fma_f32 {vr(RF+4*u+2*d,2)}, {vr(PA+4*u+2*d,2)}, {vr(ML,2)}, {vr(RF+4*u+2*d,2)} op_sel_hi:[1,0,1]')
        for d in range(2): a(f'v_cvt_pk_bf16_f32 v{OP+2*u+d}, v{RF+4*u+2*d}, v{RF+4*u+2*d+1}')
        a(f'ds_write_b64 v{vOW}, {vr(OP+2*u,2)} offset:{u*32}')
    a(f'ds_read_b128 {vr(44,4)}, v{vOR}', tag='o0')
    a(f's_mov_b32 exec_hi, 0\nds_read_b128 {vr(48,4)}, v{vOR+1}\ns_mov_b32 exec_hi, -1', tag='o1')
    a.wait(lg='o0')
    a(f'buffer_store_dwordx4 {vr(44,4)}, v{vOG}, {SOUT}, {sOut} offen')
    a.wait(lg='o1')
    a(f's_mov_b32 exec_hi, 0\nbuffer_store_dwordx4 {vr(48,4)}, v{vOG+1}, {SOUT}, {sOut} offen\ns_mov_b32 exec_hi, -1')
    if PROFILE: a.wait_all()
    stamp(a, 'end')
    stamp_flush(a)
    a('s_endpgm')
    a.label('P2_l'); a.vm = []; a.lg = []
    stamp(a, 'Lp2')
    if opt('hint', 1):
        L = a.newlabel('hs')
        a(f's_cmp_lg_u32 {sI}, 31\ns_cbranch_scc1 {L}\ns_cmp_lg_u32 {sW}, 0\ns_cbranch_scc1 {L}')
        a.cond = True
        a(f's_lshl_b32 s34, {sT}, 7\ns_mov_b32 s35, {FP + 1024}'); flag(a, 's34', 's35', sFast, 52, ''); a.vm.pop()
        a.cond = False
        a.label(L)
    a(f's_and_b32 s68, {sI}, 7\ns_mul_i32 s68, s68, 79872\ns_mul_i32 s69, {sW}, 20480\ns_add_u32 s68, s68, s69\ns_add_u32 s68, s68, {WS_W}')
    if opt('hfirst', 0):
        if opt('hint', 1):
            Lh, Lg = a.newlabel('hw'), a.newlabel('hg')
            a(f's_cmp_ge_u32 {sI}, 8\ns_cbranch_scc1 {Lg}\ns_lshl_b32 s34, {sT}, 7\ns_add_u32 s34, s34, {FP + 1024}\nv_mov_b32 v34, 0\ns_mov_b32 s35, 64')
            a.label(Lh)
            a(f'''s_mov_b64 exec, 1
            buffer_load_dword v35, v34, {SWS}, s34 offen sc1
            s_waitcnt vmcnt(0)
            v_cmp_ne_u32 vcc, {sFast}, v35
            s_mov_b64 exec, -1
            s_cbranch_vccz {Lg}
            s_sub_u32 s35, s35, 1
            s_cmp_lg_u32 s35, 0
            s_cbranch_scc1 {Lh}''')
            a.label(Lg); a.vm = []
    if opt('w6', 1):
        a(f'''s_and_b32 s34, {sI}, 3
        s_mul_i32 s34, s34, 3
        s_lshr_b32 s34, s34, 1
        s_bfe_u32 s35, {sI}, 0x10002
        s_mul_i32 s35, s35, 18
        s_add_u32 s34, s34, s35
        s_lshl_b32 s34, s34, 7
        s_add_u32 s67, s34, {GW}
        v_lshrrev_b32 v7, 1, v1
        v_mul_u32_u24 v7, 768, v7
        v_and_b32 v33, 1, v1
        v_lshl_add_u32 v7, v33, 7, v7''')
        gpoll(a, 6, 7, 's67', 33)
        stamp(a, 'Lwf')
        a('v_lshlrev_b32 v7, 7, v1')
    else: wpoll(a)
    for i in range(20):
        if i % 4 == 0: a(f's_add_u32 m0, s69, {LW + i*1024}' + ('\ns_add_u32 s68, s68, 4096' if i else ''))
        a(f'buffer_load_dwordx4 v{vL16}, {SWS}, s68 offen offset:{(i&3)*1024} sc1 lds')
    common()
    attn_addr(1)
    KL, SAL, RDL, MFL = 112, 48, 60, 72
    vMa, vRa, vPt = 84, 87, 90
    SK = ['s20', 's21', 's22']
    for k in range(3):
        a(f's_add_u32 s23, {sRQ}, {k+1}\ns_and_b32 s23, s23, 3\ns_mul_i32 s34, s23, 49152\ns_add_u32 {SK[k]}, {sK}, s34')
        tile_addr('s23', k, vMa, vRa, vPt)
    if not opt('hfirst', 0):
        if opt('hint', 1):
            Lh, Lg = a.newlabel('hw'), a.newlabel('hg')
            a(f's_cmp_ge_u32 {sI}, 8\ns_cbranch_scc1 {Lg}\ns_lshl_b32 s34, {sT}, 7\ns_add_u32 s34, s34, {FP + 1024}\nv_mov_b32 v34, 0\ns_mov_b32 s35, 64')
            a.label(Lh)
            a(f'''s_mov_b64 exec, 1
            buffer_load_dword v35, v34, {SWS}, s34 offen sc1
            s_waitcnt vmcnt(0)
            v_cmp_ne_u32 vcc, {sFast}, v35
            s_mov_b64 exec, -1
            s_cbranch_vccz {Lg}
            s_sub_u32 s35, s35, 1
            s_cmp_lg_u32 s35, 0
            s_cbranch_scc1 {Lh}''')
            a.label(Lg); a.vm = []
    if opt('gq', 0):
        a(f's_mul_i32 s67, {sRQ}, {48*128}\ns_add_u32 s67, s67, {GX}\ns_cmp_lg_u32 {sW}, 0\ns_cbranch_scc1 P2_lq')
        gpoll(a, 48, 7, 's67', 33)
        a.label('P2_lq')
        a.wait_all()
    else:
        a(f's_mul_i32 s67, {sW}, {48*128}\ns_add_u32 s67, s67, {GX}')
        gpoll(a, 48, 7, 's67', 33)
    stamp(a, 'Lxf')
    a('s_barrier')
    def rest_flags():
        a(f'''v_add_u32 v33, {sRQ}, v2
        v_add_u32 v33, 1, v33
        v_and_b32 v33, 3, v33
        v_mul_u32_u24 v33, 48, v33
        v_min_u32 v34, 11, v3
        v_add_u32 v33, v33, v34
        v_lshlrev_b32 v34, 7, v33
        s_mul_i32 s67, {sW}, {12*128}
        s_add_u32 s67, s67, {GX}''')
        gpoll(a, 48, 34, 's67', 33)
    def bump():
        L, Lp = a.newlabel('be'), a.newlabel('bp')
        a(f's_or_b32 s34, {sW}, s2\ns_cmp_lg_u32 s34, 0\ns_cbranch_scc1 {L}\ns_mov_b32 s35, {LIM_SLOW}\nv_lshlrev_b32 v7, 7, v1')
        a('\n'.join(f's_mov_b32 s{20+k}, {b}' for k, b in enumerate((GW, GX, GX + 8192, GX + 16384))))
        a.label(Lp)
        for k in range(4): a(f'buffer_load_dword v{32+k}, v7, {SWS}, s{20+k} offen sc1')
        a.wait_all(lg=False)
        for k in range(4): a(f'v_xor_b32 v{32+k}, {sTag}, v{32+k}')
        a(f'v_or_b32 v32, v32, v33\nv_or3_b32 v32, v32, v34, v35\ns_sub_u32 s35, s35, 1\nv_cmp_ne_u32 vcc, 0, v32\ns_cmp_lg_u32 s35, 0\ns_cselect_b64 vcc, vcc, 0\ns_cbranch_vccnz {Lp}')
        a(f's_mov_b32 s34, {WE}'); gflag(a, '0', 's34', 36)
        a.label(L); a.vm = []
    GQ = opt('gq', 0)
    kq = [(t, ks) for t in range(3) for ks in range(12)]
    def kl(n):
        for _ in range(n):
            if not kq: return
            t, ks = kq.pop(0)
            if ks % 4 == 0 and ks: a(f's_add_u32 {SK[t]}, {SK[t]}, 4096')
            a(f'buffer_load_dwordx4 {vr(KL+(t*12+ks)*4,4)}, v{vL16}, {SWS}, {SK[t]} offen offset:{(ks&3)*1024} sc1')
    GP = opt('gp', 1)
    a('s_barrier')
    if GQ and GP == 0: rest_flags()
    if not GQ or GP < 1: kl(opt('kb0', 3))
    a('s_barrier')
    if GQ and GP == 1: rest_flags()
    if not GQ or GP < 2: kl(opt('kb1', 5))
    a('s_barrier')
    if GQ and GP == 2: rest_flags()
    kl(opt('kb2', 6))
    a.wait_all(lg=False)
    kl(opt('kb3', 8))
    a.wait_all(lg=False)
    kl(36)
    stamp(a, 'Lkiss')
    a.wait_all()
    stamp(a, 'Lk')
    bump()
    a('s_barrier')
    if opt('prio', 1) == 3: a('s_setprio 1')
    scores(3, KL, SAL, RDL, MFL, vMa, vRa, vPt, lambda: None, 1)
    stamp_flush(a, 'L')
```

```python
import sys, math, struct
sys.path.insert(0, 'gen')
from asm import Asm
def opt(name, default):
    for x in sys.argv:
        if x.startswith(f'--{name}='): return int(x.split('=')[1])
    return default
HP = [x[5:] for x in sys.argv if x.startswith('--hp=')]
PROFILE = '--prof' in sys.argv or bool(HP)
SKIP = []
for x in sys.argv:
    if x.startswith('--skip='): SKIP = x[7:].split(',')
WS_W2 = 0x000000
WS_S  = 0x180000
WS_X1 = 0x240000
WS_W  = 0x3E0000
WS_Q  = 0x480000
WS_VP = 0x620000
WS_ST = 0xF00000
WS_FS = 0xF70000
FS1, FS2 = 0x7A0000, 0x7A2000
FC1, FC2 = 0x7A4000, 0x7A5000
GW2, GW, GX, WE, FP = 0x7A8000, 0x7AA000, 0x7AC000, 0x7B4000, 0x7A6000
WS_PROF = 0x7C0000
SLOW = 0x800000
WS_SIZE = 0x1000000
LIM_FAST = opt('lim', 24)
LIM_SLOW = 1 << 20
SCALE2 = 384 ** -0.5 * math.log2(math.e)
def fbits(x): return '0x%08x' % struct.unpack('<I', struct.pack('<f', x))[0]
def vr(b, n): return f'v[{b}:{b+n-1}]' if n > 1 else f'v{b}'
SX, SWQ, SWO, SWS, SOUT = 's[4:7]', 's[8:11]', 's[12:15]', 's[16:19]', 's[24:27]'
WT = 'sc0 sc1' if opt('wt', 1) == 2 else 'sc1'
def srd(a, base, ptr, size):
    a(f's_mov_b32 s{base}, s{ptr}\ns_mov_b32 s{base+1}, s{ptr+1}\ns_mov_b32 s{base+2}, {size}\ns_mov_b32 s{base+3}, 0x20000')
STAMP_REGS = [70, 72, 74, 76, 78, 80, 82, 84, 86, 88, 90, 92, 94, 96, 98, 100]
class St:
    names = {'C': [], 'L': []}
def stamp(a, name):
    if not PROFILE or name in SKIP or (HP and name not in ('start', HP[0])): return
    lst = St.names['L' if name.startswith('L') else 'C']
    if name not in lst: lst.append(name)
    k = lst.index(name)
    a(f's_memrealtime s[{STAMP_REGS[k]}:{STAMP_REGS[k]+1}]')
def hp_end(a, role):
    name = HP[0]
    lst = St.names[role]
    src = f's{STAMP_REGS[lst.index(name)]}' if name in lst else 's70'
    L1, L2 = a.newlabel('hp'), a.newlabel('hp')
    a(f's_waitcnt vmcnt(0) lgkmcnt(0)\nv_mov_b32 v2, {WS_PROF + 0x30000}')
    a.label(L1)
    a(f'''buffer_load_dwordx2 v[4:5], v2, {SWS}, 0 offen sc0 sc1
    s_waitcnt vmcnt(0)
    v_readfirstlane_b32 s34, v4
    v_readfirstlane_b32 s35, v5
    s_cmp_lg_u32 s35, {sTag}
    s_cbranch_scc1 {L1}
    s_sub_u32 s35, {src}, s34
    s_max_i32 s35, s35, 0
    s_mul_i32 s35, s35, 4
    s_add_u32 s35, s35, 4000''')
    a.label(L2)
    a(f'''s_memrealtime s[36:37]
    s_waitcnt lgkmcnt(0)
    s_sub_u32 s36, s36, s34
    s_cmp_lt_i32 s36, s35
    s_cbranch_scc1 {L2}''')
def hp_t0(a):
    if not HP: return
    L = a.newlabel('hq')
    a(f's_or_b32 s34, s2, {sW}\ns_or_b32 s34, s34, {sRole}\ns_cmp_lg_u32 s34, 0\ns_cbranch_scc1 {L}')
    a(f'v_mov_b32 v2, {WS_PROF + 0x30000}\nv_mov_b32 v4, s70\nv_mov_b32 v5, {sTag}\nbuffer_store_dwordx2 v[4:5], v2, {SWS}, 0 offen sc0 sc1')
    a.vm.pop()
    a.label(L)
def stamp_flush(a, role='C'):
    if HP: hp_end(a, role); return
    if not PROFILE: return
    a('s_waitcnt lgkmcnt(0)')
    for k in range(16): a(f'v_mov_b32 v{100+k}, s{STAMP_REGS[k]}')
    a(f'''v_lshrrev_b32 v8, 6, v0
    s_lshl_b32 s34, s2, 3
    v_add_u32 v8, s34, v8
    v_lshlrev_b32 v8, 6, v8
    v_add_u32 v8, {WS_PROF}, v8''')
    for k in range(4): a(f'buffer_store_dwordx4 v[{100+4*k}:{103+4*k}], v8, {SWS}, 0 offen offset:{16*k}')

sXCD, sW, sI, sRole = 's40', 's41', 's42', 's43'
sTag, sFast, sDelta = 's44', 's45', 's46'
sM1K = 's47'
TAIL = []

def lanes(a, n):
    a(f's_mov_b32 exec_lo, {hex((1 << min(n, 32)) - 1)}\ns_mov_b32 exec_hi, {hex((1 << max(n-32, 0)) - 1)}')
def gpoll(a, n, vA, sBase, vT):
    Lf, Lr, Ld = a.newlabel('gp'), a.newlabel('gr'), a.newlabel('gd')
    lanes(a, n)
    a(f's_mov_b32 s35, {LIM_SLOW}')
    a.label(Lf)
    a(f'buffer_load_dword v{vT}, v{vA}, {SWS}, {sBase} offen sc1')
    a.wait_all(lg=False)
    a(f'v_cmp_ne_u32 vcc, {sTag}, v{vT}\ns_cbranch_vccnz {Lr}')
    a.label(Ld)
    a('s_mov_b64 exec, -1')
    def tail():
        a.label(Lr)
        if opt('gsl', 0): a(f's_sleep {opt("gsl", 0)}')
        a(f's_sub_u32 s35, s35, 1\ns_cmp_lg_u32 s35, 0\ns_cbranch_scc1 {Lf}\ns_branch {Ld}')
    TAIL.append(tail)
def lsync(a, n, wide, sF1, sF2, sOwn, republish, vT, delta=SLOW):
    Lf, Lr, Ld, Ls = a.newlabel('lp'), a.newlabel('lr'), a.newlabel('ld'), a.newlabel('ls')
    vA, vD, vE = vT, vT + 2, vT + 6
    w = 4 if wide else 1
    ld = 'buffer_load_dwordx4' if wide else 'buffer_load_dword'
    def cmp(v, s):
        if not wide: a(f'v_cmp_ne_u32 vcc, {s}, v{v}'); return
        for k in range(4): a(f'v_xor_b32 v{v+k}, {s}, v{v+k}')
        a(f'v_or_b32 v{v}, v{v}, v{v+1}\nv_or3_b32 v{v}, v{v}, v{v+2}, v{v+3}\nv_cmp_ne_u32 vcc, 0, v{v}')
    lanes(a, n)
    a(f'v_lshlrev_b32 v{vA}, {4 if wide else 2}, v1\ns_mov_b32 {sDelta}, 0\ns_mov_b32 s35, {LIM_FAST}')
    a.label(Lf)
    a(f'{ld} {vr(vD, w)}, v{vA}, {SWS}, {sF1} offen sc1')
    a.wait_all(lg=False)
    cmp(vD, sFast)
    a(f's_cbranch_vccnz {Lr}')
    a.label(Ld)
    a('s_mov_b64 exec, -1')
    def tail():
        a.label(Lr)
        a(f's_sub_u32 s35, s35, 1\ns_cmp_lg_u32 s35, 0\ns_cbranch_scc1 {Lf}')
        if republish:
            a('s_mov_b64 exec, -1')
            republish()
            a.wait_all(lg=False)
            a(f'''s_mov_b64 exec, 1
            v_mov_b32 v{vD}, {sOwn}
            v_mov_b32 v{vD+1}, {sTag}
            buffer_store_dword v{vD+1}, v{vD}, {SWS}, {sF2} offen sc0 sc1''')
            lanes(a, n)
        a(f's_mov_b32 s35, {LIM_SLOW}')
        a.label(Ls)
        a(f'{ld} {vr(vD, w)}, v{vA}, {SWS}, {sF1} offen sc1\n{ld} {vr(vE, w)}, v{vA}, {SWS}, {sF2} offen sc0 sc1')
        a.wait_all(lg=False)
        cmp(vD, sFast)
        a(f's_cbranch_vccz {Ld}')
        cmp(vE, sTag)
        a(f's_mov_b32 {sDelta}, {delta}\ns_cbranch_vccz {Ld}\ns_mov_b32 {sDelta}, 0\ns_sub_u32 s35, s35, 1\ns_cmp_lg_u32 s35, 0\ns_cbranch_scc1 {Ls}\ns_branch {Ld}')
    TAIL.append(tail)
def flag(a, sOff, sBase, sVal, vT, fl):
    a(f'''s_mov_b64 exec, 1
    v_mov_b32 v{vT}, {sOff}
    v_mov_b32 v{vT+1}, {sVal}
    buffer_store_dword v{vT+1}, v{vT}, {SWS}, {sBase} offen {fl}
    s_mov_b64 exec, -1''')
def gflag(a, sOff, sBase, vT):
    a(f'''s_mov_b64 exec, 15
    v_lshl_add_u32 v{vT}, v1, 4, {sOff}
    v_mov_b32 v{vT+2}, {sTag}
    v_mov_b32 v{vT+3}, {sTag}
    v_mov_b32 v{vT+4}, {sTag}
    v_mov_b32 v{vT+5}, {sTag}
    buffer_store_dwordx4 {vr(vT+2,4)}, v{vT}, {SWS}, {sBase} offen sc0 sc1
    s_mov_b64 exec, -1''')
def flag_w0(a, sOff, sBase, vT):
    L = a.newlabel('f0')
    a(f's_cmp_lg_u32 {sW}, 0\ns_cbranch_scc1 {L}')
    a.cond = True; gflag(a, sOff, sBase, vT); a.vm.pop(); a.cond = False
    a.label(L)
def tag_ready(a):
    a(f'''s_mul_i32 {sTag}, {sTag}, 0x9e3779b1
    s_add_u32 {sTag}, {sTag}, 0x7f4a7c15
    s_add_u32 {sFast}, {sFast}, {sTag}''')

LW34 = 102400
LSX = 147456
def wpoll(a):
    a(f'v_lshlrev_b32 v7, 7, v1\ns_mov_b32 s67, {GW}')
    gpoll(a, 64, 7, 's67', 33)
    stamp(a, 'Lwf')
def wcopy(a):
    a(f's_and_b32 s68, {sI}, 15\ns_mul_i32 s68, s68, 39936\ns_mul_i32 s34, {sW}, 10240\ns_add_u32 s68, s68, s34\ns_add_u32 s68, s68, {WS_W}\ns_add_u32 s34, s34, {LW34}')
    for i in range(10):
        if i % 4 == 0: a(f's_add_u32 m0, s34, {i*1024}' + ('\ns_add_u32 s68, s68, 4096' if i else ''))
        a(f'buffer_load_dwordx4 v10, {SWS}, s68 offen offset:{(i&3)*1024} sc1 lds')
def pages(a):
    a(f"""s_mov_b64 exec, 0xffff
    v_lshlrev_b32 v52, 20, v1
    buffer_load_dword v53, v52, {SWS}, 0 offen
    s_mov_b64 exec, 3
    buffer_load_dword v54, v52, {SOUT}, 0 offen
    s_mov_b64 exec, -1""")
def touch2(a):
    Lt = a.newlabel('tc'); Lu = a.newlabel('tc')
    a(f"""s_and_b32 s36, {sI}, 15
    s_lshr_b32 s37, {sI}, 4
    s_cmp_ge_u32 s36, 8
    s_cbranch_scc1 {Lt}
    s_lshl_b32 s34, {sXCD}, 4
    s_lshl_b32 s35, s37, 3
    s_add_u32 s34, s34, s35
    s_lshl_b32 s35, {sW}, 1
    s_add_u32 s34, s34, s35
    s_mul_i32 s34, s34, 13312
    s_mul_i32 s35, s36, 1536
    s_add_u32 s34, s34, s35
    s_add_u32 s34, s34, {WS_Q}
    s_add_u32 s35, s34, 13312""")
    for sb in ('s34', 's35'): a(f'buffer_load_dwordx4 v[64:67], v10, {SWS}, {sb} offen\ns_mov_b32 exec_hi, 0\nbuffer_load_dwordx4 v[64:67], v10, {SWS}, {sb} offen offset:1024\ns_mov_b32 exec_hi, -1')
    a(f's_branch {Lu}'); a.label(Lt)
    a(f"""s_lshl_b32 s34, {sW}, 1
    s_add_u32 s34, s34, s37
    s_lshl_b32 s35, {sXCD}, 3
    s_add_u32 s34, s34, s35
    s_mul_i32 s34, s34, 24576
    s_mul_i32 s35, s36, 3072
    s_add_u32 s34, s34, s35
    s_add_u32 s34, s34, {WS_VP - 8*3072}""")
    for u in range(3): a(f'buffer_load_dwordx4 v[64:67], v10, {SWS}, s34 offen offset:{u*1024}')
    a.label(Lu)
    a(f"""s_lshr_b32 s34, {sI}, 1
    s_lshl_b32 s35, {sXCD}, 4
    s_add_u32 s34, s34, s35
    s_mul_i32 s34, s34, 13312
    s_add_u32 s34, s34, {WS_Q + 12288}
    s_lshl_b32 s35, {sW}, 8
    v_lshl_add_u32 v68, v1, 2, s35
    buffer_load_dword v64, v68, {SWS}, s34 offen
    s_lshl_b32 s34, {sXCD}, 9
    s_add_u32 s34, s34, {FC1}
    v_lshlrev_b32 v68, 3, v1
    buffer_load_dword v64, v68, {SWS}, s34 offen""")
    a.vm = []

def build():
    a = Asm()
    def emit(x):
        if isinstance(x, tuple): a(x[0], tag=x[1])
        else: a(x)
    a(f'''s_cmp_ge_u32 s2, 256
    s_cbranch_scc1 K_end
    s_load_dwordx4 s[20:23], s[0:1], 0
    s_load_dwordx4 s[28:31], s[0:1], 16
    s_load_dwordx4 s[36:39], s[0:1], 32
    s_load_dwordx2 s[32:33], s[0:1], 56
    v_and_b32 v1, 63, v0
    v_lshrrev_b32 v2, 6, v0
    s_and_b32 {sXCD}, s2, 7
    v_readfirstlane_b32 {sW}, v2
    s_lshr_b32 {sI}, s2, 3''')
    stamp(a, 'start')
    if HP:
        St.names['L'].append('Lstart')
        a('s_waitcnt lgkmcnt(0)')
        for r in STAMP_REGS[1:]: a(f's_mov_b32 s{r}, s70')
    a('s_getpc_b64 s[48:49]')
    a.label('K_pc')
    a(f'''s_sub_u32 s48, s48, K_pc-{KNAME}
    s_subb_u32 s49, s49, 0
    s_lshl_b32 s34, {sI}, 3
    s_add_u32 s34, s34, {sW}
    s_and_b32 s34, s34, 31
    s_lshl_b32 s34, s34, 10
    v_lshl_add_u32 v9, v1, 4, s34
    global_load_dwordx4 v[252:255], v9, s[48:49]
    s_lshr_b32 {sRole}, {sW}, 2
    s_and_b32 {sW}, {sW}, 3
    s_lshl_b32 {sM1K}, {sW}, 10
    s_getreg_b32 {sFast}, hwreg(HW_REG_XCC_ID)
    s_and_b32 {sFast}, {sFast}, 15
    s_add_u32 {sFast}, {sFast}, 1
    v_lshrrev_b32 v2, 3, v1
    v_and_b32 v3, 7, v1
    v_lshlrev_b32 v10, 4, v1
    s_cmp_lt_u32 {sI}, 8
    s_cbranch_scc1 K_pre''')
    PRIO = opt('prio', 1)
    T8, G8, vL16 = 2, 3, 10
    sG, sJ, sP, sHF, sX, sM = 's50', 's51', 's52', 's53', 's54', 's55'
    sR = ['s56', 's57', 's58', 's59', 's60', 's61']
    ROT = opt('rot', 7)
    a(f'''s_sub_u32 {sJ}, {sI}, 8
    s_mul_i32 s34, {sJ}, 43
    s_lshr_b32 s34, s34, 8
    s_mul_i32 s35, s34, 6
    s_sub_u32 {sJ}, {sJ}, s35
    s_lshl_b32 {sG}, {sXCD}, 2
    s_add_u32 {sG}, {sG}, s34
    s_lshr_b32 {sP}, {sW}, 1
    s_and_b32 {sHF}, {sW}, 1
    s_lshl_b32 {sM}, {sW}, 11''')
    def rot_r(dst):
        if ROT == 4: a(f's_mul_i32 {dst}, {sXCD}, 3\ns_lshr_b32 {dst}, {dst}, 2')
        elif ROT == 5: a(f's_add_u32 {dst}, {sXCD}, 4\ns_and_b32 {dst}, {dst}, 7\ns_mul_i32 {dst}, {dst}, 3\ns_lshr_b32 {dst}, {dst}, 2')
        elif ROT == 6: a(f's_and_b32 {dst}, {sG}, 1\ns_mul_i32 {dst}, {dst}, 4\ns_add_u32 {dst}, {dst}, {sXCD}\ns_and_b32 {dst}, {dst}, 7\ns_mul_i32 {dst}, {dst}, 3\ns_lshr_b32 {dst}, {dst}, 2')
        elif ROT == 7: a(f's_mul_i32 {dst}, {sXCD}, 3\ns_lshr_b32 {dst}, {dst}, 2\ns_add_u32 {dst}, {dst}, {sJ}\ns_cmp_ge_u32 {dst}, 6\ns_cselect_b32 s34, 6, 0\ns_sub_u32 {dst}, {dst}, s34')
        elif ROT == 8: a(f's_and_b32 {dst}, {sG}, 3\ns_add_u32 {dst}, {dst}, {sXCD}\ns_add_u32 {dst}, {dst}, {sJ}\ns_mul_i32 s34, {dst}, 43\ns_lshr_b32 s34, s34, 8\ns_mul_i32 s34, s34, 6\ns_sub_u32 {dst}, {dst}, s34')
    if ROT: rot_r('s3')
    a(f's_cmp_lg_u32 {sRole}, 0\ns_cbranch_scc1 A_ld')
    if PRIO == 1: a('s_setprio 1')
    XS = lambda c: c*8192
    WQ0 = 49152
    W2L = 49152
    vXF, vAW, vSst, vX1, vST, vRes, vBP, vBS, vW2, vW2b = 12, 16, 18, 19, 20, 21, 22, 23, 24, 25
    XF, WF, ACC, CS, MA, SEL, CA, CB = 160, 32, 64, 96, 104, 108, 112, 120
    sSst, sSld, sX1, sST, sFS1, sFS2, sOwn, sGX = 's56', 's57', 's58', 's59', 's60', 's61', 's62', 's63'
    a(f'''v_and_b32 v4, 31, v1
    v_lshrrev_b32 v5, 5, v1
    v_bfe_u32 v6, v1, 1, 3
    v_xor_b32 v6, v6, v5
    v_lshlrev_b32 v4, 7, v4
    v_lshl_add_u32 v4, v6, 4, v4
    s_lshl_b32 s35, {sP}, 12
    v_add_u32 v{vXF}, s35, v4
    v_xor_b32 v{vXF+1}, 32, v{vXF}
    v_xor_b32 v{vXF+2}, 64, v{vXF}
    v_xor_b32 v{vXF+3}, 96, v{vXF}
    v_bfe_u32 v6, v1, 2, 2
    v_lshl_add_u32 v4, v5, 3, v6
    v_lshlrev_b32 v4, 7, v4
    v_lshrrev_b32 v7, 1, v6
    v_xor_b32 v7, {sHF}, v7
    v_lshl_add_u32 v4, v7, 6, v4
    v_bfe_u32 v7, v1, 4, 1
    v_lshl_add_u32 v4, v7, 5, v4
    v_and_b32 v8, 1, v1
    v_lshl_add_u32 v4, v8, 4, v4
    v_bfe_u32 v8, v1, 1, 1
    v_lshl_add_u32 v4, v8, 3, v4
    v_add_u32 v{vAW}, {WQ0}, v4
    v_add_u32 v{vAW+1}, {WQ0 + 65536}, v4
    v_bfe_u32 v8, v1, 2, 1
    v_cmp_eq_u32 vcc, v8, v7
    v_mov_b32 v7, 0x3f803f80
    s_mov_b32 s34, {WE}
    s_waitcnt lgkmcnt(0)
    s_load_dword {sTag}, s[32:33], s34''')
    for k in range(4): a(f'v_cndmask_b32 v{SEL+k}, 0, v7, vcc')
    srd(a, 16, 32, WS_SIZE); srd(a, 24, 38, 1572864)
    a(f'''v_lshlrev_b32 v{vSst}, 9, v5
    v_lshl_add_u32 v{vSst}, v{G8}, 6, v{vSst}
    v_bfe_u32 v6, v1, 3, 2
    v_lshl_add_u32 v{vSst}, v6, 4, v{vSst}
    s_mul_i32 s34, {sG}, 24576
    s_lshl_b32 s35, {sP}, 10
    s_add_u32 s34, s34, s35
    s_add_u32 {sSld}, s34, {WS_S}
    s_lshl_b32 s35, {sJ}, 1
    s_add_u32 s35, s35, {sHF}
    s_lshl_b32 {sOwn}, s35, 2
    s_lshl_b32 s3{6}, s35, 11
    s_add_u32 {sSst}, {sSld}, s36
    s_lshl_b32 s34, {sG}, 1
    s_add_u32 s34, s34, {sP}
    s_lshl_b32 s34, s34, 7
    s_add_u32 {sFS1}, s34, {FS1}
    s_add_u32 {sFS2}, s34, {FS2}''')
    a(f'''v_bfe_u32 v6, v1, 2, 3
    v_and_b32 v7, 3, v1
    s_mov_b32 s34, 196608
    v_mul_lo_u32 v{vX1}, v6, s34
    v_lshl_add_u32 v{vX1}, v5, 8, v{vX1}
    v_lshl_add_u32 v{vX1}, v7, 4, v{vX1}
    v_mul_u32_u24 v{vST}, 49152, v6
    v_lshl_add_u32 v{vST}, v7, 4, v{vST}
    v_lshl_add_u32 v8, v7, 3, v6
    v_lshlrev_b32 v{vBP}, 2, v8
    v_lshlrev_b32 v{vBS}, 5, v7
    v_lshl_add_u32 v{vBS}, v5, 4, v{vBS}
    v_bfe_u32 v4, v8, 1, 3
    s_lshl_b32 s34, {sHF}, 2
    v_xor_b32 v4, s34, v4
    v_xor_b32 v4, v4, v5
    v_lshlrev_b32 v4, 4, v4
    v_lshl_add_u32 v4, v8, 7, v4''')
    if ROT: a(f's_add_u32 s34, {sJ}, 6\ns_sub_u32 s34, s34, s3\ns_cmp_ge_u32 s34, 6\ns_cselect_b32 s36, 6, 0\ns_sub_u32 s34, s34, s36\ns_lshl_b32 s34, s34, 13')
    else: a(f's_lshl_b32 s34, {sJ}, 13')
    a(f'''s_lshl_b32 s36, {sP}, 12
    s_add_u32 s34, s34, s36
    v_add_u32 v{vRes}, s34, v4
    s_lshl_b32 s34, {sHF}, 10
    s_add_u32 s34, s34, {W2L}
    v_add_u32 v{vW2}, s34, v{vL16}
    v_and_b32 v4, 31, v1
    v_lshlrev_b32 v4, 2, v4
    s_lshl_b32 s34, {sHF}, 7
    s_add_u32 s34, s34, {W2L + 49152}
    v_add_u32 v4, s34, v4
    v_lshl_add_u32 v{vW2b}, v5, 10, v4
    v_add_u32 v{vW2b+1}, 2048, v4
    s_lshr_b32 s34, {sG}, 1
    s_mul_i32 s34, s34, 12288
    s_lshl_b32 s36, s35, 10
    s_add_u32 s34, s34, s36
    s_and_b32 s36, {sG}, 1
    s_lshl_b32 s36, s36, 7
    s_add_u32 s34, s34, s36
    s_lshl_b32 s36, {sP}, 6
    s_add_u32 s34, s34, s36
    s_add_u32 {sX1}, s34, {WS_X1}
    s_lshl_b32 s34, s35, 12
    s_add_u32 s34, s34, s36
    s_lshl_b32 s36, {sG}, 7
    s_add_u32 s34, s34, s36
    s_add_u32 {sST}, s34, {WS_ST}
    s_mul_i32 s34, {sG}, 6
    s_add_u32 s34, s34, {sJ}
    s_lshl_b32 {sGX}, s34, 7
    s_mov_b32 s38, {fbits(-1/384)}
    s_mov_b32 s36, 0xffff0000
    s_mov_b32 s64, -1
    s_mov_b32 s65, 0
    s_mov_b32 s66, 0xff00ff00
    s_mov_b32 s67, 0xff00ff00
    s_mov_b32 s68, 0xffff0000
    s_mov_b32 s69, 0xffff0000''')
    for r in range(CA, CA + 8):
        if (r - CA) % 4: a(f'v_mov_b32 v{r}, 0')
    a('s_waitcnt lgkmcnt(0)')
    tag_ready(a)
    a('s_barrier')
    stamp(a, 'mm0')
    def rd(ks):
        c, k4 = ks >> 2, ks & 3
        a(f'ds_read_b128 {vr(XF+4*ks,4)}, v{vXF+k4} offset:{XS(c)}', tag=f'f{ks}')
        return [(c, k4, P) for P in range(2)]
    def trd(ks, P):
        c, k4 = ks >> 2, ks & 3
        off = c*16384 + P*8192 + k4*2048
        base = vAW + (off >> 16); off &= 0xffff
        d = WF + (ks % 3)*8 + P*4
        a(f'ds_read_b64_tr_b16 {vr(d,2)}, v{base} offset:{off}\nds_read_b64_tr_b16 {vr(d+2,2)}, v{base} offset:{off+512}', tag=f'f{ks}')
    def pre(ks, part):
        if part == 0: rd(ks); trd(ks, 0)
        else: trd(ks, 1)
    for ks in range(2): pre(ks, 0); pre(ks, 1)
    def m16(d, b, first): a(f'v_mfma_f32_16x16x32_bf16 {vr(d,4)}, {vr(SEL,4)}, {b}, {"0" if first else vr(d,4)}')
    for ks in range(24):
        bar = (ks & 3) == 3 and ks < 23
        if bar:
            if ks == 15: a.wait_all(lg=False)
            a('s_barrier')
            if ks in (7, 15, 19): stamp(a, f'c{(ks+1)>>2}')
            pre(ks + 1, 0); pre(ks + 1, 1)
        a.wait(lg=f'f{ks}')
        wf = lambda P: vr(WF + (ks % 3)*8 + P*4, 4)
        main = lambda P: a(f'v_mfma_f32_32x32x16_bf16 {vr(ACC+16*P,16)}, {wf(P)}, {vr(XF+4*ks,4)}, {"0" if ks == 0 else vr(ACC+16*P,16)}')
        nx = ks + 2 if (ks & 3) != 2 and ks + 2 < 24 else None
        if ks < 23:
            for P in range(2):
                main(P)
                if nx: pre(nx, P)
                m16(CS + 4*P, wf(P), ks == 0)
            m16(MA, vr(XF+4*ks, 4), ks == 0)
        else:
            m16(MA, vr(XF+4*ks, 4), False)
            for P in range(2): m16(CS + 4*P, wf(P), False)
            main(0)
            main(1)
            a(f'''v_mul_f32 v{MA}, s38, v{MA}
            v_cvt_pk_bf16_f32 v{CA}, v{CS}, v{CS}
            v_cvt_pk_bf16_f32 v{CA+4}, v{CS+4}, v{CS+4}
            v_cvt_pk_bf16_f32 v{MA+1}, v{MA}, v{MA}
            v_and_b32 v{CA}, s36, v{CA}
            v_and_b32 v{CA+4}, s36, v{CA+4}
            v_cndmask_b32 v{CB}, 0, v{MA+1}, s[64:65]
            v_sub_f32 v{CA}, v{CS}, v{CA}
            v_sub_f32 v{CA+4}, v{CS+4}, v{CA+4}
            v_mov_b32 v{CB+1}, v{CB}
            v_cvt_pk_bf16_f32 v{CA}, v{CS}, v{CA}
            v_cvt_pk_bf16_f32 v{CA+4}, v{CS+4}, v{CA+4}
            v_mov_b32 v{CB+2}, v{CB}
            v_mov_b32 v{CB+3}, v{CB}''')
            for P in range(2): a(f'v_mfma_f32_32x32x16_bf16 {vr(ACC+16*P,16)}, {vr(CA+4*P,4)}, {vr(CB,4)}, {vr(ACC+16*P,16)}')
    stamp(a, 'mmend')
    PQ, PK, SC, SS, SQ, CM = 32, 40, 64, 96, 100, 124
    a(f'v_mov_b32 v{SQ}, 0\nv_mov_b32 v{SQ+1}, 0')
    for k in range(4): a(f'v_mov_b32 v{CM+k}, v{MA+1}')
    for P, d in ((0, PQ), (1, PK)):
        for i in range(8): a(f'v_cvt_pk_bf16_f32 v{d+i}, v{ACC+16*P+2*i}, v{ACC+16*P+2*i+1}')
    a(f'v_mfma_f32_32x32x16_bf16 {vr(SC,16)}, {vr(PK,4)}, {vr(PQ,4)}, 0')
    a(f'v_mfma_f32_32x32x16_bf16 {vr(SC,16)}, {vr(PK+4,4)}, {vr(PQ+4,4)}, {vr(SC,16)}')
    RAW = 48
    a(f'v_xor_b32 v4, 32, v{vRes}\nds_read_b128 {vr(RAW,4)}, v{vRes}\nds_read_b128 {vr(RAW+4,4)}, v4', tag='raw')
    for e in range(4): a(f'v_cndmask_b32 v{SC+e}, v{SC+e}, v{SC+4+e}, s[66:67]\nv_cndmask_b32 v{SC+8+e}, v{SC+8+e}, v{SC+12+e}, s[66:67]')
    for e in range(4): a(f'v_cndmask_b32 v{SS+e}, v{SC+e}, v{SC+8+e}, s[68:69]')
    a(f'buffer_store_dwordx4 {vr(SS,4)}, v{vSst}, {SWS}, {sSst} offen {WT if opt("swt", 0) else ""}')
    stamp(a, 'stored')
    ND0 = opt('nd0', 72)
    for i in range(ND0): a(f'v_dot2c_f32_bf16 v{SQ+(i&1)}, v{XF+i}, v{XF+i}')
    a.wait_all(lg=False)
    flag(a, sOwn, sFS1, sFast, 4, '')
    stamp(a, 'flag')
    for i in range(ND0, 96): a(f'v_dot2c_f32_bf16 v{SQ+(i&1)}, v{XF+i}, v{XF+i}')
    RR, RES = 56, 80
    a(f'''s_mov_b32 s37, {fbits(1e-5)}
    v_mul_f32 v{SQ+2}, v{MA}, v{MA}
    v_add_u32 v5, 4, v{vBS}
    v_add_f32 v{SQ}, v{SQ}, v{SQ+1}
    v_mov_b32 v{SQ+1}, v{SQ}
    v_add_u32 v6, 8, v{vBS}
    v_add_u32 v7, 12, v{vBS}
    v_permlane32_swap_b32 v{SQ}, v{SQ+1}
    v_add_f32 v{SQ}, v{SQ}, v{SQ+1}
    v_fma_f32 v{SQ}, -v{SQ}, s38, -v{SQ+2}
    v_max_f32 v{SQ}, 0, v{SQ}
    v_add_f32 v{SQ}, s37, v{SQ}
    v_rsq_f32 v{SQ}, v{SQ}''')
    a(f'ds_bpermute_b32 v{RR+4}, v{vBP}, v{SQ}\nds_bpermute_b32 v{RR}, v{vBS}, v{SQ}', tag='bp')
    for e in range(1, 4): a(f'ds_bpermute_b32 v{RR+e}, v{4+e}, v{SQ}', tag='bp')
    a.wait(lg='raw')
    for d in range(8): a(f'v_lshlrev_b32 v{RES+2*d}, 16, v{RAW+d}\nv_and_b32 v{RES+2*d+1}, s36, v{RAW+d}')
    a.wait(lg='bp')
    a(f'v_mul_f32 v{RR+4}, {fbits(SCALE2)}, v{RR+4}')
    def repubA():
        a(f's_add_u32 s34, {sSst}, {SLOW}\nbuffer_store_dwordx4 {vr(SS,4)}, v{vSst}, {SWS}, s34 offen sc0 sc1')
    lsync(a, 12, False, sFS1, sFS2, sOwn, (lambda: None) if opt('swt', 0) else repubA, 32, 0 if opt('swt', 0) else SLOW)
    stamp(a, 'synced')
    SP, Y, WR = 112, 64, 32
    SPR = [128, 132, 136, 140, 144, 148, 152, 156, 112, 116, 96, 100]
    S0 = SPR[0]; T0 = SPR[1]
    sm = []
    def w2rd(ks):
        if ks < 24: a(f'ds_read_b128 {vr(WR+4*(ks%6),4)}, v{vW2} offset:{ks*2048}', tag=f'y{ks}')
        else:
            for k in range(2): a(f'ds_read2st64_b32 {vr(WR+4*(ks%6)+2*k,2)}, v{vW2b+ks-24} offset0:{2*k} offset1:{2*k+1}', tag=f'y{ks}')
    YH = opt('yh', 8)
    def ystep(ks, lim=26):
        a.wait(lg=f'y{ks}')
        xa = vr(XF+4*ks, 4) if ks < 24 else vr(CM if ks == 24 else CB, 4)
        a(f'v_mfma_f32_32x32x16_bf16 {vr(Y,16)}, {xa}, {vr(WR+4*(ks%6),4)}, {"0" if ks == 0 else vr(Y,16)}')
        if ks + 5 < lim: w2rd(ks + 5)
    a(f's_add_u32 {sSld}, {sSld}, {sDelta}\ns_mul_i32 s34, {sHF}, 12288\ns_add_u32 {sSld}, {sSld}, s34')
    for i in range(6):
        if i and i % 2 == 0: a(f's_add_u32 {sSld}, {sSld}, 4096')
        a(f'buffer_load_dwordx4 {vr(SPR[i],4)}, v{vL16}, {SWS}, {sSld} offen offset:{(i&1)*2048} sc1', tag=f's{i}')
    a(f's_add_u32 s34, {sM1K}, {LSX}\nv_add_u32 v4, s34, v{vL16}\nv_xor_b32 v5, 1024, v4')
    for i in range(1, 6):
        a.wait(vm=f's{i}')
        for d in (0, 2): a(f'v_pk_add_f32 {vr(S0+d,2)}, {vr(S0+d,2)}, {vr(SPR[i]+d,2)}')
    a(f'ds_write_b128 v4, {vr(S0,4)}\ns_waitcnt lgkmcnt(0)'); a.lg = []
    stamp(a, 'ssum')
    a('s_barrier')
    stamp(a, 'w2h')
    a(f'ds_read_b128 {vr(T0,4)}, v5', tag='sx')
    sm.append(('l', 'sx'))
    for d in range(4): sm.append(f'v_add_f32 v{S0+d}, v{S0+d}, v{T0+d}')
    for ks in range(5): w2rd(ks)
    for d in range(4): sm.append(f'v_mul_f32 v{S0+d}, v{S0+d}, v{RR+d}')
    sm += [f'v_max_f32 v{T0}, v{S0}, v{S0+1}', f'v_max3_f32 v{T0}, v{T0}, v{S0+2}, v{S0+3}', f'v_mov_b32 v{T0+1}, v{T0}', 's_mov_b32 s64, 0x11111111', 's_mov_b32 s65, 0x11111111',
           f'v_permlane32_swap_b32 v{T0}, v{T0+1}', f'v_max_f32 v{T0}, v{T0}, v{T0+1}', f'v_mul_f32 v{T0}, v{RR+4}, v{T0}']
    for d in range(4): sm.append(f'v_fma_f32 v{S0+d}, v{S0+d}, v{RR+4}, -v{T0}')
    for d in range(4): sm.append(f'v_exp_f32 v{S0+d}, v{S0+d}')
    sm += [f'v_add_f32 v{T0}, v{S0}, v{S0+1}', f'v_add_f32 v{T0+1}, v{S0+2}, v{S0+3}', f'v_add_f32 v{T0}, v{T0}, v{T0+1}', f'v_mov_b32 v{T0+1}, v{T0}']
    sm += [f'v_mul_f32 v{S0+d}, v{S0+d}, v{RR+d}' for d in range(2)] + [f'v_permlane32_swap_b32 v{T0}, v{T0+1}', f'v_add_f32 v{T0}, v{T0}, v{T0+1}', f'v_rcp_f32 v{T0}, v{T0}']
    sm += [f'v_mul_f32 v{S0+d}, v{S0+d}, v{RR+d}' for d in range(2, 4)]
    for d in range(4): sm.append(f'v_mul_f32 v{S0+d}, v{S0+d}, v{T0}')
    PB = 136
    sm += [f'v_cvt_pk_bf16_f32 v{T0}, v{S0}, v{S0+1}', f'v_cvt_pk_bf16_f32 v{T0+1}, v{S0+2}, v{S0+3}']
    for b in range(4):
        sm += [f'v_cndmask_b32 v{PB+2*b}, 0, v{T0}, s[64:65]', f'v_cndmask_b32 v{PB+2*b+1}, 0, v{T0+1}, s[64:65]']
        if b < 3: sm.append('s_lshl_b64 s[64:65], s[64:65], 1')
    S2 = 104
    sm += [f'v_mov_b32 v{S2}, 0', f'v_mov_b32 v{S2+1}, 0', 's_mov_b32 s36, 0x3f803f80']
    def drain(n):
        while n > 0 and sm:
            x = sm.pop(0)
            if isinstance(x, tuple): a.wait(vm=x[1]) if x[0] == 'w' else a.wait(lg=x[1])
            else: a(x); n -= 1
    YS = [YH] + ([opt('yh2', 18)] if opt('yh2', 18) > YH else []) + [26]
    stage = 0
    for ks in range(26):
        if stage + 1 < len(YS) and ks == YS[stage] - opt('ybe', 2):
            a('s_barrier')
            stage += 1
            if stage + 1 == len(YS): stamp(a, 'w2in')
            for k in range(YS[stage-1], ks + 5): w2rd(k)
        ystep(ks, YS[stage])
        if ks >= 1: drain(opt('ydr', 6))
    drain(1000)
    stamp(a, 'ygemm')
    YP, XO = 144, 152
    for i in range(8): a(f'v_cvt_pk_bf16_f32 v{YP+i}, v{Y+2*i}, v{Y+2*i+1}')
    for k in range(2): a(f'v_mfma_f32_32x32x16_bf16 {vr(RES,16)}, {vr(YP+4*k,4)}, {vr(PB+4*k,4)}, {vr(RES,16)}')
    for i in range(8): a(f'v_cvt_pk_bf16_f32 v{XO+i}, v{RES+2*i}, v{RES+2*i+1}')
    a(f'buffer_store_dwordx4 {vr(XO,4)}, v{vX1}, {SWS}, {sX1} offen {WT}')
    a(f'buffer_store_dwordx4 {vr(XO+4,4)}, v{vX1}, {SWS}, {sX1} offen offset:512 {WT}')
    for i in range(8): a(f'v_dot2c_f32_bf16 v{S2}, s36, v{XO+i}\nv_dot2c_f32_bf16 v{S2+1}, v{XO+i}, v{XO+i}')
    a(f'''v_mov_b32 v{S2+2}, v{S2}
    v_mov_b32 v{S2+3}, v{S2+1}
    v_permlane32_swap_b32 v{S2}, v{S2+2}
    v_permlane32_swap_b32 v{S2+1}, v{S2+3}
    v_add_f32 v{S2}, v{S2}, v{S2+2}
    v_add_f32 v{S2+1}, v{S2+1}, v{S2+3}
    s_mov_b32 exec_hi, 0
    buffer_store_dwordx4 {vr(S2,4)}, v{vST}, {SWS}, {sST} offen {WT}
    s_mov_b32 exec_hi, -1
    s_mov_b32 s34, {GX}''')
    stamp(a, 'x1st')
    a.wait_all()
    a('s_barrier')
    flag_w0(a, sGX, 's34', 32)
    stamp(a, 'x1pub')
    a('s_branch P2_c')
    a.label('A_ld'); a.vm = []; a.lg = []
    if PRIO == 2: a('s_setprio 1')
    vW, vXs, vP = 32, 36, 38
    sRx = ['s62', 's63', 's64', 's65', 's66', 's67']
    a(f'''s_mov_b32 s35, 196608
    v_mul_lo_u32 v{vXs}, v{T8}, s35
    v_lshrrev_b32 v4, 1, v{T8}
    v_xor_b32 v4, v4, v{G8}
    v_lshl_add_u32 v{vXs}, v4, 4, v{vXs}
    v_xor_b32 v{vXs+1}, 64, v{vXs}
    v_add_u32 v{vXs+1}, 768, v{vXs+1}
    s_lshl_b32 s34, {sG}, 3
    s_lshl_b32 s35, {sW}, 1
    s_add_u32 s34, s34, s35
    s_mul_i32 {sX}, s34, 768
    v_lshlrev_b32 v4, 1, v{T8}
    v_and_b32 v4, 4, v4
    v_xor_b32 v4, v4, v{G8}
    v_mul_u32_u24 v{vW}, 2304, v{T8}
    v_lshl_add_u32 v{vW}, v4, 4, v{vW}
    s_mul_i32 s68, {sW}, {16*2304}
    s_lshl_b32 s34, {sJ}, 7
    s_add_u32 s68, s68, s34''')
    for k in range(1, 4): a(f'v_add_u32 v{vW+k}, {(k>>1)*768 + (k&1)*18432}, v{vW}')
    for i in range(6):
        if ROT:
            a(f's_lshl_b32 s34, s3, 7\ns_add_u32 {sRx[i]}, s34, {sX}\ns_mul_i32 s34, s3, 147456\ns_add_u32 {sR[i]}, s34, s68')
            if i < 5: a('s_add_u32 s3, s3, 1\ns_cmp_ge_u32 s3, 6\ns_cselect_b32 s3, 0, s3')
        else: a(f's_add_u32 {sR[i]}, s68, {i*147456}\ns_add_u32 {sRx[i]}, {sX}, {i*128}')
    for i in range(2):
        a(f'''s_lshl_b32 s34, {sJ}, 3
        s_lshl_b32 s35, {sW}, 1
        s_add_u32 s34, s34, s35
        s_add_u32 s34, s34, {i}
        s_mul_i32 s35, s34, 43
        s_lshr_b32 s35, s35, 8
        s_mul_i32 s14, s35, 6
        s_sub_u32 s34, s34, s14
        s_lshl_b32 s34, s34, 10
        s_mul_i32 s35, s35, 196608
        s_add_u32 s34, s34, s35
        s_mul_i32 s35, {sG}, 6144
        s_add_u32 s{12+i}, s34, s35''')
    a(f's_mov_b32 s34, {WE}\ns_waitcnt lgkmcnt(0)\ns_load_dword {sTag}, s[32:33], s34')
    srd(a, 4, 20, 1572864); srd(a, 8, 22, 884736)
    def xpre():
        for i in range(2): a(f'buffer_load_dwordx4 v[{56+4*i}:{59+4*i}], v{vL16}, {SX}, s{12+i} offen')
    if opt('xp0', 0) == 1: xpre()
    def wdma(c):
        for th in range(2):
            a(f's_add_u32 m0, {sM}, {XS(c) + th*1024}\nbuffer_load_dwordx4 v{vXs+th}, {SX}, {sRx[c]} offen lds', tag=f'w{c}')
        for k in range(4):
            a(f's_add_u32 m0, {sM}, {WQ0 + c*16384 + (k>>1)*8192 + (k&1)*1024}\nbuffer_load_dwordx4 v{vW+k}, {SWQ}, {sR[c]} offen lds', tag=f'w{c}')
    NL = opt('nl', 2)
    for c in range(NL):
        wdma(c)
        if c == 0 and opt('xp0', 0) == 2: xpre()
        if c == 0: srd(a, 16, 32, WS_SIZE); srd(a, 24, 38, 1572864)
    a(f'''v_mul_u32_u24 v{vP}, 768, v1
    s_lshl_b32 s34, {sJ}, 7
    s_add_u32 s68, s34, {GW2}
    s_mul_i32 s69, {sJ}, 53248
    s_add_u32 s69, s69, {WS_W2}
    s_waitcnt lgkmcnt(0)''')
    tag_ready(a)
    def progress():
        L = a.newlabel('pg')
        a(f's_cmp_lg_u32 {sI}, 8\ns_cbranch_scc1 {L}\ns_cmp_lg_u32 {sW}, 0\ns_cbranch_scc1 {L}')
        a.cond = True
        a(f's_lshl_b32 s34, {sXCD}, 7\ns_mov_b32 s35, {FP}'); flag(a, 's34', 's35', sFast, 52, ''); a.vm.pop()
        a.cond = False
        a.label(L)
    if opt('prg', 9) == 9: progress()
    for c in range(6):
        a.wait(vm=f'w{c}')
        if c in (0, 3, 5): stamp(a, f'L{c}')
        a('s_barrier')
        if c + NL < 6: wdma(c + NL)
        if c == opt('prg', 9): progress()
        if c == opt('tlb', 1): pages(a)
        if c == opt('tpos', 3) and opt('touch', 1):
            a(f'''s_mul_i32 s34, {sG}, 24576
            s_lshl_b32 s35, {sJ}, 12
            s_add_u32 s34, s34, s35
            s_add_u32 s34, s34, {WS_S}
            s_add_u32 s34, s34, {sM1K}
            {"" if opt("swt", 0) else f"buffer_load_dwordx4 v[44:47], v{vL16}, {SWS}, s34 offen"}
            s_lshl_b32 s34, {sG}, 8
            s_add_u32 s34, s34, {FS1}
            v_lshlrev_b32 v48, 2, v1
            buffer_load_dword v49, v48, {SWS}, s34 offen
            s_lshl_b32 s34, {sXCD}, 9
            s_add_u32 s34, s34, {FC1}
            v_lshlrev_b32 v48, 3, v1
            buffer_load_dword v50, v48, {SWS}, s34 offen''')
    a(f's_mul_i32 s20, {sW}, 3')
    if ROT: rot_r('s3'); a('s_lshl_b32 s3, s3, 1\ns_add_u32 s3, s3, s20')
    else: a('s_mov_b32 s3, s20')
    a(f's_lshl_b32 s20, s20, 12\ns_add_u32 s20, s20, {W2L}')
    for k in range(3):
        a(f's_cmp_ge_u32 s3, 12\ns_cselect_b32 s34, 12, 0\ns_sub_u32 s3, s3, s34\ns_lshl_b32 s34, s3, 12\ns_add_u32 s{21+k}, s69, s34\ns_add_u32 s3, s3, 1')
    a(f's_add_u32 s69, s69, 49152\ns_add_u32 s69, s69, {sM1K}')
    if opt('tp', 9) == 0: touch2(a)
    if opt('w21', 1):
        a(f's_cmp_lg_u32 {sW}, 0\ns_cbranch_scc1 A_ld2')
        gpoll(a, 4, vP, 's68', 40)
        stamp(a, 'Lw2f')
        a(f's_sub_u32 s69, s69, 49152')
        for gi in range(13):
            if gi == 12: a(f's_add_u32 s68, s69, 49152')
            elif gi == 0: a('s_mov_b32 s68, s21\ns_sub_u32 s3, s21, s69')
            elif gi % 2 == 0: a('s_add_u32 s3, s3, 8192\ns_cmp_ge_u32 s3, 49152\ns_cselect_b32 s3, 0, s3\ns_add_u32 s68, s69, s3')
            else: a('s_add_u32 s68, s68, 4096')
            a(f's_mov_b32 m0, {W2L + gi*4096}')
            for k in range(4 if gi < 12 else 3): a(f'buffer_load_dwordx4 v{vL16}, {SWS}, s68 offen offset:{k*1024} sc1 lds', tag=f'h{gi}')
        if opt('yh', 8): a.wait(vm=f'h{opt("yh", 8)//2 - 1}')
        if opt('yh2', 18) > opt('yh', 8):
            a('s_barrier'); a.wait(vm=f'h{opt("yh2", 18)//2 - 1}'); a('s_branch A_ld3')
            a.label('A_ld2')
            a('s_barrier')
            a.label('A_ld3')
        else: a.label('A_ld2')
        a('s_barrier')
    else:
        gpoll(a, 4, vP, 's68', 40)
        stamp(a, 'Lw2f')
        for k in range(3):
            a(f's_add_u32 m0, s20, {k*4096}')
            for q in range(4): a(f'buffer_load_dwordx4 v{vL16}, {SWS}, s{21+k} offen offset:{q*1024} sc1 lds')
        a(f's_add_u32 m0, {sM1K}, {W2L + 49152}\nbuffer_load_dwordx4 v{vL16}, {SWS}, s69 offen sc1 lds')
    a.wait_all()
    stamp(a, 'Lw2')
    a('s_barrier\ns_barrier\ns_branch P2_l')
    a.label('K_pre'); a.vm = []; a.lg = []
    sS8, sIt, sJt, sA, sB, sMm, sT0, sLA, sLB = 's50', 's51', 's52', 's53', 's54', 's55', 's56', 's57', 's58'
    a(f'''s_mov_b32 {sS8}, {sI}
    s_mov_b32 s34, {WE}
    s_and_b32 s59, {sXCD}, 1
    s_lshr_b32 s60, {sXCD}, 1
    s_cmp_lt_u32 {sS8}, 3
    s_cbranch_scc1 W_id0
    s_mul_i32 s35, s60, 9
    s_mul_i32 s61, s59, 5
    s_add_u32 s35, s35, s61
    s_add_u32 s35, s35, {sS8}
    s_sub_u32 s35, s35, 3
    s_mul_i32 s61, s35, 43
    s_lshr_b32 s61, s61, 8
    s_mul_i32 s62, s61, 6
    s_sub_u32 {sJt}, s35, s62
    s_cmp_ge_u32 s61, 3
    s_cselect_b32 {sMm}, 1, 0
    s_mul_i32 s62, {sMm}, 3
    s_sub_u32 {sIt}, s61, s62
    s_add_u32 s62, {sS8}, s59
    s_add_u32 s49, s60, 60
    s_cmp_ge_u32 s62, 8
    s_cselect_b32 {sMm}, 3, {sMm}
    s_cselect_b32 s49, s49, s35
    s_branch W_id1''')
    a.label('W_id0')
    a(f'''s_mov_b32 {sMm}, 2
    s_mov_b32 {sIt}, s60
    s_mul_i32 {sJt}, s59, 3
    s_add_u32 {sJt}, {sJt}, {sS8}
    s_mul_i32 s49, {sXCD}, 3
    s_add_u32 s49, s49, {sS8}
    s_add_u32 s49, s49, 36''')
    a.label('W_id1')
    a(f'''s_waitcnt lgkmcnt(0)
    s_load_dword {sTag}, s[32:33], s34''')
    srd(a, 16, 32, WS_SIZE); srd(a, 24, 38, 1572864)
    a(f'''s_cmp_eq_u32 {sMm}, 3
    s_cbranch_scc1 W_done
    s_cmp_lg_u32 {sRole}, 0
    s_cbranch_scc1 W_ld''')
    BB = 98304
    FA, FB, AC = 32, 48, 128
    vAr, vBr = 14, 18
    a(f'''v_and_b32 v2, 31, v1
    v_lshrrev_b32 v3, 5, v1
    v_and_b32 v4, 19, v2
    v_bfe_u32 v5, v2, 2, 1
    v_lshl_add_u32 v4, v5, 3, v4
    v_bfe_u32 v5, v2, 3, 1
    v_lshl_add_u32 v4, v5, 2, v4
    v_lshrrev_b32 v5, 3, v4
    v_mul_u32_u24 v5, 6144, v5
    v_and_b32 v6, 7, v4
    v_lshl_add_u32 v5, v6, 7, v5
    v_bfe_u32 v6, v4, 1, 3
    v_xor_b32 v6, v6, v3
    v_lshl_add_u32 v11, v6, 4, v5
    v_bfe_u32 v6, v1, 2, 2
    v_lshl_add_u32 v4, v3, 3, v6
    v_lshlrev_b32 v4, 7, v4
    v_lshrrev_b32 v7, 1, v6
    v_lshl_add_u32 v4, v7, 6, v4
    v_bfe_u32 v7, v1, 4, 1
    v_lshl_add_u32 v12, v7, 5, v4
    s_mov_b32 s37, 0x3f803f80''')
    def a_addr(swave):
        a(f's_mul_i32 s34, {swave}, 24576\nv_add_u32 v{vAr}, s34, v11')
        for k in range(1, 4): a(f'v_xor_b32 v{vAr+k}, {32*k}, v{vAr}')
    def stages(nv, breads):
        def rd(jj, k4):
            o = (jj & 1)*48*opt('ppipe', 1)
            a(f'ds_read_b128 {vr(FA+o+4*k4,4)}, v{vAr+k4} offset:{jj*1024}', tag=f'r{k4}')
            for v in range(nv): breads(jj, k4, v, FB + o + (k4*2+v)*4)
        def mm(jj, k4):
            o = (jj & 1)*48*opt('ppipe', 1)
            for v in range(nv):
                cin = '0' if (jj == 0 and k4 == 0) else vr(AC+16*v, 16)
                a(f'v_mfma_f32_32x32x16_bf16 {vr(AC+16*v,16)}, {vr(FA+o+4*k4,4)}, {vr(FB+o+(k4*2+v)*4,4)}, {cin}')
        for jj in range(6):
            a('s_barrier')
            if opt('ppipe', 1) and jj:
                rd(jj, 0); mm(jj - 1, 2); rd(jj, 1); mm(jj - 1, 3); rd(jj, 2); rd(jj, 3)
            else:
                for k4 in range(4): rd(jj, k4)
            last = 4 if (jj == 5 or not opt('ppipe', 1)) else 2
            for k4 in range(last):
                a.wait(lg=f'r{k4}'); mm(jj, k4)
            if last == 2: a.wait(lg='r3')
    def btr(jj, k4, v, d):
        o = jj*8192 + k4*2048
        a(f'ds_read_b64_tr_b16 {vr(d,2)}, v{vBr+v} offset:{o}\nds_read_b64_tr_b16 {vr(d+2,2)}, v{vBr+v} offset:{o+512}', tag=f'r{k4}')
    def brow(jj, k4, v, d): a(f'ds_read_b128 {vr(d,4)}, v{vBr+k4} offset:{v*24576+jj*1024}', tag=f'r{k4}')
    def colsum(v, src, dst):
        a(f'v_mov_b32 v24, 0')
        for i in range(8): a(f'v_dot2c_f32_bf16 v24, s37, v{src+i}')
        a(f'''v_mov_b32 v26, v24
        v_permlane32_swap_b32 v24, v26
        v_add_f32 v26, v26, v24
        v_cvt_pk_bf16_f32 v27, v26, v26
        v_lshlrev_b32 v27, 16, v27
        v_sub_f32 v27, v26, v27
        v_cvt_pk_bf16_f32 v{dst}, v26, v27''')
    def colsum2():
        a('v_mov_b32 v24, 0\nv_mov_b32 v25, 0')
        for i in range(8): a(f'v_dot2c_f32_bf16 v24, s37, v{32+i}\nv_dot2c_f32_bf16 v25, s37, v{40+i}')
        a('''v_mov_b32 v26, v24
        v_mov_b32 v27, v25
        v_permlane32_swap_b32 v24, v26
        v_permlane32_swap_b32 v25, v27
        v_add_f32 v24, v26, v24
        v_add_f32 v25, v27, v25
        v_cvt_pk_bf16_f32 v26, v24, v24
        v_cvt_pk_bf16_f32 v27, v25, v25
        v_lshlrev_b32 v26, 16, v26
        v_lshlrev_b32 v27, 16, v27
        v_sub_f32 v26, v24, v26
        v_sub_f32 v27, v25, v27
        v_cvt_pk_bf16_f32 v28, v24, v26
        v_cvt_pk_bf16_f32 v29, v25, v27''')
    a_addr(sW)
    a(f's_cmp_lg_u32 {sMm}, 2\ns_cbranch_scc1 W_c0')
    a(f'''s_min_u32 s59, {sW}, 2''')
    a_addr('s59')
    a(f'''v_and_b32 v7, 1, v1
    v_lshl_add_u32 v4, v7, 4, v12
    v_bfe_u32 v7, v1, 1, 1
    v_lshl_add_u32 v4, v7, 3, v4
    v_add_u32 v{vBr}, {BB}, v4
    v_xor_b32 v{vBr+1}, 64, v{vBr}
    s_mul_i32 s34, {sIt}, 3
    s_add_u32 s34, s34, s59
    s_mul_i32 s35, {sJt}, 53248
    s_add_u32 s35, s35, {WS_W2}
    s_lshl_b32 s36, s34, 12
    s_add_u32 s61, s35, s36
    s_lshl_b32 s36, s34, 8
    s_add_u32 s35, s35, s36
    s_add_u32 s62, s35, 49152
    v_lshlrev_b32 v30, 2, v1
    s_mul_i32 s63, {sIt}, 6
    s_add_u32 s63, s63, {sJt}
    s_lshl_b32 s63, s63, 7
    s_mov_b32 s64, {GW2}''')
    stages(2, btr)
    stamp(a, 'pst')
    a(f's_cmp_eq_u32 {sW}, 3\ns_cbranch_scc1 W_c4')
    for v in range(2):
        for i in range(8): a(f'v_cvt_pk_bf16_f32 v{32+8*v+i}, v{AC+16*v+2*i}, v{AC+16*v+2*i+1}')
        a(f'buffer_store_dwordx4 {vr(32+8*v,4)}, v{vL16}, {SWS}, s61 offen offset:{v*1024} {WT}\nbuffer_store_dwordx4 {vr(36+8*v,4)}, v{vL16}, {SWS}, s61 offen offset:{2048+v*1024} {WT}')
    colsum2()
    a('s_mov_b32 exec_hi, 0')
    for v in range(2): a(f'buffer_store_dword v{28+v}, v30, {SWS}, s62 offen offset:{v*128} {WT}')
    a('s_mov_b32 exec_hi, -1')
    a.label('W_c4')
    a.wait_all()
    tag_ready(a)
    a('s_barrier')
    flag_w0(a, 's63', 's64', 48)
    stamp(a, 'w2pub')
    a('s_branch W_done2')
    a.label('W_c0'); a.lg = []; a.vm = []
    a(f'''s_mul_i32 s34, {sMm}, 24
    s_lshl_b32 s61, {sJt}, 2
    s_add_u32 s34, s34, s61
    v_bfe_u32 v4, v1, 4, 1
    v_add_u32 v4, s34, v4
    v_and_b32 v7, 15, v1
    v_lshlrev_b32 v7, 4, v7
    s_lshl_b32 s61, {sIt}, 2
    s_add_u32 s61, s61, {sW}
    s_mul_i32 s61, s61, 3072
    s_add_u32 s61, s61, {WS_W}
    s_lshl_b32 s62, {sIt}, 2
    s_add_u32 s62, s62, {sW}
    s_mul_i32 s62, s62, 192
    s_add_u32 s62, s62, {WS_W + 12*3072}''')
    for v in range(2):
        a(f'''v_add_u32 v5, {2*v}, v4
        v_mul_u32_u24 v6, 43, v5
        v_lshrrev_b32 v6, 7, v6
        v_mul_u32_u24 v8, 3, v6
        v_sub_u32 v5, v5, v8
        v_mul_u32_u24 v6, 39936, v6
        v_lshl_add_u32 v{160+v}, v5, 6, v6
        v_lshl_add_u32 v6, v5, 10, v6
        v_add_u32 v6, v6, v7
        v_lshl_add_u32 v{162+v}, v3, 8, v6
        v_lshrrev_b32 v6, 2, v7
        v_add_u32 v{160+v}, v{160+v}, v6''')
    a(f's_cmp_eq_u32 {sMm}, 1\ns_cbranch_scc1 W_c1')
    a(f'''v_lshrrev_b32 v5, 3, v2
    v_mul_u32_u24 v5, 6144, v5
    v_and_b32 v6, 7, v2
    v_lshl_add_u32 v5, v6, 7, v5
    v_bfe_u32 v6, v2, 1, 3
    v_xor_b32 v6, v6, v3
    v_lshl_add_u32 v5, v6, 4, v5
    v_add_u32 v{vBr}, {BB}, v5''')
    for k in range(1, 4): a(f'v_xor_b32 v{vBr+k}, {32*k}, v{vBr}')
    stages(2, brow)
    a('s_branch W_c2')
    a.label('W_c1'); a.lg = []
    a(f'''v_and_b32 v7, 3, v1
    v_lshl_add_u32 v4, v7, 3, v12
    v_add_u32 v{vBr}, {BB}, v4
    v_xor_b32 v{vBr+1}, 64, v{vBr}''')
    stages(2, btr)
    a.label('W_c2')
    stamp(a, 'qst')
    for v in range(2):
        for i in range(8): a(f'v_cvt_pk_bf16_f32 v{32+8*v+i}, v{AC+16*v+2*i}, v{AC+16*v+2*i+1}')
        a(f'buffer_store_dwordx4 {vr(32+8*v,4)}, v{162+v}, {SWS}, s61 offen {WT}')
        a(f'buffer_store_dwordx4 {vr(36+8*v,4)}, v{162+v}, {SWS}, s61 offen offset:512 {WT}')
    colsum2()
    a('s_mov_b32 exec_hi, 0')
    for v in range(2): a(f'buffer_store_dword v{28+v}, v{160+v}, {SWS}, s62 offen {WT}')
    a('s_mov_b32 exec_hi, -1')
    stamp(a, 'qsto')
    a('s_branch W_done')
    a.label('W_ld'); a.vm = []; a.lg = []
    vA0, vBo = 12, 14
    a(f'''v_lshrrev_b32 v4, 1, v{T8}
    v_xor_b32 v4, v4, v{G8}
    v_mul_u32_u24 v5, 2304, v{T8}
    v_lshl_add_u32 v{vA0}, v4, 4, v5
    v_xor_b32 v{vA0+1}, 64, v{vA0}
    v_lshlrev_b32 v4, 1, v{T8}
    v_and_b32 v4, 4, v4
    v_xor_b32 v4, v4, v{G8}
    v_mul_u32_u24 v5, 768, v{T8}
    v_lshl_add_u32 v{vBo}, v4, 4, v5''')
    sLn = ['s59', 's60', 's61', 's62', 's63', 's64']; sLb = ['s65', 's66', 's67', 's68', 's69', 's3']
    def lstages(nra, mode):
        if opt('prot', 1) and (nra == 3 or opt('protw', 1)): a(f's_mul_i32 s34, {sIt}, 3\ns_lshr_b32 s34, s34, 1\ns_add_u32 s34, s34, {sJt}')
        else: a('s_mov_b32 s34, 0')
        for jj in range(6):
            a(f's_cmp_ge_u32 s34, 6\ns_cselect_b32 s35, 6, 0\ns_sub_u32 s34, s34, s35\ns_lshl_b32 s35, s34, 7\ns_add_u32 {sLn[jj]}, {sA}, s35')
            if mode == 1: a(f's_mul_i32 s35, s34, {64*768}')
            a(f's_add_u32 {sLb[jj]}, {sB}, s35\ns_add_u32 s34, s34, 1')
        def issue(jj):
            for r in range(nra):
                a(f'''s_add_u32 {sT0}, {sLn[jj]}, {r*8*2304}
                s_add_u32 m0, {sLA}, {(r*6+jj)*1024}
                buffer_load_dwordx4 v{vA0+(r&1)}, {SWQ}, {sT0} offen lds''', tag=f'p{jj}')
            for r in range(2):
                if mode == 0:
                    a(f'''s_add_u32 {sT0}, {sLb[jj]}, {r*8*2304}
                    s_add_u32 m0, {sLB}, {BB + (r*6+jj)*1024}
                    buffer_load_dwordx4 v{vA0+r}, {SWQ}, {sT0} offen lds''', tag=f'p{jj}')
                else:
                    a(f'''s_add_u32 {sT0}, {sLb[jj]}, {r*8*768}
                    s_add_u32 m0, {sLB}, {BB + jj*8192 + r*1024}
                    buffer_load_dwordx4 v{vBo}, {SWO}, {sT0} offen lds''', tag=f'p{jj}')
        n0 = opt('pn0', 3) if nra == 3 else opt('pn0w', 3)
        for jj in range(n0): issue(jj)
        for jj in range(6):
            a.wait(vm=f'p{jj}')
            if jj in (0, 3, 5): stamp(a, f'Lp{jj}' if nra == 3 else f'Lq{jj}')
            a('s_barrier')
            if jj + n0 < 6: issue(jj + n0)
            if jj == opt('ptlb', 9): pages(a)
    if opt('tlb', 1) >= 0 and opt('ptlb', 9) < 0: pages(a)
    a(f's_cmp_lg_u32 {sMm}, 2\ns_cbranch_scc1 W_l0')
    srd(a, 8, 22, 884736); srd(a, 12, 28, 294912)
    a(f'''s_lshl_b32 s34, {sIt}, 2
    s_add_u32 s34, s34, {sW}
    s_mul_i32 {sA}, s34, {24*2304}
    s_add_u32 {sA}, {sA}, 1536
    s_mul_i32 {sLA}, {sW}, 18432
    s_mul_i32 {sB}, {sW}, {16*768}
    s_lshl_b32 s34, {sJt}, 7
    s_add_u32 {sB}, {sB}, s34
    s_lshl_b32 {sLB}, {sW}, 11
    s_and_b32 s34, {sW}, 1
    s_lshl_b32 s34, s34, 6
    v_xor_b32 v{vA0}, s34, v{vA0}
    v_xor_b32 v{vA0+1}, s34, v{vA0+1}''')
    lstages(3, 1)
    a('s_branch W_done')
    a.label('W_l0'); a.vm = []
    if opt('prg', 9) >= 0:
        a(f'''s_waitcnt lgkmcnt(0)
        s_mul_i32 s35, {sTag}, 0x9e3779b1
        s_add_u32 s35, s35, 0x7f4a7c15
        s_add_u32 s35, s35, {sFast}
        s_lshl_b32 s34, {sXCD}, 7
        s_add_u32 s34, s34, {FP}
        v_mov_b32 v20, 0
        s_mov_b32 s56, {opt('prl', 16)}''')
        a.label('W_pw')
        a(f'''buffer_load_dword v21, v20, {SWS}, s34 offen sc1
        s_waitcnt vmcnt(0)
        v_cmp_ne_u32 vcc, s35, v21
        s_cbranch_vccz W_go
        s_sub_u32 s56, s56, 1
        s_cmp_lg_u32 s56, 0
        s_cbranch_scc1 W_pw''')
        a.label('W_go'); a.vm = []
        stamp(a, 'Lgo')
    srd(a, 8, 30, 884736); srd(a, 12, 36, 294912)
    a(f'''s_lshl_b32 s34, {sIt}, 2
    s_add_u32 s34, s34, {sW}
    s_mul_i32 {sA}, s34, {32*2304}
    s_mul_i32 s35, {sMm}, 1536
    s_add_u32 {sA}, {sA}, s35
    s_mul_i32 {sLA}, {sW}, 24576
    s_cmp_eq_u32 {sMm}, 1
    s_cbranch_scc1 W_l1
    s_lshl_b32 s34, {sJt}, 2
    s_add_u32 s34, s34, {sW}
    s_mul_i32 {sB}, s34, {16*2304}
    s_add_u32 {sB}, {sB}, 768
    s_mul_i32 {sLB}, {sW}, 12288''')
    lstages(4, 0)
    a('s_branch W_done')
    a.label('W_l1'); a.vm = []
    a(f'''s_mul_i32 {sB}, {sW}, {16*768}
    s_lshl_b32 s34, {sJt}, 7
    s_add_u32 {sB}, {sB}, s34
    s_lshl_b32 {sLB}, {sW}, 11''')
    lstages(4, 1)
    a.label('W_done'); a.vm = []; a.lg = []
    a.wait_all()
    tag_ready(a)
    a(f'''s_barrier
    s_cmp_lg_u32 {sRole}, 0
    s_cbranch_scc1 W_done3''')
    a.label('W_done2')
    a(f'''
    s_lshl_b32 s34, s49, 7
    s_mov_b32 s35, {GW}''')
    flag_w0(a, 's34', 's35', 32)
    stamp(a, 'wpub')
    hp_t0(a)
    if opt('tp', 9) == 3:
        a(f'''s_lshl_b32 s34, {sS8}, 2
        s_add_u32 s34, s34, {sW}
        s_mul_i32 s35, s34, 6656
        s_mul_i32 s36, {sXCD}, 212992
        s_add_u32 s35, s35, s36
        s_add_u32 s35, s35, {WS_Q}
        s_mul_i32 s36, s34, 6144
        s_mul_i32 s37, {sXCD}, 196608
        s_add_u32 s36, s36, s37
        s_add_u32 s36, s36, {WS_VP}''')
        for sb, n in (('s35', 7), ('s36', 6)):
            for i in range(n):
                if i == 4: a(f's_add_u32 {sb}, {sb}, 4096')
                a(f'buffer_load_dwordx4 v[64:67], v{vL16}, {SWS}, {sb} offen offset:{(i&3)*1024}')
        a(f's_lshl_b32 s34, {sXCD}, 9\ns_add_u32 s34, s34, {FC1}\nv_lshlrev_b32 v68, 3, v1\nbuffer_load_dword v64, v68, {SWS}, s34 offen')
        a.vm = []
    def wd3():
        a.label('W_done3')
        if opt('tp', 9) == 0: touch2(a)
        a('s_branch P2_l')
    TAIL.append(wd3)
    import v18b
    v18b.phase2(a, globals())
    a.label('K_end')
    a('s_endpgm')
    a.cond = True
    k = 0
    while k < len(TAIL): a.vm = []; a.lg = []; TAIL[k](); k += 1
    return a

KNAME = 'standalone__video_timesformer__vision_kernel'
if __name__ == '__main__':
    out = sys.argv[1]
    a = build()
    head = open('standalone__video_timesformer__vision.s.ref').read().split('; Override launch')[0]
    head += '''; One launch, 256 workgroups (one per CU) of 4 compute + 4 loader/helper waves.
'''
    s = head + '; @launch grid=(256,1,1) block=(512,1,1) lds=151552\n.amdgcn_target "amdgcn-amd-amdhsa--gfx950"\n.text\n'
    s += f'.globl {KNAME}\n.p2align 8\n.type {KNAME},@function\n{KNAME}:\n' + a.text()
    s += f'''; unreachable filler: the code warm-up load at the top reads a fixed 32 KiB behind the entry point
.fill 2048, 4, 0xbf810000
.section .rodata,"a"
.p2align 6
.amdhsa_kernel {KNAME}
  .amdhsa_next_free_vgpr 256
  .amdhsa_next_free_sgpr 102
  .amdhsa_accum_offset 256
  .amdhsa_group_segment_fixed_size 0
  .amdhsa_kernarg_size 64
  .amdhsa_user_sgpr_count 2
  .amdhsa_user_sgpr_kernarg_segment_ptr 1
  .amdhsa_system_sgpr_workgroup_id_x 1
.end_amdhsa_kernel
'''
    open(out, 'w').write(s)
    if PROFILE: open(out + '.stamps', 'w').write(repr(St.names))
    print('instructions', sum(1 for i in a.ins if not i.label), 'pad states', a.pads)
```

```python
import sys, math, struct
sys.path.insert(0, 'gen')
from asm import Asm
def opt(name, default):
    for x in sys.argv:
        if x.startswith(f'--{name}='): return int(x.split('=')[1])
    return default
HP = [x[5:] for x in sys.argv if x.startswith('--hp=')]
PROFILE = '--prof' in sys.argv or bool(HP)
SKIP = []
for x in sys.argv:
    if x.startswith('--skip='): SKIP = x[7:].split(',')
WS_W2 = 0x000000
WS_S  = 0x180000
WS_X1 = 0x240000
WS_W  = 0x3E0000
WS_Q  = 0x480000
WS_VP = 0x620000
WS_ST = 0xF00000
WS_FS = 0xF70000
FS1, FS2 = 0x7A0000, 0x7A2000
FC1, FC2 = 0x7A4000, 0x7A5000
GW2, GW, GX, WE, FP = 0x7A8000, 0x7AA000, 0x7AC000, 0x7B4000, 0x7A6000
WS_PROF = 0x7C0000
SLOW = 0x800000
WS_SIZE = 0x1000000
LIM_FAST = opt('lim', 24)
LIM_SLOW = 1 << 20
SCALE2 = 384 ** -0.5 * math.log2(math.e)
def fbits(x): return '0x%08x' % struct.unpack('<I', struct.pack('<f', x))[0]
def vr(b, n): return f'v[{b}:{b+n-1}]' if n > 1 else f'v{b}'
SX, SWQ, SWO, SWS, SOUT = 's[4:7]', 's[8:11]', 's[12:15]', 's[16:19]', 's[24:27]'
WT = 'sc0 sc1' if opt('wt', 1) == 2 else 'sc1'
def srd(a, base, ptr, size):
    a(f's_mov_b32 s{base}, s{ptr}\ns_mov_b32 s{base+1}, s{ptr+1}\ns_mov_b32 s{base+2}, {size}\ns_mov_b32 s{base+3}, 0x20000')
STAMP_REGS = [70, 72, 74, 76, 78, 80, 82, 84, 86, 88, 90, 92, 94, 96, 98, 100]
class St:
    names = {'C': [], 'L': []}
def stamp(a, name):
    if not PROFILE or name in SKIP or (HP and name not in ('start', HP[0])): return
    lst = St.names['L' if name.startswith('L') else 'C']
    if name not in lst: lst.append(name)
    k = lst.index(name)
    a(f's_memrealtime s[{STAMP_REGS[k]}:{STAMP_REGS[k]+1}]')
def hp_end(a, role):
    name = HP[0]
    lst = St.names[role]
    src = f's{STAMP_REGS[lst.index(name)]}' if name in lst else 's70'
    L1, L2 = a.newlabel('hp'), a.newlabel('hp')
    a(f's_waitcnt vmcnt(0) lgkmcnt(0)\nv_mov_b32 v2, {WS_PROF + 0x30000}')
    a.label(L1)
    a(f'''buffer_load_dwordx2 v[4:5], v2, {SWS}, 0 offen sc0 sc1
    s_waitcnt vmcnt(0)
    v_readfirstlane_b32 s34, v4
    v_readfirstlane_b32 s35, v5
    s_cmp_lg_u32 s35, {sTag}
    s_cbranch_scc1 {L1}
    s_sub_u32 s35, {src}, s34
    s_max_i32 s35, s35, 0
    s_mul_i32 s35, s35, 4
    s_add_u32 s35, s35, 4000''')
    a.label(L2)
    a(f'''s_memrealtime s[36:37]
    s_waitcnt lgkmcnt(0)
    s_sub_u32 s36, s36, s34
    s_cmp_lt_i32 s36, s35
    s_cbranch_scc1 {L2}''')
def hp_t0(a):
    if not HP: return
    L = a.newlabel('hq')
    a(f's_or_b32 s34, s2, {sW}\ns_or_b32 s34, s34, {sRole}\ns_cmp_lg_u32 s34, 0\ns_cbranch_scc1 {L}')
    a(f'v_mov_b32 v2, {WS_PROF + 0x30000}\nv_mov_b32 v4, s70\nv_mov_b32 v5, {sTag}\nbuffer_store_dwordx2 v[4:5], v2, {SWS}, 0 offen sc0 sc1')
    a.vm.pop()
    a.label(L)
def stamp_flush(a, role='C'):
    if HP: hp_end(a, role); return
    if not PROFILE: return
    a('s_waitcnt lgkmcnt(0)')
    for k in range(16): a(f'v_mov_b32 v{100+k}, s{STAMP_REGS[k]}')
    a(f'''v_lshrrev_b32 v8, 6, v0
    s_lshl_b32 s34, s2, 3
    v_add_u32 v8, s34, v8
    v_lshlrev_b32 v8, 6, v8
    v_add_u32 v8, {WS_PROF}, v8''')
    for k in range(4): a(f'buffer_store_dwordx4 v[{100+4*k}:{103+4*k}], v8, {SWS}, 0 offen offset:{16*k}')

sXCD, sW, sI, sRole = 's40', 's41', 's42', 's43'
sTag, sFast, sDelta = 's44', 's45', 's46'
sM1K = 's47'
TAIL = []

def lanes(a, n):
    a(f's_mov_b32 exec_lo, {hex((1 << min(n, 32)) - 1)}\ns_mov_b32 exec_hi, {hex((1 << max(n-32, 0)) - 1)}')
def gpoll(a, n, vA, sBase, vT):
    Lf, Lr, Ld = a.newlabel('gp'), a.newlabel('gr'), a.newlabel('gd')
    lanes(a, n)
    a(f's_mov_b32 s35, {LIM_SLOW}')
    a.label(Lf)
    a(f'buffer_load_dword v{vT}, v{vA}, {SWS}, {sBase} offen sc1')
    a.wait_all(lg=False)
    a(f'v_cmp_ne_u32 vcc, {sTag}, v{vT}\ns_cbranch_vccnz {Lr}')
    a.label(Ld)
    a('s_mov_b64 exec, -1')
    def tail():
        a.label(Lr)
        if opt('gsl', 0): a(f's_sleep {opt("gsl", 0)}')
        a(f's_sub_u32 s35, s35, 1\ns_cmp_lg_u32 s35, 0\ns_cbranch_scc1 {Lf}\ns_branch {Ld}')
    TAIL.append(tail)
def lsync(a, n, wide, sF1, sF2, sOwn, republish, vT, delta=SLOW):
    Lf, Lr, Ld, Ls = a.newlabel('lp'), a.newlabel('lr'), a.newlabel('ld'), a.newlabel('ls')
    vA, vD, vE = vT, vT + 2, vT + 6
    w = 4 if wide else 1
    ld = 'buffer_load_dwordx4' if wide else 'buffer_load_dword'
    def cmp(v, s):
        if not wide: a(f'v_cmp_ne_u32 vcc, {s}, v{v}'); return
        for k in range(4): a(f'v_xor_b32 v{v+k}, {s}, v{v+k}')
        a(f'v_or_b32 v{v}, v{v}, v{v+1}\nv_or3_b32 v{v}, v{v}, v{v+2}, v{v+3}\nv_cmp_ne_u32 vcc, 0, v{v}')
    lanes(a, n)
    a(f'v_lshlrev_b32 v{vA}, {4 if wide else 2}, v1\ns_mov_b32 {sDelta}, 0\ns_mov_b32 s35, {LIM_FAST}')
    a.label(Lf)
    a(f'{ld} {vr(vD, w)}, v{vA}, {SWS}, {sF1} offen sc1')
    a.wait_all(lg=False)
    cmp(vD, sFast)
    a(f's_cbranch_vccnz {Lr}')
    a.label(Ld)
    a('s_mov_b64 exec, -1')
    def tail():
        a.label(Lr)
        a(f's_sub_u32 s35, s35, 1\ns_cmp_lg_u32 s35, 0\ns_cbranch_scc1 {Lf}')
        if republish:
            a('s_mov_b64 exec, -1')
            republish()
            a.wait_all(lg=False)
            a(f'''s_mov_b64 exec, 1
            v_mov_b32 v{vD}, {sOwn}
            v_mov_b32 v{vD+1}, {sTag}
            buffer_store_dword v{vD+1}, v{vD}, {SWS}, {sF2} offen sc0 sc1''')
            lanes(a, n)
        a(f's_mov_b32 s35, {LIM_SLOW}')
        a.label(Ls)
        a(f'{ld} {vr(vD, w)}, v{vA}, {SWS}, {sF1} offen sc1\n{ld} {vr(vE, w)}, v{vA}, {SWS}, {sF2} offen sc0 sc1')
        a.wait_all(lg=False)
        cmp(vD, sFast)
        a(f's_cbranch_vccz {Ld}')
        cmp(vE, sTag)
        a(f's_mov_b32 {sDelta}, {delta}\ns_cbranch_vccz {Ld}\ns_mov_b32 {sDelta}, 0\ns_sub_u32 s35, s35, 1\ns_cmp_lg_u32 s35, 0\ns_cbranch_scc1 {Ls}\ns_branch {Ld}')
    TAIL.append(tail)
def flag(a, sOff, sBase, sVal, vT, fl):
    a(f'''s_mov_b64 exec, 1
    v_mov_b32 v{vT}, {sOff}
    v_mov_b32 v{vT+1}, {sVal}
    buffer_store_dword v{vT+1}, v{vT}, {SWS}, {sBase} offen {fl}
    s_mov_b64 exec, -1''')
def gflag(a, sOff, sBase, vT):
    a(f'''s_mov_b64 exec, 15
    v_lshl_add_u32 v{vT}, v1, 4, {sOff}
    v_mov_b32 v{vT+2}, {sTag}
    v_mov_b32 v{vT+3}, {sTag}
    v_mov_b32 v{vT+4}, {sTag}
    v_mov_b32 v{vT+5}, {sTag}
    buffer_store_dwordx4 {vr(vT+2,4)}, v{vT}, {SWS}, {sBase} offen sc0 sc1
    s_mov_b64 exec, -1''')
def flag_w0(a, sOff, sBase, vT):
    L = a.newlabel('f0')
    a(f's_cmp_lg_u32 {sW}, 0\ns_cbranch_scc1 {L}')
    a.cond = True; gflag(a, sOff, sBase, vT); a.vm.pop(); a.cond = False
    a.label(L)
def tag_ready(a):
    a(f'''s_mul_i32 {sTag}, {sTag}, 0x9e3779b1
    s_add_u32 {sTag}, {sTag}, 0x7f4a7c15
    s_add_u32 {sFast}, {sFast}, {sTag}''')

LW34 = 102400
LSX = 147456
def wpoll(a):
    a(f'v_lshlrev_b32 v7, 7, v1\ns_mov_b32 s67, {GW}')
    gpoll(a, 64, 7, 's67', 33)
    stamp(a, 'Lwf')
def wcopy(a):
    a(f's_and_b32 s68, {sI}, 15\ns_mul_i32 s68, s68, 39936\ns_mul_i32 s34, {sW}, 10240\ns_add_u32 s68, s68, s34\ns_add_u32 s68, s68, {WS_W}\ns_add_u32 s34, s34, {LW34}')
    for i in range(10):
        if i % 4 == 0: a(f's_add_u32 m0, s34, {i*1024}' + ('\ns_add_u32 s68, s68, 4096' if i else ''))
        a(f'buffer_load_dwordx4 v10, {SWS}, s68 offen offset:{(i&3)*1024} sc1 lds')
def pages(a):
    a(f"""s_mov_b64 exec, 0xffff
    v_lshlrev_b32 v52, 20, v1
    buffer_load_dword v53, v52, {SWS}, 0 offen
    s_mov_b64 exec, 3
    buffer_load_dword v54, v52, {SOUT}, 0 offen
    s_mov_b64 exec, -1""")
def touch2(a):
    Lt = a.newlabel('tc'); Lu = a.newlabel('tc')
    a(f"""s_and_b32 s36, {sI}, 15
    s_lshr_b32 s37, {sI}, 4
    s_cmp_ge_u32 s36, 8
    s_cbranch_scc1 {Lt}
    s_lshl_b32 s34, {sXCD}, 4
    s_lshl_b32 s35, s37, 3
    s_add_u32 s34, s34, s35
    s_lshl_b32 s35, {sW}, 1
    s_add_u32 s34, s34, s35
    s_mul_i32 s34, s34, 13312
    s_mul_i32 s35, s36, 1536
    s_add_u32 s34, s34, s35
    s_add_u32 s34, s34, {WS_Q}
    s_add_u32 s35, s34, 13312""")
    for sb in ('s34', 's35'): a(f'buffer_load_dwordx4 v[64:67], v10, {SWS}, {sb} offen\ns_mov_b32 exec_hi, 0\nbuffer_load_dwordx4 v[64:67], v10, {SWS}, {sb} offen offset:1024\ns_mov_b32 exec_hi, -1')
    a(f's_branch {Lu}'); a.label(Lt)
    a(f"""s_lshl_b32 s34, {sW}, 1
    s_add_u32 s34, s34, s37
    s_lshl_b32 s35, {sXCD}, 3
    s_add_u32 s34, s34, s35
    s_mul_i32 s34, s34, 24576
    s_mul_i32 s35, s36, 3072
    s_add_u32 s34, s34, s35
    s_add_u32 s34, s34, {WS_VP - 8*3072}""")
    for u in range(3): a(f'buffer_load_dwordx4 v[64:67], v10, {SWS}, s34 offen offset:{u*1024}')
    a.label(Lu)
    a(f"""s_lshr_b32 s34, {sI}, 1
    s_lshl_b32 s35, {sXCD}, 4
    s_add_u32 s34, s34, s35
    s_mul_i32 s34, s34, 13312
    s_add_u32 s34, s34, {WS_Q + 12288}
    s_lshl_b32 s35, {sW}, 8
    v_lshl_add_u32 v68, v1, 2, s35
    buffer_load_dword v64, v68, {SWS}, s34 offen
    s_lshl_b32 s34, {sXCD}, 9
    s_add_u32 s34, s34, {FC1}
    v_lshlrev_b32 v68, 3, v1
    buffer_load_dword v64, v68, {SWS}, s34 offen""")
    a.vm = []

def build():
    a = Asm()
    def emit(x):
        if isinstance(x, tuple): a(x[0], tag=x[1])
        else: a(x)
    a(f'''s_cmp_ge_u32 s2, 256
    s_cbranch_scc1 K_end
    s_load_dwordx4 s[20:23], s[0:1], 0
    s_load_dwordx4 s[28:31], s[0:1], 16
    s_load_dwordx4 s[36:39], s[0:1], 32
    s_load_dwordx2 s[32:33], s[0:1], 56
    v_and_b32 v1, 63, v0
    v_lshrrev_b32 v2, 6, v0
    s_and_b32 {sXCD}, s2, 7
    v_readfirstlane_b32 {sW}, v2
    s_lshr_b32 {sI}, s2, 3''')
    stamp(a, 'start')
    if PROFILE and not HP: St.names['L'].append('Lstart')
    if HP:
        St.names['L'].append('Lstart')
        a('s_waitcnt lgkmcnt(0)')
        for r in STAMP_REGS[1:]: a(f's_mov_b32 s{r}, s70')
    a('s_getpc_b64 s[48:49]')
    a.label('K_pc')
    a(f'''s_sub_u32 s48, s48, K_pc-{KNAME}
    s_subb_u32 s49, s49, 0
    s_lshl_b32 s34, {sI}, 3
    s_add_u32 s34, s34, {sW}
    s_and_b32 s34, s34, 31
    s_lshl_b32 s34, s34, 10
    v_lshl_add_u32 v9, v1, 4, s34
    global_load_dwordx4 v[252:255], v9, s[48:49]
    s_lshr_b32 {sRole}, {sW}, 2
    s_and_b32 {sW}, {sW}, 3
    s_lshl_b32 {sM1K}, {sW}, 10
    s_getreg_b32 {sFast}, hwreg(HW_REG_XCC_ID)
    s_and_b32 {sFast}, {sFast}, 15
    s_add_u32 {sFast}, {sFast}, 1
    v_lshrrev_b32 v2, 3, v1
    v_and_b32 v3, 7, v1
    v_lshlrev_b32 v10, 4, v1
    s_cmp_lt_u32 {sI}, 8
    s_cbranch_scc1 K_pre''')
    PRIO = opt('prio', 1)
    T8, G8, vL16 = 2, 3, 10
    sG, sJ, sP, sHF, sX, sM = 's50', 's51', 's52', 's53', 's54', 's55'
    sR = ['s56', 's57', 's58', 's59', 's60', 's61']
    ROT = opt('rot', 7)
    a(f'''s_sub_u32 {sJ}, {sI}, 8
    s_mul_i32 s34, {sJ}, 43
    s_lshr_b32 s34, s34, 8
    s_mul_i32 s35, s34, 6
    s_sub_u32 {sJ}, {sJ}, s35
    s_lshl_b32 {sG}, {sXCD}, 2
    s_add_u32 {sG}, {sG}, s34
    s_lshr_b32 {sP}, {sW}, 1
    s_and_b32 {sHF}, {sW}, 1
    s_lshl_b32 {sM}, {sW}, 11''')
    def rot_r(dst):
        if ROT == 4: a(f's_mul_i32 {dst}, {sXCD}, 3\ns_lshr_b32 {dst}, {dst}, 2')
        elif ROT == 5: a(f's_add_u32 {dst}, {sXCD}, 4\ns_and_b32 {dst}, {dst}, 7\ns_mul_i32 {dst}, {dst}, 3\ns_lshr_b32 {dst}, {dst}, 2')
        elif ROT == 6: a(f's_and_b32 {dst}, {sG}, 1\ns_mul_i32 {dst}, {dst}, 4\ns_add_u32 {dst}, {dst}, {sXCD}\ns_and_b32 {dst}, {dst}, 7\ns_mul_i32 {dst}, {dst}, 3\ns_lshr_b32 {dst}, {dst}, 2')
        elif ROT == 7: a(f's_mul_i32 {dst}, {sXCD}, 3\ns_lshr_b32 {dst}, {dst}, 2\ns_add_u32 {dst}, {dst}, {sJ}\ns_cmp_ge_u32 {dst}, 6\ns_cselect_b32 s34, 6, 0\ns_sub_u32 {dst}, {dst}, s34')
        elif ROT == 8: a(f's_and_b32 {dst}, {sG}, 3\ns_add_u32 {dst}, {dst}, {sXCD}\ns_add_u32 {dst}, {dst}, {sJ}\ns_mul_i32 s34, {dst}, 43\ns_lshr_b32 s34, s34, 8\ns_mul_i32 s34, s34, 6\ns_sub_u32 {dst}, {dst}, s34')
    if ROT: rot_r('s3')
    a(f's_cmp_lg_u32 {sRole}, 0\ns_cbranch_scc1 A_ld')
    if PRIO == 1: a('s_setprio 1')
    XS = lambda c: c*8192
    WQ0 = 49152
    W2L = 49152
    vXF, vAW, vSst, vX1, vST, vRes, vBP, vBS, vW2, vW2b = 12, 16, 18, 19, 20, 21, 22, 23, 24, 25
    XF, WF, ACC, CS, MA, SEL, CA, CB = 160, 32, 64, 96, 104, 108, 112, 120
    sSst, sSld, sX1, sST, sFS1, sFS2, sOwn, sGX = 's56', 's57', 's58', 's59', 's60', 's61', 's62', 's63'
    a(f'''v_and_b32 v4, 31, v1
    v_lshrrev_b32 v5, 5, v1
    v_bfe_u32 v6, v1, 1, 3
    v_xor_b32 v6, v6, v5
    v_lshlrev_b32 v4, 7, v4
    v_lshl_add_u32 v4, v6, 4, v4
    s_lshl_b32 s35, {sP}, 12
    v_add_u32 v{vXF}, s35, v4
    v_xor_b32 v{vXF+1}, 32, v{vXF}
    v_xor_b32 v{vXF+2}, 64, v{vXF}
    v_xor_b32 v{vXF+3}, 96, v{vXF}
    v_bfe_u32 v6, v1, 2, 2
    v_lshl_add_u32 v4, v5, 3, v6
    v_lshlrev_b32 v4, 7, v4
    v_lshrrev_b32 v7, 1, v6
    v_xor_b32 v7, {sHF}, v7
    v_lshl_add_u32 v4, v7, 6, v4
    v_bfe_u32 v7, v1, 4, 1
    v_lshl_add_u32 v4, v7, 5, v4
    v_and_b32 v8, 1, v1
    v_lshl_add_u32 v4, v8, 4, v4
    v_bfe_u32 v8, v1, 1, 1
    v_lshl_add_u32 v4, v8, 3, v4
    v_add_u32 v{vAW}, {WQ0}, v4
    v_add_u32 v{vAW+1}, {WQ0 + 65536}, v4
    v_bfe_u32 v8, v1, 2, 1
    v_cmp_eq_u32 vcc, v8, v7
    v_mov_b32 v7, 0x3f803f80
    s_mov_b32 s34, {WE}
    s_waitcnt lgkmcnt(0)
    s_load_dword {sTag}, s[32:33], s34''')
    for k in range(4): a(f'v_cndmask_b32 v{SEL+k}, 0, v7, vcc')
    srd(a, 16, 32, WS_SIZE); srd(a, 24, 38, 1572864)
    a(f'''v_lshlrev_b32 v{vSst}, 9, v5
    v_lshl_add_u32 v{vSst}, v{G8}, 6, v{vSst}
    v_bfe_u32 v6, v1, 3, 2
    v_lshl_add_u32 v{vSst}, v6, 4, v{vSst}
    s_mul_i32 s34, {sG}, 24576
    s_lshl_b32 s35, {sP}, 10
    s_add_u32 s34, s34, s35
    s_add_u32 {sSld}, s34, {WS_S}
    s_lshl_b32 s35, {sJ}, 1
    s_add_u32 s35, s35, {sHF}
    s_lshl_b32 {sOwn}, s35, 2
    s_lshl_b32 s3{6}, s35, 11
    s_add_u32 {sSst}, {sSld}, s36
    s_lshl_b32 s34, {sG}, 1
    s_add_u32 s34, s34, {sP}
    s_lshl_b32 s34, s34, 7
    s_add_u32 {sFS1}, s34, {FS1}
    s_add_u32 {sFS2}, s34, {FS2}''')
    a(f'''v_bfe_u32 v6, v1, 2, 3
    v_and_b32 v7, 3, v1
    s_mov_b32 s34, 196608
    v_mul_lo_u32 v{vX1}, v6, s34
    v_lshl_add_u32 v{vX1}, v5, 8, v{vX1}
    v_lshl_add_u32 v{vX1}, v7, 4, v{vX1}
    v_mul_u32_u24 v{vST}, 49152, v6
    v_lshl_add_u32 v{vST}, v7, 4, v{vST}
    v_lshl_add_u32 v8, v7, 3, v6
    v_lshlrev_b32 v{vBP}, 2, v8
    v_lshlrev_b32 v{vBS}, 5, v7
    v_lshl_add_u32 v{vBS}, v5, 4, v{vBS}
    v_bfe_u32 v4, v8, 1, 3
    s_lshl_b32 s34, {sHF}, 2
    v_xor_b32 v4, s34, v4
    v_xor_b32 v4, v4, v5
    v_lshlrev_b32 v4, 4, v4
    v_lshl_add_u32 v4, v8, 7, v4''')
    if ROT: a(f's_add_u32 s34, {sJ}, 6\ns_sub_u32 s34, s34, s3\ns_cmp_ge_u32 s34, 6\ns_cselect_b32 s36, 6, 0\ns_sub_u32 s34, s34, s36\ns_lshl_b32 s34, s34, 13')
    else: a(f's_lshl_b32 s34, {sJ}, 13')
    a(f'''s_lshl_b32 s36, {sP}, 12
    s_add_u32 s34, s34, s36
    v_add_u32 v{vRes}, s34, v4
    s_lshl_b32 s34, {sHF}, 10
    s_add_u32 s34, s34, {W2L}
    v_add_u32 v{vW2}, s34, v{vL16}
    v_and_b32 v4, 31, v1
    v_lshlrev_b32 v4, 2, v4
    s_lshl_b32 s34, {sHF}, 7
    s_add_u32 s34, s34, {W2L + 49152}
    v_add_u32 v4, s34, v4
    v_lshl_add_u32 v{vW2b}, v5, 10, v4
    v_add_u32 v{vW2b+1}, 2048, v4
    s_lshr_b32 s34, {sG}, 1
    s_mul_i32 s34, s34, 12288
    s_lshl_b32 s36, s35, 10
    s_add_u32 s34, s34, s36
    s_and_b32 s36, {sG}, 1
    s_lshl_b32 s36, s36, 7
    s_add_u32 s34, s34, s36
    s_lshl_b32 s36, {sP}, 6
    s_add_u32 s34, s34, s36
    s_add_u32 {sX1}, s34, {WS_X1}
    s_lshl_b32 s34, s35, 12
    s_add_u32 s34, s34, s36
    s_lshl_b32 s36, {sG}, 7
    s_add_u32 s34, s34, s36
    s_add_u32 {sST}, s34, {WS_ST}
    s_mul_i32 s34, {sG}, 6
    s_add_u32 s34, s34, {sJ}
    s_lshl_b32 {sGX}, s34, 7
    s_mov_b32 s38, {fbits(-1/384)}
    s_mov_b32 s36, 0xffff0000
    s_mov_b32 s64, -1
    s_mov_b32 s65, 0
    s_mov_b32 s66, 0xff00ff00
    s_mov_b32 s67, 0xff00ff00
    s_mov_b32 s68, 0xffff0000
    s_mov_b32 s69, 0xffff0000''')
    for r in range(CA, CA + 8):
        if (r - CA) % 4: a(f'v_mov_b32 v{r}, 0')
    a('s_waitcnt lgkmcnt(0)')
    tag_ready(a)
    a('s_barrier')
    stamp(a, 'mm0')
    def rd(ks):
        c, k4 = ks >> 2, ks & 3
        a(f'ds_read_b128 {vr(XF+4*ks,4)}, v{vXF+k4} offset:{XS(c)}', tag=f'f{ks}')
        return [(c, k4, P) for P in range(2)]
    def trd(ks, P):
        c, k4 = ks >> 2, ks & 3
        off = c*16384 + P*8192 + k4*2048
        base = vAW + (off >> 16); off &= 0xffff
        d = WF + (ks % 3)*8 + P*4
        a(f'ds_read_b64_tr_b16 {vr(d,2)}, v{base} offset:{off}\nds_read_b64_tr_b16 {vr(d+2,2)}, v{base} offset:{off+512}', tag=f'f{ks}')
    def pre(ks, part):
        if part == 0: rd(ks); trd(ks, 0)
        else: trd(ks, 1)
    for ks in range(2): pre(ks, 0); pre(ks, 1)
    def m16(d, b, first): a(f'v_mfma_f32_16x16x32_bf16 {vr(d,4)}, {vr(SEL,4)}, {b}, {"0" if first else vr(d,4)}')
    for ks in range(24):
        bar = (ks & 3) == 3 and ks < 23
        if bar:
            if ks == 15: a.wait_all(lg=False)
            a('s_barrier')
            if ks in (7, 15, 19): stamp(a, f'c{(ks+1)>>2}')
            pre(ks + 1, 0); pre(ks + 1, 1)
        a.wait(lg=f'f{ks}')
        wf = lambda P: vr(WF + (ks % 3)*8 + P*4, 4)
        main = lambda P: a(f'v_mfma_f32_32x32x16_bf16 {vr(ACC+16*P,16)}, {wf(P)}, {vr(XF+4*ks,4)}, {"0" if ks == 0 else vr(ACC+16*P,16)}')
        nx = ks + 2 if (ks & 3) != 2 and ks + 2 < 24 else None
        if ks < 23:
            for P in range(2):
                main(P)
                if nx: pre(nx, P)
                m16(CS + 4*P, wf(P), ks == 0)
            m16(MA, vr(XF+4*ks, 4), ks == 0)
        else:
            m16(MA, vr(XF+4*ks, 4), False)
            for P in range(2): m16(CS + 4*P, wf(P), False)
            main(0)
            main(1)
            a(f'''v_mul_f32 v{MA}, s38, v{MA}
            v_cvt_pk_bf16_f32 v{CA}, v{CS}, v{CS}
            v_cvt_pk_bf16_f32 v{CA+4}, v{CS+4}, v{CS+4}
            v_cvt_pk_bf16_f32 v{MA+1}, v{MA}, v{MA}
            v_and_b32 v{CA}, s36, v{CA}
            v_and_b32 v{CA+4}, s36, v{CA+4}
            v_cndmask_b32 v{CB}, 0, v{MA+1}, s[64:65]
            v_sub_f32 v{CA}, v{CS}, v{CA}
            v_sub_f32 v{CA+4}, v{CS+4}, v{CA+4}
            v_mov_b32 v{CB+1}, v{CB}
            v_cvt_pk_bf16_f32 v{CA}, v{CS}, v{CA}
            v_cvt_pk_bf16_f32 v{CA+4}, v{CS+4}, v{CA+4}
            v_mov_b32 v{CB+2}, v{CB}
            v_mov_b32 v{CB+3}, v{CB}''')
            for P in range(2): a(f'v_mfma_f32_32x32x16_bf16 {vr(ACC+16*P,16)}, {vr(CA+4*P,4)}, {vr(CB,4)}, {vr(ACC+16*P,16)}')
    stamp(a, 'mmend')
    PQ, PK, SC, SS, SQ, CM = 32, 40, 64, 96, 100, 124
    a(f'v_mov_b32 v{SQ}, 0\nv_mov_b32 v{SQ+1}, 0')
    for k in range(4): a(f'v_mov_b32 v{CM+k}, v{MA+1}')
    for P, d in ((0, PQ), (1, PK)):
        for i in range(8): a(f'v_cvt_pk_bf16_f32 v{d+i}, v{ACC+16*P+2*i}, v{ACC+16*P+2*i+1}')
    a(f'v_mfma_f32_32x32x16_bf16 {vr(SC,16)}, {vr(PK,4)}, {vr(PQ,4)}, 0')
    a(f'v_mfma_f32_32x32x16_bf16 {vr(SC,16)}, {vr(PK+4,4)}, {vr(PQ+4,4)}, {vr(SC,16)}')
    RAW = 48
    a(f'v_xor_b32 v4, 32, v{vRes}\nds_read_b128 {vr(RAW,4)}, v{vRes}\nds_read_b128 {vr(RAW+4,4)}, v4', tag='raw')
    for e in range(4): a(f'v_cndmask_b32 v{SC+e}, v{SC+e}, v{SC+4+e}, s[66:67]\nv_cndmask_b32 v{SC+8+e}, v{SC+8+e}, v{SC+12+e}, s[66:67]')
    for e in range(4): a(f'v_cndmask_b32 v{SS+e}, v{SC+e}, v{SC+8+e}, s[68:69]')
    a(f'buffer_store_dwordx4 {vr(SS,4)}, v{vSst}, {SWS}, {sSst} offen {WT if opt("swt", 0) else ""}')
    stamp(a, 'stored')
    ND0 = opt('nd0', 72)
    for i in range(ND0): a(f'v_dot2c_f32_bf16 v{SQ+(i&1)}, v{XF+i}, v{XF+i}')
    a.wait_all(lg=False)
    flag(a, sOwn, sFS1, sFast, 4, '')
    stamp(a, 'flag')
    for i in range(ND0, 96): a(f'v_dot2c_f32_bf16 v{SQ+(i&1)}, v{XF+i}, v{XF+i}')
    RR, RES = 56, 80
    a(f'''s_mov_b32 s37, {fbits(1e-5)}
    v_mul_f32 v{SQ+2}, v{MA}, v{MA}
    v_add_u32 v5, 4, v{vBS}
    v_add_f32 v{SQ}, v{SQ}, v{SQ+1}
    v_mov_b32 v{SQ+1}, v{SQ}
    v_add_u32 v6, 8, v{vBS}
    v_add_u32 v7, 12, v{vBS}
    v_permlane32_swap_b32 v{SQ}, v{SQ+1}
    v_add_f32 v{SQ}, v{SQ}, v{SQ+1}
    v_fma_f32 v{SQ}, -v{SQ}, s38, -v{SQ+2}
    v_max_f32 v{SQ}, 0, v{SQ}
    v_add_f32 v{SQ}, s37, v{SQ}
    v_rsq_f32 v{SQ}, v{SQ}''')
    a(f'ds_bpermute_b32 v{RR+4}, v{vBP}, v{SQ}\nds_bpermute_b32 v{RR}, v{vBS}, v{SQ}', tag='bp')
    for e in range(1, 4): a(f'ds_bpermute_b32 v{RR+e}, v{4+e}, v{SQ}', tag='bp')
    a.wait(lg='raw')
    for d in range(8): a(f'v_lshlrev_b32 v{RES+2*d}, 16, v{RAW+d}\nv_and_b32 v{RES+2*d+1}, s36, v{RAW+d}')
    a.wait(lg='bp')
    a(f'v_mul_f32 v{RR+4}, {fbits(SCALE2)}, v{RR+4}')
    def repubA():
        a(f's_add_u32 s34, {sSst}, {SLOW}\nbuffer_store_dwordx4 {vr(SS,4)}, v{vSst}, {SWS}, s34 offen sc0 sc1')
    lsync(a, 12, False, sFS1, sFS2, sOwn, (lambda: None) if opt('swt', 0) else repubA, 32, 0 if opt('swt', 0) else SLOW)
    stamp(a, 'synced')
    SP, Y, WR = 112, 64, 32
    SPR = [128, 132, 136, 140, 144, 148, 152, 156, 112, 116, 96, 100]
    S0 = SPR[0]; T0 = SPR[1]
    sm = []
    def w2rd(ks):
        if ks < 24: a(f'ds_read_b128 {vr(WR+4*(ks%6),4)}, v{vW2} offset:{ks*2048}', tag=f'y{ks}')
        else:
            for k in range(2): a(f'ds_read2st64_b32 {vr(WR+4*(ks%6)+2*k,2)}, v{vW2b+ks-24} offset0:{2*k} offset1:{2*k+1}', tag=f'y{ks}')
    YH = opt('yh', 8)
    def ystep(ks, lim=26):
        a.wait(lg=f'y{ks}')
        xa = vr(XF+4*ks, 4) if ks < 24 else vr(CM if ks == 24 else CB, 4)
        a(f'v_mfma_f32_32x32x16_bf16 {vr(Y,16)}, {xa}, {vr(WR+4*(ks%6),4)}, {"0" if ks == 0 else vr(Y,16)}')
        if ks + 5 < lim: w2rd(ks + 5)
    a(f's_add_u32 {sSld}, {sSld}, {sDelta}\ns_mul_i32 s34, {sHF}, 12288\ns_add_u32 {sSld}, {sSld}, s34')
    for i in range(6):
        if i and i % 2 == 0: a(f's_add_u32 {sSld}, {sSld}, 4096')
        a(f'buffer_load_dwordx4 {vr(SPR[i],4)}, v{vL16}, {SWS}, {sSld} offen offset:{(i&1)*2048} sc1', tag=f's{i}')
    a(f's_add_u32 s34, {sM1K}, {LSX}\nv_add_u32 v4, s34, v{vL16}\nv_xor_b32 v5, 1024, v4')
    for i in range(1, 6):
        a.wait(vm=f's{i}')
        for d in (0, 2): a(f'v_pk_add_f32 {vr(S0+d,2)}, {vr(S0+d,2)}, {vr(SPR[i]+d,2)}')
    a(f'ds_write_b128 v4, {vr(S0,4)}\ns_waitcnt lgkmcnt(0)'); a.lg = []
    stamp(a, 'ssum')
    a('s_barrier')
    stamp(a, 'w2h')
    a(f'ds_read_b128 {vr(T0,4)}, v5', tag='sx')
    sm.append(('l', 'sx'))
    for d in range(4): sm.append(f'v_add_f32 v{S0+d}, v{S0+d}, v{T0+d}')
    for ks in range(5): w2rd(ks)
    for d in range(4): sm.append(f'v_mul_f32 v{S0+d}, v{S0+d}, v{RR+d}')
    sm += [f'v_max_f32 v{T0}, v{S0}, v{S0+1}', f'v_max3_f32 v{T0}, v{T0}, v{S0+2}, v{S0+3}', f'v_mov_b32 v{T0+1}, v{T0}', 's_mov_b32 s64, 0x11111111', 's_mov_b32 s65, 0x11111111',
           f'v_permlane32_swap_b32 v{T0}, v{T0+1}', f'v_max_f32 v{T0}, v{T0}, v{T0+1}', f'v_mul_f32 v{T0}, v{RR+4}, v{T0}']
    for d in range(4): sm.append(f'v_fma_f32 v{S0+d}, v{S0+d}, v{RR+4}, -v{T0}')
    for d in range(4): sm.append(f'v_exp_f32 v{S0+d}, v{S0+d}')
    sm += [f'v_add_f32 v{T0}, v{S0}, v{S0+1}', f'v_add_f32 v{T0+1}, v{S0+2}, v{S0+3}', f'v_add_f32 v{T0}, v{T0}, v{T0+1}', f'v_mov_b32 v{T0+1}, v{T0}']
    sm += [f'v_mul_f32 v{S0+d}, v{S0+d}, v{RR+d}' for d in range(2)] + [f'v_permlane32_swap_b32 v{T0}, v{T0+1}', f'v_add_f32 v{T0}, v{T0}, v{T0+1}', f'v_rcp_f32 v{T0}, v{T0}']
    sm += [f'v_mul_f32 v{S0+d}, v{S0+d}, v{RR+d}' for d in range(2, 4)]
    for d in range(4): sm.append(f'v_mul_f32 v{S0+d}, v{S0+d}, v{T0}')
    PB = 136
    sm += [f'v_cvt_pk_bf16_f32 v{T0}, v{S0}, v{S0+1}', f'v_cvt_pk_bf16_f32 v{T0+1}, v{S0+2}, v{S0+3}']
    for b in range(4):
        sm += [f'v_cndmask_b32 v{PB+2*b}, 0, v{T0}, s[64:65]', f'v_cndmask_b32 v{PB+2*b+1}, 0, v{T0+1}, s[64:65]']
        if b < 3: sm.append('s_lshl_b64 s[64:65], s[64:65], 1')
    S2 = 104
    sm += [f'v_mov_b32 v{S2}, 0', f'v_mov_b32 v{S2+1}, 0', 's_mov_b32 s36, 0x3f803f80']
    def drain(n):
        while n > 0 and sm:
            x = sm.pop(0)
            if isinstance(x, tuple): a.wait(vm=x[1]) if x[0] == 'w' else a.wait(lg=x[1])
            else: a(x); n -= 1
    YS = [YH] + ([opt('yh2', 18)] if opt('yh2', 18) > YH else []) + [26]
    stage = 0
    for ks in range(26):
        if stage + 1 < len(YS) and ks == YS[stage] - opt('ybe', 2):
            a('s_barrier')
            stage += 1
            if stage + 1 == len(YS): stamp(a, 'w2in')
            for k in range(YS[stage-1], ks + 5): w2rd(k)
        ystep(ks, YS[stage])
        if ks >= 1: drain(opt('ydr', 6))
    drain(1000)
    stamp(a, 'ygemm')
    YP, XO = 144, 152
    for i in range(8): a(f'v_cvt_pk_bf16_f32 v{YP+i}, v{Y+2*i}, v{Y+2*i+1}')
    for k in range(2): a(f'v_mfma_f32_32x32x16_bf16 {vr(RES,16)}, {vr(YP+4*k,4)}, {vr(PB+4*k,4)}, {vr(RES,16)}')
    for i in range(8): a(f'v_cvt_pk_bf16_f32 v{XO+i}, v{RES+2*i}, v{RES+2*i+1}')
    a(f'buffer_store_dwordx4 {vr(XO,4)}, v{vX1}, {SWS}, {sX1} offen {WT}')
    a(f'buffer_store_dwordx4 {vr(XO+4,4)}, v{vX1}, {SWS}, {sX1} offen offset:512 {WT}')
    for i in range(8): a(f'v_dot2c_f32_bf16 v{S2}, s36, v{XO+i}\nv_dot2c_f32_bf16 v{S2+1}, v{XO+i}, v{XO+i}')
    a(f'''v_mov_b32 v{S2+2}, v{S2}
    v_mov_b32 v{S2+3}, v{S2+1}
    v_permlane32_swap_b32 v{S2}, v{S2+2}
    v_permlane32_swap_b32 v{S2+1}, v{S2+3}
    v_add_f32 v{S2}, v{S2}, v{S2+2}
    v_add_f32 v{S2+1}, v{S2+1}, v{S2+3}
    s_mov_b32 exec_hi, 0
    buffer_store_dwordx4 {vr(S2,4)}, v{vST}, {SWS}, {sST} offen {WT}
    s_mov_b32 exec_hi, -1
    s_mov_b32 s34, {GX}''')
    stamp(a, 'x1st')
    a.wait_all()
    a('s_barrier')
    flag_w0(a, sGX, 's34', 32)
    stamp(a, 'x1pub')
    a('s_branch P2_c')
    a.label('A_ld'); a.vm = []; a.lg = []
    stamp(a, 'Larr1')
    if PRIO == 2: a('s_setprio 1')
    vW, vXs, vP = 32, 36, 38
    sRx = ['s62', 's63', 's64', 's65', 's66', 's67']
    a(f'''s_mov_b32 s35, 196608
    v_mul_lo_u32 v{vXs}, v{T8}, s35
    v_lshrrev_b32 v4, 1, v{T8}
    v_xor_b32 v4, v4, v{G8}
    v_lshl_add_u32 v{vXs}, v4, 4, v{vXs}
    v_xor_b32 v{vXs+1}, 64, v{vXs}
    v_add_u32 v{vXs+1}, 768, v{vXs+1}
    s_lshl_b32 s34, {sG}, 3
    s_lshl_b32 s35, {sW}, 1
    s_add_u32 s34, s34, s35
    s_mul_i32 {sX}, s34, 768
    v_lshlrev_b32 v4, 1, v{T8}
    v_and_b32 v4, 4, v4
    v_xor_b32 v4, v4, v{G8}
    v_mul_u32_u24 v{vW}, 2304, v{T8}
    v_lshl_add_u32 v{vW}, v4, 4, v{vW}
    s_mul_i32 s68, {sW}, {16*2304}
    s_lshl_b32 s34, {sJ}, 7
    s_add_u32 s68, s68, s34''')
    for k in range(1, 4): a(f'v_add_u32 v{vW+k}, {(k>>1)*768 + (k&1)*18432}, v{vW}')
    for i in range(6):
        if ROT:
            a(f's_lshl_b32 s34, s3, 7\ns_add_u32 {sRx[i]}, s34, {sX}\ns_mul_i32 s34, s3, 147456\ns_add_u32 {sR[i]}, s34, s68')
            if i < 5: a('s_add_u32 s3, s3, 1\ns_cmp_ge_u32 s3, 6\ns_cselect_b32 s3, 0, s3')
        else: a(f's_add_u32 {sR[i]}, s68, {i*147456}\ns_add_u32 {sRx[i]}, {sX}, {i*128}')
    for i in range(2):
        a(f'''s_lshl_b32 s34, {sJ}, 3
        s_lshl_b32 s35, {sW}, 1
        s_add_u32 s34, s34, s35
        s_add_u32 s34, s34, {i}
        s_mul_i32 s35, s34, 43
        s_lshr_b32 s35, s35, 8
        s_mul_i32 s14, s35, 6
        s_sub_u32 s34, s34, s14
        s_lshl_b32 s34, s34, 10
        s_mul_i32 s35, s35, 196608
        s_add_u32 s34, s34, s35
        s_mul_i32 s35, {sG}, 6144
        s_add_u32 s{12+i}, s34, s35''')
    a(f's_mov_b32 s34, {WE}\ns_waitcnt lgkmcnt(0)\ns_load_dword {sTag}, s[32:33], s34')
    srd(a, 4, 20, 1572864); srd(a, 8, 22, 884736)
    def xpre():
        for i in range(2): a(f'buffer_load_dwordx4 v[{56+4*i}:{59+4*i}], v{vL16}, {SX}, s{12+i} offen')
    if opt('xp0', 0) == 1: xpre()
    def wdma(c):
        for th in range(2):
            a(f's_add_u32 m0, {sM}, {XS(c) + th*1024}\nbuffer_load_dwordx4 v{vXs+th}, {SX}, {sRx[c]} offen lds', tag=f'w{c}')
        for k in range(4):
            a(f's_add_u32 m0, {sM}, {WQ0 + c*16384 + (k>>1)*8192 + (k&1)*1024}\nbuffer_load_dwordx4 v{vW+k}, {SWQ}, {sR[c]} offen lds', tag=f'w{c}')
    stamp(a, 'Lgo1')
    NL = opt('nl', 2)
    for c in range(NL):
        wdma(c)
        if c == 0 and opt('xp0', 0) == 2: xpre()
        if c == 0: srd(a, 16, 32, WS_SIZE); srd(a, 24, 38, 1572864)
    a(f'''v_mul_u32_u24 v{vP}, 768, v1
    s_lshl_b32 s34, {sJ}, 7
    s_add_u32 s68, s34, {GW2}
    s_mul_i32 s69, {sJ}, 53248
    s_add_u32 s69, s69, {WS_W2}
    s_waitcnt lgkmcnt(0)''')
    tag_ready(a)
    def progress():
        L = a.newlabel('pg')
        a(f's_cmp_lg_u32 {sI}, 8\ns_cbranch_scc1 {L}\ns_cmp_lg_u32 {sW}, 0\ns_cbranch_scc1 {L}')
        a.cond = True
        a(f's_lshl_b32 s34, {sXCD}, 7\ns_mov_b32 s35, {FP}'); flag(a, 's34', 's35', sFast, 52, ''); a.vm.pop()
        a.cond = False
        a.label(L)
    if opt('prg', 9) == 9: progress()
    for c in range(6):
        a.wait(vm=f'w{c}')
        if c in (0, 3, 5): stamp(a, f'L{c}')
        a('s_barrier')
        if c + NL < 6: wdma(c + NL)
        if c == opt('prg', 9): progress()
        if c == opt('tlb', 1): pages(a)
        if c == opt('tpos', 3) and opt('touch', 1):
            a(f'''s_mul_i32 s34, {sG}, 24576
            s_lshl_b32 s35, {sJ}, 12
            s_add_u32 s34, s34, s35
            s_add_u32 s34, s34, {WS_S}
            s_add_u32 s34, s34, {sM1K}
            {"" if opt("swt", 0) else f"buffer_load_dwordx4 v[44:47], v{vL16}, {SWS}, s34 offen"}
            s_lshl_b32 s34, {sG}, 8
            s_add_u32 s34, s34, {FS1}
            v_lshlrev_b32 v48, 2, v1
            buffer_load_dword v49, v48, {SWS}, s34 offen
            s_lshl_b32 s34, {sXCD}, 9
            s_add_u32 s34, s34, {FC1}
            v_lshlrev_b32 v48, 3, v1
            buffer_load_dword v50, v48, {SWS}, s34 offen''')
    a(f's_mul_i32 s20, {sW}, 3')
    if ROT: rot_r('s3'); a('s_lshl_b32 s3, s3, 1\ns_add_u32 s3, s3, s20')
    else: a('s_mov_b32 s3, s20')
    a(f's_lshl_b32 s20, s20, 12\ns_add_u32 s20, s20, {W2L}')
    for k in range(3):
        a(f's_cmp_ge_u32 s3, 12\ns_cselect_b32 s34, 12, 0\ns_sub_u32 s3, s3, s34\ns_lshl_b32 s34, s3, 12\ns_add_u32 s{21+k}, s69, s34\ns_add_u32 s3, s3, 1')
    a(f's_add_u32 s69, s69, 49152\ns_add_u32 s69, s69, {sM1K}')
    if opt('tp', 9) == 0: touch2(a)
    if opt('w21', 1):
        a(f's_cmp_lg_u32 {sW}, 0\ns_cbranch_scc1 A_ld2')
        gpoll(a, 4, vP, 's68', 40)
        stamp(a, 'Lw2f')
        a(f's_sub_u32 s69, s69, 49152')
        for gi in range(13):
            if gi == 12: a(f's_add_u32 s68, s69, 49152')
            elif gi == 0: a('s_mov_b32 s68, s21\ns_sub_u32 s3, s21, s69')
            elif gi % 2 == 0: a('s_add_u32 s3, s3, 8192\ns_cmp_ge_u32 s3, 49152\ns_cselect_b32 s3, 0, s3\ns_add_u32 s68, s69, s3')
            else: a('s_add_u32 s68, s68, 4096')
            a(f's_mov_b32 m0, {W2L + gi*4096}')
            for k in range(4 if gi < 12 else 3): a(f'buffer_load_dwordx4 v{vL16}, {SWS}, s68 offen offset:{k*1024} sc1 lds', tag=f'h{gi}')
        if opt('yh', 8): a.wait(vm=f'h{opt("yh", 8)//2 - 1}')
        if opt('yh2', 18) > opt('yh', 8):
            a('s_barrier'); a.wait(vm=f'h{opt("yh2", 18)//2 - 1}'); a('s_branch A_ld3')
            a.label('A_ld2')
            a('s_barrier')
            a.label('A_ld3')
        else: a.label('A_ld2')
        a('s_barrier')
    else:
        gpoll(a, 4, vP, 's68', 40)
        stamp(a, 'Lw2f')
        for k in range(3):
            a(f's_add_u32 m0, s20, {k*4096}')
            for q in range(4): a(f'buffer_load_dwordx4 v{vL16}, {SWS}, s{21+k} offen offset:{q*1024} sc1 lds')
        a(f's_add_u32 m0, {sM1K}, {W2L + 49152}\nbuffer_load_dwordx4 v{vL16}, {SWS}, s69 offen sc1 lds')
    a.wait_all()
    stamp(a, 'Lw2')
    a('s_barrier\ns_barrier\ns_branch P2_l')
    a.label('K_pre'); a.vm = []; a.lg = []
    sS8, sIt, sJt, sA, sB, sMm, sT0, sLA, sLB = 's50', 's51', 's52', 's53', 's54', 's55', 's56', 's57', 's58'
    a(f'''s_mov_b32 {sS8}, {sI}
    s_mov_b32 s34, {WE}
    s_and_b32 s59, {sXCD}, 1
    s_lshr_b32 s60, {sXCD}, 1
    s_cmp_lt_u32 {sS8}, 3
    s_cbranch_scc1 W_id0
    s_mul_i32 s35, s60, 9
    s_mul_i32 s61, s59, 5
    s_add_u32 s35, s35, s61
    s_add_u32 s35, s35, {sS8}
    s_sub_u32 s35, s35, 3
    s_mul_i32 s61, s35, 43
    s_lshr_b32 s61, s61, 8
    s_mul_i32 s62, s61, 6
    s_sub_u32 {sJt}, s35, s62
    s_cmp_ge_u32 s61, 3
    s_cselect_b32 {sMm}, 1, 0
    s_mul_i32 s62, {sMm}, 3
    s_sub_u32 {sIt}, s61, s62
    s_add_u32 s62, {sS8}, s59
    s_add_u32 s49, s60, 60
    s_cmp_ge_u32 s62, 8
    s_cselect_b32 {sMm}, 3, {sMm}
    s_cselect_b32 s49, s49, s35
    s_branch W_id1''')
    a.label('W_id0')
    a(f'''s_mov_b32 {sMm}, 2
    s_mov_b32 {sIt}, s60
    s_mul_i32 {sJt}, s59, 3
    s_add_u32 {sJt}, {sJt}, {sS8}
    s_mul_i32 s49, {sXCD}, 3
    s_add_u32 s49, s49, {sS8}
    s_add_u32 s49, s49, 36''')
    a.label('W_id1')
    a(f'''s_waitcnt lgkmcnt(0)
    s_load_dword {sTag}, s[32:33], s34''')
    srd(a, 16, 32, WS_SIZE); srd(a, 24, 38, 1572864)
    a(f'''s_cmp_eq_u32 {sMm}, 3
    s_cbranch_scc1 W_done
    s_cmp_lg_u32 {sRole}, 0
    s_cbranch_scc1 W_ld''')
    BB = 98304
    FA, FB, AC = 32, 48, 128
    vAr, vBr = 14, 18
    a(f'''v_and_b32 v2, 31, v1
    v_lshrrev_b32 v3, 5, v1
    v_and_b32 v4, 19, v2
    v_bfe_u32 v5, v2, 2, 1
    v_lshl_add_u32 v4, v5, 3, v4
    v_bfe_u32 v5, v2, 3, 1
    v_lshl_add_u32 v4, v5, 2, v4
    v_lshrrev_b32 v5, 3, v4
    v_mul_u32_u24 v5, 6144, v5
    v_and_b32 v6, 7, v4
    v_lshl_add_u32 v5, v6, 7, v5
    v_bfe_u32 v6, v4, 1, 3
    v_xor_b32 v6, v6, v3
    v_lshl_add_u32 v11, v6, 4, v5
    v_bfe_u32 v6, v1, 2, 2
    v_lshl_add_u32 v4, v3, 3, v6
    v_lshlrev_b32 v4, 7, v4
    v_lshrrev_b32 v7, 1, v6
    v_lshl_add_u32 v4, v7, 6, v4
    v_bfe_u32 v7, v1, 4, 1
    v_lshl_add_u32 v12, v7, 5, v4
    s_mov_b32 s37, 0x3f803f80''')
    def a_addr(swave):
        a(f's_mul_i32 s34, {swave}, 24576\nv_add_u32 v{vAr}, s34, v11')
        for k in range(1, 4): a(f'v_xor_b32 v{vAr+k}, {32*k}, v{vAr}')
    def stages(nv, breads):
        def rd(jj, k4):
            o = (jj & 1)*48*opt('ppipe', 1)
            a(f'ds_read_b128 {vr(FA+o+4*k4,4)}, v{vAr+k4} offset:{jj*1024}', tag=f'r{k4}')
            for v in range(nv): breads(jj, k4, v, FB + o + (k4*2+v)*4)
        def mm(jj, k4):
            o = (jj & 1)*48*opt('ppipe', 1)
            for v in range(nv):
                cin = '0' if (jj == 0 and k4 == 0) else vr(AC+16*v, 16)
                a(f'v_mfma_f32_32x32x16_bf16 {vr(AC+16*v,16)}, {vr(FA+o+4*k4,4)}, {vr(FB+o+(k4*2+v)*4,4)}, {cin}')
        for jj in range(6):
            a('s_barrier')
            if opt('ppipe', 1) and jj:
                rd(jj, 0); mm(jj - 1, 2); rd(jj, 1); mm(jj - 1, 3); rd(jj, 2); rd(jj, 3)
            else:
                for k4 in range(4): rd(jj, k4)
            last = 4 if (jj == 5 or not opt('ppipe', 1)) else 2
            for k4 in range(last):
                a.wait(lg=f'r{k4}'); mm(jj, k4)
            if last == 2: a.wait(lg='r3')
    def btr(jj, k4, v, d):
        o = jj*8192 + k4*2048
        a(f'ds_read_b64_tr_b16 {vr(d,2)}, v{vBr+v} offset:{o}\nds_read_b64_tr_b16 {vr(d+2,2)}, v{vBr+v} offset:{o+512}', tag=f'r{k4}')
    def brow(jj, k4, v, d): a(f'ds_read_b128 {vr(d,4)}, v{vBr+k4} offset:{v*24576+jj*1024}', tag=f'r{k4}')
    def colsum(v, src, dst):
        a(f'v_mov_b32 v24, 0')
        for i in range(8): a(f'v_dot2c_f32_bf16 v24, s37, v{src+i}')
        a(f'''v_mov_b32 v26, v24
        v_permlane32_swap_b32 v24, v26
        v_add_f32 v26, v26, v24
        v_cvt_pk_bf16_f32 v27, v26, v26
        v_lshlrev_b32 v27, 16, v27
        v_sub_f32 v27, v26, v27
        v_cvt_pk_bf16_f32 v{dst}, v26, v27''')
    def colsum2():
        a('v_mov_b32 v24, 0\nv_mov_b32 v25, 0')
        for i in range(8): a(f'v_dot2c_f32_bf16 v24, s37, v{32+i}\nv_dot2c_f32_bf16 v25, s37, v{40+i}')
        a('''v_mov_b32 v26, v24
        v_mov_b32 v27, v25
        v_permlane32_swap_b32 v24, v26
        v_permlane32_swap_b32 v25, v27
        v_add_f32 v24, v26, v24
        v_add_f32 v25, v27, v25
        v_cvt_pk_bf16_f32 v26, v24, v24
        v_cvt_pk_bf16_f32 v27, v25, v25
        v_lshlrev_b32 v26, 16, v26
        v_lshlrev_b32 v27, 16, v27
        v_sub_f32 v26, v24, v26
        v_sub_f32 v27, v25, v27
        v_cvt_pk_bf16_f32 v28, v24, v26
        v_cvt_pk_bf16_f32 v29, v25, v27''')
    a_addr(sW)
    a(f's_cmp_lg_u32 {sMm}, 2\ns_cbranch_scc1 W_c0')
    a(f'''s_min_u32 s59, {sW}, 2''')
    a_addr('s59')
    a(f'''v_and_b32 v7, 1, v1
    v_lshl_add_u32 v4, v7, 4, v12
    v_bfe_u32 v7, v1, 1, 1
    v_lshl_add_u32 v4, v7, 3, v4
    v_add_u32 v{vBr}, {BB}, v4
    v_xor_b32 v{vBr+1}, 64, v{vBr}
    s_mul_i32 s34, {sIt}, 3
    s_add_u32 s34, s34, s59
    s_mul_i32 s35, {sJt}, 53248
    s_add_u32 s35, s35, {WS_W2}
    s_lshl_b32 s36, s34, 12
    s_add_u32 s61, s35, s36
    s_lshl_b32 s36, s34, 8
    s_add_u32 s35, s35, s36
    s_add_u32 s62, s35, 49152
    v_lshlrev_b32 v30, 2, v1
    s_mul_i32 s63, {sIt}, 6
    s_add_u32 s63, s63, {sJt}
    s_lshl_b32 s63, s63, 7
    s_mov_b32 s64, {GW2}''')
    stages(2, btr)
    stamp(a, 'pst')
    a(f's_cmp_eq_u32 {sW}, 3\ns_cbranch_scc1 W_c4')
    for v in range(2):
        for i in range(8): a(f'v_cvt_pk_bf16_f32 v{32+8*v+i}, v{AC+16*v+2*i}, v{AC+16*v+2*i+1}')
        a(f'buffer_store_dwordx4 {vr(32+8*v,4)}, v{vL16}, {SWS}, s61 offen offset:{v*1024} {WT}\nbuffer_store_dwordx4 {vr(36+8*v,4)}, v{vL16}, {SWS}, s61 offen offset:{2048+v*1024} {WT}')
    colsum2()
    a('s_mov_b32 exec_hi, 0')
    for v in range(2): a(f'buffer_store_dword v{28+v}, v30, {SWS}, s62 offen offset:{v*128} {WT}')
    a('s_mov_b32 exec_hi, -1')
    a.label('W_c4')
    a.wait_all()
    tag_ready(a)
    a('s_barrier')
    flag_w0(a, 's63', 's64', 48)
    stamp(a, 'w2pub')
    a('s_branch W_done2')
    a.label('W_c0'); a.lg = []; a.vm = []
    a(f'''s_mul_i32 s34, {sMm}, 24
    s_lshl_b32 s61, {sJt}, 2
    s_add_u32 s34, s34, s61
    v_bfe_u32 v4, v1, 4, 1
    v_add_u32 v4, s34, v4
    v_and_b32 v7, 15, v1
    v_lshlrev_b32 v7, 4, v7
    s_lshl_b32 s61, {sIt}, 2
    s_add_u32 s61, s61, {sW}
    s_mul_i32 s61, s61, 3072
    s_add_u32 s61, s61, {WS_W}
    s_lshl_b32 s62, {sIt}, 2
    s_add_u32 s62, s62, {sW}
    s_mul_i32 s62, s62, 192
    s_add_u32 s62, s62, {WS_W + 12*3072}''')
    for v in range(2):
        a(f'''v_add_u32 v5, {2*v}, v4
        v_mul_u32_u24 v6, 43, v5
        v_lshrrev_b32 v6, 7, v6
        v_mul_u32_u24 v8, 3, v6
        v_sub_u32 v5, v5, v8
        v_mul_u32_u24 v6, 39936, v6
        v_lshl_add_u32 v{160+v}, v5, 6, v6
        v_lshl_add_u32 v6, v5, 10, v6
        v_add_u32 v6, v6, v7
        v_lshl_add_u32 v{162+v}, v3, 8, v6
        v_lshrrev_b32 v6, 2, v7
        v_add_u32 v{160+v}, v{160+v}, v6''')
    a(f's_cmp_eq_u32 {sMm}, 1\ns_cbranch_scc1 W_c1')
    a(f'''v_lshrrev_b32 v5, 3, v2
    v_mul_u32_u24 v5, 6144, v5
    v_and_b32 v6, 7, v2
    v_lshl_add_u32 v5, v6, 7, v5
    v_bfe_u32 v6, v2, 1, 3
    v_xor_b32 v6, v6, v3
    v_lshl_add_u32 v5, v6, 4, v5
    v_add_u32 v{vBr}, {BB}, v5''')
    for k in range(1, 4): a(f'v_xor_b32 v{vBr+k}, {32*k}, v{vBr}')
    stages(2, brow)
    a('s_branch W_c2')
    a.label('W_c1'); a.lg = []
    a(f'''v_and_b32 v7, 3, v1
    v_lshl_add_u32 v4, v7, 3, v12
    v_add_u32 v{vBr}, {BB}, v4
    v_xor_b32 v{vBr+1}, 64, v{vBr}''')
    stages(2, btr)
    a.label('W_c2')
    stamp(a, 'qst')
    for v in range(2):
        for i in range(8): a(f'v_cvt_pk_bf16_f32 v{32+8*v+i}, v{AC+16*v+2*i}, v{AC+16*v+2*i+1}')
        a(f'buffer_store_dwordx4 {vr(32+8*v,4)}, v{162+v}, {SWS}, s61 offen {WT}')
        a(f'buffer_store_dwordx4 {vr(36+8*v,4)}, v{162+v}, {SWS}, s61 offen offset:512 {WT}')
    colsum2()
    a('s_mov_b32 exec_hi, 0')
    for v in range(2): a(f'buffer_store_dword v{28+v}, v{160+v}, {SWS}, s62 offen {WT}')
    a('s_mov_b32 exec_hi, -1')
    stamp(a, 'qsto')
    a('s_branch W_done')
    a.label('W_ld'); a.vm = []; a.lg = []
    stamp(a, 'Larr2')
    vA0, vBo = 12, 14
    a(f'''v_lshrrev_b32 v4, 1, v{T8}
    v_xor_b32 v4, v4, v{G8}
    v_mul_u32_u24 v5, 2304, v{T8}
    v_lshl_add_u32 v{vA0}, v4, 4, v5
    v_xor_b32 v{vA0+1}, 64, v{vA0}
    v_lshlrev_b32 v4, 1, v{T8}
    v_and_b32 v4, 4, v4
    v_xor_b32 v4, v4, v{G8}
    v_mul_u32_u24 v5, 768, v{T8}
    v_lshl_add_u32 v{vBo}, v4, 4, v5''')
    sLn = ['s59', 's60', 's61', 's62', 's63', 's64']; sLb = ['s65', 's66', 's67', 's68', 's69', 's3']
    def lstages(nra, mode):
        if opt('prot', 1) and (nra == 3 or opt('protw', 1)): a(f's_mul_i32 s34, {sIt}, 3\ns_lshr_b32 s34, s34, 1\ns_add_u32 s34, s34, {sJt}')
        else: a('s_mov_b32 s34, 0')
        for jj in range(6):
            a(f's_cmp_ge_u32 s34, 6\ns_cselect_b32 s35, 6, 0\ns_sub_u32 s34, s34, s35\ns_lshl_b32 s35, s34, 7\ns_add_u32 {sLn[jj]}, {sA}, s35')
            if mode == 1: a(f's_mul_i32 s35, s34, {64*768}')
            a(f's_add_u32 {sLb[jj]}, {sB}, s35\ns_add_u32 s34, s34, 1')
        def issue(jj):
            for r in range(nra):
                a(f'''s_add_u32 {sT0}, {sLn[jj]}, {r*8*2304}
                s_add_u32 m0, {sLA}, {(r*6+jj)*1024}
                buffer_load_dwordx4 v{vA0+(r&1)}, {SWQ}, {sT0} offen lds''', tag=f'p{jj}')
            for r in range(2):
                if mode == 0:
                    a(f'''s_add_u32 {sT0}, {sLb[jj]}, {r*8*2304}
                    s_add_u32 m0, {sLB}, {BB + (r*6+jj)*1024}
                    buffer_load_dwordx4 v{vA0+r}, {SWQ}, {sT0} offen lds''', tag=f'p{jj}')
                else:
                    a(f'''s_add_u32 {sT0}, {sLb[jj]}, {r*8*768}
                    s_add_u32 m0, {sLB}, {BB + jj*8192 + r*1024}
                    buffer_load_dwordx4 v{vBo}, {SWO}, {sT0} offen lds''', tag=f'p{jj}')
        n0 = opt('pn0', 3) if nra == 3 else opt('pn0w', 3)
        if nra == 3: stamp(a, 'Lgo2')
        for jj in range(n0): issue(jj)
        for jj in range(6):
            a.wait(vm=f'p{jj}')
            if jj in (0, 3, 5): stamp(a, f'Lp{jj}' if nra == 3 else f'Lq{jj}')
            a('s_barrier')
            if jj + n0 < 6: issue(jj + n0)
            if jj == opt('ptlb', 9): pages(a)
    if opt('tlb', 1) >= 0 and opt('ptlb', 9) < 0: pages(a)
    a(f's_cmp_lg_u32 {sMm}, 2\ns_cbranch_scc1 W_l0')
    srd(a, 8, 22, 884736); srd(a, 12, 28, 294912)
    a(f'''s_lshl_b32 s34, {sIt}, 2
    s_add_u32 s34, s34, {sW}
    s_mul_i32 {sA}, s34, {24*2304}
    s_add_u32 {sA}, {sA}, 1536
    s_mul_i32 {sLA}, {sW}, 18432
    s_mul_i32 {sB}, {sW}, {16*768}
    s_lshl_b32 s34, {sJt}, 7
    s_add_u32 {sB}, {sB}, s34
    s_lshl_b32 {sLB}, {sW}, 11
    s_and_b32 s34, {sW}, 1
    s_lshl_b32 s34, s34, 6
    v_xor_b32 v{vA0}, s34, v{vA0}
    v_xor_b32 v{vA0+1}, s34, v{vA0+1}''')
    lstages(3, 1)
    a('s_branch W_done')
    a.label('W_l0'); a.vm = []
    if opt('prg', 9) >= 0:
        a(f'''s_waitcnt lgkmcnt(0)
        s_mul_i32 s35, {sTag}, 0x9e3779b1
        s_add_u32 s35, s35, 0x7f4a7c15
        s_add_u32 s35, s35, {sFast}
        s_lshl_b32 s34, {sXCD}, 7
        s_add_u32 s34, s34, {FP}
        v_mov_b32 v20, 0
        s_mov_b32 s56, {opt('prl', 16)}''')
        a.label('W_pw')
        a(f'''buffer_load_dword v21, v20, {SWS}, s34 offen sc1
        s_waitcnt vmcnt(0)
        v_cmp_ne_u32 vcc, s35, v21
        s_cbranch_vccz W_go
        s_sub_u32 s56, s56, 1
        s_cmp_lg_u32 s56, 0
        s_cbranch_scc1 W_pw''')
        a.label('W_go'); a.vm = []
        stamp(a, 'Lgo')
    srd(a, 8, 30, 884736); srd(a, 12, 36, 294912)
    a(f'''s_lshl_b32 s34, {sIt}, 2
    s_add_u32 s34, s34, {sW}
    s_mul_i32 {sA}, s34, {32*2304}
    s_mul_i32 s35, {sMm}, 1536
    s_add_u32 {sA}, {sA}, s35
    s_mul_i32 {sLA}, {sW}, 24576
    s_cmp_eq_u32 {sMm}, 1
    s_cbranch_scc1 W_l1
    s_lshl_b32 s34, {sJt}, 2
    s_add_u32 s34, s34, {sW}
    s_mul_i32 {sB}, s34, {16*2304}
    s_add_u32 {sB}, {sB}, 768
    s_mul_i32 {sLB}, {sW}, 12288''')
    lstages(4, 0)
    a('s_branch W_done')
    a.label('W_l1'); a.vm = []
    a(f'''s_mul_i32 {sB}, {sW}, {16*768}
    s_lshl_b32 s34, {sJt}, 7
    s_add_u32 {sB}, {sB}, s34
    s_lshl_b32 {sLB}, {sW}, 11''')
    lstages(4, 1)
    a.label('W_done'); a.vm = []; a.lg = []
    a.wait_all()
    tag_ready(a)
    a(f'''s_barrier
    s_cmp_lg_u32 {sRole}, 0
    s_cbranch_scc1 W_done3''')
    a.label('W_done2')
    a(f'''
    s_lshl_b32 s34, s49, 7
    s_mov_b32 s35, {GW}''')
    flag_w0(a, 's34', 's35', 32)
    stamp(a, 'wpub')
    hp_t0(a)
    if opt('tp', 9) == 3:
        a(f'''s_lshl_b32 s34, {sS8}, 2
        s_add_u32 s34, s34, {sW}
        s_mul_i32 s35, s34, 6656
        s_mul_i32 s36, {sXCD}, 212992
        s_add_u32 s35, s35, s36
        s_add_u32 s35, s35, {WS_Q}
        s_mul_i32 s36, s34, 6144
        s_mul_i32 s37, {sXCD}, 196608
        s_add_u32 s36, s36, s37
        s_add_u32 s36, s36, {WS_VP}''')
        for sb, n in (('s35', 7), ('s36', 6)):
            for i in range(n):
                if i == 4: a(f's_add_u32 {sb}, {sb}, 4096')
                a(f'buffer_load_dwordx4 v[64:67], v{vL16}, {SWS}, {sb} offen offset:{(i&3)*1024}')
        a(f's_lshl_b32 s34, {sXCD}, 9\ns_add_u32 s34, s34, {FC1}\nv_lshlrev_b32 v68, 3, v1\nbuffer_load_dword v64, v68, {SWS}, s34 offen')
        a.vm = []
    def wd3():
        a.label('W_done3')
        if opt('tp', 9) == 0: touch2(a)
        a('s_branch P2_l')
    TAIL.append(wd3)
    import v18b
    v18b.phase2(a, globals())
    a.label('K_end')
    a('s_endpgm')
    a.cond = True
    k = 0
    while k < len(TAIL): a.vm = []; a.lg = []; TAIL[k](); k += 1
    return a

KNAME = 'standalone__video_timesformer__vision_kernel'
if __name__ == '__main__':
    out = sys.argv[1]
    a = build()
    head = open('standalone__video_timesformer__vision.s.ref').read().split('; Override launch')[0]
    head += '''; One launch, 256 workgroups (one per CU) of 4 compute + 4 loader/helper waves.
'''
    s = head + '; @launch grid=(256,1,1) block=(512,1,1) lds=151552\n.amdgcn_target "amdgcn-amd-amdhsa--gfx950"\n.text\n'
    s += f'.globl {KNAME}\n.p2align 8\n.type {KNAME},@function\n{KNAME}:\n' + a.text()
    s += f'''; unreachable filler: the code warm-up load at the top reads a fixed 32 KiB behind the entry point
.fill 2048, 4, 0xbf810000
.section .rodata,"a"
.p2align 6
.amdhsa_kernel {KNAME}
  .amdhsa_next_free_vgpr 256
  .amdhsa_next_free_sgpr 102
  .amdhsa_accum_offset 256
  .amdhsa_group_segment_fixed_size 0
  .amdhsa_kernarg_size 64
  .amdhsa_user_sgpr_count 2
  .amdhsa_user_sgpr_kernarg_segment_ptr 1
  .amdhsa_system_sgpr_workgroup_id_x 1
.end_amdhsa_kernel
'''
    open(out, 'w').write(s)
    if PROFILE: open(out + '.stamps', 'w').write(repr(St.names))
    print('instructions', sum(1 for i in a.ins if not i.label), 'pad states', a.pads)
```

```python
import sys, math, struct
sys.path.insert(0, 'gen')
from asm import Asm
def opt(name, default):
    for x in sys.argv:
        if x.startswith(f'--{name}='): return int(x.split('=')[1])
    return default
HP = [x[5:] for x in sys.argv if x.startswith('--hp=')]
PROFILE = '--prof' in sys.argv or bool(HP)
SKIP = []
for x in sys.argv:
    if x.startswith('--skip='): SKIP = x[7:].split(',')
WS_W2 = 0x000000
WS_S  = 0x180000
WS_X1 = 0x240000
WS_W  = 0x3E0000
WS_Q  = 0x480000
WS_VP = 0x620000
WS_ST = 0xF00000
WS_FS = 0xF70000
FS1, FS2 = 0x7A0000, 0x7A2000
FC1, FC2 = 0x7A4000, 0x7A5000
GW2, GW, GX, WE, FP = 0x7A8000, 0x7AA000, 0x7AC000, 0x7B4000, 0x7A6000
WS_PROF = 0x7C0000
SLOW = 0x800000
WS_SIZE = 0x1000000
LIM_FAST = opt('lim', 24)
LIM_SLOW = 1 << 20
SCALE2 = 384 ** -0.5 * math.log2(math.e)
def fbits(x): return '0x%08x' % struct.unpack('<I', struct.pack('<f', x))[0]
def vr(b, n): return f'v[{b}:{b+n-1}]' if n > 1 else f'v{b}'
SX, SWQ, SWO, SWS, SOUT = 's[4:7]', 's[8:11]', 's[12:15]', 's[16:19]', 's[24:27]'
WT = 'sc0 sc1' if opt('wt', 1) == 2 else 'sc1'
def srd(a, base, ptr, size):
    a(f's_mov_b32 s{base}, s{ptr}\ns_mov_b32 s{base+1}, s{ptr+1}\ns_mov_b32 s{base+2}, {size}\ns_mov_b32 s{base+3}, 0x20000')
STAMP_REGS = [70, 72, 74, 76, 78, 80, 82, 84, 86, 88, 90, 92, 94, 96, 98, 100]
class St:
    names = {'C': [], 'L': []}
def stamp(a, name):
    if not PROFILE or name in SKIP or (HP and name not in ('start', HP[0])): return
    lst = St.names['L' if name.startswith('L') else 'C']
    if name not in lst: lst.append(name)
    k = lst.index(name)
    a(f's_memrealtime s[{STAMP_REGS[k]}:{STAMP_REGS[k]+1}]')
def hp_end(a, role):
    name = HP[0]
    lst = St.names[role]
    src = f's{STAMP_REGS[lst.index(name)]}' if name in lst else 's70'
    L1, L2 = a.newlabel('hp'), a.newlabel('hp')
    a(f's_waitcnt vmcnt(0) lgkmcnt(0)\nv_mov_b32 v2, {WS_PROF + 0x30000}')
    a.label(L1)
    a(f'''buffer_load_dwordx2 v[4:5], v2, {SWS}, 0 offen sc0 sc1
    s_waitcnt vmcnt(0)
    v_readfirstlane_b32 s34, v4
    v_readfirstlane_b32 s35, v5
    s_cmp_lg_u32 s35, {sTag}
    s_cbranch_scc1 {L1}
    s_sub_u32 s35, {src}, s34
    s_max_i32 s35, s35, 0
    s_mul_i32 s35, s35, 4
    s_add_u32 s35, s35, 4000''')
    a.label(L2)
    a(f'''s_memrealtime s[36:37]
    s_waitcnt lgkmcnt(0)
    s_sub_u32 s36, s36, s34
    s_cmp_lt_i32 s36, s35
    s_cbranch_scc1 {L2}''')
def hp_t0(a):
    if not HP: return
    L = a.newlabel('hq')
    a(f's_or_b32 s34, s2, {sW}\ns_or_b32 s34, s34, {sRole}\ns_cmp_lg_u32 s34, 0\ns_cbranch_scc1 {L}')
    a(f'v_mov_b32 v2, {WS_PROF + 0x30000}\nv_mov_b32 v4, s70\nv_mov_b32 v5, {sTag}\nbuffer_store_dwordx2 v[4:5], v2, {SWS}, 0 offen sc0 sc1')
    a.vm.pop()
    a.label(L)
def stamp_flush(a, role='C'):
    if HP: hp_end(a, role); return
    if not PROFILE: return
    a('s_waitcnt lgkmcnt(0)')
    for k in range(16): a(f'v_mov_b32 v{100+k}, s{STAMP_REGS[k]}')
    a(f'''v_lshrrev_b32 v8, 6, v0
    s_lshl_b32 s34, s2, 3
    v_add_u32 v8, s34, v8
    v_lshlrev_b32 v8, 6, v8
    v_add_u32 v8, {WS_PROF}, v8''')
    for k in range(4): a(f'buffer_store_dwordx4 v[{100+4*k}:{103+4*k}], v8, {SWS}, 0 offen offset:{16*k}')

sXCD, sW, sI, sRole = 's40', 's41', 's42', 's43'
sTag, sFast, sDelta = 's44', 's45', 's46'
sM1K = 's47'
TAIL = []

def lanes(a, n):
    a(f's_mov_b32 exec_lo, {hex((1 << min(n, 32)) - 1)}\ns_mov_b32 exec_hi, {hex((1 << max(n-32, 0)) - 1)}')
def gpoll(a, n, vA, sBase, vT):
    Lf, Lr, Ld = a.newlabel('gp'), a.newlabel('gr'), a.newlabel('gd')
    lanes(a, n)
    a(f's_mov_b32 s35, {LIM_SLOW}')
    a.label(Lf)
    a(f'buffer_load_dword v{vT}, v{vA}, {SWS}, {sBase} offen sc1')
    a.wait_all(lg=False)
    a(f'v_cmp_ne_u32 vcc, {sTag}, v{vT}\ns_cbranch_vccnz {Lr}')
    a.label(Ld)
    a('s_mov_b64 exec, -1')
    def tail():
        a.label(Lr)
        if opt('gsl', 0): a(f's_sleep {opt("gsl", 0)}')
        a(f's_sub_u32 s35, s35, 1\ns_cmp_lg_u32 s35, 0\ns_cbranch_scc1 {Lf}\ns_branch {Ld}')
    TAIL.append(tail)
def lsync(a, n, wide, sF1, sF2, sOwn, republish, vT, delta=SLOW):
    Lf, Lr, Ld, Ls = a.newlabel('lp'), a.newlabel('lr'), a.newlabel('ld'), a.newlabel('ls')
    vA, vD, vE = vT, vT + 2, vT + 6
    w = 4 if wide else 1
    ld = 'buffer_load_dwordx4' if wide else 'buffer_load_dword'
    def cmp(v, s):
        if not wide: a(f'v_cmp_ne_u32 vcc, {s}, v{v}'); return
        for k in range(4): a(f'v_xor_b32 v{v+k}, {s}, v{v+k}')
        a(f'v_or_b32 v{v}, v{v}, v{v+1}\nv_or3_b32 v{v}, v{v}, v{v+2}, v{v+3}\nv_cmp_ne_u32 vcc, 0, v{v}')
    lanes(a, n)
    a(f'v_lshlrev_b32 v{vA}, {4 if wide else 2}, v1\ns_mov_b32 {sDelta}, 0\ns_mov_b32 s35, {LIM_FAST}')
    a.label(Lf)
    a(f'{ld} {vr(vD, w)}, v{vA}, {SWS}, {sF1} offen sc1')
    a.wait_all(lg=False)
    cmp(vD, sFast)
    a(f's_cbranch_vccnz {Lr}')
    a.label(Ld)
    a('s_mov_b64 exec, -1')
    def tail():
        a.label(Lr)
        a(f's_sub_u32 s35, s35, 1\ns_cmp_lg_u32 s35, 0\ns_cbranch_scc1 {Lf}')
        if republish:
            a('s_mov_b64 exec, -1')
            republish()
            a.wait_all(lg=False)
            a(f'''s_mov_b64 exec, 1
            v_mov_b32 v{vD}, {sOwn}
            v_mov_b32 v{vD+1}, {sTag}
            buffer_store_dword v{vD+1}, v{vD}, {SWS}, {sF2} offen sc0 sc1''')
            lanes(a, n)
        a(f's_mov_b32 s35, {LIM_SLOW}')
        a.label(Ls)
        a(f'{ld} {vr(vD, w)}, v{vA}, {SWS}, {sF1} offen sc1\n{ld} {vr(vE, w)}, v{vA}, {SWS}, {sF2} offen sc0 sc1')
        a.wait_all(lg=False)
        cmp(vD, sFast)
        a(f's_cbranch_vccz {Ld}')
        cmp(vE, sTag)
        a(f's_mov_b32 {sDelta}, {delta}\ns_cbranch_vccz {Ld}\ns_mov_b32 {sDelta}, 0\ns_sub_u32 s35, s35, 1\ns_cmp_lg_u32 s35, 0\ns_cbranch_scc1 {Ls}\ns_branch {Ld}')
    TAIL.append(tail)
def flag(a, sOff, sBase, sVal, vT, fl):
    a(f'''s_mov_b64 exec, 1
    v_mov_b32 v{vT}, {sOff}
    v_mov_b32 v{vT+1}, {sVal}
    buffer_store_dword v{vT+1}, v{vT}, {SWS}, {sBase} offen {fl}
    s_mov_b64 exec, -1''')
def gflag(a, sOff, sBase, vT):
    a(f'''s_mov_b64 exec, 15
    v_lshl_add_u32 v{vT}, v1, 4, {sOff}
    v_mov_b32 v{vT+2}, {sTag}
    v_mov_b32 v{vT+3}, {sTag}
    v_mov_b32 v{vT+4}, {sTag}
    v_mov_b32 v{vT+5}, {sTag}
    buffer_store_dwordx4 {vr(vT+2,4)}, v{vT}, {SWS}, {sBase} offen sc0 sc1
    s_mov_b64 exec, -1''')
def flag_w0(a, sOff, sBase, vT):
    L = a.newlabel('f0')
    a(f's_cmp_lg_u32 {sW}, 0\ns_cbranch_scc1 {L}')
    a.cond = True; gflag(a, sOff, sBase, vT); a.vm.pop(); a.cond = False
    a.label(L)
def tag_ready(a):
    a(f'''s_mul_i32 {sTag}, {sTag}, 0x9e3779b1
    s_add_u32 {sTag}, {sTag}, 0x7f4a7c15
    s_add_u32 {sFast}, {sFast}, {sTag}''')

LW34 = 102400
LSX = 147456
def wpoll(a):
    a(f'v_lshlrev_b32 v7, 7, v1\ns_mov_b32 s67, {GW}')
    gpoll(a, 64, 7, 's67', 33)
    stamp(a, 'Lwf')
def wcopy(a):
    a(f's_and_b32 s68, {sI}, 15\ns_mul_i32 s68, s68, 39936\ns_mul_i32 s34, {sW}, 10240\ns_add_u32 s68, s68, s34\ns_add_u32 s68, s68, {WS_W}\ns_add_u32 s34, s34, {LW34}')
    for i in range(10):
        if i % 4 == 0: a(f's_add_u32 m0, s34, {i*1024}' + ('\ns_add_u32 s68, s68, 4096' if i else ''))
        a(f'buffer_load_dwordx4 v10, {SWS}, s68 offen offset:{(i&3)*1024} sc1 lds')
def pages(a):
    a(f"""s_mov_b64 exec, 0xffff
    v_lshlrev_b32 v52, 20, v1
    buffer_load_dword v53, v52, {SWS}, 0 offen
    s_mov_b64 exec, 3
    buffer_load_dword v54, v52, {SOUT}, 0 offen
    s_mov_b64 exec, -1""")
def touch2(a):
    Lt = a.newlabel('tc'); Lu = a.newlabel('tc')
    a(f"""s_and_b32 s36, {sI}, 15
    s_lshr_b32 s37, {sI}, 4
    s_cmp_ge_u32 s36, 8
    s_cbranch_scc1 {Lt}
    s_lshl_b32 s34, {sXCD}, 4
    s_lshl_b32 s35, s37, 3
    s_add_u32 s34, s34, s35
    s_lshl_b32 s35, {sW}, 1
    s_add_u32 s34, s34, s35
    s_mul_i32 s34, s34, 13312
    s_mul_i32 s35, s36, 1536
    s_add_u32 s34, s34, s35
    s_add_u32 s34, s34, {WS_Q}
    s_add_u32 s35, s34, 13312""")
    for sb in ('s34', 's35'): a(f'buffer_load_dwordx4 v[64:67], v10, {SWS}, {sb} offen\ns_mov_b32 exec_hi, 0\nbuffer_load_dwordx4 v[64:67], v10, {SWS}, {sb} offen offset:1024\ns_mov_b32 exec_hi, -1')
    a(f's_branch {Lu}'); a.label(Lt)
    a(f"""s_lshl_b32 s34, {sW}, 1
    s_add_u32 s34, s34, s37
    s_lshl_b32 s35, {sXCD}, 3
    s_add_u32 s34, s34, s35
    s_mul_i32 s34, s34, 24576
    s_mul_i32 s35, s36, 3072
    s_add_u32 s34, s34, s35
    s_add_u32 s34, s34, {WS_VP - 8*3072}""")
    for u in range(3): a(f'buffer_load_dwordx4 v[64:67], v10, {SWS}, s34 offen offset:{u*1024}')
    a.label(Lu)
    a(f"""s_lshr_b32 s34, {sI}, 1
    s_lshl_b32 s35, {sXCD}, 4
    s_add_u32 s34, s34, s35
    s_mul_i32 s34, s34, 13312
    s_add_u32 s34, s34, {WS_Q + 12288}
    s_lshl_b32 s35, {sW}, 8
    v_lshl_add_u32 v68, v1, 2, s35
    buffer_load_dword v64, v68, {SWS}, s34 offen
    s_lshl_b32 s34, {sXCD}, 9
    s_add_u32 s34, s34, {FC1}
    v_lshlrev_b32 v68, 3, v1
    buffer_load_dword v64, v68, {SWS}, s34 offen""")
    a.vm = []

def build():
    a = Asm()
    def emit(x):
        if isinstance(x, tuple): a(x[0], tag=x[1])
        else: a(x)
    a(f'''s_cmp_ge_u32 s2, 256
    s_cbranch_scc1 K_end
    s_load_dwordx4 s[20:23], s[0:1], 0
    s_load_dwordx4 s[28:31], s[0:1], 16
    s_load_dwordx4 s[36:39], s[0:1], 32
    s_load_dwordx2 s[32:33], s[0:1], 56
    v_and_b32 v1, 63, v0
    v_lshrrev_b32 v2, 6, v0
    s_and_b32 {sXCD}, s2, 7
    v_readfirstlane_b32 {sW}, v2
    s_lshr_b32 {sI}, s2, 3''')
    stamp(a, 'start')
    if PROFILE and not HP: St.names['L'].append('Lstart')
    if HP:
        St.names['L'].append('Lstart')
        a('s_waitcnt lgkmcnt(0)')
        for r in STAMP_REGS[1:]: a(f's_mov_b32 s{r}, s70')
    a(f'''s_lshr_b32 {sRole}, {sW}, 2
    s_and_b32 {sW}, {sW}, 3
    v_lshrrev_b32 v2, 3, v1
    v_and_b32 v3, 7, v1
    v_lshlrev_b32 v10, 4, v1
    s_cmp_lt_u32 {sI}, 8
    {"s_cbranch_scc0 A_main" if opt("wfirst", 1) else "s_cbranch_scc1 K_pre"}''')
    markP = len(a.ins)
    a.label('A_main')
    def late_common(code):
        a(f'''s_lshl_b32 {sM1K}, {sW}, 10
        s_getreg_b32 {sFast}, hwreg(HW_REG_XCC_ID)
        s_and_b32 {sFast}, {sFast}, 15
        s_add_u32 {sFast}, {sFast}, 1''')
        if code:
            L = a.newlabel('pc')
            a('s_getpc_b64 s[48:49]')
            a.label(L)
            a(f'''s_sub_u32 s48, s48, {L}-{KNAME}
            s_subb_u32 s49, s49, 0
            s_lshl_b32 s34, {sI}, 2
            s_add_u32 s34, s34, {sW}
            s_and_b32 s34, s34, 31
            s_lshl_b32 s34, s34, 10
            v_lshl_add_u32 v9, v1, 4, s34
            global_load_dwordx4 v[252:255], v9, s[48:49]''')
    PRIO = opt('prio', 1)
    T8, G8, vL16 = 2, 3, 10
    sG, sJ, sP, sHF, sX, sM = 's50', 's51', 's52', 's53', 's54', 's55'
    sR = ['s56', 's57', 's58', 's59', 's60', 's61']
    ROT = opt('rot', 7)
    a(f'''s_sub_u32 {sJ}, {sI}, 8
    s_mul_i32 s34, {sJ}, 43
    s_lshr_b32 s34, s34, 8
    s_mul_i32 s35, s34, 6
    s_sub_u32 {sJ}, {sJ}, s35
    s_lshl_b32 {sG}, {sXCD}, 2
    s_add_u32 {sG}, {sG}, s34
    s_lshl_b32 {sM}, {sW}, 11''')
    def rot_r(dst):
        if ROT == 4: a(f's_mul_i32 {dst}, {sXCD}, 3\ns_lshr_b32 {dst}, {dst}, 2')
        elif ROT == 5: a(f's_add_u32 {dst}, {sXCD}, 4\ns_and_b32 {dst}, {dst}, 7\ns_mul_i32 {dst}, {dst}, 3\ns_lshr_b32 {dst}, {dst}, 2')
        elif ROT == 6: a(f's_and_b32 {dst}, {sG}, 1\ns_mul_i32 {dst}, {dst}, 4\ns_add_u32 {dst}, {dst}, {sXCD}\ns_and_b32 {dst}, {dst}, 7\ns_mul_i32 {dst}, {dst}, 3\ns_lshr_b32 {dst}, {dst}, 2')
        elif ROT == 7: a(f's_mul_i32 {dst}, {sXCD}, 3\ns_lshr_b32 {dst}, {dst}, 2\ns_add_u32 {dst}, {dst}, {sJ}\ns_cmp_ge_u32 {dst}, 6\ns_cselect_b32 s34, 6, 0\ns_sub_u32 {dst}, {dst}, s34')
        elif ROT == 8: a(f's_and_b32 {dst}, {sG}, 3\ns_add_u32 {dst}, {dst}, {sXCD}\ns_add_u32 {dst}, {dst}, {sJ}\ns_mul_i32 s34, {dst}, 43\ns_lshr_b32 s34, s34, 8\ns_mul_i32 s34, s34, 6\ns_sub_u32 {dst}, {dst}, s34')
    if ROT: rot_r('s3')
    a(f's_cmp_eq_u32 {sRole}, 0\ns_cbranch_scc1 A_c')
    markC0 = len(a.ins)
    a.label('A_c')
    if PRIO == 1: a('s_setprio 1')
    late_common(True)
    a(f's_lshr_b32 {sP}, {sW}, 1\ns_and_b32 {sHF}, {sW}, 1')
    XS = lambda c: c*8192
    WQ0 = 49152
    W2L = 49152
    vXF, vAW, vSst, vX1, vST, vRes, vBP, vBS, vW2, vW2b = 12, 16, 18, 19, 20, 21, 22, 23, 24, 25
    XF, WF, ACC, CS, MA, SEL, CA, CB = 160, 32, 64, 96, 104, 108, 112, 120
    sSst, sSld, sX1, sST, sFS1, sFS2, sOwn, sGX = 's56', 's57', 's58', 's59', 's60', 's61', 's62', 's63'
    a(f'''v_and_b32 v4, 31, v1
    v_lshrrev_b32 v5, 5, v1
    v_bfe_u32 v6, v1, 1, 3
    v_xor_b32 v6, v6, v5
    v_lshlrev_b32 v4, 7, v4
    v_lshl_add_u32 v4, v6, 4, v4
    s_lshl_b32 s35, {sP}, 12
    v_add_u32 v{vXF}, s35, v4
    v_xor_b32 v{vXF+1}, 32, v{vXF}
    v_xor_b32 v{vXF+2}, 64, v{vXF}
    v_xor_b32 v{vXF+3}, 96, v{vXF}
    v_bfe_u32 v6, v1, 2, 2
    v_lshl_add_u32 v4, v5, 3, v6
    v_lshlrev_b32 v4, 7, v4
    v_lshrrev_b32 v7, 1, v6
    v_xor_b32 v7, {sHF}, v7
    v_lshl_add_u32 v4, v7, 6, v4
    v_bfe_u32 v7, v1, 4, 1
    v_lshl_add_u32 v4, v7, 5, v4
    v_and_b32 v8, 1, v1
    v_lshl_add_u32 v4, v8, 4, v4
    v_bfe_u32 v8, v1, 1, 1
    v_lshl_add_u32 v4, v8, 3, v4
    v_add_u32 v{vAW}, {WQ0}, v4
    v_add_u32 v{vAW+1}, {WQ0 + 65536}, v4
    v_bfe_u32 v8, v1, 2, 1
    v_cmp_eq_u32 vcc, v8, v7
    v_mov_b32 v7, 0x3f803f80
    s_mov_b32 s34, {WE}
    s_waitcnt lgkmcnt(0)
    s_load_dword {sTag}, s[32:33], s34''')
    for k in range(4): a(f'v_cndmask_b32 v{SEL+k}, 0, v7, vcc')
    srd(a, 16, 32, WS_SIZE); srd(a, 24, 38, 1572864)
    a(f'''v_lshlrev_b32 v{vSst}, 9, v5
    v_lshl_add_u32 v{vSst}, v{G8}, 6, v{vSst}
    v_bfe_u32 v6, v1, 3, 2
    v_lshl_add_u32 v{vSst}, v6, 4, v{vSst}
    s_mul_i32 s34, {sG}, 24576
    s_lshl_b32 s35, {sP}, 10
    s_add_u32 s34, s34, s35
    s_add_u32 {sSld}, s34, {WS_S}
    s_lshl_b32 s35, {sJ}, 1
    s_add_u32 s35, s35, {sHF}
    s_lshl_b32 {sOwn}, s35, 2
    s_lshl_b32 s3{6}, s35, 11
    s_add_u32 {sSst}, {sSld}, s36
    s_lshl_b32 s34, {sG}, 1
    s_add_u32 s34, s34, {sP}
    s_lshl_b32 s34, s34, 7
    s_add_u32 {sFS1}, s34, {FS1}
    s_add_u32 {sFS2}, s34, {FS2}''')
    a(f'''v_bfe_u32 v6, v1, 2, 3
    v_and_b32 v7, 3, v1
    s_mov_b32 s34, 196608
    v_mul_lo_u32 v{vX1}, v6, s34
    v_lshl_add_u32 v{vX1}, v5, 8, v{vX1}
    v_lshl_add_u32 v{vX1}, v7, 4, v{vX1}
    v_mul_u32_u24 v{vST}, 49152, v6
    v_lshl_add_u32 v{vST}, v7, 4, v{vST}
    v_lshl_add_u32 v8, v7, 3, v6
    v_lshlrev_b32 v{vBP}, 2, v8
    v_lshlrev_b32 v{vBS}, 5, v7
    v_lshl_add_u32 v{vBS}, v5, 4, v{vBS}
    v_bfe_u32 v4, v8, 1, 3
    s_lshl_b32 s34, {sHF}, 2
    v_xor_b32 v4, s34, v4
    v_xor_b32 v4, v4, v5
    v_lshlrev_b32 v4, 4, v4
    v_lshl_add_u32 v4, v8, 7, v4''')
    if ROT: a(f's_add_u32 s34, {sJ}, 6\ns_sub_u32 s34, s34, s3\ns_cmp_ge_u32 s34, 6\ns_cselect_b32 s36, 6, 0\ns_sub_u32 s34, s34, s36\ns_lshl_b32 s34, s34, 13')
    else: a(f's_lshl_b32 s34, {sJ}, 13')
    a(f'''s_lshl_b32 s36, {sP}, 12
    s_add_u32 s34, s34, s36
    v_add_u32 v{vRes}, s34, v4
    s_lshl_b32 s34, {sHF}, 10
    s_add_u32 s34, s34, {W2L}
    v_add_u32 v{vW2}, s34, v{vL16}
    v_and_b32 v4, 31, v1
    v_lshlrev_b32 v4, 2, v4
    s_lshl_b32 s34, {sHF}, 7
    s_add_u32 s34, s34, {W2L + 49152}
    v_add_u32 v4, s34, v4
    v_lshl_add_u32 v{vW2b}, v5, 10, v4
    v_add_u32 v{vW2b+1}, 2048, v4
    s_lshr_b32 s34, {sG}, 1
    s_mul_i32 s34, s34, 12288
    s_lshl_b32 s36, s35, 10
    s_add_u32 s34, s34, s36
    s_and_b32 s36, {sG}, 1
    s_lshl_b32 s36, s36, 7
    s_add_u32 s34, s34, s36
    s_lshl_b32 s36, {sP}, 6
    s_add_u32 s34, s34, s36
    s_add_u32 {sX1}, s34, {WS_X1}
    s_lshl_b32 s34, s35, 12
    s_add_u32 s34, s34, s36
    s_lshl_b32 s36, {sG}, 7
    s_add_u32 s34, s34, s36
    s_add_u32 {sST}, s34, {WS_ST}
    s_mul_i32 s34, {sG}, 6
    s_add_u32 s34, s34, {sJ}
    s_lshl_b32 {sGX}, s34, 7
    s_mov_b32 s38, {fbits(-1/384)}
    s_mov_b32 s36, 0xffff0000
    s_mov_b32 s64, -1
    s_mov_b32 s65, 0
    s_mov_b32 s66, 0xff00ff00
    s_mov_b32 s67, 0xff00ff00
    s_mov_b32 s68, 0xffff0000
    s_mov_b32 s69, 0xffff0000''')
    for r in range(CA, CA + 8):
        if (r - CA) % 4: a(f'v_mov_b32 v{r}, 0')
    a('s_waitcnt lgkmcnt(0)')
    tag_ready(a)
    a('s_barrier')
    stamp(a, 'mm0')
    def rd(ks):
        c, k4 = ks >> 2, ks & 3
        a(f'ds_read_b128 {vr(XF+4*ks,4)}, v{vXF+k4} offset:{XS(c)}', tag=f'f{ks}')
        return [(c, k4, P) for P in range(2)]
    def trd(ks, P):
        c, k4 = ks >> 2, ks & 3
        off = c*16384 + P*8192 + k4*2048
        base = vAW + (off >> 16); off &= 0xffff
        d = WF + (ks % 3)*8 + P*4
        a(f'ds_read_b64_tr_b16 {vr(d,2)}, v{base} offset:{off}\nds_read_b64_tr_b16 {vr(d+2,2)}, v{base} offset:{off+512}', tag=f'f{ks}')
    def pre(ks, part):
        if part == 0: rd(ks); trd(ks, 0)
        else: trd(ks, 1)
    for ks in range(2): pre(ks, 0); pre(ks, 1)
    def m16(d, b, first): a(f'v_mfma_f32_16x16x32_bf16 {vr(d,4)}, {vr(SEL,4)}, {b}, {"0" if first else vr(d,4)}')
    for ks in range(24):
        bar = (ks & 3) == 3 and ks < 23
        if bar:
            if ks == 15: a.wait_all(lg=False)
            a('s_barrier')
            if ks in (7, 15, 19): stamp(a, f'c{(ks+1)>>2}')
            pre(ks + 1, 0); pre(ks + 1, 1)
        a.wait(lg=f'f{ks}')
        wf = lambda P: vr(WF + (ks % 3)*8 + P*4, 4)
        main = lambda P: a(f'v_mfma_f32_32x32x16_bf16 {vr(ACC+16*P,16)}, {wf(P)}, {vr(XF+4*ks,4)}, {"0" if ks == 0 else vr(ACC+16*P,16)}')
        nx = ks + 2 if (ks & 3) != 2 and ks + 2 < 24 else None
        if ks < 23:
            for P in range(2):
                main(P)
                if nx: pre(nx, P)
                m16(CS + 4*P, wf(P), ks == 0)
            m16(MA, vr(XF+4*ks, 4), ks == 0)
        else:
            m16(MA, vr(XF+4*ks, 4), False)
            for P in range(2): m16(CS + 4*P, wf(P), False)
            main(0)
            main(1)
            a(f'''v_mul_f32 v{MA}, s38, v{MA}
            v_cvt_pk_bf16_f32 v{CA}, v{CS}, v{CS}
            v_cvt_pk_bf16_f32 v{CA+4}, v{CS+4}, v{CS+4}
            v_cvt_pk_bf16_f32 v{MA+1}, v{MA}, v{MA}
            v_and_b32 v{CA}, s36, v{CA}
            v_and_b32 v{CA+4}, s36, v{CA+4}
            v_cndmask_b32 v{CB}, 0, v{MA+1}, s[64:65]
            v_sub_f32 v{CA}, v{CS}, v{CA}
            v_sub_f32 v{CA+4}, v{CS+4}, v{CA+4}
            v_mov_b32 v{CB+1}, v{CB}
            v_cvt_pk_bf16_f32 v{CA}, v{CS}, v{CA}
            v_cvt_pk_bf16_f32 v{CA+4}, v{CS+4}, v{CA+4}
            v_mov_b32 v{CB+2}, v{CB}
            v_mov_b32 v{CB+3}, v{CB}''')
            for P in range(2): a(f'v_mfma_f32_32x32x16_bf16 {vr(ACC+16*P,16)}, {vr(CA+4*P,4)}, {vr(CB,4)}, {vr(ACC+16*P,16)}')
    stamp(a, 'mmend')
    PQ, PK, SC, SS, SQ, CM = 32, 40, 64, 96, 100, 124
    a(f'v_mov_b32 v{SQ}, 0\nv_mov_b32 v{SQ+1}, 0')
    for k in range(4): a(f'v_mov_b32 v{CM+k}, v{MA+1}')
    for P, d in ((0, PQ), (1, PK)):
        for i in range(8): a(f'v_cvt_pk_bf16_f32 v{d+i}, v{ACC+16*P+2*i}, v{ACC+16*P+2*i+1}')
    a(f'v_mfma_f32_32x32x16_bf16 {vr(SC,16)}, {vr(PK,4)}, {vr(PQ,4)}, 0')
    a(f'v_mfma_f32_32x32x16_bf16 {vr(SC,16)}, {vr(PK+4,4)}, {vr(PQ+4,4)}, {vr(SC,16)}')
    RAW = 48
    a(f'v_xor_b32 v4, 32, v{vRes}\nds_read_b128 {vr(RAW,4)}, v{vRes}\nds_read_b128 {vr(RAW+4,4)}, v4', tag='raw')
    for e in range(4): a(f'v_cndmask_b32 v{SC+e}, v{SC+e}, v{SC+4+e}, s[66:67]\nv_cndmask_b32 v{SC+8+e}, v{SC+8+e}, v{SC+12+e}, s[66:67]')
    for e in range(4): a(f'v_cndmask_b32 v{SS+e}, v{SC+e}, v{SC+8+e}, s[68:69]')
    a(f'buffer_store_dwordx4 {vr(SS,4)}, v{vSst}, {SWS}, {sSst} offen {WT if opt("swt", 0) else ""}')
    stamp(a, 'stored')
    ND0 = opt('nd0', 72)
    for i in range(ND0): a(f'v_dot2c_f32_bf16 v{SQ+(i&1)}, v{XF+i}, v{XF+i}')
    a.wait_all(lg=False)
    flag(a, sOwn, sFS1, sFast, 4, '')
    stamp(a, 'flag')
    for i in range(ND0, 96): a(f'v_dot2c_f32_bf16 v{SQ+(i&1)}, v{XF+i}, v{XF+i}')
    RR, RES = 56, 80
    a(f'''s_mov_b32 s37, {fbits(1e-5)}
    v_mul_f32 v{SQ+2}, v{MA}, v{MA}
    v_add_u32 v5, 4, v{vBS}
    v_add_f32 v{SQ}, v{SQ}, v{SQ+1}
    v_mov_b32 v{SQ+1}, v{SQ}
    v_add_u32 v6, 8, v{vBS}
    v_add_u32 v7, 12, v{vBS}
    v_permlane32_swap_b32 v{SQ}, v{SQ+1}
    v_add_f32 v{SQ}, v{SQ}, v{SQ+1}
    v_fma_f32 v{SQ}, -v{SQ}, s38, -v{SQ+2}
    v_max_f32 v{SQ}, 0, v{SQ}
    v_add_f32 v{SQ}, s37, v{SQ}
    v_rsq_f32 v{SQ}, v{SQ}''')
    a(f'ds_bpermute_b32 v{RR+4}, v{vBP}, v{SQ}\nds_bpermute_b32 v{RR}, v{vBS}, v{SQ}', tag='bp')
    for e in range(1, 4): a(f'ds_bpermute_b32 v{RR+e}, v{4+e}, v{SQ}', tag='bp')
    a.wait(lg='raw')
    for d in range(8): a(f'v_lshlrev_b32 v{RES+2*d}, 16, v{RAW+d}\nv_and_b32 v{RES+2*d+1}, s36, v{RAW+d}')
    a.wait(lg='bp')
    a(f'v_mul_f32 v{RR+4}, {fbits(SCALE2)}, v{RR+4}')
    def repubA():
        a(f's_add_u32 s34, {sSst}, {SLOW}\nbuffer_store_dwordx4 {vr(SS,4)}, v{vSst}, {SWS}, s34 offen sc0 sc1')
    lsync(a, 12, False, sFS1, sFS2, sOwn, (lambda: None) if opt('swt', 0) else repubA, 32, 0 if opt('swt', 0) else SLOW)
    stamp(a, 'synced')
    SP, Y, WR = 112, 64, 32
    SPR = [128, 132, 136, 140, 144, 148, 152, 156, 112, 116, 96, 100]
    S0 = SPR[0]; T0 = SPR[1]
    sm = []
    def w2rd(ks):
        if ks < 24: a(f'ds_read_b128 {vr(WR+4*(ks%6),4)}, v{vW2} offset:{ks*2048}', tag=f'y{ks}')
        else:
            for k in range(2): a(f'ds_read2st64_b32 {vr(WR+4*(ks%6)+2*k,2)}, v{vW2b+ks-24} offset0:{2*k} offset1:{2*k+1}', tag=f'y{ks}')
    YH = opt('yh', 8)
    def ystep(ks, lim=26):
        a.wait(lg=f'y{ks}')
        xa = vr(XF+4*ks, 4) if ks < 24 else vr(CM if ks == 24 else CB, 4)
        a(f'v_mfma_f32_32x32x16_bf16 {vr(Y,16)}, {xa}, {vr(WR+4*(ks%6),4)}, {"0" if ks == 0 else vr(Y,16)}')
        if ks + 5 < lim: w2rd(ks + 5)
    a(f's_add_u32 {sSld}, {sSld}, {sDelta}\ns_mul_i32 s34, {sHF}, 12288\ns_add_u32 {sSld}, {sSld}, s34')
    for i in range(6):
        if i and i % 2 == 0: a(f's_add_u32 {sSld}, {sSld}, 4096')
        a(f'buffer_load_dwordx4 {vr(SPR[i],4)}, v{vL16}, {SWS}, {sSld} offen offset:{(i&1)*2048} sc1', tag=f's{i}')
    a(f's_add_u32 s34, {sM1K}, {LSX}\nv_add_u32 v4, s34, v{vL16}\nv_xor_b32 v5, 1024, v4')
    for i in range(1, 6):
        a.wait(vm=f's{i}')
        for d in (0, 2): a(f'v_pk_add_f32 {vr(S0+d,2)}, {vr(S0+d,2)}, {vr(SPR[i]+d,2)}')
    a(f'ds_write_b128 v4, {vr(S0,4)}\ns_waitcnt lgkmcnt(0)'); a.lg = []
    stamp(a, 'ssum')
    a('s_barrier')
    stamp(a, 'w2h')
    a(f'ds_read_b128 {vr(T0,4)}, v5', tag='sx')
    sm.append(('l', 'sx'))
    for d in range(4): sm.append(f'v_add_f32 v{S0+d}, v{S0+d}, v{T0+d}')
    for ks in range(5): w2rd(ks)
    for d in range(4): sm.append(f'v_mul_f32 v{S0+d}, v{S0+d}, v{RR+d}')
    sm += [f'v_max_f32 v{T0}, v{S0}, v{S0+1}', f'v_max3_f32 v{T0}, v{T0}, v{S0+2}, v{S0+3}', f'v_mov_b32 v{T0+1}, v{T0}', 's_mov_b32 s64, 0x11111111', 's_mov_b32 s65, 0x11111111',
           f'v_permlane32_swap_b32 v{T0}, v{T0+1}', f'v_max_f32 v{T0}, v{T0}, v{T0+1}', f'v_mul_f32 v{T0}, v{RR+4}, v{T0}']
    for d in range(4): sm.append(f'v_fma_f32 v{S0+d}, v{S0+d}, v{RR+4}, -v{T0}')
    for d in range(4): sm.append(f'v_exp_f32 v{S0+d}, v{S0+d}')
    sm += [f'v_add_f32 v{T0}, v{S0}, v{S0+1}', f'v_add_f32 v{T0+1}, v{S0+2}, v{S0+3}', f'v_add_f32 v{T0}, v{T0}, v{T0+1}', f'v_mov_b32 v{T0+1}, v{T0}']
    sm += [f'v_mul_f32 v{S0+d}, v{S0+d}, v{RR+d}' for d in range(2)] + [f'v_permlane32_swap_b32 v{T0}, v{T0+1}', f'v_add_f32 v{T0}, v{T0}, v{T0+1}', f'v_rcp_f32 v{T0}, v{T0}']
    sm += [f'v_mul_f32 v{S0+d}, v{S0+d}, v{RR+d}' for d in range(2, 4)]
    for d in range(4): sm.append(f'v_mul_f32 v{S0+d}, v{S0+d}, v{T0}')
    PB = 136
    sm += [f'v_cvt_pk_bf16_f32 v{T0}, v{S0}, v{S0+1}', f'v_cvt_pk_bf16_f32 v{T0+1}, v{S0+2}, v{S0+3}']
    for b in range(4):
        sm += [f'v_cndmask_b32 v{PB+2*b}, 0, v{T0}, s[64:65]', f'v_cndmask_b32 v{PB+2*b+1}, 0, v{T0+1}, s[64:65]']
        if b < 3: sm.append('s_lshl_b64 s[64:65], s[64:65], 1')
    S2 = 104
    sm += [f'v_mov_b32 v{S2}, 0', f'v_mov_b32 v{S2+1}, 0', 's_mov_b32 s36, 0x3f803f80']
    def drain(n):
        while n > 0 and sm:
            x = sm.pop(0)
            if isinstance(x, tuple): a.wait(vm=x[1]) if x[0] == 'w' else a.wait(lg=x[1])
            else: a(x); n -= 1
    YS = [YH] + ([opt('yh2', 18)] if opt('yh2', 18) > YH else []) + [26]
    stage = 0
    for ks in range(26):
        if stage + 1 < len(YS) and ks == YS[stage] - opt('ybe', 2):
            a('s_barrier')
            stage += 1
            if stage + 1 == len(YS): stamp(a, 'w2in')
            for k in range(YS[stage-1], ks + 5): w2rd(k)
        ystep(ks, YS[stage])
        if ks >= 1: drain(opt('ydr', 6))
    drain(1000)
    stamp(a, 'ygemm')
    YP, XO = 144, 152
    for i in range(8): a(f'v_cvt_pk_bf16_f32 v{YP+i}, v{Y+2*i}, v{Y+2*i+1}')
    for k in range(2): a(f'v_mfma_f32_32x32x16_bf16 {vr(RES,16)}, {vr(YP+4*k,4)}, {vr(PB+4*k,4)}, {vr(RES,16)}')
    for i in range(8): a(f'v_cvt_pk_bf16_f32 v{XO+i}, v{RES+2*i}, v{RES+2*i+1}')
    a(f'buffer_store_dwordx4 {vr(XO,4)}, v{vX1}, {SWS}, {sX1} offen {WT}')
    a(f'buffer_store_dwordx4 {vr(XO+4,4)}, v{vX1}, {SWS}, {sX1} offen offset:512 {WT}')
    for i in range(8): a(f'v_dot2c_f32_bf16 v{S2}, s36, v{XO+i}\nv_dot2c_f32_bf16 v{S2+1}, v{XO+i}, v{XO+i}')
    a(f'''v_mov_b32 v{S2+2}, v{S2}
    v_mov_b32 v{S2+3}, v{S2+1}
    v_permlane32_swap_b32 v{S2}, v{S2+2}
    v_permlane32_swap_b32 v{S2+1}, v{S2+3}
    v_add_f32 v{S2}, v{S2}, v{S2+2}
    v_add_f32 v{S2+1}, v{S2+1}, v{S2+3}
    s_mov_b32 exec_hi, 0
    buffer_store_dwordx4 {vr(S2,4)}, v{vST}, {SWS}, {sST} offen {WT}
    s_mov_b32 exec_hi, -1
    s_mov_b32 s34, {GX}''')
    stamp(a, 'x1st')
    a.wait_all()
    a('s_barrier')
    flag_w0(a, sGX, 's34', 32)
    stamp(a, 'x1pub')
    a('s_branch P2_c')
    markL0 = len(a.ins)
    a.vm = []; a.lg = []
    stamp(a, 'Larr1')
    if PRIO == 2: a('s_setprio 1')
    vW, vXs, vP = 32, 36, 38
    sRx = ['s62', 's63', 's64', 's65', 's66', 's67']
    a(f'''s_mov_b32 s35, 196608
    v_mul_lo_u32 v{vXs}, v{T8}, s35
    v_lshrrev_b32 v4, 1, v{T8}
    v_xor_b32 v4, v4, v{G8}
    v_lshl_add_u32 v{vXs}, v4, 4, v{vXs}
    v_xor_b32 v{vXs+1}, 64, v{vXs}
    v_add_u32 v{vXs+1}, 768, v{vXs+1}
    s_lshl_b32 s34, {sG}, 3
    s_lshl_b32 s35, {sW}, 1
    s_add_u32 s34, s34, s35
    s_mul_i32 {sX}, s34, 768
    v_lshlrev_b32 v4, 1, v{T8}
    v_and_b32 v4, 4, v4
    v_xor_b32 v4, v4, v{G8}
    v_mul_u32_u24 v{vW}, 2304, v{T8}
    v_lshl_add_u32 v{vW}, v4, 4, v{vW}
    s_mul_i32 s68, {sW}, {16*2304}
    s_lshl_b32 s34, {sJ}, 7
    s_add_u32 s68, s68, s34''')
    for k in range(1, 4): a(f'v_add_u32 v{vW+k}, {(k>>1)*768 + (k&1)*18432}, v{vW}')
    def offs(i):
        if i: a('s_add_u32 s3, s3, 1\ns_cmp_ge_u32 s3, 6\ns_cselect_b32 s3, 0, s3')
        a(f's_lshl_b32 s34, s3, 7\ns_add_u32 {sRx[i]}, s34, {sX}\ns_mul_i32 s34, s3, 147456\ns_add_u32 {sR[i]}, s34, s68')
    offs(0)
    a('s_mov_b32 s6, 1572864\ns_mov_b32 s7, 0x20000\ns_mov_b32 s10, 884736\ns_mov_b32 s11, 0x20000\ns_waitcnt lgkmcnt(0)')
    a('s_mov_b32 s4, s20\ns_mov_b32 s5, s21\ns_mov_b32 s8, s22\ns_mov_b32 s9, s23')
    def wdma(c):
        for th in range(2):
            a(f's_add_u32 m0, {sM}, {XS(c) + th*1024}\nbuffer_load_dwordx4 v{vXs+th}, {SX}, {sRx[c]} offen lds', tag=f'w{c}')
        for k in range(4):
            a(f's_add_u32 m0, {sM}, {WQ0 + c*16384 + (k>>1)*8192 + (k&1)*1024}\nbuffer_load_dwordx4 v{vW+k}, {SWQ}, {sR[c]} offen lds', tag=f'w{c}')
    stamp(a, 'Lgo1')
    NL = opt('nl', 2)
    for c in range(NL):
        wdma(c)
        offs(c + 1)
    a(f's_mov_b32 s34, {WE}\ns_load_dword {sTag}, s[32:33], s34')
    for i in range(NL + 1, 6): offs(i)
    srd(a, 16, 32, WS_SIZE); srd(a, 24, 38, 1572864)
    late_common(False)
    a(f'''v_mul_u32_u24 v{vP}, 768, v1
    s_lshl_b32 s34, {sJ}, 7
    s_add_u32 s68, s34, {GW2}
    s_mul_i32 s69, {sJ}, 53248
    s_add_u32 s69, s69, {WS_W2}
    s_waitcnt lgkmcnt(0)''')
    tag_ready(a)
    def progress():
        L = a.newlabel('pg')
        a(f's_cmp_lg_u32 {sI}, 8\ns_cbranch_scc1 {L}\ns_cmp_lg_u32 {sW}, 0\ns_cbranch_scc1 {L}')
        a.cond = True
        a(f's_lshl_b32 s34, {sXCD}, 7\ns_mov_b32 s35, {FP}'); flag(a, 's34', 's35', sFast, 52, ''); a.vm.pop()
        a.cond = False
        a.label(L)
    if opt('prg', 9) == 9: progress()
    for c in range(6):
        a.wait(vm=f'w{c}')
        if c in (0, 3, 5): stamp(a, f'L{c}')
        a('s_barrier')
        if c + NL < 6: wdma(c + NL)
        if c == opt('prg', 9): progress()
        if c == opt('tlb', 1): pages(a)
        if c == opt('tpos', 3) and opt('touch', 1):
            a(f'''s_mul_i32 s34, {sG}, 24576
            s_lshl_b32 s35, {sJ}, 12
            s_add_u32 s34, s34, s35
            s_add_u32 s34, s34, {WS_S}
            s_add_u32 s34, s34, {sM1K}
            {"" if opt("swt", 0) else f"buffer_load_dwordx4 v[44:47], v{vL16}, {SWS}, s34 offen"}
            s_lshl_b32 s34, {sG}, 8
            s_add_u32 s34, s34, {FS1}
            v_lshlrev_b32 v48, 2, v1
            buffer_load_dword v49, v48, {SWS}, s34 offen
            s_lshl_b32 s34, {sXCD}, 9
            s_add_u32 s34, s34, {FC1}
            v_lshlrev_b32 v48, 3, v1
            buffer_load_dword v50, v48, {SWS}, s34 offen''')
    a(f's_mul_i32 s20, {sW}, 3')
    if ROT: rot_r('s3'); a('s_lshl_b32 s3, s3, 1\ns_add_u32 s3, s3, s20')
    else: a('s_mov_b32 s3, s20')
    a(f's_lshl_b32 s20, s20, 12\ns_add_u32 s20, s20, {W2L}')
    for k in range(3):
        a(f's_cmp_ge_u32 s3, 12\ns_cselect_b32 s34, 12, 0\ns_sub_u32 s3, s3, s34\ns_lshl_b32 s34, s3, 12\ns_add_u32 s{21+k}, s69, s34\ns_add_u32 s3, s3, 1')
    a(f's_add_u32 s69, s69, 49152\ns_add_u32 s69, s69, {sM1K}')
    if opt('tp', 9) == 0: touch2(a)
    if opt('w21', 1):
        a(f's_cmp_lg_u32 {sW}, 0\ns_cbranch_scc1 A_ld2')
        gpoll(a, 4, vP, 's68', 40)
        stamp(a, 'Lw2f')
        a(f's_sub_u32 s69, s69, 49152')
        for gi in range(13):
            if gi == 12: a(f's_add_u32 s68, s69, 49152')
            elif gi == 0: a('s_mov_b32 s68, s21\ns_sub_u32 s3, s21, s69')
            elif gi % 2 == 0: a('s_add_u32 s3, s3, 8192\ns_cmp_ge_u32 s3, 49152\ns_cselect_b32 s3, 0, s3\ns_add_u32 s68, s69, s3')
            else: a('s_add_u32 s68, s68, 4096')
            a(f's_mov_b32 m0, {W2L + gi*4096}')
            for k in range(4 if gi < 12 else 3): a(f'buffer_load_dwordx4 v{vL16}, {SWS}, s68 offen offset:{k*1024} sc1 lds', tag=f'h{gi}')
        if opt('yh', 8): a.wait(vm=f'h{opt("yh", 8)//2 - 1}')
        if opt('yh2', 18) > opt('yh', 8):
            a('s_barrier'); a.wait(vm=f'h{opt("yh2", 18)//2 - 1}'); a('s_branch A_ld3')
            a.label('A_ld2')
            a('s_barrier')
            a.label('A_ld3')
        else: a.label('A_ld2')
        a('s_barrier')
    else:
        gpoll(a, 4, vP, 's68', 40)
        stamp(a, 'Lw2f')
        for k in range(3):
            a(f's_add_u32 m0, s20, {k*4096}')
            for q in range(4): a(f'buffer_load_dwordx4 v{vL16}, {SWS}, s{21+k} offen offset:{q*1024} sc1 lds')
        a(f's_add_u32 m0, {sM1K}, {W2L + 49152}\nbuffer_load_dwordx4 v{vL16}, {SWS}, s69 offen sc1 lds')
    a.wait_all()
    stamp(a, 'Lw2')
    a('s_barrier\ns_barrier\ns_branch P2_l')
    markL1 = len(a.ins)
    a.ins[markC0:markL1] = a.ins[markL0:markL1] + a.ins[markC0:markL0]
    markK = len(a.ins)
    a.label('K_pre'); a.vm = []; a.lg = []
    sS8, sIt, sJt, sA, sB, sMm, sT0, sLA, sLB = 's50', 's51', 's52', 's53', 's54', 's55', 's56', 's57', 's58'
    a(f'''s_mov_b32 {sS8}, {sI}
    s_and_b32 s59, {sXCD}, 1
    s_lshr_b32 s60, {sXCD}, 1
    s_cmp_ge_u32 {sS8}, 3
    s_cbranch_scc1 W_id0
    s_mov_b32 {sMm}, 2
    s_mov_b32 {sIt}, s60
    s_mul_i32 {sJt}, s59, 3
    s_add_u32 {sJt}, {sJt}, {sS8}
    s_cmp_eq_u32 {sRole}, 0
    s_cbranch_scc1 W_id2''')
    markW0 = len(a.ins)
    a.label('W_id2')
    a(f'''s_mul_i32 s49, {sXCD}, 3
    s_add_u32 s49, s49, {sS8}
    s_add_u32 s49, s49, 36
    s_branch W_id1''')
    a.label('W_id0')
    a(f'''s_mul_i32 s35, s60, 9
    s_mul_i32 s61, s59, 5
    s_add_u32 s35, s35, s61
    s_add_u32 s35, s35, {sS8}
    s_sub_u32 s35, s35, 3
    s_mul_i32 s61, s35, 43
    s_lshr_b32 s61, s61, 8
    s_mul_i32 s62, s61, 6
    s_sub_u32 {sJt}, s35, s62
    s_cmp_ge_u32 s61, 3
    s_cselect_b32 {sMm}, 1, 0
    s_mul_i32 s62, {sMm}, 3
    s_sub_u32 {sIt}, s61, s62
    s_add_u32 s62, {sS8}, s59
    s_add_u32 s49, s60, 60
    s_cmp_ge_u32 s62, 8
    s_cselect_b32 {sMm}, 3, {sMm}
    s_cselect_b32 s49, s49, s35''')
    a.label('W_id1')
    a(f's_mov_b32 s58, s49')
    late_common(True)
    a(f'''s_mov_b32 s49, s58
    s_mov_b32 s34, {WE}
    s_waitcnt lgkmcnt(0)
    s_load_dword {sTag}, s[32:33], s34''')
    srd(a, 16, 32, WS_SIZE); srd(a, 24, 38, 1572864)
    a(f'''s_cmp_eq_u32 {sMm}, 3
    s_cbranch_scc1 W_done
    s_cmp_lg_u32 {sRole}, 0
    s_cbranch_scc1 W_ld''')
    BB = 98304
    FA, FB, AC = 32, 48, 128
    vAr, vBr = 14, 18
    a(f'''v_and_b32 v2, 31, v1
    v_lshrrev_b32 v3, 5, v1
    v_and_b32 v4, 19, v2
    v_bfe_u32 v5, v2, 2, 1
    v_lshl_add_u32 v4, v5, 3, v4
    v_bfe_u32 v5, v2, 3, 1
    v_lshl_add_u32 v4, v5, 2, v4
    v_lshrrev_b32 v5, 3, v4
    v_mul_u32_u24 v5, 6144, v5
    v_and_b32 v6, 7, v4
    v_lshl_add_u32 v5, v6, 7, v5
    v_bfe_u32 v6, v4, 1, 3
    v_xor_b32 v6, v6, v3
    v_lshl_add_u32 v11, v6, 4, v5
    v_bfe_u32 v6, v1, 2, 2
    v_lshl_add_u32 v4, v3, 3, v6
    v_lshlrev_b32 v4, 7, v4
    v_lshrrev_b32 v7, 1, v6
    v_lshl_add_u32 v4, v7, 6, v4
    v_bfe_u32 v7, v1, 4, 1
    v_lshl_add_u32 v12, v7, 5, v4
    s_mov_b32 s37, 0x3f803f80''')
    def a_addr(swave):
        a(f's_mul_i32 s34, {swave}, 24576\nv_add_u32 v{vAr}, s34, v11')
        for k in range(1, 4): a(f'v_xor_b32 v{vAr+k}, {32*k}, v{vAr}')
    def stages(nv, breads):
        def rd(jj, k4):
            o = (jj & 1)*48*opt('ppipe', 1)
            a(f'ds_read_b128 {vr(FA+o+4*k4,4)}, v{vAr+k4} offset:{jj*1024}', tag=f'r{k4}')
            for v in range(nv): breads(jj, k4, v, FB + o + (k4*2+v)*4)
        def mm(jj, k4):
            o = (jj & 1)*48*opt('ppipe', 1)
            for v in range(nv):
                cin = '0' if (jj == 0 and k4 == 0) else vr(AC+16*v, 16)
                a(f'v_mfma_f32_32x32x16_bf16 {vr(AC+16*v,16)}, {vr(FA+o+4*k4,4)}, {vr(FB+o+(k4*2+v)*4,4)}, {cin}')
        for jj in range(6):
            a('s_barrier')
            if opt('ppipe', 1) and jj:
                rd(jj, 0); mm(jj - 1, 2); rd(jj, 1); mm(jj - 1, 3); rd(jj, 2); rd(jj, 3)
            else:
                for k4 in range(4): rd(jj, k4)
            last = 4 if (jj == 5 or not opt('ppipe', 1)) else 2
            for k4 in range(last):
                a.wait(lg=f'r{k4}'); mm(jj, k4)
            if last == 2: a.wait(lg='r3')
    def btr(jj, k4, v, d):
        o = jj*8192 + k4*2048
        a(f'ds_read_b64_tr_b16 {vr(d,2)}, v{vBr+v} offset:{o}\nds_read_b64_tr_b16 {vr(d+2,2)}, v{vBr+v} offset:{o+512}', tag=f'r{k4}')
    def brow(jj, k4, v, d): a(f'ds_read_b128 {vr(d,4)}, v{vBr+k4} offset:{v*24576+jj*1024}', tag=f'r{k4}')
    def colsum(v, src, dst):
        a(f'v_mov_b32 v24, 0')
        for i in range(8): a(f'v_dot2c_f32_bf16 v24, s37, v{src+i}')
        a(f'''v_mov_b32 v26, v24
        v_permlane32_swap_b32 v24, v26
        v_add_f32 v26, v26, v24
        v_cvt_pk_bf16_f32 v27, v26, v26
        v_lshlrev_b32 v27, 16, v27
        v_sub_f32 v27, v26, v27
        v_cvt_pk_bf16_f32 v{dst}, v26, v27''')
    def colsum2():
        a('v_mov_b32 v24, 0\nv_mov_b32 v25, 0')
        for i in range(8): a(f'v_dot2c_f32_bf16 v24, s37, v{32+i}\nv_dot2c_f32_bf16 v25, s37, v{40+i}')
        a('''v_mov_b32 v26, v24
        v_mov_b32 v27, v25
        v_permlane32_swap_b32 v24, v26
        v_permlane32_swap_b32 v25, v27
        v_add_f32 v24, v26, v24
        v_add_f32 v25, v27, v25
        v_cvt_pk_bf16_f32 v26, v24, v24
        v_cvt_pk_bf16_f32 v27, v25, v25
        v_lshlrev_b32 v26, 16, v26
        v_lshlrev_b32 v27, 16, v27
        v_sub_f32 v26, v24, v26
        v_sub_f32 v27, v25, v27
        v_cvt_pk_bf16_f32 v28, v24, v26
        v_cvt_pk_bf16_f32 v29, v25, v27''')
    a_addr(sW)
    a(f's_cmp_lg_u32 {sMm}, 2\ns_cbranch_scc1 W_c0')
    a(f'''s_min_u32 s59, {sW}, 2''')
    a_addr('s59')
    a(f'''v_and_b32 v7, 1, v1
    v_lshl_add_u32 v4, v7, 4, v12
    v_bfe_u32 v7, v1, 1, 1
    v_lshl_add_u32 v4, v7, 3, v4
    v_add_u32 v{vBr}, {BB}, v4
    v_xor_b32 v{vBr+1}, 64, v{vBr}
    s_mul_i32 s34, {sIt}, 3
    s_add_u32 s34, s34, s59
    s_mul_i32 s35, {sJt}, 53248
    s_add_u32 s35, s35, {WS_W2}
    s_lshl_b32 s36, s34, 12
    s_add_u32 s61, s35, s36
    s_lshl_b32 s36, s34, 8
    s_add_u32 s35, s35, s36
    s_add_u32 s62, s35, 49152
    v_lshlrev_b32 v30, 2, v1
    s_mul_i32 s63, {sIt}, 6
    s_add_u32 s63, s63, {sJt}
    s_lshl_b32 s63, s63, 7
    s_mov_b32 s64, {GW2}''')
    stages(2, btr)
    stamp(a, 'pst')
    a(f's_cmp_eq_u32 {sW}, 3\ns_cbranch_scc1 W_c4')
    for v in range(2):
        for i in range(8): a(f'v_cvt_pk_bf16_f32 v{32+8*v+i}, v{AC+16*v+2*i}, v{AC+16*v+2*i+1}')
        a(f'buffer_store_dwordx4 {vr(32+8*v,4)}, v{vL16}, {SWS}, s61 offen offset:{v*1024} {WT}\nbuffer_store_dwordx4 {vr(36+8*v,4)}, v{vL16}, {SWS}, s61 offen offset:{2048+v*1024} {WT}')
    colsum2()
    a('s_mov_b32 exec_hi, 0')
    for v in range(2): a(f'buffer_store_dword v{28+v}, v30, {SWS}, s62 offen offset:{v*128} {WT}')
    a('s_mov_b32 exec_hi, -1')
    a.label('W_c4')
    a.wait_all()
    tag_ready(a)
    a('s_barrier')
    flag_w0(a, 's63', 's64', 48)
    stamp(a, 'w2pub')
    a('s_branch W_done2')
    a.label('W_c0'); a.lg = []; a.vm = []
    a(f'''s_mul_i32 s34, {sMm}, 24
    s_lshl_b32 s61, {sJt}, 2
    s_add_u32 s34, s34, s61
    v_bfe_u32 v4, v1, 4, 1
    v_add_u32 v4, s34, v4
    v_and_b32 v7, 15, v1
    v_lshlrev_b32 v7, 4, v7
    s_lshl_b32 s61, {sIt}, 2
    s_add_u32 s61, s61, {sW}
    s_mul_i32 s61, s61, 3072
    s_add_u32 s61, s61, {WS_W}
    s_lshl_b32 s62, {sIt}, 2
    s_add_u32 s62, s62, {sW}
    s_mul_i32 s62, s62, 192
    s_add_u32 s62, s62, {WS_W + 12*3072}''')
    for v in range(2):
        a(f'''v_add_u32 v5, {2*v}, v4
        v_mul_u32_u24 v6, 43, v5
        v_lshrrev_b32 v6, 7, v6
        v_mul_u32_u24 v8, 3, v6
        v_sub_u32 v5, v5, v8
        v_mul_u32_u24 v6, 39936, v6
        v_lshl_add_u32 v{160+v}, v5, 6, v6
        v_lshl_add_u32 v6, v5, 10, v6
        v_add_u32 v6, v6, v7
        v_lshl_add_u32 v{162+v}, v3, 8, v6
        v_lshrrev_b32 v6, 2, v7
        v_add_u32 v{160+v}, v{160+v}, v6''')
    a(f's_cmp_eq_u32 {sMm}, 1\ns_cbranch_scc1 W_c1')
    a(f'''v_lshrrev_b32 v5, 3, v2
    v_mul_u32_u24 v5, 6144, v5
    v_and_b32 v6, 7, v2
    v_lshl_add_u32 v5, v6, 7, v5
    v_bfe_u32 v6, v2, 1, 3
    v_xor_b32 v6, v6, v3
    v_lshl_add_u32 v5, v6, 4, v5
    v_add_u32 v{vBr}, {BB}, v5''')
    for k in range(1, 4): a(f'v_xor_b32 v{vBr+k}, {32*k}, v{vBr}')
    stages(2, brow)
    a('s_branch W_c2')
    a.label('W_c1'); a.lg = []
    a(f'''v_and_b32 v7, 3, v1
    v_lshl_add_u32 v4, v7, 3, v12
    v_add_u32 v{vBr}, {BB}, v4
    v_xor_b32 v{vBr+1}, 64, v{vBr}''')
    stages(2, btr)
    a.label('W_c2')
    stamp(a, 'qst')
    for v in range(2):
        for i in range(8): a(f'v_cvt_pk_bf16_f32 v{32+8*v+i}, v{AC+16*v+2*i}, v{AC+16*v+2*i+1}')
        a(f'buffer_store_dwordx4 {vr(32+8*v,4)}, v{162+v}, {SWS}, s61 offen {WT}')
        a(f'buffer_store_dwordx4 {vr(36+8*v,4)}, v{162+v}, {SWS}, s61 offen offset:512 {WT}')
    colsum2()
    a('s_mov_b32 exec_hi, 0')
    for v in range(2): a(f'buffer_store_dword v{28+v}, v{160+v}, {SWS}, s62 offen {WT}')
    a('s_mov_b32 exec_hi, -1')
    stamp(a, 'qsto')
    a('s_branch W_done')
    vA0, vBo = 12, 14
    def ld_addr():
        a(f'''v_lshrrev_b32 v4, 1, v{T8}
        v_xor_b32 v4, v4, v{G8}
        v_mul_u32_u24 v5, 2304, v{T8}
        v_lshl_add_u32 v{vA0}, v4, 4, v5
        v_xor_b32 v{vA0+1}, 64, v{vA0}
        v_lshlrev_b32 v4, 1, v{T8}
        v_and_b32 v4, 4, v4
        v_xor_b32 v4, v4, v{G8}
        v_mul_u32_u24 v5, 768, v{T8}
        v_lshl_add_u32 v{vBo}, v4, 4, v5''')
    sLn = ['s59', 's60', 's61', 's62', 's63', 's64']; sLb = ['s65', 's66', 's67', 's68', 's69', 's3']
    def lstages(nra, mode, first=None, after=None):
        if opt('prot', 1) and (nra == 3 or opt('protw', 1)): a(f's_mul_i32 s34, {sIt}, 3\ns_lshr_b32 s34, s34, 1\ns_add_u32 s34, s34, {sJt}')
        else: a('s_mov_b32 s34, 0')
        a('s_mov_b32 s48, s34')
        def lo(jj):
            a(f's_cmp_ge_u32 s48, 6\ns_cselect_b32 s35, 6, 0\ns_sub_u32 s48, s48, s35\ns_lshl_b32 s35, s48, 7\ns_add_u32 {sLn[jj]}, {sA}, s35')
            if mode == 1: a(f's_mul_i32 s35, s48, {64*768}')
            a(f's_add_u32 {sLb[jj]}, {sB}, s35\ns_add_u32 s48, s48, 1')
        def issue(jj):
            for r in range(nra):
                a(f'''s_add_u32 {sT0}, {sLn[jj]}, {r*8*2304}
                s_add_u32 m0, {sLA}, {(r*6+jj)*1024}
                buffer_load_dwordx4 v{vA0+(r&1)}, {SWQ}, {sT0} offen lds''', tag=f'p{jj}')
            for r in range(2):
                if mode == 0:
                    a(f'''s_add_u32 {sT0}, {sLb[jj]}, {r*8*2304}
                    s_add_u32 m0, {sLB}, {BB + (r*6+jj)*1024}
                    buffer_load_dwordx4 v{vA0+r}, {SWQ}, {sT0} offen lds''', tag=f'p{jj}')
                else:
                    a(f'''s_add_u32 {sT0}, {sLb[jj]}, {r*8*768}
                    s_add_u32 m0, {sLB}, {BB + jj*8192 + r*1024}
                    buffer_load_dwordx4 v{vBo}, {SWO}, {sT0} offen lds''', tag=f'p{jj}')
        n0 = opt('pn0', 3) if nra == 3 else opt('pn0w', 3)
        lo(0)
        if first: first()
        if nra == 3: stamp(a, 'Lgo2')
        for jj in range(n0): issue(jj); lo(jj + 1)
        for jj in range(n0 + 1, 6): lo(jj)
        if after: after()
        for jj in range(6):
            a.wait(vm=f'p{jj}')
            if jj in (0, 3, 5): stamp(a, f'Lp{jj}' if nra == 3 else f'Lq{jj}')
            a('s_barrier')
            if jj + n0 < 6: issue(jj + n0)
            if jj == opt('ptlb', 9): pages(a)
    markW1 = len(a.ins)
    a.vm = []; a.lg = []
    stamp(a, 'Larr2')
    ld_addr()
    a(f'''s_lshl_b32 s34, {sIt}, 2
    s_add_u32 s34, s34, {sW}
    s_mul_i32 {sA}, s34, {24*2304}
    s_add_u32 {sA}, {sA}, 1536
    s_mul_i32 {sLA}, {sW}, 18432
    s_mul_i32 {sB}, {sW}, {16*768}
    s_lshl_b32 s34, {sJt}, 7
    s_add_u32 {sB}, {sB}, s34
    s_lshl_b32 {sLB}, {sW}, 11
    s_and_b32 s34, {sW}, 1
    s_lshl_b32 s34, s34, 6
    v_xor_b32 v{vA0}, s34, v{vA0}
    v_xor_b32 v{vA0+1}, s34, v{vA0+1}''')
    def w2first():
        a('s_mov_b32 s10, 884736\ns_mov_b32 s11, 0x20000\ns_mov_b32 s14, 294912\ns_mov_b32 s15, 0x20000\ns_waitcnt lgkmcnt(0)')
        a('s_mov_b32 s8, s22\ns_mov_b32 s9, s23\ns_mov_b32 s12, s28\ns_mov_b32 s13, s29')
    def w2after():
        a(f's_mov_b32 s34, {WE}\ns_load_dword {sTag}, s[32:33], s34')
        srd(a, 16, 32, WS_SIZE); srd(a, 24, 38, 1572864)
        late_common(False)
    lstages(3, 1, w2first, w2after)
    a('s_branch W_done')
    markW2 = len(a.ins)
    a.ins[markW0:markW2] = a.ins[markW1:markW2] + a.ins[markW0:markW1]
    if opt('wfirst', 1):
        e = markW0 + (markW2 - markW1)
        a.ins[markP:e] = a.ins[markK:e] + a.ins[markP:markK]
    a.label('W_ld')
    ld_addr()
    a.label('W_l0'); a.vm = []
    if opt('prg', 9) >= 0:
        a(f'''s_waitcnt lgkmcnt(0)
        s_mul_i32 s35, {sTag}, 0x9e3779b1
        s_add_u32 s35, s35, 0x7f4a7c15
        s_add_u32 s35, s35, {sFast}
        s_lshl_b32 s34, {sXCD}, 7
        s_add_u32 s34, s34, {FP}
        v_mov_b32 v20, 0
        s_mov_b32 s56, {opt('prl', 16)}''')
        a.label('W_pw')
        a(f'''buffer_load_dword v21, v20, {SWS}, s34 offen sc1
        s_waitcnt vmcnt(0)
        v_cmp_ne_u32 vcc, s35, v21
        s_cbranch_vccz W_go
        s_sub_u32 s56, s56, 1
        s_cmp_lg_u32 s56, 0
        s_cbranch_scc1 W_pw''')
        a.label('W_go'); a.vm = []
        stamp(a, 'Lgo')
    srd(a, 8, 30, 884736); srd(a, 12, 36, 294912)
    a(f'''s_lshl_b32 s34, {sIt}, 2
    s_add_u32 s34, s34, {sW}
    s_mul_i32 {sA}, s34, {32*2304}
    s_mul_i32 s35, {sMm}, 1536
    s_add_u32 {sA}, {sA}, s35
    s_mul_i32 {sLA}, {sW}, 24576
    s_cmp_eq_u32 {sMm}, 1
    s_cbranch_scc1 W_l1
    s_lshl_b32 s34, {sJt}, 2
    s_add_u32 s34, s34, {sW}
    s_mul_i32 {sB}, s34, {16*2304}
    s_add_u32 {sB}, {sB}, 768
    s_mul_i32 {sLB}, {sW}, 12288''')
    lstages(4, 0)
    a('s_branch W_done')
    a.label('W_l1'); a.vm = []
    a(f'''s_mul_i32 {sB}, {sW}, {16*768}
    s_lshl_b32 s34, {sJt}, 7
    s_add_u32 {sB}, {sB}, s34
    s_lshl_b32 {sLB}, {sW}, 11''')
    lstages(4, 1)
    a.label('W_done'); a.vm = []; a.lg = []
    a.wait_all()
    tag_ready(a)
    a(f'''s_barrier
    s_cmp_lg_u32 {sRole}, 0
    s_cbranch_scc1 W_done3''')
    a.label('W_done2')
    a(f'''
    s_lshl_b32 s34, s49, 7
    s_mov_b32 s35, {GW}''')
    flag_w0(a, 's34', 's35', 32)
    stamp(a, 'wpub')
    hp_t0(a)
    if opt('tp', 9) == 3:
        a(f'''s_lshl_b32 s34, {sS8}, 2
        s_add_u32 s34, s34, {sW}
        s_mul_i32 s35, s34, 6656
        s_mul_i32 s36, {sXCD}, 212992
        s_add_u32 s35, s35, s36
        s_add_u32 s35, s35, {WS_Q}
        s_mul_i32 s36, s34, 6144
        s_mul_i32 s37, {sXCD}, 196608
        s_add_u32 s36, s36, s37
        s_add_u32 s36, s36, {WS_VP}''')
        for sb, n in (('s35', 7), ('s36', 6)):
            for i in range(n):
                if i == 4: a(f's_add_u32 {sb}, {sb}, 4096')
                a(f'buffer_load_dwordx4 v[64:67], v{vL16}, {SWS}, {sb} offen offset:{(i&3)*1024}')
        a(f's_lshl_b32 s34, {sXCD}, 9\ns_add_u32 s34, s34, {FC1}\nv_lshlrev_b32 v68, 3, v1\nbuffer_load_dword v64, v68, {SWS}, s34 offen')
        a.vm = []
    def wd3():
        a.label('W_done3')
        if opt('tp', 9) == 0: touch2(a)
        a('s_branch P2_l')
    TAIL.append(wd3)
    import v21b
    v21b.phase2(a, globals())
    a.label('K_end')
    a('s_endpgm')
    a.cond = True
    k = 0
    while k < len(TAIL): a.vm = []; a.lg = []; TAIL[k](); k += 1
    return a

KNAME = 'standalone__video_timesformer__vision_kernel'
if __name__ == '__main__':
    out = sys.argv[1]
    a = build()
    head = open('standalone__video_timesformer__vision.s.ref').read().split('; Override launch')[0]
    head += '''; One launch, 256 workgroups (one per CU) of 4 compute + 4 loader/helper waves.
'''
    s = head + '; @launch grid=(256,1,1) block=(512,1,1) lds=151552\n.amdgcn_target "amdgcn-amd-amdhsa--gfx950"\n.text\n'
    s += f'.globl {KNAME}\n.p2align 8\n.type {KNAME},@function\n{KNAME}:\n' + a.text()
    s += f'''; unreachable filler: the code warm-up load at the top reads a fixed 32 KiB behind the entry point
.fill 2048, 4, 0xbf810000
.section .rodata,"a"
.p2align 6
.amdhsa_kernel {KNAME}
  .amdhsa_next_free_vgpr 256
  .amdhsa_next_free_sgpr 102
  .amdhsa_accum_offset 256
  .amdhsa_group_segment_fixed_size 0
  .amdhsa_kernarg_size 64
  .amdhsa_user_sgpr_count 2
  .amdhsa_user_sgpr_kernarg_segment_ptr 1
  .amdhsa_system_sgpr_workgroup_id_x 1
.end_amdhsa_kernel
'''
    open(out, 'w').write(s)
    if PROFILE: open(out + '.stamps', 'w').write(repr(St.names))
    print('instructions', sum(1 for i in a.ins if not i.label), 'pad states', a.pads)
```

```python
def phase2(a, G):
    globals().update({k: v for k, v in G.items() if not k.startswith('__')})
    sT = sXCD
    sRQ, sS, sQT, sCH, sT0, sT1 = 's50', 's51', 's52', 's53', 's54', 's55'
    sK, sSt1, sSt2, sQ, sVP, sOut, sF1, sF2, sOwn, sRs, sFS, sTP = 's56', 's57', 's58', 's59', 's60', 's61', 's62', 's63', 's64', 's66', 's65', 's3'
    LW, XB, LT = 0, 81920, 131072
    LQ, LS, LP, LML, LO = 0, 13312, 16384, 24576, 26624
    vL16, vQ12, vTb, vA, vB, vSt = 10, 11, 12, 15, 9, 8
    QF, M_, T_ = 32, 4, 5
    vP, vML, vMLr = 13, 14, 12
    def common():
        a(f'''s_lshr_b32 {sRQ}, {sI}, 3
        s_lshr_b32 {sTP}, {sW}, 1
        s_lshr_b32 {sQT}, {sI}, 1
        s_and_b32 {sCH}, {sI}, 1
        s_mul_i32 {sK}, {sT}, 196608
        s_mul_i32 s35, {sW}, 12288
        s_add_u32 {sK}, {sK}, s35
        s_add_u32 {sK}, {sK}, {WS_X1}
        v_lshrrev_b32 v2, 4, v1
        v_and_b32 v3, 15, v1
        v_bfe_u32 v5, v1, 4, 1''')
    def attn_addr(role):
        a(f'''s_lshl_b32 s34, {sTP}, 10
        s_and_b32 s35, {sW}, 1
        s_lshl_b32 s35, s35, 3
        s_add_u32 s34, s34, s35
        s_add_u32 s34, s34, {LP}
        v_add_u32 v{vP}, s34, v{vL16}
        s_lshl_b32 s34, {sW}, 2
        s_add_u32 s34, s34, {LML + 16*role}
        v_lshl_add_u32 v{vML}, v3, 5, s34
        v_lshlrev_b32 v{vMLr}, 5, v3
        v_add_u32 v{vMLr}, {LML}, v{vMLr}
        v_lshlrev_b32 v{vQ12}, 2, v3
        v_lshl_add_u32 v{vQ12}, v5, 8, v{vQ12}
        v_add_u32 v{vQ12}, {LQ + 12288}, v{vQ12}''')
    def scores(nt, KF, SA, RD, MF, vMa, vRa, vPt, fill, role):
        pre = 'L' if role else ''
        def qrd(ks):
            d = QF + 4*(ks%4)
            if ks < 12: a(f'ds_read_b128 {vr(d,4)}, v{vL16} offset:{LQ + ks*1024}', tag=f'q{ks}')
            else: a(f'ds_read2_b32 {vr(d,2)}, v{vQ12} offset0:0 offset1:16\nds_read2_b32 {vr(d+2,2)}, v{vQ12} offset0:32 offset1:48', tag=f'q{ks}')
        for ks in range(3): qrd(ks)
        for t in range(nt): a(f'ds_read_b32 v{MF+4*t}, v{vMa+t}\nds_read_b128 {vr(RD+4*t,4)}, v{vRa+t}', tag='fs')
        for ks in range(13):
            a.wait(lg=f'q{ks}')
            for t in range(nt):
                kf = vr(KF+(t*12+ks)*4, 4) if ks < 12 else vr(MF+4*t, 4)
                d = vr(SA+4*t, 4)
                a(f'v_mfma_f32_16x16x32_bf16 {d}, {kf}, {vr(QF+4*(ks%4),4)}, {"0" if ks == 0 else d}')
            if ks + 3 < 13: qrd(ks + 3)
            if ks == 3:
                a('s_mov_b32 s36, -1\ns_mov_b32 s37, 0')
                for t in range(nt): a(f'v_cndmask_b32 v{MF+4*t}, 0, v{MF+4*t}, s[36:37]')
            if 4 <= ks < 7:
                for t in range(nt): a(f'v_mov_b32 v{MF+4*t+ks-3}, v{MF+4*t}')
            fill()
        n = 4*nt
        for i in range(n): a(f'v_mul_f32 v{SA+i}, v{SA+i}, v{RD+i}')
        a(f'v_max3_f32 v{M_}, v{SA}, v{SA+1}, v{SA+2}')
        if nt == 1: a(f'v_max_f32 v{M_}, v{M_}, v{SA+3}')
        else:
            a(f'v_max3_f32 v{T_}, v{SA+3}, v{SA+4}, v{SA+5}\nv_max3_f32 v{M_}, v{M_}, v{SA+6}, v{SA+7}\nv_max3_f32 v{T_}, v{T_}, v{SA+8}, v{SA+9}\nv_max3_f32 v{M_}, v{M_}, v{SA+10}, v{SA+11}\nv_max_f32 v{M_}, v{M_}, v{T_}')
        for sw in ('v_permlane16_swap_b32', 'v_permlane32_swap_b32'):
            a(f'v_mov_b32 v{T_}, v{M_}'); fill(); a(f'{sw} v{M_}, v{T_}\nv_max_f32 v{M_}, v{M_}, v{T_}')
        a(f's_mov_b64 exec, 0xffff\nds_write_b32 v{vML}, v{M_}\ns_mov_b64 exec, -1')
        fill()
        a('s_waitcnt lgkmcnt(0)'); a.lg = []
        stamp(a, pre + 's1'); a('s_barrier')
        a(f'ds_read_b128 {vr(QF,4)}, v{vMLr}\nds_read_b128 {vr(QF+4,4)}, v{vMLr} offset:16', tag='mx')
        fill(); fill()
        a.wait(lg='mx')
        a(f'v_max3_f32 v{M_}, v{QF}, v{QF+1}, v{QF+2}\nv_max3_f32 v{T_}, v{QF+3}, v{QF+4}, v{QF+5}\nv_max3_f32 v{M_}, v{M_}, v{QF+6}, v{QF+7}\nv_max_f32 v{M_}, v{M_}, v{T_}')
        for i in range(n): a(f'v_sub_f32 v{SA+i}, v{SA+i}, v{M_}')
        for t in range(nt):
            for i in range(4): a(f'v_exp_f32 v{SA+4*t+i}, v{SA+4*t+i}')
            for i in range(2): a(f'v_cvt_pk_bf16_f32 v{QF+2*t+i}, v{SA+4*t+2*i}, v{SA+4*t+2*i+1}')
            a(f'ds_write_b64 v{vPt+t}, {vr(QF+2*t,2)}')
        for t in range(1, nt):
            for i in range(4): a(f'v_add_f32 v{SA+i}, v{SA+i}, v{SA+4*t+i}')
        a(f'v_add_f32 v{SA}, v{SA}, v{SA+2}\nv_add_f32 v{SA+1}, v{SA+1}, v{SA+3}\nv_add_f32 v{SA}, v{SA}, v{SA+1}')
        for sw in ('v_permlane16_swap_b32', 'v_permlane32_swap_b32'):
            a(f'v_mov_b32 v{T_}, v{SA}'); fill(); a(f'{sw} v{SA}, v{T_}\nv_add_f32 v{SA}, v{SA}, v{T_}')
        a(f's_mov_b64 exec, 0xffff\nds_write_b32 v{vML}, v{SA} offset:512\ns_mov_b64 exec, -1')
        a('s_waitcnt lgkmcnt(0)'); a.lg = []
        stamp(a, pre + 's2'); a('s_barrier')
    def tile_addr(sA_, k, vMa, vRa, vPt):
        a(f'''s_lshl_b32 s34, {sA_}, 2
        s_add_u32 s34, s34, {sW}
        s_lshl_b32 s34, s34, 6
        s_add_u32 s34, s34, {LS}
        v_lshl_add_u32 v{vMa+k}, v3, 2, s34
        s_add_u32 s34, s34, 1024
        v_lshl_add_u32 v{vRa+k}, v2, 4, s34
        s_lshl_b32 s34, {sA_}, 11
        v_add_u32 v{vPt+k}, s34, v{vP}''')
    def run(q, n):
        while n > 0 and q:
            x = q.pop(0); n -= 1
            if x == 's_nop 0': continue
            if isinstance(x, tuple):
                if x[0] == 'v': a.wait(vm=x[1])
                elif x[0] == 'l': a.wait(lg=x[1])
                else: a(x[0], tag=x[1])
            else: a(x)
    a.label('P2_c'); a.vm = []; a.lg = []
    stamp(a, 'p2c')
    common()
    RD, MF, RT = 16, 24, 6
    WF, XR, ACC, PK, AQ, SR, ONE = 100, 56, 76, 100, 112, 32, 72
    vWa, vWb, vXa = 72, 73, 11
    VF, KF = 64, 208
    a(f'''s_and_b32 {sS}, {sI}, 7
    s_lshl_b32 {sS}, {sS}, 1
    s_and_b32 s34, {sW}, 1
    s_add_u32 {sS}, {sS}, s34
    s_mul_i32 s35, s34, 39936
    v_add_u32 v{vWa}, s35, v{vL16}
    v_cmp_eq_u32 vcc, 3, v2
    v_cndmask_b32 v6, v2, 0, vcc
    v_mul_u32_u24 v6, 768, v6
    v_lshl_add_u32 v6, v3, 2, v6
    s_add_u32 s35, s35, 36864
    v_add_u32 v{vWb}, s35, v6
    s_mul_i32 s35, {sTP}, 24576
    s_add_u32 s35, s35, {XB}
    v_add_u32 v{vXa}, s35, v{vL16}
    s_mul_i32 s34, {sRQ}, 49152
    s_add_u32 {sK}, {sK}, s34
    s_lshl_b32 s69, {sRQ}, 1
    s_add_u32 s69, s69, {sTP}
    s_lshl_b32 s34, s69, 9
    s_mul_i32 s35, {sT}, 49152
    s_add_u32 s34, s34, s35
    s_add_u32 {sSt1}, s34, {WS_ST}
    s_lshl_b32 s34, {sT}, 11
    s_add_u32 {sFS}, s34, {WS_FS}
    s_lshl_b32 s34, {sT}, 9
    s_add_u32 {sF1}, s34, {FC1}
    s_add_u32 {sF2}, s34, {FC2}
    s_lshl_b32 s34, {sT}, 4
    s_add_u32 s35, s34, {sQT}
    s_mul_i32 {sQ}, s35, 13312
    s_add_u32 {sQ}, {sQ}, {WS_Q}
    s_lshl_b32 s35, s69, 1
    s_add_u32 s34, s34, s35
    s_mul_i32 s34, s34, 13312
    s_add_u32 s34, s34, {WS_Q}
    s_mul_i32 s35, {sS}, 1536
    s_add_u32 s68, s34, s35
    s_lshl_b32 s35, {sS}, 6
    s_add_u32 s34, s34, s35
    s_add_u32 {sSt2}, s34, 12288
    v_lshrrev_b32 v4, 5, v1
    v_and_b32 v6, 31, v1
    v_lshlrev_b32 v{vSt}, 4, v6
    v_mul_u32_u24 v7, 24576, v4
    v_add_u32 v{vSt}, v{vSt}, v7
    s_add_u32 s34, {sM1K}, {LT}
    v_lshl_add_u32 v{vTb}, v6, 2, s34
    v_lshl_add_u32 v{vTb+1}, v3, 2, s34
    v_lshl_add_u32 v{vTb+2}, v2, 4, s34
    v_lshlrev_b32 v74, 2, v6
    v_lshlrev_b32 v7, 4, v3
    v_lshl_add_u32 v{vA}, v4, 8, v7
    v_lshl_add_u32 v{vA}, v5, 3, v{vA}
    v_mul_u32_u24 v{vB}, 13312, v5
    v_lshl_add_u32 v{vB}, v3, 2, v{vB}
    s_lshl_b32 {sOwn}, {sI}, 4
    s_lshl_b32 s34, {sW}, 2
    s_add_u32 {sOwn}, {sOwn}, s34
    s_mul_i32 {sVP}, {sT}, 196608
    s_mul_i32 s35, {sQT}, 12288
    s_add_u32 {sRs}, {sVP}, s35
    s_mul_i32 s34, {sCH}, 6144
    s_add_u32 {sRs}, {sRs}, s34
    s_mul_i32 s34, {sW}, 1536
    s_add_u32 {sRs}, {sRs}, s34
    s_add_u32 {sRs}, {sRs}, {WS_X1}
    s_add_u32 {sOut}, {sVP}, s35
    s_mul_i32 s35, {sCH}, 384
    s_add_u32 {sOut}, {sOut}, s35
    s_mul_i32 s35, {sW}, 96
    s_add_u32 {sOut}, {sOut}, s35
    s_mul_i32 s34, s69, 24576
    s_add_u32 s34, s34, {sVP}
    s_mul_i32 s35, {sS}, 3072
    s_add_u32 s34, s34, s35
    s_add_u32 s67, s34, {WS_VP - 8*3072}
    s_mul_i32 s35, {sCH}, 12288
    s_add_u32 {sVP}, {sVP}, s35
    s_mul_i32 s35, {sW}, 3072
    s_add_u32 {sVP}, {sVP}, s35
    s_add_u32 {sVP}, {sVP}, {WS_VP}
    s_lshl_b32 s69, s69, 7
    s_add_u32 s69, s69, {sFS}
    s_mul_i32 s20, {sW}, 12288
    s_add_u32 s20, s20, {XB}''')
    a('v_mov_b32 v4, v74')
    stamp(a, 'p2s')
    a('s_barrier')
    stamp(a, 'gsync')
    wq = []
    for ks in range(13):
        for u in range(3):
            d = WF + (ks*3+u)*4
            if ks < 12: wq.append(f'ds_read_b128 {vr(d,4)}, v{vWa} offset:{(ks*3+u)*1024}')
            else: wq.append(f'ds_read2_b32 {vr(d,2)}, v{vWb} offset0:{16*u} offset1:{16*u+48}\nds_read2_b32 {vr(d+2,2)}, v{vWb} offset0:{16*u+96} offset1:{16*u+144}')
    vm = []
    for ks in range(12):
        vm.append(((f's_add_u32 m0, s20, {ks*1024}\n' + (f's_add_u32 {sK}, {sK}, 4096\n' if ks else '') if ks % 4 == 0 else '') + f'buffer_load_dwordx4 v{vL16}, {SWS}, {sK} offen offset:{(ks&3)*1024} sc1 lds', f'x{ks>>2}'))
    st = [((f's_add_u32 {sSt1}, {sSt1}, 4096\n' if i else '') + f'buffer_load_dwordx4 {vr(SR+4*i,4)}, v{vSt}, {SWS}, {sSt1} offen sc1', 'st') for i in range(6)]
    SP_ = opt('stp', 8)
    for k, (t, tag) in enumerate(vm[:SP_] + st + vm[SP_:]):
        a(t, tag=tag)
        if k >= 1:
            for _ in range(3):
                if wq: a(wq.pop(0))
    for x in wq: a(x)
    late = [f's_mov_b32 s36, {fbits(1/384)}', f's_mov_b32 s37, {fbits(1e-5)}', ('v', 'st')]
    for k in (0, 1): late += [f'v_add_f32 v{SR+k}, v{SR+k}, v{SR+4+k}', f'v_add_f32 v{SR+8+k}, v{SR+8+k}, v{SR+12+k}', f'v_add_f32 v{SR+16+k}, v{SR+16+k}, v{SR+20+k}']
    for k in (0, 1): late += [f'v_add_f32 v{SR+k}, v{SR+k}, v{SR+8+k}']
    for k in (0, 1): late += [f'v_add_f32 v{SR+k}, v{SR+k}, v{SR+16+k}']
    late += f'''v_mov_b32 v{SR+2}, v{SR}
    v_mov_b32 v{SR+3}, v{SR+1}
    v_cmp_eq_u32 vcc, 3, v2
    v_permlane32_swap_b32 v{SR}, v{SR+2}
    v_permlane32_swap_b32 v{SR+1}, v{SR+3}
    v_add_f32 v{SR}, v{SR}, v{SR+2}
    v_add_f32 v{SR+1}, v{SR+1}, v{SR+3}
    v_mul_f32 v{SR}, s36, v{SR}
    v_mul_f32 v{SR+2}, v{SR}, v{SR}
    v_fma_f32 v{SR+1}, v{SR+1}, s36, -v{SR+2}
    v_max_f32 v{SR+1}, 0, v{SR+1}
    v_add_f32 v{SR+1}, s37, v{SR+1}
    v_rsq_f32 v{SR+1}, v{SR+1}
    v_cvt_pk_bf16_f32 v{SR}, -v{SR}, -v{SR}
    ds_write_b32 v{vTb}, v{SR}
    ds_write_b32 v{vTb}, v{SR+1} offset:128'''.split('\n')
    late.append((f'ds_read2_b32 {vr(SR+4,2)}, v{vTb+1} offset0:0 offset1:16', 't'))
    late.append((f'ds_read2_b32 {vr(RT,2)}, v{vTb+1} offset0:32 offset1:48', 't'))
    for t in range(2): late.append((f'ds_read_b128 {vr(RD+4*t,4)}, v{vTb+2} offset:{128+64*t}', 't'))
    late += ['s_nop 0']*3 + [('l', 't')]
    for t in range(2):
        late.append(f'v_cndmask_b32 v{MF+4*t}, v{SR+4+t}, 0, vcc')
        for d in range(1, 4): late.append(f'v_mov_b32 v{MF+4*t+d}, v{MF+4*t}')
    late += [f'v_mov_b32 v{ONE+k}, 0x3f803f80' for k in range(4)]
    late += [f'v_mul_f32 v{RT}, {fbits(SCALE2)}, v{RT}', f'v_mul_f32 v{RT+1}, {fbits(SCALE2)}, v{RT+1}']
    def xrd(ks):
        for t in range(2): a(f'ds_read_b128 {vr(XR + (ks%2)*8 + 4*t,4)}, v{vXa} offset:{t*12288 + ks*1024}', tag=f'f{ks}')
    a(f's_cmp_ge_u32 {sS}, 8\ns_cbranch_scc1 P2_v')
    for var in range(2):
        if var == 0: vmsave, lgsave = list(a.vm), list(a.lg)
        else: a.label('P2_v'); a.vm, a.lg = list(vmsave), list(lgsave)
        lq = list(late)
        a.wait(vm='x0'); a('s_barrier')
        stamp(a, 'k0')
        xrd(0)
        for ks in range(13):
            if ks == 12: run(lq, 1000)
            if ks in (3, 7): a.wait(vm=f'x{(ks+1)>>2}'); a('s_barrier'); stamp(a, f'k{ks+1}')
            if ks < 12: a.wait(lg=f'f{ks}')
            for u in range(3):
                wf = vr(WF + (ks*3+u)*4, 4)
                for t in range(2):
                    xf = vr(XR + (ks%2)*8 + 4*t, 4) if ks < 12 else vr(MF+4*t, 4)
                    d = vr(ACC + (t*3+u)*4, 4)
                    A, B = (wf, xf) if var == 0 else (xf, wf)
                    a(f'v_mfma_f32_16x16x32_bf16 {d}, {A}, {B}, {"0" if ks == 0 else d}')
                    if ks >= opt('lq0', 5): run(lq, 2)
                if u == 0 and ks + 1 < 12: xrd(ks + 1)
        stamp(a, 'mm2end')
        Lf = a.newlabel('fs')
        if var == 0:
            a(f's_cmp_lg_u32 {sS}, 0\ns_cbranch_scc1 {Lf}')
            a.cond = True
            a(f's_mov_b32 exec_hi, 0\nbuffer_store_dword v{SR}, v4, {SWS}, s69 offen {WT}\nbuffer_store_dword v{SR+1}, v4, {SWS}, s69 offen offset:1024 {WT}\ns_mov_b32 exec_hi, -1')
            a.cond = False
            a.label(Lf)
            for t in range(2):
                for u in range(3):
                    b = ACC + (t*3+u)*4
                    for d in range(2): a(f'v_pk_mul_f32 {vr(b+2*d,2)}, {vr(b+2*d,2)}, {vr(RT,2)} op_sel:[0,{t}] op_sel_hi:[1,{t}]')
                    for d in range(2): a(f'v_cvt_pk_bf16_f32 v{PK+(t*3+u)*2+d}, v{b+2*d}, v{b+2*d+1}')
            for t in range(2): a(f'v_mfma_f32_16x16x32_bf16 {vr(ACC+4*t,4)}, {vr(ONE,4)}, {vr(PK+6*t,4)}, 0')
            for t in range(2):
                if t:
                    a(f's_add_u32 s68, s68, 13312\ns_nop 1')
                    for tt in range(2): a(f'v_mfma_f32_16x16x16_bf16 {vr(ACC+8+4*tt,4)}, {vr(ONE,2)}, {vr(PK+6*tt+4,2)}, {vr(ACC+4*tt,4)}')
                for u in range(3): a(f'buffer_store_dwordx2 {vr(PK+(t*3+u)*2,2)}, v{vA}, {SWS}, s68 offen offset:{u*512} {WT}')
            a(f'''v_cmp_eq_u32 vcc, 1, v5
            v_cndmask_b32 v{AQ}, v{ACC+8}, v{ACC+12}, vcc
            v_cvt_pk_bf16_f32 v{AQ+1}, v{AQ}, v{AQ}
            v_lshlrev_b32 v{AQ+1}, 16, v{AQ+1}
            v_sub_f32 v{AQ+1}, v{AQ}, v{AQ+1}
            v_cvt_pk_bf16_f32 v{AQ}, v{AQ}, v{AQ+1}
            s_mov_b32 exec_hi, 0
            buffer_store_dword v{AQ}, v{vB}, {SWS}, {sSt2} offen {WT}
            s_mov_b32 exec_hi, -1
            s_branch P2_j''')
        else:
            for u in range(3):
                for t in range(2):
                    b = ACC + (t*3+u)*4
                    for d in range(2): a(f'v_pk_mul_f32 {vr(b+2*d,2)}, {vr(b+2*d,2)}, {vr(RD+4*t+2*d,2)}')
                    for d in range(2): a(f'v_cvt_pk_bf16_f32 v{PK+u*4+t*2+d}, v{b+2*d}, v{b+2*d+1}')
                a(f'buffer_store_dwordx4 {vr(PK+4*u,4)}, v{vL16}, {SWS}, s67 offen offset:{u*1024} {WT}')
    a.label('P2_j')
    a(f'v_add_u32 v6, s20, v{vL16}')
    for ks in range(12): a(f'ds_read_b128 {vr(KF+4*ks,4)}, v6 offset:{ks*1024}')
    attn_addr(0)
    vMa, vRa, vPt = 54, 55, 13
    tile_addr(sRQ, 0, vMa, vRa, vPt)
    a.wait_all()
    flag(a, sOwn, sF1, sFast, 6, '')
    stamp(a, 'flag2')
    RS = 48
    for u in range(3): a(f'buffer_load_dwordx2 {vr(RS+2*u,2)}, v{vA}, {SWS}, {sRs} offen offset:{u*512} sc1', tag='rs')
    vOW, vOR, vOG = 8, 60, 6
    a(f's_lshl_b32 s35, {sW}, 11\ns_add_u32 s35, s35, {LO}\nv_mul_u32_u24 v{vOW}, 112, v3\nv_lshl_add_u32 v{vOW}, v2, 3, v{vOW}\nv_add_u32 v{vOW}, s35, v{vOW}')
    for h in range(2):
        a(f'''v_add_u32 v56, {64*h}, v1
        v_mul_u32_u24 v57, 43, v56
        v_lshrrev_b32 v57, 8, v57
        v_mul_u32_u24 v58, 6, v57
        v_sub_u32 v58, v56, v58
        v_lshlrev_b32 v58, 4, v58
        v_mul_u32_u24 v56, 112, v57
        v_add3_u32 v{vOR+h}, v56, v58, s35
        v_mul_u32_u24 v56, 768, v57
        v_add_u32 v{vOG+h}, v56, v58''')
    a(f'''s_add_u32 {sT1}, {sQ}, {sM1K}
    s_add_u32 s21, {sQ}, 12288
    s_mov_b32 s22, {LQ + 12288}
    s_lshr_b32 s34, {sW}, 1
    s_and_b32 s35, {sW}, 1
    s_lshl_b32 s35, s35, 10
    s_add_u32 s23, {sFS}, s35
    s_add_u32 s35, s35, {LS}
    s_cmp_eq_u32 s34, 1
    s_cselect_b32 s21, s23, s21
    s_cselect_b32 s22, s35, s22''')
    lsync(a, 32, True, sF1, sF2, sOwn, lambda: None, 32, 0)
    stamp(a, 'sync2')
    for i in range(3):
        a(f's_add_u32 {sT0}, {sT1}, {i*4096}\ns_add_u32 m0, {sM1K}, {LQ + i*4096}\nbuffer_load_dwordx4 v{vL16}, {SWS}, {sT0} offen sc1 lds', tag='q')
    a(f's_mov_b32 m0, s22\nbuffer_load_dwordx4 v{vL16}, {SWS}, s21 offen sc1 lds', tag='q')
    vq = []
    for k8 in range(8):
        for u in range(3):
            vq.append(((f's_add_u32 {sVP}, {sVP}, 24576\n' if k8 and u == 0 else '') + f'buffer_load_dwordx4 {vr(VF+(k8*3+u)*4,4)}, v{vL16}, {SWS}, {sVP} offen offset:{u*1024} sc1', f'vp{k8}'))
    def fill():
        if vq: x = vq.pop(0); a(x[0], tag=x[1])
    for _ in range(opt('nv0', 4)): fill()
    a.wait(vm='q')
    a('s_barrier')
    stamp(a, 'q_in')
    scores(1, KF, 56, RD, MF, vMa, vRa, vPt, fill, 0)
    stamp(a, 'p_done')
    while vq: fill()
    PF, PA, RF, ML = 160, 32, 200, 212
    for k8 in range(8): a(f'ds_read_b128 {vr(PF+4*k8,4)}, v{vL16} offset:{LP + k8*1024}', tag=f'p{k8}')
    a(f'ds_read_b128 {vr(ML,4)}, v{vMLr} offset:512\nds_read_b128 {vr(ML+4,4)}, v{vMLr} offset:528', tag='ml')
    fx = ['s_mov_b32 s36, 0xffff0000'] + [x for u in range(3) for d in range(2) for x in (f'v_lshlrev_b32 v{RF+4*u+2*d}, 16, v{RS+2*u+d}', f'v_and_b32 v{RF+4*u+2*d+1}, s36, v{RS+2*u+d}')]
    fx += [('l', 'ml')] + [f'v_add_f32 v{ML+i}, v{ML+i}, v{ML+4+i}' for i in range(4)] + [f'v_add_f32 v{ML}, v{ML}, v{ML+1}', f'v_add_f32 v{ML+2}, v{ML+2}, v{ML+3}', f'v_add_f32 v{ML}, v{ML}, v{ML+2}', f'v_rcp_f32 v{ML}, v{ML}']
    for k8 in range(8):
        a.wait(vm=f'vp{k8}', lg=f'p{k8}')
        for u in range(3):
            d = vr(PA + 4*u, 4)
            a(f'v_mfma_f32_16x16x32_bf16 {d}, {vr(VF+(k8*3+u)*4,4)}, {vr(PF+4*k8,4)}, {"0" if k8 == 0 else d}')
            run(fx, 1 if k8 < 4 else 2)
    run(fx, 1000)
    stamp(a, 'pv_done')
    OP = 192
    for u in range(3):
        for d in range(2): a(f'v_pk_fma_f32 {vr(RF+4*u+2*d,2)}, {vr(PA+4*u+2*d,2)}, {vr(ML,2)}, {vr(RF+4*u+2*d,2)} op_sel_hi:[1,0,1]')
        for d in range(2): a(f'v_cvt_pk_bf16_f32 v{OP+2*u+d}, v{RF+4*u+2*d}, v{RF+4*u+2*d+1}')
        a(f'ds_write_b64 v{vOW}, {vr(OP+2*u,2)} offset:{u*32}')
    a(f'ds_read_b128 {vr(44,4)}, v{vOR}', tag='o0')
    a(f's_mov_b32 exec_hi, 0\nds_read_b128 {vr(48,4)}, v{vOR+1}\ns_mov_b32 exec_hi, -1', tag='o1')
    a.wait(lg='o0')
    a(f'buffer_store_dwordx4 {vr(44,4)}, v{vOG}, {SOUT}, {sOut} offen')
    a.wait(lg='o1')
    a(f's_mov_b32 exec_hi, 0\nbuffer_store_dwordx4 {vr(48,4)}, v{vOG+1}, {SOUT}, {sOut} offen\ns_mov_b32 exec_hi, -1')
    if PROFILE: a.wait_all()
    stamp(a, 'end')
    stamp_flush(a)
    a('s_endpgm')
    a.label('P2_l'); a.vm = []; a.lg = []
    stamp(a, 'Lp2')
    KL, SAL, RDL, MFL = 112, 48, 60, 72
    vMa, vRa, vPt = 84, 87, 90
    SK = ['s20', 's21', 's22']
    PBX = opt('pbx', 0)
    def setup():
        common()
        attn_addr(1)
        for k in range(3):
            a(f's_add_u32 s23, {sRQ}, {k+1}\ns_and_b32 s23, s23, 3\ns_mul_i32 s34, s23, 49152\ns_add_u32 {SK[k]}, {sK}, s34')
            tile_addr('s23', k, vMa, vRa, vPt)
    def hint():
        if opt('hint', 1):
            L = a.newlabel('hs')
            a(f's_cmp_lg_u32 {sI}, 31\ns_cbranch_scc1 {L}\ns_cmp_lg_u32 {sW}, 0\ns_cbranch_scc1 {L}')
            a.cond = True
            a(f's_lshl_b32 s34, {sT}, 7\ns_mov_b32 s35, {FP + 1024}'); flag(a, 's34', 's35', sFast, 52, ''); a.vm.pop()
            a.cond = False
            a.label(L)
    if not PBX: hint()
    a(f's_and_b32 s68, {sI}, 7\ns_mul_i32 s68, s68, 79872\ns_mul_i32 s69, {sW}, 20480\ns_add_u32 s68, s68, s69\ns_add_u32 s68, s68, {WS_W}')
    if opt('hfirst', 0):
        if opt('hint', 1):
            Lh, Lg = a.newlabel('hw'), a.newlabel('hg')
            a(f's_cmp_ge_u32 {sI}, 8\ns_cbranch_scc1 {Lg}\ns_lshl_b32 s34, {sT}, 7\ns_add_u32 s34, s34, {FP + 1024}\nv_mov_b32 v34, 0\ns_mov_b32 s35, 64')
            a.label(Lh)
            a(f'''s_mov_b64 exec, 1
            buffer_load_dword v35, v34, {SWS}, s34 offen sc1
            s_waitcnt vmcnt(0)
            v_cmp_ne_u32 vcc, {sFast}, v35
            s_mov_b64 exec, -1
            s_cbranch_vccz {Lg}
            s_sub_u32 s35, s35, 1
            s_cmp_lg_u32 s35, 0
            s_cbranch_scc1 {Lh}''')
            a.label(Lg); a.vm = []
    if opt('w6', 1):
        a(f'''s_and_b32 s34, {sI}, 3
        s_mul_i32 s34, s34, 3
        s_lshr_b32 s34, s34, 1
        s_bfe_u32 s35, {sI}, 0x10002
        s_mul_i32 s35, s35, 18
        s_add_u32 s34, s34, s35
        s_lshl_b32 s34, s34, 7
        s_add_u32 s67, s34, {GW}
        v_lshrrev_b32 v7, 1, v1
        v_mul_u32_u24 v7, 768, v7
        v_and_b32 v33, 1, v1
        v_lshl_add_u32 v7, v33, 7, v7''')
        if PBX:
            setup()
            a(f's_cmp_lt_u32 {sI}, 8\ns_cbranch_scc1 P2_nb\ns_barrier')
            a.label('P2_nb')
        gpoll(a, 6, 7, 's67', 33)
        stamp(a, 'Lwf')
        a('v_lshlrev_b32 v7, 7, v1')
    else: wpoll(a)
    for i in range(20):
        if i % 4 == 0: a(f's_add_u32 m0, s69, {LW + i*1024}' + ('\ns_add_u32 s68, s68, 4096' if i else ''))
        a(f'buffer_load_dwordx4 v{vL16}, {SWS}, s68 offen offset:{(i&3)*1024} sc1 lds')
    if PBX: hint()
    else: setup()
    if not opt('hfirst', 0):
        if opt('hint', 1):
            Lh, Lg = a.newlabel('hw'), a.newlabel('hg')
            a(f's_cmp_ge_u32 {sI}, 8\ns_cbranch_scc1 {Lg}\ns_lshl_b32 s34, {sT}, 7\ns_add_u32 s34, s34, {FP + 1024}\nv_mov_b32 v34, 0\ns_mov_b32 s35, 64')
            a.label(Lh)
            a(f'''s_mov_b64 exec, 1
            buffer_load_dword v35, v34, {SWS}, s34 offen sc1
            s_waitcnt vmcnt(0)
            v_cmp_ne_u32 vcc, {sFast}, v35
            s_mov_b64 exec, -1
            s_cbranch_vccz {Lg}
            s_sub_u32 s35, s35, 1
            s_cmp_lg_u32 s35, 0
            s_cbranch_scc1 {Lh}''')
            a.label(Lg); a.vm = []
    if opt('gq', 0):
        a(f's_mul_i32 s67, {sRQ}, {48*128}\ns_add_u32 s67, s67, {GX}\ns_cmp_lg_u32 {sW}, 0\ns_cbranch_scc1 P2_lq')
        gpoll(a, 48, 7, 's67', 33)
        a.label('P2_lq')
        a.wait_all()
    else:
        a(f's_mul_i32 s67, {sW}, {48*128}\ns_add_u32 s67, s67, {GX}')
        gpoll(a, 48, 7, 's67', 33)
    stamp(a, 'Lxf')
    a('s_barrier')
    def rest_flags():
        a(f'''v_add_u32 v33, {sRQ}, v2
        v_add_u32 v33, 1, v33
        v_and_b32 v33, 3, v33
        v_mul_u32_u24 v33, 48, v33
        v_min_u32 v34, 11, v3
        v_add_u32 v33, v33, v34
        v_lshlrev_b32 v34, 7, v33
        s_mul_i32 s67, {sW}, {12*128}
        s_add_u32 s67, s67, {GX}''')
        gpoll(a, 48, 34, 's67', 33)
    def bump():
        L, Lp = a.newlabel('be'), a.newlabel('bp')
        a(f's_or_b32 s34, {sW}, s2\ns_cmp_lg_u32 s34, 0\ns_cbranch_scc1 {L}\ns_mov_b32 s35, {LIM_SLOW}\nv_lshlrev_b32 v7, 7, v1')
        a('\n'.join(f's_mov_b32 s{20+k}, {b}' for k, b in enumerate((GW, GX, GX + 8192, GX + 16384))))
        a.label(Lp)
        for k in range(4): a(f'buffer_load_dword v{32+k}, v7, {SWS}, s{20+k} offen sc1')
        a.wait_all(lg=False)
        for k in range(4): a(f'v_xor_b32 v{32+k}, {sTag}, v{32+k}')
        a(f'v_or_b32 v32, v32, v33\nv_or3_b32 v32, v32, v34, v35\ns_sub_u32 s35, s35, 1\nv_cmp_ne_u32 vcc, 0, v32\ns_cmp_lg_u32 s35, 0\ns_cselect_b64 vcc, vcc, 0\ns_cbranch_vccnz {Lp}')
        a(f's_mov_b32 s34, {WE}'); gflag(a, '0', 's34', 36)
        a.label(L); a.vm = []
    GQ = opt('gq', 0)
    kq = [(t, ks) for t in range(3) for ks in range(12)]
    def kl(n):
        for _ in range(n):
            if not kq: return
            t, ks = kq.pop(0)
            if ks % 4 == 0 and ks: a(f's_add_u32 {SK[t]}, {SK[t]}, 4096')
            a(f'buffer_load_dwordx4 {vr(KL+(t*12+ks)*4,4)}, v{vL16}, {SWS}, {SK[t]} offen offset:{(ks&3)*1024} sc1')
    GP = opt('gp', 1)
    a('s_barrier')
    if GQ and GP == 0: rest_flags()
    if not GQ or GP < 1: kl(opt('kb0', 3))
    a('s_barrier')
    if GQ and GP == 1: rest_flags()
    if not GQ or GP < 2: kl(opt('kb1', 5))
    a('s_barrier')
    if GQ and GP == 2: rest_flags()
    kl(opt('kb2', 6))
    a.wait_all(lg=False)
    kl(opt('kb3', 8))
    a.wait_all(lg=False)
    kl(36)
    stamp(a, 'Lkiss')
    a.wait_all()
    stamp(a, 'Lk')
    bump()
    a('s_barrier')
    if opt('prio', 1) == 3: a('s_setprio 1')
    scores(3, KL, SAL, RDL, MFL, vMa, vRa, vPt, lambda: None, 1)
    stamp_flush(a, 'L')
```

```python
import sys, math, struct
sys.path.insert(0, 'gen')
from asm import Asm
def opt(name, default):
    for x in sys.argv:
        if x.startswith(f'--{name}='): return int(x.split('=')[1])
    return default
HP = [x[5:] for x in sys.argv if x.startswith('--hp=')]
PROFILE = '--prof' in sys.argv or bool(HP)
SKIP = []
for x in sys.argv:
    if x.startswith('--skip='): SKIP = x[7:].split(',')
WS_W2 = 0x000000
WS_S  = 0x180000
WS_X1 = 0x240000
WS_W  = 0x3E0000
WS_Q  = 0x480000
WS_VP = 0x620000
WS_ST = 0xF00000
WS_FS = 0xF70000
FS1, FS2 = 0x7A0000, 0x7A2000
FC1, FC2 = 0x7A4000, 0x7A5000
GW2, GW, GX, WE, FP = 0x7A8000, 0x7AA000, 0x7AC000, 0x7B4000, 0x7A6000
WS_PROF = 0x7C0000
SLOW = 0x800000
WS_SIZE = 0x1000000
LIM_FAST = opt('lim', 24)
LIM_SLOW = 1 << 20
SCALE2 = 384 ** -0.5 * math.log2(math.e)
def fbits(x): return '0x%08x' % struct.unpack('<I', struct.pack('<f', x))[0]
def vr(b, n): return f'v[{b}:{b+n-1}]' if n > 1 else f'v{b}'
SX, SWQ, SWO, SWS, SOUT = 's[4:7]', 's[8:11]', 's[12:15]', 's[16:19]', 's[24:27]'
WT = 'sc0 sc1' if opt('wt', 1) == 2 else 'sc1'
def srd(a, base, ptr, size):
    a(f's_mov_b32 s{base}, s{ptr}\ns_mov_b32 s{base+1}, s{ptr+1}\ns_mov_b32 s{base+2}, {size}\ns_mov_b32 s{base+3}, 0x20000')
STAMP_REGS = [70, 72, 74, 76, 78, 80, 82, 84, 86, 88, 90, 92, 94, 96, 98, 100]
class St:
    names = {'C': [], 'L': []}
def stamp(a, name):
    if not PROFILE or name in SKIP or (HP and name not in ('start', HP[0])): return
    lst = St.names['L' if name.startswith('L') else 'C']
    if name not in lst: lst.append(name)
    k = lst.index(name)
    a(f's_memrealtime s[{STAMP_REGS[k]}:{STAMP_REGS[k]+1}]')
def hp_end(a, role):
    name = HP[0]
    lst = St.names[role]
    src = f's{STAMP_REGS[lst.index(name)]}' if name in lst else 's70'
    L1, L2 = a.newlabel('hp'), a.newlabel('hp')
    a(f's_waitcnt vmcnt(0) lgkmcnt(0)\nv_mov_b32 v2, {WS_PROF + 0x30000}')
    a.label(L1)
    a(f'''buffer_load_dwordx2 v[4:5], v2, {SWS}, 0 offen sc0 sc1
    s_waitcnt vmcnt(0)
    v_readfirstlane_b32 s34, v4
    v_readfirstlane_b32 s35, v5
    s_cmp_lg_u32 s35, {sTag}
    s_cbranch_scc1 {L1}
    s_sub_u32 s35, {src}, s34
    s_max_i32 s35, s35, 0
    s_mul_i32 s35, s35, 4
    s_add_u32 s35, s35, 4000''')
    a.label(L2)
    a(f'''s_memrealtime s[36:37]
    s_waitcnt lgkmcnt(0)
    s_sub_u32 s36, s36, s34
    s_cmp_lt_i32 s36, s35
    s_cbranch_scc1 {L2}''')
def hp_t0(a):
    if not HP: return
    L = a.newlabel('hq')
    a(f's_or_b32 s34, s2, {sW}\ns_or_b32 s34, s34, {sRole}\ns_cmp_lg_u32 s34, 0\ns_cbranch_scc1 {L}')
    a(f'v_mov_b32 v2, {WS_PROF + 0x30000}\nv_mov_b32 v4, s70\nv_mov_b32 v5, {sTag}\nbuffer_store_dwordx2 v[4:5], v2, {SWS}, 0 offen sc0 sc1')
    a.vm.pop()
    a.label(L)
def stamp_flush(a, role='C'):
    if HP: hp_end(a, role); return
    if not PROFILE: return
    a('s_waitcnt lgkmcnt(0)')
    for k in range(16): a(f'v_mov_b32 v{100+k}, s{STAMP_REGS[k]}')
    a(f'''v_lshrrev_b32 v8, 6, v0
    s_lshl_b32 s34, s2, 3
    v_add_u32 v8, s34, v8
    v_lshlrev_b32 v8, 6, v8
    v_add_u32 v8, {WS_PROF}, v8''')
    for k in range(4): a(f'buffer_store_dwordx4 v[{100+4*k}:{103+4*k}], v8, {SWS}, 0 offen offset:{16*k}')

sXCD, sW, sI, sRole = 's40', 's41', 's42', 's43'
sTag, sFast, sDelta = 's44', 's45', 's46'
sM1K = 's47'
TAIL = []

def lanes(a, n):
    a(f's_mov_b32 exec_lo, {hex((1 << min(n, 32)) - 1)}\ns_mov_b32 exec_hi, {hex((1 << max(n-32, 0)) - 1)}')
def gpoll(a, n, vA, sBase, vT):
    Lf, Lr, Ld = a.newlabel('gp'), a.newlabel('gr'), a.newlabel('gd')
    lanes(a, n)
    a(f's_mov_b32 s35, {LIM_SLOW}')
    a.label(Lf)
    a(f'buffer_load_dword v{vT}, v{vA}, {SWS}, {sBase} offen sc1')
    a.wait_all(lg=False)
    a(f'v_cmp_ne_u32 vcc, {sTag}, v{vT}\ns_cbranch_vccnz {Lr}')
    a.label(Ld)
    a('s_mov_b64 exec, -1')
    def tail():
        a.label(Lr)
        if opt('gsl', 0): a(f's_sleep {opt("gsl", 0)}')
        a(f's_sub_u32 s35, s35, 1\ns_cmp_lg_u32 s35, 0\ns_cbranch_scc1 {Lf}\ns_branch {Ld}')
    TAIL.append(tail)
def lsync(a, n, wide, sF1, sF2, sOwn, republish, vT, delta=SLOW):
    Lf, Lr, Ld, Ls = a.newlabel('lp'), a.newlabel('lr'), a.newlabel('ld'), a.newlabel('ls')
    vA, vD, vE = vT, vT + 2, vT + 6
    w = 4 if wide else 1
    ld = 'buffer_load_dwordx4' if wide else 'buffer_load_dword'
    def cmp(v, s):
        if not wide: a(f'v_cmp_ne_u32 vcc, {s}, v{v}'); return
        for k in range(4): a(f'v_xor_b32 v{v+k}, {s}, v{v+k}')
        a(f'v_or_b32 v{v}, v{v}, v{v+1}\nv_or3_b32 v{v}, v{v}, v{v+2}, v{v+3}\nv_cmp_ne_u32 vcc, 0, v{v}')
    lanes(a, n)
    a(f'v_lshlrev_b32 v{vA}, {4 if wide else 2}, v1\ns_mov_b32 {sDelta}, 0\ns_mov_b32 s35, {LIM_FAST}')
    a.label(Lf)
    a(f'{ld} {vr(vD, w)}, v{vA}, {SWS}, {sF1} offen sc1')
    a.wait_all(lg=False)
    cmp(vD, sFast)
    a(f's_cbranch_vccnz {Lr}')
    a.label(Ld)
    a('s_mov_b64 exec, -1')
    def tail():
        a.label(Lr)
        a(f's_sub_u32 s35, s35, 1\ns_cmp_lg_u32 s35, 0\ns_cbranch_scc1 {Lf}')
        if republish:
            a('s_mov_b64 exec, -1')
            republish()
            a.wait_all(lg=False)
            a(f'''s_mov_b64 exec, 1
            v_mov_b32 v{vD}, {sOwn}
            v_mov_b32 v{vD+1}, {sTag}
            buffer_store_dword v{vD+1}, v{vD}, {SWS}, {sF2} offen sc0 sc1''')
            lanes(a, n)
        a(f's_mov_b32 s35, {LIM_SLOW}')
        a.label(Ls)
        a(f'{ld} {vr(vD, w)}, v{vA}, {SWS}, {sF1} offen sc1\n{ld} {vr(vE, w)}, v{vA}, {SWS}, {sF2} offen sc0 sc1')
        a.wait_all(lg=False)
        cmp(vD, sFast)
        a(f's_cbranch_vccz {Ld}')
        cmp(vE, sTag)
        a(f's_mov_b32 {sDelta}, {delta}\ns_cbranch_vccz {Ld}\ns_mov_b32 {sDelta}, 0\ns_sub_u32 s35, s35, 1\ns_cmp_lg_u32 s35, 0\ns_cbranch_scc1 {Ls}\ns_branch {Ld}')
    TAIL.append(tail)
def flag(a, sOff, sBase, sVal, vT, fl):
    a(f'''s_mov_b64 exec, 1
    v_mov_b32 v{vT}, {sOff}
    v_mov_b32 v{vT+1}, {sVal}
    buffer_store_dword v{vT+1}, v{vT}, {SWS}, {sBase} offen {fl}
    s_mov_b64 exec, -1''')
def gflag(a, sOff, sBase, vT):
    a(f'''s_mov_b64 exec, 15
    v_lshl_add_u32 v{vT}, v1, 4, {sOff}
    v_mov_b32 v{vT+2}, {sTag}
    v_mov_b32 v{vT+3}, {sTag}
    v_mov_b32 v{vT+4}, {sTag}
    v_mov_b32 v{vT+5}, {sTag}
    buffer_store_dwordx4 {vr(vT+2,4)}, v{vT}, {SWS}, {sBase} offen sc0 sc1
    s_mov_b64 exec, -1''')
def flag_w0(a, sOff, sBase, vT):
    L = a.newlabel('f0')
    a(f's_cmp_lg_u32 {sW}, 0\ns_cbranch_scc1 {L}')
    a.cond = True; gflag(a, sOff, sBase, vT); a.vm.pop(); a.cond = False
    a.label(L)
def tag_ready(a):
    a(f'''s_mul_i32 {sTag}, {sTag}, 0x9e3779b1
    s_add_u32 {sTag}, {sTag}, 0x7f4a7c15
    s_add_u32 {sFast}, {sFast}, {sTag}''')

LW34 = 102400
LSX = 147456
def wpoll(a):
    a(f'v_lshlrev_b32 v7, 7, v1\ns_mov_b32 s67, {GW}')
    gpoll(a, 64, 7, 's67', 33)
    stamp(a, 'Lwf')
def wcopy(a):
    a(f's_and_b32 s68, {sI}, 15\ns_mul_i32 s68, s68, 39936\ns_mul_i32 s34, {sW}, 10240\ns_add_u32 s68, s68, s34\ns_add_u32 s68, s68, {WS_W}\ns_add_u32 s34, s34, {LW34}')
    for i in range(10):
        if i % 4 == 0: a(f's_add_u32 m0, s34, {i*1024}' + ('\ns_add_u32 s68, s68, 4096' if i else ''))
        a(f'buffer_load_dwordx4 v10, {SWS}, s68 offen offset:{(i&3)*1024} sc1 lds')
def pages(a):
    a(f"""s_mov_b64 exec, 0xffff
    v_lshlrev_b32 v52, 20, v1
    buffer_load_dword v53, v52, {SWS}, 0 offen
    s_mov_b64 exec, 3
    buffer_load_dword v54, v52, {SOUT}, 0 offen
    s_mov_b64 exec, -1""")
def touch2(a):
    Lt = a.newlabel('tc'); Lu = a.newlabel('tc')
    a(f"""s_and_b32 s36, {sI}, 15
    s_lshr_b32 s37, {sI}, 4
    s_cmp_ge_u32 s36, 8
    s_cbranch_scc1 {Lt}
    s_lshl_b32 s34, {sXCD}, 4
    s_lshl_b32 s35, s37, 3
    s_add_u32 s34, s34, s35
    s_lshl_b32 s35, {sW}, 1
    s_add_u32 s34, s34, s35
    s_mul_i32 s34, s34, 13312
    s_mul_i32 s35, s36, 1536
    s_add_u32 s34, s34, s35
    s_add_u32 s34, s34, {WS_Q}
    s_add_u32 s35, s34, 13312""")
    for sb in ('s34', 's35'): a(f'buffer_load_dwordx4 v[64:67], v10, {SWS}, {sb} offen\ns_mov_b32 exec_hi, 0\nbuffer_load_dwordx4 v[64:67], v10, {SWS}, {sb} offen offset:1024\ns_mov_b32 exec_hi, -1')
    a(f's_branch {Lu}'); a.label(Lt)
    a(f"""s_lshl_b32 s34, {sW}, 1
    s_add_u32 s34, s34, s37
    s_lshl_b32 s35, {sXCD}, 3
    s_add_u32 s34, s34, s35
    s_mul_i32 s34, s34, 24576
    s_mul_i32 s35, s36, 3072
    s_add_u32 s34, s34, s35
    s_add_u32 s34, s34, {WS_VP - 8*3072}""")
    for u in range(3): a(f'buffer_load_dwordx4 v[64:67], v10, {SWS}, s34 offen offset:{u*1024}')
    a.label(Lu)
    a(f"""s_lshr_b32 s34, {sI}, 1
    s_lshl_b32 s35, {sXCD}, 4
    s_add_u32 s34, s34, s35
    s_mul_i32 s34, s34, 13312
    s_add_u32 s34, s34, {WS_Q + 12288}
    s_lshl_b32 s35, {sW}, 8
    v_lshl_add_u32 v68, v1, 2, s35
    buffer_load_dword v64, v68, {SWS}, s34 offen
    s_lshl_b32 s34, {sXCD}, 9
    s_add_u32 s34, s34, {FC1}
    v_lshlrev_b32 v68, 3, v1
    buffer_load_dword v64, v68, {SWS}, s34 offen""")
    a.vm = []

def build():
    a = Asm()
    def emit(x):
        if isinstance(x, tuple): a(x[0], tag=x[1])
        else: a(x)
    a(f'''s_cmp_ge_u32 s2, 256
    s_cbranch_scc1 K_end
    s_load_dwordx4 s[20:23], s[0:1], 0
    s_load_dwordx4 s[28:31], s[0:1], 16
    s_load_dwordx4 s[36:39], s[0:1], 32
    s_load_dwordx2 s[32:33], s[0:1], 56
    v_and_b32 v1, 63, v0
    v_lshrrev_b32 v2, 6, v0
    s_and_b32 {sXCD}, s2, 7
    v_readfirstlane_b32 {sW}, v2
    s_lshr_b32 {sI}, s2, 3''')
    stamp(a, 'start')
    if PROFILE and not HP: St.names['L'].append('Lstart')
    if HP:
        St.names['L'].append('Lstart')
        a('s_waitcnt lgkmcnt(0)')
        for r in STAMP_REGS[1:]: a(f's_mov_b32 s{r}, s70')
    a(f'''s_lshr_b32 {sRole}, {sW}, 2
    s_and_b32 {sW}, {sW}, 3
    v_lshrrev_b32 v2, 3, v1
    v_and_b32 v3, 7, v1
    v_lshlrev_b32 v10, 4, v1
    s_cmp_lt_u32 {sI}, 8
    {"s_cbranch_scc0 A_main" if opt("wfirst", 0) else "s_cbranch_scc1 K_pre"}''')
    markP = len(a.ins)
    a.label('A_main')
    def late_common(code):
        a(f'''s_lshl_b32 {sM1K}, {sW}, 10
        s_getreg_b32 {sFast}, hwreg(HW_REG_XCC_ID)
        s_and_b32 {sFast}, {sFast}, 15
        s_add_u32 {sFast}, {sFast}, 1''')
        if code:
            L = a.newlabel('pc')
            a('s_getpc_b64 s[48:49]')
            a.label(L)
            a(f'''s_sub_u32 s48, s48, {L}-{KNAME}
            s_subb_u32 s49, s49, 0
            s_lshl_b32 s34, {sI}, 2
            s_add_u32 s34, s34, {sW}
            s_and_b32 s34, s34, 31
            s_lshl_b32 s34, s34, 10
            v_lshl_add_u32 v9, v1, 4, s34
            global_load_dwordx4 v[252:255], v9, s[48:49]''')
    PRIO = opt('prio', 1)
    T8, G8, vL16 = 2, 3, 10
    sG, sJ, sP, sHF, sX, sM = 's50', 's51', 's52', 's53', 's54', 's55'
    sR = ['s56', 's57', 's58', 's59', 's60', 's61']
    ROT = opt('rot', 7)
    a(f'''s_sub_u32 {sJ}, {sI}, 8
    s_mul_i32 s34, {sJ}, 43
    s_lshr_b32 s34, s34, 8
    s_mul_i32 s35, s34, 6
    s_sub_u32 {sJ}, {sJ}, s35
    s_lshl_b32 {sG}, {sXCD}, 2
    s_add_u32 {sG}, {sG}, s34
    s_lshl_b32 {sM}, {sW}, 11''')
    def rot_r(dst):
        if ROT == 4: a(f's_mul_i32 {dst}, {sXCD}, 3\ns_lshr_b32 {dst}, {dst}, 2')
        elif ROT == 5: a(f's_add_u32 {dst}, {sXCD}, 4\ns_and_b32 {dst}, {dst}, 7\ns_mul_i32 {dst}, {dst}, 3\ns_lshr_b32 {dst}, {dst}, 2')
        elif ROT == 6: a(f's_and_b32 {dst}, {sG}, 1\ns_mul_i32 {dst}, {dst}, 4\ns_add_u32 {dst}, {dst}, {sXCD}\ns_and_b32 {dst}, {dst}, 7\ns_mul_i32 {dst}, {dst}, 3\ns_lshr_b32 {dst}, {dst}, 2')
        elif ROT == 7: a(f's_mul_i32 {dst}, {sXCD}, 3\ns_lshr_b32 {dst}, {dst}, 2\ns_add_u32 {dst}, {dst}, {sJ}\ns_cmp_ge_u32 {dst}, 6\ns_cselect_b32 s34, 6, 0\ns_sub_u32 {dst}, {dst}, s34')
        elif ROT == 8: a(f's_and_b32 {dst}, {sG}, 3\ns_add_u32 {dst}, {dst}, {sXCD}\ns_add_u32 {dst}, {dst}, {sJ}\ns_mul_i32 s34, {dst}, 43\ns_lshr_b32 s34, s34, 8\ns_mul_i32 s34, s34, 6\ns_sub_u32 {dst}, {dst}, s34')
    if ROT: rot_r('s3')
    a(f's_cmp_eq_u32 {sRole}, 0\ns_cbranch_scc1 A_c')
    markC0 = len(a.ins)
    a.label('A_c')
    if PRIO == 1: a('s_setprio 1')
    late_common(True)
    a(f's_lshr_b32 {sP}, {sW}, 1\ns_and_b32 {sHF}, {sW}, 1')
    XS = lambda c: c*8192
    WQ0 = 49152
    W2L = 49152
    vXF, vAW, vSst, vX1, vST, vRes, vBP, vBS, vW2, vW2b = 12, 16, 18, 19, 20, 21, 22, 23, 24, 25
    XF, WF, ACC, CS, MA, SEL, CA, CB = 160, 32, 64, 96, 104, 108, 112, 120
    sSst, sSld, sX1, sST, sFS1, sFS2, sOwn, sGX = 's56', 's57', 's58', 's59', 's60', 's61', 's62', 's63'
    a(f'''v_and_b32 v4, 31, v1
    v_lshrrev_b32 v5, 5, v1
    v_bfe_u32 v6, v1, 1, 3
    v_xor_b32 v6, v6, v5
    v_lshlrev_b32 v4, 7, v4
    v_lshl_add_u32 v4, v6, 4, v4
    s_lshl_b32 s35, {sP}, 12
    v_add_u32 v{vXF}, s35, v4
    v_xor_b32 v{vXF+1}, 32, v{vXF}
    v_xor_b32 v{vXF+2}, 64, v{vXF}
    v_xor_b32 v{vXF+3}, 96, v{vXF}
    v_bfe_u32 v6, v1, 2, 2
    v_lshl_add_u32 v4, v5, 3, v6
    v_lshlrev_b32 v4, 7, v4
    v_lshrrev_b32 v7, 1, v6
    v_xor_b32 v7, {sHF}, v7
    v_lshl_add_u32 v4, v7, 6, v4
    v_bfe_u32 v7, v1, 4, 1
    v_lshl_add_u32 v4, v7, 5, v4
    v_and_b32 v8, 1, v1
    v_lshl_add_u32 v4, v8, 4, v4
    v_bfe_u32 v8, v1, 1, 1
    v_lshl_add_u32 v4, v8, 3, v4
    v_add_u32 v{vAW}, {WQ0}, v4
    v_add_u32 v{vAW+1}, {WQ0 + 65536}, v4
    v_bfe_u32 v8, v1, 2, 1
    v_cmp_eq_u32 vcc, v8, v7
    v_mov_b32 v7, 0x3f803f80
    s_mov_b32 s34, {WE}
    s_waitcnt lgkmcnt(0)
    s_load_dword {sTag}, s[32:33], s34''')
    for k in range(4): a(f'v_cndmask_b32 v{SEL+k}, 0, v7, vcc')
    srd(a, 16, 32, WS_SIZE); srd(a, 24, 38, 1572864)
    a(f'''v_lshlrev_b32 v{vSst}, 9, v5
    v_lshl_add_u32 v{vSst}, v{G8}, 6, v{vSst}
    v_bfe_u32 v6, v1, 3, 2
    v_lshl_add_u32 v{vSst}, v6, 4, v{vSst}
    s_mul_i32 s34, {sG}, 24576
    s_lshl_b32 s35, {sP}, 10
    s_add_u32 s34, s34, s35
    s_add_u32 {sSld}, s34, {WS_S}
    s_lshl_b32 s35, {sJ}, 1
    s_add_u32 s35, s35, {sHF}
    s_lshl_b32 {sOwn}, s35, 2
    s_lshl_b32 s3{6}, s35, 11
    s_add_u32 {sSst}, {sSld}, s36
    s_lshl_b32 s34, {sG}, 1
    s_add_u32 s34, s34, {sP}
    s_lshl_b32 s34, s34, 7
    s_add_u32 {sFS1}, s34, {FS1}
    s_add_u32 {sFS2}, s34, {FS2}''')
    a(f'''v_bfe_u32 v6, v1, 2, 3
    v_and_b32 v7, 3, v1
    s_mov_b32 s34, 196608
    v_mul_lo_u32 v{vX1}, v6, s34
    v_lshl_add_u32 v{vX1}, v5, 8, v{vX1}
    v_lshl_add_u32 v{vX1}, v7, 4, v{vX1}
    v_mul_u32_u24 v{vST}, 49152, v6
    v_lshl_add_u32 v{vST}, v7, 4, v{vST}
    v_lshl_add_u32 v8, v7, 3, v6
    v_lshlrev_b32 v{vBP}, 2, v8
    v_lshlrev_b32 v{vBS}, 5, v7
    v_lshl_add_u32 v{vBS}, v5, 4, v{vBS}
    v_bfe_u32 v4, v8, 1, 3
    s_lshl_b32 s34, {sHF}, 2
    v_xor_b32 v4, s34, v4
    v_xor_b32 v4, v4, v5
    v_lshlrev_b32 v4, 4, v4
    v_lshl_add_u32 v4, v8, 7, v4''')
    if ROT: a(f's_add_u32 s34, {sJ}, 6\ns_sub_u32 s34, s34, s3\ns_cmp_ge_u32 s34, 6\ns_cselect_b32 s36, 6, 0\ns_sub_u32 s34, s34, s36\ns_lshl_b32 s34, s34, 13')
    else: a(f's_lshl_b32 s34, {sJ}, 13')
    a(f'''s_lshl_b32 s36, {sP}, 12
    s_add_u32 s34, s34, s36
    v_add_u32 v{vRes}, s34, v4
    s_lshl_b32 s34, {sHF}, 10
    s_add_u32 s34, s34, {W2L}
    v_add_u32 v{vW2}, s34, v{vL16}
    v_and_b32 v4, 31, v1
    v_lshlrev_b32 v4, 2, v4
    s_lshl_b32 s34, {sHF}, 7
    s_add_u32 s34, s34, {W2L + 49152}
    v_add_u32 v4, s34, v4
    v_lshl_add_u32 v{vW2b}, v5, 10, v4
    v_add_u32 v{vW2b+1}, 2048, v4
    s_lshr_b32 s34, {sG}, 1
    s_mul_i32 s34, s34, 12288
    s_lshl_b32 s36, s35, 10
    s_add_u32 s34, s34, s36
    s_and_b32 s36, {sG}, 1
    s_lshl_b32 s36, s36, 7
    s_add_u32 s34, s34, s36
    s_lshl_b32 s36, {sP}, 6
    s_add_u32 s34, s34, s36
    s_add_u32 {sX1}, s34, {WS_X1}
    s_lshl_b32 s34, s35, 12
    s_add_u32 s34, s34, s36
    s_lshl_b32 s36, {sG}, 7
    s_add_u32 s34, s34, s36
    s_add_u32 {sST}, s34, {WS_ST}
    s_mul_i32 s34, {sG}, 6
    s_add_u32 s34, s34, {sJ}
    s_lshl_b32 {sGX}, s34, 7
    s_mov_b32 s38, {fbits(-1/384)}
    s_mov_b32 s36, 0xffff0000
    s_mov_b32 s64, -1
    s_mov_b32 s65, 0
    s_mov_b32 s66, 0xff00ff00
    s_mov_b32 s67, 0xff00ff00
    s_mov_b32 s68, 0xffff0000
    s_mov_b32 s69, 0xffff0000''')
    for r in range(CA, CA + 8):
        if (r - CA) % 4: a(f'v_mov_b32 v{r}, 0')
    a('s_waitcnt lgkmcnt(0)')
    tag_ready(a)
    a('s_barrier')
    stamp(a, 'mm0')
    def rd(ks):
        c, k4 = ks >> 2, ks & 3
        a(f'ds_read_b128 {vr(XF+4*ks,4)}, v{vXF+k4} offset:{XS(c)}', tag=f'f{ks}')
        return [(c, k4, P) for P in range(2)]
    def trd(ks, P):
        c, k4 = ks >> 2, ks & 3
        off = c*16384 + P*8192 + k4*2048
        base = vAW + (off >> 16); off &= 0xffff
        d = WF + (ks % 3)*8 + P*4
        a(f'ds_read_b64_tr_b16 {vr(d,2)}, v{base} offset:{off}\nds_read_b64_tr_b16 {vr(d+2,2)}, v{base} offset:{off+512}', tag=f'f{ks}')
    def pre(ks, part):
        if part == 0: rd(ks); trd(ks, 0)
        else: trd(ks, 1)
    for ks in range(2): pre(ks, 0); pre(ks, 1)
    def m16(d, b, first): a(f'v_mfma_f32_16x16x32_bf16 {vr(d,4)}, {vr(SEL,4)}, {b}, {"0" if first else vr(d,4)}')
    for ks in range(24):
        bar = (ks & 3) == 3 and ks < 23
        if bar:
            if ks == 15: a.wait_all(lg=False)
            a('s_barrier')
            if ks in (7, 15, 19): stamp(a, f'c{(ks+1)>>2}')
            pre(ks + 1, 0); pre(ks + 1, 1)
        a.wait(lg=f'f{ks}')
        wf = lambda P: vr(WF + (ks % 3)*8 + P*4, 4)
        main = lambda P: a(f'v_mfma_f32_32x32x16_bf16 {vr(ACC+16*P,16)}, {wf(P)}, {vr(XF+4*ks,4)}, {"0" if ks == 0 else vr(ACC+16*P,16)}')
        nx = ks + 2 if (ks & 3) != 2 and ks + 2 < 24 else None
        if ks < 23:
            for P in range(2):
                main(P)
                if nx: pre(nx, P)
                m16(CS + 4*P, wf(P), ks == 0)
            m16(MA, vr(XF+4*ks, 4), ks == 0)
        else:
            m16(MA, vr(XF+4*ks, 4), False)
            for P in range(2): m16(CS + 4*P, wf(P), False)
            main(0)
            main(1)
            a(f'''v_mul_f32 v{MA}, s38, v{MA}
            v_cvt_pk_bf16_f32 v{CA}, v{CS}, v{CS}
            v_cvt_pk_bf16_f32 v{CA+4}, v{CS+4}, v{CS+4}
            v_cvt_pk_bf16_f32 v{MA+1}, v{MA}, v{MA}
            v_and_b32 v{CA}, s36, v{CA}
            v_and_b32 v{CA+4}, s36, v{CA+4}
            v_cndmask_b32 v{CB}, 0, v{MA+1}, s[64:65]
            v_sub_f32 v{CA}, v{CS}, v{CA}
            v_sub_f32 v{CA+4}, v{CS+4}, v{CA+4}
            v_mov_b32 v{CB+1}, v{CB}
            v_cvt_pk_bf16_f32 v{CA}, v{CS}, v{CA}
            v_cvt_pk_bf16_f32 v{CA+4}, v{CS+4}, v{CA+4}
            v_mov_b32 v{CB+2}, v{CB}
            v_mov_b32 v{CB+3}, v{CB}''')
            for P in range(2): a(f'v_mfma_f32_32x32x16_bf16 {vr(ACC+16*P,16)}, {vr(CA+4*P,4)}, {vr(CB,4)}, {vr(ACC+16*P,16)}')
    stamp(a, 'mmend')
    PQ, PK, SC, SS, SQ, CM = 32, 40, 64, 96, 100, 124
    a(f'v_mov_b32 v{SQ}, 0\nv_mov_b32 v{SQ+1}, 0')
    for k in range(4): a(f'v_mov_b32 v{CM+k}, v{MA+1}')
    for P, d in ((0, PQ), (1, PK)):
        for i in range(8): a(f'v_cvt_pk_bf16_f32 v{d+i}, v{ACC+16*P+2*i}, v{ACC+16*P+2*i+1}')
    a(f'v_mfma_f32_32x32x16_bf16 {vr(SC,16)}, {vr(PK,4)}, {vr(PQ,4)}, 0')
    a(f'v_mfma_f32_32x32x16_bf16 {vr(SC,16)}, {vr(PK+4,4)}, {vr(PQ+4,4)}, {vr(SC,16)}')
    RAW = 48
    a(f'v_xor_b32 v4, 32, v{vRes}\nds_read_b128 {vr(RAW,4)}, v{vRes}\nds_read_b128 {vr(RAW+4,4)}, v4', tag='raw')
    for e in range(4): a(f'v_cndmask_b32 v{SC+e}, v{SC+e}, v{SC+4+e}, s[66:67]\nv_cndmask_b32 v{SC+8+e}, v{SC+8+e}, v{SC+12+e}, s[66:67]')
    for e in range(4): a(f'v_cndmask_b32 v{SS+e}, v{SC+e}, v{SC+8+e}, s[68:69]')
    a(f'buffer_store_dwordx4 {vr(SS,4)}, v{vSst}, {SWS}, {sSst} offen {WT if opt("swt", 0) else ""}')
    stamp(a, 'stored')
    ND0 = opt('nd0', 72)
    for i in range(ND0): a(f'v_dot2c_f32_bf16 v{SQ+(i&1)}, v{XF+i}, v{XF+i}')
    a.wait_all(lg=False)
    flag(a, sOwn, sFS1, sFast, 4, '')
    stamp(a, 'flag')
    for i in range(ND0, 96): a(f'v_dot2c_f32_bf16 v{SQ+(i&1)}, v{XF+i}, v{XF+i}')
    RR, RES = 56, 80
    a(f'''s_mov_b32 s37, {fbits(1e-5)}
    v_mul_f32 v{SQ+2}, v{MA}, v{MA}
    v_add_u32 v5, 4, v{vBS}
    v_add_f32 v{SQ}, v{SQ}, v{SQ+1}
    v_mov_b32 v{SQ+1}, v{SQ}
    v_add_u32 v6, 8, v{vBS}
    v_add_u32 v7, 12, v{vBS}
    v_permlane32_swap_b32 v{SQ}, v{SQ+1}
    v_add_f32 v{SQ}, v{SQ}, v{SQ+1}
    v_fma_f32 v{SQ}, -v{SQ}, s38, -v{SQ+2}
    v_max_f32 v{SQ}, 0, v{SQ}
    v_add_f32 v{SQ}, s37, v{SQ}
    v_rsq_f32 v{SQ}, v{SQ}''')
    a(f'ds_bpermute_b32 v{RR+4}, v{vBP}, v{SQ}\nds_bpermute_b32 v{RR}, v{vBS}, v{SQ}', tag='bp')
    for e in range(1, 4): a(f'ds_bpermute_b32 v{RR+e}, v{4+e}, v{SQ}', tag='bp')
    a.wait(lg='raw')
    for d in range(8): a(f'v_lshlrev_b32 v{RES+2*d}, 16, v{RAW+d}\nv_and_b32 v{RES+2*d+1}, s36, v{RAW+d}')
    a.wait(lg='bp')
    a(f'v_mul_f32 v{RR+4}, {fbits(SCALE2)}, v{RR+4}')
    def repubA():
        a(f's_add_u32 s34, {sSst}, {SLOW}\nbuffer_store_dwordx4 {vr(SS,4)}, v{vSst}, {SWS}, s34 offen sc0 sc1')
    lsync(a, 12, False, sFS1, sFS2, sOwn, (lambda: None) if opt('swt', 0) else repubA, 32, 0 if opt('swt', 0) else SLOW)
    stamp(a, 'synced')
    SP, Y, WR = 112, 64, 32
    SPR = [128, 132, 136, 140, 144, 148, 152, 156, 112, 116, 96, 100]
    S0 = SPR[0]; T0 = SPR[1]
    sm = []
    def w2rd(ks):
        if ks < 24: a(f'ds_read_b128 {vr(WR+4*(ks%6),4)}, v{vW2} offset:{ks*2048}', tag=f'y{ks}')
        else:
            for k in range(2): a(f'ds_read2st64_b32 {vr(WR+4*(ks%6)+2*k,2)}, v{vW2b+ks-24} offset0:{2*k} offset1:{2*k+1}', tag=f'y{ks}')
    YH = opt('yh', 8)
    def ystep(ks, lim=26):
        a.wait(lg=f'y{ks}')
        xa = vr(XF+4*ks, 4) if ks < 24 else vr(CM if ks == 24 else CB, 4)
        a(f'v_mfma_f32_32x32x16_bf16 {vr(Y,16)}, {xa}, {vr(WR+4*(ks%6),4)}, {"0" if ks == 0 else vr(Y,16)}')
        if ks + 5 < lim: w2rd(ks + 5)
    a(f's_add_u32 {sSld}, {sSld}, {sDelta}\ns_mul_i32 s34, {sHF}, 12288\ns_add_u32 {sSld}, {sSld}, s34')
    for i in range(6):
        if i and i % 2 == 0: a(f's_add_u32 {sSld}, {sSld}, 4096')
        a(f'buffer_load_dwordx4 {vr(SPR[i],4)}, v{vL16}, {SWS}, {sSld} offen offset:{(i&1)*2048} sc1', tag=f's{i}')
    a(f's_add_u32 s34, {sM1K}, {LSX}\nv_add_u32 v4, s34, v{vL16}\nv_xor_b32 v5, 1024, v4')
    for i in range(1, 6):
        a.wait(vm=f's{i}')
        for d in (0, 2): a(f'v_pk_add_f32 {vr(S0+d,2)}, {vr(S0+d,2)}, {vr(SPR[i]+d,2)}')
    a(f'ds_write_b128 v4, {vr(S0,4)}\ns_waitcnt lgkmcnt(0)'); a.lg = []
    stamp(a, 'ssum')
    a('s_barrier')
    stamp(a, 'w2h')
    a(f'ds_read_b128 {vr(T0,4)}, v5', tag='sx')
    sm.append(('l', 'sx'))
    for d in range(4): sm.append(f'v_add_f32 v{S0+d}, v{S0+d}, v{T0+d}')
    for ks in range(5): w2rd(ks)
    for d in range(4): sm.append(f'v_mul_f32 v{S0+d}, v{S0+d}, v{RR+d}')
    sm += [f'v_max_f32 v{T0}, v{S0}, v{S0+1}', f'v_max3_f32 v{T0}, v{T0}, v{S0+2}, v{S0+3}', f'v_mov_b32 v{T0+1}, v{T0}', 's_mov_b32 s64, 0x11111111', 's_mov_b32 s65, 0x11111111',
           f'v_permlane32_swap_b32 v{T0}, v{T0+1}', f'v_max_f32 v{T0}, v{T0}, v{T0+1}', f'v_mul_f32 v{T0}, v{RR+4}, v{T0}']
    for d in range(4): sm.append(f'v_fma_f32 v{S0+d}, v{S0+d}, v{RR+4}, -v{T0}')
    for d in range(4): sm.append(f'v_exp_f32 v{S0+d}, v{S0+d}')
    sm += [f'v_add_f32 v{T0}, v{S0}, v{S0+1}', f'v_add_f32 v{T0+1}, v{S0+2}, v{S0+3}', f'v_add_f32 v{T0}, v{T0}, v{T0+1}', f'v_mov_b32 v{T0+1}, v{T0}']
    sm += [f'v_mul_f32 v{S0+d}, v{S0+d}, v{RR+d}' for d in range(2)] + [f'v_permlane32_swap_b32 v{T0}, v{T0+1}', f'v_add_f32 v{T0}, v{T0}, v{T0+1}', f'v_rcp_f32 v{T0}, v{T0}']
    sm += [f'v_mul_f32 v{S0+d}, v{S0+d}, v{RR+d}' for d in range(2, 4)]
    for d in range(4): sm.append(f'v_mul_f32 v{S0+d}, v{S0+d}, v{T0}')
    PB = 136
    sm += [f'v_cvt_pk_bf16_f32 v{T0}, v{S0}, v{S0+1}', f'v_cvt_pk_bf16_f32 v{T0+1}, v{S0+2}, v{S0+3}']
    for b in range(4):
        sm += [f'v_cndmask_b32 v{PB+2*b}, 0, v{T0}, s[64:65]', f'v_cndmask_b32 v{PB+2*b+1}, 0, v{T0+1}, s[64:65]']
        if b < 3: sm.append('s_lshl_b64 s[64:65], s[64:65], 1')
    S2 = 104
    sm += [f'v_mov_b32 v{S2}, 0', f'v_mov_b32 v{S2+1}, 0', 's_mov_b32 s36, 0x3f803f80']
    def drain(n):
        while n > 0 and sm:
            x = sm.pop(0)
            if isinstance(x, tuple): a.wait(vm=x[1]) if x[0] == 'w' else a.wait(lg=x[1])
            else: a(x); n -= 1
    YS = [YH] + ([opt('yh2', 18)] if opt('yh2', 18) > YH else []) + [26]
    stage = 0
    for ks in range(26):
        if stage + 1 < len(YS) and ks == YS[stage] - opt('ybe', 2):
            a('s_barrier')
            stage += 1
            if stage + 1 == len(YS): stamp(a, 'w2in')
            for k in range(YS[stage-1], ks + 5): w2rd(k)
        ystep(ks, YS[stage])
        if ks >= 1: drain(opt('ydr', 6))
    drain(1000)
    stamp(a, 'ygemm')
    YP, XO = 144, 152
    for i in range(8): a(f'v_cvt_pk_bf16_f32 v{YP+i}, v{Y+2*i}, v{Y+2*i+1}')
    for k in range(2): a(f'v_mfma_f32_32x32x16_bf16 {vr(RES,16)}, {vr(YP+4*k,4)}, {vr(PB+4*k,4)}, {vr(RES,16)}')
    for i in range(8): a(f'v_cvt_pk_bf16_f32 v{XO+i}, v{RES+2*i}, v{RES+2*i+1}')
    a(f'buffer_store_dwordx4 {vr(XO,4)}, v{vX1}, {SWS}, {sX1} offen {WT}')
    a(f'buffer_store_dwordx4 {vr(XO+4,4)}, v{vX1}, {SWS}, {sX1} offen offset:512 {WT}')
    for i in range(8): a(f'v_dot2c_f32_bf16 v{S2}, s36, v{XO+i}\nv_dot2c_f32_bf16 v{S2+1}, v{XO+i}, v{XO+i}')
    a(f'''v_mov_b32 v{S2+2}, v{S2}
    v_mov_b32 v{S2+3}, v{S2+1}
    v_permlane32_swap_b32 v{S2}, v{S2+2}
    v_permlane32_swap_b32 v{S2+1}, v{S2+3}
    v_add_f32 v{S2}, v{S2}, v{S2+2}
    v_add_f32 v{S2+1}, v{S2+1}, v{S2+3}
    s_mov_b32 exec_hi, 0
    buffer_store_dwordx4 {vr(S2,4)}, v{vST}, {SWS}, {sST} offen {WT}
    s_mov_b32 exec_hi, -1
    s_mov_b32 s34, {GX}''')
    stamp(a, 'x1st')
    a.wait_all()
    a('s_barrier')
    flag_w0(a, sGX, 's34', 32)
    stamp(a, 'x1pub')
    a('s_branch P2_c')
    markL0 = len(a.ins)
    a.vm = []; a.lg = []
    stamp(a, 'Larr1')
    if PRIO == 2: a('s_setprio 1')
    vW, vXs, vP = 32, 36, 38
    sRx = ['s62', 's63', 's64', 's65', 's66', 's67']
    a(f'''s_mov_b32 s35, 196608
    v_mul_lo_u32 v{vXs}, v{T8}, s35
    v_lshrrev_b32 v4, 1, v{T8}
    v_xor_b32 v4, v4, v{G8}
    v_lshl_add_u32 v{vXs}, v4, 4, v{vXs}
    v_xor_b32 v{vXs+1}, 64, v{vXs}
    v_add_u32 v{vXs+1}, 768, v{vXs+1}
    s_lshl_b32 s34, {sG}, 3
    s_lshl_b32 s35, {sW}, 1
    s_add_u32 s34, s34, s35
    s_mul_i32 {sX}, s34, 768
    v_lshlrev_b32 v4, 1, v{T8}
    v_and_b32 v4, 4, v4
    v_xor_b32 v4, v4, v{G8}
    v_mul_u32_u24 v{vW}, 2304, v{T8}
    v_lshl_add_u32 v{vW}, v4, 4, v{vW}
    s_mul_i32 s68, {sW}, {16*2304}
    s_lshl_b32 s34, {sJ}, 7
    s_add_u32 s68, s68, s34''')
    for k in range(1, 4): a(f'v_add_u32 v{vW+k}, {(k>>1)*768 + (k&1)*18432}, v{vW}')
    def offs(i):
        if i: a('s_add_u32 s3, s3, 1\ns_cmp_ge_u32 s3, 6\ns_cselect_b32 s3, 0, s3')
        a(f's_lshl_b32 s34, s3, 7\ns_add_u32 {sRx[i]}, s34, {sX}\ns_mul_i32 s34, s3, 147456\ns_add_u32 {sR[i]}, s34, s68')
    offs(0)
    a('s_mov_b32 s6, 1572864\ns_mov_b32 s7, 0x20000\ns_mov_b32 s10, 884736\ns_mov_b32 s11, 0x20000\ns_waitcnt lgkmcnt(0)')
    a('s_mov_b32 s4, s20\ns_mov_b32 s5, s21\ns_mov_b32 s8, s22\ns_mov_b32 s9, s23')
    def wdma(c):
        for th in range(2):
            a(f's_add_u32 m0, {sM}, {XS(c) + th*1024}\nbuffer_load_dwordx4 v{vXs+th}, {SX}, {sRx[c]} offen lds', tag=f'w{c}')
        for k in range(4):
            a(f's_add_u32 m0, {sM}, {WQ0 + c*16384 + (k>>1)*8192 + (k&1)*1024}\nbuffer_load_dwordx4 v{vW+k}, {SWQ}, {sR[c]} offen lds', tag=f'w{c}')
    stamp(a, 'Lgo1')
    NL = opt('nl', 2)
    for c in range(NL):
        wdma(c)
        offs(c + 1)
    a(f's_mov_b32 s34, {WE}\ns_load_dword {sTag}, s[32:33], s34')
    for i in range(NL + 1, 6): offs(i)
    srd(a, 16, 32, WS_SIZE); srd(a, 24, 38, 1572864)
    late_common(False)
    a(f'''v_mul_u32_u24 v{vP}, 768, v1
    s_lshl_b32 s34, {sJ}, 7
    s_add_u32 s68, s34, {GW2}
    s_mul_i32 s69, {sJ}, 53248
    s_add_u32 s69, s69, {WS_W2}
    s_waitcnt lgkmcnt(0)''')
    tag_ready(a)
    def progress():
        L = a.newlabel('pg')
        a(f's_cmp_lg_u32 {sI}, 8\ns_cbranch_scc1 {L}\ns_cmp_lg_u32 {sW}, 0\ns_cbranch_scc1 {L}')
        a.cond = True
        a(f's_lshl_b32 s34, {sXCD}, 7\ns_mov_b32 s35, {FP}'); flag(a, 's34', 's35', sFast, 52, ''); a.vm.pop()
        a.cond = False
        a.label(L)
    if opt('prg', 9) == 9: progress()
    for c in range(6):
        a.wait(vm=f'w{c}')
        if c in (0, 3, 5): stamp(a, f'L{c}')
        a('s_barrier')
        if c + NL < 6: wdma(c + NL)
        if c == opt('prg', 9): progress()
        if c == opt('tlb', -1): pages(a)
        if c == opt('tpos', 3) and opt('touch', 1):
            a(f'''s_mul_i32 s34, {sG}, 24576
            s_lshl_b32 s35, {sJ}, 12
            s_add_u32 s34, s34, s35
            s_add_u32 s34, s34, {WS_S}
            s_add_u32 s34, s34, {sM1K}
            {"" if opt("swt", 0) else f"buffer_load_dwordx4 v[44:47], v{vL16}, {SWS}, s34 offen"}
            s_lshl_b32 s34, {sG}, 8
            s_add_u32 s34, s34, {FS1}
            v_lshlrev_b32 v48, 2, v1
            buffer_load_dword v49, v48, {SWS}, s34 offen
            s_lshl_b32 s34, {sXCD}, 9
            s_add_u32 s34, s34, {FC1}
            v_lshlrev_b32 v48, 3, v1
            buffer_load_dword v50, v48, {SWS}, s34 offen''')
    a(f's_mul_i32 s20, {sW}, 3')
    if ROT: rot_r('s3'); a('s_lshl_b32 s3, s3, 1\ns_add_u32 s3, s3, s20')
    else: a('s_mov_b32 s3, s20')
    a(f's_lshl_b32 s20, s20, 12\ns_add_u32 s20, s20, {W2L}')
    for k in range(3):
        a(f's_cmp_ge_u32 s3, 12\ns_cselect_b32 s34, 12, 0\ns_sub_u32 s3, s3, s34\ns_lshl_b32 s34, s3, 12\ns_add_u32 s{21+k}, s69, s34\ns_add_u32 s3, s3, 1')
    a(f's_add_u32 s69, s69, 49152\ns_add_u32 s69, s69, {sM1K}')
    if opt('tp', 9) == 0: touch2(a)
    if opt('w21', 1):
        a(f's_cmp_lg_u32 {sW}, 0\ns_cbranch_scc1 A_ld2')
        gpoll(a, 4, vP, 's68', 40)
        stamp(a, 'Lw2f')
        a(f's_sub_u32 s69, s69, 49152')
        for gi in range(13):
            if gi == 12: a(f's_add_u32 s68, s69, 49152')
            elif gi == 0: a('s_mov_b32 s68, s21\ns_sub_u32 s3, s21, s69')
            elif gi % 2 == 0: a('s_add_u32 s3, s3, 8192\ns_cmp_ge_u32 s3, 49152\ns_cselect_b32 s3, 0, s3\ns_add_u32 s68, s69, s3')
            else: a('s_add_u32 s68, s68, 4096')
            a(f's_mov_b32 m0, {W2L + gi*4096}')
            for k in range(4 if gi < 12 else 3): a(f'buffer_load_dwordx4 v{vL16}, {SWS}, s68 offen offset:{k*1024} sc1 lds', tag=f'h{gi}')
        if opt('yh', 8): a.wait(vm=f'h{opt("yh", 8)//2 - 1}')
        if opt('yh2', 18) > opt('yh', 8):
            a('s_barrier'); a.wait(vm=f'h{opt("yh2", 18)//2 - 1}'); a('s_branch A_ld3')
            a.label('A_ld2')
            a('s_barrier')
            a.label('A_ld3')
        else: a.label('A_ld2')
        a('s_barrier')
    else:
        gpoll(a, 4, vP, 's68', 40)
        stamp(a, 'Lw2f')
        for k in range(3):
            a(f's_add_u32 m0, s20, {k*4096}')
            for q in range(4): a(f'buffer_load_dwordx4 v{vL16}, {SWS}, s{21+k} offen offset:{q*1024} sc1 lds')
        a(f's_add_u32 m0, {sM1K}, {W2L + 49152}\nbuffer_load_dwordx4 v{vL16}, {SWS}, s69 offen sc1 lds')
    a.wait_all()
    stamp(a, 'Lw2')
    a('s_barrier\n' + ('' if opt('pbx', 0) else 's_barrier\n') + 's_branch P2_l')
    markL1 = len(a.ins)
    a.ins[markC0:markL1] = a.ins[markL0:markL1] + a.ins[markC0:markL0]
    markK = len(a.ins)
    a.label('K_pre'); a.vm = []; a.lg = []
    sS8, sIt, sJt, sA, sB, sMm, sT0, sLA, sLB = 's50', 's51', 's52', 's53', 's54', 's55', 's56', 's57', 's58'
    a(f'''s_mov_b32 {sS8}, {sI}
    s_and_b32 s59, {sXCD}, 1
    s_lshr_b32 s60, {sXCD}, 1
    s_cmp_ge_u32 {sS8}, 3
    s_cbranch_scc1 W_id0
    s_mov_b32 {sMm}, 2
    s_mov_b32 {sIt}, s60
    s_mul_i32 {sJt}, s59, 3
    s_add_u32 {sJt}, {sJt}, {sS8}
    s_cmp_eq_u32 {sRole}, 0
    s_cbranch_scc1 W_id2''')
    markW0 = len(a.ins)
    a.label('W_id2')
    a(f'''s_mul_i32 s49, {sXCD}, 3
    s_add_u32 s49, s49, {sS8}
    s_add_u32 s49, s49, 36
    s_branch W_id1''')
    a.label('W_id0')
    a(f'''s_mul_i32 s35, s60, 9
    s_mul_i32 s61, s59, 5
    s_add_u32 s35, s35, s61
    s_add_u32 s35, s35, {sS8}
    s_sub_u32 s35, s35, 3
    s_mul_i32 s61, s35, 43
    s_lshr_b32 s61, s61, 8
    s_mul_i32 s62, s61, 6
    s_sub_u32 {sJt}, s35, s62
    s_cmp_ge_u32 s61, 3
    s_cselect_b32 {sMm}, 1, 0
    s_mul_i32 s62, {sMm}, 3
    s_sub_u32 {sIt}, s61, s62
    s_add_u32 s62, {sS8}, s59
    s_add_u32 s49, s60, 60
    s_cmp_ge_u32 s62, 8
    s_cselect_b32 {sMm}, 3, {sMm}
    s_cselect_b32 s49, s49, s35''')
    a.label('W_id1')
    a(f's_mov_b32 s58, s49')
    late_common(True)
    a(f'''s_mov_b32 s49, s58
    s_mov_b32 s34, {WE}
    s_waitcnt lgkmcnt(0)
    s_load_dword {sTag}, s[32:33], s34''')
    srd(a, 16, 32, WS_SIZE); srd(a, 24, 38, 1572864)
    a(f'''s_cmp_eq_u32 {sMm}, 3
    s_cbranch_scc1 W_done
    s_cmp_lg_u32 {sRole}, 0
    s_cbranch_scc1 W_ld''')
    BB = 98304
    FA, FB, AC = 32, 48, 128
    vAr, vBr = 14, 18
    a(f'''v_and_b32 v2, 31, v1
    v_lshrrev_b32 v3, 5, v1
    v_and_b32 v4, 19, v2
    v_bfe_u32 v5, v2, 2, 1
    v_lshl_add_u32 v4, v5, 3, v4
    v_bfe_u32 v5, v2, 3, 1
    v_lshl_add_u32 v4, v5, 2, v4
    v_lshrrev_b32 v5, 3, v4
    v_mul_u32_u24 v5, 6144, v5
    v_and_b32 v6, 7, v4
    v_lshl_add_u32 v5, v6, 7, v5
    v_bfe_u32 v6, v4, 1, 3
    v_xor_b32 v6, v6, v3
    v_lshl_add_u32 v11, v6, 4, v5
    v_bfe_u32 v6, v1, 2, 2
    v_lshl_add_u32 v4, v3, 3, v6
    v_lshlrev_b32 v4, 7, v4
    v_lshrrev_b32 v7, 1, v6
    v_lshl_add_u32 v4, v7, 6, v4
    v_bfe_u32 v7, v1, 4, 1
    v_lshl_add_u32 v12, v7, 5, v4
    s_mov_b32 s37, 0x3f803f80''')
    def a_addr(swave):
        a(f's_mul_i32 s34, {swave}, 24576\nv_add_u32 v{vAr}, s34, v11')
        for k in range(1, 4): a(f'v_xor_b32 v{vAr+k}, {32*k}, v{vAr}')
    def stages(nv, breads):
        def rd(jj, k4):
            o = (jj & 1)*48*opt('ppipe', 1)
            a(f'ds_read_b128 {vr(FA+o+4*k4,4)}, v{vAr+k4} offset:{jj*1024}', tag=f'r{k4}')
            for v in range(nv): breads(jj, k4, v, FB + o + (k4*2+v)*4)
        def mm(jj, k4):
            o = (jj & 1)*48*opt('ppipe', 1)
            for v in range(nv):
                cin = '0' if (jj == 0 and k4 == 0) else vr(AC+16*v, 16)
                a(f'v_mfma_f32_32x32x16_bf16 {vr(AC+16*v,16)}, {vr(FA+o+4*k4,4)}, {vr(FB+o+(k4*2+v)*4,4)}, {cin}')
        for jj in range(6):
            a('s_barrier')
            if opt('ppipe', 1) and jj and jj <= opt('plast', 5):
                rd(jj, 0); mm(jj - 1, 2); rd(jj, 1); mm(jj - 1, 3); rd(jj, 2); rd(jj, 3)
            else:
                for k4 in range(4): rd(jj, k4)
            last = 4 if (jj >= opt('plast', 5) or not opt('ppipe', 1)) else 2
            for k4 in range(last):
                a.wait(lg=f'r{k4}'); mm(jj, k4)
            if last == 2: a.wait(lg='r3')
    def btr(jj, k4, v, d):
        o = jj*8192 + k4*2048
        a(f'ds_read_b64_tr_b16 {vr(d,2)}, v{vBr+v} offset:{o}\nds_read_b64_tr_b16 {vr(d+2,2)}, v{vBr+v} offset:{o+512}', tag=f'r{k4}')
    def brow(jj, k4, v, d): a(f'ds_read_b128 {vr(d,4)}, v{vBr+k4} offset:{v*24576+jj*1024}', tag=f'r{k4}')
    def colsum(v, src, dst):
        a(f'v_mov_b32 v24, 0')
        for i in range(8): a(f'v_dot2c_f32_bf16 v24, s37, v{src+i}')
        a(f'''v_mov_b32 v26, v24
        v_permlane32_swap_b32 v24, v26
        v_add_f32 v26, v26, v24
        v_cvt_pk_bf16_f32 v27, v26, v26
        v_lshlrev_b32 v27, 16, v27
        v_sub_f32 v27, v26, v27
        v_cvt_pk_bf16_f32 v{dst}, v26, v27''')
    def colsum2():
        a('v_mov_b32 v24, 0\nv_mov_b32 v25, 0')
        for i in range(8): a(f'v_dot2c_f32_bf16 v24, s37, v{32+i}\nv_dot2c_f32_bf16 v25, s37, v{40+i}')
        a('''v_mov_b32 v26, v24
        v_mov_b32 v27, v25
        v_permlane32_swap_b32 v24, v26
        v_permlane32_swap_b32 v25, v27
        v_add_f32 v24, v26, v24
        v_add_f32 v25, v27, v25
        v_cvt_pk_bf16_f32 v26, v24, v24
        v_cvt_pk_bf16_f32 v27, v25, v25
        v_lshlrev_b32 v26, 16, v26
        v_lshlrev_b32 v27, 16, v27
        v_sub_f32 v26, v24, v26
        v_sub_f32 v27, v25, v27
        v_cvt_pk_bf16_f32 v28, v24, v26
        v_cvt_pk_bf16_f32 v29, v25, v27''')
    a_addr(sW)
    a(f's_cmp_lg_u32 {sMm}, 2\ns_cbranch_scc1 W_c0')
    a(f'''s_min_u32 s59, {sW}, 2''')
    a_addr('s59')
    a(f'''v_and_b32 v7, 1, v1
    v_lshl_add_u32 v4, v7, 4, v12
    v_bfe_u32 v7, v1, 1, 1
    v_lshl_add_u32 v4, v7, 3, v4
    v_add_u32 v{vBr}, {BB}, v4
    v_xor_b32 v{vBr+1}, 64, v{vBr}
    s_mul_i32 s34, {sIt}, 3
    s_add_u32 s34, s34, s59
    s_mul_i32 s35, {sJt}, 53248
    s_add_u32 s35, s35, {WS_W2}
    s_lshl_b32 s36, s34, 12
    s_add_u32 s61, s35, s36
    s_lshl_b32 s36, s34, 8
    s_add_u32 s35, s35, s36
    s_add_u32 s62, s35, 49152
    v_lshlrev_b32 v30, 2, v1
    s_mul_i32 s63, {sIt}, 6
    s_add_u32 s63, s63, {sJt}
    s_lshl_b32 s63, s63, 7
    s_mov_b32 s64, {GW2}''')
    if opt('w3i', 1):
        a(f's_cmp_eq_u32 {sW}, 3\ns_cbranch_scc1 W_c5')
        def w3idle():
            a.label('W_c5'); a('s_barrier\n'*6 + 's_branch W_c4')
        TAIL.append(w3idle)
    stages(2, btr)
    stamp(a, 'pst')
    if not opt('w3i', 1): a(f's_cmp_eq_u32 {sW}, 3\ns_cbranch_scc1 W_c4')
    for v in range(2):
        for i in range(8): a(f'v_cvt_pk_bf16_f32 v{32+8*v+i}, v{AC+16*v+2*i}, v{AC+16*v+2*i+1}')
        a(f'buffer_store_dwordx4 {vr(32+8*v,4)}, v{vL16}, {SWS}, s61 offen offset:{v*1024} {WT}\nbuffer_store_dwordx4 {vr(36+8*v,4)}, v{vL16}, {SWS}, s61 offen offset:{2048+v*1024} {WT}')
    colsum2()
    a('s_mov_b32 exec_hi, 0')
    for v in range(2): a(f'buffer_store_dword v{28+v}, v30, {SWS}, s62 offen offset:{v*128} {WT}')
    a('s_mov_b32 exec_hi, -1')
    a.label('W_c4')
    a.wait_all()
    tag_ready(a)
    a('s_barrier')
    flag_w0(a, 's63', 's64', 48)
    stamp(a, 'w2pub')
    a('s_branch W_done2')
    a.label('W_c0'); a.lg = []; a.vm = []
    a(f'''s_mul_i32 s34, {sMm}, 24
    s_lshl_b32 s61, {sJt}, 2
    s_add_u32 s34, s34, s61
    v_bfe_u32 v4, v1, 4, 1
    v_add_u32 v4, s34, v4
    v_and_b32 v7, 15, v1
    v_lshlrev_b32 v7, 4, v7
    s_lshl_b32 s61, {sIt}, 2
    s_add_u32 s61, s61, {sW}
    s_mul_i32 s61, s61, 3072
    s_add_u32 s61, s61, {WS_W}
    s_lshl_b32 s62, {sIt}, 2
    s_add_u32 s62, s62, {sW}
    s_mul_i32 s62, s62, 192
    s_add_u32 s62, s62, {WS_W + 12*3072}''')
    for v in range(2):
        a(f'''v_add_u32 v5, {2*v}, v4
        v_mul_u32_u24 v6, 43, v5
        v_lshrrev_b32 v6, 7, v6
        v_mul_u32_u24 v8, 3, v6
        v_sub_u32 v5, v5, v8
        v_mul_u32_u24 v6, 39936, v6
        v_lshl_add_u32 v{160+v}, v5, 6, v6
        v_lshl_add_u32 v6, v5, 10, v6
        v_add_u32 v6, v6, v7
        v_lshl_add_u32 v{162+v}, v3, 8, v6
        v_lshrrev_b32 v6, 2, v7
        v_add_u32 v{160+v}, v{160+v}, v6''')
    a(f's_cmp_eq_u32 {sMm}, 1\ns_cbranch_scc1 W_c1')
    a(f'''v_lshrrev_b32 v5, 3, v2
    v_mul_u32_u24 v5, 6144, v5
    v_and_b32 v6, 7, v2
    v_lshl_add_u32 v5, v6, 7, v5
    v_bfe_u32 v6, v2, 1, 3
    v_xor_b32 v6, v6, v3
    v_lshl_add_u32 v5, v6, 4, v5
    v_add_u32 v{vBr}, {BB}, v5''')
    for k in range(1, 4): a(f'v_xor_b32 v{vBr+k}, {32*k}, v{vBr}')
    stages(2, brow)
    a('s_branch W_c2')
    a.label('W_c1'); a.lg = []
    a(f'''v_and_b32 v7, 3, v1
    v_lshl_add_u32 v4, v7, 3, v12
    v_add_u32 v{vBr}, {BB}, v4
    v_xor_b32 v{vBr+1}, 64, v{vBr}''')
    stages(2, btr)
    a.label('W_c2')
    stamp(a, 'qst')
    for v in range(2):
        for i in range(8): a(f'v_cvt_pk_bf16_f32 v{32+8*v+i}, v{AC+16*v+2*i}, v{AC+16*v+2*i+1}')
        a(f'buffer_store_dwordx4 {vr(32+8*v,4)}, v{162+v}, {SWS}, s61 offen {WT}')
        a(f'buffer_store_dwordx4 {vr(36+8*v,4)}, v{162+v}, {SWS}, s61 offen offset:512 {WT}')
    colsum2()
    a('s_mov_b32 exec_hi, 0')
    for v in range(2): a(f'buffer_store_dword v{28+v}, v{160+v}, {SWS}, s62 offen {WT}')
    a('s_mov_b32 exec_hi, -1')
    stamp(a, 'qsto')
    a('s_branch W_done')
    vA0, vBo = 12, 14
    def ld_addr():
        a(f'''v_lshrrev_b32 v4, 1, v{T8}
        v_xor_b32 v4, v4, v{G8}
        v_mul_u32_u24 v5, 2304, v{T8}
        v_lshl_add_u32 v{vA0}, v4, 4, v5
        v_xor_b32 v{vA0+1}, 64, v{vA0}
        v_lshlrev_b32 v4, 1, v{T8}
        v_and_b32 v4, 4, v4
        v_xor_b32 v4, v4, v{G8}
        v_mul_u32_u24 v5, 768, v{T8}
        v_lshl_add_u32 v{vBo}, v4, 4, v5''')
    sLn = ['s59', 's60', 's61', 's62', 's63', 's64']; sLb = ['s65', 's66', 's67', 's68', 's69', 's3']
    def lstages(nra, mode, first=None, after=None):
        if opt('prot', 1) and (nra == 3 or opt('protw', 1)): a(f's_mul_i32 s34, {sIt}, 3\ns_lshr_b32 s34, s34, 1\ns_add_u32 s34, s34, {sJt}')
        else: a('s_mov_b32 s34, 0')
        a('s_mov_b32 s48, s34')
        def lo(jj):
            a(f's_cmp_ge_u32 s48, 6\ns_cselect_b32 s35, 6, 0\ns_sub_u32 s48, s48, s35\ns_lshl_b32 s35, s48, 7\ns_add_u32 {sLn[jj]}, {sA}, s35')
            if mode == 1: a(f's_mul_i32 s35, s48, {64*768}')
            a(f's_add_u32 {sLb[jj]}, {sB}, s35\ns_add_u32 s48, s48, 1')
        def issue(jj):
            for r in range(nra):
                a(f'''s_add_u32 {sT0}, {sLn[jj]}, {r*8*2304}
                s_add_u32 m0, {sLA}, {(r*6+jj)*1024}
                buffer_load_dwordx4 v{vA0+(r&1)}, {SWQ}, {sT0} offen lds''', tag=f'p{jj}')
            for r in range(2):
                if mode == 0:
                    a(f'''s_add_u32 {sT0}, {sLb[jj]}, {r*8*2304}
                    s_add_u32 m0, {sLB}, {BB + (r*6+jj)*1024}
                    buffer_load_dwordx4 v{vA0+r}, {SWQ}, {sT0} offen lds''', tag=f'p{jj}')
                else:
                    a(f'''s_add_u32 {sT0}, {sLb[jj]}, {r*8*768}
                    s_add_u32 m0, {sLB}, {BB + jj*8192 + r*1024}
                    buffer_load_dwordx4 v{vBo}, {SWO}, {sT0} offen lds''', tag=f'p{jj}')
        n0 = opt('pn0', 3) if nra == 3 else opt('pn0w', 3)
        lo(0)
        if first: first()
        if nra == 3: stamp(a, 'Lgo2')
        for jj in range(n0): issue(jj); lo(jj + 1)
        for jj in range(n0 + 1, 6): lo(jj)
        if after: after()
        for jj in range(6):
            a.wait(vm=f'p{jj}')
            if jj in (0, 3, 5): stamp(a, f'Lp{jj}' if nra == 3 else f'Lq{jj}')
            a('s_barrier')
            if jj + n0 < 6: issue(jj + n0)
            if jj == opt('ptlb', 9): pages(a)
    markW1 = len(a.ins)
    a.vm = []; a.lg = []
    stamp(a, 'Larr2')
    ld_addr()
    a(f'''s_lshl_b32 s34, {sIt}, 2
    s_add_u32 s34, s34, {sW}
    s_mul_i32 {sA}, s34, {24*2304}
    s_add_u32 {sA}, {sA}, 1536
    s_mul_i32 {sLA}, {sW}, 18432
    s_mul_i32 {sB}, {sW}, {16*768}
    s_lshl_b32 s34, {sJt}, 7
    s_add_u32 {sB}, {sB}, s34
    s_lshl_b32 {sLB}, {sW}, 11
    s_and_b32 s34, {sW}, 1
    s_lshl_b32 s34, s34, 6
    v_xor_b32 v{vA0}, s34, v{vA0}
    v_xor_b32 v{vA0+1}, s34, v{vA0+1}''')
    def w2first():
        a('s_mov_b32 s10, 884736\ns_mov_b32 s11, 0x20000\ns_mov_b32 s14, 294912\ns_mov_b32 s15, 0x20000\ns_waitcnt lgkmcnt(0)')
        a('s_mov_b32 s8, s22\ns_mov_b32 s9, s23\ns_mov_b32 s12, s28\ns_mov_b32 s13, s29')
    def w2after():
        a(f's_mov_b32 s34, {WE}\ns_load_dword {sTag}, s[32:33], s34')
        srd(a, 16, 32, WS_SIZE); srd(a, 24, 38, 1572864)
        late_common(False)
    lstages(3, 1, w2first, w2after)
    a('s_branch W_done')
    markW2 = len(a.ins)
    a.ins[markW0:markW2] = a.ins[markW1:markW2] + a.ins[markW0:markW1]
    if opt("wfirst", 0):
        e = markW0 + (markW2 - markW1)
        a.ins[markP:e] = a.ins[markK:e] + a.ins[markP:markK]
    a.label('W_ld')
    ld_addr()
    a.label('W_l0'); a.vm = []
    if opt('prg', 9) >= 0:
        a(f'''s_waitcnt lgkmcnt(0)
        s_mul_i32 s35, {sTag}, 0x9e3779b1
        s_add_u32 s35, s35, 0x7f4a7c15
        s_add_u32 s35, s35, {sFast}
        s_lshl_b32 s34, {sXCD}, 7
        s_add_u32 s34, s34, {FP}
        v_mov_b32 v20, 0
        s_mov_b32 s56, {opt('prl', 16)}''')
        a.label('W_pw')
        a(f'''buffer_load_dword v21, v20, {SWS}, s34 offen sc1
        s_waitcnt vmcnt(0)
        v_cmp_ne_u32 vcc, s35, v21
        s_cbranch_vccz W_go
        s_sub_u32 s56, s56, 1
        s_cmp_lg_u32 s56, 0
        s_cbranch_scc1 W_pw''')
        a.label('W_go'); a.vm = []
        stamp(a, 'Lgo')
    srd(a, 8, 30, 884736); srd(a, 12, 36, 294912)
    a(f'''s_lshl_b32 s34, {sIt}, 2
    s_add_u32 s34, s34, {sW}
    s_mul_i32 {sA}, s34, {32*2304}
    s_mul_i32 s35, {sMm}, 1536
    s_add_u32 {sA}, {sA}, s35
    s_mul_i32 {sLA}, {sW}, 24576
    s_cmp_eq_u32 {sMm}, 1
    s_cbranch_scc1 W_l1
    s_lshl_b32 s34, {sJt}, 2
    s_add_u32 s34, s34, {sW}
    s_mul_i32 {sB}, s34, {16*2304}
    s_add_u32 {sB}, {sB}, 768
    s_mul_i32 {sLB}, {sW}, 12288''')
    lstages(4, 0)
    a('s_branch W_done')
    a.label('W_l1'); a.vm = []
    a(f'''s_mul_i32 {sB}, {sW}, {16*768}
    s_lshl_b32 s34, {sJt}, 7
    s_add_u32 {sB}, {sB}, s34
    s_lshl_b32 {sLB}, {sW}, 11''')
    lstages(4, 1)
    a.label('W_done'); a.vm = []; a.lg = []
    a.wait_all()
    tag_ready(a)
    a(f'''s_barrier
    s_cmp_lg_u32 {sRole}, 0
    s_cbranch_scc1 W_done3''')
    a.label('W_done2')
    a(f'''
    s_lshl_b32 s34, s49, 7
    s_mov_b32 s35, {GW}''')
    flag_w0(a, 's34', 's35', 32)
    stamp(a, 'wpub')
    hp_t0(a)
    if opt('tp', 9) == 3:
        a(f'''s_lshl_b32 s34, {sS8}, 2
        s_add_u32 s34, s34, {sW}
        s_mul_i32 s35, s34, 6656
        s_mul_i32 s36, {sXCD}, 212992
        s_add_u32 s35, s35, s36
        s_add_u32 s35, s35, {WS_Q}
        s_mul_i32 s36, s34, 6144
        s_mul_i32 s37, {sXCD}, 196608
        s_add_u32 s36, s36, s37
        s_add_u32 s36, s36, {WS_VP}''')
        for sb, n in (('s35', 7), ('s36', 6)):
            for i in range(n):
                if i == 4: a(f's_add_u32 {sb}, {sb}, 4096')
                a(f'buffer_load_dwordx4 v[64:67], v{vL16}, {SWS}, {sb} offen offset:{(i&3)*1024}')
        a(f's_lshl_b32 s34, {sXCD}, 9\ns_add_u32 s34, s34, {FC1}\nv_lshlrev_b32 v68, 3, v1\nbuffer_load_dword v64, v68, {SWS}, s34 offen')
        a.vm = []
    def wd3():
        a.label('W_done3')
        if opt('tp', 9) == 0: touch2(a)
        a('s_branch P2_l')
    TAIL.append(wd3)
    import v21b
    v21b.phase2(a, globals())
    a.label('K_end')
    a('s_endpgm')
    a.cond = True
    k = 0
    while k < len(TAIL): a.vm = []; a.lg = []; TAIL[k](); k += 1
    return a

KNAME = 'standalone__video_timesformer__vision_kernel'
if __name__ == '__main__':
    out = sys.argv[1]
    a = build()
    head = open('standalone__video_timesformer__vision.s.ref').read().split('; Override launch')[0]
    head += '''; One launch, 256 workgroups (one per CU) of 4 compute + 4 loader/helper waves.
'''
    s = head + '; @launch grid=(256,1,1) block=(512,1,1) lds=151552\n.amdgcn_target "amdgcn-amd-amdhsa--gfx950"\n.text\n'
    s += f'.globl {KNAME}\n.p2align 8\n.type {KNAME},@function\n{KNAME}:\n' + a.text()
    s += f'''; unreachable filler: the code warm-up load at the top reads a fixed 32 KiB behind the entry point
.fill 2048, 4, 0xbf810000
.section .rodata,"a"
.p2align 6
.amdhsa_kernel {KNAME}
  .amdhsa_next_free_vgpr 256
  .amdhsa_next_free_sgpr 102
  .amdhsa_accum_offset 256
  .amdhsa_group_segment_fixed_size 0
  .amdhsa_kernarg_size 64
  .amdhsa_user_sgpr_count 2
  .amdhsa_user_sgpr_kernarg_segment_ptr 1
  .amdhsa_system_sgpr_workgroup_id_x 1
.end_amdhsa_kernel
'''
    open(out, 'w').write(s)
    if PROFILE: open(out + '.stamps', 'w').write(repr(St.names))
    print('instructions', sum(1 for i in a.ins if not i.label), 'pad states', a.pads)
```
